```python
import torch

def _softmax(x, axis=-1):
    return torch.softmax(x, dim=axis)
def _gelu(x):
    return torch.nn.functional.gelu(x, approximate="tanh")
def _silu(x):
    return torch.nn.functional.silu(x)
def _sigmoid(x):
    return torch.sigmoid(x)
def _layernorm(x, axis=-1, eps=1e-5):
    m = x.mean(dim=axis, keepdim=True)
    v = x.var(dim=axis, keepdim=True, unbiased=False)
    return (x - m) / torch.sqrt(v + eps)
def _scatter_add(tgt, idx, src, axis=0):
    return tgt.clone().index_add_(axis, idx, src)
def _segment_sum(src, seg, n):
    out = torch.zeros((n,) + src.shape[1:], dtype=src.dtype)
    return out.index_add_(0, seg, src)
def _pad(x, pw):
    flat = tuple(v for pair in reversed(pw) for v in pair)
    return torch.nn.functional.pad(x, flat)

kernel_name = 'gather_scatter__cheap_equivariant_egnn__graph'

def setup_inputs():

    _w = (lambda a: (lambda t: t.to(torch.bfloat16) if t.is_floating_point() else t)(torch.as_tensor(a)))
    N, deg, D, De = 12500, 64, 64, max(16, 1)
    E = N * deg
    return {
        "h": _w((lambda *s: torch.randn(*s, dtype=torch.bfloat16) * 0.1)(N, D)),
        "pos": _w((lambda *s: torch.randn(*s, dtype=torch.bfloat16) * 0.8)(N, 3)),
        "e_attr": _w((lambda *s: torch.randn(*s, dtype=torch.bfloat16) * 0.8)(E, De)),
        "src": _w((lambda lo, hi, *s: torch.randint(lo, hi, s))(0, N, E).to(torch.int64)),
        "dst": _w((lambda lo, hi, *s: torch.randint(lo, hi, s))(0, N, E).to(torch.int64)),
        "w_e": _w(0.1 * (lambda *s: torch.randn(*s, dtype=torch.bfloat16) * 0.8)(2 * D + 1 + De, D)),
        "w_x": _w(0.1 * (lambda *s: torch.randn(*s, dtype=torch.bfloat16) * 0.1)(D, 1)),
        "w_h": _w(0.1 * (lambda *s: torch.randn(*s, dtype=torch.bfloat16) * 0.1)(2 * D, D)),
    }

def reference(h, pos, e_attr, src, dst, w_e, w_x, w_h):
    N, D = h.shape[0], h.shape[1]
    diff = pos[dst] - pos[src]
    dist2 = torch.sum(diff * diff, axis=-1, keepdims=True)
    e_in = torch.concatenate([h[dst], h[src], dist2, e_attr], axis=-1)
    m_ij = _silu(e_in @ w_e)
    coord_scale = m_ij @ w_x
    pos_new = pos + _segment_sum(diff * coord_scale, dst, N)
    m_i = _segment_sum(m_ij, dst, N)
    h_new = h + _silu(torch.concatenate([h, m_i], axis=-1) @ w_h)
    return h_new, pos_new
```

```python
import re

TRANS = ('v_exp_f32','v_log_f32','v_rcp_f32','v_rsq_f32','v_sqrt_f32','v_sin_f32','v_cos_f32','v_rcp_iflag_f32','v_exp_f16','v_rcp_f16')

def regs_of(tok):
    tok = tok.strip()
    neg = tok.lstrip('-')
    if neg.startswith('abs(') and neg.endswith(')'): neg = neg[4:-1]
    if neg.startswith('|') and neg.endswith('|'): neg = neg[1:-1]
    m = re.fullmatch(r'([vsa])(\d+)', neg)
    if m: return [(m.group(1), int(m.group(2)))]
    m = re.fullmatch(r'([vsa])\[(\d+):(\d+)\]', neg)
    if m: return [(m.group(1), i) for i in range(int(m.group(2)), int(m.group(3))+1)]
    if neg in ('vcc','vcc_lo','vcc_hi'): return [('vcc',0)]
    if neg in ('exec','exec_lo','exec_hi'): return [('exec',0)]
    if neg == 'm0': return [('m0',0)]
    return []

class Ins:
    __slots__=('text','op','dst','src','kind','states','mods')
    def __init__(self, text):
        self.text = text
        t = text.split(';')[0].strip()
        self.op = t.split()[0] if t else ''
        self.dst=[]; self.src=[]; self.kind='other'; self.states=1
        if not t or t.endswith(':') or t.startswith('.'):
            self.kind='label' if t.endswith(':') else 'dir'; self.states=0; return
        rest = t[len(self.op):].strip()
        ops = [x.strip() for x in rest.split(',')] if rest else []
        if ops:
            last = ops[-1].split()
            ops[-1] = last[0] if last else ''
            self.mods = last[1:]
        op=self.op
        R = regs_of
        if op=='s_nop':
            self.kind='nop'; self.states=int(ops[0],0)+1; return
        if op.startswith('v_mfma'):
            self.kind='mfma'; self.dst=R(ops[0]); self.src=R(ops[1])+R(ops[2])+R(ops[3]); return
        if op.startswith('v_cmp'):
            self.kind='valu'; self.dst=R(ops[0]); self.src=sum((R(o) for o in ops[1:]),[])
            if op.startswith('v_cmpx'): self.dst += [('exec',0)]
            return
        if op.startswith('v_readlane') or op.startswith('v_readfirstlane'):
            self.kind='valu'; self.dst=R(ops[0]); self.src=sum((R(o) for o in ops[1:]),[]); return
        if op.startswith('v_'):
            self.kind='valu'; self.dst=R(ops[0]); self.src=sum((R(o) for o in ops[1:]),[])
            if op.startswith(('v_add_co','v_sub_co','v_addc_co','v_subb_co','v_subrev_co')):
                self.dst+=R(ops[1]); self.src=sum((R(o) for o in ops[2:]),[])
            if op.startswith('v_cndmask') and len(ops)==3: self.src+= [('vcc',0)]
            if op.startswith(('v_fmac','v_mac','v_dot2c')) or 'dpp' in op or 'sdwa' in op or op.startswith('v_writelane'): self.src+=self.dst
            if op.startswith('v_permlane') : self.src+=self.dst; self.dst+=R(ops[1])
            return
        if op.startswith('ds_'):
            self.kind='ds'
            if op.startswith(('ds_read','ds_bpermute','ds_permute','ds_swizzle')) or '_rtn' in op:
                self.dst=R(ops[0]); self.src=sum((R(o) for o in ops[1:]),[])
            else:
                self.src=sum((R(o) for o in ops),[])
            return
        if op.startswith(('buffer_','global_')):
            self.kind='vmem'
            lds = ' lds' in t
            if 'load' in op and not lds:
                self.dst=R(ops[0]); self.src=sum((R(o) for o in ops[1:]),[])
            else:
                self.src=sum((R(o) for o in ops),[])
            if lds: self.src+=[('m0',0)]
            return
        if op.startswith('s_'):
            self.kind='salu'
            if op.startswith(('s_cmp','s_cbranch','s_branch','s_waitcnt','s_barrier','s_endpgm','s_setprio','s_sleep','s_bitcmp')):
                self.src=sum((R(o) for o in ops),[])
            else:
                self.dst=R(ops[0]) if ops else []; self.src=sum((R(o) for o in ops[1:]),[])
                if 'saveexec' in op: self.dst+=[('exec',0)]; self.src+=[('exec',0)]
            return

def is_sreg(r): return r[0] in ('s','vcc')

def need(prev, cur):
    n=0
    pd=set(prev.dst); cs=set(cur.src); cd=set(cur.dst)
    if prev.kind=='valu':
        vd={r for r in pd if r[0]=='v'}
        sd={r for r in pd if is_sreg(r)}
        if cur.kind=='mfma' and vd & cs: n=max(n,2)
        if prev.op.replace('_e32','').replace('_e64','') in TRANS and cur.kind in('valu','mfma') and vd & cs: n=max(n,1)
        if cur.kind=='valu':
            if ('dpp' in cur.op or 'row_' in cur.text or 'quad_perm' in cur.text) and vd & cs: n=max(n,2)
            if cur.op.startswith(('v_readlane','v_readfirstlane')) and vd & cs: n=max(n,1)
            if cur.op.startswith('v_permlane') and vd & (cs|cd): n=max(n,2)
            if sd & cs:
                n=max(n, 4 if cur.op.startswith(('v_readlane','v_writelane')) else 2)
        if cur.kind=='vmem' and sd & cs: n=max(n,5)
        if ('exec',0) in pd:
            if cur.kind=='mfma': n=max(n,4)
            if cur.kind=='valu' and ('dpp' in cur.op or 'row_' in cur.text): n=max(n,5)
            if cur.op.startswith(('v_readlane','v_readfirstlane','v_writelane','v_permlane')): n=max(n,4)
        if 'sdwa' in prev.op and cur.kind=='valu' and vd & (cs|cd): n=max(n,1)
    if prev.kind=='mfma':
        big = '32x32' in prev.op
        if cur.kind=='mfma':
            a_b = set(cur.srcAB) if hasattr(cur,'srcAB') else None
            ops=[x.strip() for x in cur.text.split(';')[0].strip()[len(cur.op):].split(',')]
            A=set(regs_of(ops[1])); B=set(regs_of(ops[2])); C=set(regs_of(ops[3].split()[0]))
            if pd & (A|B): n=max(n,12 if big else 8)
            if pd & C and pd!=C: n=max(n,10 if big else 6)
        elif cur.kind in('valu','ds','vmem'):
            if pd & (cs|cd): n=max(n,12 if big else 8)
        if cur.kind=='valu':
            ops=[x.strip() for x in prev.text.split(';')[0].strip()[len(prev.op):].split(',')]
            C=set(regs_of(ops[3].split()[0]))
            if C & cd: n=max(n,7 if big else 3)
    if prev.kind=='salu' and ('m0',0) in pd and cur.kind=='vmem' and ('m0',0) in cs: n=max(n,1)
    if prev.kind=='vmem' and 'store' in prev.op and ('x4' in prev.op or 'x3' in prev.op) and cur.kind=='valu':
        if set(prev.src) & {r for r in cd if r[0]=='v'}: n=max(n,2)
    return n

class Asm:
    def __init__(self): self.lines=[]
    def __call__(self, s):
        for ln in s.split('\n'):
            ln=ln.strip()
            if ln: self.lines.append(ln)
    def label(self,n): self.lines.append(n+':')
    def finalize(self, verbose=False):
        out=[]; hist=[]
        nins=0
        for ln in self.lines:
            ins=Ins(ln)
            if ins.kind in('dir',) or ins.op=='' or ln.startswith(';'):
                out.append(ln); continue
            if ins.kind=='label':
                out.append(ln); continue
            dist=0; req=0
            for p in reversed(hist):
                r=need(p,ins)
                if r>dist: req=max(req,r-dist)
                dist+=p.states
                if dist>=14: break
            while req>0:
                k=min(req,8)
                nl=f's_nop {k-1}'; out.append('    '+nl); hist.append(Ins(nl)); req-=k; nins+=1
            out.append('    '+ln); hist.append(ins)
            if len(hist)>40: hist=hist[-20:]
        return '\n'.join(out)+'\n'
```

```python
import sys, math
from asmlib import Asm

N=12500; E=800000; CH=3200; NCH=250; NBK=256; BN=49
ROW=4224
OFFS=0; ENT=0x110000; WF=0x420000; TM=0x500000
NF=38; WD=WF+NF*1024
CAP=3584
LOG2E=1.4426950408889634
def f32bits(x):
    import struct; return struct.unpack('<I',struct.pack('<f',x))[0]

DEBUG_TM = '--tm' in sys.argv

F_W2=0
F_W3=8
F_W1=10
F_H1=18
F_H2=26
F_WX=34

def stamp(a, slot_sgpr_pair, idx, nw, tmp_v):
    pass

def gen_k1():
    a=Asm()
    K1_STAGE=8192; K1_WTOT=24576
    a.label('egnn_part_kernel')
    a(f'''
    s_cmp_gt_u32 s2, {NCH}
    s_cbranch_scc1 L1_end
    v_lshrrev_b32 v2, 6, v0
    v_and_b32 v1, 63, v0
    s_load_dwordx4 s[4:7], s[0:1], 24
    s_load_dwordx2 s[8:9], s[0:1], 80
    v_readfirstlane_b32 s3, v2
    s_cmp_eq_u32 s2, {NCH}
    s_cbranch_scc1 L1_wprep
    v_lshlrev_b32 v3, 4, v0
    v_mov_b32 v4, 0
    v_mov_b32 v5, 0
    v_mov_b32 v6, 0
    v_mov_b32 v7, 0
    ds_write_b128 v3, v[4:7]
    s_mul_i32 s10, s2, {CH*4}
    s_mul_i32 s11, s2, {ROW}
    v_add_u32 v48, 8192, v3
    s_waitcnt lgkmcnt(0)
    s_add_u32 s12, s6, s10
    s_addc_u32 s13, s7, 0
    s_mov_b32 s14, {CH*4}
    s_mov_b32 s15, 0x20000
    s_add_u32 s16, s4, s10
    s_addc_u32 s17, s5, 0
    s_mov_b32 s18, {CH*4}
    s_mov_b32 s19, 0x20000
    buffer_load_dwordx4 v[8:11], v3, s[12:15], 0 offen
    buffer_load_dwordx4 v[12:15], v48, s[12:15], 0 offen
    buffer_load_dwordx4 v[16:19], v3, s[16:19], 0 offen
    buffer_load_dwordx4 v[20:23], v48, s[16:19], 0 offen
    s_add_u32 s24, s8, {OFFS}
    s_addc_u32 s25, s9, 0
    s_add_u32 s24, s24, s11
    s_addc_u32 s25, s25, 0
    s_mov_b32 s26, {ROW}
    s_mov_b32 s27, 0x20000
    s_add_u32 s28, s8, {ENT}
    s_addc_u32 s29, s9, 0
    s_add_u32 s28, s28, s10
    s_addc_u32 s29, s29, 0
    s_mov_b32 s30, {CH*4}
    s_mov_b32 s31, 0x20000
    s_mov_b32 s22, -{BN}
    v_mov_b32 v50, 1
    v_lshlrev_b32 v51, 5, v0
    v_add_u32 v52, 16384, v51
    s_barrier
    s_waitcnt vmcnt(2)
    ''')
    def keyslot(i, dst, tmp):
        a(f'''
        v_mul_u32_u24 v{tmp}, 21400, v{dst}
        v_lshrrev_b32 v{tmp}, 20, v{tmp}
        v_mad_i32_i24 v{40+i}, v{tmp}, s22, v{dst}
        v_and_b32 v{tmp+1}, 7, v{40+i}
        v_lshl_or_b32 v{tmp}, v{tmp}, 3, v{tmp+1}
        v_lshlrev_b32 v{24+i}, 2, v{tmp}
        ''')
    for u in range(4):
        keyslot(u, 8+u, 54+2*u)
        a(f'ds_add_rtn_u32 v{32+u}, v{24+u}, v50')
    a('''
    v_cmp_gt_u32 vcc, 288, v0
    s_and_saveexec_b64 s[20:21], vcc
    s_cbranch_execz L1_skipB1
    ''')
    for u in range(4):
        keyslot(4+u, 12+u, 54+2*u)
        a(f'ds_add_rtn_u32 v{36+u}, v{28+u}, v50')
    a.label('L1_skipB1')
    a('s_mov_b64 exec, s[20:21]')
    a('s_waitcnt vmcnt(0)')
    for i in range(8):
        base = 51 if i<4 else 52
        a(f'''
        v_lshrrev_b32 v54, 3, v{40+i}
        v_lshl_or_b32 v54, v{40+i}, 29, v54
        v_lshl_or_b32 v54, v{16+i}, 15, v54
        v_add3_u32 v{40+i}, v54, v{base}, {8*(i%4)}
        ''')
    a('''
    s_waitcnt lgkmcnt(0)
    s_barrier
    ds_read_b128 v[8:11], v3
    s_waitcnt lgkmcnt(0)
    v_add_u32 v12, v8, v9
    v_add_u32 v13, v12, v10
    v_add_u32 v14, v13, v11
    v_mov_b32 v15, v14
    ''')
    for sh in (1,2,4,8):
        a(f'v_add_u32_dpp v15, v15, v15 row_shr:{sh} row_mask:0xf bank_mask:0xf')
    a('v_add_u32_dpp v15, v15, v15 row_bcast:15 row_mask:0xa bank_mask:0xf')
    a('v_add_u32_dpp v15, v15, v15 row_bcast:31 row_mask:0xc bank_mask:0xf')
    a(f'''
    s_lshl_b32 s10, s3, 2
    s_add_u32 s10, s10, {K1_WTOT}
    v_mov_b32 v16, s10
    s_mov_b32 s20, 0
    s_brev_b32 s21, 1
    s_mov_b64 exec, s[20:21]
    ds_write_b32 v16, v15
    s_mov_b64 exec, -1
    v_and_b32 v17, 7, v1
    v_lshlrev_b32 v17, 2, v17
    v_add_u32 v17, {K1_WTOT}, v17
    s_waitcnt lgkmcnt(0)
    s_barrier
    ds_read_b32 v18, v17
    v_cmp_gt_u32 vcc, s3, v1
    s_waitcnt lgkmcnt(0)
    v_cndmask_b32 v18, 0, v18, vcc
    ''')
    for sh in (1,2,4):
        a(f'v_add_u32_dpp v18, v18, v18 row_shr:{sh} row_mask:0xf bank_mask:0xf')
    a(f'''
    v_readlane_b32 s10, v18, 7
    v_sub_u32 v15, v15, v14
    v_add_u32 v8+0, s10, v15
    '''.replace('v8+0','v19'))
    a(f'''
    v_add_u32 v21, v19, v12
    v_add_u32 v22, v19, v13
    v_add_u32 v20, v19, v8
    v_mov_b32 v56, v19
    v_mov_b32 v57, v20
    v_mov_b32 v58, v21
    v_mov_b32 v59, v22
    ds_write_b128 v3, v[56:59]
    v_lshl_or_b32 v60, v20, 16, v19
    v_lshl_or_b32 v61, v22, 16, v21
    v_lshlrev_b32 v62, 3, v0
    buffer_store_dwordx2 v[60:61], v62, s[24:27], 0 offen
    s_cmp_lg_u32 s3, 0
    s_cbranch_scc1 L1_nosent
    s_mov_b32 s10, {CH | (CH<<16)}
    v_mov_b32 v63, s10
    v_lshlrev_b32 v62, 2, v1
    v_add_u32 v62, 4096, v62
    v_cmp_gt_u32 vcc, 32, v1
    s_and_saveexec_b64 s[20:21], vcc
    buffer_store_dword v63, v62, s[24:27], 0 offen
    s_mov_b64 exec, s[20:21]
    ''')
    a.label('L1_nosent')
    a('''
    s_waitcnt lgkmcnt(0)
    s_barrier
    ''')
    for u in range(4):
        a(f'ds_read_b32 v{8+u}, v{24+u}')
    a('''
    v_cmp_gt_u32 vcc, 288, v0
    s_and_saveexec_b64 s[20:21], vcc
    s_cbranch_execz L1_skipB2
    ''')
    for u in range(4):
        a(f'ds_read_b32 v{12+u}, v{28+u}')
    a('s_waitcnt lgkmcnt(0)')
    for u in range(4):
        a(f'v_add_lshl_u32 v{12+u}, v{12+u}, v{36+u}, 2')
    for u in range(4):
        a(f'ds_write_b32 v{12+u}, v{44+u} offset:{K1_STAGE}')
    a.label('L1_skipB2')
    a('s_mov_b64 exec, s[20:21]')
    a('s_waitcnt lgkmcnt(0)')
    for u in range(4):
        a(f'v_add_lshl_u32 v{8+u}, v{8+u}, v{32+u}, 2')
    for u in range(4):
        a(f'ds_write_b32 v{8+u}, v{40+u} offset:{K1_STAGE}')
    a(f'''
    s_waitcnt lgkmcnt(0)
    s_barrier
    ds_read_b128 v[8:11], v3 offset:{K1_STAGE}
    ds_read_b128 v[12:15], v3 offset:{K1_STAGE+8192}
    s_waitcnt lgkmcnt(1)
    buffer_store_dwordx4 v[8:11], v3, s[28:31], 0 offen
    s_waitcnt lgkmcnt(0)
    buffer_store_dwordx4 v[12:15], v48, s[28:31], 0 offen
    s_endpgm
    ''')
    a.label('L1_wprep')
    a(f'''
    s_load_dwordx2 s[10:11], s[0:1], 40
    s_load_dwordx2 s[12:13], s[0:1], 48
    s_load_dwordx2 s[14:15], s[0:1], 56
    v_and_b32 v2, 31, v1
    v_lshrrev_b32 v3, 5, v1
    v_lshlrev_b32 v4, 4, v1
    s_waitcnt lgkmcnt(0)
    s_mov_b32 s16, s10
    s_mov_b32 s17, s11
    s_mov_b32 s18, {145*64*2}
    s_mov_b32 s19, 0x20000
    s_mov_b32 s20, s14
    s_mov_b32 s21, s15
    s_mov_b32 s22, {128*64*2}
    s_mov_b32 s23, 0x20000
    s_mov_b32 s24, s12
    s_mov_b32 s25, s13
    s_mov_b32 s26, {64*2}
    s_mov_b32 s27, 0x20000
    s_add_u32 s28, s8, {WF}
    s_addc_u32 s29, s9, 0
    s_mov_b32 s30, {NF*1024+256}
    s_mov_b32 s31, 0x20000
    s_mov_b32 s32, {f32bits(-LOG2E)}
    v_lshlrev_b32 v5, 1, v2
    v_lshl_add_u32 v6, v3, 10, v5
    v_lshl_add_u32 v7, v3, 9, v5
    v_lshlrev_b32 v8, 3, v3
    ''')
    frags=[]
    for s in range(4):
        for blk in range(2): frags.append((F_W2+2*s+blk,'e',64+16*s,blk,'std',True))
    for blk in range(2): frags.append((F_W3+blk,'e',129,blk,'std',True))
    for s in range(4):
        for blk in range(2): frags.append((F_W1+2*s+blk,'e',16*s,blk,'std',True))
    for s in range(4):
        for blk in range(2): frags.append((F_H1+2*s+blk,'h',16*s,blk,'std',False))
    for blk in range(2):
        for sp in range(2):
            for b2 in range(2): frags.append((F_H2+(blk*2+sp)*2+b2,'h',64+32*blk+16*sp,b2,'perm',False))
    for blk in range(2):
        for sp in range(2): frags.append((F_WX+blk*2+sp,'x',32*blk+16*sp,0,'wx',False))
    assert len(frags)==NF
    for wv in range(8):
        a(f's_cmp_eq_u32 s3, {wv}')
        a(f's_cbranch_scc1 L1_w{wv}')
    a('s_endpgm')
    for wv in range(8):
        a.label(f'L1_w{wv}')
        mine=[f for i,f in enumerate(frags) if i%8==wv]
        for q,(F,srcn,row0,blk,kind,scaled) in enumerate(mine):
            r=16+8*q
            srd={'e':'s[16:19]','h':'s[20:23]','x':'s[24:27]'}[srcn]
            if kind=='wx':
                a(f'v_add_u32 v10, {row0*2}, v8')
                for t in range(8):
                    T=(t&3)+8*(t>>2)
                    a(f'buffer_load_ushort v{r+t}, v10, {srd}, 0 offen offset:{T*2}')
            else:
                vb = 6 if kind=='std' else 7
                a(f'v_add_u32 v10, {row0*128+blk*64}, v{vb}')
                for t in range(8):
                    T= t if kind=='std' else (t&3)+8*(t>>2)
                    a(f'buffer_load_ushort v{r+t}, v10, {srd}, 0 offen offset:{T*128}')
        if wv==0:
            a(f'''
            v_lshlrev_b32 v11, 1, v1
            v_add_u32 v11, {128*128}, v11
            buffer_load_ushort v12, v11, s[16:19], 0 offen
            ''')
        a('s_waitcnt vmcnt(0)')
        for q,(F,srcn,row0,blk,kind,scaled) in enumerate(mine):
            r=16+8*q
            if scaled:
                for t in range(8):
                    a(f'v_lshlrev_b32 v{r+t}, 16, v{r+t}')
                for t in range(8):
                    a(f'v_mul_f32 v{r+t}, s32, v{r+t}')
                for t in range(4):
                    a(f'v_cvt_pk_bf16_f32 v{64+t}, v{r+2*t}, v{r+2*t+1}')
            else:
                for t in range(4):
                    a(f'v_lshl_or_b32 v{64+t}, v{r+2*t+1}, 16, v{r+2*t}')
            a(f'v_add_u32 v10, {F*1024}, v4')
            a(f'buffer_store_dwordx4 v[64:67], v10, s[28:31], 0 offen')
            a('s_nop 1')
        if wv==0:
            a(f'''
            v_lshlrev_b32 v12, 16, v12
            v_mul_f32 v12, s32, v12
            v_cvt_pk_bf16_f32 v12, v12, v12
            v_and_b32 v12, 0xffff0000, v12
            v_lshlrev_b32 v11, 2, v1
            v_add_u32 v11, {NF*1024}, v11
            buffer_store_dword v12, v11, s[28:31], 0 offen
            ''')
        a('s_endpgm')
    a.label('L1_end')
    a('s_endpgm')
    return a.finalize(), 72, 40, K1_WTOT+64

L_G=0; L_R0=28672; L_RS=43264; L_S=50432; L_RING=66816; L_GTAB=148736; L_WTOT=156928; L_END=157184
SLOT=5120
vW2=16; vW3=48; vW6=56; vD2=64; vD1=96; vE=128; vX=160; vXE=176; vX6=180; vSF=184; vM=192; vONE=208
vHA=212; vEAr=216; vX6a=217; vSTa=218; vC2=219; vMK2=220; vEAc=221; vHP=222
vRSa=230; vR0a=231; vR0e=232; vGe=233; vR0=234; vG=235; vA1=236; vA2=237; vEAi=238; vEAo=239; vOne=240
vZero=vONE+1
sH=4; sEA=8; sOF=12; sEN=16; sPOS=20; sWF=24; sO0=28; sO1=32
sW0=46; sW1=47; sG=3; sCNT=48; sBASE=49; sNT=50; sT=51; sRB=52; sNODE0=53

def gen_k2():
    a=Asm()
    a.label('egnn_main_kernel')
    a(f'''
    s_cmp_ge_u32 s2, {NBK}
    s_cbranch_scc1 L2_end
    s_load_dwordx4 s[36:39], s[0:1], 0
    s_load_dwordx2 s[40:41], s[0:1], 16
    s_load_dwordx2 s[42:43], s[0:1], 64
    s_load_dwordx2 s[44:45], s[0:1], 80
    v_and_b32 v1, 63, v0
    v_lshrrev_b32 v2, 6, v0
    v_lshrrev_b32 v3, 1, v0
    v_readfirstlane_b32 s{sG}, v2
    v_and_b32 v9, 1, v0
    s_mul_i32 s{sNODE0}, s2, {BN}
    s_lshl_b32 s54, s2, 4
    s_mov_b32 s55, {ROW}
    v_mov_b32 v96, s54
    v_mad_u32_u24 v96, v3, s55, v96
    s_waitcnt lgkmcnt(0)
    s_add_u32 s{sOF}, s44, {OFFS}
    s_addc_u32 s{sOF+1}, s45, 0
    s_mov_b32 s{sOF+2}, {NCH*ROW}
    s_mov_b32 s{sOF+3}, 0x20000
    buffer_load_dwordx4 v[4:7], v96, s[{sOF}:{sOF+3}], 0 offen
    buffer_load_ushort v8, v96, s[{sOF}:{sOF+3}], 0 offen offset:16
    s_mov_b32 s{sH}, s36
    s_or_b32 s{sH+1}, s37, 0x800000
    s_mov_b32 s{sH+2}, {N}
    s_mov_b32 s{sH+3}, 0x20000
    s_mov_b32 s{sEA}, s40
    s_mov_b32 s{sEA+1}, s41
    s_mov_b32 s{sEA+2}, {E*32}
    s_mov_b32 s{sEA+3}, 0x20000
    s_add_u32 s{sEN}, s44, {ENT}
    s_addc_u32 s{sEN+1}, s45, 0
    s_mov_b32 s{sEN+2}, {NCH*CH*4}
    s_mov_b32 s{sEN+3}, 0x20000
    s_mov_b32 s{sPOS}, s38
    s_mov_b32 s{sPOS+1}, s39
    s_mov_b32 s{sPOS+2}, {N*6}
    s_mov_b32 s{sPOS+3}, 0x20000
    s_add_u32 s{sWF}, s44, {WF}
    s_addc_u32 s{sWF+1}, s45, 0
    s_mov_b32 s{sWF+2}, {NF*1024+256}
    s_mov_b32 s{sWF+3}, 0x20000
    s_mov_b32 s{sO0}, s42
    s_or_b32 s{sO0+1}, s43, 0x800000
    s_mov_b32 s{sO0+2}, {N}
    s_mov_b32 s{sO0+3}, 0x20000
    s_add_u32 s{sO1}, s42, {N*128}
    s_addc_u32 s{sO1+1}, s43, 0
    s_mov_b32 s{sO1+2}, {N*6}
    s_mov_b32 s{sO1+3}, 0x20000
    s_add_u32 s{sNODE0}, s{sNODE0}, s{sG}
    ''')
    a('v_lshlrev_b32 v97, 4, v1')
    for f in range(8):
        a(f'v_add_u32 v98, {(F_W1+f)*1024}, v97')
        a(f'buffer_load_dwordx4 v[{128+4*f}:{131+4*f}], v98, s[{sWF}:{sWF+3}], 0 offen')
    a(f'''
    v_and_b32 v100, 3, v1
    v_bfe_u32 v101, v1, 3, 1
    v_lshl_add_u32 v100, v101, 2, v100
    v_lshlrev_b32 v101, 3, v100
    v_add_u32 v102, s{sG}, v101
    v_add_u32 v101, s{sNODE0}, v101
    v_and_b32 v103, 20, v1
    v_cmp_eq_u32 s[56:57], 0, v103
    v_cmp_gt_u32 vcc, {BN}, v102
    s_and_b64 vcc, vcc, s[56:57]
    v_mov_b32 v104, -1
    v_cndmask_b32 v100, v104, v101, vcc
    v_lshrrev_b32 v101, 5, v1
    v_lshlrev_b32 v101, 4, v101
    ''')
    for s in range(4):
        a(f'buffer_load_dwordx4 v[{160+4*s}:{163+4*s}], v[100:101], s[{sH}:{sH+3}], 0 idxen offen offset:{32*s}')
    a(f'''
    v_lshlrev_b32 v102, 2, v1
    v_add_u32 v102, {NF*1024}, v102
    v_cmp_gt_u32 vcc, 32, v1
    v_mov_b32 v103, 0x7fffff00
    v_cndmask_b32 v102, v103, v102, vcc
    buffer_load_dword v176, v102, s[{sWF}:{sWF+3}], 0 offen
    buffer_load_dword v177, v102, s[{sWF}:{sWF+3}], 0 offen offset:128
    ''')
    for f in range(10):
        a(f'v_add_u32 v98, {(F_W2+f)*1024}, v97')
        a(f'buffer_load_dwordx4 v[{vW2+4*f}:{vW2+4*f+3}], v98, s[{sWF}:{sWF+3}], 0 offen')
    for i in range(32):
        a(f'v_mov_b32 v{vD2+i}, 0')
    for i in range(32):
        a(f'v_mov_b32 v{vD1+i}, 0')
    a('s_waitcnt vmcnt(10)')
    for blk in range(2):
        for s in range(4):
            a(f'v_mfma_f32_32x32x16_bf16 v[{96+16*blk}:{111+16*blk}], v[{160+4*s}:{163+4*s}], v[{128+4*(2*s+blk)}:{131+4*(2*s+blk)}], v[{96+16*blk}:{111+16*blk}]')
    for blk in range(2):
        for q in range(4):
            a(f'v_cvt_pk_bf16_f32 v{vW6+4*blk+q}, v{96+16*blk+2*q}, v{96+16*blk+2*q+1}')
        a(f'v_and_b32 v{vW6+4*blk+3}, 0xffff, v{vW6+4*blk+3}')
        a(f'v_or_b32 v{vW6+4*blk+3}, v{vW6+4*blk+3}, v{176+blk}')
    a(f'''
    v_and_b32 v96, 31, v1
    v_lshrrev_b32 v97, 5, v1
    s_mul_i32 s{sRB}, s{sG}, {2*SLOT}
    s_add_u32 s{sRB}, s{sRB}, {L_RING}
    v_bfe_u32 v98, v96, 1, 3
    v_lshlrev_b32 v99, 7, v96
    v_add_u32 v99, s{sRB}, v99
    ''')
    for s in range(4):
        a(f'''
        v_add_u32 v100, {2*s}, v97
        v_xor_b32 v100, v100, v98
        v_lshl_add_u32 v{vHA+s}, v100, 4, v99
        ''')
    a(f'''
    v_lshrrev_b32 v100, 4, v96
    v_xor_b32 v100, v100, v97
    v_lshlrev_b32 v100, 4, v100
    v_lshl_add_u32 v100, v96, 5, v100
    v_add_u32 v100, s{sRB}, v100
    v_add_u32 v{vEAr}, 4096, v100
    s_lshl_b32 s54, s{sG}, 11
    s_add_u32 s54, s54, {L_S}
    v_lshlrev_b32 v100, 6, v96
    v_add_u32 v100, s54, v100
    v_lshl_add_u32 v{vX6a}, v97, 4, v100
    v_cmp_gt_u32 vcc, 32, v1
    v_add_u32 v101, 48, v100
    v_add_u32 v102, 14, v100
    v_cndmask_b32 v{vC2}, v102, v101, vcc
    v_cndmask_b32 v{vMK2}, 0, 14, vcc
    v_and_b32 v100, 15, v1
    v_lshrrev_b32 v100, 2, v100
    v_lshl_add_u32 v100, v97, 2, v100
    v_lshlrev_b32 v100, 6, v100
    v_bfe_u32 v101, v1, 4, 1
    v_lshl_add_u32 v100, v101, 5, v100
    v_and_b32 v101, 3, v1
    v_lshl_add_u32 v100, v101, 3, v100
    v_add_u32 v{vSTa}, s54, v100
    v_and_b32 v100, 1, v1
    v_lshrrev_b32 v101, 5, v1
    v_xor_b32 v100, v100, v101
    v_lshlrev_b32 v{vEAc}, 4, v100
    v_and_b32 v100, 7, v1
    v_lshrrev_b32 v101, 4, v1
    v_xor_b32 v102, v100, v101
    v_lshlrev_b32 v{vHP+1}, 4, v102
    v_lshlrev_b32 v{vHP+5}, 4, v102
    v_add_u32 v101, 4, v101
    v_xor_b32 v102, v100, v101
    v_lshlrev_b32 v{vHP+3}, 4, v102
    v_lshlrev_b32 v{vHP+7}, 4, v102
    v_mov_b32 v{vOne}, 0x3f80
    v_cmp_gt_u32 vcc, 32, v1
    v_mov_b32 v{vONE+1}, 0
    v_mov_b32 v{vONE+2}, 0
    v_mov_b32 v{vONE+3}, 0
    v_cndmask_b32 v{vONE}, 0, v{vOne}, vcc
    s_mov_b32 s{sW0}, 0
    s_mov_b32 s{sW1}, {NCH}
    ''')
    a.label('L2_batch')
    a('s_barrier')
    a(f'''
    v_alignbit_b32 v100, v5, v4, 16
    v_alignbit_b32 v101, v6, v5, 16
    v_alignbit_b32 v102, v7, v6, 16
    v_alignbit_b32 v103, v8, v7, 16
    v_pk_sub_u16 v100, v100, v4
    v_pk_sub_u16 v101, v101, v5
    v_pk_sub_u16 v102, v102, v6
    v_pk_sub_u16 v103, v103, v7
    v_and_b32 v105, 0xffff, v4
    v_sub_u32 v104, v8, v105
    s_sub_u32 s54, s{sW1}, s{sW0}
    v_subrev_u32 v106, s{sW0}, v3
    v_cmp_gt_u32 vcc, s54, v106
    v_cmp_eq_u32 s[56:57], 0, v9
    s_mov_b32 s55, {CH*4}
    v_lshlrev_b32 v107, 2, v105
    v_lshl_add_u32 v107, v9, 4, v107
    v_mad_u32_u24 v107, v3, s55, v107
    ''')
    for q in range(5):
        a(f'v_cndmask_b32 v{100+q}, 0, v{100+q}, vcc')
    for i in range(4):
        a(f'buffer_load_dwordx4 v[{112+4*i}:{115+4*i}], v107, s[{sEN}:{sEN+3}], 0 offen offset:{32*i}')
    a(f'''
    v_lshlrev_b32 v96, 4, v1
    s_lshl_b32 s58, s{sG}, 10
    v_add_u32 v96, s58, v96
    ''')
    for r in range(10):
        a(f'''
        s_add_u32 m0, s58, {L_RING+8192*r}
        v_add_u32 v97, {8192*r}, v96
        buffer_load_dwordx4 v97, s[{sPOS}:{sPOS+3}], 0 offen lds
        ''')
    for q in range(5):
        a(f'v_cndmask_b32 v{128+q}, 0, v{100+q}, s[56:57]')
    for sh in (1,2,4,8):
        for q in range(5):
            a(f'v_add_u32_dpp v{128+q}, v{128+q}, v{128+q} row_shr:{sh} row_mask:0xf bank_mask:0xf')
    for q in range(5):
        a(f'v_add_u32_dpp v{128+q}, v{128+q}, v{128+q} row_bcast:15 row_mask:0xa bank_mask:0xf')
    for q in range(5):
        a(f'v_add_u32_dpp v{128+q}, v{128+q}, v{128+q} row_bcast:31 row_mask:0xc bank_mask:0xf')
    a(f'''
    s_lshl_b32 s54, s{sG}, 5
    s_add_u32 s54, s54, {L_WTOT}
    v_mov_b32 v133, s54
    s_mov_b32 s56, 0
    s_brev_b32 s57, 1
    s_mov_b64 exec, s[56:57]
    ds_write_b128 v133, v[128:131]
    ds_write_b32 v133, v132 offset:16
    s_mov_b64 exec, -1
    v_and_b32 v134, 7, v1
    v_lshlrev_b32 v134, 5, v134
    v_add_u32 v134, {L_WTOT}, v134
    s_waitcnt lgkmcnt(0)
    s_barrier
    ds_read_b128 v[136:139], v134
    ds_read_b32 v140, v134 offset:16
    s_waitcnt lgkmcnt(0)
    ''')
    for sh in (1,2,4):
        for q in range(5):
            a(f'v_add_u32_dpp v{136+q}, v{136+q}, v{136+q} row_shr:{sh} row_mask:0xf bank_mask:0xf')
    for q in range(5):
        a(f'v_readlane_b32 s{58+q}, v{136+q}, 7')
    a(f's_sub_u32 s54, s{sG}, 1')
    a(f's_max_i32 s54, s54, 0')
    for q in range(4):
        a(f'v_readlane_b32 s{64+q}, v{136+q}, s54')
    a(f's_cmp_eq_u32 s{sG}, 0')
    for q in range(4):
        a(f's_cselect_b32 s{64+q}, 0, s{64+q}')
    for q in range(4):
        a(f's_and_b32 s{68+2*q}, s{58+q}, 0xffff')
        a(f's_lshr_b32 s{69+2*q}, s{58+q}, 16')
    a('s_mov_b32 s84, 0')
    for g in range(8):
        a(f'''
        s_mov_b32 s{76+g}, s84
        s_add_u32 s54, s{68+g}, 31
        s_andn2_b32 s54, s54, 31
        s_add_u32 s84, s84, s54
        ''')
    a(f'''
    s_max_u32 s54, s84, s62
    s_cmp_le_u32 s54, {CAP}
    s_cbranch_scc1 L2_fits
    s_add_u32 s{sW1}, s{sW0}, 1
    s_waitcnt vmcnt(0)
    s_branch L2_batch
    ''')
    a.label('L2_fits')
    a(f's_mov_b32 s{sCNT}, s68')
    a(f's_mov_b32 s{sBASE}, s76')
    for g in range(1,8):
        a(f'''
        s_cmp_eq_u32 s{sG}, {g}
        s_cselect_b32 s{sCNT}, s{68+g}, s{sCNT}
        s_cselect_b32 s{sBASE}, s{76+g}, s{sBASE}
        ''')
    a(f'''
    s_add_u32 s{sNT}, s{sCNT}, 31
    s_lshr_b32 s{sNT}, s{sNT}, 5
    ''')
    for q in range(4):
        a(f's_pack_ll_b32_b16 s{85+q}, s{76+2*q}, s{77+2*q}')
        a(f's_add_u32 s{85+q}, s{85+q}, s{64+q}')
        a(f's_add_u32 s{85+q}, s{85+q}, {CH | (CH<<16)}')
    a(f'''
    v_lshl_or_b32 v105, v105, 16, v105
    v_mul_u32_u24 v106, 0x100010, v9
    ''')
    for q in range(4):
        a(f'''
        v_sub_u32 v{128+q}, v{128+q}, v{100+q}
        v_add_u32 v{128+q}, s{85+q}, v{128+q}
        v_sub_u32 v{136+q}, v{4+q}, v105
        v_sub_u32 v{128+q}, v{128+q}, v{136+q}
        v_lshl_add_u32 v{128+q}, v{128+q}, 2, v106
        ''')
    a(f'''
    v_lshlrev_b32 v108, 4, v0
    v_add_u32 v108, {L_GTAB}, v108
    ds_write_b128 v108, v[128:131]
    v_lshlrev_b32 v109, 2, v9
    v_sub_u32 v104, v104, v109
    v_cmp_gt_i32 vcc, 0, v104
    s_mov_b32 s54, {CH*32}
    v_mul_lo_u32 v110, v3, s54
    v_cndmask_b32 v104, v104, 0, vcc
    v_mov_b32 v111, {4*CH+4*CAP}
    ''')
    def quad(qreg, i, dyn=False):
        for u in range(4):
            a(f'v_lshrrev_b32 v{140+u}, 29, v{qreg+u}')
            a(f'v_lshl_add_u32 v{140+u}, v{140+u}, 1, v108')
            a(f'ds_read_u16 v{144+u}, v{140+u}')
        for u in range(4):
            if dyn: a(f'v_cmp_lt_u32 s[{90+2*u}:{91+2*u}], {u}, v104')
            else:   a(f'v_cmp_lt_u32 s[{90+2*u}:{91+2*u}], {8*i+u}, v104')
        a('s_waitcnt lgkmcnt(0)')
        for u in range(4):
            if dyn: a(f'v_add_u32 v{144+u}, v{144+u}, v149')
            a(f'v_cndmask_b32 v{144+u}, v111, v{144+u}, s[{90+2*u}:{91+2*u}]')
        ko = 0 if dyn else 8*i
        for u in range(4):
            a(f'ds_write_b32 v{144+u}, v{qreg+u} offset:{L_R0-4*CH+4*(ko+u)}')
            a(f'ds_write_b32 v{144+u}, v110 offset:{L_S-4*CH+4*(ko+u)}')
    for i in range(4):
        a(f's_waitcnt vmcnt({13-i})')
        quad(112+4*i, i)
        a(f'v_cmp_lt_u32 vcc, {8*(i+1)}, v104')
        a('s_cbranch_vccz L2_scat_done')
    a(f'''
    v_subrev_u32 v104, 32, v104
    v_cmp_gt_i32 vcc, 0, v104
    v_mov_b32 v149, 128
    v_add_u32 v107, 128, v107
    v_cndmask_b32 v104, v104, 0, vcc
    ''')
    a.label('L2_scat_loop')
    a(f'buffer_load_dwordx4 v[112:115], v107, s[{sEN}:{sEN+3}], 0 offen')
    a('s_waitcnt vmcnt(0)')
    quad(112, 0, dyn=True)
    a(f'''
    v_subrev_u32 v104, 8, v104
    v_add_u32 v149, 32, v149
    v_add_u32 v107, 32, v107
    v_cmp_gt_i32 vcc, 0, v104
    s_nop 1
    v_cndmask_b32 v104, v104, 0, vcc
    v_cmp_lt_u32 vcc, 0, v104
    s_cbranch_vccnz L2_scat_loop
    ''')
    a.label('L2_scat_done')
    a('''
    s_waitcnt vmcnt(0) lgkmcnt(0)
    s_barrier
    ''')
    a(f'''
    s_mul_i32 s54, s{sNODE0}, 6
    s_add_u32 s54, s54, {L_RING}
    v_mov_b32 v98, s54
    v_mov_b32 v99, {L_RING}
    v_add_u32 v96, s{sBASE}, v1
    v_mov_b32 v97, v1
    s_mov_b32 s{sT}, 0
    s_mov_b32 s55, 0xffff0000
    s_movk_i32 s56, 0x7ff8
    ''')
    a(f'''
    s_lshl_b32 s54, s{sNT}, 5
    s_sub_u32 s54, s54, 32
    v_add_u32 v100, s54, v1
    v_cmp_le_u32 s[58:59], s{sCNT}, v100
    v_cmp_gt_u32 vcc, 32, v1
    s_and_b64 vcc, vcc, s[58:59]
    s_cmp_eq_u32 s{sNT}, 0
    s_cbranch_scc1 L2_nodummy
    s_and_saveexec_b64 s[58:59], vcc
    s_cbranch_execz L2_dummy_restore
    v_add_u32 v100, s{sBASE}, v100
    v_lshlrev_b32 v101, 2, v100
    v_mov_b32 v102, 14
    ds_write_b32 v101, v102 offset:{L_R0}
    v_lshlrev_b32 v101, 1, v100
    v_mov_b32 v102, 0
    v_mov_b32 v103, 0
    ds_write_b16 v101, v102 offset:{L_RS}
    v_lshlrev_b32 v101, 3, v100
    ds_write_b64 v101, v[102:103] offset:{L_G}
    ''')
    a.label('L2_dummy_restore')
    a('s_mov_b64 exec, s[58:59]')
    a.label('L2_nodummy')
    NI=4
    a.label('L2_geo_loop')
    a(f'''
    s_cmp_ge_u32 s{sT}, s{sCNT}
    s_cbranch_scc1 L2_geo_done
    ''')
    def R(it,k): return 112+14*it+k
    for it in range(NI):
        a(f'''
        v_add_u32 v{R(it,0)}, {64*it}, v96
        v_lshlrev_b32 v{R(it,0)}, 2, v{R(it,0)}
        ds_read_b32 v{R(it,1)}, v{R(it,0)} offset:{L_R0}
        ds_read_b32 v{R(it,2)}, v{R(it,0)} offset:{L_S}
        ''')
    for it in range(NI):
        a(f'''
        v_add_u32 v{R(it,12)}, {64*it}, v97
        v_cmp_gt_u32 s[{60+2*it}:{61+2*it}], s{sCNT}, v{R(it,12)}
        ''')
    a('s_waitcnt lgkmcnt(0)')
    for it in range(NI):
        e=R(it,1); wb=R(it,2)
        a(f'''
        v_bfe_u32 v{R(it,3)}, v{e}, 15, 14
        v_and_b32 v{R(it,4)}, 7, v{e}
        v_and_b32 v{R(it,5)}, s56, v{e}
        v_lshl_add_u32 v{wb}, v{R(it,5)}, 2, v{wb}
        v_lshl_add_u32 v{wb}, v{R(it,4)}, 1, v{wb}
        v_mad_u32_u24 v{R(it,4)}, v{R(it,4)}, 48, v98
        v_mad_u32_u24 v{R(it,5)}, v{R(it,3)}, 6, v99
        ds_read_b64 v[{R(it,6)}:{R(it,7)}], v{R(it,4)}
        ds_read_b64 v[{R(it,8)}:{R(it,9)}], v{R(it,5)}
        ''')
    a('s_waitcnt lgkmcnt(0)')
    for it in range(NI):
        pd=R(it,6); ps=R(it,8); t0=R(it,4); t1=R(it,5); t2=R(it,10); t3=R(it,11); t4=R(it,13); e=R(it,1)
        a(f'''
        v_lshlrev_b32 v{t0}, 16, v{pd}
        v_lshlrev_b32 v{t1}, 16, v{ps}
        v_sub_f32 v{t0}, v{t0}, v{t1}
        v_and_b32 v{t1}, s55, v{pd}
        v_and_b32 v{t2}, s55, v{ps}
        v_sub_f32 v{t1}, v{t1}, v{t2}
        v_lshlrev_b32 v{t2}, 16, v{pd+1}
        v_lshlrev_b32 v{t3}, 16, v{ps+1}
        v_sub_f32 v{t2}, v{t2}, v{t3}
        v_cvt_pk_bf16_f32 v{pd}, v{t0}, v{t2}
        v_cvt_pk_bf16_f32 v{pd+1}, v{t1}, v{t1}
        v_lshlrev_b32 v{t0}, 16, v{pd}
        v_and_b32 v{t2}, s55, v{pd}
        v_lshlrev_b32 v{t1}, 16, v{pd+1}
        v_mul_f32 v{t3}, v{t0}, v{t0}
        v_fmac_f32 v{t3}, v{t1}, v{t1}
        v_fmac_f32 v{t3}, v{t2}, v{t2}
        v_cvt_pk_bf16_f32 v{pd+1}, v{t1}, v{t3}
        s_mov_b64 exec, s[{60+2*it}:{61+2*it}]
        ds_write_b32 v{R(it,0)}, v{R(it,2)} offset:{L_R0}
        v_lshrrev_b32 v{t0}, 1, v{R(it,0)}
        ds_write_b16 v{t0}, v{R(it,3)} offset:{L_RS}
        v_lshlrev_b32 v{t1}, 1, v{R(it,0)}
        ds_write_b64 v{t1}, v[{pd}:{pd+1}] offset:{L_G}
        s_mov_b64 exec, -1
        ''')
    a(f'''
    v_add_u32 v96, {64*NI}, v96
    v_add_u32 v97, {64*NI}, v97
    s_add_u32 s{sT}, s{sT}, {64*NI}
    s_branch L2_geo_loop
    ''')
    a.label('L2_geo_done')
    a(f'''
    s_waitcnt lgkmcnt(0)
    s_barrier
    ''')
    a(f'''
    s_lshl_b32 s54, s{sG}, 11
    s_add_u32 s54, s54, {L_S}
    v_lshlrev_b32 v96, 4, v1
    v_add_u32 v96, s54, v96
    v_mov_b32 v100, 0
    v_mov_b32 v101, 0
    v_mov_b32 v102, 0
    v_mov_b32 v103, 0
    ds_write_b128 v96, v[100:103]
    ds_write_b128 v96, v[100:103] offset:1024
    v_lshrrev_b32 v97, 3, v1
    v_add_u32 v97, s{sBASE}, v97
    v_lshlrev_b32 v97, 1, v97
    v_add_u32 v{vRSa}, {L_RS}, v97
    v_lshrrev_b32 v97, 1, v1
    v_add_u32 v97, s{sBASE}, v97
    v_lshlrev_b32 v97, 2, v97
    v_add_u32 v{vR0a}, {L_R0}, v97
    v_and_b32 v97, 31, v1
    v_add_u32 v97, s{sBASE}, v97
    v_lshlrev_b32 v98, 2, v97
    v_add_u32 v{vR0e}, {L_R0}, v98
    v_lshrrev_b32 v98, 5, v1
    v_lshlrev_b32 v98, 2, v98
    v_lshl_add_u32 v98, v97, 3, v98
    v_add_u32 v{vGe}, {L_G}, v98
    s_mov_b32 s{sT}, 0
    s_mov_b32 s54, 0xffffffe0
    s_mov_b32 s88, 0xffffffe0
    ''')
    def dma_idx_reads(toff):
        for i in range(4):
            a(f'ds_read_u16 v{vHP+2*i}, v{vRSa} offset:{64*toff+16*i}')
        a(f'ds_read_b32 v{vEAi}, v{vR0a} offset:{128*toff}')
    def dma_issue(par):
        a(f'v_and_or_b32 v{vEAo}, v{vEAi}, s88, v{vEAc}')
        a(f's_add_u32 m0, s{sRB}, {par*SLOT+4096}')
        a('s_nop 0')
        a(f'buffer_load_dwordx4 v{vEAo}, s[{sEA}:{sEA+3}], 0 offen lds')
        for i in range(4):
            a(f's_add_u32 m0, s{sRB}, {par*SLOT+1024*i}')
            a('s_nop 0')
            a(f'buffer_load_dwordx4 v[{vHP+2*i}:{vHP+2*i+1}], s[{sH}:{sH+3}], 0 idxen offen lds')
    a(f'''
    s_cmp_eq_u32 s{sNT}, 0
    s_cbranch_scc1 L2_loop_done
    ''')
    dma_idx_reads(0)
    a('s_waitcnt lgkmcnt(0)')
    dma_issue(0)
    a(f'''
    s_cmp_lt_u32 s{sNT}, 2
    s_cbranch_scc1 L2_tile0
    ''')
    dma_idx_reads(1)
    a('s_waitcnt lgkmcnt(0)')
    dma_issue(1)
    def tile(par):
        L=f'L2_t{par}'
        a(f'''
        s_add_u32 s54, s{sT}, 1
        s_cmp_lt_u32 s54, s{sNT}
        s_cbranch_scc1 {L}_w5
        s_waitcnt vmcnt(0)
        s_branch {L}_wd
        ''')
        a.label(f'{L}_w5'); a('s_waitcnt vmcnt(5)'); a.label(f'{L}_wd')
        a(f'ds_read_b32 v{vR0}, v{vR0e} offset:{128*par}')
        a(f'ds_read_b32 v{vG}, v{vGe} offset:{256*par}')
        for s in range(4):
            a(f'ds_read_b128 v[{vX+4*s}:{vX+4*s+3}], v{vHA+s} offset:{par*SLOT}')
        a(f'ds_read_b128 v[{vXE}:{vXE+3}], v{vEAr} offset:{par*SLOT}')
        a('s_waitcnt lgkmcnt(5)')
        a(f'v_and_or_b32 v{vA1}, v{vR0}, 14, v{vX6a}')
        a(f'v_and_or_b32 v{vA2}, v{vR0}, v{vMK2}, v{vC2}')
        a(f'ds_write_b16 v{vA1}, v{vOne}')
        a(f'ds_write_b16 v{vA1}, v{vG} offset:16')
        a(f'ds_write_b16_d16_hi v{vA2}, v{vG}')
        a(f'ds_read_b128 v[{vX6}:{vX6+3}], v{vX6a}')
        for s2 in range(2):
            a(f'ds_read_b64_tr_b16 v[{vSF+4*s2}:{vSF+4*s2+1}], v{vSTa} offset:{1024*s2}')
            a(f'ds_read_b64_tr_b16 v[{vSF+4*s2+2}:{vSF+4*s2+3}], v{vSTa} offset:{1024*s2+512}')
        a(f'ds_write_b16 v{vA1}, v{vZero}')
        a(f'ds_write_b16 v{vA1}, v{vZero} offset:16')
        a(f'ds_write_b16 v{vA2}, v{vZero}')
        a(f'''
        s_add_u32 s54, s{sT}, 2
        s_cmp_lt_u32 s54, s{sNT}
        s_cbranch_scc0 {L}_nodma
        ''')
        a('s_waitcnt lgkmcnt(8)')
        dma_idx_reads(par+2)
        a('s_waitcnt lgkmcnt(0)')
        dma_issue(par)
        a.label(f'{L}_nodma')
        a('s_waitcnt lgkmcnt(0)')
        for blk in range(2):
            D=f'v[{vD1+16*blk}:{vD1+16*blk+15}]'
            for s in range(4):
                C = D if s>0 else '0'
                a(f'v_mfma_f32_32x32x16_bf16 {D}, v[{vX+4*s}:{vX+4*s+3}], v[{vW2+4*(2*s+blk)}:{vW2+4*(2*s+blk)+3}], {C}')
            a(f'v_mfma_f32_32x32x16_bf16 {D}, v[{vXE}:{vXE+3}], v[{vW3+4*blk}:{vW3+4*blk+3}], {D}')
            a(f'v_mfma_f32_32x32x16_bf16 {D}, v[{vX6}:{vX6+3}], v[{vW6+4*blk}:{vW6+4*blk+3}], {D}')
        ONE=f'v[{vONE}:{vONE+3}]'
        for blk in range(2):
            for i in range(16):
                a(f'v_exp_f32 v{vE+16*blk+i}, v{vD1+16*blk+i}')
            Eb=f'v[{vE+16*blk}:{vE+16*blk+15}]'
            a(f'v_mfma_f32_32x32x16_bf16 {Eb}, {ONE}, {ONE}, {Eb}')
        for blk in range(2):
            for i in range(16):
                a(f'v_rcp_f32 v{vE+16*blk+i}, v{vE+16*blk+i}')
        for blk in range(2):
            for i in range(16):
                a(f'v_mul_f32 v{vE+16*blk+i}, v{vE+16*blk+i}, v{vD1+16*blk+i}')
            for q in range(8):
                a(f'v_cvt_pk_bf16_f32 v{vM+8*blk+q}, v{vE+16*blk+2*q}, v{vE+16*blk+2*q+1}')
        for blk in range(2):
            D=f'v[{vD2+16*blk}:{vD2+16*blk+15}]'
            for s2 in range(2):
                a(f'v_mfma_f32_32x32x16_bf16 {D}, v[{vM+8*blk+4*s2}:{vM+8*blk+4*s2+3}], v[{vSF+4*s2}:{vSF+4*s2+3}], {D}')
        a(f'''
        s_add_u32 s{sT}, s{sT}, 1
        s_cmp_ge_u32 s{sT}, s{sNT}
        s_cbranch_scc1 L2_loop_done
        ''')
    a.label('L2_tile0')
    tile(0)
    tile(1)
    a(f'''
    v_add_u32 v{vRSa}, 128, v{vRSa}
    v_add_u32 v{vR0a}, 256, v{vR0a}
    v_add_u32 v{vR0e}, 256, v{vR0e}
    v_add_u32 v{vGe}, 512, v{vGe}
    s_branch L2_tile0
    ''')
    a.label('L2_loop_done')
    a(f'''
    s_mov_b32 s{sW0}, s{sW1}
    s_add_u32 s{sW1}, s{sW1}, 1
    s_cmp_lt_u32 s{sW0}, {NCH}
    s_cbranch_scc1 L2_batch
    ''')
    a('v_lshlrev_b32 v97, 4, v1')
    for f in range(8):
        a(f'v_add_u32 v98, {(F_H1+f)*1024}, v97')
        a(f'buffer_load_dwordx4 v[{16+4*f}:{19+4*f}], v98, s[{sWF}:{sWF+3}], 0 offen')
    for f in range(8):
        a(f'v_add_u32 v98, {(F_H2+f)*1024}, v97')
        a(f'buffer_load_dwordx4 v[{128+4*f}:{131+4*f}], v98, s[{sWF}:{sWF+3}], 0 offen')
    for f in range(4):
        a(f'v_add_u32 v98, {(F_WX+f)*1024}, v97')
        a(f'buffer_load_dwordx4 v[{160+4*f}:{163+4*f}], v98, s[{sWF}:{sWF+3}], 0 offen')
    a(f'''
    v_and_b32 v100, 7, v1
    v_lshlrev_b32 v101, 3, v100
    v_add_u32 v102, s{sG}, v101
    v_add_u32 v101, s{sNODE0}, v101
    v_cmp_gt_u32 vcc, {BN}, v102
    v_mov_b32 v104, -1
    v_lshrrev_b32 v177, 5, v1
    v_lshlrev_b32 v177, 4, v177
    v_cndmask_b32 v176, v104, v101, vcc
    ''')
    for s in range(4):
        a(f'buffer_load_dwordx4 v[{48+4*s}:{51+4*s}], v[176:177], s[{sH}:{sH+3}], 0 idxen offen offset:{32*s}')
    a(f'''
    v_lshrrev_b32 v100, 5, v1
    v_lshlrev_b32 v100, 5, v100
    v_and_b32 v101, 31, v1
    v_lshlrev_b32 v101, 1, v101
    ''')
    for r in range(4):
        a(f'''
        v_add_u32 v102, {8*r}, v100
        v_add_u32 v103, s{sG}, v102
        v_add_u32 v102, s{sNODE0}, v102
        v_cmp_gt_u32 vcc, {BN}, v103
        v_mov_b32 v{181+2*r}, v101
        s_nop 0
        v_cndmask_b32 v{180+2*r}, v104, v102, vcc
        ''')
    for r in range(4):
        for blk in range(2):
            a(f'buffer_load_ushort v{192+4*blk+r}, v[{180+2*r}:{181+2*r}], s[{sH}:{sH+3}], 0 idxen offen offset:{64*blk}')
    a(f'''
    v_and_b32 v100, 7, v1
    v_lshlrev_b32 v100, 3, v100
    v_add_u32 v102, s{sG}, v100
    v_add_u32 v100, s{sNODE0}, v100
    v_lshrrev_b32 v103, 3, v1
    v_cmp_gt_u32 vcc, {BN}, v102
    v_subrev_u32 v105, 1, v103
    v_cmp_gt_u32 s[56:57], 3, v105
    v_mul_u32_u24 v100, 6, v100
    s_and_b64 vcc, vcc, s[56:57]
    v_lshl_add_u32 v100, v105, 1, v100
    v_mov_b32 v104, 0x7fffff00
    v_cndmask_b32 v200, v104, v100, vcc
    buffer_load_ushort v201, v200, s[{sPOS}:{sPOS+3}], 0 offen
    s_mov_b32 s54, {f32bits(-math.log(2.0))}
    ''')
    for i in range(32):
        a(f'v_mul_f32 v{vD2+i}, s54, v{vD2+i}')
    for blk in range(2):
        for q in range(8):
            a(f'v_cvt_pk_bf16_f32 v{96+8*blk+q}, v{vD2+16*blk+2*q}, v{vD2+16*blk+2*q+1}')
    a('s_waitcnt vmcnt(0)')
    for b2 in range(2):
        D=f'v[{64+16*b2}:{79+16*b2}]'
        for s in range(4):
            C = D if s>0 else '0'
            a(f'v_mfma_f32_32x32x16_bf16 {D}, v[{48+4*s}:{51+4*s}], v[{16+4*(2*s+b2)}:{19+4*(2*s+b2)}], {C}')
        for blk in range(2):
            for sp in range(2):
                f=(blk*2+sp)*2+b2
                a(f'v_mfma_f32_32x32x16_bf16 {D}, v[{96+8*blk+4*sp}:{99+8*blk+4*sp}], v[{128+4*f}:{131+4*f}], {D}')
    for blk in range(2):
        for sp in range(2):
            C = 'v[112:127]' if (blk or sp) else '0'
            f=blk*2+sp
            a(f'v_mfma_f32_32x32x16_bf16 v[112:127], v[{160+4*f}:{163+4*f}], v[{96+8*blk+4*sp}:{99+8*blk+4*sp}], {C}')
    a(f's_mov_b32 s54, {f32bits(-LOG2E)}')
    for b2 in range(2):
        for r in range(4):
            x=64+16*b2+r; t=208+4*b2+r
            a(f'v_mul_f32 v{t}, s54, v{x}')
    for b2 in range(2):
        for r in range(4):
            t=208+4*b2+r
            a(f'v_exp_f32 v{t}, v{t}')
    for b2 in range(2):
        for r in range(4):
            t=208+4*b2+r
            a(f'v_add_f32 v{t}, 1.0, v{t}')
    for b2 in range(2):
        for r in range(4):
            t=208+4*b2+r
            a(f'v_rcp_f32 v{t}, v{t}')
    for b2 in range(2):
        for r in range(4):
            x=64+16*b2+r; t=208+4*b2+r; hh=192+4*b2+r
            a(f'v_lshlrev_b32 v{hh}, 16, v{hh}')
            a(f'v_fma_f32 v{t}, v{x}, v{t}, v{hh}')
            a(f'v_cvt_pk_bf16_f32 v{t}, v{t}, v{t}')
    for b2 in range(2):
        for r in range(4):
            t=208+4*b2+r
            a(f'buffer_store_short v{t}, v[{180+2*r}:{181+2*r}], s[{sO0}:{sO0+3}], 0 idxen offen offset:{64*b2}')
    a(f'''
    v_lshlrev_b32 v201, 16, v201
    v_add_f32 v201, v201, v112
    v_cvt_pk_bf16_f32 v201, v201, v201
    v_cmp_gt_u32 vcc, 32, v1
    v_mov_b32 v104, 0x7fffff00
    s_nop 0
    v_cndmask_b32 v200, v104, v200, vcc
    buffer_store_short v201, v200, s[{sO1}:{sO1+3}], 0 offen
    ''')
    a.label('L2_end')
    a('s_endpgm')
    return a.finalize(), 256, 100, L_END

def main():
    k1,v1,s1,l1 = gen_k1()
    k2,v2,s2,l2 = gen_k2()
    hdr = open('gather_scatter__cheap_equivariant_egnn__graph.s.ref').read().split('; Override launch')[0]
    out = hdr
    out += f'; @launch kernel=egnn_part_kernel grid=({NCH+1},1,1) block=(512,1,1) lds={l1}\n'
    out += f'; @launch kernel=egnn_main_kernel grid=({NBK},1,1) block=(512,1,1) lds={l2}\n'
    out += '.amdgcn_target "amdgcn-amd-amdhsa--gfx950"\n.text\n'
    for name,body in (('egnn_part_kernel',k1),('egnn_main_kernel',k2)):
        out += f'.globl {name}\n.p2align 8\n.type {name},@function\n' + body
    out += '.section .rodata,"a"\n'
    for name,nv,ns in (('egnn_part_kernel',v1,s1),('egnn_main_kernel',v2,s2)):
        acc=(nv+3)//4*4
        out += f'''.p2align 6
.amdhsa_kernel {name}
  .amdhsa_next_free_vgpr {nv}
  .amdhsa_next_free_sgpr {ns}
  .amdhsa_accum_offset {acc}
  .amdhsa_group_segment_fixed_size 0
  .amdhsa_kernarg_size 88
  .amdhsa_user_sgpr_count 2
  .amdhsa_user_sgpr_kernarg_segment_ptr 1
  .amdhsa_system_sgpr_workgroup_id_x 1
  .amdhsa_float_denorm_mode_32 3
.end_amdhsa_kernel
'''
    dst = [x for x in sys.argv[1:] if not x.startswith('--')]
    path = dst[0] if dst else 'gather_scatter__cheap_equivariant_egnn__graph.s'
    open(path,'w').write(out)
    print('wrote',path,len(out))
main()
```

```python
import sys, math
from asmlib import Asm

N=12500; E=800000; CH=3200; NCH=250; NBK=256; BN=49
ROW=4224
OFFS=0; ENT=0x110000; WF=0x420000; TA=0x500000; TB=0x700000; TM=0x900000
NF=18; WDO=NF*1024; WXO=NF*1024+256; WFSZ=NF*1024+512
NTW=98
CAP=3584
LOG2E=1.4426950408889634
def f32bits(x):
    import struct; return struct.unpack('<I',struct.pack('<f',x))[0]

DEBUG_TM = '--tm' in sys.argv

F_W3=0
F_H1=2
F_H2=10

def stamp(a, idx, vreg, sp):
    if not DEBUG_TM: return
    a(f'''
    s_memrealtime s[{sp}:{sp+1}]
    s_waitcnt lgkmcnt(0)
    v_writelane_b32 v{vreg}, s{sp}, {idx}
    ''')
def stampc(a, idx, vreg, sp):
    if not DEBUG_TM: return
    a(f'''
    s_memtime s[{sp}:{sp+1}]
    s_waitcnt lgkmcnt(0)
    v_writelane_b32 v{vreg}, s{sp}, {idx}
    ''')
def stamp_store(a, vreg, sp, ws_lo, ws_hi, region, wave_s, vt):
    if not DEBUG_TM: return
    a(f'''
    s_lshl_b32 s{sp}, s2, 3
    s_add_u32 s{sp}, s{sp}, s{wave_s}
    s_lshl_b32 s{sp}, s{sp}, 7
    s_add_u32 s{sp}, s{sp}, {TM+region}
    s_add_u32 s{sp}, s{ws_lo}, s{sp}
    s_addc_u32 s{sp+1}, s{ws_hi}, 0
    v_and_b32 v{vt}, 63, v0
    v_lshlrev_b32 v{vt}, 2, v{vt}
    s_mov_b32 exec_hi, 0
    global_store_dword v{vt}, v{vreg}, s[{sp}:{sp+1}]
    s_mov_b64 exec, -1
    ''')

def gen_k1():
    a=Asm()
    K1_STAGE=8192; K1_WTOT=24576
    a.label('egnn_part_kernel')
    a(f'''
    s_cmp_gt_u32 s2, {NCH+NTW}
    s_cbranch_scc1 L1_end
    v_lshrrev_b32 v2, 6, v0
    v_and_b32 v1, 63, v0
    s_load_dwordx4 s[4:7], s[0:1], 24
    s_load_dwordx2 s[8:9], s[0:1], 80
    v_readfirstlane_b32 s3, v2
    s_cmp_eq_u32 s2, {NCH}
    s_cbranch_scc1 L1_wprep
    s_cmp_gt_u32 s2, {NCH}
    s_cbranch_scc1 L1_tables
    ''')
    if DEBUG_TM: a('v_mov_b32 v70, 0')
    stamp(a,0,70,36)
    a(f'''
    v_lshlrev_b32 v3, 4, v0
    v_mov_b32 v4, 0
    v_mov_b32 v5, 0
    v_mov_b32 v6, 0
    v_mov_b32 v7, 0
    ds_write_b128 v3, v[4:7]
    s_mul_i32 s10, s2, {CH*4}
    s_mul_i32 s11, s2, {ROW}
    v_add_u32 v48, 8192, v3
    s_waitcnt lgkmcnt(0)
    s_add_u32 s12, s6, s10
    s_addc_u32 s13, s7, 0
    s_mov_b32 s14, {CH*4}
    s_mov_b32 s15, 0x20000
    s_add_u32 s16, s4, s10
    s_addc_u32 s17, s5, 0
    s_mov_b32 s18, {CH*4}
    s_mov_b32 s19, 0x20000
    buffer_load_dwordx4 v[8:11], v3, s[12:15], 0 offen
    buffer_load_dwordx4 v[12:15], v48, s[12:15], 0 offen
    buffer_load_dwordx4 v[16:19], v3, s[16:19], 0 offen
    buffer_load_dwordx4 v[20:23], v48, s[16:19], 0 offen
    s_add_u32 s24, s8, {OFFS}
    s_addc_u32 s25, s9, 0
    s_add_u32 s24, s24, s11
    s_addc_u32 s25, s25, 0
    s_mov_b32 s26, {ROW}
    s_mov_b32 s27, 0x20000
    s_add_u32 s28, s8, {ENT}
    s_addc_u32 s29, s9, 0
    s_add_u32 s28, s28, s10
    s_addc_u32 s29, s29, 0
    s_mov_b32 s30, {CH*4}
    s_mov_b32 s31, 0x20000
    s_mov_b32 s22, -{BN}
    v_mov_b32 v50, 1
    v_lshlrev_b32 v51, 5, v0
    v_add_u32 v52, 16384, v51
    s_barrier
    s_waitcnt vmcnt(2)
    ''')
    stamp(a,1,70,36)
    def keyslot(i, dst, tmp):
        a(f'''
        v_mul_u32_u24 v{tmp}, 21400, v{dst}
        v_lshrrev_b32 v{tmp}, 20, v{tmp}
        v_mad_i32_i24 v{40+i}, v{tmp}, s22, v{dst}
        v_and_b32 v{tmp+1}, 7, v{40+i}
        v_lshl_or_b32 v{tmp}, v{tmp}, 3, v{tmp+1}
        v_lshlrev_b32 v{24+i}, 2, v{tmp}
        ''')
    for u in range(4):
        keyslot(u, 8+u, 54+2*u)
        a(f'ds_add_rtn_u32 v{32+u}, v{24+u}, v50')
    a('''
    v_cmp_gt_u32 vcc, 288, v0
    s_and_saveexec_b64 s[20:21], vcc
    s_cbranch_execz L1_skipB1
    ''')
    for u in range(4):
        keyslot(4+u, 12+u, 54+2*u)
        a(f'ds_add_rtn_u32 v{36+u}, v{28+u}, v50')
    a.label('L1_skipB1')
    a('s_mov_b64 exec, s[20:21]')
    a('s_waitcnt vmcnt(0)')
    for i in range(8):
        base = 51 if i<4 else 52
        a(f'''
        v_lshrrev_b32 v54, 3, v{40+i}
        v_lshl_or_b32 v54, v{40+i}, 29, v54
        v_lshl_or_b32 v54, v{16+i}, 15, v54
        v_add3_u32 v{40+i}, v54, v{base}, {8*(i%4)}
        ''')
    a('''
    s_waitcnt lgkmcnt(0)
    s_barrier
    ''')
    stamp(a,2,70,36)
    a('''
    ds_read_b128 v[8:11], v3
    s_waitcnt lgkmcnt(0)
    v_add_u32 v12, v8, v9
    v_add_u32 v13, v12, v10
    v_add_u32 v14, v13, v11
    v_mov_b32 v15, v14
    ''')
    for sh in (1,2,4,8):
        a(f'v_add_u32_dpp v15, v15, v15 row_shr:{sh} row_mask:0xf bank_mask:0xf')
    a('v_add_u32_dpp v15, v15, v15 row_bcast:15 row_mask:0xa bank_mask:0xf')
    a('v_add_u32_dpp v15, v15, v15 row_bcast:31 row_mask:0xc bank_mask:0xf')
    a(f'''
    s_lshl_b32 s10, s3, 2
    s_add_u32 s10, s10, {K1_WTOT}
    v_mov_b32 v16, s10
    s_mov_b32 s20, 0
    s_brev_b32 s21, 1
    s_mov_b64 exec, s[20:21]
    ds_write_b32 v16, v15
    s_mov_b64 exec, -1
    v_and_b32 v17, 7, v1
    v_lshlrev_b32 v17, 2, v17
    v_add_u32 v17, {K1_WTOT}, v17
    s_waitcnt lgkmcnt(0)
    s_barrier
    ds_read_b32 v18, v17
    v_cmp_gt_u32 vcc, s3, v1
    s_waitcnt lgkmcnt(0)
    v_cndmask_b32 v18, 0, v18, vcc
    ''')
    for sh in (1,2,4):
        a(f'v_add_u32_dpp v18, v18, v18 row_shr:{sh} row_mask:0xf bank_mask:0xf')
    a(f'''
    v_readlane_b32 s10, v18, 7
    v_sub_u32 v15, v15, v14
    v_add_u32 v8+0, s10, v15
    '''.replace('v8+0','v19'))
    a(f'''
    v_add_u32 v21, v19, v12
    v_add_u32 v22, v19, v13
    v_add_u32 v20, v19, v8
    v_mov_b32 v56, v19
    v_mov_b32 v57, v20
    v_mov_b32 v58, v21
    v_mov_b32 v59, v22
    ds_write_b128 v3, v[56:59]
    v_lshl_or_b32 v60, v20, 16, v19
    v_lshl_or_b32 v61, v22, 16, v21
    v_lshlrev_b32 v62, 3, v0
    buffer_store_dwordx2 v[60:61], v62, s[24:27], 0 offen
    s_cmp_lg_u32 s3, 0
    s_cbranch_scc1 L1_nosent
    s_mov_b32 s10, {CH | (CH<<16)}
    v_mov_b32 v63, s10
    v_lshlrev_b32 v62, 2, v1
    v_add_u32 v62, 4096, v62
    v_cmp_gt_u32 vcc, 32, v1
    s_and_saveexec_b64 s[20:21], vcc
    buffer_store_dword v63, v62, s[24:27], 0 offen
    s_mov_b64 exec, s[20:21]
    ''')
    a.label('L1_nosent')
    a('''
    s_waitcnt lgkmcnt(0)
    s_barrier
    ''')
    stamp(a,3,70,36)
    for u in range(4):
        a(f'ds_read_b32 v{8+u}, v{24+u}')
    a('''
    v_cmp_gt_u32 vcc, 288, v0
    s_and_saveexec_b64 s[20:21], vcc
    s_cbranch_execz L1_skipB2
    ''')
    for u in range(4):
        a(f'ds_read_b32 v{12+u}, v{28+u}')
    a('s_waitcnt lgkmcnt(0)')
    for u in range(4):
        a(f'v_add_lshl_u32 v{12+u}, v{12+u}, v{36+u}, 2')
    for u in range(4):
        a(f'ds_write_b32 v{12+u}, v{44+u} offset:{K1_STAGE}')
    a.label('L1_skipB2')
    a('s_mov_b64 exec, s[20:21]')
    a('s_waitcnt lgkmcnt(0)')
    for u in range(4):
        a(f'v_add_lshl_u32 v{8+u}, v{8+u}, v{32+u}, 2')
    for u in range(4):
        a(f'ds_write_b32 v{8+u}, v{40+u} offset:{K1_STAGE}')
    a(f'''
    s_waitcnt lgkmcnt(0)
    s_barrier
    ds_read_b128 v[8:11], v3 offset:{K1_STAGE}
    ds_read_b128 v[12:15], v3 offset:{K1_STAGE+8192}
    s_waitcnt lgkmcnt(1)
    buffer_store_dwordx4 v[8:11], v3, s[28:31], 0 offen
    s_waitcnt lgkmcnt(0)
    buffer_store_dwordx4 v[12:15], v48, s[28:31], 0 offen
    ''')
    stamp(a,4,70,36)
    if DEBUG_TM: a('s_waitcnt vmcnt(0)')
    stamp(a,5,70,36)
    stamp_store(a,70,36,8,9,0,3,69)
    a('s_endpgm')
    a.label('L1_wprep')
    a(f'''
    s_load_dwordx2 s[10:11], s[0:1], 40
    s_load_dwordx2 s[12:13], s[0:1], 48
    s_load_dwordx2 s[14:15], s[0:1], 56
    v_and_b32 v2, 31, v1
    v_lshrrev_b32 v3, 5, v1
    v_lshlrev_b32 v4, 4, v1
    s_waitcnt lgkmcnt(0)
    s_mov_b32 s16, s10
    s_mov_b32 s17, s11
    s_mov_b32 s18, {145*64*2}
    s_mov_b32 s19, 0x20000
    s_mov_b32 s20, s14
    s_mov_b32 s21, s15
    s_mov_b32 s22, {128*64*2}
    s_mov_b32 s23, 0x20000
    s_mov_b32 s24, s12
    s_mov_b32 s25, s13
    s_mov_b32 s26, {64*2}
    s_mov_b32 s27, 0x20000
    s_add_u32 s28, s8, {WF}
    s_addc_u32 s29, s9, 0
    s_mov_b32 s30, {WFSZ}
    s_mov_b32 s31, 0x20000
    s_mov_b32 s32, {f32bits(-LOG2E)}
    v_lshlrev_b32 v5, 1, v2
    v_lshl_add_u32 v6, v3, 10, v5
    v_lshl_add_u32 v7, v3, 9, v5
    v_lshlrev_b32 v8, 3, v3
    ''')
    frags=[]
    for blk in range(2): frags.append((F_W3+blk,'e',129,blk,'std',True))
    for s in range(4):
        for blk in range(2): frags.append((F_H1+2*s+blk,'h',16*s,blk,'std',False))
    for blk in range(2):
        for sp in range(2):
            for b2 in range(2): frags.append((F_H2+(blk*2+sp)*2+b2,'h',64+32*blk+16*sp,b2,'perm',False))
    assert len(frags)==NF
    for wv in range(8):
        a(f's_cmp_eq_u32 s3, {wv}')
        a(f's_cbranch_scc1 L1_w{wv}')
    a('s_endpgm')
    for wv in range(8):
        a.label(f'L1_w{wv}')
        mine=[f for i,f in enumerate(frags) if i%8==wv]
        for q,(F,srcn,row0,blk,kind,scaled) in enumerate(mine):
            r=16+8*q
            srd={'e':'s[16:19]','h':'s[20:23]','x':'s[24:27]'}[srcn]
            if kind=='wx':
                a(f'v_add_u32 v10, {row0*2}, v8')
                for t in range(8):
                    T=(t&3)+8*(t>>2)
                    a(f'buffer_load_ushort v{r+t}, v10, {srd}, 0 offen offset:{T*2}')
            else:
                vb = 6 if kind=='std' else 7
                a(f'v_add_u32 v10, {row0*128+blk*64}, v{vb}')
                for t in range(8):
                    T= t if kind=='std' else (t&3)+8*(t>>2)
                    a(f'buffer_load_ushort v{r+t}, v10, {srd}, 0 offen offset:{T*128}')
        if wv==0:
            a(f'''
            v_lshlrev_b32 v11, 1, v1
            v_add_u32 v11, {128*128}, v11
            buffer_load_ushort v12, v11, s[16:19], 0 offen
            ''')
        if wv==1:
            a(f'''
            v_and_b32 v11, 3, v1
            v_bfe_u32 v12, v1, 2, 2
            v_lshl_add_u32 v11, v12, 3, v11
            v_bfe_u32 v12, v1, 4, 1
            v_lshl_add_u32 v11, v12, 5, v11
            v_lshl_add_u32 v11, v3, 2, v11
            v_lshlrev_b32 v11, 1, v11
            buffer_load_ushort v12, v11, s[24:27], 0 offen
            ''')
        a('s_waitcnt vmcnt(0)')
        for q,(F,srcn,row0,blk,kind,scaled) in enumerate(mine):
            r=16+8*q
            if scaled:
                for t in range(8):
                    a(f'v_lshlrev_b32 v{r+t}, 16, v{r+t}')
                for t in range(8):
                    a(f'v_mul_f32 v{r+t}, s32, v{r+t}')
                for t in range(4):
                    a(f'v_cvt_pk_bf16_f32 v{64+t}, v{r+2*t}, v{r+2*t+1}')
            else:
                for t in range(4):
                    a(f'v_lshl_or_b32 v{64+t}, v{r+2*t+1}, 16, v{r+2*t}')
            a(f'v_add_u32 v10, {F*1024}, v4')
            a(f'buffer_store_dwordx4 v[64:67], v10, s[28:31], 0 offen')
            a('s_nop 1')
        if wv==0:
            a(f'''
            v_lshlrev_b32 v12, 16, v12
            v_mul_f32 v12, s32, v12
            v_cvt_pk_bf16_f32 v13, v12, v12
            v_and_b32 v14, 0xffff0000, v13
            v_sub_f32 v12, v12, v14
            v_cvt_pk_bf16_f32 v12, v12, v12
            v_and_b32 v12, 0xffff0000, v12
            v_and_b32 v13, 0xffff, v13
            v_or_b32 v13, v13, v12
            v_and_b32 v11, 31, v1
            v_lshlrev_b32 v11, 3, v11
            v_lshl_add_u32 v11, v3, 2, v11
            v_add_u32 v11, {WDO}, v11
            buffer_store_dword v13, v11, s[28:31], 0 offen
            ''')
        if wv==1:
            a(f'''
            v_lshlrev_b32 v12, 16, v12
            v_lshlrev_b32 v11, 2, v1
            v_add_u32 v11, {WXO}, v11
            buffer_store_dword v12, v11, s[28:31], 0 offen
            ''')
        a('s_endpgm')
    a.label('L1_tables')
    a(f'''
    s_load_dwordx2 s[10:11], s[0:1], 0
    s_load_dwordx2 s[12:13], s[0:1], 40
    s_sub_u32 s14, s2, {NCH+1}
    s_lshl_b32 s14, s14, 7
    s_lshr_b32 s15, s3, 1
    s_lshl_b32 s15, s15, 5
    s_add_u32 s14, s14, s15
    s_and_b32 s15, s3, 1
    v_and_b32 v2, 31, v1
    v_lshrrev_b32 v3, 5, v1
    v_add_u32 v4, s14, v2
    v_lshlrev_b32 v5, 4, v3
    v_lshlrev_b32 v6, 4, v1
    s_lshl_b32 s33, s3, 10
    v_add_u32 v6, s33, v6
    s_waitcnt lgkmcnt(0)
    s_mov_b32 s16, s10
    s_or_b32 s17, s11, 0x800000
    s_mov_b32 s18, {N}
    s_mov_b32 s19, 0x20000
    s_mov_b32 s20, s12
    s_mov_b32 s21, s13
    s_mov_b32 s22, {128*128}
    s_mov_b32 s23, 0x20000
    s_mul_i32 s34, s15, {TB-TA}
    s_add_u32 s34, s34, {TA}
    s_add_u32 s24, s8, s34
    s_addc_u32 s25, s9, 0
    s_or_b32 s25, s25, 0x800000
    s_mov_b32 s26, {N}
    s_mov_b32 s27, 0x20000
    s_mov_b32 m0, s33
    v_add_u32 v7, 8192, v6
    buffer_load_dwordx4 v6, s[20:23], 0 offen lds
    s_add_u32 m0, s33, 8192
    s_nop 0
    buffer_load_dwordx4 v7, s[20:23], 0 offen lds
    ''')
    for s_ in range(4):
        a(f'buffer_load_dwordx4 v[{16+4*s_}:{19+4*s_}], v[4:5], s[16:19], 0 idxen offen offset:{32*s_}')
    a(f'''
    v_and_b32 v8, 15, v1
    v_lshrrev_b32 v9, 2, v8
    v_lshl_add_u32 v9, v3, 3, v9
    v_lshlrev_b32 v9, 7, v9
    v_bfe_u32 v10, v1, 4, 1
    v_lshl_add_u32 v9, v10, 5, v9
    v_and_b32 v10, 3, v1
    v_lshl_add_u32 v9, v10, 3, v9
    s_lshl_b32 s34, s15, 13
    v_add_u32 v9, s34, v9
    s_mov_b32 s35, {f32bits(-LOG2E)}
    s_waitcnt vmcnt(0)
    s_barrier
    ''')
    for s_ in range(4):
        for blk in range(2):
            r=32+4*(2*s_+blk)
            a(f'ds_read_b64_tr_b16 v[{r}:{r+1}], v9 offset:{2048*s_+64*blk}')
            a(f'ds_read_b64_tr_b16 v[{r+2}:{r+3}], v9 offset:{2048*s_+64*blk+512}')
        if s_==1: a('s_waitcnt lgkmcnt(0)')
    a('s_waitcnt lgkmcnt(0)')
    for blk in range(2):
        D=f'v[{64+16*blk}:{79+16*blk}]'
        for s_ in range(4):
            C = D if s_>0 else '0'
            r=32+4*(2*s_+blk)
            a(f'v_mfma_f32_32x32x16_bf16 {D}, v[{r}:{r+3}], v[{16+4*s_}:{19+4*s_}], {C}')
    for blk in range(2):
        for i in range(16):
            a(f'v_mul_f32 v{64+16*blk+i}, s35, v{64+16*blk+i}')
    a('''
    s_cmp_eq_u32 s15, 0
    s_cbranch_scc1 L1_tabA
    v_lshlrev_b32 v5, 3, v3
    ''')
    for blk in range(2):
        for q in range(8):
            a(f'v_cvt_pk_bf16_f32 v{32+8*blk+q}, v{64+16*blk+2*q}, v{64+16*blk+2*q+1}')
        for m in range(4):
            a(f'buffer_store_dwordx2 v[{32+8*blk+2*m}:{33+8*blk+2*m}], v[4:5], s[24:27], 0 idxen offen offset:{64*blk+16*m}')
    a('s_endpgm')
    a.label('L1_tabA')
    a('v_lshlrev_b32 v5, 4, v3')
    for r in range(16):
        a(f'v_cvt_pk_bf16_f32 v{32+r}, v{64+r}, v{80+r}')
    for m in range(4):
        a(f'buffer_store_dwordx4 v[{32+4*m}:{35+4*m}], v[4:5], s[24:27], 0 idxen offen offset:{32*m}')
    a('s_endpgm')
    a.label('L1_end')
    a('s_endpgm')
    return a.finalize(), 96, 40, K1_WTOT+64

L_G=0; L_R0=28672; L_RS=43264; L_S=50432; L_RING=66816; L_GTAB=148736; L_WTOT=156928; L_PD=157184; L_END=158208
SLOT=5120
vI=16; vW3=24; vW6=32; vS1=40; vS2=41; vD2=64; vD1=(96,128); vE=160; vX=192; vXE=208; vX6=212; vSF=216; vONE=224
vHA=228; vEAr=232; vX6r=233; vC1=234; vSTa=235; vC2=236; vMK2=237; vEAc=238; vOne=239; vHP=240
vSTb=15; vCD=14
vRSa=248; vR0a=249; vR0e=250; vGe=251; vR0=252; vG=253; vA1=254; vA2=255; vEAi=10; vEAo=11
vZero=vONE+1
vTM=12
sH=4; sEA=8; sOF=12; sEN=16; sPOS=20; sWF=24; sO0=28; sO1=32; sHD=36; sSEL=100; sTA=40
sWS=44
sW0=46; sW1=47; sV=3; sG=101; sCNT=48; sBASE=49; sNT=50; sT=51; sRB=52; sNODE0=53; sMK=89

ABL=set(x[6:] for x in sys.argv if x.startswith('--abl=') )
OPT=dict(x[6:].split(':') for x in sys.argv if x.startswith('--opt='))
def optl(k,d): return [int(v) for v in OPT[k].split(',')] if k in OPT else d
NH_ = 0 if 'noh' in ABL else N
NE_ = 0 if 'noea' in ABL else E*32
def gen_k2():
    a=Asm()
    def st(i): stamp(a,i,vTM,98)
    a.label('egnn_main_kernel')
    a(f'''
    s_cmp_ge_u32 s2, {NBK}
    s_cbranch_scc1 L2_end
    ''')
    if DEBUG_TM: a(f'v_mov_b32 v{vTM}, 0')
    st(0)
    a(f'''
    s_load_dwordx2 s[44:45], s[0:1], 80
    s_load_dwordx4 s[36:39], s[0:1], 0
    s_load_dwordx2 s[40:41], s[0:1], 16
    s_load_dwordx2 s[42:43], s[0:1], 64
    v_and_b32 v1, 63, v0
    v_lshrrev_b32 v2, 6, v0
    v_lshrrev_b32 v3, 1, v0
    v_readfirstlane_b32 s{sV}, v2
    v_and_b32 v9, 1, v0
    s_lshl_b32 s54, s2, 4
    s_mov_b32 s55, {ROW}
    v_mov_b32 v96, s54
    v_mad_u32_u24 v96, v3, s55, v96
    s_mov_b32 s{sOF+2}, {NCH*ROW}
    s_mov_b32 s{sOF+3}, 0x20000
    s_waitcnt lgkmcnt(0)
    s_add_u32 s{sOF}, s44, {OFFS}
    s_addc_u32 s{sOF+1}, s45, 0
    buffer_load_dwordx4 v[4:7], v96, s[{sOF}:{sOF+3}], 0 offen
    buffer_load_ushort v8, v96, s[{sOF}:{sOF+3}], 0 offen offset:16
    ''')
    st(16)
    a(f'''
    v_and_b32 v97, 31, v1
    v_lshrrev_b32 v98, 5, v1
    s_mul_i32 s{sRB}, s{sV}, {2*SLOT}
    s_add_u32 s{sRB}, s{sRB}, {L_RING}
    v_bfe_u32 v99, v97, 1, 3
    v_lshlrev_b32 v100, 7, v97
    v_add_u32 v100, s{sRB}, v100
    ''')
    for s in range(4):
        a(f'''
        v_add_u32 v101, {2*s}, v98
        v_xor_b32 v101, v101, v99
        v_lshl_add_u32 v{vHA+s}, v101, 4, v100
        ''')
    a(f'''
    v_lshrrev_b32 v101, 4, v97
    v_xor_b32 v101, v101, v98
    v_lshlrev_b32 v101, 4, v101
    v_lshl_add_u32 v101, v97, 5, v101
    v_add_u32 v101, s{sRB}, v101
    v_add_u32 v{vEAr}, 4096, v101
    s_lshl_b32 s54, s{sV}, 11
    s_add_u32 s54, s54, {L_S}
    v_lshlrev_b32 v101, 6, v97
    v_add_u32 v101, s54, v101
    v_bfe_u32 v102, v97, 2, 2
    v_xor_b32 v103, v98, v102
    v_lshl_add_u32 v{vX6r}, v103, 4, v101
    v_lshlrev_b32 v103, 1, v98
    v_xor_b32 v104, v103, v102
    v_lshl_add_u32 v{vC1}, v104, 4, v101
    v_add_u32 v103, 1, v103
    v_xor_b32 v104, v103, v102
    v_lshl_add_u32 v104, v104, 4, v101
    v_add_u32 v{vCD}, 12, v104
    v_cmp_gt_u32 vcc, 32, v1
    v_mov_b32 v103, 0xffff0000
    v_mov_b32 v104, -1
    v_cndmask_b32 v{vMK2}, v104, v103, vcc
    v_mov_b32 v{vOne}, 0x3f80
    v_mov_b32 v{vONE+1}, 0
    v_mov_b32 v{vONE+2}, 0
    v_mov_b32 v{vONE+3}, 0
    v_cndmask_b32 v{vONE}, 0, v{vOne}, vcc
    v_lshlrev_b32 v101, 3, v98
    v_sub_u32 v101, v97, v101
    v_mov_b32 v102, 0x3f800000
    ''')
    for sp in range(2):
        for q in range(4):
            a(f'''
            v_cmp_eq_u32 vcc, {16*sp+2*q}, v101
            v_cmp_eq_u32 s[56:57], {16*sp+2*q+1}, v101
            s_nop 0
            v_cndmask_b32 v103, 0, v{vOne}, vcc
            v_cndmask_b32 v104, 0, v102, s[56:57]
            v_or_b32 v{vI+4*sp+q}, v103, v104
            ''')
    a(f'''
    v_and_b32 v101, 15, v1
    v_lshrrev_b32 v101, 2, v101
    v_lshl_add_u32 v101, v98, 2, v101
    v_lshlrev_b32 v101, 6, v101
    v_and_b32 v102, 1, v1
    v_lshl_add_u32 v101, v102, 3, v101
    v_add_u32 v101, s54, v101
    v_bfe_u32 v102, v1, 4, 1
    v_bfe_u32 v103, v1, 1, 1
    v_lshl_add_u32 v102, v102, 1, v103
    v_xor_b32 v103, v102, v98
    v_lshl_add_u32 v{vSTa}, v103, 4, v101
    v_add_u32 v103, 2, v98
    v_xor_b32 v103, v102, v103
    v_lshl_add_u32 v103, v103, 4, v101
    v_add_u32 v{vSTb}, 512, v103
    v_and_b32 v101, 1, v1
    v_xor_b32 v101, v101, v98
    v_lshlrev_b32 v{vEAc}, 4, v101
    v_and_b32 v101, 7, v1
    v_lshrrev_b32 v102, 4, v1
    v_xor_b32 v103, v101, v102
    v_lshlrev_b32 v{vHP+1}, 4, v103
    v_lshlrev_b32 v{vHP+5}, 4, v103
    v_add_u32 v102, 4, v102
    v_xor_b32 v103, v101, v102
    v_lshlrev_b32 v{vHP+3}, 4, v103
    v_lshlrev_b32 v{vHP+7}, 4, v103
    s_mov_b32 s{sW0}, 0
    s_mov_b32 s{sW1}, {NCH}
    s_mov_b32 s{sMK}, 0xffffffe0
    s_mov_b32 s63, 0
    s_mov_b32 s{sSEL}, 0x01000100
    ''')
    for i in range(32):
        a(f'v_mov_b32 v{vD2+i}, 0')
    st(17)
    a(f'''
    s_add_u32 s{sWF}, s44, {WF}
    s_addc_u32 s{sWF+1}, s45, 0
    s_mov_b32 s{sWF+2}, {WFSZ}
    s_mov_b32 s{sWF+3}, 0x20000
    s_mov_b32 s{sH}, s36
    s_or_b32 s{sH+1}, s37, 0x800000
    s_mov_b32 s{sH+2}, {N}
    s_mov_b32 s{sH+3}, 0x20000
    s_mov_b32 s{sPOS}, s38
    s_mov_b32 s{sPOS+1}, s39
    s_mov_b32 s{sPOS+2}, {N*6}
    s_mov_b32 s{sPOS+3}, 0x20000
    s_mov_b32 s{sEA}, s40
    s_mov_b32 s{sEA+1}, s41
    s_mov_b32 s{sEA+2}, {E*32}
    s_mov_b32 s{sEA+3}, 0x20000
    s_add_u32 s{sEN}, s44, {ENT}
    s_addc_u32 s{sEN+1}, s45, 0
    s_mov_b32 s{sEN+2}, {NCH*CH*4}
    s_mov_b32 s{sEN+3}, 0x20000
    s_mov_b32 s{sO0}, s42
    s_or_b32 s{sO0+1}, s43, 0x800000
    s_mov_b32 s{sO0+2}, {N}
    s_mov_b32 s{sO0+3}, 0x20000
    s_add_u32 s{sO1}, s42, {N*128}
    s_addc_u32 s{sO1+1}, s43, 0
    s_mov_b32 s{sO1+2}, {N*6}
    s_mov_b32 s{sO1+3}, 0x20000
    s_add_u32 s{sHD}, s44, {TB}
    s_addc_u32 s{sHD+1}, s45, 0
    s_or_b32 s{sHD+1}, s{sHD+1}, 0x800000
    s_mov_b32 s{sHD+2}, {N}
    s_mov_b32 s{sHD+3}, 0x20000
    s_add_u32 s{sTA}, s44, {TA}
    s_addc_u32 s{sTA+1}, s45, 0
    s_or_b32 s{sTA+1}, s{sTA+1}, 0x800000
    s_mov_b32 s{sTA+2}, {N}
    s_mov_b32 s{sTA+3}, 0x20000
    ''')
    st(18)
    st(1)
    a.label('L2_first')
    a('s_waitcnt vmcnt(0)')
    st(19)
    a('s_branch L2_counts')
    a.label('L2_batch')
    a('s_barrier')
    a.label('L2_counts')
    a(f"""
    v_alignbit_b32 v100, v5, v4, 16
    v_alignbit_b32 v101, v6, v5, 16
    v_alignbit_b32 v102, v7, v6, 16
    v_alignbit_b32 v103, v8, v7, 16
    v_and_b32 v105, 0xffff, v4
    v_sub_u32 v104, v8, v105
    s_sub_u32 s54, s{sW1}, s{sW0}
    v_subrev_u32 v106, s{sW0}, v3
    v_cmp_gt_u32 vcc, s54, v106
    s_mov_b32 s55, {CH*4}
    v_lshlrev_b32 v107, 2, v105
    v_lshl_add_u32 v107, v9, 4, v107
    v_cndmask_b32 v104, 0, v104, vcc
    v_lshlrev_b32 v109, 2, v9
    v_sub_u32 v109, v104, v109
    v_max_i32 v109, 0, v109
    v_mad_u32_u24 v107, v3, s55, v107
    """)
    for i in range(4):
        a(f'v_cmp_lt_u32 s[{90+2*i}:{91+2*i}], {8*i}, v109')
    for i in range(4):
        a(f's_mov_b64 exec, s[{90+2*i}:{91+2*i}]')
        a(f's_cbranch_execz L2_e{i}')
        a(f'buffer_load_dwordx4 v[{192+4*i}:{195+4*i}], v107, s[{sEN}:{sEN+3}], 0 offen offset:{32*i}')
        a.label(f'L2_e{i}')
    a('s_mov_b64 exec, -1')
    st(2)
    a(f"""
    v_pk_sub_u16 v100, v100, v4
    v_pk_sub_u16 v101, v101, v5
    v_pk_sub_u16 v102, v102, v6
    v_pk_sub_u16 v103, v103, v7
    v_cmp_eq_u32 s[56:57], 0, v9
    """)
    for q in range(4):
        a(f'v_cndmask_b32 v{100+q}, 0, v{100+q}, vcc')
    for q in range(5):
        a(f'v_cndmask_b32 v{112+q}, 0, v{100+q}, s[56:57]')
    for sh in (1,2,4,8):
        for q in range(5):
            a(f'v_add_u32_dpp v{112+q}, v{112+q}, v{112+q} row_shr:{sh} row_mask:0xf bank_mask:0xf')
    for q in range(5):
        a(f'v_add_u32_dpp v{112+q}, v{112+q}, v{112+q} row_bcast:15 row_mask:0xa bank_mask:0xf')
    for q in range(5):
        a(f'v_add_u32_dpp v{112+q}, v{112+q}, v{112+q} row_bcast:31 row_mask:0xc bank_mask:0xf')
    st(21)
    a(f"""
    s_lshl_b32 s54, s{sV}, 5
    s_add_u32 s54, s54, {L_WTOT}
    v_mov_b32 v117, s54
    s_mov_b32 s56, 0
    s_brev_b32 s57, 1
    s_mov_b64 exec, s[56:57]
    ds_write_b128 v117, v[112:115]
    ds_write_b32 v117, v116 offset:16
    s_mov_b64 exec, -1
    v_and_b32 v118, 7, v1
    v_lshlrev_b32 v118, 5, v118
    v_add_u32 v118, {L_WTOT}, v118
    s_waitcnt lgkmcnt(0)
    s_barrier
    ds_read_b128 v[120:123], v118
    ds_read_b32 v124, v118 offset:16
    """)
    st(3)
    a('s_waitcnt lgkmcnt(0)')
    for sh in (1,2,4):
        for q in range(5):
            a(f'v_add_u32_dpp v{120+q}, v{120+q}, v{120+q} row_shr:{sh} row_mask:0xf bank_mask:0xf')
    for q in range(5):
        a(f'v_readlane_b32 s{58+q}, v{120+q}, 7')
    a(f's_sub_u32 s54, s{sV}, 1')
    a(f's_max_i32 s54, s54, 0')
    for q in range(4):
        a(f'v_readlane_b32 s{64+q}, v{120+q}, s54')
    a(f's_cmp_eq_u32 s{sV}, 0')
    for q in range(4):
        a(f's_cselect_b32 s{64+q}, 0, s{64+q}')
    for q in range(4):
        a(f's_and_b32 s{68+2*q}, s{58+q}, 0xffff')
        a(f's_lshr_b32 s{69+2*q}, s{58+q}, 16')
    a('s_mov_b32 s84, 0')
    for g in range(8):
        a(f"""
        s_mov_b32 s{76+g}, s84
        s_add_u32 s54, s{68+g}, 31
        s_andn2_b32 s54, s54, 31
        s_add_u32 s84, s84, s54
        """)
    a(f"""
    s_max_u32 s54, s84, s62
    s_cmp_le_u32 s54, {CAP}
    s_cbranch_scc1 L2_fits
    s_add_u32 s{sW1}, s{sW0}, 1
    s_waitcnt vmcnt(0) lgkmcnt(0)
    s_branch L2_batch
    """)
    a.label('L2_fits')
    a(f"""
    s_cmp_eq_u32 s63, 1
    s_cbranch_scc1 L2_pidone
    """)
    if 'nopi' in ABL:
        a(f's_mov_b32 s{sG}, s{sV}')
    else:
        for g in range(8):
            a(f's_lshl_b32 s54, s{68+g}, 3')
            a(f's_add_u32 s{90+g}, s54, {7-g}')
            a(f'v_writelane_b32 v126, s{90+g}, {g}')
        a('v_mov_b32 v127, 0')
        for h in range(2):
            for k in range(4):
                pr=(56,58,54,64)[k] if False else None
            for k in range(4):
                a(f'v_cmp_gt_u32 s[{(54,56,58,60)[k]}:{(54,56,58,60)[k]+1}], s{90+4*h+k}, v126')
            for k in range(4):
                a(f'v_addc_co_u32 v127, vcc, 0, v127, s[{(54,56,58,60)[k]}:{(54,56,58,60)[k]+1}]')
        a(f"""
        s_sub_u32 s54, 11, s{sV}
        s_cmp_lt_u32 s{sV}, 4
        s_cselect_b32 s54, s{sV}, s54
        v_cmp_eq_u32 vcc, s54, v127
        s_nop 3
        s_and_b32 s54, vcc_lo, 0xff
        s_ff1_i32_b32 s{sG}, s54
        """)
    a(f"""
    s_mul_i32 s{sNODE0}, s2, {BN}
    s_add_u32 s{sNODE0}, s{sNODE0}, s{sG}
    """)
    a.label('L2_pidone')
    a(f's_mov_b32 s{sCNT}, s68')
    a(f's_mov_b32 s{sBASE}, s76')
    for g in range(1,8):
        a(f"""
        s_cmp_eq_u32 s{sG}, {g}
        s_cselect_b32 s{sCNT}, s{68+g}, s{sCNT}
        s_cselect_b32 s{sBASE}, s{76+g}, s{sBASE}
        """)
    a(f"""
    s_add_u32 s{sNT}, s{sCNT}, 31
    s_lshr_b32 s{sNT}, s{sNT}, 5
    """)
    for q in range(4):
        a(f's_pack_ll_b32_b16 s{85+q}, s{76+2*q}, s{77+2*q}')
        a(f's_add_u32 s{85+q}, s{85+q}, s{64+q}')
        a(f's_add_u32 s{85+q}, s{85+q}, {CH | (CH<<16)}')
    a(f"""
    v_lshl_or_b32 v105, v105, 16, v105
    v_mul_u32_u24 v106, 0x100010, v9
    """)
    for q in range(4):
        a(f"""
        v_sub_u32 v{112+q}, v{112+q}, v{100+q}
        v_add_u32 v{112+q}, s{85+q}, v{112+q}
        v_sub_u32 v{120+q}, v{4+q}, v105
        v_sub_u32 v{112+q}, v{112+q}, v{120+q}
        v_lshl_add_u32 v{112+q}, v{112+q}, 2, v106
        """)
    a(f"""
    v_lshlrev_b32 v108, 4, v0
    v_add_u32 v108, {L_GTAB}, v108
    ds_write_b128 v108, v[112:115]
    v_mov_b32 v104, v109
    s_mov_b32 s54, {CH*32}
    v_mul_lo_u32 v110, v3, s54
    v_mov_b32 v111, {4*CH+4*CAP}
    v_lshlrev_b32 v96, 4, v1
    s_lshl_b32 s58, s{sV}, 10
    v_add_u32 v96, s58, v96
    s_waitcnt vmcnt(0)
    """)
    st(4)
    for r in range(10):
        a(f"""
        s_add_u32 m0, s58, {L_RING+8192*r}
        v_add_u32 v97, {8192*r}, v96
        buffer_load_dwordx4 v97, s[{sPOS}:{sPOS+3}], 0 offen lds
        """)
    st(20)
    def quad(qreg, i, dyn=False):
        for u in range(4):
            a(f'v_lshrrev_b32 v{140+u}, 29, v{qreg+u}')
            a(f'v_lshl_add_u32 v{140+u}, v{140+u}, 1, v108')
            a(f'ds_read_u16 v{144+u}, v{140+u}')
        for u in range(4):
            if dyn: a(f'v_cmp_lt_u32 s[{90+2*u}:{91+2*u}], {u}, v104')
            else:   a(f'v_cmp_lt_u32 s[{90+2*u}:{91+2*u}], {8*i+u}, v104')
        a('s_waitcnt lgkmcnt(0)')
        for u in range(4):
            if dyn: a(f'v_add_u32 v{144+u}, v{144+u}, v149')
            a(f'v_cndmask_b32 v{144+u}, v111, v{144+u}, s[{90+2*u}:{91+2*u}]')
        ko = 0 if dyn else 8*i
        for u in range(4):
            a(f'ds_write_b32 v{144+u}, v{qreg+u} offset:{L_R0-4*CH+4*(ko+u)}')
            a(f'ds_write_b32 v{144+u}, v110 offset:{L_S-4*CH+4*(ko+u)}')
    for i in range(4):
        quad(192+4*i, i)
        a(f'v_cmp_lt_u32 vcc, {8*(i+1)}, v104')
        a('s_cbranch_vccz L2_scat_done')
    a(f'''
    v_subrev_u32 v104, 32, v104
    v_cmp_gt_i32 vcc, 0, v104
    v_mov_b32 v149, 128
    v_add_u32 v107, 128, v107
    v_cndmask_b32 v104, v104, 0, vcc
    ''')
    a.label('L2_scat_loop')
    a(f'buffer_load_dwordx4 v[192:195], v107, s[{sEN}:{sEN+3}], 0 offen')
    a('s_waitcnt vmcnt(0)')
    quad(192, 0, dyn=True)
    a(f'''
    v_subrev_u32 v104, 8, v104
    v_add_u32 v149, 32, v149
    v_add_u32 v107, 32, v107
    v_cmp_gt_i32 vcc, 0, v104
    s_nop 1
    v_cndmask_b32 v104, v104, 0, vcc
    v_cmp_lt_u32 vcc, 0, v104
    s_cbranch_vccnz L2_scat_loop
    ''')
    a.label('L2_scat_done')
    st(5)
    a('''
    s_waitcnt vmcnt(0) lgkmcnt(0)
    s_barrier
    ''')
    st(6)
    a(f"""
    v_lshrrev_b32 v100, 2, v1
    v_lshlrev_b32 v100, 3, v100
    v_add_u32 v100, s{sNODE0}, v100
    v_mul_u32_u24 v100, 6, v100
    v_and_b32 v102, 3, v1
    v_lshl_add_u32 v100, v102, 1, v100
    v_add_u32 v100, {L_RING}, v100
    ds_read_u16 v101, v100
    s_cmp_eq_u32 s63, 1
    s_cbranch_scc1 L2_noC
    v_lshlrev_b32 v96, 4, v1
    """)
    for f in range(2):
        a(f'buffer_load_dwordx4 v[{vW3+4*f}:{vW3+4*f+3}], v96, s[{sWF}:{sWF+3}], 0 offen offset:{(F_W3+f)*1024}')
    a(f"""
    v_lshrrev_b32 v121, 5, v1
    v_and_b32 v120, 31, v1
    v_lshlrev_b32 v119, 2, v120
    v_lshlrev_b32 v122, 5, v121
    v_mov_b32 v123, -1
    """)
    for q in range(4):
        a(f"""
        v_add_u32 v124, {8*q}, v122
        v_add_u32 v125, s{sG}, v124
        v_add_u32 v124, s{sNODE0}, v124
        v_cmp_gt_u32 vcc, {BN}, v125
        v_mov_b32 v{129+2*q}, v119
        s_nop 0
        v_cndmask_b32 v{128+2*q}, v123, v124, vcc
        """)
    for q in range(4):
        a(f'buffer_load_dword v{40+q}, v[{128+2*q}:{129+2*q}], s[{sTA}:{sTA+3}], 0 idxen offen')
    a(f"""
    v_lshlrev_b32 v120, 3, v120
    v_add_u32 v120, {WDO}, v120
    v_cmp_gt_u32 vcc, 32, v1
    v_mov_b32 v123, 0x7fffff00
    s_nop 0
    v_cndmask_b32 v120, v120, v123, vcc
    buffer_load_dwordx2 v[44:45], v120, s[{sWF}:{sWF+3}], 0 offen
    """)
    a.label('L2_noC')
    a(f"""
    s_lshl_b32 s54, s{sV}, 7
    s_add_u32 s54, s54, {L_PD}
    v_lshlrev_b32 v97, 2, v1
    v_add_u32 v97, s54, v97
    s_waitcnt lgkmcnt(0)
    v_lshlrev_b32 v101, 16, v101
    s_mov_b32 exec_hi, 0
    ds_write_b32 v97, v101
    s_mov_b64 exec, -1
    """)
    a(f'''
    s_lshl_b32 s54, s{sV}, 7
    s_add_u32 s54, s54, {L_PD}
    v_mov_b32 v98, s54
    v_mov_b32 v99, {L_RING}
    v_add_u32 v96, s{sBASE}, v1
    v_mov_b32 v97, v1
    s_mov_b32 s{sT}, 0
    s_mov_b32 s55, 0xffff0000
    s_movk_i32 s56, 0x7fff
    s_mov_b32 s{sHD+2}, {N}
    s_mov_b32 s{sEA+2}, {E*32}
    ''')
    a(f'''
    s_lshl_b32 s54, s{sNT}, 5
    s_sub_u32 s54, s54, 32
    v_add_u32 v100, s54, v1
    v_cmp_le_u32 s[58:59], s{sCNT}, v100
    v_cmp_gt_u32 vcc, 32, v1
    s_and_b64 vcc, vcc, s[58:59]
    s_cmp_eq_u32 s{sNT}, 0
    s_cbranch_scc1 L2_nodummy
    s_and_saveexec_b64 s[58:59], vcc
    s_cbranch_execz L2_dummy_restore
    v_add_u32 v100, s{sBASE}, v100
    v_lshlrev_b32 v101, 2, v100
    v_mov_b32 v102, 28
    ds_write_b32 v101, v102 offset:{L_R0}
    v_lshlrev_b32 v101, 1, v100
    v_mov_b32 v102, 0
    v_mov_b32 v103, 0
    ds_write_b16 v101, v102 offset:{L_RS}
    v_lshlrev_b32 v101, 3, v100
    ds_write_b64 v101, v[102:103] offset:{L_G}
    ''')
    a.label('L2_dummy_restore')
    a('s_mov_b64 exec, s[58:59]')
    a.label('L2_nodummy')
    NI=4
    a.label('L2_geo_loop')
    a(f'''
    s_cmp_ge_u32 s{sT}, s{sCNT}
    s_cbranch_scc1 L2_geo_done
    ''')
    def R(it,k): return 112+20*it+k
    for it in range(NI):
        a(f'''
        v_add_u32 v{R(it,0)}, {64*it}, v96
        v_lshlrev_b32 v{R(it,0)}, 2, v{R(it,0)}
        ds_read_b32 v{R(it,1)}, v{R(it,0)} offset:{L_R0}
        ds_read_b32 v{R(it,2)}, v{R(it,0)} offset:{L_S}
        ''')
    for it in range(NI):
        a(f'''
        v_add_u32 v{R(it,16)}, {64*it}, v97
        v_cmp_gt_u32 s[{90+2*it}:{91+2*it}], s{sCNT}, v{R(it,16)}
        ''')
    for it in range(NI):
        e=R(it,1); wb=R(it,2)
        a(f's_waitcnt lgkmcnt({2*(NI-1-it)+2*it})')
        a(f'''
        v_bfe_u32 v{R(it,3)}, v{e}, 15, 14
        v_and_b32 v{R(it,4)}, 7, v{e}
        v_mad_u32_u24 v{R(it,5)}, v{R(it,3)}, 6, v99
        v_lshl_add_u32 v{R(it,7)}, v{R(it,4)}, 4, v98
        v_and_b32 v{R(it,5)}, -4, v{R(it,5)}
        ds_read_b96 v[{R(it,8)}:{R(it,10)}], v{R(it,7)}
        ds_read2_b32 v[{R(it,12)}:{R(it,13)}], v{R(it,5)} offset1:1
        v_and_b32 v{R(it,5)}, s56, v{e}
        v_lshl_add_u32 v{wb}, v{R(it,5)}, 2, v{wb}
        v_lshlrev_b32 v{R(it,6)}, 4, v{R(it,3)}
        ''')
    if 'nopf' not in ABL:
        a(f'''
        s_cmp_lg_u32 s{sT}, 0
        s_cbranch_scc1 L2_nopf
        ''')
        a(f'''
        v_and_b32 v48, s{sMK}, v{R(0,2)}
        v_mov_b32 v51, 0
        v_mov_b32 v50, v{R(0,3)}
        s_mov_b32 exec_hi, 0
        buffer_load_dword v48, v48, s[{sEA}:{sEA+3}], 0 offen
        buffer_load_dword v49, v[50:51], s[{sHD}:{sHD+3}], 0 idxen offen
        s_mov_b64 exec, -1
        ''')
        a.label('L2_nopf')
    for it in range(NI):
        pd=R(it,8); ps=R(it,12); sh=R(it,6); t0=R(it,4); t1=R(it,5); t2=R(it,7); o=R(it,14); t3=R(it,17)
        a(f's_waitcnt lgkmcnt({2*(NI-1-it)+3*it})')
        a(f'''
        v_alignbit_b32 v{t0}, v{ps+1}, v{ps}, v{sh}
        v_lshrrev_b32 v{t2}, v{sh}, v{ps+1}
        v_lshlrev_b32 v{t1}, 16, v{t0}
        v_and_b32 v{t0}, s55, v{t0}
        v_lshlrev_b32 v{t2}, 16, v{t2}
        v_sub_f32 v{t1}, v{pd}, v{t1}
        v_sub_f32 v{t0}, v{pd+1}, v{t0}
        v_sub_f32 v{t2}, v{pd+2}, v{t2}
        v_mul_f32 v{t3}, v{t1}, v{t1}
        v_cvt_pk_bf16_f32 v{o+1}, v{t0}, v{t2}
        v_fmac_f32 v{t3}, v{t0}, v{t0}
        v_fmac_f32 v{t3}, v{t2}, v{t2}
        v_lshrrev_b32 v{t0}, 1, v{R(it,0)}
        v_cvt_pk_bf16_f32 v{o}, v{t3}, v{t1}
        v_lshlrev_b32 v{t2}, 1, v{R(it,0)}
        s_mov_b64 exec, s[{90+2*it}:{91+2*it}]
        ds_write_b32 v{R(it,0)}, v{R(it,2)} offset:{L_R0}
        ds_write_b16 v{t0}, v{R(it,3)} offset:{L_RS}
        ds_write_b64 v{t2}, v[{o}:{o+1}] offset:{L_G}
        s_mov_b64 exec, -1
        ''')
    a(f'''
    v_add_u32 v96, {64*NI}, v96
    v_add_u32 v97, {64*NI}, v97
    s_add_u32 s{sT}, s{sT}, {64*NI}
    s_branch L2_geo_loop
    ''')
    a.label('L2_geo_done')
    a(f'''
    s_cmp_eq_u32 s63, 1
    s_cbranch_scc1 L2_w6done
    s_mov_b32 s63, 1
    s_waitcnt vmcnt(0)
    ''')
    for q in range(4):
        a(f'v_and_b32 v{vW6+q}, 0xffff, v{40+q}')
        a(f'v_lshrrev_b32 v{vW6+4+q}, 16, v{40+q}')
    a(f'''
    v_or_b32 v{vW6+3}, v{vW6+3}, v44
    v_or_b32 v{vW6+7}, v{vW6+7}, v45
    ''')
    a.label('L2_w6done')
    a(f'''
    s_waitcnt lgkmcnt(0)
    s_barrier
    ''')
    st(7)
    a(f'''
    s_lshl_b32 s54, s{sV}, 11
    s_add_u32 s54, s54, {L_S}
    v_lshlrev_b32 v96, 4, v1
    v_add_u32 v96, s54, v96
    v_mov_b32 v100, 0
    v_mov_b32 v101, 0
    v_mov_b32 v102, 0
    v_mov_b32 v103, 0
    ds_write_b128 v96, v[100:103]
    ds_write_b128 v96, v[100:103] offset:1024
    v_lshrrev_b32 v97, 3, v1
    v_add_u32 v97, s{sBASE}, v97
    v_lshlrev_b32 v97, 1, v97
    v_add_u32 v{vRSa}, {L_RS}, v97
    v_lshrrev_b32 v97, 1, v1
    v_add_u32 v97, s{sBASE}, v97
    v_lshlrev_b32 v97, 2, v97
    v_add_u32 v{vR0a}, {L_R0}, v97
    v_and_b32 v97, 31, v1
    v_add_u32 v97, s{sBASE}, v97
    v_lshlrev_b32 v98, 2, v97
    v_add_u32 v{vR0e}, {L_R0}, v98
    v_lshrrev_b32 v98, 5, v1
    v_lshlrev_b32 v98, 2, v98
    v_lshl_add_u32 v98, v97, 3, v98
    v_add_u32 v{vGe}, {L_G}, v98
    s_mov_b32 s{sT}, 0
    ''')
    if 'lone' in ABL:
        a(f's_cmp_ge_u32 s{sV}, 4\ns_cselect_b32 s{sNT}, 0, s{sNT}')
    a(f'''
    s_cmp_eq_u32 s{sNT}, 0
    s_cbranch_scc1 L2_notiles
    ''')
    def idx_reads(toff):
        return [f'ds_read_u16 v{vHP+2*i}, v{vRSa} offset:{64*toff+16*i}' for i in range(4)] + \
               [f'ds_read_b32 v{vEAi}, v{vR0a} offset:{128*toff}']
    def rec_reads(toff):
        return [f'ds_read_b32 v{vR0}, v{vR0e} offset:{128*toff}', f'ds_read_b32 v{vG}, v{vGe} offset:{256*toff}']
    def srd_select(delta):
        return [f's_add_u32 s54, s{sT}, {delta}\ns_cmp_lt_u32 s54, s{sNT}\ns_cselect_b32 s{sHD+2}, {NH_}, 0\ns_cselect_b32 s{sEA+2}, {NE_}, 0']
    def dma(slot):
        r=[f'v_and_or_b32 v{vEAo}, v{vEAi}, s{sMK}, v{vEAc}\ns_add_u32 m0, s{sRB}, {slot*SLOT+4096}\nbuffer_load_dwordx4 v{vEAo}, s[{sEA}:{sEA+3}], 0 offen lds']
        for i in range(4):
            r.append(f's_add_u32 m0, s{sRB}, {slot*SLOT+1024*i}\nbuffer_load_dwordx4 v[{vHP+2*i}:{vHP+2*i+1}], s[{sHD}:{sHD+3}], 0 idxen offen lds')
        return r
    def x_reads(slot):
        return [f'ds_read_b128 v[{vX+4*s}:{vX+4*s+3}], v{vHA+s} offset:{slot*SLOT}' for s in range(4)] + \
               [f'ds_read_b128 v[{vXE}:{vXE+3}], v{vEAr} offset:{slot*SLOT}']
    def s_addr(): return [f'v_bitop3_b32 v{vA1}, v{vR0}, 28, v{vC1} bitop3:0x6a', f'v_bfi_b32 v{vS1}, v{vMK2}, v{vG}, v{vOne}', f'v_perm_b32 v{vS2}, v{vG}, v{vG}, s{sSEL}']
    def s_writes(): return [f'ds_write_b32 v{vA1}, v{vS1}', f'ds_write_b32 v{vCD}, v{vS2}']
    def x6_read(): return [f'ds_read_b128 v[{vX6}:{vX6+3}], v{vX6r}']
    def sf_reads():
        r=[]
        for s2 in range(2):
            r.append(f'ds_read_b64_tr_b16 v[{vSF+4*s2}:{vSF+4*s2+1}], v{vSTa} offset:{1024*s2}')
            r.append(f'ds_read_b64_tr_b16 v[{vSF+4*s2+2}:{vSF+4*s2+3}], v{vSTb} offset:{1024*s2}')
        return r
    def s_restore(): return [f'ds_write_b32 v{vA1}, v{vZero}']
    def mfma1(dst):
        r=[]
        for blk in range(2):
            D=f'v[{dst+16*blk}:{dst+16*blk+15}]'
            for sp in range(2):
                C = D if sp>0 else '0'
                s_=2*blk+sp
                r.append(f'v_mfma_f32_32x32x16_bf16 {D}, v[{vX+4*s_}:{vX+4*s_+3}], v[{vI+4*sp}:{vI+4*sp+3}], {C}')
            r.append(f'v_mfma_f32_32x32x16_bf16 {D}, v[{vXE}:{vXE+3}], v[{vW3+4*blk}:{vW3+4*blk+3}], {D}')
            r.append(f'v_mfma_f32_32x32x16_bf16 {D}, v[{vX6}:{vX6+3}], v[{vW6+4*blk}:{vW6+4*blk+3}], {D}')
        return r
    ONE=f'v[{vONE}:{vONE+3}]'
    def plus1(blk):
        Eb=f'v[{vE+16*blk}:{vE+16*blk+15}]'
        return f'v_mfma_f32_32x32x16_bf16 {Eb}, {ONE}, {ONE}, {Eb}'
    def mfma2(cur,blk,s2):
        D=f'v[{vD2+16*blk}:{vD2+16*blk+15}]'; m=cur+8*blk+4*s2
        return f'v_mfma_f32_32x32x16_bf16 {D}, v[{m}:{m+3}], v[{vSF+4*s2}:{vSF+4*s2+3}], {D}'
    def keep(x):
        if 'nomfma' in ABL and x.startswith('v_mfma'): return False
        if 'nolds' in ABL and x.startswith('ds_'): return False
        if 'nodma' in ABL and 'buffer_load' in x: return False
        if 'notrans' in ABL and x.startswith(('v_exp','v_rcp')): return False
        if 'novalu' in ABL and x.startswith(('v_exp','v_rcp','v_mul','v_cvt')): return False
        return True
    def emit(backbone, inserts):
        backbone=[x if keep(x) else 's_nop 0' for x in backbone]
        inserts={k:[x for x in v if keep(x)] for k,v in inserts.items()}
        for s_ in inserts.get(-1,[]): a(s_)
        for i,ins in enumerate(backbone):
            a(ins)
            for s_ in inserts.get(i,[]): a(s_)
    nlab=[0]
    DMAPOS=optl('dma',[41,52,63,76,92])
    M1POS=optl('m1',[42,46,50,54,58,62,68,74])
    SFPOS=optl('sf',[0,2,4,6]); RSPOS=optl('rs',[8])[0]; SAPOS=optl('sa',[9,10,11]); SWPOS=optl('sw',[12,13]); X6POS=optl('x6',[14])[0]
    VMPOS=optl('vm',[16])[0]; XPOS=optl('x',[16,18,20,22,24]); RECPOS=optl('rec',[26,27]); IDXPOS=optl('idx',[28,29,30,31,32])
    LGPOS=optl('lg',[40])[0]; M2POS=optl('m2',[89,95,111,111]); P1POS=optl('p1',[17,33])
    def body(p, steady, extra_first=None):
        cur=vD1[p]; nxt=vD1[1-p]
        bb=[]
        for blk in range(2):
            bb += [f'v_exp_f32 v{vE+16*blk+i}, v{cur+16*blk+i}' for i in range(16)]
        for blk in range(2):
            bb += [f'v_rcp_f32 v{vE+16*blk+i}, v{vE+16*blk+i}' for i in range(16)]
        bb += [f'v_mul_f32 v{vE+i}, v{vE+i}, v{cur+i}' for i in range(16)]
        bb += [f'v_cvt_pk_bf16_f32 v{cur+q}, v{vE+2*q}, v{vE+2*q+1}' for q in range(8)]
        bb += [f'v_mul_f32 v{vE+16+i}, v{vE+16+i}, v{cur+16+i}' for i in range(16)]
        bb += [f'v_cvt_pk_bf16_f32 v{cur+8+q}, v{vE+16+2*q}, v{vE+16+2*q+1}' for q in range(8)]
        ins={}
        def put(pos,x):
            ins.setdefault(pos,[]).append(x)
        put(-1,'s_waitcnt lgkmcnt(0)')
        if 'prio' in ABL:
            put(-1,f'''s_and_b32 s54, s{sT}, 2
            s_cmp_eq_u32 s54, 0
            s_cbranch_scc1 Lp{nlab[0]}a
            s_setprio {1-p}
            s_branch Lp{nlab[0]}b
            Lp{nlab[0]}a:
            s_setprio {3-p}
            Lp{nlab[0]}b:''')
            nlab[0]+=1
        for x,q in zip(sf_reads(),SFPOS): put(q,x)
        put(RSPOS,s_restore()[0])
        put(P1POS[0],plus1(0))
        put(P1POS[1],plus1(1))
        if steady:
            for x,q in zip(s_addr(),SAPOS): put(q,x)
            for x,q in zip(s_writes(),SWPOS): put(q,x)
            put(X6POS,x6_read()[0])
            put(VMPOS,'s_waitcnt vmcnt(5)')
            for x,q in zip(x_reads(1-p),XPOS): put(q,x)
            for x,q in zip(rec_reads(p+2),RECPOS): put(q,x)
            for x,q in zip(idx_reads(p+3),IDXPOS): put(q,x)
            put(LGPOS-2,srd_select(3)[0])
            put(LGPOS,'s_waitcnt lgkmcnt(0)')
            for x,q in zip(dma(1-p),DMAPOS): put(q,x)
            for x,q in zip(mfma1(nxt),M1POS): put(q,x)
        for (b_,s_),q in zip(((0,0),(0,1),(1,0),(1,1)),M2POS): put(q,mfma2(cur,b_,s_))
        emit(bb,ins)
    for x in idx_reads(0): a(x)
    for x in rec_reads(0): a(x)
    a(f's_mov_b32 s{sHD+2}, {N}')
    a(f's_mov_b32 s{sEA+2}, {E*32}')
    a('s_waitcnt lgkmcnt(0)')
    for x in dma(0): a(x)
    for x in idx_reads(1): a(x)
    for x in s_addr(): a(x)
    for x in s_writes(): a(x)
    for x in x6_read(): a(x)
    a(srd_select(1)[0])
    a('s_waitcnt vmcnt(0)')
    for x in x_reads(0): a(x)
    a('s_waitcnt lgkmcnt(5)')
    for x in dma(1): a(x)
    for x in idx_reads(2): a(x)
    for x in rec_reads(1): a(x)
    a(srd_select(2)[0])
    a('s_waitcnt lgkmcnt(0)')
    for x in mfma1(vD1[0])[:2]: a(x)
    for x in dma(0): a(x)
    for x in mfma1(vD1[0])[2:]: a(x)
    st(8)
    stampc(a,12,vTM,98)
    if DEBUG_TM: a(f'v_writelane_b32 v{vTM}, s{sNT}, 22\nv_writelane_b32 v{vTM}, s{sG}, 23\ns_getreg_b32 s98, hwreg(HW_REG_HW_ID)\nv_writelane_b32 v{vTM}, s98, 24')
    JM=[0,1,4,5]
    RESV=[[232,233,234,236],[237,238,252,253]]
    WXV=[192,196,200,204,208,212,228,248]
    def epi_prefetch(p):
        nxt=vD1[1-p]
        r=[]
        r.append('v_lshlrev_b32 v10, 4, v1')
        for f in range(8):
            r.append(f'v_add_u32 v9, {(F_H1+f)*1024}, v10\nbuffer_load_dwordx4 v[{16+4*f}:{19+4*f}], v9, s[{sWF}:{sWF+3}], 0 offen')
        for f in range(8):
            r.append(f'v_add_u32 v9, {(F_H2+f)*1024}, v10\nbuffer_load_dwordx4 v[{nxt+4*f}:{nxt+4*f+3}], v9, s[{sWF}:{sWF+3}], 0 offen')
        r.append(f'v_lshrrev_b32 v7, 5, v1\nv_lshlrev_b32 v9, 7, v7\nv_add_u32 v9, {WXO}, v9')
        for f in range(8):
            r.append(f'buffer_load_dwordx4 v[{WXV[f]}:{WXV[f]+3}], v9, s[{sWF}:{sWF+3}], 0 offen offset:{16*f}')
        r.append(f'''
        v_bfe_u32 v9, v1, 1, 3
        v_lshlrev_b32 v9, 3, v9
        v_add_u32 v3, s{sG}, v9
        v_add_u32 v9, s{sNODE0}, v9
        v_cmp_gt_u32 vcc, {BN}, v3
        v_mov_b32 v4, -1
        v_lshlrev_b32 v7, 4, v7
        v_cndmask_b32 v6, v4, v9, vcc
        ''')
        for s_ in range(4):
            r.append(f'buffer_load_dwordx4 v[{48+4*s_}:{51+4*s_}], v[6:7], s[{sH}:{sH+3}], 0 idxen offen offset:{32*s_}')
        r.append(f'''
        v_lshrrev_b32 v9, 5, v1
        v_lshlrev_b32 v9, 4, v9
        v_and_b32 v3, 31, v1
        v_lshlrev_b32 v3, 1, v3
        ''')
        for m in range(4):
            r.append(f'''
            v_add_u32 v5, {8*JM[m]}, v9
            v_add_u32 v8, s{sG}, v5
            v_add_u32 v5, s{sNODE0}, v5
            v_cmp_gt_u32 vcc, {BN}, v8
            v_mov_b32 v{241+2*m}, v3
            s_nop 0
            v_cndmask_b32 v{240+2*m}, v4, v5, vcc
            ''')
        for m in range(4):
            r.append(f'buffer_load_ushort v{RESV[0][m]}, v[{240+2*m}:{241+2*m}], s[{sH}:{sH+3}], 0 idxen offen')
            r.append(f'buffer_load_ushort v{RESV[1][m]}, v[{240+2*m}:{241+2*m}], s[{sH}:{sH+3}], 0 idxen offen offset:64')
        r.append(f'''
        v_bfe_u32 v9, v1, 1, 3
        v_lshlrev_b32 v9, 3, v9
        v_add_u32 v3, s{sG}, v9
        v_add_u32 v9, s{sNODE0}, v9
        v_bfe_u32 v5, v1, 4, 1
        v_and_b32 v8, 1, v1
        v_lshl_add_u32 v5, v5, 1, v8
        v_cmp_gt_u32 vcc, {BN}, v3
        v_subrev_u32 v5, 1, v5
        v_cmp_gt_u32 s[56:57], 3, v5
        v_mul_u32_u24 v9, 6, v9
        s_and_b64 vcc, vcc, s[56:57]
        v_cmp_gt_u32 s[56:57], 32, v1
        v_lshl_add_u32 v9, v5, 1, v9
        v_mov_b32 v4, 0x7fffff00
        s_and_b64 vcc, vcc, s[56:57]
        v_cndmask_b32 v10, v4, v9, vcc
        buffer_load_ushort v11, v10, s[{sPOS}:{sPOS+3}], 0 offen
        ''')
        return r
    def epilogue(p):
        nxt=vD1[1-p]; cur=vD1[p]
        a(f's_mov_b32 s54, {f32bits(-math.log(2.0))}')
        for i in range(32):
            a(f'v_mul_f32 v{vD2+i}, s54, v{vD2+i}')
        pk=vE
        for blk in range(2):
            for q in range(8):
                a(f'v_cvt_pk_bf16_f32 v{pk+8*blk+q}, v{vD2+16*blk+2*q}, v{vD2+16*blk+2*q+1}')
        a('s_waitcnt vmcnt(0)')
        acc=cur
        a(f'v_mul_f32 v{acc}, v{vD2}, v{WXV[0]}')
        a(f'v_mul_f32 v{acc+1}, v{vD2+1}, v{WXV[0]+1}')
        for i in range(2,32):
            a(f'v_fmac_f32 v{acc+(i&1)}, v{vD2+i}, v{WXV[i>>2]+(i&3)}')
        a(f'v_add_f32 v{acc}, v{acc}, v{acc+1}')
        a(f'v_mov_b32 v{acc+1}, v{acc}')
        for b2 in range(2):
            D=f'v[{64+16*b2}:{79+16*b2}]'
            for s_ in range(4):
                C = D if s_>0 else '0'
                a(f'v_mfma_f32_32x32x16_bf16 {D}, v[{48+4*s_}:{51+4*s_}], v[{16+4*(2*s_+b2)}:{19+4*(2*s_+b2)}], {C}')
            for blk in range(2):
                for sp in range(2):
                    f=(blk*2+sp)*2+b2
                    a(f'v_mfma_f32_32x32x16_bf16 {D}, v[{pk+8*blk+4*sp}:{pk+8*blk+4*sp+3}], v[{nxt+4*f}:{nxt+4*f+3}], {D}')
        a(f'v_permlane32_swap_b32 v{acc}, v{acc+1}')
        a(f'''
        v_lshlrev_b32 v11, 16, v11
        v_add_f32 v{acc}, v{acc}, v{acc+1}
        v_add_f32 v11, v11, v{acc}
        v_cvt_pk_bf16_f32 v11, v11, v11
        buffer_store_short v11, v10, s[{sO1}:{sO1+3}], 0 offen
        ''')
        a(f's_mov_b32 s54, {f32bits(-LOG2E)}')
        T=vE+16
        for b2 in range(2):
            for m in range(4):
                a(f'v_mul_f32 v{T+4*b2+m}, s54, v{64+16*b2+2*m}')
        for k in range(8): a(f'v_exp_f32 v{T+k}, v{T+k}')
        for k in range(8): a(f'v_add_f32 v{T+k}, 1.0, v{T+k}')
        for k in range(8): a(f'v_rcp_f32 v{T+k}, v{T+k}')
        for b2 in range(2):
            for m in range(4):
                x=64+16*b2+2*m; t=T+4*b2+m; hh=RESV[b2][m]
                a(f'v_lshlrev_b32 v{hh}, 16, v{hh}')
                a(f'v_fma_f32 v{t}, v{x}, v{t}, v{hh}')
                a(f'v_cvt_pk_bf16_f32 v{t}, v{t}, v{t}')
        for b2 in range(2):
            for m in range(4):
                t=T+4*b2+m
                a(f'buffer_store_short v{t}, v[{240+2*m}:{241+2*m}], s[{sO0}:{sO0+3}], 0 idxen offen offset:{64*b2}')
        st(10)
        if DEBUG_TM: a('s_waitcnt vmcnt(0)')
        st(11)
        stamp_store(a,vTM,98,44,45,0x80000,sV,254)
        a('s_endpgm')
    for p in range(2):
        a.label(f'L2_s{p}')
        a(f'''
        s_add_u32 s54, s{sT}, 1
        s_cmp_ge_u32 s54, s{sNT}
        s_cbranch_scc1 L2_l{p}
        ''')
        body(p, True)
        a(f's_add_u32 s{sT}, s{sT}, 1')
        if p==1:
            a(f'''
            v_add_u32 v{vRSa}, 128, v{vRSa}
            v_add_u32 v{vR0a}, 256, v{vR0a}
            v_add_u32 v{vR0e}, 256, v{vR0e}
            v_add_u32 v{vGe}, 512, v{vGe}
            s_branch L2_s0
            ''')
    for p in range(2):
        a.label(f'L2_l{p}')
        a(f'''
        s_cmp_lt_u32 s{sW1}, {NCH}
        s_cbranch_scc1 L2_l{p}n
        ''')
        body(p, False, None) if False else None
        for x in epi_prefetch(p): a(x)
        body(p, False)
        st(9)
        stampc(a,13,vTM,98)
        epilogue(p)
        a.label(f'L2_l{p}n')
        body(p, False)
        a('s_branch L2_nextbatch')
    a.label('L2_notiles')
    a(f'''
    s_cmp_lt_u32 s{sW1}, {NCH}
    s_cbranch_scc1 L2_nextbatch
    ''')
    for x in epi_prefetch(0): a(x)
    st(9)
    epilogue(0)
    a.label('L2_nextbatch')
    a(f'''
    s_waitcnt vmcnt(0) lgkmcnt(0)
    s_mov_b32 s{sW0}, s{sW1}
    s_add_u32 s{sW1}, s{sW1}, 1
    s_branch L2_batch
    ''')
    a.label('L2_end')
    a('s_endpgm')
    return a.finalize(), 256, 102, L_END

def main():
    k1,v1,s1,l1 = gen_k1()
    k2,v2,s2,l2 = gen_k2()
    hdr = open('gather_scatter__cheap_equivariant_egnn__graph.s.ref').read().split('; Override launch')[0]
    out = hdr
    out += f'; @launch kernel=egnn_part_kernel grid=({NCH+1+NTW},1,1) block=(512,1,1) lds={l1}\n'
    out += f'; @launch kernel=egnn_main_kernel grid=({NBK},1,1) block=(512,1,1) lds={l2}\n'
    out += '.amdgcn_target "amdgcn-amd-amdhsa--gfx950"\n.text\n'
    for name,body in (('egnn_part_kernel',k1),('egnn_main_kernel',k2)):
        out += f'.globl {name}\n.p2align 8\n.type {name},@function\n' + body
    out += '.section .rodata,"a"\n'
    for name,nv,ns in (('egnn_part_kernel',v1,s1),('egnn_main_kernel',v2,s2)):
        acc=(nv+3)//4*4
        out += f'''.p2align 6
.amdhsa_kernel {name}
  .amdhsa_next_free_vgpr {nv}
  .amdhsa_next_free_sgpr {ns}
  .amdhsa_accum_offset {acc}
  .amdhsa_group_segment_fixed_size 0
  .amdhsa_kernarg_size 88
  .amdhsa_user_sgpr_count 2
  .amdhsa_user_sgpr_kernarg_segment_ptr 1
  .amdhsa_system_sgpr_workgroup_id_x 1
  .amdhsa_float_denorm_mode_32 3
.end_amdhsa_kernel
'''
    dst = [x for x in sys.argv[1:] if not x.startswith('--')]
    path = dst[0] if dst else 'gather_scatter__cheap_equivariant_egnn__graph.s'
    open(path,'w').write(out)
    print('wrote',path,len(out))
main()
```

```python
import sys, math
from asmlib import Asm

N=12500; E=800000; CH=3200; NCH=250; NBK=256; BN=49
ROW=4224
OFFS=0; ENT=0x110000; WF=0x420000; TA=0x500000; TB=0x700000; TM=0x900000
NF=18; WDO=NF*1024; WXO=NF*1024+256; WFSZ=NF*1024+512
NTW=98
CAP=3584
LOG2E=1.4426950408889634
def f32bits(x):
    import struct; return struct.unpack('<I',struct.pack('<f',x))[0]

DEBUG_TM = '--tm' in sys.argv
PFK1 = 2 if '--pfk1' in sys.argv else 1 if '--pfk1h' in sys.argv else 0

F_W3=0
F_H1=2
F_H2=10

def stamp(a, idx, vreg, sp):
    if not DEBUG_TM: return
    a(f'''
    s_memrealtime s[{sp}:{sp+1}]
    s_waitcnt lgkmcnt(0)
    v_writelane_b32 v{vreg}, s{sp}, {idx}
    ''')
def stampc(a, idx, vreg, sp):
    if not DEBUG_TM: return
    a(f'''
    s_memtime s[{sp}:{sp+1}]
    s_waitcnt lgkmcnt(0)
    v_writelane_b32 v{vreg}, s{sp}, {idx}
    ''')
def stamp_store(a, vreg, sp, ws_lo, ws_hi, region, wave_s, vt):
    if not DEBUG_TM: return
    a(f'''
    s_lshl_b32 s{sp}, s2, 3
    s_add_u32 s{sp}, s{sp}, s{wave_s}
    s_lshl_b32 s{sp}, s{sp}, 7
    s_add_u32 s{sp}, s{sp}, {TM+region}
    s_add_u32 s{sp}, s{ws_lo}, s{sp}
    s_addc_u32 s{sp+1}, s{ws_hi}, 0
    v_and_b32 v{vt}, 63, v0
    v_lshlrev_b32 v{vt}, 2, v{vt}
    s_mov_b32 exec_hi, 0
    global_store_dword v{vt}, v{vreg}, s[{sp}:{sp+1}]
    s_mov_b64 exec, -1
    ''')

def gen_k1():
    a=Asm()
    K1_STAGE=8192; K1_WTOT=24576
    a.label('egnn_part_kernel')
    a(f'''
    s_cmp_gt_u32 s2, {NCH+NTW}
    s_cbranch_scc1 L1_end
    v_lshrrev_b32 v2, 6, v0
    v_and_b32 v1, 63, v0
    s_load_dwordx4 s[4:7], s[0:1], 24
    s_load_dwordx2 s[8:9], s[0:1], 80
    s_load_dwordx2 s[34:35], s[0:1], 16
    v_readfirstlane_b32 s3, v2
    s_cmp_eq_u32 s2, {NCH}
    s_cbranch_scc1 L1_wprep
    s_cmp_gt_u32 s2, {NCH}
    s_cbranch_scc1 L1_tables
    ''')
    if DEBUG_TM: a('v_mov_b32 v70, 0')
    stamp(a,0,70,36)
    a(f'''
    v_lshlrev_b32 v3, 4, v0
    v_mov_b32 v4, 0
    v_mov_b32 v5, 0
    v_mov_b32 v6, 0
    v_mov_b32 v7, 0
    ds_write_b128 v3, v[4:7]
    s_mul_i32 s10, s2, {CH*4}
    s_mul_i32 s11, s2, {ROW}
    v_add_u32 v48, 8192, v3
    s_waitcnt lgkmcnt(0)
    s_add_u32 s12, s6, s10
    s_addc_u32 s13, s7, 0
    s_mov_b32 s14, {CH*4}
    s_mov_b32 s15, 0x20000
    s_add_u32 s16, s4, s10
    s_addc_u32 s17, s5, 0
    s_mov_b32 s18, {CH*4}
    s_mov_b32 s19, 0x20000
    buffer_load_dwordx4 v[8:11], v3, s[12:15], 0 offen
    buffer_load_dwordx4 v[12:15], v48, s[12:15], 0 offen
    buffer_load_dwordx4 v[16:19], v3, s[16:19], 0 offen
    buffer_load_dwordx4 v[20:23], v48, s[16:19], 0 offen
    ''')
    if PFK1:
        a(f'''
        s_mul_i32 s10, s2, {CH*32}
        s_add_u32 s32, s34, s10
        s_addc_u32 s33, s35, 0
        s_mov_b32 s34, {CH*32}
        s_mov_b32 s35, 0x20000
        v_lshlrev_b32 v64, 7, v0
        v_add_u32 v65, {512*128}, v64
        buffer_load_dword v66, v64, s[32:35], 0 offen
        ''')
        if PFK1>1: a('buffer_load_dword v67, v65, s[32:35], 0 offen')
        a(f's_mul_i32 s10, s2, {CH*4}')
    a(f'''
    s_add_u32 s24, s8, {OFFS}
    s_addc_u32 s25, s9, 0
    s_add_u32 s24, s24, s11
    s_addc_u32 s25, s25, 0
    s_mov_b32 s26, {ROW}
    s_mov_b32 s27, 0x20000
    s_add_u32 s28, s8, {ENT}
    s_addc_u32 s29, s9, 0
    s_add_u32 s28, s28, s10
    s_addc_u32 s29, s29, 0
    s_mov_b32 s30, {CH*4}
    s_mov_b32 s31, 0x20000
    s_mov_b32 s22, -{BN}
    v_mov_b32 v50, 1
    v_lshlrev_b32 v51, 5, v0
    v_add_u32 v52, 16384, v51
    s_barrier
    s_waitcnt vmcnt({2+PFK1})
    ''')
    stamp(a,1,70,36)
    def keyslot(i, dst, tmp):
        a(f'''
        v_mul_u32_u24 v{tmp}, 21400, v{dst}
        v_lshrrev_b32 v{tmp}, 20, v{tmp}
        v_mad_i32_i24 v{40+i}, v{tmp}, s22, v{dst}
        v_and_b32 v{tmp+1}, 7, v{40+i}
        v_lshl_or_b32 v{tmp}, v{tmp}, 3, v{tmp+1}
        v_lshlrev_b32 v{24+i}, 2, v{tmp}
        ''')
    for u in range(4):
        keyslot(u, 8+u, 54+2*u)
        a(f'ds_add_rtn_u32 v{32+u}, v{24+u}, v50')
    a('''
    v_cmp_gt_u32 vcc, 288, v0
    s_and_saveexec_b64 s[20:21], vcc
    s_cbranch_execz L1_skipB1
    ''')
    for u in range(4):
        keyslot(4+u, 12+u, 54+2*u)
        a(f'ds_add_rtn_u32 v{36+u}, v{28+u}, v50')
    a.label('L1_skipB1')
    a('s_mov_b64 exec, s[20:21]')
    a(f's_waitcnt vmcnt({PFK1})')
    for i in range(8):
        base = 51 if i<4 else 52
        a(f'''
        v_lshrrev_b32 v54, 3, v{40+i}
        v_lshl_or_b32 v54, v{40+i}, 29, v54
        v_lshl_or_b32 v54, v{16+i}, 15, v54
        v_add3_u32 v{40+i}, v54, v{base}, {8*(i%4)}
        ''')
    a('''
    s_waitcnt lgkmcnt(0)
    s_barrier
    ''')
    stamp(a,2,70,36)
    a('''
    ds_read_b128 v[8:11], v3
    s_waitcnt lgkmcnt(0)
    v_add_u32 v12, v8, v9
    v_add_u32 v13, v12, v10
    v_add_u32 v14, v13, v11
    v_mov_b32 v15, v14
    ''')
    for sh in (1,2,4,8):
        a(f'v_add_u32_dpp v15, v15, v15 row_shr:{sh} row_mask:0xf bank_mask:0xf')
    a('v_add_u32_dpp v15, v15, v15 row_bcast:15 row_mask:0xa bank_mask:0xf')
    a('v_add_u32_dpp v15, v15, v15 row_bcast:31 row_mask:0xc bank_mask:0xf')
    a(f'''
    s_lshl_b32 s10, s3, 2
    s_add_u32 s10, s10, {K1_WTOT}
    v_mov_b32 v16, s10
    s_mov_b32 s20, 0
    s_brev_b32 s21, 1
    s_mov_b64 exec, s[20:21]
    ds_write_b32 v16, v15
    s_mov_b64 exec, -1
    v_and_b32 v17, 7, v1
    v_lshlrev_b32 v17, 2, v17
    v_add_u32 v17, {K1_WTOT}, v17
    s_waitcnt lgkmcnt(0)
    s_barrier
    ds_read_b32 v18, v17
    v_cmp_gt_u32 vcc, s3, v1
    s_waitcnt lgkmcnt(0)
    v_cndmask_b32 v18, 0, v18, vcc
    ''')
    for sh in (1,2,4):
        a(f'v_add_u32_dpp v18, v18, v18 row_shr:{sh} row_mask:0xf bank_mask:0xf')
    a(f'''
    v_readlane_b32 s10, v18, 7
    v_sub_u32 v15, v15, v14
    v_add_u32 v8+0, s10, v15
    '''.replace('v8+0','v19'))
    a(f'''
    v_add_u32 v21, v19, v12
    v_add_u32 v22, v19, v13
    v_add_u32 v20, v19, v8
    v_mov_b32 v56, v19
    v_mov_b32 v57, v20
    v_mov_b32 v58, v21
    v_mov_b32 v59, v22
    ds_write_b128 v3, v[56:59]
    v_lshl_or_b32 v60, v20, 16, v19
    v_lshl_or_b32 v61, v22, 16, v21
    v_lshlrev_b32 v62, 3, v0
    buffer_store_dwordx2 v[60:61], v62, s[24:27], 0 offen
    s_cmp_lg_u32 s3, 0
    s_cbranch_scc1 L1_nosent
    s_mov_b32 s10, {CH | (CH<<16)}
    v_mov_b32 v63, s10
    v_lshlrev_b32 v62, 2, v1
    v_add_u32 v62, 4096, v62
    v_cmp_gt_u32 vcc, 32, v1
    s_and_saveexec_b64 s[20:21], vcc
    buffer_store_dword v63, v62, s[24:27], 0 offen
    s_mov_b64 exec, s[20:21]
    ''')
    a.label('L1_nosent')
    a('''
    s_waitcnt lgkmcnt(0)
    s_barrier
    ''')
    stamp(a,3,70,36)
    for u in range(4):
        a(f'ds_read_b32 v{8+u}, v{24+u}')
    a('''
    v_cmp_gt_u32 vcc, 288, v0
    s_and_saveexec_b64 s[20:21], vcc
    s_cbranch_execz L1_skipB2
    ''')
    for u in range(4):
        a(f'ds_read_b32 v{12+u}, v{28+u}')
    a('s_waitcnt lgkmcnt(0)')
    for u in range(4):
        a(f'v_add_lshl_u32 v{12+u}, v{12+u}, v{36+u}, 2')
    for u in range(4):
        a(f'ds_write_b32 v{12+u}, v{44+u} offset:{K1_STAGE}')
    a.label('L1_skipB2')
    a('s_mov_b64 exec, s[20:21]')
    a('s_waitcnt lgkmcnt(0)')
    for u in range(4):
        a(f'v_add_lshl_u32 v{8+u}, v{8+u}, v{32+u}, 2')
    for u in range(4):
        a(f'ds_write_b32 v{8+u}, v{40+u} offset:{K1_STAGE}')
    a(f'''
    s_waitcnt lgkmcnt(0)
    s_barrier
    ds_read_b128 v[8:11], v3 offset:{K1_STAGE}
    ds_read_b128 v[12:15], v3 offset:{K1_STAGE+8192}
    s_waitcnt lgkmcnt(1)
    buffer_store_dwordx4 v[8:11], v3, s[28:31], 0 offen
    s_waitcnt lgkmcnt(0)
    buffer_store_dwordx4 v[12:15], v48, s[28:31], 0 offen
    ''')
    stamp(a,4,70,36)
    if DEBUG_TM: a('s_waitcnt vmcnt(0)')
    stamp(a,5,70,36)
    stamp_store(a,70,36,8,9,0,3,69)
    a('s_endpgm')
    a.label('L1_wprep')
    a(f'''
    s_load_dwordx2 s[10:11], s[0:1], 40
    s_load_dwordx2 s[12:13], s[0:1], 48
    s_load_dwordx2 s[14:15], s[0:1], 56
    v_and_b32 v2, 31, v1
    v_lshrrev_b32 v3, 5, v1
    v_lshlrev_b32 v4, 4, v1
    s_waitcnt lgkmcnt(0)
    s_mov_b32 s16, s10
    s_mov_b32 s17, s11
    s_mov_b32 s18, {145*64*2}
    s_mov_b32 s19, 0x20000
    s_mov_b32 s20, s14
    s_mov_b32 s21, s15
    s_mov_b32 s22, {128*64*2}
    s_mov_b32 s23, 0x20000
    s_mov_b32 s24, s12
    s_mov_b32 s25, s13
    s_mov_b32 s26, {64*2}
    s_mov_b32 s27, 0x20000
    s_add_u32 s28, s8, {WF}
    s_addc_u32 s29, s9, 0
    s_mov_b32 s30, {WFSZ}
    s_mov_b32 s31, 0x20000
    s_mov_b32 s32, {f32bits(-LOG2E)}
    v_lshlrev_b32 v5, 1, v2
    v_lshl_add_u32 v6, v3, 10, v5
    v_lshl_add_u32 v7, v3, 9, v5
    v_lshlrev_b32 v8, 3, v3
    ''')
    frags=[]
    for blk in range(2): frags.append((F_W3+blk,'e',129,blk,'std',True))
    for s in range(4):
        for blk in range(2): frags.append((F_H1+2*s+blk,'h',16*s,blk,'std',False))
    for blk in range(2):
        for sp in range(2):
            for b2 in range(2): frags.append((F_H2+(blk*2+sp)*2+b2,'h',64+32*blk+16*sp,b2,'perm',False))
    assert len(frags)==NF
    for wv in range(8):
        a(f's_cmp_eq_u32 s3, {wv}')
        a(f's_cbranch_scc1 L1_w{wv}')
    a('s_endpgm')
    for wv in range(8):
        a.label(f'L1_w{wv}')
        mine=[f for i,f in enumerate(frags) if i%8==wv]
        for q,(F,srcn,row0,blk,kind,scaled) in enumerate(mine):
            r=16+8*q
            srd={'e':'s[16:19]','h':'s[20:23]','x':'s[24:27]'}[srcn]
            if kind=='wx':
                a(f'v_add_u32 v10, {row0*2}, v8')
                for t in range(8):
                    T=(t&3)+8*(t>>2)
                    a(f'buffer_load_ushort v{r+t}, v10, {srd}, 0 offen offset:{T*2}')
            else:
                vb = 6 if kind=='std' else 7
                a(f'v_add_u32 v10, {row0*128+blk*64}, v{vb}')
                for t in range(8):
                    T= t if kind=='std' else (t&3)+8*(t>>2)
                    a(f'buffer_load_ushort v{r+t}, v10, {srd}, 0 offen offset:{T*128}')
        if wv==0:
            a(f'''
            v_lshlrev_b32 v11, 1, v1
            v_add_u32 v11, {128*128}, v11
            buffer_load_ushort v12, v11, s[16:19], 0 offen
            ''')
        if wv==1:
            a(f'''
            v_and_b32 v11, 3, v1
            v_bfe_u32 v12, v1, 2, 2
            v_lshl_add_u32 v11, v12, 3, v11
            v_bfe_u32 v12, v1, 4, 1
            v_lshl_add_u32 v11, v12, 5, v11
            v_lshl_add_u32 v11, v3, 2, v11
            v_lshlrev_b32 v11, 1, v11
            buffer_load_ushort v12, v11, s[24:27], 0 offen
            ''')
        a('s_waitcnt vmcnt(0)')
        for q,(F,srcn,row0,blk,kind,scaled) in enumerate(mine):
            r=16+8*q
            if scaled:
                for t in range(8):
                    a(f'v_lshlrev_b32 v{r+t}, 16, v{r+t}')
                for t in range(8):
                    a(f'v_mul_f32 v{r+t}, s32, v{r+t}')
                for t in range(4):
                    a(f'v_cvt_pk_bf16_f32 v{64+t}, v{r+2*t}, v{r+2*t+1}')
            else:
                for t in range(4):
                    a(f'v_lshl_or_b32 v{64+t}, v{r+2*t+1}, 16, v{r+2*t}')
            a(f'v_add_u32 v10, {F*1024}, v4')
            a(f'buffer_store_dwordx4 v[64:67], v10, s[28:31], 0 offen')
            a('s_nop 1')
        if wv==0:
            a(f'''
            v_lshlrev_b32 v12, 16, v12
            v_mul_f32 v12, s32, v12
            v_cvt_pk_bf16_f32 v13, v12, v12
            v_and_b32 v14, 0xffff0000, v13
            v_sub_f32 v12, v12, v14
            v_cvt_pk_bf16_f32 v12, v12, v12
            v_and_b32 v12, 0xffff0000, v12
            v_and_b32 v13, 0xffff, v13
            v_or_b32 v13, v13, v12
            v_and_b32 v11, 31, v1
            v_lshlrev_b32 v11, 3, v11
            v_lshl_add_u32 v11, v3, 2, v11
            v_add_u32 v11, {WDO}, v11
            buffer_store_dword v13, v11, s[28:31], 0 offen
            ''')
        if wv==1:
            a(f'''
            v_lshlrev_b32 v12, 16, v12
            v_lshlrev_b32 v11, 2, v1
            v_add_u32 v11, {WXO}, v11
            buffer_store_dword v12, v11, s[28:31], 0 offen
            ''')
        a('s_endpgm')
    a.label('L1_tables')
    a(f'''
    s_load_dwordx2 s[10:11], s[0:1], 0
    s_load_dwordx2 s[12:13], s[0:1], 40
    s_sub_u32 s14, s2, {NCH+1}
    s_lshl_b32 s14, s14, 7
    s_lshr_b32 s15, s3, 1
    s_lshl_b32 s15, s15, 5
    s_add_u32 s14, s14, s15
    s_and_b32 s15, s3, 1
    v_and_b32 v2, 31, v1
    v_lshrrev_b32 v3, 5, v1
    v_add_u32 v4, s14, v2
    v_lshlrev_b32 v5, 4, v3
    v_lshlrev_b32 v6, 4, v1
    s_lshl_b32 s33, s3, 10
    v_add_u32 v6, s33, v6
    s_waitcnt lgkmcnt(0)
    s_mov_b32 s16, s10
    s_or_b32 s17, s11, 0x800000
    s_mov_b32 s18, {N}
    s_mov_b32 s19, 0x20000
    s_mov_b32 s20, s12
    s_mov_b32 s21, s13
    s_mov_b32 s22, {128*128}
    s_mov_b32 s23, 0x20000
    s_mul_i32 s34, s15, {TB-TA}
    s_add_u32 s34, s34, {TA}
    s_add_u32 s24, s8, s34
    s_addc_u32 s25, s9, 0
    s_or_b32 s25, s25, 0x800000
    s_mov_b32 s26, {N}
    s_mov_b32 s27, 0x20000
    s_mov_b32 m0, s33
    v_add_u32 v7, 8192, v6
    buffer_load_dwordx4 v6, s[20:23], 0 offen lds
    s_add_u32 m0, s33, 8192
    s_nop 0
    buffer_load_dwordx4 v7, s[20:23], 0 offen lds
    ''')
    for s_ in range(4):
        a(f'buffer_load_dwordx4 v[{16+4*s_}:{19+4*s_}], v[4:5], s[16:19], 0 idxen offen offset:{32*s_}')
    a(f'''
    v_and_b32 v8, 15, v1
    v_lshrrev_b32 v9, 2, v8
    v_lshl_add_u32 v9, v3, 3, v9
    v_lshlrev_b32 v9, 7, v9
    v_bfe_u32 v10, v1, 4, 1
    v_lshl_add_u32 v9, v10, 5, v9
    v_and_b32 v10, 3, v1
    v_lshl_add_u32 v9, v10, 3, v9
    s_lshl_b32 s34, s15, 13
    v_add_u32 v9, s34, v9
    s_mov_b32 s35, {f32bits(-LOG2E)}
    s_waitcnt vmcnt(0)
    s_barrier
    ''')
    for s_ in range(4):
        for blk in range(2):
            r=32+4*(2*s_+blk)
            a(f'ds_read_b64_tr_b16 v[{r}:{r+1}], v9 offset:{2048*s_+64*blk}')
            a(f'ds_read_b64_tr_b16 v[{r+2}:{r+3}], v9 offset:{2048*s_+64*blk+512}')
        if s_==1: a('s_waitcnt lgkmcnt(0)')
    a('s_waitcnt lgkmcnt(0)')
    for blk in range(2):
        D=f'v[{64+16*blk}:{79+16*blk}]'
        for s_ in range(4):
            C = D if s_>0 else '0'
            r=32+4*(2*s_+blk)
            a(f'v_mfma_f32_32x32x16_bf16 {D}, v[{r}:{r+3}], v[{16+4*s_}:{19+4*s_}], {C}')
    for blk in range(2):
        for i in range(16):
            a(f'v_mul_f32 v{64+16*blk+i}, s35, v{64+16*blk+i}')
    a('''
    s_cmp_eq_u32 s15, 0
    s_cbranch_scc1 L1_tabA
    v_lshlrev_b32 v5, 3, v3
    ''')
    for blk in range(2):
        for q in range(8):
            a(f'v_cvt_pk_bf16_f32 v{32+8*blk+q}, v{64+16*blk+2*q}, v{64+16*blk+2*q+1}')
        for m in range(4):
            a(f'buffer_store_dwordx2 v[{32+8*blk+2*m}:{33+8*blk+2*m}], v[4:5], s[24:27], 0 idxen offen offset:{64*blk+16*m}')
    a('s_endpgm')
    a.label('L1_tabA')
    a('v_lshlrev_b32 v5, 4, v3')
    for r in range(16):
        a(f'v_cvt_pk_bf16_f32 v{32+r}, v{64+r}, v{80+r}')
    for m in range(4):
        a(f'buffer_store_dwordx4 v[{32+4*m}:{35+4*m}], v[4:5], s[24:27], 0 idxen offen offset:{32*m}')
    a('s_endpgm')
    a.label('L1_end')
    a('s_endpgm')
    return a.finalize(), 96, 40, K1_WTOT+64

L_G=0; L_R0=28672; L_RS=43264; L_S=50432; L_RING=66816; L_GTAB=148736; L_WTOT=156928; L_PD=157184; L_END=158208
SLOT=5120
vI=16; vW3=24; vW6=32; vS1=40; vS2=41; vD2=64; vD1=(96,128); vE=160; vX=192; vXE=208; vX6=212; vSF=216; vONE=224
vHA=228; vEAr=232; vX6r=233; vC1=234; vSTa=235; vC2=236; vMK2=237; vEAc=238; vOne=239; vHP=240
vSTb=15; vCD=14
vRSa=248; vR0a=249; vR0e=250; vGe=251; vR0=252; vG=253; vA1=254; vA2=255; vEAi=10; vEAo=11
vZero=vONE+1
vTM=12
sH=4; sEA=8; sOF=12; sEN=16; sPOS=20; sWF=24; sO0=28; sO1=32; sHD=36; sSEL=100; sTA=40
sWS=44
sW0=46; sW1=47; sV=3; sG=101; sCNT=48; sBASE=49; sNT=50; sT=51; sRB=52; sNODE0=53; sMK=89

ABL=set(x[6:] for x in sys.argv if x.startswith('--abl=') )
OPT=dict(x[6:].split(':') for x in sys.argv if x.startswith('--opt='))
def optl(k,d): return [int(v.replace('n','-')) for v in OPT[k].split(',')] if k in OPT else d
TRIMK='trim'
NH_ = 0 if 'noh' in ABL else N
NE_ = 0 if 'noea' in ABL else E*32
def gen_k2():
    a=Asm()
    def st(i): stamp(a,i,vTM,98)
    a.label('egnn_main_kernel')
    a(f'''
    s_cmp_ge_u32 s2, {NBK}
    s_cbranch_scc1 L2_end
    ''')
    if DEBUG_TM: a(f'v_mov_b32 v{vTM}, 0')
    st(0)
    a(f'''
    s_load_dwordx2 s[44:45], s[0:1], 80
    s_load_dwordx4 s[36:39], s[0:1], 0
    s_load_dwordx2 s[40:41], s[0:1], 16
    s_load_dwordx2 s[42:43], s[0:1], 64
    v_and_b32 v1, 63, v0
    v_lshrrev_b32 v2, 6, v0
    v_lshrrev_b32 v3, 1, v0
    v_readfirstlane_b32 s{sV}, v2
    v_and_b32 v9, 1, v0
    s_lshl_b32 s54, s2, 4
    s_mov_b32 s55, {ROW}
    v_mov_b32 v96, s54
    v_mad_u32_u24 v96, v3, s55, v96
    s_mov_b32 s{sOF+2}, {NCH*ROW}
    s_mov_b32 s{sOF+3}, 0x20000
    s_waitcnt lgkmcnt(0)
    s_add_u32 s{sOF}, s44, {OFFS}
    s_addc_u32 s{sOF+1}, s45, 0
    buffer_load_dwordx4 v[4:7], v96, s[{sOF}:{sOF+3}], 0 offen
    buffer_load_ushort v8, v96, s[{sOF}:{sOF+3}], 0 offen offset:16
    ''')
    st(16)
    a(f'''
    v_and_b32 v97, 31, v1
    v_lshrrev_b32 v98, 5, v1
    s_mul_i32 s{sRB}, s{sV}, {2*SLOT}
    s_add_u32 s{sRB}, s{sRB}, {L_RING}
    v_bfe_u32 v99, v97, 1, 3
    v_lshlrev_b32 v100, 7, v97
    v_add_u32 v100, s{sRB}, v100
    ''')
    for s in range(4):
        a(f'''
        v_add_u32 v101, {2*s}, v98
        v_xor_b32 v101, v101, v99
        v_lshl_add_u32 v{vHA+s}, v101, 4, v100
        ''')
    a(f'''
    v_lshrrev_b32 v101, 4, v97
    v_xor_b32 v101, v101, v98
    v_lshlrev_b32 v101, 4, v101
    v_lshl_add_u32 v101, v97, 5, v101
    v_add_u32 v101, s{sRB}, v101
    v_add_u32 v{vEAr}, 4096, v101
    s_lshl_b32 s54, s{sV}, 11
    s_add_u32 s54, s54, {L_S}
    v_lshlrev_b32 v101, 6, v97
    v_add_u32 v101, s54, v101
    v_bfe_u32 v102, v97, 2, 2
    v_xor_b32 v103, v98, v102
    v_lshl_add_u32 v{vX6r}, v103, 4, v101
    v_lshlrev_b32 v103, 1, v98
    v_xor_b32 v104, v103, v102
    v_lshl_add_u32 v{vC1}, v104, 4, v101
    v_add_u32 v103, 1, v103
    v_xor_b32 v104, v103, v102
    v_lshl_add_u32 v104, v104, 4, v101
    v_add_u32 v{vCD}, 12, v104
    v_cmp_gt_u32 vcc, 32, v1
    v_mov_b32 v103, 0xffff0000
    v_mov_b32 v104, -1
    v_cndmask_b32 v{vMK2}, v104, v103, vcc
    v_mov_b32 v{vOne}, 0x3f80
    v_mov_b32 v{vONE+1}, 0
    v_mov_b32 v{vONE+2}, 0
    v_mov_b32 v{vONE+3}, 0
    v_cndmask_b32 v{vONE}, 0, v{vOne}, vcc
    v_lshlrev_b32 v101, 3, v98
    v_sub_u32 v101, v97, v101
    v_mov_b32 v102, 0x3f800000
    ''')
    for sp in range(2):
        for q in range(4):
            a(f'''
            v_cmp_eq_u32 vcc, {16*sp+2*q}, v101
            v_cmp_eq_u32 s[56:57], {16*sp+2*q+1}, v101
            s_nop 0
            v_cndmask_b32 v103, 0, v{vOne}, vcc
            v_cndmask_b32 v104, 0, v102, s[56:57]
            v_or_b32 v{vI+4*sp+q}, v103, v104
            ''')
    a(f'''
    v_and_b32 v101, 15, v1
    v_lshrrev_b32 v101, 2, v101
    v_lshl_add_u32 v101, v98, 2, v101
    v_lshlrev_b32 v101, 6, v101
    v_and_b32 v102, 1, v1
    v_lshl_add_u32 v101, v102, 3, v101
    v_add_u32 v101, s54, v101
    v_bfe_u32 v102, v1, 4, 1
    v_bfe_u32 v103, v1, 1, 1
    v_lshl_add_u32 v102, v102, 1, v103
    v_xor_b32 v103, v102, v98
    v_lshl_add_u32 v{vSTa}, v103, 4, v101
    v_add_u32 v103, 2, v98
    v_xor_b32 v103, v102, v103
    v_lshl_add_u32 v103, v103, 4, v101
    v_add_u32 v{vSTb}, 512, v103
    v_and_b32 v101, 1, v1
    v_xor_b32 v101, v101, v98
    v_lshlrev_b32 v{vEAc}, 4, v101
    v_and_b32 v101, 7, v1
    v_lshrrev_b32 v102, 4, v1
    v_xor_b32 v103, v101, v102
    v_lshlrev_b32 v{vHP+1}, 4, v103
    v_lshlrev_b32 v{vHP+5}, 4, v103
    v_add_u32 v102, 4, v102
    v_xor_b32 v103, v101, v102
    v_lshlrev_b32 v{vHP+3}, 4, v103
    v_lshlrev_b32 v{vHP+7}, 4, v103
    s_mov_b32 s{sW0}, 0
    s_mov_b32 s{sW1}, {NCH}
    s_mov_b32 s{sMK}, 0xffffffe0
    s_mov_b32 s63, 0
    s_mov_b32 s{sSEL}, 0x01000100
    ''')
    for i in range(32):
        a(f'v_mov_b32 v{vD2+i}, 0')
    st(17)
    a(f'''
    s_add_u32 s{sWF}, s44, {WF}
    s_addc_u32 s{sWF+1}, s45, 0
    s_mov_b32 s{sWF+2}, {WFSZ}
    s_mov_b32 s{sWF+3}, 0x20000
    s_mov_b32 s{sH}, s36
    s_or_b32 s{sH+1}, s37, 0x800000
    s_mov_b32 s{sH+2}, {N}
    s_mov_b32 s{sH+3}, 0x20000
    s_mov_b32 s{sPOS}, s38
    s_mov_b32 s{sPOS+1}, s39
    s_mov_b32 s{sPOS+2}, {N*6}
    s_mov_b32 s{sPOS+3}, 0x20000
    s_mov_b32 s{sEA}, s40
    s_mov_b32 s{sEA+1}, s41
    s_mov_b32 s{sEA+2}, {E*32}
    s_mov_b32 s{sEA+3}, 0x20000
    s_add_u32 s{sEN}, s44, {ENT}
    s_addc_u32 s{sEN+1}, s45, 0
    s_mov_b32 s{sEN+2}, {NCH*CH*4}
    s_mov_b32 s{sEN+3}, 0x20000
    s_mov_b32 s{sO0}, s42
    s_or_b32 s{sO0+1}, s43, 0x800000
    s_mov_b32 s{sO0+2}, {N}
    s_mov_b32 s{sO0+3}, 0x20000
    s_add_u32 s{sO1}, s42, {N*128}
    s_addc_u32 s{sO1+1}, s43, 0
    s_mov_b32 s{sO1+2}, {N*6}
    s_mov_b32 s{sO1+3}, 0x20000
    s_add_u32 s{sHD}, s44, {TB}
    s_addc_u32 s{sHD+1}, s45, 0
    s_or_b32 s{sHD+1}, s{sHD+1}, 0x800000
    s_mov_b32 s{sHD+2}, {N}
    s_mov_b32 s{sHD+3}, 0x20000
    s_add_u32 s{sTA}, s44, {TA}
    s_addc_u32 s{sTA+1}, s45, 0
    s_or_b32 s{sTA+1}, s{sTA+1}, 0x800000
    s_mov_b32 s{sTA+2}, {N}
    s_mov_b32 s{sTA+3}, 0x20000
    ''')
    st(18)
    st(1)
    a.label('L2_first')
    a('s_waitcnt vmcnt(0)')
    st(19)
    a('s_branch L2_counts')
    a.label('L2_batch')
    a('s_barrier')
    a.label('L2_counts')
    a(f"""
    v_alignbit_b32 v100, v5, v4, 16
    v_alignbit_b32 v101, v6, v5, 16
    v_alignbit_b32 v102, v7, v6, 16
    v_alignbit_b32 v103, v8, v7, 16
    v_and_b32 v105, 0xffff, v4
    v_sub_u32 v104, v8, v105
    s_sub_u32 s54, s{sW1}, s{sW0}
    v_subrev_u32 v106, s{sW0}, v3
    v_cmp_gt_u32 vcc, s54, v106
    s_mov_b32 s55, {CH*4}
    v_lshlrev_b32 v107, 2, v105
    v_lshl_add_u32 v107, v9, 4, v107
    v_cndmask_b32 v104, 0, v104, vcc
    v_lshlrev_b32 v109, 2, v9
    v_sub_u32 v109, v104, v109
    v_max_i32 v109, 0, v109
    v_mad_u32_u24 v107, v3, s55, v107
    """)
    for i in range(4):
        a(f'v_cmp_lt_u32 s[{90+2*i}:{91+2*i}], {8*i}, v109')
    for i in range(4):
        a(f's_mov_b64 exec, s[{90+2*i}:{91+2*i}]')
        a(f's_cbranch_execz L2_e{i}')
        a(f'buffer_load_dwordx4 v[{192+4*i}:{195+4*i}], v107, s[{sEN}:{sEN+3}], 0 offen offset:{32*i}')
        a.label(f'L2_e{i}')
    a('s_mov_b64 exec, -1')
    st(2)
    a(f"""
    v_pk_sub_u16 v100, v100, v4
    v_pk_sub_u16 v101, v101, v5
    v_pk_sub_u16 v102, v102, v6
    v_pk_sub_u16 v103, v103, v7
    v_cmp_eq_u32 s[56:57], 0, v9
    """)
    for q in range(4):
        a(f'v_cndmask_b32 v{100+q}, 0, v{100+q}, vcc')
    for q in range(5):
        a(f'v_cndmask_b32 v{112+q}, 0, v{100+q}, s[56:57]')
    for sh in (1,2,4,8):
        for q in range(5):
            a(f'v_add_u32_dpp v{112+q}, v{112+q}, v{112+q} row_shr:{sh} row_mask:0xf bank_mask:0xf')
    for q in range(5):
        a(f'v_add_u32_dpp v{112+q}, v{112+q}, v{112+q} row_bcast:15 row_mask:0xa bank_mask:0xf')
    for q in range(5):
        a(f'v_add_u32_dpp v{112+q}, v{112+q}, v{112+q} row_bcast:31 row_mask:0xc bank_mask:0xf')
    st(21)
    a(f"""
    s_lshl_b32 s54, s{sV}, 5
    s_add_u32 s54, s54, {L_WTOT}
    v_mov_b32 v117, s54
    s_mov_b32 s56, 0
    s_brev_b32 s57, 1
    s_mov_b64 exec, s[56:57]
    ds_write_b128 v117, v[112:115]
    ds_write_b32 v117, v116 offset:16
    s_mov_b64 exec, -1
    v_and_b32 v118, 7, v1
    v_lshlrev_b32 v118, 5, v118
    v_add_u32 v118, {L_WTOT}, v118
    s_waitcnt lgkmcnt(0)
    s_barrier
    ds_read_b128 v[120:123], v118
    ds_read_b32 v124, v118 offset:16
    """)
    st(3)
    a('s_waitcnt lgkmcnt(0)')
    for sh in (1,2,4):
        for q in range(5):
            a(f'v_add_u32_dpp v{120+q}, v{120+q}, v{120+q} row_shr:{sh} row_mask:0xf bank_mask:0xf')
    for q in range(5):
        a(f'v_readlane_b32 s{58+q}, v{120+q}, 7')
    a(f's_sub_u32 s54, s{sV}, 1')
    a(f's_max_i32 s54, s54, 0')
    for q in range(4):
        a(f'v_readlane_b32 s{64+q}, v{120+q}, s54')
    a(f's_cmp_eq_u32 s{sV}, 0')
    for q in range(4):
        a(f's_cselect_b32 s{64+q}, 0, s{64+q}')
    for q in range(4):
        a(f's_and_b32 s{68+2*q}, s{58+q}, 0xffff')
        a(f's_lshr_b32 s{69+2*q}, s{58+q}, 16')
    a('s_mov_b32 s84, 0')
    for g in range(8):
        a(f"""
        s_mov_b32 s{76+g}, s84
        s_add_u32 s54, s{68+g}, 31
        s_andn2_b32 s54, s54, 31
        s_add_u32 s84, s84, s54
        """)
    a(f"""
    s_max_u32 s54, s84, s62
    s_cmp_le_u32 s54, {CAP}
    s_cbranch_scc1 L2_fits
    s_add_u32 s{sW1}, s{sW0}, 1
    s_waitcnt vmcnt(0) lgkmcnt(0)
    s_branch L2_batch
    """)
    a.label('L2_fits')
    a(f"""
    s_cmp_eq_u32 s63, 1
    s_cbranch_scc1 L2_pidone
    """)
    if 'nopi' in ABL:
        a(f's_mov_b32 s{sG}, s{sV}')
    else:
        for g in range(8):
            a(f's_lshl_b32 s54, s{68+g}, 3')
            a(f's_add_u32 s{90+g}, s54, {7-g}')
            a(f'v_writelane_b32 v126, s{90+g}, {g}')
        a('v_mov_b32 v127, 0')
        for h in range(2):
            for k in range(4):
                pr=(56,58,54,64)[k] if False else None
            for k in range(4):
                a(f'v_cmp_gt_u32 s[{(54,56,58,60)[k]}:{(54,56,58,60)[k]+1}], s{90+4*h+k}, v126')
            for k in range(4):
                a(f'v_addc_co_u32 v127, vcc, 0, v127, s[{(54,56,58,60)[k]}:{(54,56,58,60)[k]+1}]')
        a(f"""
        s_sub_u32 s54, 11, s{sV}
        s_cmp_lt_u32 s{sV}, 4
        s_cselect_b32 s54, s{sV}, s54
        v_cmp_eq_u32 vcc, s54, v127
        s_nop 3
        s_and_b32 s54, vcc_lo, 0xff
        s_ff1_i32_b32 s{sG}, s54
        """)
    a(f"""
    s_mul_i32 s{sNODE0}, s2, {BN}
    s_add_u32 s{sNODE0}, s{sNODE0}, s{sG}
    """)
    a.label('L2_pidone')
    a(f's_mov_b32 s{sCNT}, s68')
    a(f's_mov_b32 s{sBASE}, s76')
    for g in range(1,8):
        a(f"""
        s_cmp_eq_u32 s{sG}, {g}
        s_cselect_b32 s{sCNT}, s{68+g}, s{sCNT}
        s_cselect_b32 s{sBASE}, s{76+g}, s{sBASE}
        """)
    a(f"""
    s_add_u32 s{sNT}, s{sCNT}, 31
    s_lshr_b32 s{sNT}, s{sNT}, 5
    """)
    for q in range(4):
        a(f's_pack_ll_b32_b16 s{85+q}, s{76+2*q}, s{77+2*q}')
        a(f's_add_u32 s{85+q}, s{85+q}, s{64+q}')
        a(f's_add_u32 s{85+q}, s{85+q}, {CH | (CH<<16)}')
    a(f"""
    v_lshl_or_b32 v105, v105, 16, v105
    v_mul_u32_u24 v106, 0x100010, v9
    """)
    for q in range(4):
        a(f"""
        v_sub_u32 v{112+q}, v{112+q}, v{100+q}
        v_add_u32 v{112+q}, s{85+q}, v{112+q}
        v_sub_u32 v{120+q}, v{4+q}, v105
        v_sub_u32 v{112+q}, v{112+q}, v{120+q}
        v_lshl_add_u32 v{112+q}, v{112+q}, 2, v106
        """)
    a(f"""
    v_lshlrev_b32 v108, 4, v0
    v_add_u32 v108, {L_GTAB}, v108
    ds_write_b128 v108, v[112:115]
    v_mov_b32 v104, v109
    s_mov_b32 s54, {CH*32}
    v_mul_lo_u32 v110, v3, s54
    v_mov_b32 v111, {4*CH+4*CAP}
    v_lshlrev_b32 v96, 4, v1
    s_lshl_b32 s58, s{sV}, 10
    v_add_u32 v96, s58, v96
    s_waitcnt vmcnt(0)
    """)
    st(4)
    for r in range(10):
        a(f"""
        s_add_u32 m0, s58, {L_RING+8192*r}
        v_add_u32 v97, {8192*r}, v96
        buffer_load_dwordx4 v97, s[{sPOS}:{sPOS+3}], 0 offen lds
        """)
    st(20)
    def quad(qreg, i, dyn=False):
        for u in range(4):
            a(f'v_lshrrev_b32 v{140+u}, 29, v{qreg+u}')
            a(f'v_lshl_add_u32 v{140+u}, v{140+u}, 1, v108')
            a(f'ds_read_u16 v{144+u}, v{140+u}')
        for u in range(4):
            if dyn: a(f'v_cmp_lt_u32 s[{90+2*u}:{91+2*u}], {u}, v104')
            else:   a(f'v_cmp_lt_u32 s[{90+2*u}:{91+2*u}], {8*i+u}, v104')
        a('s_waitcnt lgkmcnt(0)')
        for u in range(4):
            if dyn: a(f'v_add_u32 v{144+u}, v{144+u}, v149')
            a(f'v_cndmask_b32 v{144+u}, v111, v{144+u}, s[{90+2*u}:{91+2*u}]')
        ko = 0 if dyn else 8*i
        for u in range(4):
            a(f'ds_write_b32 v{144+u}, v{qreg+u} offset:{L_R0-4*CH+4*(ko+u)}')
            a(f'ds_write_b32 v{144+u}, v110 offset:{L_S-4*CH+4*(ko+u)}')
    for i in range(4):
        quad(192+4*i, i)
        a(f'v_cmp_lt_u32 vcc, {8*(i+1)}, v104')
        a('s_cbranch_vccz L2_scat_done')
    a(f'''
    v_subrev_u32 v104, 32, v104
    v_cmp_gt_i32 vcc, 0, v104
    v_mov_b32 v149, 128
    v_add_u32 v107, 128, v107
    v_cndmask_b32 v104, v104, 0, vcc
    ''')
    a.label('L2_scat_loop')
    a(f'buffer_load_dwordx4 v[192:195], v107, s[{sEN}:{sEN+3}], 0 offen')
    a('s_waitcnt vmcnt(0)')
    quad(192, 0, dyn=True)
    a(f'''
    v_subrev_u32 v104, 8, v104
    v_add_u32 v149, 32, v149
    v_add_u32 v107, 32, v107
    v_cmp_gt_i32 vcc, 0, v104
    s_nop 1
    v_cndmask_b32 v104, v104, 0, vcc
    v_cmp_lt_u32 vcc, 0, v104
    s_cbranch_vccnz L2_scat_loop
    ''')
    a.label('L2_scat_done')
    st(5)
    a('''
    s_waitcnt vmcnt(0) lgkmcnt(0)
    s_barrier
    ''')
    st(6)
    a(f"""
    v_lshrrev_b32 v100, 2, v1
    v_lshlrev_b32 v100, 3, v100
    v_add_u32 v100, s{sNODE0}, v100
    v_mul_u32_u24 v100, 6, v100
    v_and_b32 v102, 3, v1
    v_lshl_add_u32 v100, v102, 1, v100
    v_add_u32 v100, {L_RING}, v100
    ds_read_u16 v101, v100
    s_cmp_eq_u32 s63, 1
    s_cbranch_scc1 L2_noC
    v_lshlrev_b32 v96, 4, v1
    """)
    for f in range(2):
        a(f'buffer_load_dwordx4 v[{vW3+4*f}:{vW3+4*f+3}], v96, s[{sWF}:{sWF+3}], 0 offen offset:{(F_W3+f)*1024}')
    a(f"""
    v_lshrrev_b32 v121, 5, v1
    v_and_b32 v120, 31, v1
    v_lshlrev_b32 v119, 2, v120
    v_lshlrev_b32 v122, 5, v121
    v_mov_b32 v123, -1
    """)
    for q in range(4):
        a(f"""
        v_add_u32 v124, {8*q}, v122
        v_add_u32 v125, s{sG}, v124
        v_add_u32 v124, s{sNODE0}, v124
        v_cmp_gt_u32 vcc, {BN}, v125
        v_mov_b32 v{129+2*q}, v119
        s_nop 0
        v_cndmask_b32 v{128+2*q}, v123, v124, vcc
        """)
    for q in range(4):
        a(f'buffer_load_dword v{40+q}, v[{128+2*q}:{129+2*q}], s[{sTA}:{sTA+3}], 0 idxen offen')
    a(f"""
    v_lshlrev_b32 v120, 3, v120
    v_add_u32 v120, {WDO}, v120
    v_cmp_gt_u32 vcc, 32, v1
    v_mov_b32 v123, 0x7fffff00
    s_nop 0
    v_cndmask_b32 v120, v120, v123, vcc
    buffer_load_dwordx2 v[44:45], v120, s[{sWF}:{sWF+3}], 0 offen
    """)
    a.label('L2_noC')
    a(f"""
    s_lshl_b32 s54, s{sV}, 7
    s_add_u32 s54, s54, {L_PD}
    v_lshlrev_b32 v97, 2, v1
    v_add_u32 v97, s54, v97
    s_waitcnt lgkmcnt(0)
    v_lshlrev_b32 v101, 16, v101
    s_mov_b32 exec_hi, 0
    ds_write_b32 v97, v101
    s_mov_b64 exec, -1
    """)
    a(f'''
    s_lshl_b32 s54, s{sV}, 7
    s_add_u32 s54, s54, {L_PD}
    v_mov_b32 v98, s54
    v_mov_b32 v99, {L_RING}
    v_add_u32 v96, s{sBASE}, v1
    v_mov_b32 v97, v1
    s_mov_b32 s{sT}, 0
    s_mov_b32 s55, 0xffff0000
    s_movk_i32 s56, 0x7fff
    s_mov_b32 s{sHD+2}, {N}
    s_mov_b32 s{sEA+2}, {E*32}
    ''')
    a(f'''
    s_lshl_b32 s54, s{sNT}, 5
    s_sub_u32 s54, s54, 32
    v_add_u32 v100, s54, v1
    v_cmp_le_u32 s[58:59], s{sCNT}, v100
    v_cmp_gt_u32 vcc, 32, v1
    s_and_b64 vcc, vcc, s[58:59]
    s_cmp_eq_u32 s{sNT}, 0
    s_cbranch_scc1 L2_nodummy
    s_and_saveexec_b64 s[58:59], vcc
    s_cbranch_execz L2_dummy_restore
    v_add_u32 v100, s{sBASE}, v100
    v_lshlrev_b32 v101, 2, v100
    v_mov_b32 v102, 28
    ds_write_b32 v101, v102 offset:{L_R0}
    v_lshlrev_b32 v101, 1, v100
    v_mov_b32 v102, 0
    v_mov_b32 v103, 0
    ds_write_b16 v101, v102 offset:{L_RS}
    v_lshlrev_b32 v101, 3, v100
    ds_write_b64 v101, v[102:103] offset:{L_G}
    ''')
    a.label('L2_dummy_restore')
    a('s_mov_b64 exec, s[58:59]')
    a.label('L2_nodummy')
    NI=4
    a.label('L2_geo_loop')
    a(f'''
    s_cmp_ge_u32 s{sT}, s{sCNT}
    s_cbranch_scc1 L2_geo_done
    ''')
    def R(it,k): return 112+20*it+k
    for it in range(NI):
        a(f'''
        v_add_u32 v{R(it,0)}, {64*it}, v96
        v_lshlrev_b32 v{R(it,0)}, 2, v{R(it,0)}
        ds_read_b32 v{R(it,1)}, v{R(it,0)} offset:{L_R0}
        ds_read_b32 v{R(it,2)}, v{R(it,0)} offset:{L_S}
        ''')
    for it in range(NI):
        a(f'''
        v_add_u32 v{R(it,16)}, {64*it}, v97
        v_cmp_gt_u32 s[{90+2*it}:{91+2*it}], s{sCNT}, v{R(it,16)}
        ''')
    for it in range(NI):
        e=R(it,1); wb=R(it,2)
        a(f's_waitcnt lgkmcnt({2*(NI-1-it)+2*it})')
        a(f'''
        v_bfe_u32 v{R(it,3)}, v{e}, 15, 14
        v_and_b32 v{R(it,4)}, 7, v{e}
        v_mad_u32_u24 v{R(it,5)}, v{R(it,3)}, 6, v99
        v_lshl_add_u32 v{R(it,7)}, v{R(it,4)}, 4, v98
        v_and_b32 v{R(it,5)}, -4, v{R(it,5)}
        ds_read_b96 v[{R(it,8)}:{R(it,10)}], v{R(it,7)}
        ds_read2_b32 v[{R(it,12)}:{R(it,13)}], v{R(it,5)} offset1:1
        v_and_b32 v{R(it,5)}, s56, v{e}
        v_lshl_add_u32 v{wb}, v{R(it,5)}, 2, v{wb}
        v_lshlrev_b32 v{R(it,6)}, 4, v{R(it,3)}
        ''')
    if 'nopf' not in ABL:
        a(f'''
        s_cmp_lg_u32 s{sT}, 0
        s_cbranch_scc1 L2_nopf
        ''')
        a(f'''
        v_and_b32 v48, s{sMK}, v{R(0,2)}
        v_mov_b32 v51, 0
        v_mov_b32 v50, v{R(0,3)}
        s_mov_b32 exec_hi, 0
        buffer_load_dword v48, v48, s[{sEA}:{sEA+3}], 0 offen
        buffer_load_dword v49, v[50:51], s[{sHD}:{sHD+3}], 0 idxen offen
        s_mov_b64 exec, -1
        ''')
        a.label('L2_nopf')
    for it in range(NI):
        pd=R(it,8); ps=R(it,12); sh=R(it,6); t0=R(it,4); t1=R(it,5); t2=R(it,7); o=R(it,14); t3=R(it,17)
        a(f's_waitcnt lgkmcnt({2*(NI-1-it)+3*it})')
        a(f'''
        v_alignbit_b32 v{t0}, v{ps+1}, v{ps}, v{sh}
        v_lshrrev_b32 v{t2}, v{sh}, v{ps+1}
        v_lshlrev_b32 v{t1}, 16, v{t0}
        v_and_b32 v{t0}, s55, v{t0}
        v_lshlrev_b32 v{t2}, 16, v{t2}
        v_sub_f32 v{t1}, v{pd}, v{t1}
        v_sub_f32 v{t0}, v{pd+1}, v{t0}
        v_sub_f32 v{t2}, v{pd+2}, v{t2}
        v_mul_f32 v{t3}, v{t1}, v{t1}
        v_cvt_pk_bf16_f32 v{o+1}, v{t0}, v{t2}
        v_fmac_f32 v{t3}, v{t0}, v{t0}
        v_fmac_f32 v{t3}, v{t2}, v{t2}
        v_lshrrev_b32 v{t0}, 1, v{R(it,0)}
        v_cvt_pk_bf16_f32 v{o}, v{t3}, v{t1}
        v_lshlrev_b32 v{t2}, 1, v{R(it,0)}
        s_mov_b64 exec, s[{90+2*it}:{91+2*it}]
        ds_write_b32 v{R(it,0)}, v{R(it,2)} offset:{L_R0}
        ds_write_b16 v{t0}, v{R(it,3)} offset:{L_RS}
        ds_write_b64 v{t2}, v[{o}:{o+1}] offset:{L_G}
        s_mov_b64 exec, -1
        ''')
    a(f'''
    v_add_u32 v96, {64*NI}, v96
    v_add_u32 v97, {64*NI}, v97
    s_add_u32 s{sT}, s{sT}, {64*NI}
    s_branch L2_geo_loop
    ''')
    a.label('L2_geo_done')
    a(f'''
    s_cmp_eq_u32 s63, 1
    s_cbranch_scc1 L2_w6done
    s_mov_b32 s63, 1
    s_cmp_eq_u32 s{sCNT}, 0
    s_cbranch_scc1 L2_w6w0
    s_waitcnt vmcnt({0 if 'nopf' in ABL else 2})
    s_branch L2_w6w1
    ''')
    a.label('L2_w6w0')
    a('s_waitcnt vmcnt(0)')
    a.label('L2_w6w1')
    a(f'''
    ''')
    for q in range(4):
        a(f'v_and_b32 v{vW6+q}, 0xffff, v{40+q}')
        a(f'v_lshrrev_b32 v{vW6+4+q}, 16, v{40+q}')
    a(f'''
    v_or_b32 v{vW6+3}, v{vW6+3}, v44
    v_or_b32 v{vW6+7}, v{vW6+7}, v45
    ''')
    a.label('L2_w6done')
    a(f'''
    s_waitcnt lgkmcnt(0)
    s_barrier
    ''')
    st(7)
    a(f'''
    s_lshl_b32 s54, s{sV}, 11
    s_add_u32 s54, s54, {L_S}
    v_lshlrev_b32 v96, 4, v1
    v_add_u32 v96, s54, v96
    v_mov_b32 v100, 0
    v_mov_b32 v101, 0
    v_mov_b32 v102, 0
    v_mov_b32 v103, 0
    ds_write_b128 v96, v[100:103]
    ds_write_b128 v96, v[100:103] offset:1024
    v_lshrrev_b32 v97, 3, v1
    v_add_u32 v97, s{sBASE}, v97
    v_lshlrev_b32 v97, 1, v97
    v_add_u32 v{vRSa}, {L_RS}, v97
    v_lshrrev_b32 v97, 1, v1
    v_add_u32 v97, s{sBASE}, v97
    v_lshlrev_b32 v97, 2, v97
    v_add_u32 v{vR0a}, {L_R0}, v97
    v_and_b32 v97, 31, v1
    v_add_u32 v97, s{sBASE}, v97
    v_lshlrev_b32 v98, 2, v97
    v_add_u32 v{vR0e}, {L_R0}, v98
    v_lshrrev_b32 v98, 5, v1
    v_lshlrev_b32 v98, 2, v98
    v_lshl_add_u32 v98, v97, 3, v98
    v_add_u32 v{vGe}, {L_G}, v98
    s_mov_b32 s{sT}, 0
    ''')
    if 'lone' in ABL:
        a(f's_cmp_ge_u32 s{sV}, 4\ns_cselect_b32 s{sNT}, 0, s{sNT}')
    a(f'''
    s_cmp_eq_u32 s{sNT}, 0
    s_cbranch_scc1 L2_notiles
    ''')
    def idx_reads(toff):
        return [f'ds_read_u16 v{vHP+2*i}, v{vRSa} offset:{64*toff+16*i}' for i in range(4)] + \
               [f'ds_read_b32 v{vEAi}, v{vR0a} offset:{128*toff}']
    def rec_reads(toff):
        return [f'ds_read_b32 v{vR0}, v{vR0e} offset:{128*toff}', f'ds_read_b32 v{vG}, v{vGe} offset:{256*toff}']
    def srd_select(delta):
        return [f's_add_u32 s54, s{sT}, {delta}\ns_cmp_lt_u32 s54, s{sNT}\ns_cselect_b32 s{sHD+2}, {NH_}, 0\ns_cselect_b32 s{sEA+2}, {NE_}, 0']
    def dma2(slot):
        r=[(f'v_and_or_b32 v{vEAo}, v{vEAi}, s{sMK}, v{vEAc}\ns_add_u32 m0, s{sRB}, {slot*SLOT+4096}', f'buffer_load_dwordx4 v{vEAo}, s[{sEA}:{sEA+3}], 0 offen lds')]
        for i in range(4):
            r.append((f's_add_u32 m0, s{sRB}, {slot*SLOT+1024*i}', f'buffer_load_dwordx4 v[{vHP+2*i}:{vHP+2*i+1}], s[{sHD}:{sHD+3}], 0 idxen offen lds'))
        return r
    def dma(slot):
        return [x+'\n'+y for x,y in dma2(slot)]
    def x_reads(slot):
        return [f'ds_read_b128 v[{vX+4*s}:{vX+4*s+3}], v{vHA+s} offset:{slot*SLOT}' for s in range(4)] + \
               [f'ds_read_b128 v[{vXE}:{vXE+3}], v{vEAr} offset:{slot*SLOT}']
    def s_addr(): return [f'v_bitop3_b32 v{vA1}, v{vR0}, 28, v{vC1} bitop3:0x6a', f'v_bfi_b32 v{vS1}, v{vMK2}, v{vG}, v{vOne}', f'v_perm_b32 v{vS2}, v{vG}, v{vG}, s{sSEL}']
    def s_writes(): return [f'ds_write_b32 v{vA1}, v{vS1}', f'ds_write_b32 v{vCD}, v{vS2}']
    def x6_read(): return [f'ds_read_b128 v[{vX6}:{vX6+3}], v{vX6r}']
    def sf_reads():
        r=[]
        for s2 in range(2):
            r.append(f'ds_read_b64_tr_b16 v[{vSF+4*s2}:{vSF+4*s2+1}], v{vSTa} offset:{1024*s2}')
            r.append(f'ds_read_b64_tr_b16 v[{vSF+4*s2+2}:{vSF+4*s2+3}], v{vSTb} offset:{1024*s2}')
        return r
    def s_restore(): return [f'ds_write_b32 v{vA1}, v{vZero}']
    def mfma1(dst):
        r=[]
        for blk in range(2):
            D=f'v[{dst+16*blk}:{dst+16*blk+15}]'
            for sp in range(2):
                C = D if sp>0 else '0'
                s_=2*blk+sp
                r.append(f'v_mfma_f32_32x32x16_bf16 {D}, v[{vX+4*s_}:{vX+4*s_+3}], v[{vI+4*sp}:{vI+4*sp+3}], {C}')
            r.append(f'v_mfma_f32_32x32x16_bf16 {D}, v[{vXE}:{vXE+3}], v[{vW3+4*blk}:{vW3+4*blk+3}], {D}')
            r.append(f'v_mfma_f32_32x32x16_bf16 {D}, v[{vX6}:{vX6+3}], v[{vW6+4*blk}:{vW6+4*blk+3}], {D}')
        return r
    ONE=f'v[{vONE}:{vONE+3}]'
    def plus1(blk):
        Eb=f'v[{vE+16*blk}:{vE+16*blk+15}]'
        return f'v_mfma_f32_32x32x16_bf16 {Eb}, {ONE}, {ONE}, {Eb}'
    def mfma2(cur,blk,s2):
        D=f'v[{vD2+16*blk}:{vD2+16*blk+15}]'; m=cur+8*blk+4*s2
        return f'v_mfma_f32_32x32x16_bf16 {D}, v[{m}:{m+3}], v[{vSF+4*s2}:{vSF+4*s2+3}], {D}'
    def keep(x):
        if 'nomfma' in ABL and x.startswith('v_mfma'): return False
        if 'nolds' in ABL and x.startswith('ds_'): return False
        if 'nodma' in ABL and 'buffer_load' in x: return False
        if 'notrans' in ABL and x.startswith(('v_exp','v_rcp')): return False
        if 'novalu' in ABL and x.startswith(('v_exp','v_rcp','v_mul','v_cvt','v_pk_mul')): return False
        return True
    def emit(backbone, inserts):
        backbone=[x if keep(x) else 's_nop 0' for x in backbone]
        inserts={k:[x for x in v if keep(x)] for k,v in inserts.items()}
        for k_ in sorted(k for k in inserts if k<0):
            for s_ in inserts[k_]: a(s_)
        for i,ins in enumerate(backbone):
            a(ins)
            for s_ in inserts.get(i,[]): a(s_)
    nlab=[0]
    PK='pk' in ABL
    DMAPOS=optl('dma',[37,48,60,70,82] if PK else [41,52,63,76,92])
    M1POS=optl('m1',[37,40,43,46,49,52,55,58] if PK else [42,46,50,54,58,62,68,74])
    SFPOS=optl('sf',[0,2,4,6]); RSPOS=optl('rs',[8])[0]; SAPOS=optl('sa',[9,10,11]); SWPOS=optl('sw',[12,13]); X6POS=optl('x6',[14])[0]
    VMPOS=optl('vm',[16])[0]; XPOS=optl('x',[16,18,20,22,24]); RECPOS=optl('rec',[26,27]); IDXPOS=optl('idx',[28,29,30,31,32])
    LGPOS=optl('lg',[36] if PK else [40])[0]; M2POS=optl('m2',[85,89,93,95] if PK else [89,95,111,111]); P1POS=optl('p1',[17,33])
    def body(p, steady, extra_first=None):
        cur=vD1[p]; nxt=vD1[1-p]
        bb=[]
        for blk in range(2):
            bb += [f'v_exp_f32 v{vE+16*blk+i}, v{cur+16*blk+i}' for i in range(16)]
        for blk in range(2):
            bb += [f'v_rcp_f32 v{vE+16*blk+i}, v{vE+16*blk+i}' for i in range(16)]
        if 'pk' in ABL:
            bb += [f'v_pk_mul_f32 v[{vE+2*i}:{vE+2*i+1}], v[{vE+2*i}:{vE+2*i+1}], v[{cur+2*i}:{cur+2*i+1}]' for i in range(16)]
            bb += [f'v_cvt_pk_bf16_f32 v{cur+q}, v{vE+2*q}, v{vE+2*q+1}' for q in range(16)]
        else:
            bb += [f'v_mul_f32 v{vE+i}, v{vE+i}, v{cur+i}' for i in range(16)]
            bb += [f'v_cvt_pk_bf16_f32 v{cur+q}, v{vE+2*q}, v{vE+2*q+1}' for q in range(8)]
            bb += [f'v_mul_f32 v{vE+16+i}, v{vE+16+i}, v{cur+16+i}' for i in range(16)]
            bb += [f'v_cvt_pk_bf16_f32 v{cur+8+q}, v{vE+16+2*q}, v{vE+16+2*q+1}' for q in range(8)]
        ins={}
        def put(pos,x):
            ins.setdefault(pos,[]).append(x)
        if not ('trim' in ABL and steady): put(-100,'s_waitcnt lgkmcnt(0)')
        if 'prio' in ABL:
            put(-99,f'''s_and_b32 s54, s{sT}, 2
            s_cmp_eq_u32 s54, 0
            s_cbranch_scc1 Lp{nlab[0]}a
            s_setprio {1-p}
            s_branch Lp{nlab[0]}b
            Lp{nlab[0]}a:
            s_setprio {3-p}
            Lp{nlab[0]}b:''')
            nlab[0]+=1
        if 'fprio' in ABL and not ('trim' in ABL and p==1):
            n=nlab[0]
            put(-99,f'''s_add_u32 s84, s84, s85
            s_bitcmp1_b32 s84, 17
            s_cbranch_scc1 Lp{n}h
            s_bitcmp1_b32 s84, 16
            s_cbranch_scc1 Lp{n}a
            s_setprio 3
            s_branch Lp{n}z
            Lp{n}a:
            s_setprio 2
            s_branch Lp{n}z
            Lp{n}h:
            s_bitcmp1_b32 s84, 16
            s_cbranch_scc1 Lp{n}b
            s_setprio 1
            s_branch Lp{n}z
            Lp{n}b:
            s_setprio 0
            Lp{n}z:''')
            nlab[0]+=1
        for x,q in zip(sf_reads(),SFPOS): put(q,x)
        put(RSPOS,s_restore()[0])
        put(P1POS[0],plus1(0))
        put(P1POS[1],plus1(1))
        if steady:
            for x,q in zip(s_addr(),SAPOS): put(q,x)
            for x,q in zip(s_writes(),SWPOS): put(q,x)
            put(X6POS,x6_read()[0])
            put(VMPOS,'s_waitcnt vmcnt(5)')
            for x,q in zip(x_reads(1-p),XPOS): put(q,x)
            for x,q in zip(rec_reads(p+2),RECPOS): put(q,x)
            for x,q in zip(idx_reads(p+3),IDXPOS): put(q,x)
            if 'trim' in ABL:
                n=nlab[0]; nlab[0]+=1
                put(LGPOS-2,f's_cmp_lt_i32 s{sT}, s86\ns_cbranch_scc1 Lz{n}\ns_mov_b32 s{sHD+2}, 0\ns_mov_b32 s{sEA+2}, 0\nLz{n}:')
            else: put(LGPOS-2,srd_select(3)[0])
            put(LGPOS,'s_waitcnt lgkmcnt(0)')
            for (x,y),q in zip(dma2(1-p),DMAPOS):
                if q>0 and q-1>LGPOS-1 and 'trim' in ABL: put(q-1,x); put(q,y)
                else: put(q,x+'\n'+y)
            for x,q in zip(mfma1(nxt),M1POS): put(q,x)
        for (b_,s_),q in zip(((0,0),(0,1),(1,0),(1,1)),M2POS): put(q,mfma2(cur,b_,s_))
        emit(bb,ins)
    if 'fprio' in ABL:
        PER=optl('per',[12])[0]
        a(f'''
        v_cvt_f32_u32 v96, s{sNT}
        v_rcp_f32 v96, v96
        s_nop 0
        v_mul_f32 v96, {f32bits(float(PER*65536*(2 if TRIMK in ABL else 1)))}, v96
        v_cvt_u32_f32 v96, v96
        s_nop 0
        v_readfirstlane_b32 s85, v96
        s_mov_b32 s84, 0
        s_sub_u32 s84, s84, s85
        ''')
    a(f's_sub_u32 s86, s{sNT}, 3\ns_sub_u32 s87, s{sNT}, 1')
    for x in idx_reads(0): a(x)
    for x in rec_reads(0): a(x)
    a(f's_mov_b32 s{sHD+2}, {N}')
    a(f's_mov_b32 s{sEA+2}, {E*32}')
    a('s_waitcnt lgkmcnt(0)')
    for x in dma(0): a(x)
    for x in idx_reads(1): a(x)
    for x in s_addr(): a(x)
    for x in s_writes(): a(x)
    for x in x6_read(): a(x)
    a(srd_select(1)[0])
    a('s_waitcnt vmcnt(0)')
    for x in x_reads(0): a(x)
    a('s_waitcnt lgkmcnt(5)')
    for x in dma(1): a(x)
    for x in idx_reads(2): a(x)
    for x in rec_reads(1): a(x)
    a(srd_select(2)[0])
    a('s_waitcnt lgkmcnt(0)')
    for x in mfma1(vD1[0]): a(x)
    for x in dma(0): a(x)
    st(8)
    stampc(a,12,vTM,98)
    if DEBUG_TM: a(f'v_writelane_b32 v{vTM}, s{sNT}, 22\nv_writelane_b32 v{vTM}, s{sG}, 23\ns_getreg_b32 s98, hwreg(HW_REG_HW_ID)\nv_writelane_b32 v{vTM}, s98, 24')
    JM=[0,1,4,5]
    RESV=[[232,233,234,236],[237,238,252,253]]
    WXV=[192,196,200,204,208,212,228,248]
    def epi_prefetch(p):
        nxt=vD1[1-p]
        r=[]
        r.append('v_lshlrev_b32 v10, 4, v1')
        for f in range(8):
            r.append(f'v_add_u32 v9, {(F_H1+f)*1024}, v10\nbuffer_load_dwordx4 v[{16+4*f}:{19+4*f}], v9, s[{sWF}:{sWF+3}], 0 offen')
        for f in range(8):
            r.append(f'v_add_u32 v9, {(F_H2+f)*1024}, v10\nbuffer_load_dwordx4 v[{nxt+4*f}:{nxt+4*f+3}], v9, s[{sWF}:{sWF+3}], 0 offen')
        r.append(f'v_lshrrev_b32 v7, 5, v1\nv_lshlrev_b32 v9, 7, v7\nv_add_u32 v9, {WXO}, v9')
        for f in range(8):
            r.append(f'buffer_load_dwordx4 v[{WXV[f]}:{WXV[f]+3}], v9, s[{sWF}:{sWF+3}], 0 offen offset:{16*f}')
        r.append(f'''
        v_bfe_u32 v9, v1, 1, 3
        v_lshlrev_b32 v9, 3, v9
        v_add_u32 v3, s{sG}, v9
        v_add_u32 v9, s{sNODE0}, v9
        v_cmp_gt_u32 vcc, {BN}, v3
        v_mov_b32 v4, -1
        v_lshlrev_b32 v7, 4, v7
        v_cndmask_b32 v6, v4, v9, vcc
        ''')
        for s_ in range(4):
            r.append(f'buffer_load_dwordx4 v[{48+4*s_}:{51+4*s_}], v[6:7], s[{sH}:{sH+3}], 0 idxen offen offset:{32*s_}')
        r.append(f'''
        v_lshrrev_b32 v9, 5, v1
        v_lshlrev_b32 v9, 4, v9
        v_and_b32 v3, 31, v1
        v_lshlrev_b32 v3, 1, v3
        ''')
        for m in range(4):
            r.append(f'''
            v_add_u32 v5, {8*JM[m]}, v9
            v_add_u32 v8, s{sG}, v5
            v_add_u32 v5, s{sNODE0}, v5
            v_cmp_gt_u32 vcc, {BN}, v8
            v_mov_b32 v{241+2*m}, v3
            s_nop 0
            v_cndmask_b32 v{240+2*m}, v4, v5, vcc
            ''')
        for m in range(4):
            r.append(f'buffer_load_ushort v{RESV[0][m]}, v[{240+2*m}:{241+2*m}], s[{sH}:{sH+3}], 0 idxen offen')
            r.append(f'buffer_load_ushort v{RESV[1][m]}, v[{240+2*m}:{241+2*m}], s[{sH}:{sH+3}], 0 idxen offen offset:64')
        r.append(f'''
        v_bfe_u32 v9, v1, 1, 3
        v_lshlrev_b32 v9, 3, v9
        v_add_u32 v3, s{sG}, v9
        v_add_u32 v9, s{sNODE0}, v9
        v_bfe_u32 v5, v1, 4, 1
        v_and_b32 v8, 1, v1
        v_lshl_add_u32 v5, v5, 1, v8
        v_cmp_gt_u32 vcc, {BN}, v3
        v_subrev_u32 v5, 1, v5
        v_cmp_gt_u32 s[56:57], 3, v5
        v_mul_u32_u24 v9, 6, v9
        s_and_b64 vcc, vcc, s[56:57]
        v_cmp_gt_u32 s[56:57], 32, v1
        v_lshl_add_u32 v9, v5, 1, v9
        v_mov_b32 v4, 0x7fffff00
        s_and_b64 vcc, vcc, s[56:57]
        v_cndmask_b32 v10, v4, v9, vcc
        buffer_load_ushort v11, v10, s[{sPOS}:{sPOS+3}], 0 offen
        ''')
        return r
    def epilogue(p):
        nxt=vD1[1-p]; cur=vD1[p]
        a(f's_mov_b32 s54, {f32bits(-math.log(2.0))}')
        for i in range(32):
            a(f'v_mul_f32 v{vD2+i}, s54, v{vD2+i}')
        pk=vE
        for blk in range(2):
            for q in range(8):
                a(f'v_cvt_pk_bf16_f32 v{pk+8*blk+q}, v{vD2+16*blk+2*q}, v{vD2+16*blk+2*q+1}')
        a('s_waitcnt vmcnt(0)')
        acc=cur
        a(f'v_mul_f32 v{acc}, v{vD2}, v{WXV[0]}')
        a(f'v_mul_f32 v{acc+1}, v{vD2+1}, v{WXV[0]+1}')
        for i in range(2,32):
            a(f'v_fmac_f32 v{acc+(i&1)}, v{vD2+i}, v{WXV[i>>2]+(i&3)}')
        a(f'v_add_f32 v{acc}, v{acc}, v{acc+1}')
        a(f'v_mov_b32 v{acc+1}, v{acc}')
        for b2 in range(2):
            D=f'v[{64+16*b2}:{79+16*b2}]'
            for s_ in range(4):
                C = D if s_>0 else '0'
                a(f'v_mfma_f32_32x32x16_bf16 {D}, v[{48+4*s_}:{51+4*s_}], v[{16+4*(2*s_+b2)}:{19+4*(2*s_+b2)}], {C}')
            for blk in range(2):
                for sp in range(2):
                    f=(blk*2+sp)*2+b2
                    a(f'v_mfma_f32_32x32x16_bf16 {D}, v[{pk+8*blk+4*sp}:{pk+8*blk+4*sp+3}], v[{nxt+4*f}:{nxt+4*f+3}], {D}')
        a(f'v_permlane32_swap_b32 v{acc}, v{acc+1}')
        a(f'''
        v_lshlrev_b32 v11, 16, v11
        v_add_f32 v{acc}, v{acc}, v{acc+1}
        v_add_f32 v11, v11, v{acc}
        v_cvt_pk_bf16_f32 v11, v11, v11
        buffer_store_short v11, v10, s[{sO1}:{sO1+3}], 0 offen
        ''')
        a(f's_mov_b32 s54, {f32bits(-LOG2E)}')
        T=vE+16
        for b2 in range(2):
            for m in range(4):
                a(f'v_mul_f32 v{T+4*b2+m}, s54, v{64+16*b2+2*m}')
        for k in range(8): a(f'v_exp_f32 v{T+k}, v{T+k}')
        for k in range(8): a(f'v_add_f32 v{T+k}, 1.0, v{T+k}')
        for k in range(8): a(f'v_rcp_f32 v{T+k}, v{T+k}')
        for b2 in range(2):
            for m in range(4):
                x=64+16*b2+2*m; t=T+4*b2+m; hh=RESV[b2][m]
                a(f'v_lshlrev_b32 v{hh}, 16, v{hh}')
                a(f'v_fma_f32 v{t}, v{x}, v{t}, v{hh}')
                a(f'v_cvt_pk_bf16_f32 v{t}, v{t}, v{t}')
        for b2 in range(2):
            for m in range(4):
                t=T+4*b2+m
                a(f'buffer_store_short v{t}, v[{240+2*m}:{241+2*m}], s[{sO0}:{sO0+3}], 0 idxen offen offset:{64*b2}')
        st(10)
        if DEBUG_TM: a('s_waitcnt vmcnt(0)')
        st(11)
        stamp_store(a,vTM,98,44,45,0x80000,sV,254)
        a('s_endpgm')
    for p in range(2):
        a.label(f'L2_s{p}')
        if 'trim' in ABL:
            a(f's_cmp_ge_i32 s{sT}, s87\ns_cbranch_scc1 L2_l{p}')
        else:
            a(f'''
            s_add_u32 s54, s{sT}, 1
            s_cmp_ge_u32 s54, s{sNT}
            s_cbranch_scc1 L2_l{p}
            ''')
        if DEBUG_TM and p==0:
            for tt,ix in ((2,25),(4,26),(6,27),(8,28),(10,29)):
                a(f's_cmp_lg_u32 s{sT}, {tt}\ns_cbranch_scc1 Lst{ix}')
                stampc(a,ix,vTM,98)
                a.label(f'Lst{ix}')
        body(p, True)
        a(f's_add_u32 s{sT}, s{sT}, 1')
        if p==1:
            a(f'''
            v_add_u32 v{vRSa}, 128, v{vRSa}
            v_add_u32 v{vR0a}, 256, v{vR0a}
            v_add_u32 v{vR0e}, 256, v{vR0e}
            v_add_u32 v{vGe}, 512, v{vGe}
            s_branch L2_s0
            ''')
    for p in range(2):
        a.label(f'L2_l{p}')
        a(f'''
        s_cmp_lt_u32 s{sW1}, {NCH}
        s_cbranch_scc1 L2_l{p}n
        ''')
        body(p, False, None) if False else None
        for x in epi_prefetch(p): a(x)
        body(p, False)
        st(9)
        stampc(a,13,vTM,98)
        epilogue(p)
        a.label(f'L2_l{p}n')
        body(p, False)
        a('s_branch L2_nextbatch')
    a.label('L2_notiles')
    a(f'''
    s_cmp_lt_u32 s{sW1}, {NCH}
    s_cbranch_scc1 L2_nextbatch
    ''')
    for x in epi_prefetch(0): a(x)
    st(9)
    epilogue(0)
    a.label('L2_nextbatch')
    a(f'''
    s_waitcnt vmcnt(0) lgkmcnt(0)
    s_mov_b32 s{sW0}, s{sW1}
    s_add_u32 s{sW1}, s{sW1}, 1
    s_branch L2_batch
    ''')
    a.label('L2_end')
    a('s_endpgm')
    return a.finalize(), 256, 102, L_END

def main():
    k1,v1,s1,l1 = gen_k1()
    k2,v2,s2,l2 = gen_k2()
    hdr = open('gather_scatter__cheap_equivariant_egnn__graph.s.ref').read().split('; Override launch')[0]
    out = hdr
    out += f'; @launch kernel=egnn_part_kernel grid=({NCH+1+NTW},1,1) block=(512,1,1) lds={l1}\n'
    out += f'; @launch kernel=egnn_main_kernel grid=({NBK},1,1) block=(512,1,1) lds={l2}\n'
    out += '.amdgcn_target "amdgcn-amd-amdhsa--gfx950"\n.text\n'
    for name,body in (('egnn_part_kernel',k1),('egnn_main_kernel',k2)):
        out += f'.globl {name}\n.p2align 8\n.type {name},@function\n' + body
    out += '.section .rodata,"a"\n'
    for name,nv,ns in (('egnn_part_kernel',v1,s1),('egnn_main_kernel',v2,s2)):
        acc=(nv+3)//4*4
        out += f'''.p2align 6
.amdhsa_kernel {name}
  .amdhsa_next_free_vgpr {nv}
  .amdhsa_next_free_sgpr {ns}
  .amdhsa_accum_offset {acc}
  .amdhsa_group_segment_fixed_size 0
  .amdhsa_kernarg_size 88
  .amdhsa_user_sgpr_count 2
  .amdhsa_user_sgpr_kernarg_segment_ptr 1
  .amdhsa_system_sgpr_workgroup_id_x 1
  .amdhsa_float_denorm_mode_32 3
.end_amdhsa_kernel
'''
    dst = [x for x in sys.argv[1:] if not x.startswith('--')]
    path = dst[0] if dst else 'gather_scatter__cheap_equivariant_egnn__graph.s'
    open(path,'w').write(out)
    print('wrote',path,len(out))
main()
```

```python
import sys, math
from asmlib import Asm

N=12500; E=800000; CH=3200; NCH=250; NBK=256; BN=49
ROW=4224
OFFS=0; ENT=0x110000; WF=0x420000; TA=0x500000; TB=0x700000; TM=0x900000
NF=18; WDO=NF*1024; WXO=NF*1024+256; WFSZ=NF*1024+512
NTW=98
CAP=3584
LOG2E=1.4426950408889634
def f32bits(x):
    import struct; return struct.unpack('<I',struct.pack('<f',x))[0]

DEBUG_TM = '--tm' in sys.argv
K1PRIO = '--k1prio' in sys.argv
TFIRST = '--tlast' not in sys.argv
SC1 = ' sc1' if '--sc1' in sys.argv else (' nt' if '--nt' in sys.argv else '')
PFK1 = 2 if '--pfk1' in sys.argv else 1 if '--pfk1h' in sys.argv else 0

F_W3=0
F_H1=2
F_H2=10

def stamp(a, idx, vreg, sp):
    if not DEBUG_TM: return
    a(f'''
    s_memrealtime s[{sp}:{sp+1}]
    s_waitcnt lgkmcnt(0)
    v_writelane_b32 v{vreg}, s{sp}, {idx}
    ''')
def stampc(a, idx, vreg, sp):
    if not DEBUG_TM: return
    a(f'''
    s_memtime s[{sp}:{sp+1}]
    s_waitcnt lgkmcnt(0)
    v_writelane_b32 v{vreg}, s{sp}, {idx}
    ''')
def stamp_store(a, vreg, sp, ws_lo, ws_hi, region, wave_s, vt):
    if not DEBUG_TM: return
    a(f'''
    s_lshl_b32 s{sp}, s2, 3
    s_add_u32 s{sp}, s{sp}, s{wave_s}
    s_lshl_b32 s{sp}, s{sp}, 7
    s_add_u32 s{sp}, s{sp}, {TM+region}
    s_add_u32 s{sp}, s{ws_lo}, s{sp}
    s_addc_u32 s{sp+1}, s{ws_hi}, 0
    v_and_b32 v{vt}, 63, v0
    v_lshlrev_b32 v{vt}, 2, v{vt}
    s_mov_b32 exec_hi, 0
    global_store_dword v{vt}, v{vreg}, s[{sp}:{sp+1}]
    s_mov_b64 exec, -1
    ''')

def gen_k1():
    a=Asm()
    K1_STAGE=8192; K1_WTOT=24576
    a.label('egnn_part_kernel')
    a(f'''
    s_cmp_gt_u32 s2, {NCH+NTW}
    s_cbranch_scc1 L1_end
    v_lshrrev_b32 v2, 6, v0
    v_and_b32 v1, 63, v0
    s_load_dwordx4 s[4:7], s[0:1], 24
    s_load_dwordx2 s[8:9], s[0:1], 80
    s_load_dwordx2 s[34:35], s[0:1], 16
    v_readfirstlane_b32 s3, v2
    s_cmp_eq_u32 s2, {NTW if TFIRST else NCH}
    s_cbranch_scc1 L1_wprep
    s_cmp_{'lt' if TFIRST else 'gt'}_u32 s2, {NTW if TFIRST else NCH}
    s_cbranch_scc1 L1_tables
    s_sub_u32 s38, s2, {NTW+1 if TFIRST else 0}
    s_setprio {3 if K1PRIO else 0}
    ''')
    if DEBUG_TM: a('v_mov_b32 v70, 0')
    stamp(a,0,70,36)
    a(f'''
    v_lshlrev_b32 v3, 4, v0
    v_mov_b32 v4, 0
    v_mov_b32 v5, 0
    v_mov_b32 v6, 0
    v_mov_b32 v7, 0
    ds_write_b128 v3, v[4:7]
    s_mul_i32 s10, s38, {CH*4}
    s_mul_i32 s11, s38, {ROW}
    v_add_u32 v48, 8192, v3
    s_waitcnt lgkmcnt(0)
    s_add_u32 s12, s6, s10
    s_addc_u32 s13, s7, 0
    s_mov_b32 s14, {CH*4}
    s_mov_b32 s15, 0x20000
    s_add_u32 s16, s4, s10
    s_addc_u32 s17, s5, 0
    s_mov_b32 s18, {CH*4}
    s_mov_b32 s19, 0x20000
    buffer_load_dwordx4 v[8:11], v3, s[12:15], 0 offen
    buffer_load_dwordx4 v[12:15], v48, s[12:15], 0 offen
    buffer_load_dwordx4 v[16:19], v3, s[16:19], 0 offen
    buffer_load_dwordx4 v[20:23], v48, s[16:19], 0 offen
    ''')
    if PFK1:
        a(f'''
        s_mul_i32 s10, s38, {CH*32}
        s_add_u32 s32, s34, s10
        s_addc_u32 s33, s35, 0
        s_mov_b32 s34, {CH*32}
        s_mov_b32 s35, 0x20000
        v_lshlrev_b32 v64, 7, v0
        v_add_u32 v65, {512*128}, v64
        buffer_load_dword v66, v64, s[32:35], 0 offen
        ''')
        if PFK1>1: a('buffer_load_dword v67, v65, s[32:35], 0 offen')
        a(f's_mul_i32 s10, s38, {CH*4}')
    a(f'''
    s_add_u32 s24, s8, {OFFS}
    s_addc_u32 s25, s9, 0
    s_add_u32 s24, s24, s11
    s_addc_u32 s25, s25, 0
    s_mov_b32 s26, {ROW}
    s_mov_b32 s27, 0x20000
    s_add_u32 s28, s8, {ENT}
    s_addc_u32 s29, s9, 0
    s_add_u32 s28, s28, s10
    s_addc_u32 s29, s29, 0
    s_mov_b32 s30, {CH*4}
    s_mov_b32 s31, 0x20000
    s_mov_b32 s22, -{BN}
    v_mov_b32 v50, 1
    v_lshlrev_b32 v51, 5, v0
    v_add_u32 v52, 16384, v51
    s_barrier
    s_waitcnt vmcnt({2+PFK1})
    ''')
    stamp(a,1,70,36)
    def keyslot(i, dst, tmp):
        a(f'''
        v_mul_u32_u24 v{tmp}, 21400, v{dst}
        v_lshrrev_b32 v{tmp}, 20, v{tmp}
        v_mad_i32_i24 v{40+i}, v{tmp}, s22, v{dst}
        v_and_b32 v{tmp+1}, 7, v{40+i}
        v_lshl_or_b32 v{tmp}, v{tmp}, 3, v{tmp+1}
        v_lshlrev_b32 v{24+i}, 2, v{tmp}
        ''')
    for u in range(4):
        keyslot(u, 8+u, 54+2*u)
        a(f'ds_add_rtn_u32 v{32+u}, v{24+u}, v50')
    a('''
    v_cmp_gt_u32 vcc, 288, v0
    s_and_saveexec_b64 s[20:21], vcc
    s_cbranch_execz L1_skipB1
    ''')
    for u in range(4):
        keyslot(4+u, 12+u, 54+2*u)
        a(f'ds_add_rtn_u32 v{36+u}, v{28+u}, v50')
    a.label('L1_skipB1')
    a('s_mov_b64 exec, s[20:21]')
    a(f's_waitcnt vmcnt({PFK1})')
    for i in range(8):
        base = 51 if i<4 else 52
        a(f'''
        v_lshrrev_b32 v54, 3, v{40+i}
        v_lshl_or_b32 v54, v{40+i}, 29, v54
        v_lshl_or_b32 v54, v{16+i}, 15, v54
        v_add3_u32 v{40+i}, v54, v{base}, {8*(i%4)}
        ''')
    a('''
    s_waitcnt lgkmcnt(0)
    s_barrier
    ''')
    stamp(a,2,70,36)
    a('''
    ds_read_b128 v[8:11], v3
    s_waitcnt lgkmcnt(0)
    v_add_u32 v12, v8, v9
    v_add_u32 v13, v12, v10
    v_add_u32 v14, v13, v11
    v_mov_b32 v15, v14
    ''')
    for sh in (1,2,4,8):
        a(f'v_add_u32_dpp v15, v15, v15 row_shr:{sh} row_mask:0xf bank_mask:0xf')
    a('v_add_u32_dpp v15, v15, v15 row_bcast:15 row_mask:0xa bank_mask:0xf')
    a('v_add_u32_dpp v15, v15, v15 row_bcast:31 row_mask:0xc bank_mask:0xf')
    a(f'''
    s_lshl_b32 s10, s3, 2
    s_add_u32 s10, s10, {K1_WTOT}
    v_mov_b32 v16, s10
    s_mov_b32 s20, 0
    s_brev_b32 s21, 1
    s_mov_b64 exec, s[20:21]
    ds_write_b32 v16, v15
    s_mov_b64 exec, -1
    v_and_b32 v17, 7, v1
    v_lshlrev_b32 v17, 2, v17
    v_add_u32 v17, {K1_WTOT}, v17
    s_waitcnt lgkmcnt(0)
    s_barrier
    ds_read_b32 v18, v17
    v_cmp_gt_u32 vcc, s3, v1
    s_waitcnt lgkmcnt(0)
    v_cndmask_b32 v18, 0, v18, vcc
    ''')
    for sh in (1,2,4):
        a(f'v_add_u32_dpp v18, v18, v18 row_shr:{sh} row_mask:0xf bank_mask:0xf')
    a(f'''
    v_readlane_b32 s10, v18, 7
    v_sub_u32 v15, v15, v14
    v_add_u32 v8+0, s10, v15
    '''.replace('v8+0','v19'))
    a(f'''
    v_add_u32 v21, v19, v12
    v_add_u32 v22, v19, v13
    v_add_u32 v20, v19, v8
    v_mov_b32 v56, v19
    v_mov_b32 v57, v20
    v_mov_b32 v58, v21
    v_mov_b32 v59, v22
    ds_write_b128 v3, v[56:59]
    v_lshl_or_b32 v60, v20, 16, v19
    v_lshl_or_b32 v61, v22, 16, v21
    v_lshlrev_b32 v62, 3, v0
    buffer_store_dwordx2 v[60:61], v62, s[24:27], 0 offen{SC1}
    s_cmp_lg_u32 s3, 0
    s_cbranch_scc1 L1_nosent
    s_mov_b32 s10, {CH | (CH<<16)}
    v_mov_b32 v63, s10
    v_lshlrev_b32 v62, 2, v1
    v_add_u32 v62, 4096, v62
    v_cmp_gt_u32 vcc, 32, v1
    s_and_saveexec_b64 s[20:21], vcc
    buffer_store_dword v63, v62, s[24:27], 0 offen
    s_mov_b64 exec, s[20:21]
    ''')
    a.label('L1_nosent')
    a('''
    s_waitcnt lgkmcnt(0)
    s_barrier
    ''')
    stamp(a,3,70,36)
    for u in range(4):
        a(f'ds_read_b32 v{8+u}, v{24+u}')
    a('''
    v_cmp_gt_u32 vcc, 288, v0
    s_and_saveexec_b64 s[20:21], vcc
    s_cbranch_execz L1_skipB2
    ''')
    for u in range(4):
        a(f'ds_read_b32 v{12+u}, v{28+u}')
    a('s_waitcnt lgkmcnt(0)')
    for u in range(4):
        a(f'v_add_lshl_u32 v{12+u}, v{12+u}, v{36+u}, 2')
    for u in range(4):
        a(f'ds_write_b32 v{12+u}, v{44+u} offset:{K1_STAGE}')
    a.label('L1_skipB2')
    a('s_mov_b64 exec, s[20:21]')
    a('s_waitcnt lgkmcnt(0)')
    for u in range(4):
        a(f'v_add_lshl_u32 v{8+u}, v{8+u}, v{32+u}, 2')
    for u in range(4):
        a(f'ds_write_b32 v{8+u}, v{40+u} offset:{K1_STAGE}')
    a(f'''
    s_waitcnt lgkmcnt(0)
    s_barrier
    ds_read_b128 v[8:11], v3 offset:{K1_STAGE}
    ds_read_b128 v[12:15], v3 offset:{K1_STAGE+8192}
    s_waitcnt lgkmcnt(1)
    buffer_store_dwordx4 v[8:11], v3, s[28:31], 0 offen{SC1}
    s_waitcnt lgkmcnt(0)
    buffer_store_dwordx4 v[12:15], v48, s[28:31], 0 offen{SC1}
    ''')
    stamp(a,4,70,36)
    if DEBUG_TM: a('s_waitcnt vmcnt(0)')
    stamp(a,5,70,36)
    stamp_store(a,70,36,8,9,0,3,69)
    a('s_endpgm')
    a.label('L1_wprep')
    a(f'''
    s_load_dwordx2 s[10:11], s[0:1], 40
    s_load_dwordx2 s[12:13], s[0:1], 48
    s_load_dwordx2 s[14:15], s[0:1], 56
    v_and_b32 v2, 31, v1
    v_lshrrev_b32 v3, 5, v1
    v_lshlrev_b32 v4, 4, v1
    s_waitcnt lgkmcnt(0)
    s_mov_b32 s16, s10
    s_mov_b32 s17, s11
    s_mov_b32 s18, {145*64*2}
    s_mov_b32 s19, 0x20000
    s_mov_b32 s20, s14
    s_mov_b32 s21, s15
    s_mov_b32 s22, {128*64*2}
    s_mov_b32 s23, 0x20000
    s_mov_b32 s24, s12
    s_mov_b32 s25, s13
    s_mov_b32 s26, {64*2}
    s_mov_b32 s27, 0x20000
    s_add_u32 s28, s8, {WF}
    s_addc_u32 s29, s9, 0
    s_mov_b32 s30, {WFSZ}
    s_mov_b32 s31, 0x20000
    s_mov_b32 s32, {f32bits(-LOG2E)}
    v_lshlrev_b32 v5, 1, v2
    v_lshl_add_u32 v6, v3, 10, v5
    v_lshl_add_u32 v7, v3, 9, v5
    v_lshlrev_b32 v8, 3, v3
    ''')
    frags=[]
    for blk in range(2): frags.append((F_W3+blk,'e',129,blk,'std',True))
    for s in range(4):
        for blk in range(2): frags.append((F_H1+2*s+blk,'h',16*s,blk,'std',False))
    for blk in range(2):
        for sp in range(2):
            for b2 in range(2): frags.append((F_H2+(blk*2+sp)*2+b2,'h',64+32*blk+16*sp,b2,'perm',False))
    assert len(frags)==NF
    for wv in range(8):
        a(f's_cmp_eq_u32 s3, {wv}')
        a(f's_cbranch_scc1 L1_w{wv}')
    a('s_endpgm')
    for wv in range(8):
        a.label(f'L1_w{wv}')
        mine=[f for i,f in enumerate(frags) if i%8==wv]
        for q,(F,srcn,row0,blk,kind,scaled) in enumerate(mine):
            r=16+8*q
            srd={'e':'s[16:19]','h':'s[20:23]','x':'s[24:27]'}[srcn]
            if kind=='wx':
                a(f'v_add_u32 v10, {row0*2}, v8')
                for t in range(8):
                    T=(t&3)+8*(t>>2)
                    a(f'buffer_load_ushort v{r+t}, v10, {srd}, 0 offen offset:{T*2}')
            else:
                vb = 6 if kind=='std' else 7
                a(f'v_add_u32 v10, {row0*128+blk*64}, v{vb}')
                for t in range(8):
                    T= t if kind=='std' else (t&3)+8*(t>>2)
                    a(f'buffer_load_ushort v{r+t}, v10, {srd}, 0 offen offset:{T*128}')
        if wv==0:
            a(f'''
            v_lshlrev_b32 v11, 1, v1
            v_add_u32 v11, {128*128}, v11
            buffer_load_ushort v12, v11, s[16:19], 0 offen
            ''')
        if wv==1:
            a(f'''
            v_and_b32 v11, 3, v1
            v_bfe_u32 v12, v1, 2, 2
            v_lshl_add_u32 v11, v12, 3, v11
            v_bfe_u32 v12, v1, 4, 1
            v_lshl_add_u32 v11, v12, 5, v11
            v_lshl_add_u32 v11, v3, 2, v11
            v_lshlrev_b32 v11, 1, v11
            buffer_load_ushort v12, v11, s[24:27], 0 offen
            ''')
        a('s_waitcnt vmcnt(0)')
        for q,(F,srcn,row0,blk,kind,scaled) in enumerate(mine):
            r=16+8*q
            if scaled:
                for t in range(8):
                    a(f'v_lshlrev_b32 v{r+t}, 16, v{r+t}')
                for t in range(8):
                    a(f'v_mul_f32 v{r+t}, s32, v{r+t}')
                for t in range(4):
                    a(f'v_cvt_pk_bf16_f32 v{64+t}, v{r+2*t}, v{r+2*t+1}')
            else:
                for t in range(4):
                    a(f'v_lshl_or_b32 v{64+t}, v{r+2*t+1}, 16, v{r+2*t}')
            a(f'v_add_u32 v10, {F*1024}, v4')
            a(f'buffer_store_dwordx4 v[64:67], v10, s[28:31], 0 offen')
            a('s_nop 1')
        if wv==0:
            a(f'''
            v_lshlrev_b32 v12, 16, v12
            v_mul_f32 v12, s32, v12
            v_cvt_pk_bf16_f32 v13, v12, v12
            v_and_b32 v14, 0xffff0000, v13
            v_sub_f32 v12, v12, v14
            v_cvt_pk_bf16_f32 v12, v12, v12
            v_and_b32 v12, 0xffff0000, v12
            v_and_b32 v13, 0xffff, v13
            v_or_b32 v13, v13, v12
            v_and_b32 v11, 31, v1
            v_lshlrev_b32 v11, 3, v11
            v_lshl_add_u32 v11, v3, 2, v11
            v_add_u32 v11, {WDO}, v11
            buffer_store_dword v13, v11, s[28:31], 0 offen
            ''')
        if wv==1:
            a(f'''
            v_lshlrev_b32 v12, 16, v12
            v_lshlrev_b32 v11, 2, v1
            v_add_u32 v11, {WXO}, v11
            buffer_store_dword v12, v11, s[28:31], 0 offen
            ''')
        a('s_endpgm')
    a.label('L1_tables')
    if DEBUG_TM: a('v_mov_b32 v15, 0')
    stamp(a,0,15,36)
    a(f"""
    s_load_dwordx2 s[10:11], s[0:1], 0
    s_load_dwordx2 s[12:13], s[0:1], 40
    s_sub_u32 s14, s2, {0 if TFIRST else NCH+1}
    s_lshl_b32 s14, s14, 7
    s_lshr_b32 s33, s3, 1
    s_lshl_b32 s33, s33, 5
    s_and_b32 s15, s3, 1
    v_and_b32 v2, 31, v1
    v_lshrrev_b32 v3, 5, v1
    v_lshrrev_b32 v8, 3, v1
    v_and_b32 v9, 7, v1
    v_lshrrev_b32 v10, 4, v1
    s_waitcnt lgkmcnt(0)
    s_mov_b32 s16, s10
    s_or_b32 s17, s11, 0x800000
    s_mov_b32 s18, {N}
    s_mov_b32 s19, 0x20000
    s_mov_b32 s20, s12
    s_mov_b32 s21, s13
    s_mov_b32 s22, {128*128}
    s_mov_b32 s23, 0x20000
    s_mul_i32 s34, s15, {TB-TA}
    s_add_u32 s34, s34, {TA}
    s_add_u32 s24, s8, s34
    s_addc_u32 s25, s9, 0
    s_or_b32 s25, s25, 0x800000
    s_mov_b32 s26, {N}
    s_mov_b32 s27, 0x20000
    """)
    for r in range(2):
        a(f"""
        s_lshl_b32 s34, s3, 1
        s_add_u32 s34, s34, {r}
        s_lshl_b32 s35, s34, 3
        s_add_u32 s35, s35, s14
        v_add_u32 v4, s35, v8
        v_add_u32 v5, {4*r}, v10
        v_xor_b32 v5, v5, v9
        v_lshlrev_b32 v5, 4, v5
        s_lshl_b32 s34, s34, 10
        s_add_u32 m0, s34, 16384
        s_nop 0
        buffer_load_dwordx4 v[4:5], s[16:19], 0 idxen offen lds
        """)
    a(f"""
    v_lshlrev_b32 v6, 4, v1
    s_lshl_b32 s34, s3, 10
    v_add_u32 v6, s34, v6
    s_mov_b32 m0, s34
    v_add_u32 v7, 8192, v6
    buffer_load_dwordx4 v6, s[20:23], 0 offen lds
    s_add_u32 m0, s34, 8192
    s_nop 0
    buffer_load_dwordx4 v7, s[20:23], 0 offen lds
    v_and_b32 v8, 15, v1
    v_lshrrev_b32 v9, 2, v8
    v_lshl_add_u32 v9, v3, 3, v9
    v_lshlrev_b32 v9, 7, v9
    v_bfe_u32 v10, v1, 4, 1
    v_lshl_add_u32 v9, v10, 5, v9
    v_and_b32 v10, 3, v1
    v_lshl_add_u32 v9, v10, 3, v9
    s_lshl_b32 s34, s15, 13
    v_add_u32 v9, s34, v9
    v_add_u32 v10, s33, v2
    v_lshlrev_b32 v10, 7, v10
    v_add_u32 v10, 16384, v10
    v_bfe_u32 v11, v2, 1, 3
    s_mov_b32 s35, {f32bits(-LOG2E)}
    s_waitcnt vmcnt(0)
    """)
    stamp(a,1,15,36)
    a('s_barrier')
    for s_ in range(4):
        a(f"""
        v_add_u32 v12, {2*s_}, v3
        v_xor_b32 v12, v12, v11
        v_lshl_add_u32 v12, v12, 4, v10
        ds_read_b128 v[{16+4*s_}:{19+4*s_}], v12
        """)
    for s_ in range(4):
        for blk in range(2):
            r=32+4*(2*s_+blk)
            a(f'ds_read_b64_tr_b16 v[{r}:{r+1}], v9 offset:{2048*s_+64*blk}')
            a(f'ds_read_b64_tr_b16 v[{r+2}:{r+3}], v9 offset:{2048*s_+64*blk+512}')
        if s_==1: a('s_waitcnt lgkmcnt(0)')
    a('s_waitcnt lgkmcnt(0)')
    a('s_barrier')
    stamp(a,2,15,36)
    for blk in range(2):
        D=f'v[{64+16*blk}:{79+16*blk}]'
        for s_ in range(4):
            C = D if s_>0 else '0'
            r=32+4*(2*s_+blk)
            a(f'v_mfma_f32_32x32x16_bf16 {D}, v[{r}:{r+3}], v[{16+4*s_}:{19+4*s_}], {C}')
    a(f"""
    s_lshl_b32 s34, s3, 12
    v_lshlrev_b32 v4, 7, v2
    v_add_u32 v4, s34, v4
    v_and_b32 v5, 7, v2
    v_lshlrev_b32 v5, 4, v5
    """)
    for blk in range(2):
        for i in range(16):
            a(f'v_mul_f32 v{64+16*blk+i}, s35, v{64+16*blk+i}')
    a("""
    s_cmp_eq_u32 s15, 0
    s_cbranch_scc1 L1_tabA
    v_lshl_add_u32 v4, v3, 3, v4
    """)
    for blk in range(2):
        for q in range(8):
            a(f'v_cvt_pk_bf16_f32 v{32+8*blk+q}, v{64+16*blk+2*q}, v{64+16*blk+2*q+1}')
        for m in range(4):
            a(f'v_xor_b32 v6, {16*(4*blk+m)}, v5')
            a(f'v_add_u32 v6, v6, v4')
            a(f'ds_write_b64 v6, v[{32+8*blk+2*m}:{33+8*blk+2*m}]')
    a('s_branch L1_tabS')
    a.label('L1_tabA')
    for r in range(16):
        a(f'v_cvt_pk_bf16_f32 v{32+r}, v{64+r}, v{80+r}')
    a('v_lshlrev_b32 v7, 4, v3')
    for m in range(4):
        a(f'v_add_u32 v6, {32*m}, v7')
        a(f'v_xor_b32 v6, v6, v5')
        a(f'v_add_u32 v6, v6, v4')
        a(f'ds_write_b128 v6, v[{32+4*m}:{35+4*m}]')
    a.label('L1_tabS')
    stamp(a,3,15,36)
    a(f"""
    v_lshlrev_b32 v6, 4, v1
    v_add_u32 v6, s34, v6
    v_lshrrev_b32 v8, 3, v1
    v_and_b32 v9, 7, v1
    v_xor_b32 v9, v9, v8
    v_lshlrev_b32 v13, 4, v9
    s_add_u32 s14, s14, s33
    v_add_u32 v8, s14, v8
    s_waitcnt lgkmcnt(0)
    """)
    for i in range(4):
        a(f'ds_read_b128 v[{48+4*i}:{51+4*i}], v6 offset:{1024*i}')
    for i in range(4):
        a(f'v_add_u32 v12, {8*i}, v8')
        a(f's_waitcnt lgkmcnt({3-i})')
        a(f'buffer_store_dwordx4 v[{48+4*i}:{51+4*i}], v[12:13], s[24:27], 0 idxen offen{SC1}')
    stamp(a,4,15,36)
    if DEBUG_TM: a('s_waitcnt vmcnt(0)')
    stamp(a,5,15,36)
    stamp_store(a,15,36,8,9,0,3,14)
    a('s_endpgm')
    a.label('L1_end')
    a('s_endpgm')
    return a.finalize(), 96, 40, 32768+64

L_G=0; L_R0=28672; L_RS=43264; L_S=50432; L_RING=66816; L_GTAB=148736; L_WTOT=156928; L_PD=157184; L_WST=158208; L_AST=L_WST+2560; L_END=L_AST+2048
SLOT=5120
vI=16; vW3=24; vW6=32; vS1=40; vS2=41; vD2=64; vD1=(96,128); vE=160; vX=192; vXE=208; vX6=212; vSF=216; vONE=224
vHA=228; vEAr=232; vX6r=233; vC1=234; vSTa=235; vC2=236; vMK2=237; vEAc=238; vOne=239; vHP=240
vSTb=15; vCD=14
vRSa=248; vR0a=249; vR0e=250; vGe=251; vR0=252; vG=253; vA1=254; vA2=255; vEAi=10; vEAo=11
vZero=vONE+1
vTM=12
sH=4; sEA=8; sOF=12; sEN=16; sPOS=20; sWF=24; sO0=28; sO1=32; sHD=36; sSEL=100; sTA=40
sWS=44
sW0=46; sW1=47; sV=3; sG=101; sCNT=48; sBASE=49; sNT=50; sT=51; sRB=52; sNODE0=53; sMK=89

ABL=set(x[6:] for x in sys.argv if x.startswith('--abl=') )
OPT=dict(x[6:].split(':') for x in sys.argv if x.startswith('--opt='))
def optl(k,d): return [int(v.replace('n','-')) for v in OPT[k].split(',')] if k in OPT else d
TRIMK='trim'; PF2K='pf2'; TBK='tbpf'
EAF=''.join(' '+x for x in OPT.get('eaf','').split('+') if x); HF=''.join(' '+x for x in OPT.get('hf','').split('+') if x)
NH_ = 0 if 'noh' in ABL else N
NE_ = 0 if 'noea' in ABL else E*32
def gen_k2():
    a=Asm()
    def st(i): stamp(a,i,vTM,98)
    a.label('egnn_main_kernel')
    a(f'''
    s_cmp_ge_u32 s2, {NBK}
    s_cbranch_scc1 L2_end
    ''')
    if 'xmap' in ABL:
        a('s_and_b32 s4, s2, 7\ns_lshl_b32 s4, s4, 5\ns_lshr_b32 s2, s2, 3\ns_or_b32 s2, s2, s4')
    if DEBUG_TM: a(f'v_mov_b32 v{vTM}, 0')
    st(0)
    a(f'''
    s_load_dwordx2 s[44:45], s[0:1], 80
    s_load_dwordx4 s[36:39], s[0:1], 0
    s_load_dwordx2 s[40:41], s[0:1], 16
    s_load_dwordx2 s[42:43], s[0:1], 64
    v_and_b32 v1, 63, v0
    v_lshrrev_b32 v2, 6, v0
    v_lshrrev_b32 v3, 1, v0
    v_readfirstlane_b32 s{sV}, v2
    v_and_b32 v9, 1, v0
    s_lshl_b32 s54, s2, 4
    s_mov_b32 s55, {ROW}
    v_mov_b32 v96, s54
    v_mad_u32_u24 v96, v3, s55, v96
    s_mov_b32 s{sOF+2}, {NCH*ROW}
    s_mov_b32 s{sOF+3}, 0x20000
    s_waitcnt lgkmcnt(0)
    s_add_u32 s{sOF}, s44, {OFFS}
    s_addc_u32 s{sOF+1}, s45, 0
    buffer_load_dwordx4 v[4:7], v96, s[{sOF}:{sOF+3}], 0 offen
    buffer_load_ushort v8, v96, s[{sOF}:{sOF+3}], 0 offen offset:16
    ''')
    st(16)
    a(f"""
    s_mov_b32 s{sPOS}, s38
    s_mov_b32 s{sPOS+1}, s39
    s_mov_b32 s{sPOS+2}, {N*6}
    s_mov_b32 s{sPOS+3}, 0x20000
    s_add_u32 s{sWF}, s44, {WF}
    s_addc_u32 s{sWF+1}, s45, 0
    s_mov_b32 s{sWF+2}, {WFSZ}
    s_mov_b32 s{sWF+3}, 0x20000
    s_mov_b32 s{sW0}, 0
    s_mov_b32 s{sW1}, {NCH}
    s_mov_b32 s63, 0
    s_branch L2_pos
    """)
    a.label('L2_batch')
    a('s_barrier')
    a.label('L2_pos')
    a(f"""
    v_lshlrev_b32 v96, 4, v1
    s_lshl_b32 s58, s{sV}, 10
    v_add_u32 v96, s58, v96
    """)
    PE=optl('pe',[5])[0]
    for r in range(PE):
        if r==9:
            a(f's_cmp_ge_u32 s{sV}, 2\ns_cbranch_scc1 L2_posdone')
        a(f"""
        s_add_u32 m0, s58, {L_RING+8192*r}
        v_add_u32 v97, {8192*r}, v96
        buffer_load_dwordx4 v97, s[{sPOS}:{sPOS+3}], 0 offen lds
        """)
    a.label('L2_posdone')
    a(f"""
    s_cmp_lg_u32 s63, 0
    s_cbranch_scc1 L2_counts
    s_mov_b32 s63, 2
    """)
    a(f"""
    s_cmp_eq_u32 s{sV}, 2
    s_cselect_b32 s54, {WDO}, s58
    s_cselect_b32 s55, 2048, s58
    s_cmp_gt_u32 s{sV}, 2
    s_cselect_b32 s54, {WFSZ}, s54
    s_cselect_b32 s55, 2560, s55
    v_lshlrev_b32 v97, 4, v1
    v_add_u32 v97, s54, v97
    s_add_u32 m0, s55, {L_WST}
    s_cmp_gt_u32 s{sV}, 2
    s_cbranch_scc1 L2_nowst
    v_cmp_gt_u32 vcc, 32, v1
    s_cmp_eq_u32 s{sV}, 2
    s_cselect_b64 exec, vcc, -1
    buffer_load_dwordx4 v97, s[{sWF}:{sWF+3}], 0 offen lds
    s_mov_b64 exec, -1
    """)
    a.label('L2_nowst')
    st(17)
    a(f"""
    s_mov_b32 s{sH}, s36
    s_or_b32 s{sH+1}, s37, 0x800000
    s_mov_b32 s{sH+2}, {N}
    s_mov_b32 s{sH+3}, 0x20000
    s_mov_b32 s{sEA}, s40
    s_mov_b32 s{sEA+1}, s41
    s_mov_b32 s{sEA+2}, {E*32}
    s_mov_b32 s{sEA+3}, 0x20000
    s_add_u32 s{sEN}, s44, {ENT}
    s_addc_u32 s{sEN+1}, s45, 0
    s_mov_b32 s{sEN+2}, {NCH*CH*4}
    s_mov_b32 s{sEN+3}, 0x20000
    s_mov_b32 s{sO0}, s42
    s_or_b32 s{sO0+1}, s43, 0x800000
    s_mov_b32 s{sO0+2}, {N}
    s_mov_b32 s{sO0+3}, 0x20000
    s_add_u32 s{sO1}, s42, {N*128}
    s_addc_u32 s{sO1+1}, s43, 0
    s_mov_b32 s{sO1+2}, {N*6}
    s_mov_b32 s{sO1+3}, 0x20000
    s_add_u32 s{sHD}, s44, {TB}
    s_addc_u32 s{sHD+1}, s45, 0
    s_or_b32 s{sHD+1}, s{sHD+1}, 0x800000
    s_mov_b32 s{sHD+2}, {N}
    s_mov_b32 s{sHD+3}, 0x20000
    s_add_u32 s{sTA}, s44, {TA}
    s_addc_u32 s{sTA+1}, s45, 0
    s_or_b32 s{sTA+1}, s{sTA+1}, 0x800000
    s_mov_b32 s{sTA+2}, {N}
    s_mov_b32 s{sTA+3}, 0x20000
    s_mul_i32 s{sRB}, s{sV}, {2*SLOT}
    s_add_u32 s{sRB}, s{sRB}, {L_RING}
    s_mov_b32 s{sMK}, 0xffffffe0
    s_mov_b32 s{sSEL}, 0x01000100
    v_lshrrev_b32 v98, 5, v1
    v_and_b32 v101, 1, v1
    v_xor_b32 v101, v101, v98
    v_lshlrev_b32 v{vEAc}, 4, v101
    v_and_b32 v101, 7, v1
    v_lshrrev_b32 v102, 4, v1
    v_xor_b32 v103, v101, v102
    v_lshlrev_b32 v{vHP+1}, 4, v103
    v_lshlrev_b32 v{vHP+5}, 4, v103
    v_add_u32 v102, 4, v102
    v_xor_b32 v103, v101, v102
    v_lshlrev_b32 v{vHP+3}, 4, v103
    v_lshlrev_b32 v{vHP+7}, 4, v103
    v_mov_b32 v{vX6}, 0
    v_mov_b32 v{vX6+1}, 0
    v_mov_b32 v{vX6+2}, 0
    v_mov_b32 v{vX6+3}, 0
    v_mfma_f32_32x32x16_bf16 v[{vD2}:{vD2+15}], v[{vX6}:{vX6+3}], v[{vX6}:{vX6+3}], 0
    v_mfma_f32_32x32x16_bf16 v[{vD2+16}:{vD2+31}], v[{vX6}:{vX6+3}], v[{vX6}:{vX6+3}], 0
    """)
    if TBK in ABL:
        a(f'''
        s_lshr_b32 s54, s2, 3
        s_mul_i32 s54, s54, 391
        s_lshl_b32 s55, s{sV}, 6
        v_add_u32 v100, s55, v1
        v_cmp_gt_u32 vcc, 391, v100
        v_add_u32 v100, s54, v100
        v_mov_b32 v101, 0
        v_mov_b32 v102, -1
        v_cndmask_b32 v100, v102, v100, vcc
        buffer_load_dword v52, v[100:101], s[{sHD}:{sHD+3}], 0 idxen offen
        ''')
    st(18)
    st(1)
    a(f's_waitcnt vmcnt({min(PE,9)+(1 if TBK in ABL else 0)})')
    st(19)
    a.label('L2_counts')
    a(f"""
    v_alignbit_b32 v100, v5, v4, 16
    v_alignbit_b32 v101, v6, v5, 16
    v_alignbit_b32 v102, v7, v6, 16
    v_alignbit_b32 v103, v8, v7, 16
    v_and_b32 v105, 0xffff, v4
    v_sub_u32 v104, v8, v105
    s_sub_u32 s54, s{sW1}, s{sW0}
    v_subrev_u32 v106, s{sW0}, v3
    v_cmp_gt_u32 vcc, s54, v106
    s_mov_b32 s55, {CH*4}
    v_lshlrev_b32 v107, 2, v105
    v_lshl_add_u32 v107, v9, 4, v107
    v_cndmask_b32 v104, 0, v104, vcc
    v_lshlrev_b32 v109, 2, v9
    v_sub_u32 v109, v104, v109
    v_max_i32 v109, 0, v109
    v_mad_u32_u24 v107, v3, s55, v107
    """)
    for i in range(4):
        a(f'v_cmp_lt_u32 s[{90+2*i}:{91+2*i}], {8*i}, v109')
    for i in range(4):
        a(f's_mov_b64 exec, s[{90+2*i}:{91+2*i}]')
        a(f's_cbranch_execz L2_e{i}')
        a(f'buffer_load_dwordx4 v[{192+4*i}:{195+4*i}], v107, s[{sEN}:{sEN+3}], 0 offen offset:{32*i}')
        a.label(f'L2_e{i}')
    a('s_mov_b64 exec, -1')
    st(2)
    a(f"""
    v_pk_sub_u16 v100, v100, v4
    v_pk_sub_u16 v101, v101, v5
    v_pk_sub_u16 v102, v102, v6
    v_pk_sub_u16 v103, v103, v7
    v_cmp_eq_u32 s[56:57], 0, v9
    """)
    for q in range(4):
        a(f'v_cndmask_b32 v{100+q}, 0, v{100+q}, vcc')
    for q in range(5):
        a(f'v_cndmask_b32 v{112+q}, 0, v{100+q}, s[56:57]')
    for sh in (1,2,4,8):
        for q in range(5):
            a(f'v_add_u32_dpp v{112+q}, v{112+q}, v{112+q} row_shr:{sh} row_mask:0xf bank_mask:0xf')
    for q in range(5):
        a(f'v_add_u32_dpp v{112+q}, v{112+q}, v{112+q} row_bcast:15 row_mask:0xa bank_mask:0xf')
    for q in range(5):
        a(f'v_add_u32_dpp v{112+q}, v{112+q}, v{112+q} row_bcast:31 row_mask:0xc bank_mask:0xf')
    st(21)
    a(f"""
    s_lshl_b32 s54, s{sV}, 5
    s_add_u32 s54, s54, {L_WTOT}
    v_mov_b32 v117, s54
    s_mov_b32 s56, 0
    s_brev_b32 s57, 1
    s_mov_b64 exec, s[56:57]
    ds_write_b128 v117, v[112:115]
    ds_write_b32 v117, v116 offset:16
    s_mov_b64 exec, -1
    v_and_b32 v118, 7, v1
    v_lshlrev_b32 v118, 5, v118
    v_add_u32 v118, {L_WTOT}, v118
    s_waitcnt lgkmcnt(0)
    s_barrier
    ds_read_b128 v[120:123], v118
    ds_read_b32 v124, v118 offset:16
    """)
    st(3)
    a('s_waitcnt lgkmcnt(0)')
    for sh in (1,2,4):
        for q in range(5):
            a(f'v_add_u32_dpp v{120+q}, v{120+q}, v{120+q} row_shr:{sh} row_mask:0xf bank_mask:0xf')
    for q in range(5):
        a(f'v_readlane_b32 s{58+q}, v{120+q}, 7')
    a(f's_sub_u32 s54, s{sV}, 1')
    a(f's_max_i32 s54, s54, 0')
    for q in range(4):
        a(f'v_readlane_b32 s{64+q}, v{120+q}, s54')
    a(f's_cmp_eq_u32 s{sV}, 0')
    for q in range(4):
        a(f's_cselect_b32 s{64+q}, 0, s{64+q}')
    for q in range(4):
        a(f's_and_b32 s{68+2*q}, s{58+q}, 0xffff')
        a(f's_lshr_b32 s{69+2*q}, s{58+q}, 16')
    a('s_mov_b32 s84, 0')
    for g in range(8):
        a(f"""
        s_mov_b32 s{76+g}, s84
        s_add_u32 s54, s{68+g}, 31
        s_andn2_b32 s54, s54, 31
        s_add_u32 s84, s84, s54
        """)
    a(f"""
    s_max_u32 s54, s84, s62
    s_cmp_le_u32 s54, {CAP}
    s_cbranch_scc1 L2_fits
    s_add_u32 s{sW1}, s{sW0}, 1
    s_waitcnt vmcnt(0) lgkmcnt(0)
    s_branch L2_batch
    """)
    a.label('L2_fits')
    a(f"""
    s_cmp_eq_u32 s63, 1
    s_cbranch_scc1 L2_pidone
    """)
    if 'nopi' in ABL:
        a(f's_mov_b32 s{sG}, s{sV}')
    else:
        for g in range(8):
            a(f's_lshl_b32 s54, s{68+g}, 3')
            a(f's_add_u32 s{90+g}, s54, {7-g}')
            a(f'v_writelane_b32 v126, s{90+g}, {g}')
        a('v_mov_b32 v127, 0')
        for h in range(2):
            for k in range(4):
                pr=(56,58,54,64)[k] if False else None
            for k in range(4):
                a(f'v_cmp_gt_u32 s[{(54,56,58,60)[k]}:{(54,56,58,60)[k]+1}], s{90+4*h+k}, v126')
            for k in range(4):
                a(f'v_addc_co_u32 v127, vcc, 0, v127, s[{(54,56,58,60)[k]}:{(54,56,58,60)[k]+1}]')
        a(f"""
        s_sub_u32 s54, 11, s{sV}
        s_cmp_lt_u32 s{sV}, 4
        s_cselect_b32 s54, s{sV}, s54
        v_cmp_eq_u32 vcc, s54, v127
        s_nop 3
        s_and_b32 s54, vcc_lo, 0xff
        s_ff1_i32_b32 s{sG}, s54
        """)
    a(f"""
    s_mul_i32 s{sNODE0}, s2, {BN}
    s_add_u32 s{sNODE0}, s{sNODE0}, s{sG}
    """)
    a.label('L2_pidone')
    a(f's_mov_b32 s{sCNT}, s68')
    a(f's_mov_b32 s{sBASE}, s76')
    for g in range(1,8):
        a(f"""
        s_cmp_eq_u32 s{sG}, {g}
        s_cselect_b32 s{sCNT}, s{68+g}, s{sCNT}
        s_cselect_b32 s{sBASE}, s{76+g}, s{sBASE}
        """)
    a(f"""
    s_add_u32 s{sNT}, s{sCNT}, 31
    s_lshr_b32 s{sNT}, s{sNT}, 5
    """)
    for q in range(4):
        a(f's_pack_ll_b32_b16 s{85+q}, s{76+2*q}, s{77+2*q}')
        a(f's_add_u32 s{85+q}, s{85+q}, s{64+q}')
        a(f's_add_u32 s{85+q}, s{85+q}, {CH | (CH<<16)}')
    a(f"""
    v_lshl_or_b32 v105, v105, 16, v105
    v_mul_u32_u24 v106, 0x100010, v9
    """)
    for q in range(4):
        a(f"""
        v_sub_u32 v{112+q}, v{112+q}, v{100+q}
        v_add_u32 v{112+q}, s{85+q}, v{112+q}
        v_sub_u32 v{120+q}, v{4+q}, v105
        v_sub_u32 v{112+q}, v{112+q}, v{120+q}
        v_lshl_add_u32 v{112+q}, v{112+q}, 2, v106
        """)
    a(f"""
    v_lshlrev_b32 v108, 4, v0
    v_add_u32 v108, {L_GTAB}, v108
    ds_write_b128 v108, v[112:115]
    v_mov_b32 v104, v109
    s_mov_b32 s54, {CH*32}
    v_mul_lo_u32 v110, v3, s54
    v_mov_b32 v111, {4*CH+4*CAP}
    v_lshlrev_b32 v96, 4, v1
    s_lshl_b32 s58, s{sV}, 10
    v_add_u32 v96, s58, v96
    s_waitcnt vmcnt(0)
    """)
    st(4)
    if PE<10:
        a(f"""
        v_lshlrev_b32 v96, 4, v1
        s_lshl_b32 s58, s{sV}, 10
        v_add_u32 v96, s58, v96
        """)
        for r in range(PE,10):
            if r==9:
                a(f's_cmp_ge_u32 s{sV}, 2\ns_cbranch_scc1 L2_posdone2')
            a(f"""
            s_add_u32 m0, s58, {L_RING+8192*r}
            v_add_u32 v97, {8192*r}, v96
            buffer_load_dwordx4 v97, s[{sPOS}:{sPOS+3}], 0 offen lds
            """)
        a.label('L2_posdone2')
    a(f"""
    s_cmp_eq_u32 s63, 1
    s_cbranch_scc1 L2_noA
    s_lshl_b32 s54, s{sV}, 10
    s_add_u32 s55, s54, {L_RING+75776}
    s_add_u32 s54, s54, {L_AST-6*1024}
    s_cmp_lt_u32 s{sV}, 6
    s_cselect_b32 s62, s55, s54
    v_lshrrev_b32 v120, 3, v1
    v_lshlrev_b32 v120, 3, v120
    v_add_u32 v121, s{sG}, v120
    v_add_u32 v120, s{sNODE0}, v120
    v_cmp_gt_u32 vcc, {BN}, v121
    v_mov_b32 v122, -1
    v_and_b32 v123, 7, v1
    v_lshlrev_b32 v123, 4, v123
    v_cndmask_b32 v122, v122, v120, vcc
    s_mov_b32 m0, s62
    s_nop 0
    buffer_load_dwordx4 v[122:123], s[{sTA}:{sTA+3}], 0 idxen offen lds
    """)
    a.label('L2_noA')
    st(20)
    def quad(qreg, i, dyn=False):
        for u in range(4):
            a(f'v_lshrrev_b32 v{140+u}, 29, v{qreg+u}')
            a(f'v_lshl_add_u32 v{140+u}, v{140+u}, 1, v108')
            a(f'ds_read_u16 v{144+u}, v{140+u}')
        for u in range(4):
            if dyn: a(f'v_cmp_lt_u32 s[{90+2*u}:{91+2*u}], {u}, v104')
            else:   a(f'v_cmp_lt_u32 s[{90+2*u}:{91+2*u}], {8*i+u}, v104')
        a('s_waitcnt lgkmcnt(0)')
        for u in range(4):
            if dyn: a(f'v_add_u32 v{144+u}, v{144+u}, v149')
            a(f'v_cndmask_b32 v{144+u}, v111, v{144+u}, s[{90+2*u}:{91+2*u}]')
        ko = 0 if dyn else 8*i
        for u in range(4):
            a(f'ds_write_b32 v{144+u}, v{qreg+u} offset:{L_R0-4*CH+4*(ko+u)}')
            a(f'ds_write_b32 v{144+u}, v110 offset:{L_S-4*CH+4*(ko+u)}')
    for i in range(4):
        quad(192+4*i, i)
        a(f'v_cmp_lt_u32 vcc, {8*(i+1)}, v104')
        a('s_cbranch_vccz L2_scat_done')
    a(f'''
    v_subrev_u32 v104, 32, v104
    v_cmp_gt_i32 vcc, 0, v104
    v_mov_b32 v149, 128
    v_add_u32 v107, 128, v107
    v_cndmask_b32 v104, v104, 0, vcc
    ''')
    a.label('L2_scat_loop')
    a(f'buffer_load_dwordx4 v[192:195], v107, s[{sEN}:{sEN+3}], 0 offen')
    a('s_waitcnt vmcnt(0)')
    quad(192, 0, dyn=True)
    a(f'''
    v_subrev_u32 v104, 8, v104
    v_add_u32 v149, 32, v149
    v_add_u32 v107, 32, v107
    v_cmp_gt_i32 vcc, 0, v104
    s_nop 1
    v_cndmask_b32 v104, v104, 0, vcc
    v_cmp_lt_u32 vcc, 0, v104
    s_cbranch_vccnz L2_scat_loop
    ''')
    a.label('L2_scat_done')
    st(5)
    a('''
    s_waitcnt vmcnt(0) lgkmcnt(0)
    s_barrier
    ''')
    st(6)
    a(f"""
    v_lshrrev_b32 v100, 2, v1
    v_lshlrev_b32 v100, 3, v100
    v_add_u32 v100, s{sNODE0}, v100
    v_mul_u32_u24 v100, 6, v100
    v_and_b32 v102, 3, v1
    v_lshl_add_u32 v100, v102, 1, v100
    v_add_u32 v100, {L_RING}, v100
    ds_read_u16 v101, v100
    s_cmp_eq_u32 s63, 1
    s_cbranch_scc1 L2_noC
    s_mov_b32 s63, 1
    v_lshlrev_b32 v96, 4, v1
    v_add_u32 v96, {L_WST}, v96
    ds_read_b128 v[{vW3}:{vW3+3}], v96
    ds_read_b128 v[{vW3+4}:{vW3+7}], v96 offset:1024
    v_and_b32 v120, 31, v1
    v_lshrrev_b32 v121, 5, v1
    v_lshlrev_b32 v122, 2, v120
    v_lshl_add_u32 v122, v121, 9, v122
    v_add_u32 v122, s62, v122
    """)
    for q in range(4):
        a(f'ds_read_b32 v{40+q}, v122 offset:{128*q}')
    a(f"""
    v_lshlrev_b32 v120, 3, v120
    v_add_u32 v120, {L_WST+2048}, v120
    ds_read_b64 v[44:45], v120
    v_cmp_gt_u32 vcc, 32, v1
    s_waitcnt lgkmcnt(0)
    v_cndmask_b32 v44, v44, 0, vcc
    v_cndmask_b32 v45, v45, 0, vcc
    """)
    for q in range(4):
        a(f'v_and_b32 v{vW6+q}, 0xffff, v{40+q}')
        a(f'v_lshrrev_b32 v{vW6+4+q}, 16, v{40+q}')
    a(f"""
    v_or_b32 v{vW6+3}, v{vW6+3}, v44
    v_or_b32 v{vW6+7}, v{vW6+7}, v45
    """)
    a.label('L2_noC')
    a(f"""
    s_lshl_b32 s54, s{sV}, 7
    s_add_u32 s54, s54, {L_PD}
    v_lshlrev_b32 v97, 2, v1
    v_add_u32 v97, s54, v97
    s_waitcnt lgkmcnt(0)
    v_lshlrev_b32 v101, 16, v101
    s_mov_b32 exec_hi, 0
    ds_write_b32 v97, v101
    s_mov_b64 exec, -1
    """)
    a(f'''
    s_lshl_b32 s54, s{sV}, 7
    s_add_u32 s54, s54, {L_PD}
    v_mov_b32 v98, s54
    v_mov_b32 v99, {L_RING}
    v_add_u32 v96, s{sBASE}, v1
    v_mov_b32 v97, v1
    s_mov_b32 s{sT}, 0
    s_mov_b32 s55, 0xffff0000
    s_movk_i32 s56, 0x7fff
    s_mov_b32 s{sHD+2}, {N}
    s_mov_b32 s{sEA+2}, {E*32}
    ''')
    a(f'''
    s_lshl_b32 s54, s{sNT}, 5
    s_sub_u32 s54, s54, 32
    v_add_u32 v100, s54, v1
    v_cmp_le_u32 s[58:59], s{sCNT}, v100
    v_cmp_gt_u32 vcc, 32, v1
    s_and_b64 vcc, vcc, s[58:59]
    s_cmp_eq_u32 s{sNT}, 0
    s_cbranch_scc1 L2_nodummy
    s_and_saveexec_b64 s[58:59], vcc
    s_cbranch_execz L2_dummy_restore
    v_add_u32 v100, s{sBASE}, v100
    v_lshlrev_b32 v101, 2, v100
    v_mov_b32 v102, 28
    ds_write_b32 v101, v102 offset:{L_R0}
    v_lshlrev_b32 v101, 1, v100
    v_mov_b32 v102, 0
    v_mov_b32 v103, 0
    ds_write_b16 v101, v102 offset:{L_RS}
    v_lshlrev_b32 v101, 3, v100
    ds_write_b64 v101, v[102:103] offset:{L_G}
    ''')
    a.label('L2_dummy_restore')
    a('s_mov_b64 exec, s[58:59]')
    a.label('L2_nodummy')
    NI=4
    a.label('L2_geo_loop')
    a(f'''
    s_cmp_ge_u32 s{sT}, s{sCNT}
    s_cbranch_scc1 L2_geo_done
    ''')
    def R(it,k): return 112+20*it+k
    for it in range(NI):
        a(f'''
        v_add_u32 v{R(it,0)}, {64*it}, v96
        v_lshlrev_b32 v{R(it,0)}, 2, v{R(it,0)}
        ds_read_b32 v{R(it,1)}, v{R(it,0)} offset:{L_R0}
        ds_read_b32 v{R(it,2)}, v{R(it,0)} offset:{L_S}
        ''')
    for it in range(NI):
        a(f'''
        v_add_u32 v{R(it,16)}, {64*it}, v97
        v_cmp_gt_u32 s[{90+2*it}:{91+2*it}], s{sCNT}, v{R(it,16)}
        ''')
    for it in range(NI):
        e=R(it,1); wb=R(it,2)
        a(f's_waitcnt lgkmcnt({2*(NI-1-it)+2*it})')
        a(f'''
        v_bfe_u32 v{R(it,3)}, v{e}, 15, 14
        v_and_b32 v{R(it,4)}, 7, v{e}
        v_mad_u32_u24 v{R(it,5)}, v{R(it,3)}, 6, v99
        v_lshl_add_u32 v{R(it,7)}, v{R(it,4)}, 4, v98
        v_and_b32 v{R(it,5)}, -4, v{R(it,5)}
        ds_read_b96 v[{R(it,8)}:{R(it,10)}], v{R(it,7)}
        ds_read2_b32 v[{R(it,12)}:{R(it,13)}], v{R(it,5)} offset1:1
        v_and_b32 v{R(it,5)}, s56, v{e}
        v_lshl_add_u32 v{wb}, v{R(it,5)}, 2, v{wb}
        v_lshlrev_b32 v{R(it,6)}, 4, v{R(it,3)}
        ''')
    if 'nopf' not in ABL:
        a(f'''
        s_cmp_lg_u32 s{sT}, 0
        s_cbranch_scc1 L2_nopf
        ''')
        a(f'''
        v_and_b32 v48, s{sMK}, v{R(0,2)}
        v_mov_b32 v51, 0
        v_mov_b32 v50, v{R(0,3)}
        s_mov_b32 exec_hi, {-1 if PF2K in ABL else 0}
        buffer_load_dword v48, v48, s[{sEA}:{sEA+3}], 0 offen
        s_mov_b32 exec_hi, 0
        buffer_load_dword v49, v[50:51], s[{sHD}:{sHD+3}], 0 idxen offen
        s_mov_b64 exec, -1
        ''')
        a.label('L2_nopf')
    for it in range(NI):
        pd=R(it,8); ps=R(it,12); sh=R(it,6); t0=R(it,4); t1=R(it,5); t2=R(it,7); o=R(it,14); t3=R(it,17)
        a(f's_waitcnt lgkmcnt({2*(NI-1-it)+3*it})')
        a(f'''
        v_alignbit_b32 v{t0}, v{ps+1}, v{ps}, v{sh}
        v_lshrrev_b32 v{t2}, v{sh}, v{ps+1}
        v_lshlrev_b32 v{t1}, 16, v{t0}
        v_and_b32 v{t0}, s55, v{t0}
        v_lshlrev_b32 v{t2}, 16, v{t2}
        v_sub_f32 v{t1}, v{pd}, v{t1}
        v_sub_f32 v{t0}, v{pd+1}, v{t0}
        v_sub_f32 v{t2}, v{pd+2}, v{t2}
        v_mul_f32 v{t3}, v{t1}, v{t1}
        v_cvt_pk_bf16_f32 v{o+1}, v{t0}, v{t2}
        v_fmac_f32 v{t3}, v{t0}, v{t0}
        v_fmac_f32 v{t3}, v{t2}, v{t2}
        v_lshrrev_b32 v{t0}, 1, v{R(it,0)}
        v_cvt_pk_bf16_f32 v{o}, v{t3}, v{t1}
        v_lshlrev_b32 v{t2}, 1, v{R(it,0)}
        s_mov_b64 exec, s[{90+2*it}:{91+2*it}]
        ds_write_b32 v{R(it,0)}, v{R(it,2)} offset:{L_R0}
        ds_write_b16 v{t0}, v{R(it,3)} offset:{L_RS}
        ds_write_b64 v{t2}, v[{o}:{o+1}] offset:{L_G}
        s_mov_b64 exec, -1
        ''')
    a(f'''
    v_add_u32 v96, {64*NI}, v96
    v_add_u32 v97, {64*NI}, v97
    s_add_u32 s{sT}, s{sT}, {64*NI}
    s_branch L2_geo_loop
    ''')
    a.label('L2_geo_done')
    a(f"""
    v_lshrrev_b32 v97, 3, v1
    v_add_u32 v97, s{sBASE}, v97
    v_lshlrev_b32 v97, 1, v97
    v_add_u32 v{vRSa}, {L_RS}, v97
    v_lshrrev_b32 v97, 1, v1
    v_add_u32 v97, s{sBASE}, v97
    v_lshlrev_b32 v97, 2, v97
    v_add_u32 v{vR0a}, {L_R0}, v97
    v_and_b32 v97, 31, v1
    v_add_u32 v97, s{sBASE}, v97
    v_lshlrev_b32 v98, 2, v97
    v_add_u32 v{vR0e}, {L_R0}, v98
    v_lshrrev_b32 v98, 5, v1
    v_lshlrev_b32 v98, 2, v98
    v_lshl_add_u32 v98, v97, 3, v98
    v_add_u32 v{vGe}, {L_G}, v98
    s_mov_b32 s{sT}, 0
    s_sub_u32 s86, s{sNT}, 3
    s_sub_u32 s87, s{sNT}, 1
    """)
    for i in range(4): a(f'ds_read_u16 v{vHP+2*i}, v{vRSa} offset:{16*i}')
    a(f'ds_read_b32 v{vEAi}, v{vR0a}')
    a(f'ds_read_b32 v{vR0}, v{vR0e}')
    a(f'ds_read_b32 v{vG}, v{vGe}')
    if 'fprio' in ABL:
        PER=optl('per',[12])[0]
        a(f"""
        v_cvt_f32_u32 v96, s{sNT}
        v_rcp_f32 v96, v96
        s_nop 0
        v_mul_f32 v96, {f32bits(float(PER*65536*(2 if TRIMK in ABL else 1)))}, v96
        v_cvt_u32_f32 v96, v96
        s_nop 0
        v_readfirstlane_b32 s85, v96
        s_mov_b32 s84, 0
        s_sub_u32 s84, s84, s85
        """)
    a(f"""
    s_lshl_b32 s54, s{sV}, 11
    s_add_u32 s54, s54, {L_S}
    v_lshlrev_b32 v96, 4, v1
    v_add_u32 v96, s54, v96
    v_mov_b32 v100, 0
    v_mov_b32 v101, 0
    v_mov_b32 v102, 0
    v_mov_b32 v103, 0
    v_and_or_b32 v{vEAo}, v{vEAi}, s{sMK}, v{vEAc}
    s_waitcnt lgkmcnt(0)
    s_barrier
    """)
    st(7)
    a(f"""
    ds_write_b128 v96, v[100:103]
    ds_write_b128 v96, v[100:103] offset:1024
    """)
    if 'lone' in ABL:
        a(f's_cmp_ge_u32 s{sV}, 4\ns_cselect_b32 s{sNT}, 0, s{sNT}')
    a(f"""
    s_cmp_eq_u32 s{sNT}, 0
    s_cbranch_scc1 L2_notiles
    """)
    def idx_reads(toff):
        return [f'ds_read_u16 v{vHP+2*i}, v{vRSa} offset:{64*toff+16*i}' for i in range(4)] + \
               [f'ds_read_b32 v{vEAi}, v{vR0a} offset:{128*toff}']
    def rec_reads(toff):
        return [f'ds_read_b32 v{vR0}, v{vR0e} offset:{128*toff}', f'ds_read_b32 v{vG}, v{vGe} offset:{256*toff}']
    def srd_select(delta):
        return [f's_add_u32 s54, s{sT}, {delta}\ns_cmp_lt_u32 s54, s{sNT}\ns_cselect_b32 s{sHD+2}, {NH_}, 0\ns_cselect_b32 s{sEA+2}, {NE_}, 0']
    def dma2(slot):
        r=[(f'v_and_or_b32 v{vEAo}, v{vEAi}, s{sMK}, v{vEAc}\ns_add_u32 m0, s{sRB}, {slot*SLOT+4096}', f'buffer_load_dwordx4 v{vEAo}, s[{sEA}:{sEA+3}], 0 offen{EAF} lds')]
        for i in range(4):
            r.append((f's_add_u32 m0, s{sRB}, {slot*SLOT+1024*i}', f'buffer_load_dwordx4 v[{vHP+2*i}:{vHP+2*i+1}], s[{sHD}:{sHD+3}], 0 idxen offen{HF} lds'))
        return r
    def dma(slot):
        return [x+'\n'+y for x,y in dma2(slot)]
    def x_reads(slot):
        return [f'ds_read_b128 v[{vX+4*s}:{vX+4*s+3}], v{vHA+s} offset:{slot*SLOT}' for s in range(4)] + \
               [f'ds_read_b128 v[{vXE}:{vXE+3}], v{vEAr} offset:{slot*SLOT}']
    def s_addr(): return [f'v_bitop3_b32 v{vA1}, v{vR0}, 28, v{vC1} bitop3:0x6a', f'v_bfi_b32 v{vS1}, v{vMK2}, v{vG}, v{vOne}', f'v_perm_b32 v{vS2}, v{vG}, v{vG}, s{sSEL}']
    def s_writes(): return [f'ds_write_b32 v{vA1}, v{vS1}', f'ds_write_b32 v{vCD}, v{vS2}']
    def x6_read(): return [f'ds_read_b128 v[{vX6}:{vX6+3}], v{vX6r}']
    def sf_reads():
        r=[]
        for s2 in range(2):
            r.append(f'ds_read_b64_tr_b16 v[{vSF+4*s2}:{vSF+4*s2+1}], v{vSTa} offset:{1024*s2}')
            r.append(f'ds_read_b64_tr_b16 v[{vSF+4*s2+2}:{vSF+4*s2+3}], v{vSTb} offset:{1024*s2}')
        return r
    def s_restore(): return [f'ds_write_b32 v{vA1}, v{vZero}']
    def mfma1(dst):
        r=[]
        for blk in range(2):
            D=f'v[{dst+16*blk}:{dst+16*blk+15}]'
            for sp in range(2):
                C = D if sp>0 else '0'
                s_=2*blk+sp
                r.append(f'v_mfma_f32_32x32x16_bf16 {D}, v[{vX+4*s_}:{vX+4*s_+3}], v[{vI+4*sp}:{vI+4*sp+3}], {C}')
            r.append(f'v_mfma_f32_32x32x16_bf16 {D}, v[{vXE}:{vXE+3}], v[{vW3+4*blk}:{vW3+4*blk+3}], {D}')
            r.append(f'v_mfma_f32_32x32x16_bf16 {D}, v[{vX6}:{vX6+3}], v[{vW6+4*blk}:{vW6+4*blk+3}], {D}')
        return r
    ONE=f'v[{vONE}:{vONE+3}]'
    def plus1(blk):
        Eb=f'v[{vE+16*blk}:{vE+16*blk+15}]'
        return f'v_mfma_f32_32x32x16_bf16 {Eb}, {ONE}, {ONE}, {Eb}'
    def mfma2(cur,blk,s2):
        D=f'v[{vD2+16*blk}:{vD2+16*blk+15}]'; m=cur+8*blk+4*s2
        return f'v_mfma_f32_32x32x16_bf16 {D}, v[{m}:{m+3}], v[{vSF+4*s2}:{vSF+4*s2+3}], {D}'
    def keep(x):
        if 'nomfma' in ABL and x.startswith('v_mfma'): return False
        if 'nolds' in ABL and x.startswith('ds_'): return False
        if 'nodma' in ABL and 'buffer_load' in x: return False
        if 'notrans' in ABL and x.startswith(('v_exp','v_rcp')): return False
        if 'novalu' in ABL and x.startswith(('v_exp','v_rcp','v_mul','v_cvt','v_pk_mul')): return False
        return True
    def emit(backbone, inserts):
        backbone=[x if keep(x) else 's_nop 0' for x in backbone]
        inserts={k:[x for x in v if keep(x)] for k,v in inserts.items()}
        for k_ in sorted(k for k in inserts if k<0):
            for s_ in inserts[k_]: a(s_)
        for i,ins in enumerate(backbone):
            a(ins)
            for s_ in inserts.get(i,[]): a(s_)
    nlab=[0]
    PK='pk' in ABL
    DMAPOS=optl('dma',[37,48,60,70,82] if PK else [41,52,63,76,92])
    M1POS=optl('m1',[37,40,43,46,49,52,55,58] if PK else [42,46,50,54,58,62,68,74])
    SFPOS=optl('sf',[0,2,4,6]); RSPOS=optl('rs',[8])[0]; SAPOS=optl('sa',[9,10,11]); SWPOS=optl('sw',[12,13]); X6POS=optl('x6',[14])[0]
    VMPOS=optl('vm',[16])[0]; XPOS=optl('x',[16,18,20,22,24]); RECPOS=optl('rec',[26,27]); IDXPOS=optl('idx',[28,29,30,31,32])
    LGPOS=optl('lg',[36] if PK else [40])[0]; M2POS=optl('m2',[85,89,93,95] if PK else [89,95,111,111]); P1POS=optl('p1',[17,33])
    def body(p, steady, extra_first=None):
        cur=vD1[p]; nxt=vD1[1-p]
        bb=[]
        for blk in range(2):
            bb += [f'v_exp_f32 v{vE+16*blk+i}, v{cur+16*blk+i}' for i in range(16)]
        for blk in range(2):
            bb += [f'v_rcp_f32 v{vE+16*blk+i}, v{vE+16*blk+i}' for i in range(16)]
        if 'pk' in ABL:
            bb += [f'v_pk_mul_f32 v[{vE+2*i}:{vE+2*i+1}], v[{vE+2*i}:{vE+2*i+1}], v[{cur+2*i}:{cur+2*i+1}]' for i in range(16)]
            bb += [f'v_cvt_pk_bf16_f32 v{cur+q}, v{vE+2*q}, v{vE+2*q+1}' for q in range(16)]
        else:
            bb += [f'v_mul_f32 v{vE+i}, v{vE+i}, v{cur+i}' for i in range(16)]
            bb += [f'v_cvt_pk_bf16_f32 v{cur+q}, v{vE+2*q}, v{vE+2*q+1}' for q in range(8)]
            bb += [f'v_mul_f32 v{vE+16+i}, v{vE+16+i}, v{cur+16+i}' for i in range(16)]
            bb += [f'v_cvt_pk_bf16_f32 v{cur+8+q}, v{vE+16+2*q}, v{vE+16+2*q+1}' for q in range(8)]
        ins={}
        def put(pos,x):
            ins.setdefault(pos,[]).append(x)
        if not ('trim' in ABL and steady): put(-100,'s_waitcnt lgkmcnt(0)')
        if 'prio' in ABL:
            put(-99,f'''s_and_b32 s54, s{sT}, 2
            s_cmp_eq_u32 s54, 0
            s_cbranch_scc1 Lp{nlab[0]}a
            s_setprio {1-p}
            s_branch Lp{nlab[0]}b
            Lp{nlab[0]}a:
            s_setprio {3-p}
            Lp{nlab[0]}b:''')
            nlab[0]+=1
        if 'fprio' in ABL and not ('trim' in ABL and p==1):
            n=nlab[0]
            put(-99,f'''s_add_u32 s84, s84, s85
            s_bitcmp1_b32 s84, 17
            s_cbranch_scc1 Lp{n}h
            s_bitcmp1_b32 s84, 16
            s_cbranch_scc1 Lp{n}a
            s_setprio 3
            s_branch Lp{n}z
            Lp{n}a:
            s_setprio 2
            s_branch Lp{n}z
            Lp{n}h:
            s_bitcmp1_b32 s84, 16
            s_cbranch_scc1 Lp{n}b
            s_setprio 1
            s_branch Lp{n}z
            Lp{n}b:
            s_setprio 0
            Lp{n}z:''')
            nlab[0]+=1
        if steady and p==0:
            n=nlab[0]; nlab[0]+=1
            put(0,f's_cmp_lg_u32 s{sT}, 0\ns_cbranch_scc1 Ld{n}\n'+'\n'.join(dma(0))+f'\nLd{n}:')
        for x,q in zip(sf_reads(),SFPOS): put(q,x)
        put(RSPOS,s_restore()[0])
        put(P1POS[0],plus1(0))
        put(P1POS[1],plus1(1))
        if steady:
            for x,q in zip(s_addr(),SAPOS): put(q,x)
            for x,q in zip(s_writes(),SWPOS): put(q,x)
            put(X6POS,x6_read()[0])
            put(VMPOS,'s_waitcnt vmcnt(5)')
            for x,q in zip(x_reads(1-p),XPOS): put(q,x)
            for x,q in zip(rec_reads(p+2),RECPOS): put(q,x)
            for x,q in zip(idx_reads(p+3),IDXPOS): put(q,x)
            if 'trim' in ABL:
                n=nlab[0]; nlab[0]+=1
                put(LGPOS-2,f's_cmp_lt_i32 s{sT}, s86\ns_cbranch_scc1 Lz{n}\ns_mov_b32 s{sHD+2}, 0\ns_mov_b32 s{sEA+2}, 0\nLz{n}:')
            else: put(LGPOS-2,srd_select(3)[0])
            put(LGPOS,'s_waitcnt lgkmcnt(0)')
            for (x,y),q in zip(dma2(1-p),DMAPOS):
                if q>0 and q-1>LGPOS-1 and 'trim' in ABL: put(q-1,x); put(q,y)
                else: put(q,x+'\n'+y)
            for x,q in zip(mfma1(nxt),M1POS): put(q,x)
        for (b_,s_),q in zip(((0,0),(0,1),(1,0),(1,1)),M2POS): put(q,mfma2(cur,b_,s_))
        emit(bb,ins)
    def late_consts():
        a(f'''
        v_and_b32 v97, 31, v1
        v_lshrrev_b32 v98, 5, v1
        v_bfe_u32 v99, v97, 1, 3
        v_lshlrev_b32 v100, 7, v97
        v_add_u32 v100, s{sRB}, v100
        ''')
        for s in range(4):
            a(f'''
            v_add_u32 v101, {2*s}, v98
            v_xor_b32 v101, v101, v99
            v_lshl_add_u32 v{vHA+s}, v101, 4, v100
            ''')
        a(f'''
        v_lshrrev_b32 v101, 4, v97
        v_xor_b32 v101, v101, v98
        v_lshlrev_b32 v101, 4, v101
        v_lshl_add_u32 v101, v97, 5, v101
        v_add_u32 v101, s{sRB}, v101
        v_add_u32 v{vEAr}, 4096, v101
        s_lshl_b32 s54, s{sV}, 11
        s_add_u32 s54, s54, {L_S}
        v_lshlrev_b32 v101, 6, v97
        v_add_u32 v101, s54, v101
        v_bfe_u32 v102, v97, 2, 2
        v_xor_b32 v103, v98, v102
        v_lshl_add_u32 v{vX6r}, v103, 4, v101
        v_lshlrev_b32 v103, 1, v98
        v_xor_b32 v104, v103, v102
        v_lshl_add_u32 v{vC1}, v104, 4, v101
        v_add_u32 v103, 1, v103
        v_xor_b32 v104, v103, v102
        v_lshl_add_u32 v104, v104, 4, v101
        v_add_u32 v{vCD}, 12, v104
        v_cmp_gt_u32 vcc, 32, v1
        v_mov_b32 v103, 0xffff0000
        v_mov_b32 v104, -1
        v_cndmask_b32 v{vMK2}, v104, v103, vcc
        v_mov_b32 v{vOne}, 0x3f80
        v_mov_b32 v{vONE+1}, 0
        v_mov_b32 v{vONE+2}, 0
        v_mov_b32 v{vONE+3}, 0
        v_cndmask_b32 v{vONE}, 0, v{vOne}, vcc
        v_lshlrev_b32 v101, 3, v98
        v_sub_u32 v101, v97, v101
        v_and_b32 v102, 1, v101
        v_lshlrev_b32 v102, 4, v102
        v_lshlrev_b32 v102, v102, v{vOne}
        v_ashrrev_i32 v101, 1, v101
        ''')
        for k in range(8):
            q=8*(k>>2)+(k&3)
            a(f'v_cmp_eq_u32 s[{90+2*(k&3)}:{91+2*(k&3)}], {q}, v101')
            if (k&3)==3:
                for kk in range(k-3,k+1):
                    a(f'v_cndmask_b32 v{vI+kk}, 0, v102, s[{90+2*(kk&3)}:{91+2*(kk&3)}]')
        a(f'''
        v_and_b32 v101, 15, v1
        v_lshrrev_b32 v101, 2, v101
        v_lshl_add_u32 v101, v98, 2, v101
        v_lshlrev_b32 v101, 6, v101
        v_and_b32 v102, 1, v1
        v_lshl_add_u32 v101, v102, 3, v101
        v_add_u32 v101, s54, v101
        v_bfe_u32 v102, v1, 4, 1
        v_bfe_u32 v103, v1, 1, 1
        v_lshl_add_u32 v102, v102, 1, v103
        v_xor_b32 v103, v102, v98
        v_lshl_add_u32 v{vSTa}, v103, 4, v101
        v_add_u32 v103, 2, v98
        v_xor_b32 v103, v102, v103
        v_lshl_add_u32 v103, v103, 4, v101
        v_add_u32 v{vSTb}, 512, v103
        ''')

    a(f's_mov_b32 s{sHD+2}, {N}')
    a(f's_mov_b32 s{sEA+2}, {E*32}')
    for x in dma(0): a(x)
    st(13+18)
    for x in idx_reads(1): a(x)
    a(srd_select(1)[0])
    a('s_waitcnt lgkmcnt(0)')
    for x in dma(1): a(x)
    st(14)
    for x in idx_reads(2): a(x)
    a(srd_select(2)[0])
    late_consts()
    for x in s_addr(): a(x)
    for x in s_writes(): a(x)
    for x in x6_read(): a(x)
    st(15)
    a('s_waitcnt vmcnt(5)')
    st(30)
    for x in x_reads(0): a(x)
    for x in rec_reads(1): a(x)
    a('s_waitcnt lgkmcnt(0)')
    for x in mfma1(vD1[0]): a(x)
    st(8)
    stampc(a,12,vTM,98)
    if DEBUG_TM: a(f'v_writelane_b32 v{vTM}, s{sNT}, 22\nv_writelane_b32 v{vTM}, s{sG}, 23\ns_getreg_b32 s98, hwreg(HW_REG_HW_ID)\nv_writelane_b32 v{vTM}, s98, 24')
    JM=[0,1,4,5]
    RESV=[[232,233,234,236],[237,238,252,253]]
    WXV=[192,196,200,204,208,212,228,248]
    def epi_prefetch(p):
        nxt=vD1[1-p]
        r=[]
        r.append('v_lshlrev_b32 v10, 4, v1')
        for f in range(8):
            r.append(f'v_add_u32 v9, {(F_H1+f)*1024}, v10\nbuffer_load_dwordx4 v[{16+4*f}:{19+4*f}], v9, s[{sWF}:{sWF+3}], 0 offen')
        for f in range(8):
            r.append(f'v_add_u32 v9, {(F_H2+f)*1024}, v10\nbuffer_load_dwordx4 v[{nxt+4*f}:{nxt+4*f+3}], v9, s[{sWF}:{sWF+3}], 0 offen')
        r.append(f'v_lshrrev_b32 v7, 5, v1\nv_lshlrev_b32 v9, 7, v7\nv_add_u32 v9, {WXO}, v9')
        for f in range(8):
            r.append(f'buffer_load_dwordx4 v[{WXV[f]}:{WXV[f]+3}], v9, s[{sWF}:{sWF+3}], 0 offen offset:{16*f}')
        r.append(f'''
        v_bfe_u32 v9, v1, 1, 3
        v_lshlrev_b32 v9, 3, v9
        v_add_u32 v3, s{sG}, v9
        v_add_u32 v9, s{sNODE0}, v9
        v_cmp_gt_u32 vcc, {BN}, v3
        v_mov_b32 v4, -1
        v_lshlrev_b32 v7, 4, v7
        v_cndmask_b32 v6, v4, v9, vcc
        ''')
        for s_ in range(4):
            r.append(f'buffer_load_dwordx4 v[{48+4*s_}:{51+4*s_}], v[6:7], s[{sH}:{sH+3}], 0 idxen offen offset:{32*s_}')
        r.append(f'''
        v_lshrrev_b32 v9, 5, v1
        v_lshlrev_b32 v9, 4, v9
        v_and_b32 v3, 31, v1
        v_lshlrev_b32 v3, 1, v3
        ''')
        for m in range(4):
            r.append(f'''
            v_add_u32 v5, {8*JM[m]}, v9
            v_add_u32 v8, s{sG}, v5
            v_add_u32 v5, s{sNODE0}, v5
            v_cmp_gt_u32 vcc, {BN}, v8
            v_mov_b32 v{241+2*m}, v3
            s_nop 0
            v_cndmask_b32 v{240+2*m}, v4, v5, vcc
            ''')
        for m in range(4):
            r.append(f'buffer_load_ushort v{RESV[0][m]}, v[{240+2*m}:{241+2*m}], s[{sH}:{sH+3}], 0 idxen offen')
            r.append(f'buffer_load_ushort v{RESV[1][m]}, v[{240+2*m}:{241+2*m}], s[{sH}:{sH+3}], 0 idxen offen offset:64')
        r.append(f'''
        v_bfe_u32 v9, v1, 1, 3
        v_lshlrev_b32 v9, 3, v9
        v_add_u32 v3, s{sG}, v9
        v_add_u32 v9, s{sNODE0}, v9
        v_bfe_u32 v5, v1, 4, 1
        v_and_b32 v8, 1, v1
        v_lshl_add_u32 v5, v5, 1, v8
        v_cmp_gt_u32 vcc, {BN}, v3
        v_subrev_u32 v5, 1, v5
        v_cmp_gt_u32 s[56:57], 3, v5
        v_mul_u32_u24 v9, 6, v9
        s_and_b64 vcc, vcc, s[56:57]
        v_cmp_gt_u32 s[56:57], 32, v1
        v_lshl_add_u32 v9, v5, 1, v9
        v_mov_b32 v4, 0x7fffff00
        s_and_b64 vcc, vcc, s[56:57]
        v_cndmask_b32 v10, v4, v9, vcc
        buffer_load_ushort v11, v10, s[{sPOS}:{sPOS+3}], 0 offen
        ''')
        return r
    def epilogue(p):
        nxt=vD1[1-p]; cur=vD1[p]
        a(f's_mov_b32 s54, {f32bits(-math.log(2.0))}')
        for i in range(32):
            a(f'v_mul_f32 v{vD2+i}, s54, v{vD2+i}')
        pk=vE
        for blk in range(2):
            for q in range(8):
                a(f'v_cvt_pk_bf16_f32 v{pk+8*blk+q}, v{vD2+16*blk+2*q}, v{vD2+16*blk+2*q+1}')
        a('s_waitcnt vmcnt(0)')
        acc=cur
        a(f'v_mul_f32 v{acc}, v{vD2}, v{WXV[0]}')
        a(f'v_mul_f32 v{acc+1}, v{vD2+1}, v{WXV[0]+1}')
        for i in range(2,32):
            a(f'v_fmac_f32 v{acc+(i&1)}, v{vD2+i}, v{WXV[i>>2]+(i&3)}')
        a(f'v_add_f32 v{acc}, v{acc}, v{acc+1}')
        a(f'v_mov_b32 v{acc+1}, v{acc}')
        for b2 in range(2):
            D=f'v[{64+16*b2}:{79+16*b2}]'
            for s_ in range(4):
                C = D if s_>0 else '0'
                a(f'v_mfma_f32_32x32x16_bf16 {D}, v[{48+4*s_}:{51+4*s_}], v[{16+4*(2*s_+b2)}:{19+4*(2*s_+b2)}], {C}')
            for blk in range(2):
                for sp in range(2):
                    f=(blk*2+sp)*2+b2
                    a(f'v_mfma_f32_32x32x16_bf16 {D}, v[{pk+8*blk+4*sp}:{pk+8*blk+4*sp+3}], v[{nxt+4*f}:{nxt+4*f+3}], {D}')
        a(f'v_permlane32_swap_b32 v{acc}, v{acc+1}')
        a(f'''
        v_lshlrev_b32 v11, 16, v11
        v_add_f32 v{acc}, v{acc}, v{acc+1}
        v_add_f32 v11, v11, v{acc}
        v_cvt_pk_bf16_f32 v11, v11, v11
        buffer_store_short v11, v10, s[{sO1}:{sO1+3}], 0 offen
        ''')
        a(f's_mov_b32 s54, {f32bits(-LOG2E)}')
        T=vE+16
        for b2 in range(2):
            for m in range(4):
                a(f'v_mul_f32 v{T+4*b2+m}, s54, v{64+16*b2+2*m}')
        for k in range(8): a(f'v_exp_f32 v{T+k}, v{T+k}')
        for k in range(8): a(f'v_add_f32 v{T+k}, 1.0, v{T+k}')
        for k in range(8): a(f'v_rcp_f32 v{T+k}, v{T+k}')
        for b2 in range(2):
            for m in range(4):
                x=64+16*b2+2*m; t=T+4*b2+m; hh=RESV[b2][m]
                a(f'v_lshlrev_b32 v{hh}, 16, v{hh}')
                a(f'v_fma_f32 v{t}, v{x}, v{t}, v{hh}')
                a(f'v_cvt_pk_bf16_f32 v{t}, v{t}, v{t}')
        for b2 in range(2):
            for m in range(4):
                t=T+4*b2+m
                a(f'buffer_store_short v{t}, v[{240+2*m}:{241+2*m}], s[{sO0}:{sO0+3}], 0 idxen offen offset:{64*b2}')
        st(10)
        if DEBUG_TM: a('s_waitcnt vmcnt(0)')
        st(11)
        stamp_store(a,vTM,98,44,45,0x80000,sV,254)
        a('s_endpgm')
    for p in range(2):
        a.label(f'L2_s{p}')
        if 'trim' in ABL:
            a(f's_cmp_ge_i32 s{sT}, s87\ns_cbranch_scc1 L2_l{p}')
        else:
            a(f'''
            s_add_u32 s54, s{sT}, 1
            s_cmp_ge_u32 s54, s{sNT}
            s_cbranch_scc1 L2_l{p}
            ''')
        if DEBUG_TM and p==0:
            for tt,ix in ((2,25),(4,26),(6,27),(8,28),(10,29)):
                a(f's_cmp_lg_u32 s{sT}, {tt}\ns_cbranch_scc1 Lst{ix}')
                stampc(a,ix,vTM,98)
                a.label(f'Lst{ix}')
        body(p, True)
        a(f's_add_u32 s{sT}, s{sT}, 1')
        if p==1:
            a(f'''
            v_add_u32 v{vRSa}, 128, v{vRSa}
            v_add_u32 v{vR0a}, 256, v{vR0a}
            v_add_u32 v{vR0e}, 256, v{vR0e}
            v_add_u32 v{vGe}, 512, v{vGe}
            s_branch L2_s0
            ''')
    for p in range(2):
        a.label(f'L2_l{p}')
        a(f'''
        s_cmp_lt_u32 s{sW1}, {NCH}
        s_cbranch_scc1 L2_l{p}n
        ''')
        body(p, False, None) if False else None
        for x in epi_prefetch(p): a(x)
        body(p, False)
        st(9)
        stampc(a,13,vTM,98)
        epilogue(p)
        a.label(f'L2_l{p}n')
        body(p, False)
        a('s_branch L2_nextbatch')
    a.label('L2_notiles')
    a(f'''
    s_cmp_lt_u32 s{sW1}, {NCH}
    s_cbranch_scc1 L2_nextbatch
    ''')
    for x in epi_prefetch(0): a(x)
    st(9)
    epilogue(0)
    a.label('L2_nextbatch')
    a(f'''
    s_waitcnt vmcnt(0) lgkmcnt(0)
    s_mov_b32 s{sW0}, s{sW1}
    s_add_u32 s{sW1}, s{sW1}, 1
    s_branch L2_batch
    ''')
    a.label('L2_end')
    a('s_endpgm')
    return a.finalize(), 256, 102, L_END

def main():
    k1,v1,s1,l1 = gen_k1()
    k2,v2,s2,l2 = gen_k2()
    hdr = open('gather_scatter__cheap_equivariant_egnn__graph.s.ref').read().split('; Override launch')[0]
    out = hdr
    out += f'; @launch kernel=egnn_part_kernel grid=({NCH+1+NTW},1,1) block=(512,1,1) lds={l1}\n'
    out += f'; @launch kernel=egnn_main_kernel grid=({NBK},1,1) block=(512,1,1) lds={l2}\n'
    out += '.amdgcn_target "amdgcn-amd-amdhsa--gfx950"\n.text\n'
    for name,body in (('egnn_part_kernel',k1),('egnn_main_kernel',k2)):
        out += f'.globl {name}\n.p2align 8\n.type {name},@function\n' + body
    out += '.section .rodata,"a"\n'
    for name,nv,ns in (('egnn_part_kernel',v1,s1),('egnn_main_kernel',v2,s2)):
        acc=(nv+3)//4*4
        out += f'''.p2align 6
.amdhsa_kernel {name}
  .amdhsa_next_free_vgpr {nv}
  .amdhsa_next_free_sgpr {ns}
  .amdhsa_accum_offset {acc}
  .amdhsa_group_segment_fixed_size 0
  .amdhsa_kernarg_size 88
  .amdhsa_user_sgpr_count 2
  .amdhsa_user_sgpr_kernarg_segment_ptr 1
  .amdhsa_system_sgpr_workgroup_id_x 1
  .amdhsa_float_denorm_mode_32 3
.end_amdhsa_kernel
'''
    dst = [x for x in sys.argv[1:] if not x.startswith('--')]
    path = dst[0] if dst else 'gather_scatter__cheap_equivariant_egnn__graph.s'
    open(path,'w').write(out)
    print('wrote',path,len(out))
main()
```

```python
import sys, math
from asmlib import Asm

N=12500; E=800000; CH=3200; NCH=250; NBK=256; BN=49
ROW=4224
OFFS=0; ENT=0x110000; WF=0x420000; TA=0x500000; TB=0x700000; TM=0x900000
NF=18; WDO=NF*1024; WXO=NF*1024+256; WFSZ=NF*1024+512
NTW=98
CAP=3584
LOG2E=1.4426950408889634
def f32bits(x):
    import struct; return struct.unpack('<I',struct.pack('<f',x))[0]

DEBUG_TM = '--tm' in sys.argv
K1PRIO = '--nok1prio' not in sys.argv
TFIRST = '--tfirst' in sys.argv
SC1 = ' sc1' if '--sc1' in sys.argv else (' nt' if '--nt' in sys.argv else '')
PFN = int(([x[6:] for x in sys.argv if x.startswith('--pfn=')] or ['0'])[0])
PFK1 = 2 if PFN else 0

F_W3=0
F_H1=2
F_H2=10

def stamp(a, idx, vreg, sp):
    if not DEBUG_TM: return
    a(f'''
    s_memrealtime s[{sp}:{sp+1}]
    s_waitcnt lgkmcnt(0)
    v_writelane_b32 v{vreg}, s{sp}, {idx}
    ''')
def stampc(a, idx, vreg, sp):
    if not DEBUG_TM: return
    a(f'''
    s_memtime s[{sp}:{sp+1}]
    s_waitcnt lgkmcnt(0)
    v_writelane_b32 v{vreg}, s{sp}, {idx}
    ''')
def stamp_store(a, vreg, sp, ws_lo, ws_hi, region, wave_s, vt):
    if not DEBUG_TM: return
    a(f'''
    s_lshl_b32 s{sp}, s2, 3
    s_add_u32 s{sp}, s{sp}, s{wave_s}
    s_lshl_b32 s{sp}, s{sp}, 7
    s_add_u32 s{sp}, s{sp}, {TM+region}
    s_add_u32 s{sp}, s{ws_lo}, s{sp}
    s_addc_u32 s{sp+1}, s{ws_hi}, 0
    v_and_b32 v{vt}, 63, v0
    v_lshlrev_b32 v{vt}, 2, v{vt}
    s_mov_b32 exec_hi, 0
    global_store_dword v{vt}, v{vreg}, s[{sp}:{sp+1}]
    s_mov_b64 exec, -1
    ''')

def gen_k1():
    a=Asm()
    K1_STAGE=8192; K1_WTOT=24576
    a.label('egnn_part_kernel')
    a(f'''
    s_cmp_gt_u32 s2, {NCH+NTW}
    s_cbranch_scc1 L1_end
    v_lshrrev_b32 v2, 6, v0
    v_and_b32 v1, 63, v0
    s_load_dwordx4 s[4:7], s[0:1], 24
    s_load_dwordx2 s[8:9], s[0:1], 80
    s_load_dwordx2 s[34:35], s[0:1], 16
    v_readfirstlane_b32 s3, v2
    s_cmp_eq_u32 s2, {NTW if TFIRST else NCH}
    s_cbranch_scc1 L1_wprep
    s_cmp_{'lt' if TFIRST else 'gt'}_u32 s2, {NTW if TFIRST else NCH}
    s_cbranch_scc1 L1_tables
    s_sub_u32 s38, s2, {NTW+1 if TFIRST else 0}
    s_setprio {3 if K1PRIO else 0}
    ''')
    if DEBUG_TM: a('v_mov_b32 v70, 0')
    stamp(a,0,70,36)
    a(f'''
    v_lshlrev_b32 v3, 4, v0
    v_mov_b32 v4, 0
    v_mov_b32 v5, 0
    v_mov_b32 v6, 0
    v_mov_b32 v7, 0
    ds_write_b128 v3, v[4:7]
    s_mul_i32 s10, s38, {CH*4}
    s_mul_i32 s11, s38, {ROW}
    v_add_u32 v48, 8192, v3
    s_waitcnt lgkmcnt(0)
    s_add_u32 s12, s6, s10
    s_addc_u32 s13, s7, 0
    s_mov_b32 s14, {CH*4}
    s_mov_b32 s15, 0x20000
    s_add_u32 s16, s4, s10
    s_addc_u32 s17, s5, 0
    s_mov_b32 s18, {CH*4}
    s_mov_b32 s19, 0x20000
    buffer_load_dwordx4 v[8:11], v3, s[12:15], 0 offen
    buffer_load_dwordx4 v[12:15], v48, s[12:15], 0 offen
    buffer_load_dwordx4 v[16:19], v3, s[16:19], 0 offen
    buffer_load_dwordx4 v[20:23], v48, s[16:19], 0 offen
    ''')
    if PFK1:
        a(f'''
        s_mul_i32 s10, s38, {CH*32}
        s_add_u32 s32, s34, s10
        s_addc_u32 s33, s35, 0
        s_cmp_lt_u32 s38, {PFN}
        s_cselect_b32 s34, {CH*32}, 0
        s_mov_b32 s35, 0x20000
        v_lshlrev_b32 v64, 7, v0
        v_add_u32 v65, {512*128}, v64
        buffer_load_dword v66, v64, s[32:35], 0 offen
        ''')
        if PFK1>1: a('buffer_load_dword v67, v65, s[32:35], 0 offen')
        a(f's_mul_i32 s10, s38, {CH*4}')
    a(f'''
    s_add_u32 s24, s8, {OFFS}
    s_addc_u32 s25, s9, 0
    s_add_u32 s24, s24, s11
    s_addc_u32 s25, s25, 0
    s_mov_b32 s26, {ROW}
    s_mov_b32 s27, 0x20000
    s_add_u32 s28, s8, {ENT}
    s_addc_u32 s29, s9, 0
    s_add_u32 s28, s28, s10
    s_addc_u32 s29, s29, 0
    s_mov_b32 s30, {CH*4}
    s_mov_b32 s31, 0x20000
    s_mov_b32 s22, -{BN}
    v_mov_b32 v50, 1
    v_lshlrev_b32 v51, 5, v0
    v_add_u32 v52, 16384, v51
    s_barrier
    s_waitcnt vmcnt({2+PFK1})
    ''')
    stamp(a,1,70,36)
    def keyslot(i, dst, tmp):
        a(f'''
        v_mul_u32_u24 v{tmp}, 21400, v{dst}
        v_lshrrev_b32 v{tmp}, 20, v{tmp}
        v_mad_i32_i24 v{40+i}, v{tmp}, s22, v{dst}
        v_and_b32 v{tmp+1}, 7, v{40+i}
        v_lshl_or_b32 v{tmp}, v{tmp}, 3, v{tmp+1}
        v_lshlrev_b32 v{24+i}, 2, v{tmp}
        ''')
    for u in range(4):
        keyslot(u, 8+u, 54+2*u)
        a(f'ds_add_rtn_u32 v{32+u}, v{24+u}, v50')
    a('''
    v_cmp_gt_u32 vcc, 288, v0
    s_and_saveexec_b64 s[20:21], vcc
    s_cbranch_execz L1_skipB1
    ''')
    for u in range(4):
        keyslot(4+u, 12+u, 54+2*u)
        a(f'ds_add_rtn_u32 v{36+u}, v{28+u}, v50')
    a.label('L1_skipB1')
    a('s_mov_b64 exec, s[20:21]')
    a(f's_waitcnt vmcnt({PFK1})')
    for i in range(8):
        base = 51 if i<4 else 52
        a(f'''
        v_lshrrev_b32 v54, 3, v{40+i}
        v_lshl_or_b32 v54, v{40+i}, 29, v54
        v_lshl_or_b32 v54, v{16+i}, 15, v54
        v_add3_u32 v{40+i}, v54, v{base}, {8*(i%4)}
        ''')
    a('''
    s_waitcnt lgkmcnt(0)
    s_barrier
    ''')
    stamp(a,2,70,36)
    a('''
    ds_read_b128 v[8:11], v3
    s_waitcnt lgkmcnt(0)
    v_add_u32 v12, v8, v9
    v_add_u32 v13, v12, v10
    v_add_u32 v14, v13, v11
    v_mov_b32 v15, v14
    ''')
    for sh in (1,2,4,8):
        a(f'v_add_u32_dpp v15, v15, v15 row_shr:{sh} row_mask:0xf bank_mask:0xf')
    a('v_add_u32_dpp v15, v15, v15 row_bcast:15 row_mask:0xa bank_mask:0xf')
    a('v_add_u32_dpp v15, v15, v15 row_bcast:31 row_mask:0xc bank_mask:0xf')
    a(f'''
    s_lshl_b32 s10, s3, 2
    s_add_u32 s10, s10, {K1_WTOT}
    v_mov_b32 v16, s10
    s_mov_b32 s20, 0
    s_brev_b32 s21, 1
    s_mov_b64 exec, s[20:21]
    ds_write_b32 v16, v15
    s_mov_b64 exec, -1
    v_and_b32 v17, 7, v1
    v_lshlrev_b32 v17, 2, v17
    v_add_u32 v17, {K1_WTOT}, v17
    s_waitcnt lgkmcnt(0)
    s_barrier
    ds_read_b32 v18, v17
    v_cmp_gt_u32 vcc, s3, v1
    s_waitcnt lgkmcnt(0)
    v_cndmask_b32 v18, 0, v18, vcc
    ''')
    for sh in (1,2,4):
        a(f'v_add_u32_dpp v18, v18, v18 row_shr:{sh} row_mask:0xf bank_mask:0xf')
    a(f'''
    v_readlane_b32 s10, v18, 7
    v_sub_u32 v15, v15, v14
    v_add_u32 v8+0, s10, v15
    '''.replace('v8+0','v19'))
    a(f'''
    v_add_u32 v21, v19, v12
    v_add_u32 v22, v19, v13
    v_add_u32 v20, v19, v8
    v_mov_b32 v56, v19
    v_mov_b32 v57, v20
    v_mov_b32 v58, v21
    v_mov_b32 v59, v22
    ds_write_b128 v3, v[56:59]
    v_lshl_or_b32 v60, v20, 16, v19
    v_lshl_or_b32 v61, v22, 16, v21
    v_lshlrev_b32 v62, 3, v0
    buffer_store_dwordx2 v[60:61], v62, s[24:27], 0 offen{SC1}
    s_cmp_lg_u32 s3, 0
    s_cbranch_scc1 L1_nosent
    s_mov_b32 s10, {CH | (CH<<16)}
    v_mov_b32 v63, s10
    v_lshlrev_b32 v62, 2, v1
    v_add_u32 v62, 4096, v62
    v_cmp_gt_u32 vcc, 32, v1
    s_and_saveexec_b64 s[20:21], vcc
    buffer_store_dword v63, v62, s[24:27], 0 offen
    s_mov_b64 exec, s[20:21]
    ''')
    a.label('L1_nosent')
    a('''
    s_waitcnt lgkmcnt(0)
    s_barrier
    ''')
    stamp(a,3,70,36)
    for u in range(4):
        a(f'ds_read_b32 v{8+u}, v{24+u}')
    a('''
    v_cmp_gt_u32 vcc, 288, v0
    s_and_saveexec_b64 s[20:21], vcc
    s_cbranch_execz L1_skipB2
    ''')
    for u in range(4):
        a(f'ds_read_b32 v{12+u}, v{28+u}')
    a('s_waitcnt lgkmcnt(0)')
    for u in range(4):
        a(f'v_add_lshl_u32 v{12+u}, v{12+u}, v{36+u}, 2')
    for u in range(4):
        a(f'ds_write_b32 v{12+u}, v{44+u} offset:{K1_STAGE}')
    a.label('L1_skipB2')
    a('s_mov_b64 exec, s[20:21]')
    a('s_waitcnt lgkmcnt(0)')
    for u in range(4):
        a(f'v_add_lshl_u32 v{8+u}, v{8+u}, v{32+u}, 2')
    for u in range(4):
        a(f'ds_write_b32 v{8+u}, v{40+u} offset:{K1_STAGE}')
    a(f'''
    s_waitcnt lgkmcnt(0)
    s_barrier
    ds_read_b128 v[8:11], v3 offset:{K1_STAGE}
    ds_read_b128 v[12:15], v3 offset:{K1_STAGE+8192}
    s_waitcnt lgkmcnt(1)
    buffer_store_dwordx4 v[8:11], v3, s[28:31], 0 offen{SC1}
    s_waitcnt lgkmcnt(0)
    buffer_store_dwordx4 v[12:15], v48, s[28:31], 0 offen{SC1}
    ''')
    stamp(a,4,70,36)
    if DEBUG_TM: a('s_waitcnt vmcnt(0)')
    stamp(a,5,70,36)
    stamp_store(a,70,36,8,9,0,3,69)
    a('s_endpgm')
    a.label('L1_wprep')
    a(f'''
    s_load_dwordx2 s[10:11], s[0:1], 40
    s_load_dwordx2 s[12:13], s[0:1], 48
    s_load_dwordx2 s[14:15], s[0:1], 56
    v_and_b32 v2, 31, v1
    v_lshrrev_b32 v3, 5, v1
    v_lshlrev_b32 v4, 4, v1
    s_waitcnt lgkmcnt(0)
    s_mov_b32 s16, s10
    s_mov_b32 s17, s11
    s_mov_b32 s18, {145*64*2}
    s_mov_b32 s19, 0x20000
    s_mov_b32 s20, s14
    s_mov_b32 s21, s15
    s_mov_b32 s22, {128*64*2}
    s_mov_b32 s23, 0x20000
    s_mov_b32 s24, s12
    s_mov_b32 s25, s13
    s_mov_b32 s26, {64*2}
    s_mov_b32 s27, 0x20000
    s_add_u32 s28, s8, {WF}
    s_addc_u32 s29, s9, 0
    s_mov_b32 s30, {WFSZ}
    s_mov_b32 s31, 0x20000
    s_mov_b32 s32, {f32bits(-LOG2E)}
    v_lshlrev_b32 v5, 1, v2
    v_lshl_add_u32 v6, v3, 10, v5
    v_lshl_add_u32 v7, v3, 9, v5
    v_lshlrev_b32 v8, 3, v3
    ''')
    frags=[]
    for blk in range(2): frags.append((F_W3+blk,'e',129,blk,'std',True))
    for s in range(4):
        for blk in range(2): frags.append((F_H1+2*s+blk,'h',16*s,blk,'std',False))
    for blk in range(2):
        for sp in range(2):
            for b2 in range(2): frags.append((F_H2+(blk*2+sp)*2+b2,'h',64+32*blk+16*sp,b2,'perm',False))
    assert len(frags)==NF
    for wv in range(8):
        a(f's_cmp_eq_u32 s3, {wv}')
        a(f's_cbranch_scc1 L1_w{wv}')
    a('s_endpgm')
    for wv in range(8):
        a.label(f'L1_w{wv}')
        mine=[f for i,f in enumerate(frags) if i%8==wv]
        for q,(F,srcn,row0,blk,kind,scaled) in enumerate(mine):
            r=16+8*q
            srd={'e':'s[16:19]','h':'s[20:23]','x':'s[24:27]'}[srcn]
            if kind=='wx':
                a(f'v_add_u32 v10, {row0*2}, v8')
                for t in range(8):
                    T=(t&3)+8*(t>>2)
                    a(f'buffer_load_ushort v{r+t}, v10, {srd}, 0 offen offset:{T*2}')
            else:
                vb = 6 if kind=='std' else 7
                a(f'v_add_u32 v10, {row0*128+blk*64}, v{vb}')
                for t in range(8):
                    T= t if kind=='std' else (t&3)+8*(t>>2)
                    a(f'buffer_load_ushort v{r+t}, v10, {srd}, 0 offen offset:{T*128}')
        if wv==0:
            a(f'''
            v_lshlrev_b32 v11, 1, v1
            v_add_u32 v11, {128*128}, v11
            buffer_load_ushort v12, v11, s[16:19], 0 offen
            ''')
        if wv==1:
            a(f'''
            v_and_b32 v11, 3, v1
            v_bfe_u32 v12, v1, 2, 2
            v_lshl_add_u32 v11, v12, 3, v11
            v_bfe_u32 v12, v1, 4, 1
            v_lshl_add_u32 v11, v12, 5, v11
            v_lshl_add_u32 v11, v3, 2, v11
            v_lshlrev_b32 v11, 1, v11
            buffer_load_ushort v12, v11, s[24:27], 0 offen
            ''')
        a('s_waitcnt vmcnt(0)')
        for q,(F,srcn,row0,blk,kind,scaled) in enumerate(mine):
            r=16+8*q
            if scaled:
                for t in range(8):
                    a(f'v_lshlrev_b32 v{r+t}, 16, v{r+t}')
                for t in range(8):
                    a(f'v_mul_f32 v{r+t}, s32, v{r+t}')
                for t in range(4):
                    a(f'v_cvt_pk_bf16_f32 v{64+t}, v{r+2*t}, v{r+2*t+1}')
            else:
                for t in range(4):
                    a(f'v_lshl_or_b32 v{64+t}, v{r+2*t+1}, 16, v{r+2*t}')
            a(f'v_add_u32 v10, {F*1024}, v4')
            a(f'buffer_store_dwordx4 v[64:67], v10, s[28:31], 0 offen')
            a('s_nop 1')
        if wv==0:
            a(f'''
            v_lshlrev_b32 v12, 16, v12
            v_mul_f32 v12, s32, v12
            v_cvt_pk_bf16_f32 v13, v12, v12
            v_and_b32 v14, 0xffff0000, v13
            v_sub_f32 v12, v12, v14
            v_cvt_pk_bf16_f32 v12, v12, v12
            v_and_b32 v12, 0xffff0000, v12
            v_and_b32 v13, 0xffff, v13
            v_or_b32 v13, v13, v12
            v_and_b32 v11, 31, v1
            v_lshlrev_b32 v11, 3, v11
            v_lshl_add_u32 v11, v3, 2, v11
            v_add_u32 v11, {WDO}, v11
            buffer_store_dword v13, v11, s[28:31], 0 offen
            ''')
        if wv==1:
            a(f'''
            v_lshlrev_b32 v12, 16, v12
            v_lshlrev_b32 v11, 2, v1
            v_add_u32 v11, {WXO}, v11
            buffer_store_dword v12, v11, s[28:31], 0 offen
            ''')
        a('s_endpgm')
    a.label('L1_tables')
    if DEBUG_TM: a('v_mov_b32 v15, 0')
    stamp(a,0,15,36)
    a(f"""
    s_load_dwordx2 s[10:11], s[0:1], 0
    s_load_dwordx2 s[12:13], s[0:1], 40
    s_sub_u32 s14, s2, {0 if TFIRST else NCH+1}
    s_lshl_b32 s14, s14, 7
    s_lshr_b32 s33, s3, 1
    s_lshl_b32 s33, s33, 5
    s_and_b32 s15, s3, 1
    v_and_b32 v2, 31, v1
    v_lshrrev_b32 v3, 5, v1
    v_lshrrev_b32 v8, 3, v1
    v_and_b32 v9, 7, v1
    v_lshrrev_b32 v10, 4, v1
    s_waitcnt lgkmcnt(0)
    s_mov_b32 s16, s10
    s_or_b32 s17, s11, 0x800000
    s_mov_b32 s18, {N}
    s_mov_b32 s19, 0x20000
    s_mov_b32 s20, s12
    s_mov_b32 s21, s13
    s_mov_b32 s22, {128*128}
    s_mov_b32 s23, 0x20000
    s_mul_i32 s34, s15, {TB-TA}
    s_add_u32 s34, s34, {TA}
    s_add_u32 s24, s8, s34
    s_addc_u32 s25, s9, 0
    s_or_b32 s25, s25, 0x800000
    s_mov_b32 s26, {N}
    s_mov_b32 s27, 0x20000
    """)
    for r in range(2):
        a(f"""
        s_lshl_b32 s34, s3, 1
        s_add_u32 s34, s34, {r}
        s_lshl_b32 s35, s34, 3
        s_add_u32 s35, s35, s14
        v_add_u32 v4, s35, v8
        v_add_u32 v5, {4*r}, v10
        v_xor_b32 v5, v5, v9
        v_lshlrev_b32 v5, 4, v5
        s_lshl_b32 s34, s34, 10
        s_add_u32 m0, s34, 16384
        s_nop 0
        buffer_load_dwordx4 v[4:5], s[16:19], 0 idxen offen lds
        """)
    a(f"""
    v_lshlrev_b32 v6, 4, v1
    s_lshl_b32 s34, s3, 10
    v_add_u32 v6, s34, v6
    s_mov_b32 m0, s34
    v_add_u32 v7, 8192, v6
    buffer_load_dwordx4 v6, s[20:23], 0 offen lds
    s_add_u32 m0, s34, 8192
    s_nop 0
    buffer_load_dwordx4 v7, s[20:23], 0 offen lds
    v_and_b32 v8, 15, v1
    v_lshrrev_b32 v9, 2, v8
    v_lshl_add_u32 v9, v3, 3, v9
    v_lshlrev_b32 v9, 7, v9
    v_bfe_u32 v10, v1, 4, 1
    v_lshl_add_u32 v9, v10, 5, v9
    v_and_b32 v10, 3, v1
    v_lshl_add_u32 v9, v10, 3, v9
    s_lshl_b32 s34, s15, 13
    v_add_u32 v9, s34, v9
    v_add_u32 v10, s33, v2
    v_lshlrev_b32 v10, 7, v10
    v_add_u32 v10, 16384, v10
    v_bfe_u32 v11, v2, 1, 3
    s_mov_b32 s35, {f32bits(-LOG2E)}
    s_waitcnt vmcnt(0)
    """)
    stamp(a,1,15,36)
    a('s_barrier')
    for s_ in range(4):
        a(f"""
        v_add_u32 v12, {2*s_}, v3
        v_xor_b32 v12, v12, v11
        v_lshl_add_u32 v12, v12, 4, v10
        ds_read_b128 v[{16+4*s_}:{19+4*s_}], v12
        """)
    for s_ in range(4):
        for blk in range(2):
            r=32+4*(2*s_+blk)
            a(f'ds_read_b64_tr_b16 v[{r}:{r+1}], v9 offset:{2048*s_+64*blk}')
            a(f'ds_read_b64_tr_b16 v[{r+2}:{r+3}], v9 offset:{2048*s_+64*blk+512}')
        if s_==1: a('s_waitcnt lgkmcnt(0)')
    a('s_waitcnt lgkmcnt(0)')
    a('s_barrier')
    stamp(a,2,15,36)
    for blk in range(2):
        D=f'v[{64+16*blk}:{79+16*blk}]'
        for s_ in range(4):
            C = D if s_>0 else '0'
            r=32+4*(2*s_+blk)
            a(f'v_mfma_f32_32x32x16_bf16 {D}, v[{r}:{r+3}], v[{16+4*s_}:{19+4*s_}], {C}')
    a(f"""
    s_lshl_b32 s34, s3, 12
    v_lshlrev_b32 v4, 7, v2
    v_add_u32 v4, s34, v4
    v_and_b32 v5, 7, v2
    v_lshlrev_b32 v5, 4, v5
    """)
    for blk in range(2):
        for i in range(16):
            a(f'v_mul_f32 v{64+16*blk+i}, s35, v{64+16*blk+i}')
    a("""
    s_cmp_eq_u32 s15, 0
    s_cbranch_scc1 L1_tabA
    v_lshl_add_u32 v4, v3, 3, v4
    """)
    for blk in range(2):
        for q in range(8):
            a(f'v_cvt_pk_bf16_f32 v{32+8*blk+q}, v{64+16*blk+2*q}, v{64+16*blk+2*q+1}')
        for m in range(4):
            a(f'v_xor_b32 v6, {16*(4*blk+m)}, v5')
            a(f'v_add_u32 v6, v6, v4')
            a(f'ds_write_b64 v6, v[{32+8*blk+2*m}:{33+8*blk+2*m}]')
    a('s_branch L1_tabS')
    a.label('L1_tabA')
    for r in range(16):
        a(f'v_cvt_pk_bf16_f32 v{32+r}, v{64+r}, v{80+r}')
    a('v_lshlrev_b32 v7, 4, v3')
    for m in range(4):
        a(f'v_add_u32 v6, {32*m}, v7')
        a(f'v_xor_b32 v6, v6, v5')
        a(f'v_add_u32 v6, v6, v4')
        a(f'ds_write_b128 v6, v[{32+4*m}:{35+4*m}]')
    a.label('L1_tabS')
    stamp(a,3,15,36)
    a(f"""
    v_lshlrev_b32 v6, 4, v1
    v_add_u32 v6, s34, v6
    v_lshrrev_b32 v8, 3, v1
    v_and_b32 v9, 7, v1
    v_xor_b32 v9, v9, v8
    v_lshlrev_b32 v13, 4, v9
    s_add_u32 s14, s14, s33
    v_add_u32 v8, s14, v8
    s_waitcnt lgkmcnt(0)
    """)
    for i in range(4):
        a(f'ds_read_b128 v[{48+4*i}:{51+4*i}], v6 offset:{1024*i}')
    for i in range(4):
        a(f'v_add_u32 v12, {8*i}, v8')
        a(f's_waitcnt lgkmcnt({3-i})')
        a(f'buffer_store_dwordx4 v[{48+4*i}:{51+4*i}], v[12:13], s[24:27], 0 idxen offen{SC1}')
    stamp(a,4,15,36)
    if DEBUG_TM: a('s_waitcnt vmcnt(0)')
    stamp(a,5,15,36)
    stamp_store(a,15,36,8,9,0,3,14)
    a('s_endpgm')
    a.label('L1_end')
    a('s_endpgm')
    return a.finalize(), 96, 40, 32768+64

L_G=0; L_R0=28672; L_RS=43264; L_S=50432; L_RING=66816; L_GTAB=148736; L_WTOT=156928; L_PD=157184; L_WST=158208; L_AST=L_WST+2560; L_END=L_AST+2048
SLOT=5120
vI=16; vW3=24; vW6=32; vS1=40; vS2=41; vD2=64; vD1=(96,128); vE=160; vX=192; vXE=208; vX6=212; vSF=216; vONE=224
vHA=228; vEAr=232; vX6r=233; vC1=234; vSTa=235; vC2=236; vMK2=237; vEAc=238; vOne=239; vHP=240
vSTb=15; vCD=14
vRSa=248; vR0a=249; vR0e=250; vGe=251; vR0=252; vG=253; vA1=254; vA2=255; vEAi=10; vEAo=11
vZero=vONE+1
vTM=12
sH=4; sEA=8; sOF=12; sEN=16; sPOS=20; sWF=24; sO0=28; sO1=32; sHD=36; sSEL=100; sTA=40
sWS=44
sW0=46; sW1=47; sV=3; sG=101; sCNT=48; sBASE=49; sNT=50; sT=51; sRB=52; sNODE0=53; sMK=89

ABL=set(x[6:] for x in sys.argv if x.startswith('--abl=') ) | ({'fprio','trim','pk','xmap'} - set(x[5:] for x in sys.argv if x.startswith('--no=')))
OPT=dict(x[6:].split(':') for x in sys.argv if x.startswith('--opt='))
def optl(k,d): return [int(v.replace('n','-')) for v in OPT[k].split(',')] if k in OPT else d
TRIMK='trim'; PF2K='pf2'; TBK='tbpf'; XMK='xmap'
EAF=''.join(' '+x for x in OPT.get('eaf','').split('+') if x); HF=''.join(' '+x for x in OPT.get('hf','').split('+') if x)
NH_ = 0 if 'noh' in ABL else N
NE_ = 0 if 'noea' in ABL else E*32
def gen_k2():
    a=Asm()
    def st(i): stamp(a,i,vTM,98)
    a.label('egnn_main_kernel')
    a(f'''
    s_cmp_ge_u32 s2, {NBK}
    s_cbranch_scc1 L2_end
    ''')
    if 'xmap' in ABL:
        a('s_and_b32 s4, s2, 7\ns_lshl_b32 s4, s4, 5\ns_lshr_b32 s2, s2, 3\ns_or_b32 s2, s2, s4')
    if DEBUG_TM: a(f'v_mov_b32 v{vTM}, 0')
    st(0)
    a(f'''
    s_load_dwordx2 s[44:45], s[0:1], 80
    s_load_dwordx4 s[36:39], s[0:1], 0
    s_load_dwordx2 s[40:41], s[0:1], 16
    s_load_dwordx2 s[42:43], s[0:1], 64
    v_and_b32 v1, 63, v0
    v_lshrrev_b32 v2, 6, v0
    v_lshrrev_b32 v3, 1, v0
    v_readfirstlane_b32 s{sV}, v2
    ''')
    if 'rot' in OPT:
        a(f'''
        s_lshr_b32 s54, s2, 5
        s_mul_i32 s54, s54, {int(OPT['rot'])}
        v_cmp_gt_u32 vcc, {NCH}, v3
        v_add_u32 v9, s54, v3
        v_subrev_u32 v10, {NCH}, v9
        s_movk_i32 s55, {NCH}
        v_cmp_gt_u32 s[56:57], s55, v9
        s_nop 1
        v_cndmask_b32 v9, v10, v9, s[56:57]
        v_cndmask_b32 v3, v3, v9, vcc
        ''')
    a(f'''
    v_and_b32 v9, 1, v0
    s_lshl_b32 s54, s2, 4
    s_mov_b32 s55, {ROW}
    v_mov_b32 v96, s54
    v_mad_u32_u24 v96, v3, s55, v96
    s_mov_b32 s{sOF+2}, {NCH*ROW}
    s_mov_b32 s{sOF+3}, 0x20000
    s_waitcnt lgkmcnt(0)
    s_add_u32 s{sOF}, s44, {OFFS}
    s_addc_u32 s{sOF+1}, s45, 0
    buffer_load_dwordx4 v[4:7], v96, s[{sOF}:{sOF+3}], 0 offen
    buffer_load_ushort v8, v96, s[{sOF}:{sOF+3}], 0 offen offset:16
    ''')
    st(16)
    a(f"""
    s_mov_b32 s{sPOS}, s38
    s_mov_b32 s{sPOS+1}, s39
    s_mov_b32 s{sPOS+2}, {N*6}
    s_mov_b32 s{sPOS+3}, 0x20000
    s_add_u32 s{sWF}, s44, {WF}
    s_addc_u32 s{sWF+1}, s45, 0
    s_mov_b32 s{sWF+2}, {WFSZ}
    s_mov_b32 s{sWF+3}, 0x20000
    s_mov_b32 s{sW0}, 0
    s_mov_b32 s{sW1}, {NCH}
    s_mov_b32 s63, 2
    v_lshlrev_b32 v96, 4, v1
    s_lshl_b32 s58, s{sV}, 10
    v_add_u32 v96, s58, v96
    """)
    PE=optl('pe',[5])[0]
    assert PE<=9
    def posdma(r):
        a(f"""
        s_add_u32 m0, s58, {L_RING+8192*r}
        v_add_u32 v97, {8192*r}, v96
        buffer_load_dwordx4 v97, s[{sPOS}:{sPOS+3}], 0 offen lds
        """)
    chunks=[f"""
    s_mov_b32 s{sH}, s36
    s_or_b32 s{sH+1}, s37, 0x800000
    s_mov_b32 s{sH+2}, {N}
    s_mov_b32 s{sH+3}, 0x20000
    s_mov_b32 s{sEA}, s40
    s_mov_b32 s{sEA+1}, s41
    s_mov_b32 s{sEA+2}, {E*32}
    s_mov_b32 s{sEA+3}, 0x20000
    s_add_u32 s{sEN}, s44, {ENT}
    s_addc_u32 s{sEN+1}, s45, 0
    s_mov_b32 s{sEN+2}, {NCH*CH*4}
    s_mov_b32 s{sEN+3}, 0x20000
    """, f"""
    s_mov_b32 s{sO0}, s42
    s_or_b32 s{sO0+1}, s43, 0x800000
    s_mov_b32 s{sO0+2}, {N}
    s_mov_b32 s{sO0+3}, 0x20000
    s_add_u32 s{sO1}, s42, {N*128}
    s_addc_u32 s{sO1+1}, s43, 0
    s_mov_b32 s{sO1+2}, {N*6}
    s_mov_b32 s{sO1+3}, 0x20000
    s_add_u32 s{sHD}, s44, {TB}
    s_addc_u32 s{sHD+1}, s45, 0
    s_or_b32 s{sHD+1}, s{sHD+1}, 0x800000
    s_mov_b32 s{sHD+2}, {N}
    s_mov_b32 s{sHD+3}, 0x20000
    """, f"""
    s_add_u32 s{sTA}, s44, {TA}
    s_addc_u32 s{sTA+1}, s45, 0
    s_or_b32 s{sTA+1}, s{sTA+1}, 0x800000
    s_mov_b32 s{sTA+2}, {N}
    s_mov_b32 s{sTA+3}, 0x20000
    s_mul_i32 s{sRB}, s{sV}, {2*SLOT}
    s_add_u32 s{sRB}, s{sRB}, {L_RING}
    s_mov_b32 s{sMK}, 0xffffffe0
    s_mov_b32 s{sSEL}, 0x01000100
    v_lshrrev_b32 v98, 5, v1
    v_and_b32 v101, 1, v1
    v_xor_b32 v101, v101, v98
    v_lshlrev_b32 v{vEAc}, 4, v101
    """, f"""
    v_and_b32 v101, 7, v1
    v_lshrrev_b32 v102, 4, v1
    v_xor_b32 v103, v101, v102
    v_lshlrev_b32 v{vHP+1}, 4, v103
    v_lshlrev_b32 v{vHP+5}, 4, v103
    v_add_u32 v102, 4, v102
    v_xor_b32 v103, v101, v102
    v_lshlrev_b32 v{vHP+3}, 4, v103
    v_lshlrev_b32 v{vHP+7}, 4, v103
    """, f"""
    v_mov_b32 v{vX6}, 0
    v_mov_b32 v{vX6+1}, 0
    v_mov_b32 v{vX6+2}, 0
    v_mov_b32 v{vX6+3}, 0
    v_mfma_f32_32x32x16_bf16 v[{vD2}:{vD2+15}], v[{vX6}:{vX6+3}], v[{vX6}:{vX6+3}], 0
    v_mfma_f32_32x32x16_bf16 v[{vD2+16}:{vD2+31}], v[{vX6}:{vX6+3}], v[{vX6}:{vX6+3}], 0
    """]
    for k in range(max(PE,len(chunks))):
        if k<PE: posdma(k)
        if k<len(chunks): a(chunks[k])
    a(f"""
    s_cmp_eq_u32 s{sV}, 2
    s_cselect_b32 s54, {WDO}, s58
    s_cselect_b32 s55, 2048, s58
    v_lshlrev_b32 v97, 4, v1
    v_add_u32 v97, s54, v97
    s_add_u32 m0, s55, {L_WST}
    s_cmp_gt_u32 s{sV}, 2
    s_cbranch_scc1 L2_nowst
    v_cmp_gt_u32 vcc, 32, v1
    s_cmp_eq_u32 s{sV}, 2
    s_cselect_b64 exec, vcc, -1
    buffer_load_dwordx4 v97, s[{sWF}:{sWF+3}], 0 offen lds
    s_mov_b64 exec, -1
    """)
    a.label('L2_nowst')
    st(17)
    if TBK in ABL:
        a(f'''
        {'s_and_b32 s54, s2, 31' if XMK in ABL else 's_lshr_b32 s54, s2, 3'}
        s_mul_i32 s54, s54, 391
        s_lshl_b32 s55, s{sV}, 6
        v_add_u32 v100, s55, v1
        v_cmp_gt_u32 vcc, 391, v100
        v_add_u32 v100, s54, v100
        v_mov_b32 v101, 0
        v_mov_b32 v102, -1
        v_cndmask_b32 v100, v102, v100, vcc
        buffer_load_dword v52, v[100:101], s[{sHD}:{sHD+3}], 0 idxen offen
        ''')
    st(18)
    st(1)
    a(f's_waitcnt vmcnt({min(PE,9)+(1 if TBK in ABL else 0)})')
    st(19)
    a('s_branch L2_counts')
    a.label('L2_batch')
    a(f"""
    s_barrier
    v_lshlrev_b32 v96, 4, v1
    s_lshl_b32 s58, s{sV}, 10
    v_add_u32 v96, s58, v96
    """)
    for r in range(PE): posdma(r)
    a.label('L2_counts')
    a(f"""
    v_alignbit_b32 v100, v5, v4, 16
    v_alignbit_b32 v101, v6, v5, 16
    v_alignbit_b32 v102, v7, v6, 16
    v_alignbit_b32 v103, v8, v7, 16
    v_and_b32 v105, 0xffff, v4
    v_sub_u32 v104, v8, v105
    s_sub_u32 s54, s{sW1}, s{sW0}
    v_subrev_u32 v106, s{sW0}, v3
    v_cmp_gt_u32 vcc, s54, v106
    s_mov_b32 s55, {CH*4}
    v_lshlrev_b32 v107, 2, v105
    v_lshl_add_u32 v107, v9, 4, v107
    v_cndmask_b32 v104, 0, v104, vcc
    v_lshlrev_b32 v109, 2, v9
    v_sub_u32 v109, v104, v109
    v_max_i32 v109, 0, v109
    v_mad_u32_u24 v107, v3, s55, v107
    """)
    for i in range(4):
        a(f'v_cmp_lt_u32 s[{90+2*i}:{91+2*i}], {8*i}, v109')
    for i in range(4):
        a(f's_mov_b64 exec, s[{90+2*i}:{91+2*i}]')
        a(f's_cbranch_execz L2_e{i}')
        a(f'buffer_load_dwordx4 v[{192+4*i}:{195+4*i}], v107, s[{sEN}:{sEN+3}], 0 offen offset:{32*i}')
        a.label(f'L2_e{i}')
    a('s_mov_b64 exec, -1')
    st(2)
    a(f"""
    v_pk_sub_u16 v100, v100, v4
    v_pk_sub_u16 v101, v101, v5
    v_pk_sub_u16 v102, v102, v6
    v_pk_sub_u16 v103, v103, v7
    v_cmp_eq_u32 s[56:57], 0, v9
    """)
    for q in range(4):
        a(f'v_cndmask_b32 v{100+q}, 0, v{100+q}, vcc')
    for q in range(5):
        a(f'v_cndmask_b32 v{112+q}, 0, v{100+q}, s[56:57]')
    for sh in (1,2,4,8):
        for q in range(5):
            a(f'v_add_u32_dpp v{112+q}, v{112+q}, v{112+q} row_shr:{sh} row_mask:0xf bank_mask:0xf')
    for q in range(5):
        a(f'v_add_u32_dpp v{112+q}, v{112+q}, v{112+q} row_bcast:15 row_mask:0xa bank_mask:0xf')
    for q in range(5):
        a(f'v_add_u32_dpp v{112+q}, v{112+q}, v{112+q} row_bcast:31 row_mask:0xc bank_mask:0xf')
    st(21)
    a(f"""
    s_lshl_b32 s54, s{sV}, 5
    s_add_u32 s54, s54, {L_WTOT}
    v_mov_b32 v117, s54
    s_mov_b32 s56, 0
    s_brev_b32 s57, 1
    s_mov_b64 exec, s[56:57]
    ds_write_b128 v117, v[112:115]
    ds_write_b32 v117, v116 offset:16
    s_mov_b64 exec, -1
    v_and_b32 v118, 7, v1
    v_lshlrev_b32 v118, 5, v118
    v_add_u32 v118, {L_WTOT}, v118
    s_waitcnt lgkmcnt(0)
    s_barrier
    ds_read_b128 v[120:123], v118
    ds_read_b32 v124, v118 offset:16
    """)
    st(3)
    a('s_waitcnt lgkmcnt(0)')
    for sh in (1,2,4):
        for q in range(5):
            a(f'v_add_u32_dpp v{120+q}, v{120+q}, v{120+q} row_shr:{sh} row_mask:0xf bank_mask:0xf')
    for q in range(5):
        a(f'v_readlane_b32 s{58+q}, v{120+q}, 7')
    a(f's_sub_u32 s54, s{sV}, 1')
    a(f's_max_i32 s54, s54, 0')
    for q in range(4):
        a(f'v_readlane_b32 s{64+q}, v{120+q}, s54')
    a(f's_cmp_eq_u32 s{sV}, 0')
    for q in range(4):
        a(f's_cselect_b32 s{64+q}, 0, s{64+q}')
    for q in range(4):
        a(f's_and_b32 s{68+2*q}, s{58+q}, 0xffff')
        a(f's_lshr_b32 s{69+2*q}, s{58+q}, 16')
    a('s_mov_b32 s84, 0')
    for g in range(8):
        a(f"""
        s_mov_b32 s{76+g}, s84
        s_add_u32 s54, s{68+g}, 31
        s_andn2_b32 s54, s54, 31
        s_add_u32 s84, s84, s54
        """)
    a(f"""
    s_max_u32 s54, s84, s62
    s_cmp_le_u32 s54, {CAP}
    s_cbranch_scc1 L2_fits
    s_add_u32 s{sW1}, s{sW0}, 1
    s_waitcnt vmcnt(0) lgkmcnt(0)
    s_branch L2_batch
    """)
    a.label('L2_fits')
    a(f"""
    s_cmp_eq_u32 s63, 1
    s_cbranch_scc1 L2_pidone
    """)
    if 'nopi' in ABL:
        a(f's_mov_b32 s{sG}, s{sV}')
    else:
        for g in range(8):
            a(f's_lshl_b32 s54, s{68+g}, 3')
            a(f's_add_u32 s{90+g}, s54, {7-g}')
            a(f'v_writelane_b32 v126, s{90+g}, {g}')
        a('v_mov_b32 v127, 0')
        for h in range(2):
            for k in range(4):
                pr=(56,58,54,64)[k] if False else None
            for k in range(4):
                a(f'v_cmp_gt_u32 s[{(54,56,58,60)[k]}:{(54,56,58,60)[k]+1}], s{90+4*h+k}, v126')
            for k in range(4):
                a(f'v_addc_co_u32 v127, vcc, 0, v127, s[{(54,56,58,60)[k]}:{(54,56,58,60)[k]+1}]')
        a(f"""
        s_sub_u32 s54, 11, s{sV}
        s_cmp_lt_u32 s{sV}, 4
        s_cselect_b32 s54, s{sV}, s54
        v_cmp_eq_u32 vcc, s54, v127
        s_nop 3
        s_and_b32 s54, vcc_lo, 0xff
        s_ff1_i32_b32 s{sG}, s54
        """)
    a(f"""
    s_mul_i32 s{sNODE0}, s2, {BN}
    s_add_u32 s{sNODE0}, s{sNODE0}, s{sG}
    """)
    a.label('L2_pidone')
    a(f's_mov_b32 s{sCNT}, s68')
    a(f's_mov_b32 s{sBASE}, s76')
    for g in range(1,8):
        a(f"""
        s_cmp_eq_u32 s{sG}, {g}
        s_cselect_b32 s{sCNT}, s{68+g}, s{sCNT}
        s_cselect_b32 s{sBASE}, s{76+g}, s{sBASE}
        """)
    a(f"""
    s_add_u32 s{sNT}, s{sCNT}, 31
    s_lshr_b32 s{sNT}, s{sNT}, 5
    """)
    for q in range(4):
        a(f's_pack_ll_b32_b16 s{85+q}, s{76+2*q}, s{77+2*q}')
        a(f's_add_u32 s{85+q}, s{85+q}, s{64+q}')
        a(f's_add_u32 s{85+q}, s{85+q}, {CH | (CH<<16)}')
    a(f"""
    v_lshl_or_b32 v105, v105, 16, v105
    v_mul_u32_u24 v106, 0x100010, v9
    """)
    for q in range(4):
        a(f"""
        v_sub_u32 v{112+q}, v{112+q}, v{100+q}
        v_add_u32 v{112+q}, s{85+q}, v{112+q}
        v_sub_u32 v{120+q}, v{4+q}, v105
        v_sub_u32 v{112+q}, v{112+q}, v{120+q}
        v_lshl_add_u32 v{112+q}, v{112+q}, 2, v106
        """)
    a(f"""
    v_lshlrev_b32 v108, 4, v0
    v_add_u32 v108, {L_GTAB}, v108
    ds_write_b128 v108, v[112:115]
    v_mov_b32 v104, v109
    s_mov_b32 s54, {CH*32}
    v_mul_lo_u32 v110, v3, s54
    v_mov_b32 v111, {4*CH+4*CAP}
    v_lshlrev_b32 v96, 4, v1
    s_lshl_b32 s58, s{sV}, 10
    v_add_u32 v96, s58, v96
    s_waitcnt vmcnt(0)
    """)
    st(4)
    if PE<10:
        a(f"""
        v_lshlrev_b32 v96, 4, v1
        s_lshl_b32 s58, s{sV}, 10
        v_add_u32 v96, s58, v96
        """)
        for r in range(PE,10):
            if r==9:
                a(f's_cmp_ge_u32 s{sV}, 2\ns_cbranch_scc1 L2_posdone2')
            a(f"""
            s_add_u32 m0, s58, {L_RING+8192*r}
            v_add_u32 v97, {8192*r}, v96
            buffer_load_dwordx4 v97, s[{sPOS}:{sPOS+3}], 0 offen lds
            """)
        a.label('L2_posdone2')
    a(f"""
    s_cmp_eq_u32 s63, 1
    s_cbranch_scc1 L2_noA
    s_lshl_b32 s54, s{sV}, 10
    s_add_u32 s55, s54, {L_RING+75776}
    s_add_u32 s54, s54, {L_AST-6*1024}
    s_cmp_lt_u32 s{sV}, 6
    s_cselect_b32 s62, s55, s54
    v_lshrrev_b32 v120, 3, v1
    v_lshlrev_b32 v120, 3, v120
    v_add_u32 v121, s{sG}, v120
    v_add_u32 v120, s{sNODE0}, v120
    v_cmp_gt_u32 vcc, {BN}, v121
    v_mov_b32 v122, -1
    v_and_b32 v123, 7, v1
    v_lshlrev_b32 v123, 4, v123
    v_cndmask_b32 v122, v122, v120, vcc
    s_mov_b32 m0, s62
    s_nop 0
    buffer_load_dwordx4 v[122:123], s[{sTA}:{sTA+3}], 0 idxen offen lds
    """)
    a.label('L2_noA')
    st(20)
    def quad(qreg, i, dyn=False):
        for u in range(4):
            a(f'v_lshrrev_b32 v{140+u}, 29, v{qreg+u}')
            a(f'v_lshl_add_u32 v{140+u}, v{140+u}, 1, v108')
            a(f'ds_read_u16 v{144+u}, v{140+u}')
        for u in range(4):
            if dyn: a(f'v_cmp_lt_u32 s[{90+2*u}:{91+2*u}], {u}, v104')
            else:   a(f'v_cmp_lt_u32 s[{90+2*u}:{91+2*u}], {8*i+u}, v104')
        a('s_waitcnt lgkmcnt(0)')
        for u in range(4):
            if dyn: a(f'v_add_u32 v{144+u}, v{144+u}, v149')
            a(f'v_cndmask_b32 v{144+u}, v111, v{144+u}, s[{90+2*u}:{91+2*u}]')
        ko = 0 if dyn else 8*i
        for u in range(4):
            a(f'ds_write_b32 v{144+u}, v{qreg+u} offset:{L_R0-4*CH+4*(ko+u)}')
            a(f'ds_write_b32 v{144+u}, v110 offset:{L_S-4*CH+4*(ko+u)}')
    for i in range(4):
        quad(192+4*i, i)
        a(f'v_cmp_lt_u32 vcc, {8*(i+1)}, v104')
        a('s_cbranch_vccz L2_scat_done')
    a(f'''
    v_subrev_u32 v104, 32, v104
    v_cmp_gt_i32 vcc, 0, v104
    v_mov_b32 v149, 128
    v_add_u32 v107, 128, v107
    v_cndmask_b32 v104, v104, 0, vcc
    ''')
    a.label('L2_scat_loop')
    a(f'buffer_load_dwordx4 v[192:195], v107, s[{sEN}:{sEN+3}], 0 offen')
    a('s_waitcnt vmcnt(0)')
    quad(192, 0, dyn=True)
    a(f'''
    v_subrev_u32 v104, 8, v104
    v_add_u32 v149, 32, v149
    v_add_u32 v107, 32, v107
    v_cmp_gt_i32 vcc, 0, v104
    s_nop 1
    v_cndmask_b32 v104, v104, 0, vcc
    v_cmp_lt_u32 vcc, 0, v104
    s_cbranch_vccnz L2_scat_loop
    ''')
    a.label('L2_scat_done')
    st(5)
    a('''
    s_waitcnt vmcnt(0) lgkmcnt(0)
    s_barrier
    ''')
    st(6)
    a(f"""
    v_lshrrev_b32 v100, 2, v1
    v_lshlrev_b32 v100, 3, v100
    v_add_u32 v100, s{sNODE0}, v100
    v_mul_u32_u24 v100, 6, v100
    v_and_b32 v102, 3, v1
    v_lshl_add_u32 v100, v102, 1, v100
    v_add_u32 v100, {L_RING}, v100
    ds_read_u16 v101, v100
    s_cmp_eq_u32 s63, 1
    s_cbranch_scc1 L2_noC
    s_mov_b32 s63, 1
    v_lshlrev_b32 v96, 4, v1
    v_add_u32 v96, {L_WST}, v96
    ds_read_b128 v[{vW3}:{vW3+3}], v96
    ds_read_b128 v[{vW3+4}:{vW3+7}], v96 offset:1024
    v_and_b32 v120, 31, v1
    v_lshrrev_b32 v121, 5, v1
    v_lshlrev_b32 v122, 2, v120
    v_lshl_add_u32 v122, v121, 9, v122
    v_add_u32 v122, s62, v122
    """)
    for q in range(4):
        a(f'ds_read_b32 v{40+q}, v122 offset:{128*q}')
    a(f"""
    v_lshlrev_b32 v120, 3, v120
    v_add_u32 v120, {L_WST+2048}, v120
    ds_read_b64 v[44:45], v120
    v_cmp_gt_u32 vcc, 32, v1
    s_waitcnt lgkmcnt(0)
    v_cndmask_b32 v44, v44, 0, vcc
    v_cndmask_b32 v45, v45, 0, vcc
    """)
    for q in range(4):
        a(f'v_and_b32 v{vW6+q}, 0xffff, v{40+q}')
        a(f'v_lshrrev_b32 v{vW6+4+q}, 16, v{40+q}')
    a(f"""
    v_or_b32 v{vW6+3}, v{vW6+3}, v44
    v_or_b32 v{vW6+7}, v{vW6+7}, v45
    """)
    a.label('L2_noC')
    a(f"""
    s_lshl_b32 s54, s{sV}, 7
    s_add_u32 s54, s54, {L_PD}
    v_lshlrev_b32 v97, 2, v1
    v_add_u32 v97, s54, v97
    s_waitcnt lgkmcnt(0)
    v_lshlrev_b32 v101, 16, v101
    s_mov_b32 exec_hi, 0
    ds_write_b32 v97, v101
    s_mov_b64 exec, -1
    """)
    a(f'''
    s_lshl_b32 s54, s{sV}, 7
    s_add_u32 s54, s54, {L_PD}
    v_mov_b32 v98, s54
    v_mov_b32 v99, {L_RING}
    v_add_u32 v96, s{sBASE}, v1
    v_mov_b32 v97, v1
    s_mov_b32 s{sT}, 0
    s_mov_b32 s55, 0xffff0000
    s_movk_i32 s56, 0x7fff
    s_mov_b32 s{sHD+2}, {N}
    s_mov_b32 s{sEA+2}, {E*32}
    ''')
    a(f'''
    s_lshl_b32 s54, s{sNT}, 5
    s_sub_u32 s54, s54, 32
    v_add_u32 v100, s54, v1
    v_cmp_le_u32 s[58:59], s{sCNT}, v100
    v_cmp_gt_u32 vcc, 32, v1
    s_and_b64 vcc, vcc, s[58:59]
    s_cmp_eq_u32 s{sNT}, 0
    s_cbranch_scc1 L2_nodummy
    s_and_saveexec_b64 s[58:59], vcc
    s_cbranch_execz L2_dummy_restore
    v_add_u32 v100, s{sBASE}, v100
    v_lshlrev_b32 v101, 2, v100
    v_mov_b32 v102, 28
    ds_write_b32 v101, v102 offset:{L_R0}
    v_lshlrev_b32 v101, 1, v100
    v_mov_b32 v102, 0
    v_mov_b32 v103, 0
    ds_write_b16 v101, v102 offset:{L_RS}
    v_lshlrev_b32 v101, 3, v100
    ds_write_b64 v101, v[102:103] offset:{L_G}
    ''')
    a.label('L2_dummy_restore')
    a('s_mov_b64 exec, s[58:59]')
    a.label('L2_nodummy')
    NI=4
    a.label('L2_geo_loop')
    a(f'''
    s_cmp_ge_u32 s{sT}, s{sCNT}
    s_cbranch_scc1 L2_geo_done
    ''')
    def R(it,k): return 112+20*it+k
    for it in range(NI):
        a(f'''
        v_add_u32 v{R(it,0)}, {64*it}, v96
        v_lshlrev_b32 v{R(it,0)}, 2, v{R(it,0)}
        ds_read_b32 v{R(it,1)}, v{R(it,0)} offset:{L_R0}
        ds_read_b32 v{R(it,2)}, v{R(it,0)} offset:{L_S}
        ''')
    for it in range(NI):
        a(f'''
        v_add_u32 v{R(it,16)}, {64*it}, v97
        v_cmp_gt_u32 s[{90+2*it}:{91+2*it}], s{sCNT}, v{R(it,16)}
        ''')
    for it in range(NI):
        e=R(it,1); wb=R(it,2)
        a(f's_waitcnt lgkmcnt({2*(NI-1-it)+2*it})')
        a(f'''
        v_bfe_u32 v{R(it,3)}, v{e}, 15, 14
        v_and_b32 v{R(it,4)}, 7, v{e}
        v_mad_u32_u24 v{R(it,5)}, v{R(it,3)}, 6, v99
        v_lshl_add_u32 v{R(it,7)}, v{R(it,4)}, 4, v98
        v_and_b32 v{R(it,5)}, -4, v{R(it,5)}
        ds_read_b96 v[{R(it,8)}:{R(it,10)}], v{R(it,7)}
        ds_read2_b32 v[{R(it,12)}:{R(it,13)}], v{R(it,5)} offset1:1
        v_and_b32 v{R(it,5)}, s56, v{e}
        v_lshl_add_u32 v{wb}, v{R(it,5)}, 2, v{wb}
        v_lshlrev_b32 v{R(it,6)}, 4, v{R(it,3)}
        ''')
    if 'nopf' not in ABL:
        a(f'''
        s_cmp_lg_u32 s{sT}, 0
        s_cbranch_scc1 L2_nopf
        ''')
        a(f'''
        v_and_b32 v48, s{sMK}, v{R(0,2)}
        v_mov_b32 v51, 0
        v_mov_b32 v50, v{R(0,3)}
        s_mov_b32 exec_hi, {-1 if PF2K in ABL else 0}
        buffer_load_dword v48, v48, s[{sEA}:{sEA+3}], 0 offen
        s_mov_b32 exec_hi, 0
        buffer_load_dword v49, v[50:51], s[{sHD}:{sHD+3}], 0 idxen offen
        s_mov_b64 exec, -1
        ''')
        a.label('L2_nopf')
    for it in range(NI):
        pd=R(it,8); ps=R(it,12); sh=R(it,6); t0=R(it,4); t1=R(it,5); t2=R(it,7); o=R(it,14); t3=R(it,17)
        a(f's_waitcnt lgkmcnt({2*(NI-1-it)+3*it})')
        a(f'''
        v_alignbit_b32 v{t0}, v{ps+1}, v{ps}, v{sh}
        v_lshrrev_b32 v{t2}, v{sh}, v{ps+1}
        v_lshlrev_b32 v{t1}, 16, v{t0}
        v_and_b32 v{t0}, s55, v{t0}
        v_lshlrev_b32 v{t2}, 16, v{t2}
        v_sub_f32 v{t1}, v{pd}, v{t1}
        v_sub_f32 v{t0}, v{pd+1}, v{t0}
        v_sub_f32 v{t2}, v{pd+2}, v{t2}
        v_mul_f32 v{t3}, v{t1}, v{t1}
        v_cvt_pk_bf16_f32 v{o+1}, v{t0}, v{t2}
        v_fmac_f32 v{t3}, v{t0}, v{t0}
        v_fmac_f32 v{t3}, v{t2}, v{t2}
        v_lshrrev_b32 v{t0}, 1, v{R(it,0)}
        v_cvt_pk_bf16_f32 v{o}, v{t3}, v{t1}
        v_lshlrev_b32 v{t2}, 1, v{R(it,0)}
        s_mov_b64 exec, s[{90+2*it}:{91+2*it}]
        ds_write_b32 v{R(it,0)}, v{R(it,2)} offset:{L_R0}
        ds_write_b16 v{t0}, v{R(it,3)} offset:{L_RS}
        ds_write_b64 v{t2}, v[{o}:{o+1}] offset:{L_G}
        s_mov_b64 exec, -1
        ''')
    a(f'''
    v_add_u32 v96, {64*NI}, v96
    v_add_u32 v97, {64*NI}, v97
    s_add_u32 s{sT}, s{sT}, {64*NI}
    s_branch L2_geo_loop
    ''')
    a.label('L2_geo_done')
    a(f"""
    v_lshrrev_b32 v97, 3, v1
    v_add_u32 v97, s{sBASE}, v97
    v_lshlrev_b32 v97, 1, v97
    v_add_u32 v{vRSa}, {L_RS}, v97
    v_lshrrev_b32 v97, 1, v1
    v_add_u32 v97, s{sBASE}, v97
    v_lshlrev_b32 v97, 2, v97
    v_add_u32 v{vR0a}, {L_R0}, v97
    v_and_b32 v97, 31, v1
    v_add_u32 v97, s{sBASE}, v97
    v_lshlrev_b32 v98, 2, v97
    v_add_u32 v{vR0e}, {L_R0}, v98
    v_lshrrev_b32 v98, 5, v1
    v_lshlrev_b32 v98, 2, v98
    v_lshl_add_u32 v98, v97, 3, v98
    v_add_u32 v{vGe}, {L_G}, v98
    s_mov_b32 s{sT}, 0
    s_sub_u32 s86, s{sNT}, 3
    s_sub_u32 s87, s{sNT}, 1
    """)
    for i in range(4): a(f'ds_read_u16 v{vHP+2*i}, v{vRSa} offset:{16*i}')
    a(f'ds_read_b32 v{vEAi}, v{vR0a}')
    a(f'ds_read_b32 v{vR0}, v{vR0e}')
    a(f'ds_read_b32 v{vG}, v{vGe}')
    if 'fprio' in ABL:
        PER=optl('per',[12])[0]
        a(f"""
        v_cvt_f32_u32 v96, s{sNT}
        v_rcp_f32 v96, v96
        s_nop 0
        v_mul_f32 v96, {f32bits(float(PER*65536*(2 if TRIMK in ABL else 1)))}, v96
        v_cvt_u32_f32 v96, v96
        s_nop 0
        v_readfirstlane_b32 s85, v96
        s_mov_b32 s84, 0
        s_sub_u32 s84, s84, s85
        """)
    a(f"""
    s_lshl_b32 s54, s{sV}, 11
    s_add_u32 s54, s54, {L_S}
    v_lshlrev_b32 v96, 4, v1
    v_add_u32 v96, s54, v96
    v_mov_b32 v100, 0
    v_mov_b32 v101, 0
    v_mov_b32 v102, 0
    v_mov_b32 v103, 0
    v_and_or_b32 v{vEAo}, v{vEAi}, s{sMK}, v{vEAc}
    s_waitcnt lgkmcnt(0)
    s_barrier
    """)
    st(7)
    a(f"""
    ds_write_b128 v96, v[100:103]
    ds_write_b128 v96, v[100:103] offset:1024
    """)
    if 'lone' in ABL:
        a(f's_cmp_ge_u32 s{sV}, 4\ns_cselect_b32 s{sNT}, 0, s{sNT}')
    a(f"""
    s_cmp_eq_u32 s{sNT}, 0
    s_cbranch_scc1 L2_notiles
    """)
    def idx_reads(toff):
        return [f'ds_read_u16 v{vHP+2*i}, v{vRSa} offset:{64*toff+16*i}' for i in range(4)] + \
               [f'ds_read_b32 v{vEAi}, v{vR0a} offset:{128*toff}']
    def rec_reads(toff):
        return [f'ds_read_b32 v{vR0}, v{vR0e} offset:{128*toff}', f'ds_read_b32 v{vG}, v{vGe} offset:{256*toff}']
    def srd_select(delta):
        return [f's_add_u32 s54, s{sT}, {delta}\ns_cmp_lt_u32 s54, s{sNT}\ns_cselect_b32 s{sHD+2}, {NH_}, 0\ns_cselect_b32 s{sEA+2}, {NE_}, 0']
    def dma2(slot):
        r=[(f'v_and_or_b32 v{vEAo}, v{vEAi}, s{sMK}, v{vEAc}\ns_add_u32 m0, s{sRB}, {slot*SLOT+4096}', f'buffer_load_dwordx4 v{vEAo}, s[{sEA}:{sEA+3}], 0 offen{EAF} lds')]
        for i in range(4):
            r.append((f's_add_u32 m0, s{sRB}, {slot*SLOT+1024*i}', f'buffer_load_dwordx4 v[{vHP+2*i}:{vHP+2*i+1}], s[{sHD}:{sHD+3}], 0 idxen offen{HF} lds'))
        return r
    def dma(slot):
        return [x+'\n'+y for x,y in dma2(slot)]
    def x_reads(slot):
        return [f'ds_read_b128 v[{vX+4*s}:{vX+4*s+3}], v{vHA+s} offset:{slot*SLOT}' for s in range(4)] + \
               [f'ds_read_b128 v[{vXE}:{vXE+3}], v{vEAr} offset:{slot*SLOT}']
    def s_addr(): return [f'v_bitop3_b32 v{vA1}, v{vR0}, 28, v{vC1} bitop3:0x6a', f'v_bfi_b32 v{vS1}, v{vMK2}, v{vG}, v{vOne}', f'v_perm_b32 v{vS2}, v{vG}, v{vG}, s{sSEL}']
    def s_writes(): return [f'ds_write_b32 v{vA1}, v{vS1}', f'ds_write_b32 v{vCD}, v{vS2}']
    def x6_read(): return [f'ds_read_b128 v[{vX6}:{vX6+3}], v{vX6r}']
    def sf_reads():
        r=[]
        for s2 in range(2):
            r.append(f'ds_read_b64_tr_b16 v[{vSF+4*s2}:{vSF+4*s2+1}], v{vSTa} offset:{1024*s2}')
            r.append(f'ds_read_b64_tr_b16 v[{vSF+4*s2+2}:{vSF+4*s2+3}], v{vSTb} offset:{1024*s2}')
        return r
    def s_restore(): return [f'ds_write_b32 v{vA1}, v{vZero}']
    def mfma1(dst):
        r=[]
        for blk in range(2):
            D=f'v[{dst+16*blk}:{dst+16*blk+15}]'
            for sp in range(2):
                C = D if sp>0 else '0'
                s_=2*blk+sp
                r.append(f'v_mfma_f32_32x32x16_bf16 {D}, v[{vX+4*s_}:{vX+4*s_+3}], v[{vI+4*sp}:{vI+4*sp+3}], {C}')
            r.append(f'v_mfma_f32_32x32x16_bf16 {D}, v[{vXE}:{vXE+3}], v[{vW3+4*blk}:{vW3+4*blk+3}], {D}')
            r.append(f'v_mfma_f32_32x32x16_bf16 {D}, v[{vX6}:{vX6+3}], v[{vW6+4*blk}:{vW6+4*blk+3}], {D}')
        return r
    ONE=f'v[{vONE}:{vONE+3}]'
    def plus1(blk):
        Eb=f'v[{vE+16*blk}:{vE+16*blk+15}]'
        return f'v_mfma_f32_32x32x16_bf16 {Eb}, {ONE}, {ONE}, {Eb}'
    def mfma2(cur,blk,s2):
        D=f'v[{vD2+16*blk}:{vD2+16*blk+15}]'; m=cur+8*blk+4*s2
        return f'v_mfma_f32_32x32x16_bf16 {D}, v[{m}:{m+3}], v[{vSF+4*s2}:{vSF+4*s2+3}], {D}'
    def keep(x):
        if 'nomfma' in ABL and x.startswith('v_mfma'): return False
        if 'nolds' in ABL and x.startswith('ds_'): return False
        if 'nodma' in ABL and 'buffer_load' in x: return False
        if 'notrans' in ABL and x.startswith(('v_exp','v_rcp')): return False
        if 'novalu' in ABL and x.startswith(('v_exp','v_rcp','v_mul','v_cvt','v_pk_mul')): return False
        return True
    def emit(backbone, inserts):
        backbone=[x if keep(x) else 's_nop 0' for x in backbone]
        inserts={k:[x for x in v if keep(x)] for k,v in inserts.items()}
        for k_ in sorted(k for k in inserts if k<0):
            for s_ in inserts[k_]: a(s_)
        for i,ins in enumerate(backbone):
            a(ins)
            for s_ in inserts.get(i,[]): a(s_)
    nlab=[0]
    PK='pk' in ABL
    DMAPOS=optl('dma',[37,48,60,70,82] if PK else [41,52,63,76,92])
    M1POS=optl('m1',[37,40,43,46,49,52,55,58] if PK else [42,46,50,54,58,62,68,74])
    SFPOS=optl('sf',[0,2,4,6]); RSPOS=optl('rs',[8])[0]; SAPOS=optl('sa',[9,10,11]); SWPOS=optl('sw',[12,13]); X6POS=optl('x6',[14])[0]
    VMPOS=optl('vm',[16])[0]; XPOS=optl('x',[16,18,20,22,24]); RECPOS=optl('rec',[26,27]); IDXPOS=optl('idx',[28,29,30,31,32])
    LGPOS=optl('lg',[36] if PK else [40])[0]; M2POS=optl('m2',[85,89,93,95] if PK else [89,95,111,111]); P1POS=optl('p1',[17,33])
    def body(p, steady, extra_first=None):
        cur=vD1[p]; nxt=vD1[1-p]
        bb=[]
        for blk in range(2):
            bb += [f'v_exp_f32 v{vE+16*blk+i}, v{cur+16*blk+i}' for i in range(16)]
        for blk in range(2):
            bb += [f'v_rcp_f32 v{vE+16*blk+i}, v{vE+16*blk+i}' for i in range(16)]
        if 'pk' in ABL:
            bb += [f'v_pk_mul_f32 v[{vE+2*i}:{vE+2*i+1}], v[{vE+2*i}:{vE+2*i+1}], v[{cur+2*i}:{cur+2*i+1}]' for i in range(16)]
            bb += [f'v_cvt_pk_bf16_f32 v{cur+q}, v{vE+2*q}, v{vE+2*q+1}' for q in range(16)]
        else:
            bb += [f'v_mul_f32 v{vE+i}, v{vE+i}, v{cur+i}' for i in range(16)]
            bb += [f'v_cvt_pk_bf16_f32 v{cur+q}, v{vE+2*q}, v{vE+2*q+1}' for q in range(8)]
            bb += [f'v_mul_f32 v{vE+16+i}, v{vE+16+i}, v{cur+16+i}' for i in range(16)]
            bb += [f'v_cvt_pk_bf16_f32 v{cur+8+q}, v{vE+16+2*q}, v{vE+16+2*q+1}' for q in range(8)]
        ins={}
        def put(pos,x):
            ins.setdefault(pos,[]).append(x)
        if not ('trim' in ABL and steady): put(-100,'s_waitcnt lgkmcnt(0)')
        if 'prio' in ABL:
            put(-99,f'''s_and_b32 s54, s{sT}, 2
            s_cmp_eq_u32 s54, 0
            s_cbranch_scc1 Lp{nlab[0]}a
            s_setprio {1-p}
            s_branch Lp{nlab[0]}b
            Lp{nlab[0]}a:
            s_setprio {3-p}
            Lp{nlab[0]}b:''')
            nlab[0]+=1
        if 'fprio' in ABL and not ('trim' in ABL and p==1):
            n=nlab[0]
            put(-99,f'''s_add_u32 s84, s84, s85
            s_bitcmp1_b32 s84, 17
            s_cbranch_scc1 Lp{n}h
            s_bitcmp1_b32 s84, 16
            s_cbranch_scc1 Lp{n}a
            s_setprio 3
            s_branch Lp{n}z
            Lp{n}a:
            s_setprio 2
            s_branch Lp{n}z
            Lp{n}h:
            s_bitcmp1_b32 s84, 16
            s_cbranch_scc1 Lp{n}b
            s_setprio 1
            s_branch Lp{n}z
            Lp{n}b:
            s_setprio 0
            Lp{n}z:''')
            nlab[0]+=1
        if steady and p==0:
            n=nlab[0]; nlab[0]+=1
            put(0,f's_cmp_lg_u32 s{sT}, 0\ns_cbranch_scc1 Ld{n}\n'+'\n'.join(dma(0))+f'\nLd{n}:')
        for x,q in zip(sf_reads(),SFPOS): put(q,x)
        put(RSPOS,s_restore()[0])
        put(P1POS[0],plus1(0))
        put(P1POS[1],plus1(1))
        if steady:
            for x,q in zip(s_addr(),SAPOS): put(q,x)
            for x,q in zip(s_writes(),SWPOS): put(q,x)
            put(X6POS,x6_read()[0])
            put(VMPOS,'s_waitcnt vmcnt(5)')
            for x,q in zip(x_reads(1-p),XPOS): put(q,x)
            for x,q in zip(rec_reads(p+2),RECPOS): put(q,x)
            for x,q in zip(idx_reads(p+3),IDXPOS): put(q,x)
            if 'trim' in ABL:
                n=nlab[0]; nlab[0]+=1
                put(LGPOS-2,f's_cmp_lt_i32 s{sT}, s86\ns_cbranch_scc1 Lz{n}\ns_mov_b32 s{sHD+2}, 0\ns_mov_b32 s{sEA+2}, 0\nLz{n}:')
            else: put(LGPOS-2,srd_select(3)[0])
            put(LGPOS,'s_waitcnt lgkmcnt(0)')
            for (x,y),q in zip(dma2(1-p),DMAPOS):
                if q>0 and q-1>LGPOS-1 and 'trim' in ABL: put(q-1,x); put(q,y)
                else: put(q,x+'\n'+y)
            for x,q in zip(mfma1(nxt),M1POS): put(q,x)
        for (b_,s_),q in zip(((0,0),(0,1),(1,0),(1,1)),M2POS): put(q,mfma2(cur,b_,s_))
        emit(bb,ins)
    def late_consts(a):
        a(f'''
        v_and_b32 v97, 31, v1
        v_lshrrev_b32 v98, 5, v1
        v_bfe_u32 v99, v97, 1, 3
        v_lshlrev_b32 v100, 7, v97
        v_add_u32 v100, s{sRB}, v100
        ''')
        for s in range(4):
            a(f'''
            v_add_u32 v101, {2*s}, v98
            v_xor_b32 v101, v101, v99
            v_lshl_add_u32 v{vHA+s}, v101, 4, v100
            ''')
        a(f'''
        v_lshrrev_b32 v101, 4, v97
        v_xor_b32 v101, v101, v98
        v_lshlrev_b32 v101, 4, v101
        v_lshl_add_u32 v101, v97, 5, v101
        v_add_u32 v101, s{sRB}, v101
        v_add_u32 v{vEAr}, 4096, v101
        s_lshl_b32 s57, s{sV}, 11
        s_add_u32 s57, s57, {L_S}
        v_lshlrev_b32 v101, 6, v97
        v_add_u32 v101, s57, v101
        v_bfe_u32 v102, v97, 2, 2
        v_xor_b32 v103, v98, v102
        v_lshl_add_u32 v{vX6r}, v103, 4, v101
        v_lshlrev_b32 v103, 1, v98
        v_xor_b32 v104, v103, v102
        v_lshl_add_u32 v{vC1}, v104, 4, v101
        v_add_u32 v103, 1, v103
        v_xor_b32 v104, v103, v102
        v_lshl_add_u32 v104, v104, 4, v101
        v_add_u32 v{vCD}, 12, v104
        v_cmp_gt_u32 vcc, 32, v1
        v_mov_b32 v103, 0xffff0000
        v_mov_b32 v104, -1
        v_cndmask_b32 v{vMK2}, v104, v103, vcc
        v_mov_b32 v{vOne}, 0x3f80
        v_mov_b32 v{vONE+1}, 0
        v_mov_b32 v{vONE+2}, 0
        v_mov_b32 v{vONE+3}, 0
        v_cndmask_b32 v{vONE}, 0, v{vOne}, vcc
        v_lshlrev_b32 v101, 3, v98
        v_sub_u32 v101, v97, v101
        v_and_b32 v102, 1, v101
        v_lshlrev_b32 v102, 4, v102
        v_lshlrev_b32 v102, v102, v{vOne}
        v_ashrrev_i32 v101, 1, v101
        ''')
        for k in range(8):
            q=8*(k>>2)+(k&3)
            a(f'v_cmp_eq_u32 s[{90+2*(k&3)}:{91+2*(k&3)}], {q}, v101')
            if (k&3)==3:
                for kk in range(k-3,k+1):
                    a(f'v_cndmask_b32 v{vI+kk}, 0, v102, s[{90+2*(kk&3)}:{91+2*(kk&3)}]')
        a(f'''
        v_and_b32 v101, 15, v1
        v_lshrrev_b32 v101, 2, v101
        v_lshl_add_u32 v101, v98, 2, v101
        v_lshlrev_b32 v101, 6, v101
        v_and_b32 v102, 1, v1
        v_lshl_add_u32 v101, v102, 3, v101
        v_add_u32 v101, s57, v101
        v_bfe_u32 v102, v1, 4, 1
        v_bfe_u32 v103, v1, 1, 1
        v_lshl_add_u32 v102, v102, 1, v103
        v_xor_b32 v103, v102, v98
        v_lshl_add_u32 v{vSTa}, v103, 4, v101
        v_add_u32 v103, 2, v98
        v_xor_b32 v103, v102, v103
        v_lshl_add_u32 v103, v103, 4, v101
        v_add_u32 v{vSTb}, 512, v103
        ''')

    lc=Asm(); late_consts(lc); lcl=list(lc.lines); per=(len(lcl)+9)//10
    def dma_lc(slot,k0):
        for k,x in enumerate(dma(slot)):
            a(x)
            if 'ilc' in ABL:
                for y in lcl[(k0+k)*per:(k0+k+1)*per]: a(y)
    a(f's_mov_b32 s{sHD+2}, {N}')
    a(f's_mov_b32 s{sEA+2}, {E*32}')
    dma_lc(0,0)
    st(13+18)
    for x in idx_reads(1): a(x)
    a(srd_select(1)[0])
    a('s_waitcnt lgkmcnt(0)')
    dma_lc(1,5)
    st(14)
    for x in idx_reads(2): a(x)
    a(srd_select(2)[0])
    if 'ilc' not in ABL:
        for y in lcl: a(y)
    for x in s_addr(): a(x)
    for x in s_writes(): a(x)
    for x in x6_read(): a(x)
    st(15)
    a('s_waitcnt vmcnt(5)')
    st(30)
    for x in x_reads(0): a(x)
    for x in rec_reads(1): a(x)
    a('s_waitcnt lgkmcnt(0)')
    for x in mfma1(vD1[0]): a(x)
    st(8)
    stampc(a,12,vTM,98)
    if DEBUG_TM: a(f'v_writelane_b32 v{vTM}, s{sNT}, 22\nv_writelane_b32 v{vTM}, s{sG}, 23\ns_getreg_b32 s98, hwreg(HW_REG_HW_ID)\nv_writelane_b32 v{vTM}, s98, 24')
    JM=[0,1,4,5]
    RESV=[[232,233,234,236],[237,238,252,253]]
    WXV=[192,196,200,204,208,212,228,248]
    def epi_prefetch(p):
        nxt=vD1[1-p]
        r=[]
        r.append('v_lshlrev_b32 v10, 4, v1')
        for f in range(8):
            r.append(f'v_add_u32 v9, {(F_H1+f)*1024}, v10\nbuffer_load_dwordx4 v[{16+4*f}:{19+4*f}], v9, s[{sWF}:{sWF+3}], 0 offen')
        for f in range(8):
            r.append(f'v_add_u32 v9, {(F_H2+f)*1024}, v10\nbuffer_load_dwordx4 v[{nxt+4*f}:{nxt+4*f+3}], v9, s[{sWF}:{sWF+3}], 0 offen')
        r.append(f'v_lshrrev_b32 v7, 5, v1\nv_lshlrev_b32 v9, 7, v7\nv_add_u32 v9, {WXO}, v9')
        for f in range(8):
            r.append(f'buffer_load_dwordx4 v[{WXV[f]}:{WXV[f]+3}], v9, s[{sWF}:{sWF+3}], 0 offen offset:{16*f}')
        r.append(f'''
        v_bfe_u32 v9, v1, 1, 3
        v_lshlrev_b32 v9, 3, v9
        v_add_u32 v3, s{sG}, v9
        v_add_u32 v9, s{sNODE0}, v9
        v_cmp_gt_u32 vcc, {BN}, v3
        v_mov_b32 v4, -1
        v_lshlrev_b32 v7, 4, v7
        v_cndmask_b32 v6, v4, v9, vcc
        ''')
        for s_ in range(4):
            r.append(f'buffer_load_dwordx4 v[{48+4*s_}:{51+4*s_}], v[6:7], s[{sH}:{sH+3}], 0 idxen offen offset:{32*s_}')
        r.append(f'''
        v_lshrrev_b32 v9, 5, v1
        v_lshlrev_b32 v9, 4, v9
        v_and_b32 v3, 31, v1
        v_lshlrev_b32 v3, 1, v3
        ''')
        for m in range(4):
            r.append(f'''
            v_add_u32 v5, {8*JM[m]}, v9
            v_add_u32 v8, s{sG}, v5
            v_add_u32 v5, s{sNODE0}, v5
            v_cmp_gt_u32 vcc, {BN}, v8
            v_mov_b32 v{241+2*m}, v3
            s_nop 0
            v_cndmask_b32 v{240+2*m}, v4, v5, vcc
            ''')
        for m in range(4):
            r.append(f'buffer_load_ushort v{RESV[0][m]}, v[{240+2*m}:{241+2*m}], s[{sH}:{sH+3}], 0 idxen offen')
            r.append(f'buffer_load_ushort v{RESV[1][m]}, v[{240+2*m}:{241+2*m}], s[{sH}:{sH+3}], 0 idxen offen offset:64')
        r.append(f'''
        v_bfe_u32 v9, v1, 1, 3
        v_lshlrev_b32 v9, 3, v9
        v_add_u32 v3, s{sG}, v9
        v_add_u32 v9, s{sNODE0}, v9
        v_bfe_u32 v5, v1, 4, 1
        v_and_b32 v8, 1, v1
        v_lshl_add_u32 v5, v5, 1, v8
        v_cmp_gt_u32 vcc, {BN}, v3
        v_subrev_u32 v5, 1, v5
        v_cmp_gt_u32 s[56:57], 3, v5
        v_mul_u32_u24 v9, 6, v9
        s_and_b64 vcc, vcc, s[56:57]
        v_cmp_gt_u32 s[56:57], 32, v1
        v_lshl_add_u32 v9, v5, 1, v9
        v_mov_b32 v4, 0x7fffff00
        s_and_b64 vcc, vcc, s[56:57]
        v_cndmask_b32 v10, v4, v9, vcc
        buffer_load_ushort v11, v10, s[{sPOS}:{sPOS+3}], 0 offen
        ''')
        return r
    def epilogue(p):
        nxt=vD1[1-p]; cur=vD1[p]
        a(f's_mov_b32 s54, {f32bits(-math.log(2.0))}')
        for i in range(32):
            a(f'v_mul_f32 v{vD2+i}, s54, v{vD2+i}')
        pk=vE
        for blk in range(2):
            for q in range(8):
                a(f'v_cvt_pk_bf16_f32 v{pk+8*blk+q}, v{vD2+16*blk+2*q}, v{vD2+16*blk+2*q+1}')
        a('s_waitcnt vmcnt(0)')
        acc=cur
        a(f'v_mul_f32 v{acc}, v{vD2}, v{WXV[0]}')
        a(f'v_mul_f32 v{acc+1}, v{vD2+1}, v{WXV[0]+1}')
        for i in range(2,32):
            a(f'v_fmac_f32 v{acc+(i&1)}, v{vD2+i}, v{WXV[i>>2]+(i&3)}')
        a(f'v_add_f32 v{acc}, v{acc}, v{acc+1}')
        a(f'v_mov_b32 v{acc+1}, v{acc}')
        for b2 in range(2):
            D=f'v[{64+16*b2}:{79+16*b2}]'
            for s_ in range(4):
                C = D if s_>0 else '0'
                a(f'v_mfma_f32_32x32x16_bf16 {D}, v[{48+4*s_}:{51+4*s_}], v[{16+4*(2*s_+b2)}:{19+4*(2*s_+b2)}], {C}')
            for blk in range(2):
                for sp in range(2):
                    f=(blk*2+sp)*2+b2
                    a(f'v_mfma_f32_32x32x16_bf16 {D}, v[{pk+8*blk+4*sp}:{pk+8*blk+4*sp+3}], v[{nxt+4*f}:{nxt+4*f+3}], {D}')
        a(f'v_permlane32_swap_b32 v{acc}, v{acc+1}')
        a(f'''
        v_lshlrev_b32 v11, 16, v11
        v_add_f32 v{acc}, v{acc}, v{acc+1}
        v_add_f32 v11, v11, v{acc}
        v_cvt_pk_bf16_f32 v11, v11, v11
        buffer_store_short v11, v10, s[{sO1}:{sO1+3}], 0 offen
        ''')
        a(f's_mov_b32 s54, {f32bits(-LOG2E)}')
        T=vE+16
        for b2 in range(2):
            for m in range(4):
                a(f'v_mul_f32 v{T+4*b2+m}, s54, v{64+16*b2+2*m}')
        for k in range(8): a(f'v_exp_f32 v{T+k}, v{T+k}')
        for k in range(8): a(f'v_add_f32 v{T+k}, 1.0, v{T+k}')
        for k in range(8): a(f'v_rcp_f32 v{T+k}, v{T+k}')
        for b2 in range(2):
            for m in range(4):
                x=64+16*b2+2*m; t=T+4*b2+m; hh=RESV[b2][m]
                a(f'v_lshlrev_b32 v{hh}, 16, v{hh}')
                a(f'v_fma_f32 v{t}, v{x}, v{t}, v{hh}')
                a(f'v_cvt_pk_bf16_f32 v{t}, v{t}, v{t}')
        for b2 in range(2):
            for m in range(4):
                t=T+4*b2+m
                a(f'buffer_store_short v{t}, v[{240+2*m}:{241+2*m}], s[{sO0}:{sO0+3}], 0 idxen offen offset:{64*b2}')
        st(10)
        if DEBUG_TM: a('s_waitcnt vmcnt(0)')
        st(11)
        stamp_store(a,vTM,98,44,45,0x80000,sV,254)
        a('s_endpgm')
    for p in range(2):
        a.label(f'L2_s{p}')
        if 'trim' in ABL:
            a(f's_cmp_ge_i32 s{sT}, s87\ns_cbranch_scc1 L2_l{p}')
        else:
            a(f'''
            s_add_u32 s54, s{sT}, 1
            s_cmp_ge_u32 s54, s{sNT}
            s_cbranch_scc1 L2_l{p}
            ''')
        if DEBUG_TM and p==0:
            for tt,ix in ((2,25),(4,26),(6,27),(8,28),(10,29)):
                a(f's_cmp_lg_u32 s{sT}, {tt}\ns_cbranch_scc1 Lst{ix}')
                stampc(a,ix,vTM,98)
                a.label(f'Lst{ix}')
        body(p, True)
        a(f's_add_u32 s{sT}, s{sT}, 1')
        if p==1:
            a(f'''
            v_add_u32 v{vRSa}, 128, v{vRSa}
            v_add_u32 v{vR0a}, 256, v{vR0a}
            v_add_u32 v{vR0e}, 256, v{vR0e}
            v_add_u32 v{vGe}, 512, v{vGe}
            s_branch L2_s0
            ''')
    for p in range(2):
        a.label(f'L2_l{p}')
        a(f'''
        s_cmp_lt_u32 s{sW1}, {NCH}
        s_cbranch_scc1 L2_l{p}n
        ''')
        body(p, False, None) if False else None
        for x in epi_prefetch(p): a(x)
        body(p, False)
        st(9)
        stampc(a,13,vTM,98)
        epilogue(p)
        a.label(f'L2_l{p}n')
        body(p, False)
        a('s_branch L2_nextbatch')
    a.label('L2_notiles')
    a(f'''
    s_cmp_lt_u32 s{sW1}, {NCH}
    s_cbranch_scc1 L2_nextbatch
    ''')
    for x in epi_prefetch(0): a(x)
    st(9)
    epilogue(0)
    a.label('L2_nextbatch')
    a(f'''
    s_waitcnt vmcnt(0) lgkmcnt(0)
    s_mov_b32 s{sW0}, s{sW1}
    s_add_u32 s{sW1}, s{sW1}, 1
    s_branch L2_batch
    ''')
    a.label('L2_end')
    a('s_endpgm')
    return a.finalize(), 256, 102, L_END

def main():
    k1,v1,s1,l1 = gen_k1()
    k2,v2,s2,l2 = gen_k2()
    hdr = open('gather_scatter__cheap_equivariant_egnn__graph.s.ref').read().split('; Override launch')[0]
    out = hdr
    out += f'; @launch kernel=egnn_part_kernel grid=({NCH+1+NTW},1,1) block=(512,1,1) lds={l1}\n'
    out += f'; @launch kernel=egnn_main_kernel grid=({NBK},1,1) block=(512,1,1) lds={l2}\n'
    out += '.amdgcn_target "amdgcn-amd-amdhsa--gfx950"\n.text\n'
    for name,body in (('egnn_part_kernel',k1),('egnn_main_kernel',k2)):
        out += f'.globl {name}\n.p2align 8\n.type {name},@function\n' + body
    out += '.section .rodata,"a"\n'
    for name,nv,ns in (('egnn_part_kernel',v1,s1),('egnn_main_kernel',v2,s2)):
        acc=(nv+3)//4*4
        out += f'''.p2align 6
.amdhsa_kernel {name}
  .amdhsa_next_free_vgpr {nv}
  .amdhsa_next_free_sgpr {ns}
  .amdhsa_accum_offset {acc}
  .amdhsa_group_segment_fixed_size 0
  .amdhsa_kernarg_size 88
  .amdhsa_user_sgpr_count 2
  .amdhsa_user_sgpr_kernarg_segment_ptr 1
  .amdhsa_system_sgpr_workgroup_id_x 1
  .amdhsa_float_denorm_mode_32 3
.end_amdhsa_kernel
'''
    dst = [x for x in sys.argv[1:] if not x.startswith('--')]
    path = dst[0] if dst else 'gather_scatter__cheap_equivariant_egnn__graph.s'
    open(path,'w').write(out)
    print('wrote',path,len(out))
main()
```

```python
import sys, math
from asmlib import Asm

N=12500; E=800000; CH=3200; NCH=250; NBK=256; BN=49
ROW=4224
OFFS=0; ENT=0x110000; WF=0x420000; TA=0x500000; TB=0x700000; TM=0x900000
NF=18; WDO=NF*1024; WXO=NF*1024+256; WFSZ=NF*1024+512
NTW=98
CAP=3584
LOG2E=1.4426950408889634
def f32bits(x):
    import struct; return struct.unpack('<I',struct.pack('<f',x))[0]

DEBUG_TM = '--tm' in sys.argv
K1PRIO = '--nok1prio' not in sys.argv
TFIRST = '--tfirst' in sys.argv
SC1 = '' if '--nosc1' in sys.argv else (' sc0 sc1' if '--sc01' in sys.argv else ' sc1')
SC1T = '' if '--tplain' in sys.argv else SC1
SC1W = SC1 if '--wsc1' in sys.argv else ''
SC1O = ' sc1' if '--osc1' in sys.argv else ''
PFN = int(([x[6:] for x in sys.argv if x.startswith('--pfn=')] or ['0'])[0])
PFK1 = 2 if PFN else 0

F_W3=0
F_H1=2
F_H2=10

def stamp(a, idx, vreg, sp):
    if not DEBUG_TM: return
    a(f'''
    s_memrealtime s[{sp}:{sp+1}]
    s_waitcnt lgkmcnt(0)
    v_writelane_b32 v{vreg}, s{sp}, {idx}
    ''')
def stampc(a, idx, vreg, sp):
    if not DEBUG_TM: return
    a(f'''
    s_memtime s[{sp}:{sp+1}]
    s_waitcnt lgkmcnt(0)
    v_writelane_b32 v{vreg}, s{sp}, {idx}
    ''')
def stamp_store(a, vreg, sp, ws_lo, ws_hi, region, wave_s, vt):
    if not DEBUG_TM: return
    a(f'''
    s_lshl_b32 s{sp}, s2, 3
    s_add_u32 s{sp}, s{sp}, s{wave_s}
    s_lshl_b32 s{sp}, s{sp}, 7
    s_add_u32 s{sp}, s{sp}, {TM+region}
    s_add_u32 s{sp}, s{ws_lo}, s{sp}
    s_addc_u32 s{sp+1}, s{ws_hi}, 0
    v_and_b32 v{vt}, 63, v0
    v_lshlrev_b32 v{vt}, 2, v{vt}
    s_mov_b32 exec_hi, 0
    global_store_dword v{vt}, v{vreg}, s[{sp}:{sp+1}]
    s_mov_b64 exec, -1
    ''')

def gen_k1():
    a=Asm()
    K1_STAGE=8192; K1_WTOT=24576
    a.label('egnn_part_kernel')
    a(f'''
    s_cmp_gt_u32 s2, {NCH+NTW}
    s_cbranch_scc1 L1_end
    v_lshrrev_b32 v2, 6, v0
    v_and_b32 v1, 63, v0
    s_load_dwordx4 s[4:7], s[0:1], 24
    s_load_dwordx2 s[8:9], s[0:1], 80
    s_load_dwordx2 s[34:35], s[0:1], 16
    v_readfirstlane_b32 s3, v2
    s_cmp_eq_u32 s2, {NTW if TFIRST else NCH}
    s_cbranch_scc1 L1_wprep
    s_cmp_{'lt' if TFIRST else 'gt'}_u32 s2, {NTW if TFIRST else NCH}
    s_cbranch_scc1 L1_tables
    s_sub_u32 s38, s2, {NTW+1 if TFIRST else 0}
    s_setprio {3 if K1PRIO else 0}
    ''')
    if DEBUG_TM: a('v_mov_b32 v70, 0')
    stamp(a,0,70,36)
    a(f'''
    v_lshlrev_b32 v3, 4, v0
    v_mov_b32 v4, 0
    v_mov_b32 v5, 0
    v_mov_b32 v6, 0
    v_mov_b32 v7, 0
    ds_write_b128 v3, v[4:7]
    s_mul_i32 s10, s38, {CH*4}
    s_mul_i32 s11, s38, {ROW}
    v_add_u32 v48, 8192, v3
    s_waitcnt lgkmcnt(0)
    s_add_u32 s12, s6, s10
    s_addc_u32 s13, s7, 0
    s_mov_b32 s14, {CH*4}
    s_mov_b32 s15, 0x20000
    s_add_u32 s16, s4, s10
    s_addc_u32 s17, s5, 0
    s_mov_b32 s18, {CH*4}
    s_mov_b32 s19, 0x20000
    buffer_load_dwordx4 v[8:11], v3, s[12:15], 0 offen
    buffer_load_dwordx4 v[12:15], v48, s[12:15], 0 offen
    buffer_load_dwordx4 v[16:19], v3, s[16:19], 0 offen
    buffer_load_dwordx4 v[20:23], v48, s[16:19], 0 offen
    ''')
    if PFK1:
        a(f'''
        s_mul_i32 s10, s38, {CH*32}
        s_add_u32 s32, s34, s10
        s_addc_u32 s33, s35, 0
        s_cmp_lt_u32 s38, {PFN}
        s_cselect_b32 s34, {CH*32}, 0
        s_mov_b32 s35, 0x20000
        v_lshlrev_b32 v64, 7, v0
        v_add_u32 v65, {512*128}, v64
        buffer_load_dword v66, v64, s[32:35], 0 offen
        ''')
        if PFK1>1: a('buffer_load_dword v67, v65, s[32:35], 0 offen')
        a(f's_mul_i32 s10, s38, {CH*4}')
    a(f'''
    s_add_u32 s24, s8, {OFFS}
    s_addc_u32 s25, s9, 0
    s_add_u32 s24, s24, s11
    s_addc_u32 s25, s25, 0
    s_mov_b32 s26, {ROW}
    s_mov_b32 s27, 0x20000
    s_add_u32 s28, s8, {ENT}
    s_addc_u32 s29, s9, 0
    s_add_u32 s28, s28, s10
    s_addc_u32 s29, s29, 0
    s_mov_b32 s30, {CH*4}
    s_mov_b32 s31, 0x20000
    s_mov_b32 s22, -{BN}
    v_mov_b32 v50, 1
    v_lshlrev_b32 v51, 5, v0
    v_add_u32 v52, 16384, v51
    s_barrier
    s_waitcnt vmcnt({2+PFK1})
    ''')
    stamp(a,1,70,36)
    def keyslot(i, dst, tmp):
        a(f'''
        v_mul_u32_u24 v{tmp}, 21400, v{dst}
        v_lshrrev_b32 v{tmp}, 20, v{tmp}
        v_mad_i32_i24 v{40+i}, v{tmp}, s22, v{dst}
        v_and_b32 v{tmp+1}, 7, v{40+i}
        v_lshl_or_b32 v{tmp}, v{tmp}, 3, v{tmp+1}
        v_lshlrev_b32 v{24+i}, 2, v{tmp}
        ''')
    for u in range(4):
        keyslot(u, 8+u, 54+2*u)
        a(f'ds_add_rtn_u32 v{32+u}, v{24+u}, v50')
    a('''
    v_cmp_gt_u32 vcc, 288, v0
    s_and_saveexec_b64 s[20:21], vcc
    s_cbranch_execz L1_skipB1
    ''')
    for u in range(4):
        keyslot(4+u, 12+u, 54+2*u)
        a(f'ds_add_rtn_u32 v{36+u}, v{28+u}, v50')
    a.label('L1_skipB1')
    a('s_mov_b64 exec, s[20:21]')
    a(f's_waitcnt vmcnt({PFK1})')
    for i in range(8):
        base = 51 if i<4 else 52
        a(f'''
        v_lshrrev_b32 v54, 3, v{40+i}
        v_lshl_or_b32 v54, v{40+i}, 29, v54
        v_lshl_or_b32 v54, v{16+i}, 15, v54
        v_add3_u32 v{40+i}, v54, v{base}, {8*(i%4)}
        ''')
    a('''
    s_waitcnt lgkmcnt(0)
    s_barrier
    ''')
    stamp(a,2,70,36)
    a('''
    ds_read_b128 v[8:11], v3
    s_waitcnt lgkmcnt(0)
    v_add_u32 v12, v8, v9
    v_add_u32 v13, v12, v10
    v_add_u32 v14, v13, v11
    v_mov_b32 v15, v14
    ''')
    for sh in (1,2,4,8):
        a(f'v_add_u32_dpp v15, v15, v15 row_shr:{sh} row_mask:0xf bank_mask:0xf')
    a('v_add_u32_dpp v15, v15, v15 row_bcast:15 row_mask:0xa bank_mask:0xf')
    a('v_add_u32_dpp v15, v15, v15 row_bcast:31 row_mask:0xc bank_mask:0xf')
    a(f'''
    s_lshl_b32 s10, s3, 2
    s_add_u32 s10, s10, {K1_WTOT}
    v_mov_b32 v16, s10
    s_mov_b32 s20, 0
    s_brev_b32 s21, 1
    s_mov_b64 exec, s[20:21]
    ds_write_b32 v16, v15
    s_mov_b64 exec, -1
    v_and_b32 v17, 7, v1
    v_lshlrev_b32 v17, 2, v17
    v_add_u32 v17, {K1_WTOT}, v17
    s_waitcnt lgkmcnt(0)
    s_barrier
    ds_read_b32 v18, v17
    v_cmp_gt_u32 vcc, s3, v1
    s_waitcnt lgkmcnt(0)
    v_cndmask_b32 v18, 0, v18, vcc
    ''')
    for sh in (1,2,4):
        a(f'v_add_u32_dpp v18, v18, v18 row_shr:{sh} row_mask:0xf bank_mask:0xf')
    a(f'''
    v_readlane_b32 s10, v18, 7
    v_sub_u32 v15, v15, v14
    v_add_u32 v8+0, s10, v15
    '''.replace('v8+0','v19'))
    a(f'''
    v_add_u32 v21, v19, v12
    v_add_u32 v22, v19, v13
    v_add_u32 v20, v19, v8
    v_mov_b32 v56, v19
    v_mov_b32 v57, v20
    v_mov_b32 v58, v21
    v_mov_b32 v59, v22
    ds_write_b128 v3, v[56:59]
    v_lshl_or_b32 v60, v20, 16, v19
    v_lshl_or_b32 v61, v22, 16, v21
    v_lshlrev_b32 v62, 3, v0
    buffer_store_dwordx2 v[60:61], v62, s[24:27], 0 offen{SC1}
    s_cmp_lg_u32 s3, 0
    s_cbranch_scc1 L1_nosent
    s_mov_b32 s10, {CH | (CH<<16)}
    v_mov_b32 v63, s10
    v_lshlrev_b32 v62, 2, v1
    v_add_u32 v62, 4096, v62
    v_cmp_gt_u32 vcc, 32, v1
    s_and_saveexec_b64 s[20:21], vcc
    buffer_store_dword v63, v62, s[24:27], 0 offen{SC1}
    s_mov_b64 exec, s[20:21]
    ''')
    a.label('L1_nosent')
    a('''
    s_waitcnt lgkmcnt(0)
    s_barrier
    ''')
    stamp(a,3,70,36)
    for u in range(4):
        a(f'ds_read_b32 v{8+u}, v{24+u}')
    a('''
    v_cmp_gt_u32 vcc, 288, v0
    s_and_saveexec_b64 s[20:21], vcc
    s_cbranch_execz L1_skipB2
    ''')
    for u in range(4):
        a(f'ds_read_b32 v{12+u}, v{28+u}')
    a('s_waitcnt lgkmcnt(0)')
    for u in range(4):
        a(f'v_add_lshl_u32 v{12+u}, v{12+u}, v{36+u}, 2')
    for u in range(4):
        a(f'ds_write_b32 v{12+u}, v{44+u} offset:{K1_STAGE}')
    a.label('L1_skipB2')
    a('s_mov_b64 exec, s[20:21]')
    a('s_waitcnt lgkmcnt(0)')
    for u in range(4):
        a(f'v_add_lshl_u32 v{8+u}, v{8+u}, v{32+u}, 2')
    for u in range(4):
        a(f'ds_write_b32 v{8+u}, v{40+u} offset:{K1_STAGE}')
    a(f'''
    s_waitcnt lgkmcnt(0)
    s_barrier
    ds_read_b128 v[8:11], v3 offset:{K1_STAGE}
    ds_read_b128 v[12:15], v3 offset:{K1_STAGE+8192}
    s_waitcnt lgkmcnt(1)
    buffer_store_dwordx4 v[8:11], v3, s[28:31], 0 offen{SC1}
    s_waitcnt lgkmcnt(0)
    buffer_store_dwordx4 v[12:15], v48, s[28:31], 0 offen{SC1}
    ''')
    stamp(a,4,70,36)
    if DEBUG_TM: a('s_waitcnt vmcnt(0)')
    stamp(a,5,70,36)
    stamp_store(a,70,36,8,9,0,3,69)
    a('s_endpgm')
    a.label('L1_wprep')
    a(f'''
    s_load_dwordx2 s[10:11], s[0:1], 40
    s_load_dwordx2 s[12:13], s[0:1], 48
    s_load_dwordx2 s[14:15], s[0:1], 56
    v_and_b32 v2, 31, v1
    v_lshrrev_b32 v3, 5, v1
    v_lshlrev_b32 v4, 4, v1
    s_waitcnt lgkmcnt(0)
    s_mov_b32 s16, s10
    s_mov_b32 s17, s11
    s_mov_b32 s18, {145*64*2}
    s_mov_b32 s19, 0x20000
    s_mov_b32 s20, s14
    s_mov_b32 s21, s15
    s_mov_b32 s22, {128*64*2}
    s_mov_b32 s23, 0x20000
    s_mov_b32 s24, s12
    s_mov_b32 s25, s13
    s_mov_b32 s26, {64*2}
    s_mov_b32 s27, 0x20000
    s_add_u32 s28, s8, {WF}
    s_addc_u32 s29, s9, 0
    s_mov_b32 s30, {WFSZ}
    s_mov_b32 s31, 0x20000
    s_mov_b32 s32, {f32bits(-LOG2E)}
    v_lshlrev_b32 v5, 1, v2
    v_lshl_add_u32 v6, v3, 10, v5
    v_lshl_add_u32 v7, v3, 9, v5
    v_lshlrev_b32 v8, 3, v3
    ''')
    frags=[]
    for blk in range(2): frags.append((F_W3+blk,'e',129,blk,'std',True))
    for s in range(4):
        for blk in range(2): frags.append((F_H1+2*s+blk,'h',16*s,blk,'std',False))
    for blk in range(2):
        for sp in range(2):
            for b2 in range(2): frags.append((F_H2+(blk*2+sp)*2+b2,'h',64+32*blk+16*sp,b2,'perm',False))
    assert len(frags)==NF
    for wv in range(8):
        a(f's_cmp_eq_u32 s3, {wv}')
        a(f's_cbranch_scc1 L1_w{wv}')
    a('s_endpgm')
    for wv in range(8):
        a.label(f'L1_w{wv}')
        mine=[f for i,f in enumerate(frags) if i%8==wv]
        for q,(F,srcn,row0,blk,kind,scaled) in enumerate(mine):
            r=16+8*q
            srd={'e':'s[16:19]','h':'s[20:23]','x':'s[24:27]'}[srcn]
            if kind=='wx':
                a(f'v_add_u32 v10, {row0*2}, v8')
                for t in range(8):
                    T=(t&3)+8*(t>>2)
                    a(f'buffer_load_ushort v{r+t}, v10, {srd}, 0 offen offset:{T*2}')
            else:
                vb = 6 if kind=='std' else 7
                a(f'v_add_u32 v10, {row0*128+blk*64}, v{vb}')
                for t in range(8):
                    T= t if kind=='std' else (t&3)+8*(t>>2)
                    a(f'buffer_load_ushort v{r+t}, v10, {srd}, 0 offen offset:{T*128}')
        if wv==0:
            a(f'''
            v_lshlrev_b32 v11, 1, v1
            v_add_u32 v11, {128*128}, v11
            buffer_load_ushort v12, v11, s[16:19], 0 offen
            ''')
        if wv==1:
            a(f'''
            v_and_b32 v11, 3, v1
            v_bfe_u32 v12, v1, 2, 2
            v_lshl_add_u32 v11, v12, 3, v11
            v_bfe_u32 v12, v1, 4, 1
            v_lshl_add_u32 v11, v12, 5, v11
            v_lshl_add_u32 v11, v3, 2, v11
            v_lshlrev_b32 v11, 1, v11
            buffer_load_ushort v12, v11, s[24:27], 0 offen
            ''')
        a('s_waitcnt vmcnt(0)')
        for q,(F,srcn,row0,blk,kind,scaled) in enumerate(mine):
            r=16+8*q
            if scaled:
                for t in range(8):
                    a(f'v_lshlrev_b32 v{r+t}, 16, v{r+t}')
                for t in range(8):
                    a(f'v_mul_f32 v{r+t}, s32, v{r+t}')
                for t in range(4):
                    a(f'v_cvt_pk_bf16_f32 v{64+t}, v{r+2*t}, v{r+2*t+1}')
            else:
                for t in range(4):
                    a(f'v_lshl_or_b32 v{64+t}, v{r+2*t+1}, 16, v{r+2*t}')
            a(f'v_add_u32 v10, {F*1024}, v4')
            a(f'buffer_store_dwordx4 v[64:67], v10, s[28:31], 0 offen{SC1W}')
            a('s_nop 1')
        if wv==0:
            a(f'''
            v_lshlrev_b32 v12, 16, v12
            v_mul_f32 v12, s32, v12
            v_cvt_pk_bf16_f32 v13, v12, v12
            v_and_b32 v14, 0xffff0000, v13
            v_sub_f32 v12, v12, v14
            v_cvt_pk_bf16_f32 v12, v12, v12
            v_and_b32 v12, 0xffff0000, v12
            v_and_b32 v13, 0xffff, v13
            v_or_b32 v13, v13, v12
            v_and_b32 v11, 31, v1
            v_lshlrev_b32 v11, 3, v11
            v_lshl_add_u32 v11, v3, 2, v11
            v_add_u32 v11, {WDO}, v11
            buffer_store_dword v13, v11, s[28:31], 0 offen
            ''')
        if wv==1:
            a(f'''
            v_lshlrev_b32 v12, 16, v12
            v_lshlrev_b32 v11, 2, v1
            v_add_u32 v11, {WXO}, v11
            buffer_store_dword v12, v11, s[28:31], 0 offen
            ''')
        a('s_endpgm')
    a.label('L1_tables')
    if DEBUG_TM: a('v_mov_b32 v15, 0')
    stamp(a,0,15,36)
    a(f"""
    s_load_dwordx2 s[10:11], s[0:1], 0
    s_load_dwordx2 s[12:13], s[0:1], 40
    s_sub_u32 s14, s2, {0 if TFIRST else NCH+1}
    s_lshl_b32 s14, s14, 7
    s_lshr_b32 s33, s3, 1
    s_lshl_b32 s33, s33, 5
    s_and_b32 s15, s3, 1
    v_and_b32 v2, 31, v1
    v_lshrrev_b32 v3, 5, v1
    v_lshrrev_b32 v8, 3, v1
    v_and_b32 v9, 7, v1
    v_lshrrev_b32 v10, 4, v1
    s_waitcnt lgkmcnt(0)
    s_mov_b32 s16, s10
    s_or_b32 s17, s11, 0x800000
    s_mov_b32 s18, {N}
    s_mov_b32 s19, 0x20000
    s_mov_b32 s20, s12
    s_mov_b32 s21, s13
    s_mov_b32 s22, {128*128}
    s_mov_b32 s23, 0x20000
    s_mul_i32 s34, s15, {TB-TA}
    s_add_u32 s34, s34, {TA}
    s_add_u32 s24, s8, s34
    s_addc_u32 s25, s9, 0
    s_or_b32 s25, s25, 0x800000
    s_mov_b32 s26, {N}
    s_mov_b32 s27, 0x20000
    """)
    for r in range(2):
        a(f"""
        s_lshl_b32 s34, s3, 1
        s_add_u32 s34, s34, {r}
        s_lshl_b32 s35, s34, 3
        s_add_u32 s35, s35, s14
        v_add_u32 v4, s35, v8
        v_add_u32 v5, {4*r}, v10
        v_xor_b32 v5, v5, v9
        v_lshlrev_b32 v5, 4, v5
        s_lshl_b32 s34, s34, 10
        s_add_u32 m0, s34, 16384
        s_nop 0
        buffer_load_dwordx4 v[4:5], s[16:19], 0 idxen offen lds
        """)
    a(f"""
    v_lshlrev_b32 v6, 4, v1
    s_lshl_b32 s34, s3, 10
    v_add_u32 v6, s34, v6
    s_mov_b32 m0, s34
    v_add_u32 v7, 8192, v6
    buffer_load_dwordx4 v6, s[20:23], 0 offen lds
    s_add_u32 m0, s34, 8192
    s_nop 0
    buffer_load_dwordx4 v7, s[20:23], 0 offen lds
    v_and_b32 v8, 15, v1
    v_lshrrev_b32 v9, 2, v8
    v_lshl_add_u32 v9, v3, 3, v9
    v_lshlrev_b32 v9, 7, v9
    v_bfe_u32 v10, v1, 4, 1
    v_lshl_add_u32 v9, v10, 5, v9
    v_and_b32 v10, 3, v1
    v_lshl_add_u32 v9, v10, 3, v9
    s_lshl_b32 s34, s15, 13
    v_add_u32 v9, s34, v9
    v_add_u32 v10, s33, v2
    v_lshlrev_b32 v10, 7, v10
    v_add_u32 v10, 16384, v10
    v_bfe_u32 v11, v2, 1, 3
    s_mov_b32 s35, {f32bits(-LOG2E)}
    s_waitcnt vmcnt(0)
    """)
    stamp(a,1,15,36)
    a('s_barrier')
    for s_ in range(4):
        a(f"""
        v_add_u32 v12, {2*s_}, v3
        v_xor_b32 v12, v12, v11
        v_lshl_add_u32 v12, v12, 4, v10
        ds_read_b128 v[{16+4*s_}:{19+4*s_}], v12
        """)
    for s_ in range(4):
        for blk in range(2):
            r=32+4*(2*s_+blk)
            a(f'ds_read_b64_tr_b16 v[{r}:{r+1}], v9 offset:{2048*s_+64*blk}')
            a(f'ds_read_b64_tr_b16 v[{r+2}:{r+3}], v9 offset:{2048*s_+64*blk+512}')
        if s_==1: a('s_waitcnt lgkmcnt(0)')
    a('s_waitcnt lgkmcnt(0)')
    a('s_barrier')
    stamp(a,2,15,36)
    for blk in range(2):
        D=f'v[{64+16*blk}:{79+16*blk}]'
        for s_ in range(4):
            C = D if s_>0 else '0'
            r=32+4*(2*s_+blk)
            a(f'v_mfma_f32_32x32x16_bf16 {D}, v[{r}:{r+3}], v[{16+4*s_}:{19+4*s_}], {C}')
    a(f"""
    s_lshl_b32 s34, s3, 12
    v_lshlrev_b32 v4, 7, v2
    v_add_u32 v4, s34, v4
    v_and_b32 v5, 7, v2
    v_lshlrev_b32 v5, 4, v5
    """)
    for blk in range(2):
        for i in range(16):
            a(f'v_mul_f32 v{64+16*blk+i}, s35, v{64+16*blk+i}')
    a("""
    s_cmp_eq_u32 s15, 0
    s_cbranch_scc1 L1_tabA
    v_lshl_add_u32 v4, v3, 3, v4
    """)
    for blk in range(2):
        for q in range(8):
            a(f'v_cvt_pk_bf16_f32 v{32+8*blk+q}, v{64+16*blk+2*q}, v{64+16*blk+2*q+1}')
        for m in range(4):
            a(f'v_xor_b32 v6, {16*(4*blk+m)}, v5')
            a(f'v_add_u32 v6, v6, v4')
            a(f'ds_write_b64 v6, v[{32+8*blk+2*m}:{33+8*blk+2*m}]')
    a('s_branch L1_tabS')
    a.label('L1_tabA')
    for r in range(16):
        a(f'v_cvt_pk_bf16_f32 v{32+r}, v{64+r}, v{80+r}')
    a('v_lshlrev_b32 v7, 4, v3')
    for m in range(4):
        a(f'v_add_u32 v6, {32*m}, v7')
        a(f'v_xor_b32 v6, v6, v5')
        a(f'v_add_u32 v6, v6, v4')
        a(f'ds_write_b128 v6, v[{32+4*m}:{35+4*m}]')
    a.label('L1_tabS')
    stamp(a,3,15,36)
    a(f"""
    v_lshlrev_b32 v6, 4, v1
    v_add_u32 v6, s34, v6
    v_lshrrev_b32 v8, 3, v1
    v_and_b32 v9, 7, v1
    v_xor_b32 v9, v9, v8
    v_lshlrev_b32 v13, 4, v9
    s_add_u32 s14, s14, s33
    v_add_u32 v8, s14, v8
    s_waitcnt lgkmcnt(0)
    """)
    for i in range(4):
        a(f'ds_read_b128 v[{48+4*i}:{51+4*i}], v6 offset:{1024*i}')
    for i in range(4):
        a(f'v_add_u32 v12, {8*i}, v8')
        a(f's_waitcnt lgkmcnt({3-i})')
        a(f'buffer_store_dwordx4 v[{48+4*i}:{51+4*i}], v[12:13], s[24:27], 0 idxen offen{SC1T}')
    stamp(a,4,15,36)
    if DEBUG_TM: a('s_waitcnt vmcnt(0)')
    stamp(a,5,15,36)
    stamp_store(a,15,36,8,9,0,3,14)
    a('s_endpgm')
    a.label('L1_end')
    a('s_endpgm')
    return a.finalize(), 96, 40, 32768+64

L_G=0; L_R0=28672; L_RS=43264; L_S=50432; L_RING=66816; L_GTAB=148736; L_WTOT=156928; L_PD=157184; L_WST=158208; L_AST=L_WST+2560; L_END=L_AST+2048
SLOT=5120
vI=16; vW3=24; vW6=32; vS1=40; vS2=41; vD2=64; vD1=(96,128); vE=160; vX=192; vXE=208; vX6=212; vSF=216; vONE=224
vHA=228; vEAr=232; vX6r=233; vC1=234; vSTa=235; vC2=236; vMK2=237; vEAc=238; vOne=239; vHP=240
vSTb=15; vCD=14
vRSa=248; vR0a=249; vR0e=250; vGe=251; vR0=252; vG=253; vA1=254; vA2=255; vEAi=10; vEAo=11
vZero=vONE+1
vTM=12
sH=4; sEA=8; sOF=12; sEN=16; sPOS=20; sWF=24; sO0=28; sO1=32; sHD=36; sSEL=100; sTA=40
sWS=44
sW0=46; sW1=47; sV=3; sG=101; sCNT=48; sBASE=49; sNT=50; sT=51; sRB=52; sNODE0=53; sMK=89

ABL=set(x[6:] for x in sys.argv if x.startswith('--abl=') ) | ({'fprio','trim','pk','xmap'} - set(x[5:] for x in sys.argv if x.startswith('--no=')))
OPT=dict(x[6:].split(':') for x in sys.argv if x.startswith('--opt='))
def optl(k,d): return [int(v.replace('n','-')) for v in OPT[k].split(',')] if k in OPT else d
TRIMK='trim'; PF2K='pf2'; TBK='tbpf'; XMK='xmap'
EAF=''.join(' '+x for x in OPT.get('eaf','').split('+') if x); HF=''.join(' '+x for x in OPT.get('hf','').split('+') if x)
NH_ = 0 if 'noh' in ABL else N
NE_ = 0 if 'noea' in ABL else E*32
def gen_k2():
    a=Asm()
    def st(i): stamp(a,i,vTM,98)
    a.label('egnn_main_kernel')
    a(f'''
    s_cmp_ge_u32 s2, {NBK}
    s_cbranch_scc1 L2_end
    ''')
    if 'xmap' in ABL:
        a('s_and_b32 s4, s2, 7\ns_lshl_b32 s4, s4, 5\ns_lshr_b32 s2, s2, 3\ns_or_b32 s2, s2, s4')
    if DEBUG_TM: a(f'v_mov_b32 v{vTM}, 0')
    st(0)
    a(f'''
    s_load_dwordx2 s[44:45], s[0:1], 80
    s_load_dwordx4 s[36:39], s[0:1], 0
    s_load_dwordx2 s[40:41], s[0:1], 16
    s_load_dwordx2 s[42:43], s[0:1], 64
    v_and_b32 v1, 63, v0
    v_lshrrev_b32 v2, 6, v0
    v_lshrrev_b32 v3, 1, v0
    v_readfirstlane_b32 s{sV}, v2
    ''')
    if 'rot' in OPT:
        a(f'''
        s_lshr_b32 s54, s2, 5
        s_mul_i32 s54, s54, {int(OPT['rot'])}
        v_cmp_gt_u32 vcc, {NCH}, v3
        v_add_u32 v9, s54, v3
        v_subrev_u32 v10, {NCH}, v9
        s_movk_i32 s55, {NCH}
        v_cmp_gt_u32 s[56:57], s55, v9
        s_nop 1
        v_cndmask_b32 v9, v10, v9, s[56:57]
        v_cndmask_b32 v3, v3, v9, vcc
        ''')
    a(f'''
    v_and_b32 v9, 1, v0
    s_lshl_b32 s54, s2, 4
    s_mov_b32 s55, {ROW}
    v_mov_b32 v96, s54
    v_mad_u32_u24 v96, v3, s55, v96
    s_mov_b32 s{sOF+2}, {NCH*ROW}
    s_mov_b32 s{sOF+3}, 0x20000
    s_waitcnt lgkmcnt(0)
    s_add_u32 s{sOF}, s44, {OFFS}
    s_addc_u32 s{sOF+1}, s45, 0
    buffer_load_dwordx4 v[4:7], v96, s[{sOF}:{sOF+3}], 0 offen
    buffer_load_ushort v8, v96, s[{sOF}:{sOF+3}], 0 offen offset:16
    ''')
    st(16)
    a(f"""
    s_mov_b32 s{sPOS}, s38
    s_mov_b32 s{sPOS+1}, s39
    s_mov_b32 s{sPOS+2}, {N*6}
    s_mov_b32 s{sPOS+3}, 0x20000
    s_add_u32 s{sWF}, s44, {WF}
    s_addc_u32 s{sWF+1}, s45, 0
    s_mov_b32 s{sWF+2}, {WFSZ}
    s_mov_b32 s{sWF+3}, 0x20000
    s_mov_b32 s{sW0}, 0
    s_mov_b32 s{sW1}, {NCH}
    s_mov_b32 s63, 2
    v_lshlrev_b32 v96, 4, v1
    s_lshl_b32 s58, s{sV}, 10
    v_add_u32 v96, s58, v96
    """)
    PE=optl('pe',[5])[0]
    assert PE<=9
    def posdma(r):
        a(f"""
        s_add_u32 m0, s58, {L_RING+8192*r}
        v_add_u32 v97, {8192*r}, v96
        buffer_load_dwordx4 v97, s[{sPOS}:{sPOS+3}], 0 offen lds
        """)
    chunks=[f"""
    s_mov_b32 s{sH}, s36
    s_or_b32 s{sH+1}, s37, 0x800000
    s_mov_b32 s{sH+2}, {N}
    s_mov_b32 s{sH+3}, 0x20000
    s_mov_b32 s{sEA}, s40
    s_mov_b32 s{sEA+1}, s41
    s_mov_b32 s{sEA+2}, {E*32}
    s_mov_b32 s{sEA+3}, 0x20000
    s_add_u32 s{sEN}, s44, {ENT}
    s_addc_u32 s{sEN+1}, s45, 0
    s_mov_b32 s{sEN+2}, {NCH*CH*4}
    s_mov_b32 s{sEN+3}, 0x20000
    """, f"""
    s_mov_b32 s{sO0}, s42
    s_or_b32 s{sO0+1}, s43, 0x800000
    s_mov_b32 s{sO0+2}, {N}
    s_mov_b32 s{sO0+3}, 0x20000
    s_add_u32 s{sO1}, s42, {N*128}
    s_addc_u32 s{sO1+1}, s43, 0
    s_mov_b32 s{sO1+2}, {N*6}
    s_mov_b32 s{sO1+3}, 0x20000
    s_add_u32 s{sHD}, s44, {TB}
    s_addc_u32 s{sHD+1}, s45, 0
    s_or_b32 s{sHD+1}, s{sHD+1}, 0x800000
    s_mov_b32 s{sHD+2}, {N}
    s_mov_b32 s{sHD+3}, 0x20000
    """, f"""
    s_add_u32 s{sTA}, s44, {TA}
    s_addc_u32 s{sTA+1}, s45, 0
    s_or_b32 s{sTA+1}, s{sTA+1}, 0x800000
    s_mov_b32 s{sTA+2}, {N}
    s_mov_b32 s{sTA+3}, 0x20000
    s_mul_i32 s{sRB}, s{sV}, {2*SLOT}
    s_add_u32 s{sRB}, s{sRB}, {L_RING}
    s_mov_b32 s{sMK}, 0xffffffe0
    s_mov_b32 s{sSEL}, 0x01000100
    v_lshrrev_b32 v98, 5, v1
    v_and_b32 v101, 1, v1
    v_xor_b32 v101, v101, v98
    v_lshlrev_b32 v{vEAc}, 4, v101
    """, f"""
    v_and_b32 v101, 7, v1
    v_lshrrev_b32 v102, 4, v1
    v_xor_b32 v103, v101, v102
    v_lshlrev_b32 v{vHP+1}, 4, v103
    v_lshlrev_b32 v{vHP+5}, 4, v103
    v_add_u32 v102, 4, v102
    v_xor_b32 v103, v101, v102
    v_lshlrev_b32 v{vHP+3}, 4, v103
    v_lshlrev_b32 v{vHP+7}, 4, v103
    """, f"""
    v_mov_b32 v{vX6}, 0
    v_mov_b32 v{vX6+1}, 0
    v_mov_b32 v{vX6+2}, 0
    v_mov_b32 v{vX6+3}, 0
    v_mfma_f32_32x32x16_bf16 v[{vD2}:{vD2+15}], v[{vX6}:{vX6+3}], v[{vX6}:{vX6+3}], 0
    v_mfma_f32_32x32x16_bf16 v[{vD2+16}:{vD2+31}], v[{vX6}:{vX6+3}], v[{vX6}:{vX6+3}], 0
    """]
    for k in range(max(PE,len(chunks))):
        if k<PE: posdma(k)
        if k<len(chunks): a(chunks[k])
    a(f"""
    s_cmp_eq_u32 s{sV}, 2
    s_cselect_b32 s54, {WDO}, s58
    s_cselect_b32 s55, 2048, s58
    v_lshlrev_b32 v97, 4, v1
    v_add_u32 v97, s54, v97
    s_add_u32 m0, s55, {L_WST}
    s_cmp_gt_u32 s{sV}, 2
    s_cbranch_scc1 L2_nowst
    v_cmp_gt_u32 vcc, 32, v1
    s_cmp_eq_u32 s{sV}, 2
    s_cselect_b64 exec, vcc, -1
    buffer_load_dwordx4 v97, s[{sWF}:{sWF+3}], 0 offen lds
    s_mov_b64 exec, -1
    """)
    a.label('L2_nowst')
    st(17)
    if TBK in ABL:
        a(f'''
        {'s_and_b32 s54, s2, 31' if XMK in ABL else 's_lshr_b32 s54, s2, 3'}
        s_mul_i32 s54, s54, 391
        s_lshl_b32 s55, s{sV}, 6
        v_add_u32 v100, s55, v1
        v_cmp_gt_u32 vcc, 391, v100
        v_add_u32 v100, s54, v100
        v_mov_b32 v101, 0
        v_mov_b32 v102, -1
        v_cndmask_b32 v100, v102, v100, vcc
        buffer_load_dword v52, v[100:101], s[{sHD}:{sHD+3}], 0 idxen offen
        ''')
    st(18)
    st(1)
    a(f's_waitcnt vmcnt({min(PE,9)+(1 if TBK in ABL else 0)})')
    st(19)
    a('s_branch L2_counts')
    a.label('L2_batch')
    a(f"""
    s_barrier
    v_lshlrev_b32 v96, 4, v1
    s_lshl_b32 s58, s{sV}, 10
    v_add_u32 v96, s58, v96
    """)
    for r in range(PE): posdma(r)
    a.label('L2_counts')
    a(f"""
    v_alignbit_b32 v100, v5, v4, 16
    v_alignbit_b32 v101, v6, v5, 16
    v_alignbit_b32 v102, v7, v6, 16
    v_alignbit_b32 v103, v8, v7, 16
    v_and_b32 v105, 0xffff, v4
    v_sub_u32 v104, v8, v105
    s_sub_u32 s54, s{sW1}, s{sW0}
    v_subrev_u32 v106, s{sW0}, v3
    v_cmp_gt_u32 vcc, s54, v106
    s_mov_b32 s55, {CH*4}
    v_lshlrev_b32 v107, 2, v105
    v_lshl_add_u32 v107, v9, 4, v107
    v_cndmask_b32 v104, 0, v104, vcc
    v_lshlrev_b32 v109, 2, v9
    v_sub_u32 v109, v104, v109
    v_max_i32 v109, 0, v109
    v_mad_u32_u24 v107, v3, s55, v107
    """)
    for i in range(4):
        a(f'v_cmp_lt_u32 s[{90+2*i}:{91+2*i}], {8*i}, v109')
    for i in range(4):
        a(f's_mov_b64 exec, s[{90+2*i}:{91+2*i}]')
        a(f's_cbranch_execz L2_e{i}')
        a(f'buffer_load_dwordx4 v[{192+4*i}:{195+4*i}], v107, s[{sEN}:{sEN+3}], 0 offen offset:{32*i}')
        a.label(f'L2_e{i}')
    a('s_mov_b64 exec, -1')
    st(2)
    a(f"""
    v_pk_sub_u16 v100, v100, v4
    v_pk_sub_u16 v101, v101, v5
    v_pk_sub_u16 v102, v102, v6
    v_pk_sub_u16 v103, v103, v7
    v_cmp_eq_u32 s[56:57], 0, v9
    """)
    for q in range(4):
        a(f'v_cndmask_b32 v{100+q}, 0, v{100+q}, vcc')
    for q in range(5):
        a(f'v_cndmask_b32 v{112+q}, 0, v{100+q}, s[56:57]')
    for sh in (1,2,4,8):
        for q in range(5):
            a(f'v_add_u32_dpp v{112+q}, v{112+q}, v{112+q} row_shr:{sh} row_mask:0xf bank_mask:0xf')
    for q in range(5):
        a(f'v_add_u32_dpp v{112+q}, v{112+q}, v{112+q} row_bcast:15 row_mask:0xa bank_mask:0xf')
    for q in range(5):
        a(f'v_add_u32_dpp v{112+q}, v{112+q}, v{112+q} row_bcast:31 row_mask:0xc bank_mask:0xf')
    st(21)
    a(f"""
    s_lshl_b32 s54, s{sV}, 5
    s_add_u32 s54, s54, {L_WTOT}
    v_mov_b32 v117, s54
    s_mov_b32 s56, 0
    s_brev_b32 s57, 1
    s_mov_b64 exec, s[56:57]
    ds_write_b128 v117, v[112:115]
    ds_write_b32 v117, v116 offset:16
    s_mov_b64 exec, -1
    v_and_b32 v118, 7, v1
    v_lshlrev_b32 v118, 5, v118
    v_add_u32 v118, {L_WTOT}, v118
    s_waitcnt lgkmcnt(0)
    s_barrier
    ds_read_b128 v[120:123], v118
    ds_read_b32 v124, v118 offset:16
    """)
    st(3)
    a('s_waitcnt lgkmcnt(0)')
    for sh in (1,2,4):
        for q in range(5):
            a(f'v_add_u32_dpp v{120+q}, v{120+q}, v{120+q} row_shr:{sh} row_mask:0xf bank_mask:0xf')
    for q in range(5):
        a(f'v_readlane_b32 s{58+q}, v{120+q}, 7')
    a(f's_sub_u32 s54, s{sV}, 1')
    a(f's_max_i32 s54, s54, 0')
    for q in range(4):
        a(f'v_readlane_b32 s{64+q}, v{120+q}, s54')
    a(f's_cmp_eq_u32 s{sV}, 0')
    for q in range(4):
        a(f's_cselect_b32 s{64+q}, 0, s{64+q}')
    for q in range(4):
        a(f's_and_b32 s{68+2*q}, s{58+q}, 0xffff')
        a(f's_lshr_b32 s{69+2*q}, s{58+q}, 16')
    a('s_mov_b32 s84, 0')
    for g in range(8):
        a(f"""
        s_mov_b32 s{76+g}, s84
        s_add_u32 s54, s{68+g}, 31
        s_andn2_b32 s54, s54, 31
        s_add_u32 s84, s84, s54
        """)
    a(f"""
    s_max_u32 s54, s84, s62
    s_cmp_le_u32 s54, {CAP}
    s_cbranch_scc1 L2_fits
    s_add_u32 s{sW1}, s{sW0}, 1
    s_waitcnt vmcnt(0) lgkmcnt(0)
    s_branch L2_batch
    """)
    a.label('L2_fits')
    a(f"""
    s_cmp_eq_u32 s63, 1
    s_cbranch_scc1 L2_pidone
    """)
    if 'nopi' in ABL:
        a(f's_mov_b32 s{sG}, s{sV}')
    else:
        for g in range(8):
            a(f's_lshl_b32 s54, s{68+g}, 3')
            a(f's_add_u32 s{90+g}, s54, {7-g}')
            a(f'v_writelane_b32 v126, s{90+g}, {g}')
        a('v_mov_b32 v127, 0')
        for h in range(2):
            for k in range(4):
                pr=(56,58,54,64)[k] if False else None
            for k in range(4):
                a(f'v_cmp_gt_u32 s[{(54,56,58,60)[k]}:{(54,56,58,60)[k]+1}], s{90+4*h+k}, v126')
            for k in range(4):
                a(f'v_addc_co_u32 v127, vcc, 0, v127, s[{(54,56,58,60)[k]}:{(54,56,58,60)[k]+1}]')
        a(f"""
        s_sub_u32 s54, 11, s{sV}
        s_cmp_lt_u32 s{sV}, 4
        s_cselect_b32 s54, s{sV}, s54
        v_cmp_eq_u32 vcc, s54, v127
        s_nop 3
        s_and_b32 s54, vcc_lo, 0xff
        s_ff1_i32_b32 s{sG}, s54
        """)
    a(f"""
    s_mul_i32 s{sNODE0}, s2, {BN}
    s_add_u32 s{sNODE0}, s{sNODE0}, s{sG}
    """)
    a.label('L2_pidone')
    a(f's_mov_b32 s{sCNT}, s68')
    a(f's_mov_b32 s{sBASE}, s76')
    for g in range(1,8):
        a(f"""
        s_cmp_eq_u32 s{sG}, {g}
        s_cselect_b32 s{sCNT}, s{68+g}, s{sCNT}
        s_cselect_b32 s{sBASE}, s{76+g}, s{sBASE}
        """)
    a(f"""
    s_add_u32 s{sNT}, s{sCNT}, 31
    s_lshr_b32 s{sNT}, s{sNT}, 5
    """)
    for q in range(4):
        a(f's_pack_ll_b32_b16 s{85+q}, s{76+2*q}, s{77+2*q}')
        a(f's_add_u32 s{85+q}, s{85+q}, s{64+q}')
        a(f's_add_u32 s{85+q}, s{85+q}, {CH | (CH<<16)}')
    a(f"""
    v_lshl_or_b32 v105, v105, 16, v105
    v_mul_u32_u24 v106, 0x100010, v9
    """)
    for q in range(4):
        a(f"""
        v_sub_u32 v{112+q}, v{112+q}, v{100+q}
        v_add_u32 v{112+q}, s{85+q}, v{112+q}
        v_sub_u32 v{120+q}, v{4+q}, v105
        v_sub_u32 v{112+q}, v{112+q}, v{120+q}
        v_lshl_add_u32 v{112+q}, v{112+q}, 2, v106
        """)
    a(f"""
    v_lshlrev_b32 v108, 4, v0
    v_add_u32 v108, {L_GTAB}, v108
    ds_write_b128 v108, v[112:115]
    v_mov_b32 v104, v109
    s_mov_b32 s54, {CH*32}
    v_mul_lo_u32 v110, v3, s54
    v_mov_b32 v111, {4*CH+4*CAP}
    v_lshlrev_b32 v96, 4, v1
    s_lshl_b32 s58, s{sV}, 10
    v_add_u32 v96, s58, v96
    s_waitcnt vmcnt(0)
    """)
    st(4)
    if PE<10:
        a(f"""
        v_lshlrev_b32 v96, 4, v1
        s_lshl_b32 s58, s{sV}, 10
        v_add_u32 v96, s58, v96
        """)
        for r in range(PE,10):
            if r==9:
                a(f's_cmp_ge_u32 s{sV}, 2\ns_cbranch_scc1 L2_posdone2')
            a(f"""
            s_add_u32 m0, s58, {L_RING+8192*r}
            v_add_u32 v97, {8192*r}, v96
            buffer_load_dwordx4 v97, s[{sPOS}:{sPOS+3}], 0 offen lds
            """)
        a.label('L2_posdone2')
    a(f"""
    s_cmp_eq_u32 s63, 1
    s_cbranch_scc1 L2_noA
    s_lshl_b32 s54, s{sV}, 10
    s_add_u32 s55, s54, {L_RING+75776}
    s_add_u32 s54, s54, {L_AST-6*1024}
    s_cmp_lt_u32 s{sV}, 6
    s_cselect_b32 s62, s55, s54
    v_lshrrev_b32 v120, 3, v1
    v_lshlrev_b32 v120, 3, v120
    v_add_u32 v121, s{sG}, v120
    v_add_u32 v120, s{sNODE0}, v120
    v_cmp_gt_u32 vcc, {BN}, v121
    v_mov_b32 v122, -1
    v_and_b32 v123, 7, v1
    v_lshlrev_b32 v123, 4, v123
    v_cndmask_b32 v122, v122, v120, vcc
    s_mov_b32 m0, s62
    s_nop 0
    buffer_load_dwordx4 v[122:123], s[{sTA}:{sTA+3}], 0 idxen offen lds
    """)
    a.label('L2_noA')
    st(20)
    def quad(qreg, i, dyn=False):
        for u in range(4):
            a(f'v_lshrrev_b32 v{140+u}, 29, v{qreg+u}')
            a(f'v_lshl_add_u32 v{140+u}, v{140+u}, 1, v108')
            a(f'ds_read_u16 v{144+u}, v{140+u}')
        for u in range(4):
            if dyn: a(f'v_cmp_lt_u32 s[{90+2*u}:{91+2*u}], {u}, v104')
            else:   a(f'v_cmp_lt_u32 s[{90+2*u}:{91+2*u}], {8*i+u}, v104')
        a('s_waitcnt lgkmcnt(0)')
        for u in range(4):
            if dyn: a(f'v_add_u32 v{144+u}, v{144+u}, v149')
            a(f'v_cndmask_b32 v{144+u}, v111, v{144+u}, s[{90+2*u}:{91+2*u}]')
        ko = 0 if dyn else 8*i
        for u in range(4):
            a(f'ds_write_b32 v{144+u}, v{qreg+u} offset:{L_R0-4*CH+4*(ko+u)}')
            a(f'ds_write_b32 v{144+u}, v110 offset:{L_S-4*CH+4*(ko+u)}')
    for i in range(4):
        quad(192+4*i, i)
        a(f'v_cmp_lt_u32 vcc, {8*(i+1)}, v104')
        a('s_cbranch_vccz L2_scat_done')
    a(f'''
    v_subrev_u32 v104, 32, v104
    v_cmp_gt_i32 vcc, 0, v104
    v_mov_b32 v149, 128
    v_add_u32 v107, 128, v107
    v_cndmask_b32 v104, v104, 0, vcc
    ''')
    a.label('L2_scat_loop')
    a(f'buffer_load_dwordx4 v[192:195], v107, s[{sEN}:{sEN+3}], 0 offen')
    a('s_waitcnt vmcnt(0)')
    quad(192, 0, dyn=True)
    a(f'''
    v_subrev_u32 v104, 8, v104
    v_add_u32 v149, 32, v149
    v_add_u32 v107, 32, v107
    v_cmp_gt_i32 vcc, 0, v104
    s_nop 1
    v_cndmask_b32 v104, v104, 0, vcc
    v_cmp_lt_u32 vcc, 0, v104
    s_cbranch_vccnz L2_scat_loop
    ''')
    a.label('L2_scat_done')
    st(5)
    a('''
    s_waitcnt vmcnt(0) lgkmcnt(0)
    s_barrier
    ''')
    st(6)
    a(f"""
    v_lshrrev_b32 v100, 2, v1
    v_lshlrev_b32 v100, 3, v100
    v_add_u32 v100, s{sNODE0}, v100
    v_mul_u32_u24 v100, 6, v100
    v_and_b32 v102, 3, v1
    v_lshl_add_u32 v100, v102, 1, v100
    v_add_u32 v100, {L_RING}, v100
    ds_read_u16 v101, v100
    s_cmp_eq_u32 s63, 1
    s_cbranch_scc1 L2_noC
    s_mov_b32 s63, 1
    v_lshlrev_b32 v96, 4, v1
    v_add_u32 v96, {L_WST}, v96
    ds_read_b128 v[{vW3}:{vW3+3}], v96
    ds_read_b128 v[{vW3+4}:{vW3+7}], v96 offset:1024
    v_and_b32 v120, 31, v1
    v_lshrrev_b32 v121, 5, v1
    v_lshlrev_b32 v122, 2, v120
    v_lshl_add_u32 v122, v121, 9, v122
    v_add_u32 v122, s62, v122
    """)
    for q in range(4):
        a(f'ds_read_b32 v{40+q}, v122 offset:{128*q}')
    a(f"""
    v_lshlrev_b32 v120, 3, v120
    v_add_u32 v120, {L_WST+2048}, v120
    ds_read_b64 v[44:45], v120
    v_cmp_gt_u32 vcc, 32, v1
    s_waitcnt lgkmcnt(0)
    v_cndmask_b32 v44, v44, 0, vcc
    v_cndmask_b32 v45, v45, 0, vcc
    """)
    for q in range(4):
        a(f'v_and_b32 v{vW6+q}, 0xffff, v{40+q}')
        a(f'v_lshrrev_b32 v{vW6+4+q}, 16, v{40+q}')
    a(f"""
    v_or_b32 v{vW6+3}, v{vW6+3}, v44
    v_or_b32 v{vW6+7}, v{vW6+7}, v45
    """)
    a.label('L2_noC')
    a(f"""
    s_lshl_b32 s54, s{sV}, 7
    s_add_u32 s54, s54, {L_PD}
    v_lshlrev_b32 v97, 2, v1
    v_add_u32 v97, s54, v97
    s_waitcnt lgkmcnt(0)
    v_lshlrev_b32 v101, 16, v101
    s_mov_b32 exec_hi, 0
    ds_write_b32 v97, v101
    s_mov_b64 exec, -1
    """)
    a(f'''
    s_lshl_b32 s54, s{sV}, 7
    s_add_u32 s54, s54, {L_PD}
    v_mov_b32 v98, s54
    v_mov_b32 v99, {L_RING}
    v_add_u32 v96, s{sBASE}, v1
    v_mov_b32 v97, v1
    s_mov_b32 s{sT}, 0
    s_mov_b32 s55, 0xffff0000
    s_movk_i32 s56, 0x7fff
    s_mov_b32 s{sHD+2}, {N}
    s_mov_b32 s{sEA+2}, {E*32}
    ''')
    a(f'''
    s_lshl_b32 s54, s{sNT}, 5
    s_sub_u32 s54, s54, 32
    v_add_u32 v100, s54, v1
    v_cmp_le_u32 s[58:59], s{sCNT}, v100
    v_cmp_gt_u32 vcc, 32, v1
    s_and_b64 vcc, vcc, s[58:59]
    s_cmp_eq_u32 s{sNT}, 0
    s_cbranch_scc1 L2_nodummy
    s_and_saveexec_b64 s[58:59], vcc
    s_cbranch_execz L2_dummy_restore
    v_add_u32 v100, s{sBASE}, v100
    v_lshlrev_b32 v101, 2, v100
    v_mov_b32 v102, 28
    ds_write_b32 v101, v102 offset:{L_R0}
    v_lshlrev_b32 v101, 1, v100
    v_mov_b32 v102, 0
    v_mov_b32 v103, 0
    ds_write_b16 v101, v102 offset:{L_RS}
    v_lshlrev_b32 v101, 3, v100
    ds_write_b64 v101, v[102:103] offset:{L_G}
    ''')
    a.label('L2_dummy_restore')
    a('s_mov_b64 exec, s[58:59]')
    a.label('L2_nodummy')
    NI=4
    a.label('L2_geo_loop')
    a(f'''
    s_cmp_ge_u32 s{sT}, s{sCNT}
    s_cbranch_scc1 L2_geo_done
    ''')
    def R(it,k): return 112+20*it+k
    for it in range(NI):
        a(f'''
        v_add_u32 v{R(it,0)}, {64*it}, v96
        v_lshlrev_b32 v{R(it,0)}, 2, v{R(it,0)}
        ds_read_b32 v{R(it,1)}, v{R(it,0)} offset:{L_R0}
        ds_read_b32 v{R(it,2)}, v{R(it,0)} offset:{L_S}
        ''')
    for it in range(NI):
        a(f'''
        v_add_u32 v{R(it,16)}, {64*it}, v97
        v_cmp_gt_u32 s[{90+2*it}:{91+2*it}], s{sCNT}, v{R(it,16)}
        ''')
    for it in range(NI):
        e=R(it,1); wb=R(it,2)
        a(f's_waitcnt lgkmcnt({2*(NI-1-it)+2*it})')
        a(f'''
        v_bfe_u32 v{R(it,3)}, v{e}, 15, 14
        v_and_b32 v{R(it,4)}, 7, v{e}
        v_mad_u32_u24 v{R(it,5)}, v{R(it,3)}, 6, v99
        v_lshl_add_u32 v{R(it,7)}, v{R(it,4)}, 4, v98
        v_and_b32 v{R(it,5)}, -4, v{R(it,5)}
        ds_read_b96 v[{R(it,8)}:{R(it,10)}], v{R(it,7)}
        ds_read2_b32 v[{R(it,12)}:{R(it,13)}], v{R(it,5)} offset1:1
        v_and_b32 v{R(it,5)}, s56, v{e}
        v_lshl_add_u32 v{wb}, v{R(it,5)}, 2, v{wb}
        v_lshlrev_b32 v{R(it,6)}, 4, v{R(it,3)}
        ''')
    if 'nopf' not in ABL:
        a(f'''
        s_cmp_lg_u32 s{sT}, 0
        s_cbranch_scc1 L2_nopf
        ''')
        a(f'''
        v_and_b32 v48, s{sMK}, v{R(0,2)}
        v_mov_b32 v51, 0
        v_mov_b32 v50, v{R(0,3)}
        s_mov_b32 exec_hi, {-1 if PF2K in ABL else 0}
        buffer_load_dword v48, v48, s[{sEA}:{sEA+3}], 0 offen
        s_mov_b32 exec_hi, 0
        buffer_load_dword v49, v[50:51], s[{sHD}:{sHD+3}], 0 idxen offen
        s_mov_b64 exec, -1
        ''')
        a.label('L2_nopf')
    for it in range(NI):
        pd=R(it,8); ps=R(it,12); sh=R(it,6); t0=R(it,4); t1=R(it,5); t2=R(it,7); o=R(it,14); t3=R(it,17)
        a(f's_waitcnt lgkmcnt({2*(NI-1-it)+3*it})')
        a(f'''
        v_alignbit_b32 v{t0}, v{ps+1}, v{ps}, v{sh}
        v_lshrrev_b32 v{t2}, v{sh}, v{ps+1}
        v_lshlrev_b32 v{t1}, 16, v{t0}
        v_and_b32 v{t0}, s55, v{t0}
        v_lshlrev_b32 v{t2}, 16, v{t2}
        v_sub_f32 v{t1}, v{pd}, v{t1}
        v_sub_f32 v{t0}, v{pd+1}, v{t0}
        v_sub_f32 v{t2}, v{pd+2}, v{t2}
        v_mul_f32 v{t3}, v{t1}, v{t1}
        v_cvt_pk_bf16_f32 v{o+1}, v{t0}, v{t2}
        v_fmac_f32 v{t3}, v{t0}, v{t0}
        v_fmac_f32 v{t3}, v{t2}, v{t2}
        v_lshrrev_b32 v{t0}, 1, v{R(it,0)}
        v_cvt_pk_bf16_f32 v{o}, v{t3}, v{t1}
        v_lshlrev_b32 v{t2}, 1, v{R(it,0)}
        s_mov_b64 exec, s[{90+2*it}:{91+2*it}]
        ds_write_b32 v{R(it,0)}, v{R(it,2)} offset:{L_R0}
        ds_write_b16 v{t0}, v{R(it,3)} offset:{L_RS}
        ds_write_b64 v{t2}, v[{o}:{o+1}] offset:{L_G}
        s_mov_b64 exec, -1
        ''')
    a(f'''
    v_add_u32 v96, {64*NI}, v96
    v_add_u32 v97, {64*NI}, v97
    s_add_u32 s{sT}, s{sT}, {64*NI}
    s_branch L2_geo_loop
    ''')
    a.label('L2_geo_done')
    a(f"""
    v_lshrrev_b32 v97, 3, v1
    v_add_u32 v97, s{sBASE}, v97
    v_lshlrev_b32 v97, 1, v97
    v_add_u32 v{vRSa}, {L_RS}, v97
    v_lshrrev_b32 v97, 1, v1
    v_add_u32 v97, s{sBASE}, v97
    v_lshlrev_b32 v97, 2, v97
    v_add_u32 v{vR0a}, {L_R0}, v97
    v_and_b32 v97, 31, v1
    v_add_u32 v97, s{sBASE}, v97
    v_lshlrev_b32 v98, 2, v97
    v_add_u32 v{vR0e}, {L_R0}, v98
    v_lshrrev_b32 v98, 5, v1
    v_lshlrev_b32 v98, 2, v98
    v_lshl_add_u32 v98, v97, 3, v98
    v_add_u32 v{vGe}, {L_G}, v98
    s_mov_b32 s{sT}, 0
    s_sub_u32 s86, s{sNT}, 3
    s_sub_u32 s87, s{sNT}, 1
    """)
    for i in range(4): a(f'ds_read_u16 v{vHP+2*i}, v{vRSa} offset:{16*i}')
    a(f'ds_read_b32 v{vEAi}, v{vR0a}')
    a(f'ds_read_b32 v{vR0}, v{vR0e}')
    a(f'ds_read_b32 v{vG}, v{vGe}')
    if 'fprio' in ABL:
        PER=optl('per',[12])[0]
        a(f"""
        v_cvt_f32_u32 v96, s{sNT}
        v_rcp_f32 v96, v96
        s_nop 0
        v_mul_f32 v96, {f32bits(float(PER*65536*(2 if TRIMK in ABL else 1)))}, v96
        v_cvt_u32_f32 v96, v96
        s_nop 0
        v_readfirstlane_b32 s85, v96
        s_mov_b32 s84, 0
        s_sub_u32 s84, s84, s85
        """)
    a(f"""
    s_lshl_b32 s54, s{sV}, 11
    s_add_u32 s54, s54, {L_S}
    v_lshlrev_b32 v96, 4, v1
    v_add_u32 v96, s54, v96
    v_mov_b32 v100, 0
    v_mov_b32 v101, 0
    v_mov_b32 v102, 0
    v_mov_b32 v103, 0
    v_and_or_b32 v{vEAo}, v{vEAi}, s{sMK}, v{vEAc}
    s_waitcnt lgkmcnt(0)
    s_barrier
    """)
    st(7)
    a(f"""
    ds_write_b128 v96, v[100:103]
    ds_write_b128 v96, v[100:103] offset:1024
    """)
    if 'lone' in ABL:
        a(f's_cmp_ge_u32 s{sV}, 4\ns_cselect_b32 s{sNT}, 0, s{sNT}')
    a(f"""
    s_cmp_eq_u32 s{sNT}, 0
    s_cbranch_scc1 L2_notiles
    """)
    def idx_reads(toff):
        return [f'ds_read_u16 v{vHP+2*i}, v{vRSa} offset:{64*toff+16*i}' for i in range(4)] + \
               [f'ds_read_b32 v{vEAi}, v{vR0a} offset:{128*toff}']
    def rec_reads(toff):
        return [f'ds_read_b32 v{vR0}, v{vR0e} offset:{128*toff}', f'ds_read_b32 v{vG}, v{vGe} offset:{256*toff}']
    def srd_select(delta):
        return [f's_add_u32 s54, s{sT}, {delta}\ns_cmp_lt_u32 s54, s{sNT}\ns_cselect_b32 s{sHD+2}, {NH_}, 0\ns_cselect_b32 s{sEA+2}, {NE_}, 0']
    def dma2(slot):
        r=[(f'v_and_or_b32 v{vEAo}, v{vEAi}, s{sMK}, v{vEAc}\ns_add_u32 m0, s{sRB}, {slot*SLOT+4096}', f'buffer_load_dwordx4 v{vEAo}, s[{sEA}:{sEA+3}], 0 offen{EAF} lds')]
        for i in range(4):
            r.append((f's_add_u32 m0, s{sRB}, {slot*SLOT+1024*i}', f'buffer_load_dwordx4 v[{vHP+2*i}:{vHP+2*i+1}], s[{sHD}:{sHD+3}], 0 idxen offen{HF} lds'))
        return r
    def dma(slot):
        return [x+'\n'+y for x,y in dma2(slot)]
    def x_reads(slot):
        return [f'ds_read_b128 v[{vX+4*s}:{vX+4*s+3}], v{vHA+s} offset:{slot*SLOT}' for s in range(4)] + \
               [f'ds_read_b128 v[{vXE}:{vXE+3}], v{vEAr} offset:{slot*SLOT}']
    def s_addr(): return [f'v_bitop3_b32 v{vA1}, v{vR0}, 28, v{vC1} bitop3:0x6a', f'v_bfi_b32 v{vS1}, v{vMK2}, v{vG}, v{vOne}', f'v_perm_b32 v{vS2}, v{vG}, v{vG}, s{sSEL}']
    def s_writes(): return [f'ds_write_b32 v{vA1}, v{vS1}', f'ds_write_b32 v{vCD}, v{vS2}']
    def x6_read(): return [f'ds_read_b128 v[{vX6}:{vX6+3}], v{vX6r}']
    def sf_reads():
        r=[]
        for s2 in range(2):
            r.append(f'ds_read_b64_tr_b16 v[{vSF+4*s2}:{vSF+4*s2+1}], v{vSTa} offset:{1024*s2}')
            r.append(f'ds_read_b64_tr_b16 v[{vSF+4*s2+2}:{vSF+4*s2+3}], v{vSTb} offset:{1024*s2}')
        return r
    def s_restore(): return [f'ds_write_b32 v{vA1}, v{vZero}']
    def mfma1(dst):
        r=[]
        for blk in range(2):
            D=f'v[{dst+16*blk}:{dst+16*blk+15}]'
            for sp in range(2):
                C = D if sp>0 else '0'
                s_=2*blk+sp
                r.append(f'v_mfma_f32_32x32x16_bf16 {D}, v[{vX+4*s_}:{vX+4*s_+3}], v[{vI+4*sp}:{vI+4*sp+3}], {C}')
            r.append(f'v_mfma_f32_32x32x16_bf16 {D}, v[{vXE}:{vXE+3}], v[{vW3+4*blk}:{vW3+4*blk+3}], {D}')
            r.append(f'v_mfma_f32_32x32x16_bf16 {D}, v[{vX6}:{vX6+3}], v[{vW6+4*blk}:{vW6+4*blk+3}], {D}')
        return r
    ONE=f'v[{vONE}:{vONE+3}]'
    def plus1(blk):
        Eb=f'v[{vE+16*blk}:{vE+16*blk+15}]'
        return f'v_mfma_f32_32x32x16_bf16 {Eb}, {ONE}, {ONE}, {Eb}'
    def mfma2(cur,blk,s2):
        D=f'v[{vD2+16*blk}:{vD2+16*blk+15}]'; m=cur+8*blk+4*s2
        return f'v_mfma_f32_32x32x16_bf16 {D}, v[{m}:{m+3}], v[{vSF+4*s2}:{vSF+4*s2+3}], {D}'
    def keep(x):
        if 'nomfma' in ABL and x.startswith('v_mfma'): return False
        if 'nolds' in ABL and x.startswith('ds_'): return False
        if 'nodma' in ABL and 'buffer_load' in x: return False
        if 'notrans' in ABL and x.startswith(('v_exp','v_rcp')): return False
        if 'novalu' in ABL and x.startswith(('v_exp','v_rcp','v_mul','v_cvt','v_pk_mul')): return False
        return True
    def emit(backbone, inserts):
        backbone=[x if keep(x) else 's_nop 0' for x in backbone]
        inserts={k:[x for x in v if keep(x)] for k,v in inserts.items()}
        for k_ in sorted(k for k in inserts if k<0):
            for s_ in inserts[k_]: a(s_)
        for i,ins in enumerate(backbone):
            a(ins)
            for s_ in inserts.get(i,[]): a(s_)
    nlab=[0]
    PK='pk' in ABL
    DMAPOS=optl('dma',[37,48,60,70,82] if PK else [41,52,63,76,92])
    M1POS=optl('m1',[37,40,43,46,49,52,55,58] if PK else [42,46,50,54,58,62,68,74])
    SFPOS=optl('sf',[0,2,4,6]); RSPOS=optl('rs',[8])[0]; SAPOS=optl('sa',[9,10,11]); SWPOS=optl('sw',[12,13]); X6POS=optl('x6',[14])[0]
    VMPOS=optl('vm',[16])[0]; XPOS=optl('x',[16,18,20,22,24]); RECPOS=optl('rec',[26,27]); IDXPOS=optl('idx',[28,29,30,31,32])
    LGPOS=optl('lg',[36] if PK else [40])[0]; M2POS=optl('m2',[85,89,93,95] if PK else [89,95,111,111]); P1POS=optl('p1',[17,33])
    def body(p, steady, extra_first=None):
        cur=vD1[p]; nxt=vD1[1-p]
        bb=[]
        for blk in range(2):
            bb += [f'v_exp_f32 v{vE+16*blk+i}, v{cur+16*blk+i}' for i in range(16)]
        for blk in range(2):
            bb += [f'v_rcp_f32 v{vE+16*blk+i}, v{vE+16*blk+i}' for i in range(16)]
        if 'pk' in ABL:
            bb += [f'v_pk_mul_f32 v[{vE+2*i}:{vE+2*i+1}], v[{vE+2*i}:{vE+2*i+1}], v[{cur+2*i}:{cur+2*i+1}]' for i in range(16)]
            bb += [f'v_cvt_pk_bf16_f32 v{cur+q}, v{vE+2*q}, v{vE+2*q+1}' for q in range(16)]
        else:
            bb += [f'v_mul_f32 v{vE+i}, v{vE+i}, v{cur+i}' for i in range(16)]
            bb += [f'v_cvt_pk_bf16_f32 v{cur+q}, v{vE+2*q}, v{vE+2*q+1}' for q in range(8)]
            bb += [f'v_mul_f32 v{vE+16+i}, v{vE+16+i}, v{cur+16+i}' for i in range(16)]
            bb += [f'v_cvt_pk_bf16_f32 v{cur+8+q}, v{vE+16+2*q}, v{vE+16+2*q+1}' for q in range(8)]
        ins={}
        def put(pos,x):
            ins.setdefault(pos,[]).append(x)
        if not ('trim' in ABL and steady): put(-100,'s_waitcnt lgkmcnt(0)')
        if 'prio' in ABL:
            put(-99,f'''s_and_b32 s54, s{sT}, 2
            s_cmp_eq_u32 s54, 0
            s_cbranch_scc1 Lp{nlab[0]}a
            s_setprio {1-p}
            s_branch Lp{nlab[0]}b
            Lp{nlab[0]}a:
            s_setprio {3-p}
            Lp{nlab[0]}b:''')
            nlab[0]+=1
        if 'fprio' in ABL and not ('trim' in ABL and p==1):
            n=nlab[0]
            put(-99,f'''s_add_u32 s84, s84, s85
            s_bitcmp1_b32 s84, 17
            s_cbranch_scc1 Lp{n}h
            s_bitcmp1_b32 s84, 16
            s_cbranch_scc1 Lp{n}a
            s_setprio 3
            s_branch Lp{n}z
            Lp{n}a:
            s_setprio 2
            s_branch Lp{n}z
            Lp{n}h:
            s_bitcmp1_b32 s84, 16
            s_cbranch_scc1 Lp{n}b
            s_setprio 1
            s_branch Lp{n}z
            Lp{n}b:
            s_setprio 0
            Lp{n}z:''')
            nlab[0]+=1
        if steady and p==0:
            n=nlab[0]; nlab[0]+=1
            put(0,f's_cmp_lg_u32 s{sT}, 0\ns_cbranch_scc1 Ld{n}\n'+'\n'.join(dma(0))+f'\nLd{n}:')
        for x,q in zip(sf_reads(),SFPOS): put(q,x)
        put(RSPOS,s_restore()[0])
        put(P1POS[0],plus1(0))
        put(P1POS[1],plus1(1))
        if steady:
            for x,q in zip(s_addr(),SAPOS): put(q,x)
            for x,q in zip(s_writes(),SWPOS): put(q,x)
            put(X6POS,x6_read()[0])
            put(VMPOS,'s_waitcnt vmcnt(5)')
            for x,q in zip(x_reads(1-p),XPOS): put(q,x)
            for x,q in zip(rec_reads(p+2),RECPOS): put(q,x)
            for x,q in zip(idx_reads(p+3),IDXPOS): put(q,x)
            if 'trim' in ABL:
                n=nlab[0]; nlab[0]+=1
                put(LGPOS-2,f's_cmp_lt_i32 s{sT}, s86\ns_cbranch_scc1 Lz{n}\ns_mov_b32 s{sHD+2}, 0\ns_mov_b32 s{sEA+2}, 0\nLz{n}:')
            else: put(LGPOS-2,srd_select(3)[0])
            put(LGPOS,'s_waitcnt lgkmcnt(0)')
            for (x,y),q in zip(dma2(1-p),DMAPOS):
                if q>0 and q-1>LGPOS-1 and 'trim' in ABL: put(q-1,x); put(q,y)
                else: put(q,x+'\n'+y)
            for x,q in zip(mfma1(nxt),M1POS): put(q,x)
        for (b_,s_),q in zip(((0,0),(0,1),(1,0),(1,1)),M2POS): put(q,mfma2(cur,b_,s_))
        emit(bb,ins)
    def late_consts(a):
        a(f'''
        v_and_b32 v97, 31, v1
        v_lshrrev_b32 v98, 5, v1
        v_bfe_u32 v99, v97, 1, 3
        v_lshlrev_b32 v100, 7, v97
        v_add_u32 v100, s{sRB}, v100
        ''')
        for s in range(4):
            a(f'''
            v_add_u32 v101, {2*s}, v98
            v_xor_b32 v101, v101, v99
            v_lshl_add_u32 v{vHA+s}, v101, 4, v100
            ''')
        a(f'''
        v_lshrrev_b32 v101, 4, v97
        v_xor_b32 v101, v101, v98
        v_lshlrev_b32 v101, 4, v101
        v_lshl_add_u32 v101, v97, 5, v101
        v_add_u32 v101, s{sRB}, v101
        v_add_u32 v{vEAr}, 4096, v101
        s_lshl_b32 s57, s{sV}, 11
        s_add_u32 s57, s57, {L_S}
        v_lshlrev_b32 v101, 6, v97
        v_add_u32 v101, s57, v101
        v_bfe_u32 v102, v97, 2, 2
        v_xor_b32 v103, v98, v102
        v_lshl_add_u32 v{vX6r}, v103, 4, v101
        v_lshlrev_b32 v103, 1, v98
        v_xor_b32 v104, v103, v102
        v_lshl_add_u32 v{vC1}, v104, 4, v101
        v_add_u32 v103, 1, v103
        v_xor_b32 v104, v103, v102
        v_lshl_add_u32 v104, v104, 4, v101
        v_add_u32 v{vCD}, 12, v104
        v_cmp_gt_u32 vcc, 32, v1
        v_mov_b32 v103, 0xffff0000
        v_mov_b32 v104, -1
        v_cndmask_b32 v{vMK2}, v104, v103, vcc
        v_mov_b32 v{vOne}, 0x3f80
        v_mov_b32 v{vONE+1}, 0
        v_mov_b32 v{vONE+2}, 0
        v_mov_b32 v{vONE+3}, 0
        v_cndmask_b32 v{vONE}, 0, v{vOne}, vcc
        v_lshlrev_b32 v101, 3, v98
        v_sub_u32 v101, v97, v101
        v_and_b32 v102, 1, v101
        v_lshlrev_b32 v102, 4, v102
        v_lshlrev_b32 v102, v102, v{vOne}
        v_ashrrev_i32 v101, 1, v101
        ''')
        for k in range(8):
            q=8*(k>>2)+(k&3)
            a(f'v_cmp_eq_u32 s[{90+2*(k&3)}:{91+2*(k&3)}], {q}, v101')
            if (k&3)==3:
                for kk in range(k-3,k+1):
                    a(f'v_cndmask_b32 v{vI+kk}, 0, v102, s[{90+2*(kk&3)}:{91+2*(kk&3)}]')
        a(f'''
        v_and_b32 v101, 15, v1
        v_lshrrev_b32 v101, 2, v101
        v_lshl_add_u32 v101, v98, 2, v101
        v_lshlrev_b32 v101, 6, v101
        v_and_b32 v102, 1, v1
        v_lshl_add_u32 v101, v102, 3, v101
        v_add_u32 v101, s57, v101
        v_bfe_u32 v102, v1, 4, 1
        v_bfe_u32 v103, v1, 1, 1
        v_lshl_add_u32 v102, v102, 1, v103
        v_xor_b32 v103, v102, v98
        v_lshl_add_u32 v{vSTa}, v103, 4, v101
        v_add_u32 v103, 2, v98
        v_xor_b32 v103, v102, v103
        v_lshl_add_u32 v103, v103, 4, v101
        v_add_u32 v{vSTb}, 512, v103
        ''')

    lc=Asm(); late_consts(lc); lcl=list(lc.lines); per=(len(lcl)+9)//10
    def dma_lc(slot,k0):
        for k,x in enumerate(dma(slot)):
            a(x)
            if 'ilc' in ABL:
                for y in lcl[(k0+k)*per:(k0+k+1)*per]: a(y)
    a(f's_mov_b32 s{sHD+2}, {N}')
    a(f's_mov_b32 s{sEA+2}, {E*32}')
    dma_lc(0,0)
    st(13+18)
    for x in idx_reads(1): a(x)
    a(srd_select(1)[0])
    a('s_waitcnt lgkmcnt(0)')
    dma_lc(1,5)
    st(14)
    for x in idx_reads(2): a(x)
    a(srd_select(2)[0])
    if 'ilc' not in ABL:
        for y in lcl: a(y)
    for x in s_addr(): a(x)
    for x in s_writes(): a(x)
    for x in x6_read(): a(x)
    st(15)
    a('s_waitcnt vmcnt(5)')
    st(30)
    for x in x_reads(0): a(x)
    for x in rec_reads(1): a(x)
    a('s_waitcnt lgkmcnt(0)')
    for x in mfma1(vD1[0]): a(x)
    st(8)
    stampc(a,12,vTM,98)
    if DEBUG_TM: a(f'v_writelane_b32 v{vTM}, s{sNT}, 22\nv_writelane_b32 v{vTM}, s{sG}, 23\ns_getreg_b32 s98, hwreg(HW_REG_HW_ID)\nv_writelane_b32 v{vTM}, s98, 24')
    JM=[0,1,4,5]
    RESV=[[232,233,234,236],[237,238,252,253]]
    WXV=[192,196,200,204,208,212,228,248]
    def epi_prefetch(p):
        nxt=vD1[1-p]
        r=[]
        r.append('v_lshlrev_b32 v10, 4, v1')
        for f in range(8):
            r.append(f'v_add_u32 v9, {(F_H1+f)*1024}, v10\nbuffer_load_dwordx4 v[{16+4*f}:{19+4*f}], v9, s[{sWF}:{sWF+3}], 0 offen')
        for f in range(8):
            r.append(f'v_add_u32 v9, {(F_H2+f)*1024}, v10\nbuffer_load_dwordx4 v[{nxt+4*f}:{nxt+4*f+3}], v9, s[{sWF}:{sWF+3}], 0 offen')
        r.append(f'v_lshrrev_b32 v7, 5, v1\nv_lshlrev_b32 v9, 7, v7\nv_add_u32 v9, {WXO}, v9')
        for f in range(8):
            r.append(f'buffer_load_dwordx4 v[{WXV[f]}:{WXV[f]+3}], v9, s[{sWF}:{sWF+3}], 0 offen offset:{16*f}')
        r.append(f'''
        v_bfe_u32 v9, v1, 1, 3
        v_lshlrev_b32 v9, 3, v9
        v_add_u32 v3, s{sG}, v9
        v_add_u32 v9, s{sNODE0}, v9
        v_cmp_gt_u32 vcc, {BN}, v3
        v_mov_b32 v4, -1
        v_lshlrev_b32 v7, 4, v7
        v_cndmask_b32 v6, v4, v9, vcc
        ''')
        for s_ in range(4):
            r.append(f'buffer_load_dwordx4 v[{48+4*s_}:{51+4*s_}], v[6:7], s[{sH}:{sH+3}], 0 idxen offen offset:{32*s_}')
        r.append(f'''
        v_lshrrev_b32 v9, 5, v1
        v_lshlrev_b32 v9, 4, v9
        v_and_b32 v3, 31, v1
        v_lshlrev_b32 v3, 1, v3
        ''')
        for m in range(4):
            r.append(f'''
            v_add_u32 v5, {8*JM[m]}, v9
            v_add_u32 v8, s{sG}, v5
            v_add_u32 v5, s{sNODE0}, v5
            v_cmp_gt_u32 vcc, {BN}, v8
            v_mov_b32 v{241+2*m}, v3
            s_nop 0
            v_cndmask_b32 v{240+2*m}, v4, v5, vcc
            ''')
        for m in range(4):
            r.append(f'buffer_load_ushort v{RESV[0][m]}, v[{240+2*m}:{241+2*m}], s[{sH}:{sH+3}], 0 idxen offen')
            r.append(f'buffer_load_ushort v{RESV[1][m]}, v[{240+2*m}:{241+2*m}], s[{sH}:{sH+3}], 0 idxen offen offset:64')
        r.append(f'''
        v_bfe_u32 v9, v1, 1, 3
        v_lshlrev_b32 v9, 3, v9
        v_add_u32 v3, s{sG}, v9
        v_add_u32 v9, s{sNODE0}, v9
        v_bfe_u32 v5, v1, 4, 1
        v_and_b32 v8, 1, v1
        v_lshl_add_u32 v5, v5, 1, v8
        v_cmp_gt_u32 vcc, {BN}, v3
        v_subrev_u32 v5, 1, v5
        v_cmp_gt_u32 s[56:57], 3, v5
        v_mul_u32_u24 v9, 6, v9
        s_and_b64 vcc, vcc, s[56:57]
        v_cmp_gt_u32 s[56:57], 32, v1
        v_lshl_add_u32 v9, v5, 1, v9
        v_mov_b32 v4, 0x7fffff00
        s_and_b64 vcc, vcc, s[56:57]
        v_cndmask_b32 v10, v4, v9, vcc
        buffer_load_ushort v11, v10, s[{sPOS}:{sPOS+3}], 0 offen
        ''')
        return r
    def epilogue(p):
        nxt=vD1[1-p]; cur=vD1[p]
        a(f's_mov_b32 s54, {f32bits(-math.log(2.0))}')
        for i in range(32):
            a(f'v_mul_f32 v{vD2+i}, s54, v{vD2+i}')
        pk=vE
        for blk in range(2):
            for q in range(8):
                a(f'v_cvt_pk_bf16_f32 v{pk+8*blk+q}, v{vD2+16*blk+2*q}, v{vD2+16*blk+2*q+1}')
        a('s_waitcnt vmcnt(0)')
        acc=cur
        a(f'v_mul_f32 v{acc}, v{vD2}, v{WXV[0]}')
        a(f'v_mul_f32 v{acc+1}, v{vD2+1}, v{WXV[0]+1}')
        for i in range(2,32):
            a(f'v_fmac_f32 v{acc+(i&1)}, v{vD2+i}, v{WXV[i>>2]+(i&3)}')
        a(f'v_add_f32 v{acc}, v{acc}, v{acc+1}')
        a(f'v_mov_b32 v{acc+1}, v{acc}')
        for b2 in range(2):
            D=f'v[{64+16*b2}:{79+16*b2}]'
            for s_ in range(4):
                C = D if s_>0 else '0'
                a(f'v_mfma_f32_32x32x16_bf16 {D}, v[{48+4*s_}:{51+4*s_}], v[{16+4*(2*s_+b2)}:{19+4*(2*s_+b2)}], {C}')
            for blk in range(2):
                for sp in range(2):
                    f=(blk*2+sp)*2+b2
                    a(f'v_mfma_f32_32x32x16_bf16 {D}, v[{pk+8*blk+4*sp}:{pk+8*blk+4*sp+3}], v[{nxt+4*f}:{nxt+4*f+3}], {D}')
        a(f'v_permlane32_swap_b32 v{acc}, v{acc+1}')
        a(f'''
        v_lshlrev_b32 v11, 16, v11
        v_add_f32 v{acc}, v{acc}, v{acc+1}
        v_add_f32 v11, v11, v{acc}
        v_cvt_pk_bf16_f32 v11, v11, v11
        buffer_store_short v11, v10, s[{sO1}:{sO1+3}], 0 offen{SC1O}
        ''')
        a(f's_mov_b32 s54, {f32bits(-LOG2E)}')
        T=vE+16
        for b2 in range(2):
            for m in range(4):
                a(f'v_mul_f32 v{T+4*b2+m}, s54, v{64+16*b2+2*m}')
        for k in range(8): a(f'v_exp_f32 v{T+k}, v{T+k}')
        for k in range(8): a(f'v_add_f32 v{T+k}, 1.0, v{T+k}')
        for k in range(8): a(f'v_rcp_f32 v{T+k}, v{T+k}')
        for b2 in range(2):
            for m in range(4):
                x=64+16*b2+2*m; t=T+4*b2+m; hh=RESV[b2][m]
                a(f'v_lshlrev_b32 v{hh}, 16, v{hh}')
                a(f'v_fma_f32 v{t}, v{x}, v{t}, v{hh}')
                a(f'v_cvt_pk_bf16_f32 v{t}, v{t}, v{t}')
        for b2 in range(2):
            for m in range(4):
                t=T+4*b2+m
                a(f'buffer_store_short v{t}, v[{240+2*m}:{241+2*m}], s[{sO0}:{sO0+3}], 0 idxen offen offset:{64*b2}{SC1O}')
        st(10)
        if DEBUG_TM: a('s_waitcnt vmcnt(0)')
        st(11)
        stamp_store(a,vTM,98,44,45,0x80000,sV,254)
        a('s_endpgm')
    for p in range(2):
        a.label(f'L2_s{p}')
        if 'trim' in ABL:
            a(f's_cmp_ge_i32 s{sT}, s87\ns_cbranch_scc1 L2_l{p}')
        else:
            a(f'''
            s_add_u32 s54, s{sT}, 1
            s_cmp_ge_u32 s54, s{sNT}
            s_cbranch_scc1 L2_l{p}
            ''')
        if DEBUG_TM and p==0:
            for tt,ix in ((2,25),(4,26),(6,27),(8,28),(10,29)):
                a(f's_cmp_lg_u32 s{sT}, {tt}\ns_cbranch_scc1 Lst{ix}')
                stampc(a,ix,vTM,98)
                a.label(f'Lst{ix}')
        body(p, True)
        a(f's_add_u32 s{sT}, s{sT}, 1')
        if p==1:
            a(f'''
            v_add_u32 v{vRSa}, 128, v{vRSa}
            v_add_u32 v{vR0a}, 256, v{vR0a}
            v_add_u32 v{vR0e}, 256, v{vR0e}
            v_add_u32 v{vGe}, 512, v{vGe}
            s_branch L2_s0
            ''')
    for p in range(2):
        a.label(f'L2_l{p}')
        a(f'''
        s_cmp_lt_u32 s{sW1}, {NCH}
        s_cbranch_scc1 L2_l{p}n
        ''')
        body(p, False, None) if False else None
        for x in epi_prefetch(p): a(x)
        body(p, False)
        st(9)
        stampc(a,13,vTM,98)
        epilogue(p)
        a.label(f'L2_l{p}n')
        body(p, False)
        a('s_branch L2_nextbatch')
    a.label('L2_notiles')
    a(f'''
    s_cmp_lt_u32 s{sW1}, {NCH}
    s_cbranch_scc1 L2_nextbatch
    ''')
    for x in epi_prefetch(0): a(x)
    st(9)
    epilogue(0)
    a.label('L2_nextbatch')
    a(f'''
    s_waitcnt vmcnt(0) lgkmcnt(0)
    s_mov_b32 s{sW0}, s{sW1}
    s_add_u32 s{sW1}, s{sW1}, 1
    s_branch L2_batch
    ''')
    a.label('L2_end')
    a('s_endpgm')
    return a.finalize(), 256, 102, L_END

def main():
    k1,v1,s1,l1 = gen_k1()
    k2,v2,s2,l2 = gen_k2()
    hdr = open('gather_scatter__cheap_equivariant_egnn__graph.s.ref').read().split('; Override launch')[0]
    out = hdr
    out += f'; @launch kernel=egnn_part_kernel grid=({NCH+1+NTW},1,1) block=(512,1,1) lds={l1}\n'
    out += f'; @launch kernel=egnn_main_kernel grid=({NBK},1,1) block=(512,1,1) lds={l2}\n'
    out += '.amdgcn_target "amdgcn-amd-amdhsa--gfx950"\n.text\n'
    for name,body in (('egnn_part_kernel',k1),('egnn_main_kernel',k2)):
        out += f'.globl {name}\n.p2align 8\n.type {name},@function\n' + body
    out += '.section .rodata,"a"\n'
    for name,nv,ns in (('egnn_part_kernel',v1,s1),('egnn_main_kernel',v2,s2)):
        acc=(nv+3)//4*4
        out += f'''.p2align 6
.amdhsa_kernel {name}
  .amdhsa_next_free_vgpr {nv}
  .amdhsa_next_free_sgpr {ns}
  .amdhsa_accum_offset {acc}
  .amdhsa_group_segment_fixed_size 0
  .amdhsa_kernarg_size 88
  .amdhsa_user_sgpr_count 2
  .amdhsa_user_sgpr_kernarg_segment_ptr 1
  .amdhsa_system_sgpr_workgroup_id_x 1
  .amdhsa_float_denorm_mode_32 3
.end_amdhsa_kernel
'''
    dst = [x for x in sys.argv[1:] if not x.startswith('--')]
    path = dst[0] if dst else 'gather_scatter__cheap_equivariant_egnn__graph.s'
    open(path,'w').write(out)
    print('wrote',path,len(out))
main()
```

```python
import sys, math
from asmlib import Asm

N=12500; E=800000; CH=3200; NCH=250; NBK=256; BN=49
ROW=4224
OFFS=0; ENT=0x110000; WF=0x420000; TA=0x500000; TB=0x700000; TM=0x900000
NF=18; WDO=NF*1024; WXO=NF*1024+256; WFSZ=NF*1024+512
NTW=98
CAP=3584
LOG2E=1.4426950408889634
def f32bits(x):
    import struct; return struct.unpack('<I',struct.pack('<f',x))[0]

DEBUG_TM = '--tm' in sys.argv
K1PRIO = '--nok1prio' not in sys.argv
TFIRST = '--tfirst' in sys.argv
SC1 = '' if '--nosc1' in sys.argv else (' sc0 sc1' if '--sc01' in sys.argv else ' sc1')
SC1T = '' if '--tplain' in sys.argv else SC1
SC1W = SC1 if '--wsc1' in sys.argv else ''
SC1O = ' sc1' if '--osc1' in sys.argv else ''
PFN = int(([x[6:] for x in sys.argv if x.startswith('--pfn=')] or ['0'])[0])
PFK1 = 2 if PFN else 0

F_W3=0
F_H1=2
F_H2=10

def stamp(a, idx, vreg, sp):
    if not DEBUG_TM: return
    a(f'''
    s_memrealtime s[{sp}:{sp+1}]
    s_waitcnt lgkmcnt(0)
    v_writelane_b32 v{vreg}, s{sp}, {idx}
    ''')
def stampc(a, idx, vreg, sp):
    if not DEBUG_TM: return
    a(f'''
    s_memtime s[{sp}:{sp+1}]
    s_waitcnt lgkmcnt(0)
    v_writelane_b32 v{vreg}, s{sp}, {idx}
    ''')
def stamp_store(a, vreg, sp, ws_lo, ws_hi, region, wave_s, vt):
    if not DEBUG_TM: return
    a(f'''
    s_lshl_b32 s{sp}, s2, 3
    s_add_u32 s{sp}, s{sp}, s{wave_s}
    s_lshl_b32 s{sp}, s{sp}, 7
    s_add_u32 s{sp}, s{sp}, {TM+region}
    s_add_u32 s{sp}, s{ws_lo}, s{sp}
    s_addc_u32 s{sp+1}, s{ws_hi}, 0
    v_and_b32 v{vt}, 63, v0
    v_lshlrev_b32 v{vt}, 2, v{vt}
    s_mov_b32 exec_hi, 0
    global_store_dword v{vt}, v{vreg}, s[{sp}:{sp+1}]
    s_mov_b64 exec, -1
    ''')

def gen_k1():
    a=Asm()
    K1_STAGE=8192; K1_WTOT=24576
    a.label('egnn_part_kernel')
    a(f'''
    s_cmp_gt_u32 s2, {NCH+NTW}
    s_cbranch_scc1 L1_end
    v_lshrrev_b32 v2, 6, v0
    v_and_b32 v1, 63, v0
    s_load_dwordx4 s[4:7], s[0:1], 24
    s_load_dwordx2 s[8:9], s[0:1], 80
    s_load_dwordx2 s[34:35], s[0:1], 16
    v_readfirstlane_b32 s3, v2
    s_cmp_eq_u32 s2, {NTW if TFIRST else NCH}
    s_cbranch_scc1 L1_wprep
    s_cmp_{'lt' if TFIRST else 'gt'}_u32 s2, {NTW if TFIRST else NCH}
    s_cbranch_scc1 L1_tables
    s_sub_u32 s38, s2, {NTW+1 if TFIRST else 0}
    s_setprio {3 if K1PRIO else 0}
    ''')
    if DEBUG_TM: a('v_mov_b32 v70, 0')
    stamp(a,0,70,36)
    a(f'''
    v_lshlrev_b32 v3, 4, v0
    v_mov_b32 v4, 0
    v_mov_b32 v5, 0
    v_mov_b32 v6, 0
    v_mov_b32 v7, 0
    ds_write_b128 v3, v[4:7]
    s_mul_i32 s10, s38, {CH*4}
    s_mul_i32 s11, s38, {ROW}
    v_add_u32 v48, 8192, v3
    s_waitcnt lgkmcnt(0)
    s_add_u32 s12, s6, s10
    s_addc_u32 s13, s7, 0
    s_mov_b32 s14, {CH*4}
    s_mov_b32 s15, 0x20000
    s_add_u32 s16, s4, s10
    s_addc_u32 s17, s5, 0
    s_mov_b32 s18, {CH*4}
    s_mov_b32 s19, 0x20000
    buffer_load_dwordx4 v[8:11], v3, s[12:15], 0 offen
    buffer_load_dwordx4 v[12:15], v48, s[12:15], 0 offen
    buffer_load_dwordx4 v[16:19], v3, s[16:19], 0 offen
    buffer_load_dwordx4 v[20:23], v48, s[16:19], 0 offen
    ''')
    if PFK1:
        a(f'''
        s_mul_i32 s10, s38, {CH*32}
        s_add_u32 s32, s34, s10
        s_addc_u32 s33, s35, 0
        s_cmp_lt_u32 s38, {PFN}
        s_cselect_b32 s34, {CH*32}, 0
        s_mov_b32 s35, 0x20000
        v_lshlrev_b32 v64, 7, v0
        v_add_u32 v65, {512*128}, v64
        buffer_load_dword v66, v64, s[32:35], 0 offen
        ''')
        if PFK1>1: a('buffer_load_dword v67, v65, s[32:35], 0 offen')
        a(f's_mul_i32 s10, s38, {CH*4}')
    a(f'''
    s_add_u32 s24, s8, {OFFS}
    s_addc_u32 s25, s9, 0
    s_add_u32 s24, s24, s11
    s_addc_u32 s25, s25, 0
    s_mov_b32 s26, {ROW}
    s_mov_b32 s27, 0x20000
    s_add_u32 s28, s8, {ENT}
    s_addc_u32 s29, s9, 0
    s_add_u32 s28, s28, s10
    s_addc_u32 s29, s29, 0
    s_mov_b32 s30, {CH*4}
    s_mov_b32 s31, 0x20000
    s_mov_b32 s22, -{BN}
    v_mov_b32 v50, 1
    v_lshlrev_b32 v51, 5, v0
    v_add_u32 v52, 16384, v51
    s_barrier
    s_waitcnt vmcnt({2+PFK1})
    ''')
    stamp(a,1,70,36)
    def keyslot(i, dst, tmp):
        a(f'''
        v_mul_u32_u24 v{tmp}, 21400, v{dst}
        v_lshrrev_b32 v{tmp}, 20, v{tmp}
        v_mad_i32_i24 v{40+i}, v{tmp}, s22, v{dst}
        v_and_b32 v{tmp+1}, 7, v{40+i}
        v_lshl_or_b32 v{tmp}, v{tmp}, 3, v{tmp+1}
        v_lshlrev_b32 v{24+i}, 2, v{tmp}
        ''')
    for u in range(4):
        keyslot(u, 8+u, 54+2*u)
        a(f'ds_add_rtn_u32 v{32+u}, v{24+u}, v50')
    a('''
    v_cmp_gt_u32 vcc, 288, v0
    s_and_saveexec_b64 s[20:21], vcc
    s_cbranch_execz L1_skipB1
    ''')
    for u in range(4):
        keyslot(4+u, 12+u, 54+2*u)
        a(f'ds_add_rtn_u32 v{36+u}, v{28+u}, v50')
    a.label('L1_skipB1')
    a('s_mov_b64 exec, s[20:21]')
    a(f's_waitcnt vmcnt({PFK1})')
    for i in range(8):
        base = 51 if i<4 else 52
        a(f'''
        v_lshrrev_b32 v54, 3, v{40+i}
        v_lshl_or_b32 v54, v{40+i}, 29, v54
        v_lshl_or_b32 v54, v{16+i}, 15, v54
        v_add3_u32 v{40+i}, v54, v{base}, {8*(i%4)}
        ''')
    a('''
    s_waitcnt lgkmcnt(0)
    s_barrier
    ''')
    stamp(a,2,70,36)
    a('''
    ds_read_b128 v[8:11], v3
    s_waitcnt lgkmcnt(0)
    v_add_u32 v12, v8, v9
    v_add_u32 v13, v12, v10
    v_add_u32 v14, v13, v11
    v_mov_b32 v15, v14
    ''')
    for sh in (1,2,4,8):
        a(f'v_add_u32_dpp v15, v15, v15 row_shr:{sh} row_mask:0xf bank_mask:0xf')
    a('v_add_u32_dpp v15, v15, v15 row_bcast:15 row_mask:0xa bank_mask:0xf')
    a('v_add_u32_dpp v15, v15, v15 row_bcast:31 row_mask:0xc bank_mask:0xf')
    a(f'''
    s_lshl_b32 s10, s3, 2
    s_add_u32 s10, s10, {K1_WTOT}
    v_mov_b32 v16, s10
    s_mov_b32 s20, 0
    s_brev_b32 s21, 1
    s_mov_b64 exec, s[20:21]
    ds_write_b32 v16, v15
    s_mov_b64 exec, -1
    v_and_b32 v17, 7, v1
    v_lshlrev_b32 v17, 2, v17
    v_add_u32 v17, {K1_WTOT}, v17
    s_waitcnt lgkmcnt(0)
    s_barrier
    ds_read_b32 v18, v17
    v_cmp_gt_u32 vcc, s3, v1
    s_waitcnt lgkmcnt(0)
    v_cndmask_b32 v18, 0, v18, vcc
    ''')
    for sh in (1,2,4):
        a(f'v_add_u32_dpp v18, v18, v18 row_shr:{sh} row_mask:0xf bank_mask:0xf')
    a(f'''
    v_readlane_b32 s10, v18, 7
    v_sub_u32 v15, v15, v14
    v_add_u32 v8+0, s10, v15
    '''.replace('v8+0','v19'))
    a(f'''
    v_add_u32 v21, v19, v12
    v_add_u32 v22, v19, v13
    v_add_u32 v20, v19, v8
    v_mov_b32 v56, v19
    v_mov_b32 v57, v20
    v_mov_b32 v58, v21
    v_mov_b32 v59, v22
    ds_write_b128 v3, v[56:59]
    v_lshl_or_b32 v60, v20, 16, v19
    v_lshl_or_b32 v61, v22, 16, v21
    v_lshlrev_b32 v62, 3, v0
    buffer_store_dwordx2 v[60:61], v62, s[24:27], 0 offen{SC1}
    s_cmp_lg_u32 s3, 0
    s_cbranch_scc1 L1_nosent
    s_mov_b32 s10, {CH | (CH<<16)}
    v_mov_b32 v63, s10
    v_lshlrev_b32 v62, 2, v1
    v_add_u32 v62, 4096, v62
    v_cmp_gt_u32 vcc, 32, v1
    s_and_saveexec_b64 s[20:21], vcc
    buffer_store_dword v63, v62, s[24:27], 0 offen{SC1}
    s_mov_b64 exec, s[20:21]
    ''')
    a.label('L1_nosent')
    a('''
    s_waitcnt lgkmcnt(0)
    s_barrier
    ''')
    stamp(a,3,70,36)
    for u in range(4):
        a(f'ds_read_b32 v{8+u}, v{24+u}')
    a('''
    v_cmp_gt_u32 vcc, 288, v0
    s_and_saveexec_b64 s[20:21], vcc
    s_cbranch_execz L1_skipB2
    ''')
    for u in range(4):
        a(f'ds_read_b32 v{12+u}, v{28+u}')
    a('s_waitcnt lgkmcnt(0)')
    for u in range(4):
        a(f'v_add_lshl_u32 v{12+u}, v{12+u}, v{36+u}, 2')
    for u in range(4):
        a(f'ds_write_b32 v{12+u}, v{44+u} offset:{K1_STAGE}')
    a.label('L1_skipB2')
    a('s_mov_b64 exec, s[20:21]')
    a('s_waitcnt lgkmcnt(0)')
    for u in range(4):
        a(f'v_add_lshl_u32 v{8+u}, v{8+u}, v{32+u}, 2')
    for u in range(4):
        a(f'ds_write_b32 v{8+u}, v{40+u} offset:{K1_STAGE}')
    a(f'''
    s_waitcnt lgkmcnt(0)
    s_barrier
    ds_read_b128 v[8:11], v3 offset:{K1_STAGE}
    ds_read_b128 v[12:15], v3 offset:{K1_STAGE+8192}
    s_waitcnt lgkmcnt(1)
    buffer_store_dwordx4 v[8:11], v3, s[28:31], 0 offen{SC1}
    s_waitcnt lgkmcnt(0)
    buffer_store_dwordx4 v[12:15], v48, s[28:31], 0 offen{SC1}
    ''')
    stamp(a,4,70,36)
    if DEBUG_TM: a('s_waitcnt vmcnt(0)')
    stamp(a,5,70,36)
    stamp_store(a,70,36,8,9,0,3,69)
    a('s_endpgm')
    a.label('L1_wprep')
    a(f'''
    s_load_dwordx2 s[10:11], s[0:1], 40
    s_load_dwordx2 s[12:13], s[0:1], 48
    s_load_dwordx2 s[14:15], s[0:1], 56
    v_and_b32 v2, 31, v1
    v_lshrrev_b32 v3, 5, v1
    v_lshlrev_b32 v4, 4, v1
    s_waitcnt lgkmcnt(0)
    s_mov_b32 s16, s10
    s_mov_b32 s17, s11
    s_mov_b32 s18, {145*64*2}
    s_mov_b32 s19, 0x20000
    s_mov_b32 s20, s14
    s_mov_b32 s21, s15
    s_mov_b32 s22, {128*64*2}
    s_mov_b32 s23, 0x20000
    s_mov_b32 s24, s12
    s_mov_b32 s25, s13
    s_mov_b32 s26, {64*2}
    s_mov_b32 s27, 0x20000
    s_add_u32 s28, s8, {WF}
    s_addc_u32 s29, s9, 0
    s_mov_b32 s30, {WFSZ}
    s_mov_b32 s31, 0x20000
    s_mov_b32 s32, {f32bits(-LOG2E)}
    v_lshlrev_b32 v5, 1, v2
    v_lshl_add_u32 v6, v3, 10, v5
    v_lshl_add_u32 v7, v3, 9, v5
    v_lshlrev_b32 v8, 3, v3
    ''')
    frags=[]
    for blk in range(2): frags.append((F_W3+blk,'e',129,blk,'std',True))
    for s in range(4):
        for blk in range(2): frags.append((F_H1+2*s+blk,'h',16*s,blk,'std',False))
    for blk in range(2):
        for sp in range(2):
            for b2 in range(2): frags.append((F_H2+(blk*2+sp)*2+b2,'h',64+32*blk+16*sp,b2,'perm',False))
    assert len(frags)==NF
    for wv in range(8):
        a(f's_cmp_eq_u32 s3, {wv}')
        a(f's_cbranch_scc1 L1_w{wv}')
    a('s_endpgm')
    for wv in range(8):
        a.label(f'L1_w{wv}')
        mine=[f for i,f in enumerate(frags) if i%8==wv]
        for q,(F,srcn,row0,blk,kind,scaled) in enumerate(mine):
            r=16+8*q
            srd={'e':'s[16:19]','h':'s[20:23]','x':'s[24:27]'}[srcn]
            if kind=='wx':
                a(f'v_add_u32 v10, {row0*2}, v8')
                for t in range(8):
                    T=(t&3)+8*(t>>2)
                    a(f'buffer_load_ushort v{r+t}, v10, {srd}, 0 offen offset:{T*2}')
            else:
                vb = 6 if kind=='std' else 7
                a(f'v_add_u32 v10, {row0*128+blk*64}, v{vb}')
                for t in range(8):
                    T= t if kind=='std' else (t&3)+8*(t>>2)
                    a(f'buffer_load_ushort v{r+t}, v10, {srd}, 0 offen offset:{T*128}')
        if wv==0:
            a(f'''
            v_lshlrev_b32 v11, 1, v1
            v_add_u32 v11, {128*128}, v11
            buffer_load_ushort v12, v11, s[16:19], 0 offen
            ''')
        if wv==1:
            a(f'''
            v_and_b32 v11, 3, v1
            v_bfe_u32 v12, v1, 2, 2
            v_lshl_add_u32 v11, v12, 3, v11
            v_bfe_u32 v12, v1, 4, 1
            v_lshl_add_u32 v11, v12, 5, v11
            v_lshl_add_u32 v11, v3, 2, v11
            v_lshlrev_b32 v11, 1, v11
            buffer_load_ushort v12, v11, s[24:27], 0 offen
            ''')
        a('s_waitcnt vmcnt(0)')
        for q,(F,srcn,row0,blk,kind,scaled) in enumerate(mine):
            r=16+8*q
            if scaled:
                for t in range(8):
                    a(f'v_lshlrev_b32 v{r+t}, 16, v{r+t}')
                for t in range(8):
                    a(f'v_mul_f32 v{r+t}, s32, v{r+t}')
                for t in range(4):
                    a(f'v_cvt_pk_bf16_f32 v{64+t}, v{r+2*t}, v{r+2*t+1}')
            else:
                for t in range(4):
                    a(f'v_lshl_or_b32 v{64+t}, v{r+2*t+1}, 16, v{r+2*t}')
            a(f'v_add_u32 v10, {F*1024}, v4')
            a(f'buffer_store_dwordx4 v[64:67], v10, s[28:31], 0 offen{SC1W}')
            a('s_nop 1')
        if wv==0:
            a(f'''
            v_lshlrev_b32 v12, 16, v12
            v_mul_f32 v12, s32, v12
            v_cvt_pk_bf16_f32 v13, v12, v12
            v_and_b32 v14, 0xffff0000, v13
            v_sub_f32 v12, v12, v14
            v_cvt_pk_bf16_f32 v12, v12, v12
            v_and_b32 v12, 0xffff0000, v12
            v_and_b32 v13, 0xffff, v13
            v_or_b32 v13, v13, v12
            v_and_b32 v11, 31, v1
            v_lshlrev_b32 v11, 3, v11
            v_lshl_add_u32 v11, v3, 2, v11
            v_add_u32 v11, {WDO}, v11
            buffer_store_dword v13, v11, s[28:31], 0 offen
            ''')
        if wv==1:
            a(f'''
            v_lshlrev_b32 v12, 16, v12
            v_lshlrev_b32 v11, 2, v1
            v_add_u32 v11, {WXO}, v11
            buffer_store_dword v12, v11, s[28:31], 0 offen
            ''')
        a('s_endpgm')
    a.label('L1_tables')
    if DEBUG_TM: a('v_mov_b32 v15, 0')
    stamp(a,0,15,36)
    a(f"""
    s_load_dwordx2 s[10:11], s[0:1], 0
    s_load_dwordx2 s[12:13], s[0:1], 40
    s_sub_u32 s14, s2, {0 if TFIRST else NCH+1}
    s_lshl_b32 s14, s14, 7
    s_lshr_b32 s33, s3, 1
    s_lshl_b32 s33, s33, 5
    s_and_b32 s15, s3, 1
    v_and_b32 v2, 31, v1
    v_lshrrev_b32 v3, 5, v1
    v_lshrrev_b32 v8, 3, v1
    v_and_b32 v9, 7, v1
    v_lshrrev_b32 v10, 4, v1
    s_waitcnt lgkmcnt(0)
    s_mov_b32 s16, s10
    s_or_b32 s17, s11, 0x800000
    s_mov_b32 s18, {N}
    s_mov_b32 s19, 0x20000
    s_mov_b32 s20, s12
    s_mov_b32 s21, s13
    s_mov_b32 s22, {128*128}
    s_mov_b32 s23, 0x20000
    s_mul_i32 s34, s15, {TB-TA}
    s_add_u32 s34, s34, {TA}
    s_add_u32 s24, s8, s34
    s_addc_u32 s25, s9, 0
    s_or_b32 s25, s25, 0x800000
    s_mov_b32 s26, {N}
    s_mov_b32 s27, 0x20000
    """)
    for r in range(2):
        a(f"""
        s_lshl_b32 s34, s3, 1
        s_add_u32 s34, s34, {r}
        s_lshl_b32 s35, s34, 3
        s_add_u32 s35, s35, s14
        v_add_u32 v4, s35, v8
        v_add_u32 v5, {4*r}, v10
        v_xor_b32 v5, v5, v9
        v_lshlrev_b32 v5, 4, v5
        s_lshl_b32 s34, s34, 10
        s_add_u32 m0, s34, 16384
        s_nop 0
        buffer_load_dwordx4 v[4:5], s[16:19], 0 idxen offen lds
        """)
    a(f"""
    v_lshlrev_b32 v6, 4, v1
    s_lshl_b32 s34, s3, 10
    v_add_u32 v6, s34, v6
    s_mov_b32 m0, s34
    v_add_u32 v7, 8192, v6
    buffer_load_dwordx4 v6, s[20:23], 0 offen lds
    s_add_u32 m0, s34, 8192
    s_nop 0
    buffer_load_dwordx4 v7, s[20:23], 0 offen lds
    v_and_b32 v8, 15, v1
    v_lshrrev_b32 v9, 2, v8
    v_lshl_add_u32 v9, v3, 3, v9
    v_lshlrev_b32 v9, 7, v9
    v_bfe_u32 v10, v1, 4, 1
    v_lshl_add_u32 v9, v10, 5, v9
    v_and_b32 v10, 3, v1
    v_lshl_add_u32 v9, v10, 3, v9
    s_lshl_b32 s34, s15, 13
    v_add_u32 v9, s34, v9
    v_add_u32 v10, s33, v2
    v_lshlrev_b32 v10, 7, v10
    v_add_u32 v10, 16384, v10
    v_bfe_u32 v11, v2, 1, 3
    s_mov_b32 s35, {f32bits(-LOG2E)}
    s_waitcnt vmcnt(0)
    """)
    stamp(a,1,15,36)
    a('s_barrier')
    for s_ in range(4):
        a(f"""
        v_add_u32 v12, {2*s_}, v3
        v_xor_b32 v12, v12, v11
        v_lshl_add_u32 v12, v12, 4, v10
        ds_read_b128 v[{16+4*s_}:{19+4*s_}], v12
        """)
    for s_ in range(4):
        for blk in range(2):
            r=32+4*(2*s_+blk)
            a(f'ds_read_b64_tr_b16 v[{r}:{r+1}], v9 offset:{2048*s_+64*blk}')
            a(f'ds_read_b64_tr_b16 v[{r+2}:{r+3}], v9 offset:{2048*s_+64*blk+512}')
        if s_==1: a('s_waitcnt lgkmcnt(0)')
    a('s_waitcnt lgkmcnt(0)')
    a('s_barrier')
    stamp(a,2,15,36)
    for blk in range(2):
        D=f'v[{64+16*blk}:{79+16*blk}]'
        for s_ in range(4):
            C = D if s_>0 else '0'
            r=32+4*(2*s_+blk)
            a(f'v_mfma_f32_32x32x16_bf16 {D}, v[{r}:{r+3}], v[{16+4*s_}:{19+4*s_}], {C}')
    a(f"""
    s_lshl_b32 s34, s3, 12
    v_lshlrev_b32 v4, 7, v2
    v_add_u32 v4, s34, v4
    v_and_b32 v5, 7, v2
    v_lshlrev_b32 v5, 4, v5
    """)
    for blk in range(2):
        for i in range(16):
            a(f'v_mul_f32 v{64+16*blk+i}, s35, v{64+16*blk+i}')
    a("""
    s_cmp_eq_u32 s15, 0
    s_cbranch_scc1 L1_tabA
    v_lshl_add_u32 v4, v3, 3, v4
    """)
    for blk in range(2):
        for q in range(8):
            a(f'v_cvt_pk_bf16_f32 v{32+8*blk+q}, v{64+16*blk+2*q}, v{64+16*blk+2*q+1}')
        for m in range(4):
            a(f'v_xor_b32 v6, {16*(4*blk+m)}, v5')
            a(f'v_add_u32 v6, v6, v4')
            a(f'ds_write_b64 v6, v[{32+8*blk+2*m}:{33+8*blk+2*m}]')
    a('s_branch L1_tabS')
    a.label('L1_tabA')
    for r in range(16):
        a(f'v_cvt_pk_bf16_f32 v{32+r}, v{64+r}, v{80+r}')
    a('v_lshlrev_b32 v7, 4, v3')
    for m in range(4):
        a(f'v_add_u32 v6, {32*m}, v7')
        a(f'v_xor_b32 v6, v6, v5')
        a(f'v_add_u32 v6, v6, v4')
        a(f'ds_write_b128 v6, v[{32+4*m}:{35+4*m}]')
    a.label('L1_tabS')
    stamp(a,3,15,36)
    a(f"""
    v_lshlrev_b32 v6, 4, v1
    v_add_u32 v6, s34, v6
    v_lshrrev_b32 v8, 3, v1
    v_and_b32 v9, 7, v1
    v_xor_b32 v9, v9, v8
    v_lshlrev_b32 v13, 4, v9
    s_add_u32 s14, s14, s33
    v_add_u32 v8, s14, v8
    s_waitcnt lgkmcnt(0)
    """)
    for i in range(4):
        a(f'ds_read_b128 v[{48+4*i}:{51+4*i}], v6 offset:{1024*i}')
    for i in range(4):
        a(f'v_add_u32 v12, {8*i}, v8')
        a(f's_waitcnt lgkmcnt({3-i})')
        a(f'buffer_store_dwordx4 v[{48+4*i}:{51+4*i}], v[12:13], s[24:27], 0 idxen offen{SC1T}')
    stamp(a,4,15,36)
    if DEBUG_TM: a('s_waitcnt vmcnt(0)')
    stamp(a,5,15,36)
    stamp_store(a,15,36,8,9,0,3,14)
    a('s_endpgm')
    a.label('L1_end')
    a('s_endpgm')
    return a.finalize(), 96, 40, 32768+64

L_G=0; L_R0=28672; L_RS=43264; L_S=50432; L_RING=66816; L_GTAB=148736; L_WTOT=156928; L_PD=157184; L_WST=158208; L_AST=L_WST+2560; L_END=L_AST+2048
SLOT=5120
vI=16; vW3=24; vW6=32; vS1=40; vS2=41; vD2=64; vD1=(96,128); vE=160; vX=192; vXE=208; vX6=212; vSF=216; vONE=224
vHA=228; vEAr=232; vX6r=233; vC1=234; vSTa=235; vC2=236; vMK2=237; vEAc=238; vOne=239; vHP=240
vSTb=15; vCD=14
vRSa=248; vR0a=249; vR0e=250; vGe=251; vR0=252; vG=253; vA1=254; vA2=255; vEAi=10; vEAo=11
vZero=vONE+1
vTM=12
sH=4; sEA=8; sOF=12; sEN=16; sPOS=20; sWF=24; sO0=28; sO1=32; sHD=36; sSEL=100; sTA=40
sWS=44
sW0=46; sW1=47; sV=3; sG=101; sCNT=48; sBASE=49; sNT=50; sT=51; sRB=52; sNODE0=53; sMK=89

ABL=set(x[6:] for x in sys.argv if x.startswith('--abl=') ) | ({'fprio','trim','pk','xmap'} - set(x[5:] for x in sys.argv if x.startswith('--no=')))
OPT=dict(x[6:].split(':') for x in sys.argv if x.startswith('--opt='))
def optl(k,d): return [int(v.replace('n','-')) for v in OPT[k].split(',')] if k in OPT else d
TRIMK='trim'; PF2K='pf2'; TBK='tbpf'; XMK='xmap'
EAF=''.join(' '+x for x in OPT.get('eaf','').split('+') if x); HF=''.join(' '+x for x in OPT.get('hf','').split('+') if x)
NH_ = 0 if 'noh' in ABL else N
NE_ = 0 if 'noea' in ABL else E*32
def gen_k2():
    a=Asm()
    def st(i): stamp(a,i,vTM,98)
    a.label('egnn_main_kernel')
    a(f'''
    s_cmp_ge_u32 s2, {NBK}
    s_cbranch_scc1 L2_end
    ''')
    if 'xmap' in ABL:
        a('s_and_b32 s4, s2, 7\ns_lshl_b32 s4, s4, 5\ns_lshr_b32 s2, s2, 3\ns_or_b32 s2, s2, s4')
    if DEBUG_TM: a(f'v_mov_b32 v{vTM}, 0')
    st(0)
    a(f'''
    s_load_dwordx2 s[44:45], s[0:1], 80
    s_load_dwordx4 s[36:39], s[0:1], 0
    s_load_dwordx2 s[40:41], s[0:1], 16
    s_load_dwordx2 s[42:43], s[0:1], 64
    v_and_b32 v1, 63, v0
    v_lshrrev_b32 v2, 6, v0
    v_lshrrev_b32 v3, 1, v0
    v_readfirstlane_b32 s{sV}, v2
    ''')
    if 'rot' in OPT:
        a(f'''
        s_lshr_b32 s54, s2, 5
        s_mul_i32 s54, s54, {int(OPT['rot'])}
        v_cmp_gt_u32 vcc, {NCH}, v3
        v_add_u32 v9, s54, v3
        v_subrev_u32 v10, {NCH}, v9
        s_movk_i32 s55, {NCH}
        v_cmp_gt_u32 s[56:57], s55, v9
        s_nop 1
        v_cndmask_b32 v9, v10, v9, s[56:57]
        v_cndmask_b32 v3, v3, v9, vcc
        ''')
    a(f'''
    v_and_b32 v9, 1, v0
    s_lshl_b32 s54, s2, 4
    s_mov_b32 s55, {ROW}
    v_mov_b32 v96, s54
    v_mad_u32_u24 v96, v3, s55, v96
    s_mov_b32 s{sOF+2}, {NCH*ROW}
    s_mov_b32 s{sOF+3}, 0x20000
    s_waitcnt lgkmcnt(0)
    s_add_u32 s{sOF}, s44, {OFFS}
    s_addc_u32 s{sOF+1}, s45, 0
    buffer_load_dwordx4 v[4:7], v96, s[{sOF}:{sOF+3}], 0 offen
    buffer_load_ushort v8, v96, s[{sOF}:{sOF+3}], 0 offen offset:16
    ''')
    st(16)
    a(f"""
    s_mov_b32 s{sPOS}, s38
    s_mov_b32 s{sPOS+1}, s39
    s_mov_b32 s{sPOS+2}, {N*6}
    s_mov_b32 s{sPOS+3}, 0x20000
    s_add_u32 s{sWF}, s44, {WF}
    s_addc_u32 s{sWF+1}, s45, 0
    s_mov_b32 s{sWF+2}, {WFSZ}
    s_mov_b32 s{sWF+3}, 0x20000
    s_mov_b32 s{sW0}, 0
    s_mov_b32 s{sW1}, {NCH}
    s_mov_b32 s63, 2
    v_lshlrev_b32 v96, 4, v1
    s_lshl_b32 s58, s{sV}, 10
    v_add_u32 v96, s58, v96
    """)
    PE=optl('pe',[5])[0]
    assert PE<=9
    def posdma(r):
        a(f"""
        s_add_u32 m0, s58, {L_RING+8192*r}
        v_add_u32 v97, {8192*r}, v96
        buffer_load_dwordx4 v97, s[{sPOS}:{sPOS+3}], 0 offen lds
        """)
    chunks=[f"""
    s_mov_b32 s{sH}, s36
    s_or_b32 s{sH+1}, s37, 0x800000
    s_mov_b32 s{sH+2}, {N}
    s_mov_b32 s{sH+3}, 0x20000
    s_mov_b32 s{sEA}, s40
    s_mov_b32 s{sEA+1}, s41
    s_mov_b32 s{sEA+2}, {E*32}
    s_mov_b32 s{sEA+3}, 0x20000
    s_add_u32 s{sEN}, s44, {ENT}
    s_addc_u32 s{sEN+1}, s45, 0
    s_mov_b32 s{sEN+2}, {NCH*CH*4}
    s_mov_b32 s{sEN+3}, 0x20000
    """, f"""
    s_mov_b32 s{sO0}, s42
    s_or_b32 s{sO0+1}, s43, 0x800000
    s_mov_b32 s{sO0+2}, {N}
    s_mov_b32 s{sO0+3}, 0x20000
    s_add_u32 s{sO1}, s42, {N*128}
    s_addc_u32 s{sO1+1}, s43, 0
    s_mov_b32 s{sO1+2}, {N*6}
    s_mov_b32 s{sO1+3}, 0x20000
    s_add_u32 s{sHD}, s44, {TB}
    s_addc_u32 s{sHD+1}, s45, 0
    s_or_b32 s{sHD+1}, s{sHD+1}, 0x800000
    s_mov_b32 s{sHD+2}, {N}
    s_mov_b32 s{sHD+3}, 0x20000
    """, f"""
    s_add_u32 s{sTA}, s44, {TA}
    s_addc_u32 s{sTA+1}, s45, 0
    s_or_b32 s{sTA+1}, s{sTA+1}, 0x800000
    s_mov_b32 s{sTA+2}, {N}
    s_mov_b32 s{sTA+3}, 0x20000
    s_mul_i32 s{sRB}, s{sV}, {2*SLOT}
    s_add_u32 s{sRB}, s{sRB}, {L_RING}
    s_mov_b32 s{sMK}, 0xffffffe0
    s_mov_b32 s{sSEL}, 0x01000100
    v_lshrrev_b32 v98, 5, v1
    v_and_b32 v101, 1, v1
    v_xor_b32 v101, v101, v98
    v_lshlrev_b32 v{vEAc}, 4, v101
    """, f"""
    v_and_b32 v101, 7, v1
    v_lshrrev_b32 v102, 4, v1
    v_xor_b32 v103, v101, v102
    v_lshlrev_b32 v{vHP+1}, 4, v103
    v_lshlrev_b32 v{vHP+5}, 4, v103
    v_add_u32 v102, 4, v102
    v_xor_b32 v103, v101, v102
    v_lshlrev_b32 v{vHP+3}, 4, v103
    v_lshlrev_b32 v{vHP+7}, 4, v103
    """, f"""
    v_mov_b32 v{vX6}, 0
    v_mov_b32 v{vX6+1}, 0
    v_mov_b32 v{vX6+2}, 0
    v_mov_b32 v{vX6+3}, 0
    v_mfma_f32_32x32x16_bf16 v[{vD2}:{vD2+15}], v[{vX6}:{vX6+3}], v[{vX6}:{vX6+3}], 0
    v_mfma_f32_32x32x16_bf16 v[{vD2+16}:{vD2+31}], v[{vX6}:{vX6+3}], v[{vX6}:{vX6+3}], 0
    """]
    for k in range(max(PE,len(chunks))):
        if k<PE: posdma(k)
        if k<len(chunks): a(chunks[k])
    a(f"""
    s_cmp_eq_u32 s{sV}, 2
    s_cselect_b32 s54, {WDO}, s58
    s_cselect_b32 s55, 2048, s58
    v_lshlrev_b32 v97, 4, v1
    v_add_u32 v97, s54, v97
    s_add_u32 m0, s55, {L_WST}
    s_cmp_gt_u32 s{sV}, 2
    s_cbranch_scc1 L2_nowst
    v_cmp_gt_u32 vcc, 32, v1
    s_cmp_eq_u32 s{sV}, 2
    s_cselect_b64 exec, vcc, -1
    buffer_load_dwordx4 v97, s[{sWF}:{sWF+3}], 0 offen lds
    s_mov_b64 exec, -1
    """)
    a.label('L2_nowst')
    st(17)
    if TBK in ABL:
        a(f'''
        {'s_and_b32 s54, s2, 31' if XMK in ABL else 's_lshr_b32 s54, s2, 3'}
        s_mul_i32 s54, s54, 391
        s_lshl_b32 s55, s{sV}, 6
        v_add_u32 v100, s55, v1
        v_cmp_gt_u32 vcc, 391, v100
        v_add_u32 v100, s54, v100
        v_mov_b32 v101, 0
        v_mov_b32 v102, -1
        v_cndmask_b32 v100, v102, v100, vcc
        buffer_load_dword v52, v[100:101], s[{sHD}:{sHD+3}], 0 idxen offen
        ''')
    st(18)
    st(1)
    a(f's_waitcnt vmcnt({min(PE,9)+(1 if TBK in ABL else 0)})')
    st(19)
    a('s_branch L2_counts')
    a.label('L2_batch')
    a(f"""
    s_barrier
    v_lshlrev_b32 v96, 4, v1
    s_lshl_b32 s58, s{sV}, 10
    v_add_u32 v96, s58, v96
    """)
    for r in range(PE): posdma(r)
    a.label('L2_counts')
    a(f"""
    v_alignbit_b32 v100, v5, v4, 16
    v_alignbit_b32 v101, v6, v5, 16
    v_alignbit_b32 v102, v7, v6, 16
    v_alignbit_b32 v103, v8, v7, 16
    v_and_b32 v105, 0xffff, v4
    v_sub_u32 v104, v8, v105
    s_sub_u32 s54, s{sW1}, s{sW0}
    v_subrev_u32 v106, s{sW0}, v3
    v_cmp_gt_u32 vcc, s54, v106
    s_mov_b32 s55, {CH*4}
    v_lshlrev_b32 v107, 2, v105
    v_lshl_add_u32 v107, v9, 4, v107
    v_cndmask_b32 v104, 0, v104, vcc
    v_lshlrev_b32 v109, 2, v9
    v_sub_u32 v109, v104, v109
    v_max_i32 v109, 0, v109
    v_mad_u32_u24 v107, v3, s55, v107
    """)
    for i in range(4):
        a(f'v_cmp_lt_u32 s[{90+2*i}:{91+2*i}], {8*i}, v109')
    for i in range(4):
        a(f's_mov_b64 exec, s[{90+2*i}:{91+2*i}]')
        a(f's_cbranch_execz L2_e{i}')
        a(f'buffer_load_dwordx4 v[{192+4*i}:{195+4*i}], v107, s[{sEN}:{sEN+3}], 0 offen offset:{32*i}')
        a.label(f'L2_e{i}')
    a('s_mov_b64 exec, -1')
    st(2)
    a(f"""
    v_pk_sub_u16 v100, v100, v4
    v_pk_sub_u16 v101, v101, v5
    v_pk_sub_u16 v102, v102, v6
    v_pk_sub_u16 v103, v103, v7
    v_cmp_eq_u32 s[56:57], 0, v9
    """)
    for q in range(4):
        a(f'v_cndmask_b32 v{100+q}, 0, v{100+q}, vcc')
    for q in range(5):
        a(f'v_cndmask_b32 v{112+q}, 0, v{100+q}, s[56:57]')
    for sh in (1,2,4,8):
        for q in range(5):
            a(f'v_add_u32_dpp v{112+q}, v{112+q}, v{112+q} row_shr:{sh} row_mask:0xf bank_mask:0xf')
    for q in range(5):
        a(f'v_add_u32_dpp v{112+q}, v{112+q}, v{112+q} row_bcast:15 row_mask:0xa bank_mask:0xf')
    for q in range(5):
        a(f'v_add_u32_dpp v{112+q}, v{112+q}, v{112+q} row_bcast:31 row_mask:0xc bank_mask:0xf')
    st(21)
    a(f"""
    s_lshl_b32 s54, s{sV}, 5
    s_add_u32 s54, s54, {L_WTOT}
    v_mov_b32 v117, s54
    s_mov_b32 s56, 0
    s_brev_b32 s57, 1
    s_mov_b64 exec, s[56:57]
    ds_write_b128 v117, v[112:115]
    ds_write_b32 v117, v116 offset:16
    s_mov_b64 exec, -1
    v_and_b32 v118, 7, v1
    v_lshlrev_b32 v118, 5, v118
    v_add_u32 v118, {L_WTOT}, v118
    s_waitcnt lgkmcnt(0)
    s_barrier
    ds_read_b128 v[120:123], v118
    ds_read_b32 v124, v118 offset:16
    """)
    st(3)
    a('s_waitcnt lgkmcnt(0)')
    for sh in (1,2,4):
        for q in range(5):
            a(f'v_add_u32_dpp v{120+q}, v{120+q}, v{120+q} row_shr:{sh} row_mask:0xf bank_mask:0xf')
    for q in range(5):
        a(f'v_readlane_b32 s{58+q}, v{120+q}, 7')
    a(f's_sub_u32 s54, s{sV}, 1')
    a(f's_max_i32 s54, s54, 0')
    for q in range(4):
        a(f'v_readlane_b32 s{64+q}, v{120+q}, s54')
    a(f's_cmp_eq_u32 s{sV}, 0')
    for q in range(4):
        a(f's_cselect_b32 s{64+q}, 0, s{64+q}')
    for q in range(4):
        a(f's_and_b32 s{68+2*q}, s{58+q}, 0xffff')
        a(f's_lshr_b32 s{69+2*q}, s{58+q}, 16')
    a('s_mov_b32 s84, 0')
    for g in range(8):
        a(f"""
        s_mov_b32 s{76+g}, s84
        s_add_u32 s54, s{68+g}, 31
        s_andn2_b32 s54, s54, 31
        s_add_u32 s84, s84, s54
        """)
    a(f"""
    s_max_u32 s54, s84, s62
    s_cmp_le_u32 s54, {CAP}
    s_cbranch_scc1 L2_fits
    s_add_u32 s{sW1}, s{sW0}, 1
    s_waitcnt vmcnt(0) lgkmcnt(0)
    s_branch L2_batch
    """)
    a.label('L2_fits')
    a(f"""
    s_cmp_eq_u32 s63, 1
    s_cbranch_scc1 L2_pidone
    """)
    if 'nopi' in ABL:
        a(f's_mov_b32 s{sG}, s{sV}')
    else:
        for g in range(8):
            a(f's_lshl_b32 s54, s{68+g}, 3')
            a(f's_add_u32 s{90+g}, s54, {7-g}')
            a(f'v_writelane_b32 v126, s{90+g}, {g}')
        a('v_mov_b32 v127, 0')
        for h in range(2):
            for k in range(4):
                pr=(56,58,54,64)[k] if False else None
            for k in range(4):
                a(f'v_cmp_gt_u32 s[{(54,56,58,60)[k]}:{(54,56,58,60)[k]+1}], s{90+4*h+k}, v126')
            for k in range(4):
                a(f'v_addc_co_u32 v127, vcc, 0, v127, s[{(54,56,58,60)[k]}:{(54,56,58,60)[k]+1}]')
        a(f"""
        s_sub_u32 s54, 11, s{sV}
        s_cmp_lt_u32 s{sV}, 4
        s_cselect_b32 s54, s{sV}, s54
        v_cmp_eq_u32 vcc, s54, v127
        s_nop 3
        s_and_b32 s54, vcc_lo, 0xff
        s_ff1_i32_b32 s{sG}, s54
        """)
    a(f"""
    s_mul_i32 s{sNODE0}, s2, {BN}
    s_add_u32 s{sNODE0}, s{sNODE0}, s{sG}
    """)
    a.label('L2_pidone')
    a(f's_mov_b32 s{sCNT}, s68')
    a(f's_mov_b32 s{sBASE}, s76')
    for g in range(1,8):
        a(f"""
        s_cmp_eq_u32 s{sG}, {g}
        s_cselect_b32 s{sCNT}, s{68+g}, s{sCNT}
        s_cselect_b32 s{sBASE}, s{76+g}, s{sBASE}
        """)
    a(f"""
    s_add_u32 s{sNT}, s{sCNT}, 31
    s_lshr_b32 s{sNT}, s{sNT}, 5
    """)
    for q in range(4):
        a(f's_pack_ll_b32_b16 s{85+q}, s{76+2*q}, s{77+2*q}')
        a(f's_add_u32 s{85+q}, s{85+q}, s{64+q}')
        a(f's_add_u32 s{85+q}, s{85+q}, {CH | (CH<<16)}')
    a(f"""
    v_lshl_or_b32 v105, v105, 16, v105
    v_mul_u32_u24 v106, 0x100010, v9
    """)
    for q in range(4):
        a(f"""
        v_sub_u32 v{112+q}, v{112+q}, v{100+q}
        v_add_u32 v{112+q}, s{85+q}, v{112+q}
        v_sub_u32 v{120+q}, v{4+q}, v105
        v_sub_u32 v{112+q}, v{112+q}, v{120+q}
        v_lshl_add_u32 v{112+q}, v{112+q}, 2, v106
        """)
    a(f"""
    v_lshlrev_b32 v108, 4, v0
    v_add_u32 v108, {L_GTAB}, v108
    ds_write_b128 v108, v[112:115]
    v_mov_b32 v104, v109
    s_mov_b32 s54, {CH*32}
    v_mul_lo_u32 v110, v3, s54
    v_mov_b32 v111, {4*CH+4*CAP}
    v_lshlrev_b32 v96, 4, v1
    s_lshl_b32 s58, s{sV}, 10
    v_add_u32 v96, s58, v96
    s_waitcnt vmcnt(0)
    """)
    st(4)
    if PE<10:
        a(f"""
        v_lshlrev_b32 v96, 4, v1
        s_lshl_b32 s58, s{sV}, 10
        v_add_u32 v96, s58, v96
        """)
        for r in range(PE,10):
            if r==9:
                a(f's_cmp_ge_u32 s{sV}, 2\ns_cbranch_scc1 L2_posdone2')
            a(f"""
            s_add_u32 m0, s58, {L_RING+8192*r}
            v_add_u32 v97, {8192*r}, v96
            buffer_load_dwordx4 v97, s[{sPOS}:{sPOS+3}], 0 offen lds
            """)
        a.label('L2_posdone2')
    a(f"""
    s_cmp_eq_u32 s63, 1
    s_cbranch_scc1 L2_noA
    s_lshl_b32 s54, s{sV}, 10
    s_add_u32 s55, s54, {L_RING+75776}
    s_add_u32 s54, s54, {L_AST-6*1024}
    s_cmp_lt_u32 s{sV}, 6
    s_cselect_b32 s62, s55, s54
    v_lshrrev_b32 v120, 3, v1
    v_lshlrev_b32 v120, 3, v120
    v_add_u32 v121, s{sG}, v120
    v_add_u32 v120, s{sNODE0}, v120
    v_cmp_gt_u32 vcc, {BN}, v121
    v_mov_b32 v122, -1
    v_and_b32 v123, 7, v1
    v_lshlrev_b32 v123, 4, v123
    v_cndmask_b32 v122, v122, v120, vcc
    s_mov_b32 m0, s62
    s_nop 0
    buffer_load_dwordx4 v[122:123], s[{sTA}:{sTA+3}], 0 idxen offen lds
    """)
    a.label('L2_noA')
    st(20)
    def quad(qreg, i, dyn=False):
        for u in range(4):
            a(f'v_lshrrev_b32 v{140+u}, 29, v{qreg+u}')
            a(f'v_lshl_add_u32 v{140+u}, v{140+u}, 1, v108')
            a(f'ds_read_u16 v{144+u}, v{140+u}')
        for u in range(4):
            if dyn: a(f'v_cmp_lt_u32 s[{90+2*u}:{91+2*u}], {u}, v104')
            else:   a(f'v_cmp_lt_u32 s[{90+2*u}:{91+2*u}], {8*i+u}, v104')
        a('s_waitcnt lgkmcnt(0)')
        for u in range(4):
            if dyn: a(f'v_add_u32 v{144+u}, v{144+u}, v149')
            a(f'v_cndmask_b32 v{144+u}, v111, v{144+u}, s[{90+2*u}:{91+2*u}]')
        ko = 0 if dyn else 8*i
        for u in range(4):
            a(f'ds_write_b32 v{144+u}, v{qreg+u} offset:{L_R0-4*CH+4*(ko+u)}')
            a(f'ds_write_b32 v{144+u}, v110 offset:{L_S-4*CH+4*(ko+u)}')
    for i in range(4):
        quad(192+4*i, i)
        a(f'v_cmp_lt_u32 vcc, {8*(i+1)}, v104')
        a('s_cbranch_vccz L2_scat_done')
    a(f'''
    v_subrev_u32 v104, 32, v104
    v_cmp_gt_i32 vcc, 0, v104
    v_mov_b32 v149, 128
    v_add_u32 v107, 128, v107
    v_cndmask_b32 v104, v104, 0, vcc
    ''')
    a.label('L2_scat_loop')
    a(f'buffer_load_dwordx4 v[192:195], v107, s[{sEN}:{sEN+3}], 0 offen')
    a('s_waitcnt vmcnt(0)')
    quad(192, 0, dyn=True)
    a(f'''
    v_subrev_u32 v104, 8, v104
    v_add_u32 v149, 32, v149
    v_add_u32 v107, 32, v107
    v_cmp_gt_i32 vcc, 0, v104
    s_nop 1
    v_cndmask_b32 v104, v104, 0, vcc
    v_cmp_lt_u32 vcc, 0, v104
    s_cbranch_vccnz L2_scat_loop
    ''')
    a.label('L2_scat_done')
    st(5)
    a('''
    s_waitcnt vmcnt(0) lgkmcnt(0)
    s_barrier
    ''')
    st(6)
    a(f"""
    v_lshrrev_b32 v100, 2, v1
    v_lshlrev_b32 v100, 3, v100
    v_add_u32 v100, s{sNODE0}, v100
    v_mul_u32_u24 v100, 6, v100
    v_and_b32 v102, 3, v1
    v_lshl_add_u32 v100, v102, 1, v100
    v_add_u32 v100, {L_RING}, v100
    ds_read_u16 v101, v100
    s_cmp_eq_u32 s63, 1
    s_cbranch_scc1 L2_noC
    s_mov_b32 s63, 1
    v_lshlrev_b32 v96, 4, v1
    v_add_u32 v96, {L_WST}, v96
    ds_read_b128 v[{vW3}:{vW3+3}], v96
    ds_read_b128 v[{vW3+4}:{vW3+7}], v96 offset:1024
    v_and_b32 v120, 31, v1
    v_lshrrev_b32 v121, 5, v1
    v_lshlrev_b32 v122, 2, v120
    v_lshl_add_u32 v122, v121, 9, v122
    v_add_u32 v122, s62, v122
    """)
    for q in range(4):
        a(f'ds_read_b32 v{40+q}, v122 offset:{128*q}')
    a(f"""
    v_lshlrev_b32 v120, 3, v120
    v_add_u32 v120, {L_WST+2048}, v120
    ds_read_b64 v[44:45], v120
    v_cmp_gt_u32 vcc, 32, v1
    s_waitcnt lgkmcnt(0)
    v_cndmask_b32 v44, v44, 0, vcc
    v_cndmask_b32 v45, v45, 0, vcc
    """)
    for q in range(4):
        a(f'v_and_b32 v{vW6+q}, 0xffff, v{40+q}')
        a(f'v_lshrrev_b32 v{vW6+4+q}, 16, v{40+q}')
    a(f"""
    v_or_b32 v{vW6+3}, v{vW6+3}, v44
    v_or_b32 v{vW6+7}, v{vW6+7}, v45
    """)
    a.label('L2_noC')
    a(f"""
    s_lshl_b32 s54, s{sV}, 7
    s_add_u32 s54, s54, {L_PD}
    v_lshlrev_b32 v97, 2, v1
    v_add_u32 v97, s54, v97
    s_waitcnt lgkmcnt(0)
    v_lshlrev_b32 v101, 16, v101
    s_mov_b32 exec_hi, 0
    ds_write_b32 v97, v101
    s_mov_b64 exec, -1
    """)
    a(f'''
    s_lshl_b32 s54, s{sV}, 7
    s_add_u32 s54, s54, {L_PD}
    v_mov_b32 v98, s54
    v_mov_b32 v99, {L_RING}
    v_add_u32 v96, s{sBASE}, v1
    v_mov_b32 v97, v1
    s_mov_b32 s{sT}, 0
    s_mov_b32 s55, 0xffff0000
    s_movk_i32 s56, 0x7fff
    s_mov_b32 s{sHD+2}, {N}
    s_mov_b32 s{sEA+2}, {E*32}
    ''')
    a(f'''
    s_lshl_b32 s54, s{sNT}, 5
    s_sub_u32 s54, s54, 32
    v_add_u32 v100, s54, v1
    v_cmp_le_u32 s[58:59], s{sCNT}, v100
    v_cmp_gt_u32 vcc, 32, v1
    s_and_b64 vcc, vcc, s[58:59]
    s_cmp_eq_u32 s{sNT}, 0
    s_cbranch_scc1 L2_nodummy
    s_and_saveexec_b64 s[58:59], vcc
    s_cbranch_execz L2_dummy_restore
    v_add_u32 v100, s{sBASE}, v100
    v_lshlrev_b32 v101, 2, v100
    v_mov_b32 v102, 28
    ds_write_b32 v101, v102 offset:{L_R0}
    v_lshlrev_b32 v101, 1, v100
    v_mov_b32 v102, 0
    v_mov_b32 v103, 0
    ds_write_b16 v101, v102 offset:{L_RS}
    v_lshlrev_b32 v101, 3, v100
    ds_write_b64 v101, v[102:103] offset:{L_G}
    ''')
    a.label('L2_dummy_restore')
    a('s_mov_b64 exec, s[58:59]')
    a.label('L2_nodummy')
    NI=4
    a.label('L2_geo_loop')
    a(f'''
    s_cmp_ge_u32 s{sT}, s{sCNT}
    s_cbranch_scc1 L2_geo_done
    ''')
    def R(it,k): return 112+20*it+k
    for it in range(NI):
        a(f'''
        v_add_u32 v{R(it,0)}, {64*it}, v96
        v_lshlrev_b32 v{R(it,0)}, 2, v{R(it,0)}
        ds_read_b32 v{R(it,1)}, v{R(it,0)} offset:{L_R0}
        ds_read_b32 v{R(it,2)}, v{R(it,0)} offset:{L_S}
        ''')
    for it in range(NI):
        a(f'''
        v_add_u32 v{R(it,16)}, {64*it}, v97
        v_cmp_gt_u32 s[{90+2*it}:{91+2*it}], s{sCNT}, v{R(it,16)}
        ''')
    for it in range(NI):
        e=R(it,1); wb=R(it,2)
        a(f's_waitcnt lgkmcnt({2*(NI-1-it)+2*it})')
        a(f'''
        v_bfe_u32 v{R(it,3)}, v{e}, 15, 14
        v_and_b32 v{R(it,4)}, 7, v{e}
        v_mad_u32_u24 v{R(it,5)}, v{R(it,3)}, 6, v99
        v_lshl_add_u32 v{R(it,7)}, v{R(it,4)}, 4, v98
        v_and_b32 v{R(it,5)}, -4, v{R(it,5)}
        ds_read_b96 v[{R(it,8)}:{R(it,10)}], v{R(it,7)}
        ds_read2_b32 v[{R(it,12)}:{R(it,13)}], v{R(it,5)} offset1:1
        v_and_b32 v{R(it,5)}, s56, v{e}
        v_lshl_add_u32 v{wb}, v{R(it,5)}, 2, v{wb}
        v_lshlrev_b32 v{R(it,6)}, 4, v{R(it,3)}
        ''')
    if 'nopf' not in ABL:
        a(f'''
        s_cmp_lg_u32 s{sT}, 0
        s_cbranch_scc1 L2_nopf
        ''')
        a(f'''
        v_and_b32 v48, s{sMK}, v{R(0,2)}
        v_mov_b32 v51, 0
        v_mov_b32 v50, v{R(0,3)}
        s_mov_b32 exec_hi, {-1 if PF2K in ABL else 0}
        buffer_load_dword v48, v48, s[{sEA}:{sEA+3}], 0 offen
        s_mov_b32 exec_hi, 0
        buffer_load_dword v49, v[50:51], s[{sHD}:{sHD+3}], 0 idxen offen
        s_mov_b64 exec, -1
        ''')
        a.label('L2_nopf')
    for it in range(NI):
        pd=R(it,8); ps=R(it,12); sh=R(it,6); t0=R(it,4); t1=R(it,5); t2=R(it,7); o=R(it,14); t3=R(it,17)
        a(f's_waitcnt lgkmcnt({2*(NI-1-it)+3*it})')
        a(f'''
        v_alignbit_b32 v{t0}, v{ps+1}, v{ps}, v{sh}
        v_lshrrev_b32 v{t2}, v{sh}, v{ps+1}
        v_lshlrev_b32 v{t1}, 16, v{t0}
        v_and_b32 v{t0}, s55, v{t0}
        v_lshlrev_b32 v{t2}, 16, v{t2}
        v_sub_f32 v{t1}, v{pd}, v{t1}
        v_sub_f32 v{t0}, v{pd+1}, v{t0}
        v_sub_f32 v{t2}, v{pd+2}, v{t2}
        v_mul_f32 v{t3}, v{t1}, v{t1}
        v_cvt_pk_bf16_f32 v{o+1}, v{t0}, v{t2}
        v_fmac_f32 v{t3}, v{t0}, v{t0}
        v_fmac_f32 v{t3}, v{t2}, v{t2}
        v_lshrrev_b32 v{t0}, 1, v{R(it,0)}
        v_cvt_pk_bf16_f32 v{o}, v{t3}, v{t1}
        v_lshlrev_b32 v{t2}, 1, v{R(it,0)}
        s_mov_b64 exec, s[{90+2*it}:{91+2*it}]
        ds_write_b32 v{R(it,0)}, v{R(it,2)} offset:{L_R0}
        ds_write_b16 v{t0}, v{R(it,3)} offset:{L_RS}
        ds_write_b64 v{t2}, v[{o}:{o+1}] offset:{L_G}
        s_mov_b64 exec, -1
        ''')
    a(f'''
    v_add_u32 v96, {64*NI}, v96
    v_add_u32 v97, {64*NI}, v97
    s_add_u32 s{sT}, s{sT}, {64*NI}
    s_branch L2_geo_loop
    ''')
    a.label('L2_geo_done')
    a(f"""
    v_lshrrev_b32 v97, 3, v1
    v_add_u32 v97, s{sBASE}, v97
    v_lshlrev_b32 v97, 1, v97
    v_add_u32 v{vRSa}, {L_RS}, v97
    v_lshrrev_b32 v97, 1, v1
    v_add_u32 v97, s{sBASE}, v97
    v_lshlrev_b32 v97, 2, v97
    v_add_u32 v{vR0a}, {L_R0}, v97
    v_and_b32 v97, 31, v1
    v_add_u32 v97, s{sBASE}, v97
    v_lshlrev_b32 v98, 2, v97
    v_add_u32 v{vR0e}, {L_R0}, v98
    v_lshrrev_b32 v98, 5, v1
    v_lshlrev_b32 v98, 2, v98
    v_lshl_add_u32 v98, v97, 3, v98
    v_add_u32 v{vGe}, {L_G}, v98
    s_mov_b32 s{sT}, 0
    s_sub_u32 s86, s{sNT}, 3
    s_sub_u32 s87, s{sNT}, 1
    """)
    for i in range(4): a(f'ds_read_u16 v{vHP+2*i}, v{vRSa} offset:{16*i}')
    a(f'ds_read_b32 v{vEAi}, v{vR0a}')
    a(f'ds_read_b32 v{vR0}, v{vR0e}')
    a(f'ds_read_b32 v{vG}, v{vGe}')
    if 'fprio' in ABL:
        PER=optl('per',[12])[0]
        a(f"""
        v_cvt_f32_u32 v96, s{sNT}
        v_rcp_f32 v96, v96
        s_nop 0
        v_mul_f32 v96, {f32bits(float(PER*65536*(2 if TRIMK in ABL else 1)))}, v96
        v_cvt_u32_f32 v96, v96
        s_nop 0
        v_readfirstlane_b32 s85, v96
        s_mov_b32 s84, 0
        s_sub_u32 s84, s84, s85
        """)
    a(f"""
    s_lshl_b32 s54, s{sV}, 11
    s_add_u32 s54, s54, {L_S}
    v_lshlrev_b32 v96, 4, v1
    v_add_u32 v96, s54, v96
    v_mov_b32 v100, 0
    v_mov_b32 v101, 0
    v_mov_b32 v102, 0
    v_mov_b32 v103, 0
    v_and_or_b32 v{vEAo}, v{vEAi}, s{sMK}, v{vEAc}
    s_waitcnt lgkmcnt(0)
    s_barrier
    """)
    st(7)
    a(f"""
    ds_write_b128 v96, v[100:103]
    ds_write_b128 v96, v[100:103] offset:1024
    """)
    if 'lone' in ABL:
        a(f's_cmp_ge_u32 s{sV}, 4\ns_cselect_b32 s{sNT}, 0, s{sNT}')
    a(f"""
    s_cmp_eq_u32 s{sNT}, 0
    s_cbranch_scc1 L2_notiles
    """)
    def idx_reads(toff):
        return [f'ds_read_u16 v{vHP+2*i}, v{vRSa} offset:{64*toff+16*i}' for i in range(4)] + \
               [f'ds_read_b32 v{vEAi}, v{vR0a} offset:{128*toff}']
    def rec_reads(toff):
        return [f'ds_read_b32 v{vR0}, v{vR0e} offset:{128*toff}', f'ds_read_b32 v{vG}, v{vGe} offset:{256*toff}']
    def srd_select(delta):
        return [f's_add_u32 s54, s{sT}, {delta}\ns_cmp_lt_u32 s54, s{sNT}\ns_cselect_b32 s{sHD+2}, {NH_}, 0\ns_cselect_b32 s{sEA+2}, {NE_}, 0']
    def dma2(slot):
        r=[(f'v_and_or_b32 v{vEAo}, v{vEAi}, s{sMK}, v{vEAc}\ns_add_u32 m0, s{sRB}, {slot*SLOT+4096}', f'buffer_load_dwordx4 v{vEAo}, s[{sEA}:{sEA+3}], 0 offen{EAF} lds')]
        for i in range(4):
            r.append((f's_add_u32 m0, s{sRB}, {slot*SLOT+1024*i}', f'buffer_load_dwordx4 v[{vHP+2*i}:{vHP+2*i+1}], s[{sHD}:{sHD+3}], 0 idxen offen{HF} lds'))
        return r
    def dma(slot):
        return [x+'\n'+y for x,y in dma2(slot)]
    def x_reads(slot):
        return [f'ds_read_b128 v[{vX+4*s}:{vX+4*s+3}], v{vHA+s} offset:{slot*SLOT}' for s in range(4)] + \
               [f'ds_read_b128 v[{vXE}:{vXE+3}], v{vEAr} offset:{slot*SLOT}']
    def s_addr(): return [f'v_bitop3_b32 v{vA1}, v{vR0}, 28, v{vC1} bitop3:0x6a', f'v_bfi_b32 v{vS1}, v{vMK2}, v{vG}, v{vOne}', f'v_perm_b32 v{vS2}, v{vG}, v{vG}, s{sSEL}']
    def s_writes(): return [f'ds_write_b32 v{vA1}, v{vS1}', f'ds_write_b32 v{vCD}, v{vS2}']
    def x6_read(): return [f'ds_read_b128 v[{vX6}:{vX6+3}], v{vX6r}']
    def sf_reads():
        r=[]
        for s2 in range(2):
            r.append(f'ds_read_b64_tr_b16 v[{vSF+4*s2}:{vSF+4*s2+1}], v{vSTa} offset:{1024*s2}')
            r.append(f'ds_read_b64_tr_b16 v[{vSF+4*s2+2}:{vSF+4*s2+3}], v{vSTb} offset:{1024*s2}')
        return r
    def s_restore(): return [f'ds_write_b32 v{vA1}, v{vZero}']
    def mfma1(dst):
        r=[]
        for blk in range(2):
            D=f'v[{dst+16*blk}:{dst+16*blk+15}]'
            for sp in range(2):
                C = D if sp>0 else '0'
                s_=2*blk+sp
                r.append(f'v_mfma_f32_32x32x16_bf16 {D}, v[{vX+4*s_}:{vX+4*s_+3}], v[{vI+4*sp}:{vI+4*sp+3}], {C}')
            r.append(f'v_mfma_f32_32x32x16_bf16 {D}, v[{vXE}:{vXE+3}], v[{vW3+4*blk}:{vW3+4*blk+3}], {D}')
            r.append(f'v_mfma_f32_32x32x16_bf16 {D}, v[{vX6}:{vX6+3}], v[{vW6+4*blk}:{vW6+4*blk+3}], {D}')
        return r
    ONE=f'v[{vONE}:{vONE+3}]'
    def plus1(blk):
        Eb=f'v[{vE+16*blk}:{vE+16*blk+15}]'
        return f'v_mfma_f32_32x32x16_bf16 {Eb}, {ONE}, {ONE}, {Eb}'
    def mfma2(cur,blk,s2):
        D=f'v[{vD2+16*blk}:{vD2+16*blk+15}]'; m=cur+8*blk+4*s2
        return f'v_mfma_f32_32x32x16_bf16 {D}, v[{m}:{m+3}], v[{vSF+4*s2}:{vSF+4*s2+3}], {D}'
    def keep(x):
        if 'nomfma' in ABL and x.startswith('v_mfma'): return False
        if 'nolds' in ABL and x.startswith('ds_'): return False
        if 'nodma' in ABL and 'buffer_load' in x: return False
        if 'notrans' in ABL and x.startswith(('v_exp','v_rcp')): return False
        if 'novalu' in ABL and x.startswith(('v_exp','v_rcp','v_mul','v_cvt','v_pk_mul')): return False
        return True
    def emit(backbone, inserts):
        backbone=[x if keep(x) else 's_nop 0' for x in backbone]
        inserts={k:[x for x in v if keep(x)] for k,v in inserts.items()}
        for k_ in sorted(k for k in inserts if k<0):
            for s_ in inserts[k_]: a(s_)
        for i,ins in enumerate(backbone):
            a(ins)
            for s_ in inserts.get(i,[]): a(s_)
    nlab=[0]
    PK='pk' in ABL
    DMAPOS=optl('dma',[37,48,60,70,82] if PK else [41,52,63,76,92])
    M1POS=optl('m1',[37,40,43,46,49,52,55,58] if PK else [42,46,50,54,58,62,68,74])
    SFPOS=optl('sf',[0,2,4,6]); RSPOS=optl('rs',[8])[0]; SAPOS=optl('sa',[9,10,11]); SWPOS=optl('sw',[12,13]); X6POS=optl('x6',[14])[0]
    VMPOS=optl('vm',[16])[0]; XPOS=optl('x',[16,18,20,22,24]); RECPOS=optl('rec',[26,27]); IDXPOS=optl('idx',[28,29,30,31,32])
    LGPOS=optl('lg',[36] if PK else [40])[0]; M2POS=optl('m2',[85,89,93,95] if PK else [89,95,111,111]); P1POS=optl('p1',[17,33])
    def body(p, steady, extra_first=None):
        cur=vD1[p]; nxt=vD1[1-p]
        bb=[]
        for blk in range(2):
            bb += [f'v_exp_f32 v{vE+16*blk+i}, v{cur+16*blk+i}' for i in range(16)]
        for blk in range(2):
            bb += [f'v_rcp_f32 v{vE+16*blk+i}, v{vE+16*blk+i}' for i in range(16)]
        if 'pk' in ABL:
            bb += [f'v_pk_mul_f32 v[{vE+2*i}:{vE+2*i+1}], v[{vE+2*i}:{vE+2*i+1}], v[{cur+2*i}:{cur+2*i+1}]' for i in range(16)]
            bb += [f'v_cvt_pk_bf16_f32 v{cur+q}, v{vE+2*q}, v{vE+2*q+1}' for q in range(16)]
        else:
            bb += [f'v_mul_f32 v{vE+i}, v{vE+i}, v{cur+i}' for i in range(16)]
            bb += [f'v_cvt_pk_bf16_f32 v{cur+q}, v{vE+2*q}, v{vE+2*q+1}' for q in range(8)]
            bb += [f'v_mul_f32 v{vE+16+i}, v{vE+16+i}, v{cur+16+i}' for i in range(16)]
            bb += [f'v_cvt_pk_bf16_f32 v{cur+8+q}, v{vE+16+2*q}, v{vE+16+2*q+1}' for q in range(8)]
        ins={}
        def put(pos,x):
            ins.setdefault(pos,[]).append(x)
        if not ('trim' in ABL and steady): put(-100,'s_waitcnt lgkmcnt(0)')
        if 'prio' in ABL:
            put(-99,f'''s_and_b32 s54, s{sT}, 2
            s_cmp_eq_u32 s54, 0
            s_cbranch_scc1 Lp{nlab[0]}a
            s_setprio {1-p}
            s_branch Lp{nlab[0]}b
            Lp{nlab[0]}a:
            s_setprio {3-p}
            Lp{nlab[0]}b:''')
            nlab[0]+=1
        if 'fprio' in ABL and not ('trim' in ABL and p==1):
            n=nlab[0]
            put(-99,f'''s_add_u32 s84, s84, s85
            s_bitcmp1_b32 s84, 17
            s_cbranch_scc1 Lp{n}h
            s_bitcmp1_b32 s84, 16
            s_cbranch_scc1 Lp{n}a
            s_setprio 3
            s_branch Lp{n}z
            Lp{n}a:
            s_setprio 2
            s_branch Lp{n}z
            Lp{n}h:
            s_bitcmp1_b32 s84, 16
            s_cbranch_scc1 Lp{n}b
            s_setprio 1
            s_branch Lp{n}z
            Lp{n}b:
            s_setprio 0
            Lp{n}z:''')
            nlab[0]+=1
        if steady and p==0:
            n=nlab[0]; nlab[0]+=1
            put(0,f's_cmp_lg_u32 s{sT}, 0\ns_cbranch_scc1 Ld{n}\n'+'\n'.join(dma(0))+f'\nLd{n}:')
        for x,q in zip(sf_reads(),SFPOS): put(q,x)
        put(RSPOS,s_restore()[0])
        if extra_first:
            for x in extra_first: put(RSPOS+4,x)
        put(P1POS[0],plus1(0))
        put(P1POS[1],plus1(1))
        if steady:
            for x,q in zip(s_addr(),SAPOS): put(q,x)
            for x,q in zip(s_writes(),SWPOS): put(q,x)
            put(X6POS,x6_read()[0])
            put(VMPOS,'s_waitcnt vmcnt(5)')
            for x,q in zip(x_reads(1-p),XPOS): put(q,x)
            for x,q in zip(rec_reads(p+2),RECPOS): put(q,x)
            for x,q in zip(idx_reads(p+3),IDXPOS): put(q,x)
            if 'trim' in ABL:
                n=nlab[0]; nlab[0]+=1
                put(LGPOS-2,f's_cmp_lt_i32 s{sT}, s86\ns_cbranch_scc1 Lz{n}\ns_mov_b32 s{sHD+2}, 0\ns_mov_b32 s{sEA+2}, 0\nLz{n}:')
            else: put(LGPOS-2,srd_select(3)[0])
            put(LGPOS,'s_waitcnt lgkmcnt(0)')
            for (x,y),q in zip(dma2(1-p),DMAPOS):
                if q>0 and q-1>LGPOS-1 and 'trim' in ABL: put(q-1,x); put(q,y)
                else: put(q,x+'\n'+y)
            for x,q in zip(mfma1(nxt),M1POS): put(q,x)
        for (b_,s_),q in zip(((0,0),(0,1),(1,0),(1,1)),M2POS): put(q,mfma2(cur,b_,s_))
        emit(bb,ins)
    def late_consts(a):
        a(f'''
        v_and_b32 v97, 31, v1
        v_lshrrev_b32 v98, 5, v1
        v_bfe_u32 v99, v97, 1, 3
        v_lshlrev_b32 v100, 7, v97
        v_add_u32 v100, s{sRB}, v100
        ''')
        for s in range(4):
            a(f'''
            v_add_u32 v101, {2*s}, v98
            v_xor_b32 v101, v101, v99
            v_lshl_add_u32 v{vHA+s}, v101, 4, v100
            ''')
        a(f'''
        v_lshrrev_b32 v101, 4, v97
        v_xor_b32 v101, v101, v98
        v_lshlrev_b32 v101, 4, v101
        v_lshl_add_u32 v101, v97, 5, v101
        v_add_u32 v101, s{sRB}, v101
        v_add_u32 v{vEAr}, 4096, v101
        s_lshl_b32 s57, s{sV}, 11
        s_add_u32 s57, s57, {L_S}
        v_lshlrev_b32 v101, 6, v97
        v_add_u32 v101, s57, v101
        v_bfe_u32 v102, v97, 2, 2
        v_xor_b32 v103, v98, v102
        v_lshl_add_u32 v{vX6r}, v103, 4, v101
        v_lshlrev_b32 v103, 1, v98
        v_xor_b32 v104, v103, v102
        v_lshl_add_u32 v{vC1}, v104, 4, v101
        v_add_u32 v103, 1, v103
        v_xor_b32 v104, v103, v102
        v_lshl_add_u32 v104, v104, 4, v101
        v_add_u32 v{vCD}, 12, v104
        v_cmp_gt_u32 vcc, 32, v1
        v_mov_b32 v103, 0xffff0000
        v_mov_b32 v104, -1
        v_cndmask_b32 v{vMK2}, v104, v103, vcc
        v_mov_b32 v{vOne}, 0x3f80
        v_mov_b32 v{vONE+1}, 0
        v_mov_b32 v{vONE+2}, 0
        v_mov_b32 v{vONE+3}, 0
        v_cndmask_b32 v{vONE}, 0, v{vOne}, vcc
        v_lshlrev_b32 v101, 3, v98
        v_sub_u32 v101, v97, v101
        v_and_b32 v102, 1, v101
        v_lshlrev_b32 v102, 4, v102
        v_lshlrev_b32 v102, v102, v{vOne}
        v_ashrrev_i32 v101, 1, v101
        ''')
        for k in range(8):
            q=8*(k>>2)+(k&3)
            a(f'v_cmp_eq_u32 s[{90+2*(k&3)}:{91+2*(k&3)}], {q}, v101')
            if (k&3)==3:
                for kk in range(k-3,k+1):
                    a(f'v_cndmask_b32 v{vI+kk}, 0, v102, s[{90+2*(kk&3)}:{91+2*(kk&3)}]')
        a(f'''
        v_and_b32 v101, 15, v1
        v_lshrrev_b32 v101, 2, v101
        v_lshl_add_u32 v101, v98, 2, v101
        v_lshlrev_b32 v101, 6, v101
        v_and_b32 v102, 1, v1
        v_lshl_add_u32 v101, v102, 3, v101
        v_add_u32 v101, s57, v101
        v_bfe_u32 v102, v1, 4, 1
        v_bfe_u32 v103, v1, 1, 1
        v_lshl_add_u32 v102, v102, 1, v103
        v_xor_b32 v103, v102, v98
        v_lshl_add_u32 v{vSTa}, v103, 4, v101
        v_add_u32 v103, 2, v98
        v_xor_b32 v103, v102, v103
        v_lshl_add_u32 v103, v103, 4, v101
        v_add_u32 v{vSTb}, 512, v103
        ''')

    lc=Asm(); late_consts(lc); lcl=list(lc.lines); per=(len(lcl)+9)//10
    def dma_lc(slot,k0):
        for k,x in enumerate(dma(slot)):
            a(x)
            if 'ilc' in ABL:
                for y in lcl[(k0+k)*per:(k0+k+1)*per]: a(y)
    a(f's_mov_b32 s{sHD+2}, {N}')
    a(f's_mov_b32 s{sEA+2}, {E*32}')
    dma_lc(0,0)
    st(13+18)
    for x in idx_reads(1): a(x)
    a(srd_select(1)[0])
    a('s_waitcnt lgkmcnt(0)')
    dma_lc(1,5)
    st(14)
    for x in idx_reads(2): a(x)
    a(srd_select(2)[0])
    if 'ilc' not in ABL:
        for y in lcl: a(y)
    for x in s_addr(): a(x)
    for x in s_writes(): a(x)
    for x in x6_read(): a(x)
    st(15)
    a('s_waitcnt vmcnt(5)')
    st(30)
    for x in x_reads(0): a(x)
    for x in rec_reads(1): a(x)
    a('s_waitcnt lgkmcnt(0)')
    for x in mfma1(vD1[0]): a(x)
    st(8)
    stampc(a,12,vTM,98)
    if DEBUG_TM: a(f'v_writelane_b32 v{vTM}, s{sNT}, 22\nv_writelane_b32 v{vTM}, s{sG}, 23\ns_getreg_b32 s98, hwreg(HW_REG_HW_ID)\nv_writelane_b32 v{vTM}, s98, 24')
    JM=[0,1,4,5]
    RESV=[[232,233,234,236],[237,238,252,253]]
    WXV=[192,196,200,204,208,212,228,248]
    def epi_prefetch(p):
        nxt=vD1[1-p]
        r=[]
        r.append('v_lshlrev_b32 v10, 4, v1')
        for f in range(8):
            r.append(f'v_add_u32 v9, {(F_H1+f)*1024}, v10\nbuffer_load_dwordx4 v[{16+4*f}:{19+4*f}], v9, s[{sWF}:{sWF+3}], 0 offen')
        for f in range(8):
            r.append(f'v_add_u32 v9, {(F_H2+f)*1024}, v10\nbuffer_load_dwordx4 v[{nxt+4*f}:{nxt+4*f+3}], v9, s[{sWF}:{sWF+3}], 0 offen')
        r.append(f"""
        v_lshrrev_b32 v9, 3, v1
        v_lshlrev_b32 v9, 3, v9
        v_add_u32 v3, s{sG}, v9
        v_add_u32 v9, s{sNODE0}, v9
        v_cmp_gt_u32 vcc, {BN}, v3
        v_mov_b32 v4, -1
        v_and_b32 v241, 7, v1
        v_lshlrev_b32 v241, 4, v241
        v_cndmask_b32 v240, v4, v9, vcc
        """)
        r.append(f"""
        v_bfe_u32 v9, v1, 1, 3
        v_lshlrev_b32 v9, 3, v9
        v_add_u32 v3, s{sG}, v9
        v_add_u32 v9, s{sNODE0}, v9
        v_bfe_u32 v5, v1, 4, 1
        v_and_b32 v8, 1, v1
        v_lshl_add_u32 v5, v5, 1, v8
        v_cmp_gt_u32 vcc, {BN}, v3
        v_subrev_u32 v5, 1, v5
        v_cmp_gt_u32 s[56:57], 3, v5
        v_mul_u32_u24 v9, 6, v9
        s_and_b64 vcc, vcc, s[56:57]
        v_cmp_gt_u32 s[56:57], 32, v1
        v_lshl_add_u32 v9, v5, 1, v9
        v_mov_b32 v4, 0x7fffff00
        s_and_b64 vcc, vcc, s[56:57]
        v_cndmask_b32 v10, v4, v9, vcc
        buffer_load_ushort v11, v10, s[{sPOS}:{sPOS+3}], 0 offen
        """)
        return r
    def epi_rows():
        return f"""s_waitcnt lgkmcnt(0)
        s_lshl_b32 s62, s{sV}, 11
        s_add_u32 s62, s62, {L_S}
        s_mov_b32 m0, s62
        s_nop 0
        buffer_load_dwordx4 v[240:241], s[{sH}:{sH+3}], 0 idxen offen lds"""
    def epilogue(p):
        nxt=vD1[1-p]; cur=vD1[p]
        pk=vE; T=vE+16; acc=vE+24
        a(f"""
        v_and_b32 v3, 31, v1
        v_lshrrev_b32 v4, 5, v1
        v_bfe_u32 v5, v1, 1, 3
        v_lshlrev_b32 v5, 7, v5
        v_lshl_add_u32 v5, v4, 4, v5
        v_add_u32 v5, s62, v5
        v_lshlrev_b32 v6, 7, v4
        v_add_u32 v6, {L_WST+2048+256}, v6
        v_lshlrev_b32 v7, 1, v3
        v_lshl_add_u32 v7, v4, 8, v7
        v_add_u32 v7, s62, v7
        s_mov_b32 s54, {f32bits(-math.log(2.0))}
        s_mov_b32 s55, s54
        s_waitcnt vmcnt(0)
        """)
        for s_ in range(4):
            a(f'ds_read_b128 v[{48+4*s_}:{51+4*s_}], v5 offset:{32*s_}')
        for f in range(8):
            a(f'ds_read_b128 v[{WXV[f]}:{WXV[f]+3}], v6 offset:{16*f}')
        for i in range(16):
            a(f'v_pk_mul_f32 v[{vD2+2*i}:{vD2+2*i+1}], v[{vD2+2*i}:{vD2+2*i+1}], s[54:55]')
        a('s_waitcnt lgkmcnt(8)')
        for b2 in range(2):
            D=f'v[{cur+16*b2}:{cur+16*b2+15}]'
            for s_ in range(4):
                C = D if s_>0 else '0'
                a(f'v_mfma_f32_32x32x16_bf16 {D}, v[{48+4*s_}:{51+4*s_}], v[{16+4*(2*s_+b2)}:{19+4*(2*s_+b2)}], {C}')
            if b2==0:
                for blk in range(2):
                    for q in range(8):
                        a(f'v_cvt_pk_bf16_f32 v{pk+8*blk+q}, v{vD2+16*blk+2*q}, v{vD2+16*blk+2*q+1}')
        for b2 in range(2):
            for m in range(4):
                a(f'ds_read_u16 v{RESV[b2][m]}, v7 offset:{128*JM[m]+64*b2}')
        for b2 in range(2):
            D=f'v[{cur+16*b2}:{cur+16*b2+15}]'
            for blk in range(2):
                for sp in range(2):
                    f=(blk*2+sp)*2+b2
                    a(f'v_mfma_f32_32x32x16_bf16 {D}, v[{pk+8*blk+4*sp}:{pk+8*blk+4*sp+3}], v[{nxt+4*f}:{nxt+4*f+3}], {D}')
            if b2==0:
                a('s_waitcnt lgkmcnt(8)')
                a(f'v_mul_f32 v{acc}, v{vD2}, v{WXV[0]}')
                a(f'v_mul_f32 v{acc+1}, v{vD2+1}, v{WXV[0]+1}')
                for i in range(2,32):
                    a(f'v_fmac_f32 v{acc+(i&1)}, v{vD2+i}, v{WXV[i>>2]+(i&3)}')
                a(f'v_add_f32 v{acc}, v{acc}, v{acc+1}')
                a(f'v_mov_b32 v{acc+1}, v{acc}')
        a(f'v_permlane32_swap_b32 v{acc}, v{acc+1}')
        a(f"""
        v_lshlrev_b32 v11, 16, v11
        v_add_f32 v{acc}, v{acc}, v{acc+1}
        v_add_f32 v11, v11, v{acc}
        v_cvt_pk_bf16_f32 v11, v11, v11
        buffer_store_short v11, v10, s[{sO1}:{sO1+3}], 0 offen
        s_mov_b32 s54, {f32bits(-LOG2E)}
        """)
        for b2 in range(2):
            for m in range(4):
                a(f'v_mul_f32 v{T+4*b2+m}, s54, v{cur+16*b2+2*m}')
        for k in range(8): a(f'v_exp_f32 v{T+k}, v{T+k}')
        for k in range(8): a(f'v_add_f32 v{T+k}, 1.0, v{T+k}')
        for k in range(8): a(f'v_rcp_f32 v{T+k}, v{T+k}')
        a('s_waitcnt lgkmcnt(0)')
        for b2 in range(2):
            for m in range(4):
                x=cur+16*b2+2*m; t=T+4*b2+m; hh=RESV[b2][m]
                a(f'v_lshlrev_b32 v{hh}, 16, v{hh}')
                a(f'v_fma_f32 v{t}, v{x}, v{t}, v{hh}')
                a(f'v_cvt_pk_bf16_f32 v{t}, v{t}, v{t}')
        for b2 in range(2):
            for m in range(4):
                a(f'ds_write_b16 v7, v{T+4*b2+m} offset:{1024+128*JM[m]+64*b2}')
        a(f"""
        v_lshlrev_b32 v6, 4, v1
        v_add_u32 v6, s62, v6
        ds_read_b128 v[48:51], v6 offset:1024
        s_waitcnt lgkmcnt(0)
        buffer_store_dwordx4 v[48:51], v[240:241], s[{sO0}:{sO0+3}], 0 idxen offen{SC1O}
        """)
        st(10)
        if DEBUG_TM: a('s_waitcnt vmcnt(0)')
        st(11)
        stamp_store(a,vTM,98,44,45,0x80000,sV,254)
        a('s_endpgm')
    for p in range(2):
        a.label(f'L2_s{p}')
        if 'trim' in ABL:
            a(f's_cmp_ge_i32 s{sT}, s87\ns_cbranch_scc1 L2_l{p}')
        else:
            a(f'''
            s_add_u32 s54, s{sT}, 1
            s_cmp_ge_u32 s54, s{sNT}
            s_cbranch_scc1 L2_l{p}
            ''')
        if DEBUG_TM and p==0:
            for tt,ix in ((2,25),(4,26),(6,27),(8,28),(10,29)):
                a(f's_cmp_lg_u32 s{sT}, {tt}\ns_cbranch_scc1 Lst{ix}')
                stampc(a,ix,vTM,98)
                a.label(f'Lst{ix}')
        body(p, True)
        a(f's_add_u32 s{sT}, s{sT}, 1')
        if p==1:
            a(f'''
            v_add_u32 v{vRSa}, 128, v{vRSa}
            v_add_u32 v{vR0a}, 256, v{vR0a}
            v_add_u32 v{vR0e}, 256, v{vR0e}
            v_add_u32 v{vGe}, 512, v{vGe}
            s_branch L2_s0
            ''')
    for p in range(2):
        a.label(f'L2_l{p}')
        a(f'''
        s_cmp_lt_u32 s{sW1}, {NCH}
        s_cbranch_scc1 L2_l{p}n
        ''')
        body(p, False, None) if False else None
        for x in epi_prefetch(p): a(x)
        body(p, False, [epi_rows()])
        st(9)
        stampc(a,13,vTM,98)
        epilogue(p)
        a.label(f'L2_l{p}n')
        body(p, False)
        a('s_branch L2_nextbatch')
    a.label('L2_notiles')
    a(f'''
    s_cmp_lt_u32 s{sW1}, {NCH}
    s_cbranch_scc1 L2_nextbatch
    ''')
    for x in epi_prefetch(0): a(x)
    a(epi_rows())
    st(9)
    epilogue(0)
    a.label('L2_nextbatch')
    a(f'''
    s_waitcnt vmcnt(0) lgkmcnt(0)
    s_mov_b32 s{sW0}, s{sW1}
    s_add_u32 s{sW1}, s{sW1}, 1
    s_branch L2_batch
    ''')
    a.label('L2_end')
    a('s_endpgm')
    return a.finalize(), 256, 102, L_END

def main():
    k1,v1,s1,l1 = gen_k1()
    k2,v2,s2,l2 = gen_k2()
    hdr = open('gather_scatter__cheap_equivariant_egnn__graph.s.ref').read().split('; Override launch')[0]
    out = hdr
    out += f'; @launch kernel=egnn_part_kernel grid=({NCH+1+NTW},1,1) block=(512,1,1) lds={l1}\n'
    out += f'; @launch kernel=egnn_main_kernel grid=({NBK},1,1) block=(512,1,1) lds={l2}\n'
    out += '.amdgcn_target "amdgcn-amd-amdhsa--gfx950"\n.text\n'
    for name,body in (('egnn_part_kernel',k1),('egnn_main_kernel',k2)):
        out += f'.globl {name}\n.p2align 8\n.type {name},@function\n' + body
    out += '.section .rodata,"a"\n'
    for name,nv,ns in (('egnn_part_kernel',v1,s1),('egnn_main_kernel',v2,s2)):
        acc=(nv+3)//4*4
        out += f'''.p2align 6
.amdhsa_kernel {name}
  .amdhsa_next_free_vgpr {nv}
  .amdhsa_next_free_sgpr {ns}
  .amdhsa_accum_offset {acc}
  .amdhsa_group_segment_fixed_size 0
  .amdhsa_kernarg_size 88
  .amdhsa_user_sgpr_count 2
  .amdhsa_user_sgpr_kernarg_segment_ptr 1
  .amdhsa_system_sgpr_workgroup_id_x 1
  .amdhsa_float_denorm_mode_32 3
.end_amdhsa_kernel
'''
    dst = [x for x in sys.argv[1:] if not x.startswith('--')]
    path = dst[0] if dst else 'gather_scatter__cheap_equivariant_egnn__graph.s'
    open(path,'w').write(out)
    print('wrote',path,len(out))
main()
```

```python
import sys, math
from asmlib import Asm

N=12500; E=800000; CH=3200; NCH=250; NBK=256; BN=49
ROW=4224
OFFS=0; ENT=0x110000; WF=0x420000; TA=0x500000; TB=0x700000; TM=0x900000
NF=18; WDO=NF*1024; WXO=NF*1024+256; WFSZ=NF*1024+512
NTW=98
CAP=3584
LOG2E=1.4426950408889634
def f32bits(x):
    import struct; return struct.unpack('<I',struct.pack('<f',x))[0]

DEBUG_TM = '--tm' in sys.argv
K1PRIO = '--nok1prio' not in sys.argv
TFIRST = '--tfirst' in sys.argv
SC1 = '' if '--nosc1' in sys.argv else (' sc0 sc1' if '--sc01' in sys.argv else ' sc1')
SC1T = '' if '--tplain' in sys.argv else SC1
SC1W = SC1 if '--wsc1' in sys.argv else ''
SC1O = ' sc1' if '--osc1' in sys.argv else ''
PFN = int(([x[6:] for x in sys.argv if x.startswith('--pfn=')] or ['0'])[0])
PFK1 = 2 if PFN else 0

F_W3=0
F_H1=2
F_H2=10

def stamp(a, idx, vreg, sp):
    if not DEBUG_TM: return
    a(f'''
    s_memrealtime s[{sp}:{sp+1}]
    s_waitcnt lgkmcnt(0)
    v_writelane_b32 v{vreg}, s{sp}, {idx}
    ''')
def stampc(a, idx, vreg, sp):
    if not DEBUG_TM: return
    a(f'''
    s_memtime s[{sp}:{sp+1}]
    s_waitcnt lgkmcnt(0)
    v_writelane_b32 v{vreg}, s{sp}, {idx}
    ''')
def stamp_store(a, vreg, sp, ws_lo, ws_hi, region, wave_s, vt):
    if not DEBUG_TM: return
    a(f'''
    s_lshl_b32 s{sp}, s2, 3
    s_add_u32 s{sp}, s{sp}, s{wave_s}
    s_lshl_b32 s{sp}, s{sp}, 7
    s_add_u32 s{sp}, s{sp}, {TM+region}
    s_add_u32 s{sp}, s{ws_lo}, s{sp}
    s_addc_u32 s{sp+1}, s{ws_hi}, 0
    v_and_b32 v{vt}, 63, v0
    v_lshlrev_b32 v{vt}, 2, v{vt}
    s_mov_b32 exec_hi, 0
    global_store_dword v{vt}, v{vreg}, s[{sp}:{sp+1}]
    s_mov_b64 exec, -1
    ''')

def gen_k1():
    a=Asm()
    K1_STAGE=8192; K1_WTOT=24576
    a.label('egnn_part_kernel')
    a(f'''
    s_cmp_gt_u32 s2, {NCH+NTW}
    s_cbranch_scc1 L1_end
    v_lshrrev_b32 v2, 6, v0
    v_and_b32 v1, 63, v0
    s_load_dwordx4 s[4:7], s[0:1], 24
    s_load_dwordx2 s[8:9], s[0:1], 80
    s_load_dwordx2 s[34:35], s[0:1], 16
    v_readfirstlane_b32 s3, v2
    s_cmp_eq_u32 s2, {NTW if TFIRST else NCH}
    s_cbranch_scc1 L1_wprep
    s_cmp_{'lt' if TFIRST else 'gt'}_u32 s2, {NTW if TFIRST else NCH}
    s_cbranch_scc1 L1_tables
    s_sub_u32 s38, s2, {NTW+1 if TFIRST else 0}
    s_setprio {3 if K1PRIO else 0}
    ''')
    if DEBUG_TM: a('v_mov_b32 v70, 0')
    stamp(a,0,70,36)
    a(f'''
    v_lshlrev_b32 v3, 4, v0
    v_mov_b32 v4, 0
    v_mov_b32 v5, 0
    v_mov_b32 v6, 0
    v_mov_b32 v7, 0
    ds_write_b128 v3, v[4:7]
    s_mul_i32 s10, s38, {CH*4}
    s_mul_i32 s11, s38, {ROW}
    v_add_u32 v48, 8192, v3
    s_waitcnt lgkmcnt(0)
    s_add_u32 s12, s6, s10
    s_addc_u32 s13, s7, 0
    s_mov_b32 s14, {CH*4}
    s_mov_b32 s15, 0x20000
    s_add_u32 s16, s4, s10
    s_addc_u32 s17, s5, 0
    s_mov_b32 s18, {CH*4}
    s_mov_b32 s19, 0x20000
    buffer_load_dwordx4 v[8:11], v3, s[12:15], 0 offen
    buffer_load_dwordx4 v[12:15], v48, s[12:15], 0 offen
    buffer_load_dwordx4 v[16:19], v3, s[16:19], 0 offen
    buffer_load_dwordx4 v[20:23], v48, s[16:19], 0 offen
    ''')
    if PFK1:
        a(f'''
        s_mul_i32 s10, s38, {CH*32}
        s_add_u32 s32, s34, s10
        s_addc_u32 s33, s35, 0
        s_cmp_lt_u32 s38, {PFN}
        s_cselect_b32 s34, {CH*32}, 0
        s_mov_b32 s35, 0x20000
        v_lshlrev_b32 v64, 7, v0
        v_add_u32 v65, {512*128}, v64
        buffer_load_dword v66, v64, s[32:35], 0 offen
        ''')
        if PFK1>1: a('buffer_load_dword v67, v65, s[32:35], 0 offen')
        a(f's_mul_i32 s10, s38, {CH*4}')
    a(f'''
    s_add_u32 s24, s8, {OFFS}
    s_addc_u32 s25, s9, 0
    s_add_u32 s24, s24, s11
    s_addc_u32 s25, s25, 0
    s_mov_b32 s26, {ROW}
    s_mov_b32 s27, 0x20000
    s_add_u32 s28, s8, {ENT}
    s_addc_u32 s29, s9, 0
    s_add_u32 s28, s28, s10
    s_addc_u32 s29, s29, 0
    s_mov_b32 s30, {CH*4}
    s_mov_b32 s31, 0x20000
    s_mov_b32 s22, -{BN}
    v_mov_b32 v50, 1
    v_lshlrev_b32 v51, 5, v0
    v_add_u32 v52, 16384, v51
    s_barrier
    s_waitcnt vmcnt({2+PFK1})
    ''')
    stamp(a,1,70,36)
    def keyslot(i, dst, tmp):
        a(f'''
        v_mul_u32_u24 v{tmp}, 21400, v{dst}
        v_lshrrev_b32 v{tmp}, 20, v{tmp}
        v_mad_i32_i24 v{40+i}, v{tmp}, s22, v{dst}
        v_and_b32 v{tmp+1}, 7, v{40+i}
        v_lshl_or_b32 v{tmp}, v{tmp}, 3, v{tmp+1}
        v_lshlrev_b32 v{24+i}, 2, v{tmp}
        ''')
    for u in range(4):
        keyslot(u, 8+u, 54+2*u)
        a(f'ds_add_rtn_u32 v{32+u}, v{24+u}, v50')
    a('''
    v_cmp_gt_u32 vcc, 288, v0
    s_and_saveexec_b64 s[20:21], vcc
    s_cbranch_execz L1_skipB1
    ''')
    for u in range(4):
        keyslot(4+u, 12+u, 54+2*u)
        a(f'ds_add_rtn_u32 v{36+u}, v{28+u}, v50')
    a.label('L1_skipB1')
    a('s_mov_b64 exec, s[20:21]')
    a(f's_waitcnt vmcnt({PFK1})')
    for i in range(8):
        base = 51 if i<4 else 52
        a(f'''
        v_lshrrev_b32 v54, 3, v{40+i}
        v_lshl_or_b32 v54, v{40+i}, 29, v54
        v_lshl_or_b32 v54, v{16+i}, 15, v54
        v_add3_u32 v{40+i}, v54, v{base}, {8*(i%4)}
        ''')
    a('''
    s_waitcnt lgkmcnt(0)
    s_barrier
    ''')
    stamp(a,2,70,36)
    a('''
    ds_read_b128 v[8:11], v3
    s_waitcnt lgkmcnt(0)
    v_add_u32 v12, v8, v9
    v_add_u32 v13, v12, v10
    v_add_u32 v14, v13, v11
    v_mov_b32 v15, v14
    ''')
    for sh in (1,2,4,8):
        a(f'v_add_u32_dpp v15, v15, v15 row_shr:{sh} row_mask:0xf bank_mask:0xf')
    a('v_add_u32_dpp v15, v15, v15 row_bcast:15 row_mask:0xa bank_mask:0xf')
    a('v_add_u32_dpp v15, v15, v15 row_bcast:31 row_mask:0xc bank_mask:0xf')
    a(f'''
    s_lshl_b32 s10, s3, 2
    s_add_u32 s10, s10, {K1_WTOT}
    v_mov_b32 v16, s10
    s_mov_b32 s20, 0
    s_brev_b32 s21, 1
    s_mov_b64 exec, s[20:21]
    ds_write_b32 v16, v15
    s_mov_b64 exec, -1
    v_and_b32 v17, 7, v1
    v_lshlrev_b32 v17, 2, v17
    v_add_u32 v17, {K1_WTOT}, v17
    s_waitcnt lgkmcnt(0)
    s_barrier
    ds_read_b32 v18, v17
    v_cmp_gt_u32 vcc, s3, v1
    s_waitcnt lgkmcnt(0)
    v_cndmask_b32 v18, 0, v18, vcc
    ''')
    for sh in (1,2,4):
        a(f'v_add_u32_dpp v18, v18, v18 row_shr:{sh} row_mask:0xf bank_mask:0xf')
    a(f'''
    v_readlane_b32 s10, v18, 7
    v_sub_u32 v15, v15, v14
    v_add_u32 v8+0, s10, v15
    '''.replace('v8+0','v19'))
    a(f'''
    v_add_u32 v21, v19, v12
    v_add_u32 v22, v19, v13
    v_add_u32 v20, v19, v8
    v_mov_b32 v56, v19
    v_mov_b32 v57, v20
    v_mov_b32 v58, v21
    v_mov_b32 v59, v22
    ds_write_b128 v3, v[56:59]
    v_lshl_or_b32 v60, v20, 16, v19
    v_lshl_or_b32 v61, v22, 16, v21
    v_lshlrev_b32 v62, 3, v0
    buffer_store_dwordx2 v[60:61], v62, s[24:27], 0 offen{SC1}
    s_cmp_lg_u32 s3, 0
    s_cbranch_scc1 L1_nosent
    s_mov_b32 s10, {CH | (CH<<16)}
    v_mov_b32 v63, s10
    v_lshlrev_b32 v62, 2, v1
    v_add_u32 v62, 4096, v62
    v_cmp_gt_u32 vcc, 32, v1
    s_and_saveexec_b64 s[20:21], vcc
    buffer_store_dword v63, v62, s[24:27], 0 offen{SC1}
    s_mov_b64 exec, s[20:21]
    ''')
    a.label('L1_nosent')
    a('''
    s_waitcnt lgkmcnt(0)
    s_barrier
    ''')
    stamp(a,3,70,36)
    for u in range(4):
        a(f'ds_read_b32 v{8+u}, v{24+u}')
    a('''
    v_cmp_gt_u32 vcc, 288, v0
    s_and_saveexec_b64 s[20:21], vcc
    s_cbranch_execz L1_skipB2
    ''')
    for u in range(4):
        a(f'ds_read_b32 v{12+u}, v{28+u}')
    a('s_waitcnt lgkmcnt(0)')
    for u in range(4):
        a(f'v_add_lshl_u32 v{12+u}, v{12+u}, v{36+u}, 2')
    for u in range(4):
        a(f'ds_write_b32 v{12+u}, v{44+u} offset:{K1_STAGE}')
    a.label('L1_skipB2')
    a('s_mov_b64 exec, s[20:21]')
    a('s_waitcnt lgkmcnt(0)')
    for u in range(4):
        a(f'v_add_lshl_u32 v{8+u}, v{8+u}, v{32+u}, 2')
    for u in range(4):
        a(f'ds_write_b32 v{8+u}, v{40+u} offset:{K1_STAGE}')
    a(f'''
    s_waitcnt lgkmcnt(0)
    s_barrier
    ds_read_b128 v[8:11], v3 offset:{K1_STAGE}
    ds_read_b128 v[12:15], v3 offset:{K1_STAGE+8192}
    s_waitcnt lgkmcnt(1)
    buffer_store_dwordx4 v[8:11], v3, s[28:31], 0 offen{SC1}
    s_waitcnt lgkmcnt(0)
    buffer_store_dwordx4 v[12:15], v48, s[28:31], 0 offen{SC1}
    ''')
    stamp(a,4,70,36)
    if DEBUG_TM: a('s_waitcnt vmcnt(0)')
    stamp(a,5,70,36)
    stamp_store(a,70,36,8,9,0,3,69)
    a('s_endpgm')
    a.label('L1_wprep')
    a(f'''
    s_load_dwordx2 s[10:11], s[0:1], 40
    s_load_dwordx2 s[12:13], s[0:1], 48
    s_load_dwordx2 s[14:15], s[0:1], 56
    v_and_b32 v2, 31, v1
    v_lshrrev_b32 v3, 5, v1
    v_lshlrev_b32 v4, 4, v1
    s_waitcnt lgkmcnt(0)
    s_mov_b32 s16, s10
    s_mov_b32 s17, s11
    s_mov_b32 s18, {145*64*2}
    s_mov_b32 s19, 0x20000
    s_mov_b32 s20, s14
    s_mov_b32 s21, s15
    s_mov_b32 s22, {128*64*2}
    s_mov_b32 s23, 0x20000
    s_mov_b32 s24, s12
    s_mov_b32 s25, s13
    s_mov_b32 s26, {64*2}
    s_mov_b32 s27, 0x20000
    s_add_u32 s28, s8, {WF}
    s_addc_u32 s29, s9, 0
    s_mov_b32 s30, {WFSZ}
    s_mov_b32 s31, 0x20000
    s_mov_b32 s32, {f32bits(-LOG2E)}
    v_lshlrev_b32 v5, 1, v2
    v_lshl_add_u32 v6, v3, 10, v5
    v_lshl_add_u32 v7, v3, 9, v5
    v_lshlrev_b32 v8, 3, v3
    ''')
    frags=[]
    for blk in range(2): frags.append((F_W3+blk,'e',129,blk,'std',True))
    for s in range(4):
        for blk in range(2): frags.append((F_H1+2*s+blk,'h',16*s,blk,'std',False))
    for blk in range(2):
        for sp in range(2):
            for b2 in range(2): frags.append((F_H2+(blk*2+sp)*2+b2,'h',64+32*blk+16*sp,b2,'perm',False))
    assert len(frags)==NF
    for wv in range(8):
        a(f's_cmp_eq_u32 s3, {wv}')
        a(f's_cbranch_scc1 L1_w{wv}')
    a('s_endpgm')
    for wv in range(8):
        a.label(f'L1_w{wv}')
        mine=[f for i,f in enumerate(frags) if i%8==wv]
        for q,(F,srcn,row0,blk,kind,scaled) in enumerate(mine):
            r=16+8*q
            srd={'e':'s[16:19]','h':'s[20:23]','x':'s[24:27]'}[srcn]
            if kind=='wx':
                a(f'v_add_u32 v10, {row0*2}, v8')
                for t in range(8):
                    T=(t&3)+8*(t>>2)
                    a(f'buffer_load_ushort v{r+t}, v10, {srd}, 0 offen offset:{T*2}')
            else:
                vb = 6 if kind=='std' else 7
                a(f'v_add_u32 v10, {row0*128+blk*64}, v{vb}')
                for t in range(8):
                    T= t if kind=='std' else (t&3)+8*(t>>2)
                    a(f'buffer_load_ushort v{r+t}, v10, {srd}, 0 offen offset:{T*128}')
        if wv==0:
            a(f'''
            v_lshlrev_b32 v11, 1, v1
            v_add_u32 v11, {128*128}, v11
            buffer_load_ushort v12, v11, s[16:19], 0 offen
            ''')
        if wv==1:
            a(f'''
            v_and_b32 v11, 3, v1
            v_bfe_u32 v12, v1, 2, 2
            v_lshl_add_u32 v11, v12, 3, v11
            v_bfe_u32 v12, v1, 4, 1
            v_lshl_add_u32 v11, v12, 5, v11
            v_lshl_add_u32 v11, v3, 2, v11
            v_lshlrev_b32 v11, 1, v11
            buffer_load_ushort v12, v11, s[24:27], 0 offen
            ''')
        a('s_waitcnt vmcnt(0)')
        for q,(F,srcn,row0,blk,kind,scaled) in enumerate(mine):
            r=16+8*q
            if scaled:
                for t in range(8):
                    a(f'v_lshlrev_b32 v{r+t}, 16, v{r+t}')
                for t in range(8):
                    a(f'v_mul_f32 v{r+t}, s32, v{r+t}')
                for t in range(4):
                    a(f'v_cvt_pk_bf16_f32 v{64+t}, v{r+2*t}, v{r+2*t+1}')
            else:
                for t in range(4):
                    a(f'v_lshl_or_b32 v{64+t}, v{r+2*t+1}, 16, v{r+2*t}')
            a(f'v_add_u32 v10, {F*1024}, v4')
            a(f'buffer_store_dwordx4 v[64:67], v10, s[28:31], 0 offen{SC1W}')
            a('s_nop 1')
        if wv==0:
            a(f'''
            v_lshlrev_b32 v12, 16, v12
            v_mul_f32 v12, s32, v12
            v_cvt_pk_bf16_f32 v13, v12, v12
            v_and_b32 v14, 0xffff0000, v13
            v_sub_f32 v12, v12, v14
            v_cvt_pk_bf16_f32 v12, v12, v12
            v_and_b32 v12, 0xffff0000, v12
            v_and_b32 v13, 0xffff, v13
            v_or_b32 v13, v13, v12
            v_and_b32 v11, 31, v1
            v_lshlrev_b32 v11, 3, v11
            v_lshl_add_u32 v11, v3, 2, v11
            v_add_u32 v11, {WDO}, v11
            buffer_store_dword v13, v11, s[28:31], 0 offen
            ''')
        if wv==1:
            a(f'''
            v_lshlrev_b32 v12, 16, v12
            v_lshlrev_b32 v11, 2, v1
            v_add_u32 v11, {WXO}, v11
            buffer_store_dword v12, v11, s[28:31], 0 offen
            ''')
        a('s_endpgm')
    a.label('L1_tables')
    if DEBUG_TM: a('v_mov_b32 v15, 0')
    stamp(a,0,15,36)
    a(f"""
    s_load_dwordx2 s[10:11], s[0:1], 0
    s_load_dwordx2 s[12:13], s[0:1], 40
    s_sub_u32 s14, s2, {0 if TFIRST else NCH+1}
    s_lshl_b32 s14, s14, 7
    s_lshr_b32 s33, s3, 1
    s_lshl_b32 s33, s33, 5
    s_and_b32 s15, s3, 1
    v_and_b32 v2, 31, v1
    v_lshrrev_b32 v3, 5, v1
    v_lshrrev_b32 v8, 3, v1
    v_and_b32 v9, 7, v1
    v_lshrrev_b32 v10, 4, v1
    s_waitcnt lgkmcnt(0)
    s_mov_b32 s16, s10
    s_or_b32 s17, s11, 0x800000
    s_mov_b32 s18, {N}
    s_mov_b32 s19, 0x20000
    s_mov_b32 s20, s12
    s_mov_b32 s21, s13
    s_mov_b32 s22, {128*128}
    s_mov_b32 s23, 0x20000
    s_mul_i32 s34, s15, {TB-TA}
    s_add_u32 s34, s34, {TA}
    s_add_u32 s24, s8, s34
    s_addc_u32 s25, s9, 0
    s_or_b32 s25, s25, 0x800000
    s_mov_b32 s26, {N}
    s_mov_b32 s27, 0x20000
    """)
    for r in range(2):
        a(f"""
        s_lshl_b32 s34, s3, 1
        s_add_u32 s34, s34, {r}
        s_lshl_b32 s35, s34, 3
        s_add_u32 s35, s35, s14
        v_add_u32 v4, s35, v8
        v_add_u32 v5, {4*r}, v10
        v_xor_b32 v5, v5, v9
        v_lshlrev_b32 v5, 4, v5
        s_lshl_b32 s34, s34, 10
        s_add_u32 m0, s34, 16384
        s_nop 0
        buffer_load_dwordx4 v[4:5], s[16:19], 0 idxen offen lds
        """)
    a(f"""
    v_lshlrev_b32 v6, 4, v1
    s_lshl_b32 s34, s3, 10
    v_add_u32 v6, s34, v6
    s_mov_b32 m0, s34
    v_add_u32 v7, 8192, v6
    buffer_load_dwordx4 v6, s[20:23], 0 offen lds
    s_add_u32 m0, s34, 8192
    s_nop 0
    buffer_load_dwordx4 v7, s[20:23], 0 offen lds
    v_and_b32 v8, 15, v1
    v_lshrrev_b32 v9, 2, v8
    v_lshl_add_u32 v9, v3, 3, v9
    v_lshlrev_b32 v9, 7, v9
    v_bfe_u32 v10, v1, 4, 1
    v_lshl_add_u32 v9, v10, 5, v9
    v_and_b32 v10, 3, v1
    v_lshl_add_u32 v9, v10, 3, v9
    s_lshl_b32 s34, s15, 13
    v_add_u32 v9, s34, v9
    v_add_u32 v10, s33, v2
    v_lshlrev_b32 v10, 7, v10
    v_add_u32 v10, 16384, v10
    v_bfe_u32 v11, v2, 1, 3
    s_mov_b32 s35, {f32bits(-LOG2E)}
    s_waitcnt vmcnt(0)
    """)
    stamp(a,1,15,36)
    a('s_barrier')
    for s_ in range(4):
        a(f"""
        v_add_u32 v12, {2*s_}, v3
        v_xor_b32 v12, v12, v11
        v_lshl_add_u32 v12, v12, 4, v10
        ds_read_b128 v[{16+4*s_}:{19+4*s_}], v12
        """)
    for s_ in range(4):
        for blk in range(2):
            r=32+4*(2*s_+blk)
            a(f'ds_read_b64_tr_b16 v[{r}:{r+1}], v9 offset:{2048*s_+64*blk}')
            a(f'ds_read_b64_tr_b16 v[{r+2}:{r+3}], v9 offset:{2048*s_+64*blk+512}')
        if s_==1: a('s_waitcnt lgkmcnt(0)')
    a('s_waitcnt lgkmcnt(0)')
    a('s_barrier')
    stamp(a,2,15,36)
    for blk in range(2):
        D=f'v[{64+16*blk}:{79+16*blk}]'
        for s_ in range(4):
            C = D if s_>0 else '0'
            r=32+4*(2*s_+blk)
            a(f'v_mfma_f32_32x32x16_bf16 {D}, v[{r}:{r+3}], v[{16+4*s_}:{19+4*s_}], {C}')
    a(f"""
    s_lshl_b32 s34, s3, 12
    v_lshlrev_b32 v4, 7, v2
    v_add_u32 v4, s34, v4
    v_and_b32 v5, 7, v2
    v_lshlrev_b32 v5, 4, v5
    """)
    for blk in range(2):
        for i in range(16):
            a(f'v_mul_f32 v{64+16*blk+i}, s35, v{64+16*blk+i}')
    a("""
    s_cmp_eq_u32 s15, 0
    s_cbranch_scc1 L1_tabA
    v_lshl_add_u32 v4, v3, 3, v4
    """)
    for blk in range(2):
        for q in range(8):
            a(f'v_cvt_pk_bf16_f32 v{32+8*blk+q}, v{64+16*blk+2*q}, v{64+16*blk+2*q+1}')
        for m in range(4):
            a(f'v_xor_b32 v6, {16*(4*blk+m)}, v5')
            a(f'v_add_u32 v6, v6, v4')
            a(f'ds_write_b64 v6, v[{32+8*blk+2*m}:{33+8*blk+2*m}]')
    a('s_branch L1_tabS')
    a.label('L1_tabA')
    for r in range(16):
        a(f'v_cvt_pk_bf16_f32 v{32+r}, v{64+r}, v{80+r}')
    a('v_lshlrev_b32 v7, 4, v3')
    for m in range(4):
        a(f'v_add_u32 v6, {32*m}, v7')
        a(f'v_xor_b32 v6, v6, v5')
        a(f'v_add_u32 v6, v6, v4')
        a(f'ds_write_b128 v6, v[{32+4*m}:{35+4*m}]')
    a.label('L1_tabS')
    stamp(a,3,15,36)
    a(f"""
    v_lshlrev_b32 v6, 4, v1
    v_add_u32 v6, s34, v6
    v_lshrrev_b32 v8, 3, v1
    v_and_b32 v9, 7, v1
    v_xor_b32 v9, v9, v8
    v_lshlrev_b32 v13, 4, v9
    s_add_u32 s14, s14, s33
    v_add_u32 v8, s14, v8
    s_waitcnt lgkmcnt(0)
    """)
    for i in range(4):
        a(f'ds_read_b128 v[{48+4*i}:{51+4*i}], v6 offset:{1024*i}')
    for i in range(4):
        a(f'v_add_u32 v12, {8*i}, v8')
        a(f's_waitcnt lgkmcnt({3-i})')
        a(f'buffer_store_dwordx4 v[{48+4*i}:{51+4*i}], v[12:13], s[24:27], 0 idxen offen{SC1T}')
    stamp(a,4,15,36)
    if DEBUG_TM: a('s_waitcnt vmcnt(0)')
    stamp(a,5,15,36)
    stamp_store(a,15,36,8,9,0,3,14)
    a('s_endpgm')
    a.label('L1_end')
    a('s_endpgm')
    return a.finalize(), 96, 40, 32768+64

L_G=0; L_R0=28672; L_RS=43264; L_S=50432; L_RING=66816; L_GTAB=148736; L_WTOT=156928; L_PD=157184; L_WST=158208; L_AST=L_WST+2560; L_HX=L_AST+2048; L_END=L_HX+1024
NHS=9
def hstage_addr(f): return L_GTAB+1024*f if f<8 else L_HX
SLOT=5120
vI=16; vW3=24; vW6=32; vS1=40; vS2=41; vD2=64; vD1=(96,128); vE=160; vX=192; vXE=208; vX6=212; vSF=216; vONE=224
vHA=228; vEAr=232; vX6r=233; vC1=234; vSTa=235; vC2=236; vMK2=237; vEAc=238; vOne=239; vHP=240
vSTb=15; vCD=14
vRSa=248; vR0a=249; vR0e=250; vGe=251; vR0=252; vG=253; vA1=254; vA2=255; vEAi=10; vEAo=11
vZero=vONE+1
vTM=12
sH=4; sEA=8; sOF=12; sEN=16; sPOS=20; sWF=24; sO0=28; sO1=32; sHD=36; sSEL=100; sTA=40
sWS=44
sW0=46; sW1=47; sV=3; sG=101; sCNT=48; sBASE=49; sNT=50; sT=51; sRB=52; sNODE0=53; sMK=89

ABL=set(x[6:] for x in sys.argv if x.startswith('--abl=') ) | ({'fprio','trim','pk','xmap'} - set(x[5:] for x in sys.argv if x.startswith('--no=')))
OPT=dict(x[6:].split(':') for x in sys.argv if x.startswith('--opt='))
def optl(k,d): return [int(v.replace('n','-')) for v in OPT[k].split(',')] if k in OPT else d
TRIMK='trim'; PF2K='pf2'; TBK='tbpf'; XMK='xmap'; OFF2='off2'
EAF=''.join(' '+x for x in OPT.get('eaf','').split('+') if x); HF=''.join(' '+x for x in OPT.get('hf','').split('+') if x)
NH_ = 0 if 'noh' in ABL else N
NE_ = 0 if 'noea' in ABL else E*32
def gen_k2():
    a=Asm()
    def st(i): stamp(a,i,vTM,98)
    a.label('egnn_main_kernel')
    a(f'''
    s_cmp_ge_u32 s2, {NBK}
    s_cbranch_scc1 L2_end
    ''')
    if 'xmap' in ABL:
        a('s_and_b32 s4, s2, 7\ns_lshl_b32 s4, s4, 5\ns_lshr_b32 s2, s2, 3\ns_or_b32 s2, s2, s4')
    if DEBUG_TM: a(f'v_mov_b32 v{vTM}, 0')
    st(0)
    a(f'''
    s_load_dwordx2 s[44:45], s[0:1], 80
    s_load_dwordx4 s[36:39], s[0:1], 0
    s_load_dwordx2 s[40:41], s[0:1], 16
    s_load_dwordx2 s[42:43], s[0:1], 64
    v_and_b32 v1, 63, v0
    v_lshrrev_b32 v2, 6, v0
    v_lshrrev_b32 v3, 1, v0
    v_readfirstlane_b32 s{sV}, v2
    ''')
    if 'rot' in OPT:
        a(f'''
        s_lshr_b32 s54, s2, 5
        s_mul_i32 s54, s54, {int(OPT['rot'])}
        v_cmp_gt_u32 vcc, {NCH}, v3
        v_add_u32 v9, s54, v3
        v_subrev_u32 v10, {NCH}, v9
        s_movk_i32 s55, {NCH}
        v_cmp_gt_u32 s[56:57], s55, v9
        s_nop 1
        v_cndmask_b32 v9, v10, v9, s[56:57]
        v_cndmask_b32 v3, v3, v9, vcc
        ''')
    a(f'''
    v_and_b32 v9, 1, v0
    s_lshl_b32 s54, s2, 4
    s_mov_b32 s55, {ROW}
    {'v_mov_b32 v96, s54' if OFF2 in ABL else 'v_lshl_add_u32 v96, v9, 4, s54'}
    v_mad_u32_u24 v96, v3, s55, v96
    s_mov_b32 s{sOF+2}, {NCH*ROW}
    s_mov_b32 s{sOF+3}, 0x20000
    s_waitcnt lgkmcnt(0)
    s_add_u32 s{sOF}, s44, {OFFS}
    s_addc_u32 s{sOF+1}, s45, 0
    buffer_load_dwordx4 {'v[4:7]' if OFF2 in ABL else 'v[104:107]'}, v96, s[{sOF}:{sOF+3}], 0 offen
    {f'buffer_load_ushort v8, v96, s[{sOF}:{sOF+3}], 0 offen offset:16' if OFF2 in ABL else ''}
    ''')
    st(16)
    a(f"""
    s_mov_b32 s{sPOS}, s38
    s_mov_b32 s{sPOS+1}, s39
    s_mov_b32 s{sPOS+2}, {N*6}
    s_mov_b32 s{sPOS+3}, 0x20000
    s_add_u32 s{sWF}, s44, {WF}
    s_addc_u32 s{sWF+1}, s45, 0
    s_mov_b32 s{sWF+2}, {WFSZ}
    s_mov_b32 s{sWF+3}, 0x20000
    s_mov_b32 s{sW0}, 0
    s_mov_b32 s{sW1}, {NCH}
    s_mov_b32 s63, 2
    v_lshlrev_b32 v96, 4, v1
    s_lshl_b32 s58, s{sV}, 10
    v_add_u32 v96, s58, v96
    """)
    PE=optl('pe',[5])[0]
    assert PE<=9
    def posdma(r):
        a(f"""
        s_add_u32 m0, s58, {L_RING+8192*r}
        v_add_u32 v97, {8192*r}, v96
        buffer_load_dwordx4 v97, s[{sPOS}:{sPOS+3}], 0 offen lds
        """)
    chunks=[f"""
    s_mov_b32 s{sH}, s36
    s_or_b32 s{sH+1}, s37, 0x800000
    s_mov_b32 s{sH+2}, {N}
    s_mov_b32 s{sH+3}, 0x20000
    s_mov_b32 s{sEA}, s40
    s_mov_b32 s{sEA+1}, s41
    s_mov_b32 s{sEA+2}, {E*32}
    s_mov_b32 s{sEA+3}, 0x20000
    s_add_u32 s{sEN}, s44, {ENT}
    s_addc_u32 s{sEN+1}, s45, 0
    s_mov_b32 s{sEN+2}, {NCH*CH*4}
    s_mov_b32 s{sEN+3}, 0x20000
    """, f"""
    s_mov_b32 s{sO0}, s42
    s_or_b32 s{sO0+1}, s43, 0x800000
    s_mov_b32 s{sO0+2}, {N}
    s_mov_b32 s{sO0+3}, 0x20000
    s_add_u32 s{sO1}, s42, {N*128}
    s_addc_u32 s{sO1+1}, s43, 0
    s_mov_b32 s{sO1+2}, {N*6}
    s_mov_b32 s{sO1+3}, 0x20000
    s_add_u32 s{sHD}, s44, {TB}
    s_addc_u32 s{sHD+1}, s45, 0
    s_or_b32 s{sHD+1}, s{sHD+1}, 0x800000
    s_mov_b32 s{sHD+2}, {N}
    s_mov_b32 s{sHD+3}, 0x20000
    """, f"""
    s_add_u32 s{sTA}, s44, {TA}
    s_addc_u32 s{sTA+1}, s45, 0
    s_or_b32 s{sTA+1}, s{sTA+1}, 0x800000
    s_mov_b32 s{sTA+2}, {N}
    s_mov_b32 s{sTA+3}, 0x20000
    s_mul_i32 s{sRB}, s{sV}, {2*SLOT}
    s_add_u32 s{sRB}, s{sRB}, {L_RING}
    s_mov_b32 s{sMK}, 0xffffffe0
    s_mov_b32 s{sSEL}, 0x01000100
    v_lshrrev_b32 v98, 5, v1
    v_and_b32 v101, 1, v1
    v_xor_b32 v101, v101, v98
    v_lshlrev_b32 v{vEAc}, 4, v101
    """, f"""
    v_and_b32 v101, 7, v1
    v_lshrrev_b32 v102, 4, v1
    v_xor_b32 v103, v101, v102
    v_lshlrev_b32 v{vHP+1}, 4, v103
    v_lshlrev_b32 v{vHP+5}, 4, v103
    v_add_u32 v102, 4, v102
    v_xor_b32 v103, v101, v102
    v_lshlrev_b32 v{vHP+3}, 4, v103
    v_lshlrev_b32 v{vHP+7}, 4, v103
    """, f"""
    v_mov_b32 v{vX6}, 0
    v_mov_b32 v{vX6+1}, 0
    v_mov_b32 v{vX6+2}, 0
    v_mov_b32 v{vX6+3}, 0
    v_mfma_f32_32x32x16_bf16 v[{vD2}:{vD2+15}], v[{vX6}:{vX6+3}], v[{vX6}:{vX6+3}], 0
    v_mfma_f32_32x32x16_bf16 v[{vD2+16}:{vD2+31}], v[{vX6}:{vX6+3}], v[{vX6}:{vX6+3}], 0
    """]
    for k in range(max(PE,len(chunks))):
        if k<PE: posdma(k)
        if k<len(chunks): a(chunks[k])
    a(f"""
    s_cmp_eq_u32 s{sV}, 2
    s_cselect_b32 s54, {WDO}, s58
    s_cselect_b32 s55, 2048, s58
    v_lshlrev_b32 v97, 4, v1
    v_add_u32 v97, s54, v97
    s_add_u32 m0, s55, {L_WST}
    s_cmp_gt_u32 s{sV}, 2
    s_cbranch_scc1 L2_nowst
    v_cmp_gt_u32 vcc, 32, v1
    s_cmp_eq_u32 s{sV}, 2
    s_cselect_b64 exec, vcc, -1
    buffer_load_dwordx4 v97, s[{sWF}:{sWF+3}], 0 offen lds
    s_mov_b64 exec, -1
    """)
    a.label('L2_nowst')
    st(17)
    if TBK in ABL:
        a(f'''
        {'s_and_b32 s54, s2, 31' if XMK in ABL else 's_lshr_b32 s54, s2, 3'}
        s_mul_i32 s54, s54, 391
        s_lshl_b32 s55, s{sV}, 6
        v_add_u32 v100, s55, v1
        v_cmp_gt_u32 vcc, 391, v100
        v_add_u32 v100, s54, v100
        v_mov_b32 v101, 0
        v_mov_b32 v102, -1
        v_cndmask_b32 v100, v102, v100, vcc
        buffer_load_dword v52, v[100:101], s[{sHD}:{sHD+3}], 0 idxen offen
        ''')
    st(18)
    st(1)
    a(f's_waitcnt vmcnt({min(PE,9)+(1 if TBK in ABL else 0)})')
    if OFF2 not in ABL:
        for q in range(4):
            a(f'v_mov_b32_dpp v{4+q}, v{104+q} quad_perm:[0,0,2,2] row_mask:0xf bank_mask:0xf')
        a('v_mov_b32_dpp v8, v104 quad_perm:[1,1,3,3] row_mask:0xf bank_mask:0xf')
        a('v_and_b32 v8, 0xffff, v8')
    st(19)
    a('s_branch L2_counts')
    a.label('L2_batch')
    a(f"""
    s_barrier
    v_lshlrev_b32 v96, 4, v1
    s_lshl_b32 s58, s{sV}, 10
    v_add_u32 v96, s58, v96
    """)
    for r in range(PE): posdma(r)
    a.label('L2_counts')
    a(f"""
    v_alignbit_b32 v100, v5, v4, 16
    v_alignbit_b32 v101, v6, v5, 16
    v_alignbit_b32 v102, v7, v6, 16
    v_alignbit_b32 v103, v8, v7, 16
    v_and_b32 v105, 0xffff, v4
    v_sub_u32 v104, v8, v105
    s_sub_u32 s54, s{sW1}, s{sW0}
    v_subrev_u32 v106, s{sW0}, v3
    v_cmp_gt_u32 vcc, s54, v106
    s_mov_b32 s55, {CH*4}
    v_lshlrev_b32 v107, 2, v105
    v_lshl_add_u32 v107, v9, 4, v107
    v_cndmask_b32 v104, 0, v104, vcc
    v_lshlrev_b32 v109, 2, v9
    v_sub_u32 v109, v104, v109
    v_max_i32 v109, 0, v109
    v_mad_u32_u24 v107, v3, s55, v107
    """)
    for i in range(4):
        a(f'v_cmp_lt_u32 s[{90+2*i}:{91+2*i}], {8*i}, v109')
    for i in range(4):
        a(f's_mov_b64 exec, s[{90+2*i}:{91+2*i}]')
        a(f's_cbranch_execz L2_e{i}')
        a(f'buffer_load_dwordx4 v[{192+4*i}:{195+4*i}], v107, s[{sEN}:{sEN+3}], 0 offen offset:{32*i}')
        a.label(f'L2_e{i}')
    a('s_mov_b64 exec, -1')
    st(2)
    a(f"""
    v_pk_sub_u16 v100, v100, v4
    v_pk_sub_u16 v101, v101, v5
    v_pk_sub_u16 v102, v102, v6
    v_pk_sub_u16 v103, v103, v7
    v_cmp_eq_u32 s[56:57], 0, v9
    """)
    for q in range(4):
        a(f'v_cndmask_b32 v{100+q}, 0, v{100+q}, vcc')
    for q in range(5):
        a(f'v_cndmask_b32 v{112+q}, 0, v{100+q}, s[56:57]')
    for sh in (1,2,4,8):
        for q in range(5):
            a(f'v_add_u32_dpp v{112+q}, v{112+q}, v{112+q} row_shr:{sh} row_mask:0xf bank_mask:0xf')
    for q in range(5):
        a(f'v_add_u32_dpp v{112+q}, v{112+q}, v{112+q} row_bcast:15 row_mask:0xa bank_mask:0xf')
    for q in range(5):
        a(f'v_add_u32_dpp v{112+q}, v{112+q}, v{112+q} row_bcast:31 row_mask:0xc bank_mask:0xf')
    st(21)
    a(f"""
    s_lshl_b32 s54, s{sV}, 5
    s_add_u32 s54, s54, {L_WTOT}
    v_mov_b32 v117, s54
    s_mov_b32 s56, 0
    s_brev_b32 s57, 1
    s_mov_b64 exec, s[56:57]
    ds_write_b128 v117, v[112:115]
    ds_write_b32 v117, v116 offset:16
    s_mov_b64 exec, -1
    v_and_b32 v118, 7, v1
    v_lshlrev_b32 v118, 5, v118
    v_add_u32 v118, {L_WTOT}, v118
    s_waitcnt lgkmcnt(0)
    s_barrier
    ds_read_b128 v[120:123], v118
    ds_read_b32 v124, v118 offset:16
    """)
    st(3)
    a('s_waitcnt lgkmcnt(0)')
    for sh in (1,2,4):
        for q in range(5):
            a(f'v_add_u32_dpp v{120+q}, v{120+q}, v{120+q} row_shr:{sh} row_mask:0xf bank_mask:0xf')
    for q in range(5):
        a(f'v_readlane_b32 s{58+q}, v{120+q}, 7')
    a(f's_sub_u32 s54, s{sV}, 1')
    a(f's_max_i32 s54, s54, 0')
    for q in range(4):
        a(f'v_readlane_b32 s{64+q}, v{120+q}, s54')
    a(f's_cmp_eq_u32 s{sV}, 0')
    for q in range(4):
        a(f's_cselect_b32 s{64+q}, 0, s{64+q}')
    for q in range(4):
        a(f's_and_b32 s{68+2*q}, s{58+q}, 0xffff')
        a(f's_lshr_b32 s{69+2*q}, s{58+q}, 16')
    a('s_mov_b32 s84, 0')
    for g in range(8):
        a(f"""
        s_mov_b32 s{76+g}, s84
        s_add_u32 s54, s{68+g}, 31
        s_andn2_b32 s54, s54, 31
        s_add_u32 s84, s84, s54
        """)
    a(f"""
    s_max_u32 s54, s84, s62
    s_cmp_le_u32 s54, {CAP}
    s_cbranch_scc1 L2_fits
    s_add_u32 s{sW1}, s{sW0}, 1
    s_waitcnt vmcnt(0) lgkmcnt(0)
    s_branch L2_batch
    """)
    a.label('L2_fits')
    a(f"""
    s_cmp_eq_u32 s63, 1
    s_cbranch_scc1 L2_pidone
    """)
    if 'nopi' in ABL:
        a(f's_mov_b32 s{sG}, s{sV}')
    else:
        for g in range(8):
            a(f's_lshl_b32 s54, s{68+g}, 3')
            a(f's_add_u32 s{90+g}, s54, {7-g}')
            a(f'v_writelane_b32 v126, s{90+g}, {g}')
        a('v_mov_b32 v127, 0')
        for h in range(2):
            for k in range(4):
                pr=(56,58,54,64)[k] if False else None
            for k in range(4):
                a(f'v_cmp_gt_u32 s[{(54,56,58,60)[k]}:{(54,56,58,60)[k]+1}], s{90+4*h+k}, v126')
            for k in range(4):
                a(f'v_addc_co_u32 v127, vcc, 0, v127, s[{(54,56,58,60)[k]}:{(54,56,58,60)[k]+1}]')
        a(f"""
        s_sub_u32 s54, 11, s{sV}
        s_cmp_lt_u32 s{sV}, 4
        s_cselect_b32 s54, s{sV}, s54
        v_cmp_eq_u32 vcc, s54, v127
        s_nop 3
        s_and_b32 s54, vcc_lo, 0xff
        s_ff1_i32_b32 s{sG}, s54
        """)
    a(f"""
    s_mul_i32 s{sNODE0}, s2, {BN}
    s_add_u32 s{sNODE0}, s{sNODE0}, s{sG}
    """)
    a.label('L2_pidone')
    a(f's_mov_b32 s{sCNT}, s68')
    a(f's_mov_b32 s{sBASE}, s76')
    for g in range(1,8):
        a(f"""
        s_cmp_eq_u32 s{sG}, {g}
        s_cselect_b32 s{sCNT}, s{68+g}, s{sCNT}
        s_cselect_b32 s{sBASE}, s{76+g}, s{sBASE}
        """)
    a(f"""
    s_add_u32 s{sNT}, s{sCNT}, 31
    s_lshr_b32 s{sNT}, s{sNT}, 5
    """)
    for q in range(4):
        a(f's_pack_ll_b32_b16 s{85+q}, s{76+2*q}, s{77+2*q}')
        a(f's_add_u32 s{85+q}, s{85+q}, s{64+q}')
        a(f's_add_u32 s{85+q}, s{85+q}, {CH | (CH<<16)}')
    a(f"""
    v_lshl_or_b32 v105, v105, 16, v105
    v_mul_u32_u24 v106, 0x100010, v9
    """)
    for q in range(4):
        a(f"""
        v_sub_u32 v{112+q}, v{112+q}, v{100+q}
        v_add_u32 v{112+q}, s{85+q}, v{112+q}
        v_sub_u32 v{120+q}, v{4+q}, v105
        v_sub_u32 v{112+q}, v{112+q}, v{120+q}
        v_lshl_add_u32 v{112+q}, v{112+q}, 2, v106
        """)
    a(f"""
    v_lshlrev_b32 v108, 4, v0
    v_add_u32 v108, {L_GTAB}, v108
    ds_write_b128 v108, v[112:115]
    v_mov_b32 v104, v109
    s_mov_b32 s54, {CH*32}
    v_mul_lo_u32 v110, v3, s54
    v_mov_b32 v111, {4*CH+4*CAP}
    v_lshlrev_b32 v96, 4, v1
    s_lshl_b32 s58, s{sV}, 10
    v_add_u32 v96, s58, v96
    s_waitcnt vmcnt(0)
    """)
    st(4)
    if PE<10:
        a(f"""
        v_lshlrev_b32 v96, 4, v1
        s_lshl_b32 s58, s{sV}, 10
        v_add_u32 v96, s58, v96
        """)
        for r in range(PE,10):
            if r==9:
                a(f's_cmp_ge_u32 s{sV}, 2\ns_cbranch_scc1 L2_posdone2')
            a(f"""
            s_add_u32 m0, s58, {L_RING+8192*r}
            v_add_u32 v97, {8192*r}, v96
            buffer_load_dwordx4 v97, s[{sPOS}:{sPOS+3}], 0 offen lds
            """)
        a.label('L2_posdone2')
    a(f"""
    s_cmp_eq_u32 s63, 1
    s_cbranch_scc1 L2_noA
    s_lshl_b32 s54, s{sV}, 10
    s_add_u32 s55, s54, {L_RING+75776}
    s_add_u32 s54, s54, {L_AST-6*1024}
    s_cmp_lt_u32 s{sV}, 6
    s_cselect_b32 s62, s55, s54
    v_lshrrev_b32 v120, 3, v1
    v_lshlrev_b32 v120, 3, v120
    v_add_u32 v121, s{sG}, v120
    v_add_u32 v120, s{sNODE0}, v120
    v_cmp_gt_u32 vcc, {BN}, v121
    v_mov_b32 v122, -1
    v_and_b32 v123, 7, v1
    v_lshlrev_b32 v123, 4, v123
    v_cndmask_b32 v122, v122, v120, vcc
    s_mov_b32 m0, s62
    s_nop 0
    buffer_load_dwordx4 v[122:123], s[{sTA}:{sTA+3}], 0 idxen offen lds
    """)
    a.label('L2_noA')
    st(20)
    def quad(qreg, i, dyn=False):
        for u in range(4):
            a(f'v_lshrrev_b32 v{140+u}, 29, v{qreg+u}')
            a(f'v_lshl_add_u32 v{140+u}, v{140+u}, 1, v108')
            a(f'ds_read_u16 v{144+u}, v{140+u}')
        for u in range(4):
            if dyn: a(f'v_cmp_lt_u32 s[{90+2*u}:{91+2*u}], {u}, v104')
            else:   a(f'v_cmp_lt_u32 s[{90+2*u}:{91+2*u}], {8*i+u}, v104')
        a('s_waitcnt lgkmcnt(0)')
        for u in range(4):
            if dyn: a(f'v_add_u32 v{144+u}, v{144+u}, v149')
            a(f'v_cndmask_b32 v{144+u}, v111, v{144+u}, s[{90+2*u}:{91+2*u}]')
        ko = 0 if dyn else 8*i
        for u in range(4):
            a(f'ds_write_b32 v{144+u}, v{qreg+u} offset:{L_R0-4*CH+4*(ko+u)}')
            a(f'ds_write_b32 v{144+u}, v110 offset:{L_S-4*CH+4*(ko+u)}')
    for i in range(4):
        quad(192+4*i, i)
        a(f'v_cmp_lt_u32 vcc, {8*(i+1)}, v104')
        a('s_cbranch_vccz L2_scat_done')
    a(f'''
    v_subrev_u32 v104, 32, v104
    v_cmp_gt_i32 vcc, 0, v104
    v_mov_b32 v149, 128
    v_add_u32 v107, 128, v107
    v_cndmask_b32 v104, v104, 0, vcc
    ''')
    a.label('L2_scat_loop')
    a(f'buffer_load_dwordx4 v[192:195], v107, s[{sEN}:{sEN+3}], 0 offen')
    a('s_waitcnt vmcnt(0)')
    quad(192, 0, dyn=True)
    a(f'''
    v_subrev_u32 v104, 8, v104
    v_add_u32 v149, 32, v149
    v_add_u32 v107, 32, v107
    v_cmp_gt_i32 vcc, 0, v104
    s_nop 1
    v_cndmask_b32 v104, v104, 0, vcc
    v_cmp_lt_u32 vcc, 0, v104
    s_cbranch_vccnz L2_scat_loop
    ''')
    a.label('L2_scat_done')
    st(5)
    a('''
    s_waitcnt vmcnt(0) lgkmcnt(0)
    s_barrier
    ''')
    st(6)
    if 'hst' in ABL:
        a(f"""
        s_lshl_b32 s54, s{sV}, 10
        v_lshlrev_b32 v97, 4, v1
        s_add_u32 s55, s54, {F_H1*1024}
        v_add_u32 v98, s55, v97
        s_add_u32 m0, s54, {L_GTAB}
        s_cmp_lg_u32 s{sV}, 0
        buffer_load_dwordx4 v98, s[{sWF}:{sWF+3}], 0 offen lds
        s_cbranch_scc1 L2_hst1
        v_add_u32 v98, {(F_H1+8)*1024}, v97
        s_mov_b32 m0, {L_HX}
        s_nop 0
        buffer_load_dwordx4 v98, s[{sWF}:{sWF+3}], 0 offen lds
        """)
        a.label('L2_hst1')
    a(f"""
    v_lshrrev_b32 v100, 2, v1
    v_lshlrev_b32 v100, 3, v100
    v_add_u32 v100, s{sNODE0}, v100
    v_mul_u32_u24 v100, 6, v100
    v_and_b32 v102, 3, v1
    v_lshl_add_u32 v100, v102, 1, v100
    v_add_u32 v100, {L_RING}, v100
    ds_read_u16 v101, v100
    s_cmp_eq_u32 s63, 1
    s_cbranch_scc1 L2_noC
    s_mov_b32 s63, 1
    v_lshlrev_b32 v96, 4, v1
    v_add_u32 v96, {L_WST}, v96
    ds_read_b128 v[{vW3}:{vW3+3}], v96
    ds_read_b128 v[{vW3+4}:{vW3+7}], v96 offset:1024
    v_and_b32 v120, 31, v1
    v_lshrrev_b32 v121, 5, v1
    v_lshlrev_b32 v122, 2, v120
    v_lshl_add_u32 v122, v121, 9, v122
    v_add_u32 v122, s62, v122
    """)
    for q in range(4):
        a(f'ds_read_b32 v{40+q}, v122 offset:{128*q}')
    a(f"""
    v_lshlrev_b32 v120, 3, v120
    v_add_u32 v120, {L_WST+2048}, v120
    ds_read_b64 v[44:45], v120
    v_cmp_gt_u32 vcc, 32, v1
    s_waitcnt lgkmcnt(0)
    v_cndmask_b32 v44, v44, 0, vcc
    v_cndmask_b32 v45, v45, 0, vcc
    """)
    for q in range(4):
        a(f'v_and_b32 v{vW6+q}, 0xffff, v{40+q}')
        a(f'v_lshrrev_b32 v{vW6+4+q}, 16, v{40+q}')
    a(f"""
    v_or_b32 v{vW6+3}, v{vW6+3}, v44
    v_or_b32 v{vW6+7}, v{vW6+7}, v45
    """)
    a.label('L2_noC')
    a(f"""
    s_lshl_b32 s54, s{sV}, 7
    s_add_u32 s54, s54, {L_PD}
    v_lshlrev_b32 v97, 2, v1
    v_add_u32 v97, s54, v97
    s_waitcnt lgkmcnt(0)
    v_lshlrev_b32 v101, 16, v101
    s_mov_b32 exec_hi, 0
    ds_write_b32 v97, v101
    s_mov_b64 exec, -1
    """)
    a(f'''
    s_lshl_b32 s54, s{sV}, 7
    s_add_u32 s54, s54, {L_PD}
    v_mov_b32 v98, s54
    v_mov_b32 v99, {L_RING}
    v_add_u32 v96, s{sBASE}, v1
    v_mov_b32 v97, v1
    s_mov_b32 s{sT}, 0
    s_mov_b32 s55, 0xffff0000
    s_movk_i32 s56, 0x7fff
    s_mov_b32 s{sHD+2}, {N}
    s_mov_b32 s{sEA+2}, {E*32}
    ''')
    a(f'''
    s_lshl_b32 s54, s{sNT}, 5
    s_sub_u32 s54, s54, 32
    v_add_u32 v100, s54, v1
    v_cmp_le_u32 s[58:59], s{sCNT}, v100
    v_cmp_gt_u32 vcc, 32, v1
    s_and_b64 vcc, vcc, s[58:59]
    s_cmp_eq_u32 s{sNT}, 0
    s_cbranch_scc1 L2_nodummy
    s_and_saveexec_b64 s[58:59], vcc
    s_cbranch_execz L2_dummy_restore
    v_add_u32 v100, s{sBASE}, v100
    v_lshlrev_b32 v101, 2, v100
    v_mov_b32 v102, 28
    ds_write_b32 v101, v102 offset:{L_R0}
    v_lshlrev_b32 v101, 1, v100
    v_mov_b32 v102, 0
    v_mov_b32 v103, 0
    ds_write_b16 v101, v102 offset:{L_RS}
    v_lshlrev_b32 v101, 3, v100
    ds_write_b64 v101, v[102:103] offset:{L_G}
    ''')
    a.label('L2_dummy_restore')
    a('s_mov_b64 exec, s[58:59]')
    a.label('L2_nodummy')
    NI=4
    a.label('L2_geo_loop')
    a(f'''
    s_cmp_ge_u32 s{sT}, s{sCNT}
    s_cbranch_scc1 L2_geo_done
    ''')
    def R(it,k): return 112+20*it+k
    for it in range(NI):
        a(f'''
        v_add_u32 v{R(it,0)}, {64*it}, v96
        v_lshlrev_b32 v{R(it,0)}, 2, v{R(it,0)}
        ds_read_b32 v{R(it,1)}, v{R(it,0)} offset:{L_R0}
        ds_read_b32 v{R(it,2)}, v{R(it,0)} offset:{L_S}
        ''')
    for it in range(NI):
        a(f'''
        v_add_u32 v{R(it,16)}, {64*it}, v97
        v_cmp_gt_u32 s[{90+2*it}:{91+2*it}], s{sCNT}, v{R(it,16)}
        ''')
    for it in range(NI):
        e=R(it,1); wb=R(it,2)
        a(f's_waitcnt lgkmcnt({2*(NI-1-it)+2*it})')
        a(f'''
        v_bfe_u32 v{R(it,3)}, v{e}, 15, 14
        v_and_b32 v{R(it,4)}, 7, v{e}
        v_mad_u32_u24 v{R(it,5)}, v{R(it,3)}, 6, v99
        v_lshl_add_u32 v{R(it,7)}, v{R(it,4)}, 4, v98
        v_and_b32 v{R(it,5)}, -4, v{R(it,5)}
        ds_read_b96 v[{R(it,8)}:{R(it,10)}], v{R(it,7)}
        ds_read2_b32 v[{R(it,12)}:{R(it,13)}], v{R(it,5)} offset1:1
        v_and_b32 v{R(it,5)}, s56, v{e}
        v_lshl_add_u32 v{wb}, v{R(it,5)}, 2, v{wb}
        v_lshlrev_b32 v{R(it,6)}, 4, v{R(it,3)}
        ''')
    if 'nopf' not in ABL:
        a(f'''
        s_cmp_lg_u32 s{sT}, 0
        s_cbranch_scc1 L2_nopf
        ''')
        a(f'''
        v_and_b32 v48, s{sMK}, v{R(0,2)}
        v_mov_b32 v51, 0
        v_mov_b32 v50, v{R(0,3)}
        s_mov_b32 exec_hi, {-1 if PF2K in ABL else 0}
        buffer_load_dword v48, v48, s[{sEA}:{sEA+3}], 0 offen
        s_mov_b32 exec_hi, 0
        buffer_load_dword v49, v[50:51], s[{sHD}:{sHD+3}], 0 idxen offen
        s_mov_b64 exec, -1
        ''')
        a.label('L2_nopf')
    for it in range(NI):
        pd=R(it,8); ps=R(it,12); sh=R(it,6); t0=R(it,4); t1=R(it,5); t2=R(it,7); o=R(it,14); t3=R(it,17)
        a(f's_waitcnt lgkmcnt({2*(NI-1-it)+3*it})')
        a(f'''
        v_alignbit_b32 v{t0}, v{ps+1}, v{ps}, v{sh}
        v_lshrrev_b32 v{t2}, v{sh}, v{ps+1}
        v_lshlrev_b32 v{t1}, 16, v{t0}
        v_and_b32 v{t0}, s55, v{t0}
        v_lshlrev_b32 v{t2}, 16, v{t2}
        v_sub_f32 v{t1}, v{pd}, v{t1}
        v_sub_f32 v{t0}, v{pd+1}, v{t0}
        v_sub_f32 v{t2}, v{pd+2}, v{t2}
        v_mul_f32 v{t3}, v{t1}, v{t1}
        v_cvt_pk_bf16_f32 v{o+1}, v{t0}, v{t2}
        v_fmac_f32 v{t3}, v{t0}, v{t0}
        v_fmac_f32 v{t3}, v{t2}, v{t2}
        v_lshrrev_b32 v{t0}, 1, v{R(it,0)}
        v_cvt_pk_bf16_f32 v{o}, v{t3}, v{t1}
        v_lshlrev_b32 v{t2}, 1, v{R(it,0)}
        s_mov_b64 exec, s[{90+2*it}:{91+2*it}]
        ds_write_b32 v{R(it,0)}, v{R(it,2)} offset:{L_R0}
        ds_write_b16 v{t0}, v{R(it,3)} offset:{L_RS}
        ds_write_b64 v{t2}, v[{o}:{o+1}] offset:{L_G}
        s_mov_b64 exec, -1
        ''')
    a(f'''
    v_add_u32 v96, {64*NI}, v96
    v_add_u32 v97, {64*NI}, v97
    s_add_u32 s{sT}, s{sT}, {64*NI}
    s_branch L2_geo_loop
    ''')
    a.label('L2_geo_done')
    a(f"""
    v_lshrrev_b32 v97, 3, v1
    v_add_u32 v97, s{sBASE}, v97
    v_lshlrev_b32 v97, 1, v97
    v_add_u32 v{vRSa}, {L_RS}, v97
    v_lshrrev_b32 v97, 1, v1
    v_add_u32 v97, s{sBASE}, v97
    v_lshlrev_b32 v97, 2, v97
    v_add_u32 v{vR0a}, {L_R0}, v97
    v_and_b32 v97, 31, v1
    v_add_u32 v97, s{sBASE}, v97
    v_lshlrev_b32 v98, 2, v97
    v_add_u32 v{vR0e}, {L_R0}, v98
    v_lshrrev_b32 v98, 5, v1
    v_lshlrev_b32 v98, 2, v98
    v_lshl_add_u32 v98, v97, 3, v98
    v_add_u32 v{vGe}, {L_G}, v98
    s_mov_b32 s{sT}, 0
    s_sub_u32 s86, s{sNT}, 3
    s_sub_u32 s87, s{sNT}, 1
    """)
    for i in range(4): a(f'ds_read_u16 v{vHP+2*i}, v{vRSa} offset:{16*i}')
    a(f'ds_read_b32 v{vEAi}, v{vR0a}')
    a(f'ds_read_b32 v{vR0}, v{vR0e}')
    a(f'ds_read_b32 v{vG}, v{vGe}')
    if 'fprio' in ABL:
        PER=optl('per',[12])[0]
        a(f"""
        v_cvt_f32_u32 v96, s{sNT}
        v_rcp_f32 v96, v96
        s_nop 0
        v_mul_f32 v96, {f32bits(float(PER*65536*(2 if TRIMK in ABL else 1)))}, v96
        v_cvt_u32_f32 v96, v96
        s_nop 0
        v_readfirstlane_b32 s85, v96
        s_mov_b32 s84, 0
        s_sub_u32 s84, s84, s85
        """)
    a(f"""
    s_lshl_b32 s54, s{sV}, 11
    s_add_u32 s54, s54, {L_S}
    v_lshlrev_b32 v96, 4, v1
    v_add_u32 v96, s54, v96
    v_mov_b32 v100, 0
    v_mov_b32 v101, 0
    v_mov_b32 v102, 0
    v_mov_b32 v103, 0
    v_and_or_b32 v{vEAo}, v{vEAi}, s{sMK}, v{vEAc}
    """)
    if 'hst' in ABL:
        a(f"""
        s_cmp_eq_u32 s{sCNT}, 0
        s_cbranch_scc1 L2_hw0
        s_waitcnt vmcnt({0 if 'nopf' in ABL else 2})
        s_branch L2_hw1
        """)
        a.label('L2_hw0')
        a('s_waitcnt vmcnt(0)')
        a.label('L2_hw1')
    a(f"""
    s_waitcnt lgkmcnt(0)
    s_barrier
    """)
    st(7)
    a(f"""
    ds_write_b128 v96, v[100:103]
    ds_write_b128 v96, v[100:103] offset:1024
    """)
    if 'lone' in ABL:
        a(f's_cmp_ge_u32 s{sV}, 4\ns_cselect_b32 s{sNT}, 0, s{sNT}')
    a(f"""
    s_cmp_eq_u32 s{sNT}, 0
    s_cbranch_scc1 L2_notiles
    """)
    def idx_reads(toff):
        return [f'ds_read_u16 v{vHP+2*i}, v{vRSa} offset:{64*toff+16*i}' for i in range(4)] + \
               [f'ds_read_b32 v{vEAi}, v{vR0a} offset:{128*toff}']
    def rec_reads(toff):
        return [f'ds_read_b32 v{vR0}, v{vR0e} offset:{128*toff}', f'ds_read_b32 v{vG}, v{vGe} offset:{256*toff}']
    def srd_select(delta):
        return [f's_add_u32 s54, s{sT}, {delta}\ns_cmp_lt_u32 s54, s{sNT}\ns_cselect_b32 s{sHD+2}, {NH_}, 0\ns_cselect_b32 s{sEA+2}, {NE_}, 0']
    def dma2(slot):
        r=[(f'v_and_or_b32 v{vEAo}, v{vEAi}, s{sMK}, v{vEAc}\ns_add_u32 m0, s{sRB}, {slot*SLOT+4096}', f'buffer_load_dwordx4 v{vEAo}, s[{sEA}:{sEA+3}], 0 offen{EAF} lds')]
        for i in range(4):
            r.append((f's_add_u32 m0, s{sRB}, {slot*SLOT+1024*i}', f'buffer_load_dwordx4 v[{vHP+2*i}:{vHP+2*i+1}], s[{sHD}:{sHD+3}], 0 idxen offen{HF} lds'))
        return r
    def dma(slot):
        return [x+'\n'+y for x,y in dma2(slot)]
    def x_reads(slot):
        return [f'ds_read_b128 v[{vX+4*s}:{vX+4*s+3}], v{vHA+s} offset:{slot*SLOT}' for s in range(4)] + \
               [f'ds_read_b128 v[{vXE}:{vXE+3}], v{vEAr} offset:{slot*SLOT}']
    def s_addr(): return [f'v_bitop3_b32 v{vA1}, v{vR0}, 28, v{vC1} bitop3:0x6a', f'v_bfi_b32 v{vS1}, v{vMK2}, v{vG}, v{vOne}', f'v_perm_b32 v{vS2}, v{vG}, v{vG}, s{sSEL}']
    def s_writes(): return [f'ds_write_b32 v{vA1}, v{vS1}', f'ds_write_b32 v{vCD}, v{vS2}']
    def x6_read(): return [f'ds_read_b128 v[{vX6}:{vX6+3}], v{vX6r}']
    def sf_reads():
        r=[]
        for s2 in range(2):
            r.append(f'ds_read_b64_tr_b16 v[{vSF+4*s2}:{vSF+4*s2+1}], v{vSTa} offset:{1024*s2}')
            r.append(f'ds_read_b64_tr_b16 v[{vSF+4*s2+2}:{vSF+4*s2+3}], v{vSTb} offset:{1024*s2}')
        return r
    def s_restore(): return [f'ds_write_b32 v{vA1}, v{vZero}']
    def mfma1(dst):
        r=[]
        for blk in range(2):
            D=f'v[{dst+16*blk}:{dst+16*blk+15}]'
            for sp in range(2):
                C = D if sp>0 else '0'
                s_=2*blk+sp
                r.append(f'v_mfma_f32_32x32x16_bf16 {D}, v[{vX+4*s_}:{vX+4*s_+3}], v[{vI+4*sp}:{vI+4*sp+3}], {C}')
            r.append(f'v_mfma_f32_32x32x16_bf16 {D}, v[{vXE}:{vXE+3}], v[{vW3+4*blk}:{vW3+4*blk+3}], {D}')
            r.append(f'v_mfma_f32_32x32x16_bf16 {D}, v[{vX6}:{vX6+3}], v[{vW6+4*blk}:{vW6+4*blk+3}], {D}')
        return r
    ONE=f'v[{vONE}:{vONE+3}]'
    def plus1(blk):
        Eb=f'v[{vE+16*blk}:{vE+16*blk+15}]'
        return f'v_mfma_f32_32x32x16_bf16 {Eb}, {ONE}, {ONE}, {Eb}'
    def mfma2(cur,blk,s2):
        D=f'v[{vD2+16*blk}:{vD2+16*blk+15}]'; m=cur+8*blk+4*s2
        return f'v_mfma_f32_32x32x16_bf16 {D}, v[{m}:{m+3}], v[{vSF+4*s2}:{vSF+4*s2+3}], {D}'
    def keep(x):
        if 'nomfma' in ABL and x.startswith('v_mfma'): return False
        if 'nolds' in ABL and x.startswith('ds_'): return False
        if 'nodma' in ABL and 'buffer_load' in x: return False
        if 'notrans' in ABL and x.startswith(('v_exp','v_rcp')): return False
        if 'novalu' in ABL and x.startswith(('v_exp','v_rcp','v_mul','v_cvt','v_pk_mul')): return False
        return True
    def emit(backbone, inserts):
        backbone=[x if keep(x) else 's_nop 0' for x in backbone]
        inserts={k:[x for x in v if keep(x)] for k,v in inserts.items()}
        for k_ in sorted(k for k in inserts if k<0):
            for s_ in inserts[k_]: a(s_)
        for i,ins in enumerate(backbone):
            a(ins)
            for s_ in inserts.get(i,[]): a(s_)
    nlab=[0]
    PK='pk' in ABL
    DMAPOS=optl('dma',[37,48,60,70,82] if PK else [41,52,63,76,92])
    M1POS=optl('m1',[37,40,43,46,49,52,55,58] if PK else [42,46,50,54,58,62,68,74])
    SFPOS=optl('sf',[0,2,4,6]); RSPOS=optl('rs',[8])[0]; SAPOS=optl('sa',[9,10,11]); SWPOS=optl('sw',[12,13]); X6POS=optl('x6',[14])[0]
    VMPOS=optl('vm',[16])[0]; XPOS=optl('x',[16,18,20,22,24]); RECPOS=optl('rec',[26,27]); IDXPOS=optl('idx',[28,29,30,31,32])
    LGPOS=optl('lg',[36] if PK else [40])[0]; M2POS=optl('m2',[85,89,93,95] if PK else [89,95,111,111]); P1POS=optl('p1',[17,33])
    def body(p, steady, extra_first=None):
        cur=vD1[p]; nxt=vD1[1-p]
        bb=[]
        for blk in range(2):
            bb += [f'v_exp_f32 v{vE+16*blk+i}, v{cur+16*blk+i}' for i in range(16)]
        for blk in range(2):
            bb += [f'v_rcp_f32 v{vE+16*blk+i}, v{vE+16*blk+i}' for i in range(16)]
        if 'pk' in ABL:
            bb += [f'v_pk_mul_f32 v[{vE+2*i}:{vE+2*i+1}], v[{vE+2*i}:{vE+2*i+1}], v[{cur+2*i}:{cur+2*i+1}]' for i in range(16)]
            bb += [f'v_cvt_pk_bf16_f32 v{cur+q}, v{vE+2*q}, v{vE+2*q+1}' for q in range(16)]
        else:
            bb += [f'v_mul_f32 v{vE+i}, v{vE+i}, v{cur+i}' for i in range(16)]
            bb += [f'v_cvt_pk_bf16_f32 v{cur+q}, v{vE+2*q}, v{vE+2*q+1}' for q in range(8)]
            bb += [f'v_mul_f32 v{vE+16+i}, v{vE+16+i}, v{cur+16+i}' for i in range(16)]
            bb += [f'v_cvt_pk_bf16_f32 v{cur+8+q}, v{vE+16+2*q}, v{vE+16+2*q+1}' for q in range(8)]
        ins={}
        def put(pos,x):
            ins.setdefault(pos,[]).append(x)
        if not ('trim' in ABL and steady): put(-100,'s_waitcnt lgkmcnt(0)')
        if 'prio' in ABL:
            put(-99,f'''s_and_b32 s54, s{sT}, 2
            s_cmp_eq_u32 s54, 0
            s_cbranch_scc1 Lp{nlab[0]}a
            s_setprio {1-p}
            s_branch Lp{nlab[0]}b
            Lp{nlab[0]}a:
            s_setprio {3-p}
            Lp{nlab[0]}b:''')
            nlab[0]+=1
        if 'fprio' in ABL and not ('trim' in ABL and p==1):
            n=nlab[0]
            put(-99,f'''s_add_u32 s84, s84, s85
            s_bitcmp1_b32 s84, 17
            s_cbranch_scc1 Lp{n}h
            s_bitcmp1_b32 s84, 16
            s_cbranch_scc1 Lp{n}a
            s_setprio 3
            s_branch Lp{n}z
            Lp{n}a:
            s_setprio 2
            s_branch Lp{n}z
            Lp{n}h:
            s_bitcmp1_b32 s84, 16
            s_cbranch_scc1 Lp{n}b
            s_setprio 1
            s_branch Lp{n}z
            Lp{n}b:
            s_setprio 0
            Lp{n}z:''')
            nlab[0]+=1
        if steady and p==0:
            n=nlab[0]; nlab[0]+=1
            put(0,f's_cmp_lg_u32 s{sT}, 0\ns_cbranch_scc1 Ld{n}\n'+'\n'.join(dma(0))+f'\nLd{n}:')
        for x,q in zip(sf_reads(),SFPOS): put(q,x)
        put(RSPOS,s_restore()[0])
        if extra_first:
            for x in extra_first: put(RSPOS+4,x)
        put(P1POS[0],plus1(0))
        put(P1POS[1],plus1(1))
        if steady:
            for x,q in zip(s_addr(),SAPOS): put(q,x)
            for x,q in zip(s_writes(),SWPOS): put(q,x)
            put(X6POS,x6_read()[0])
            put(VMPOS,'s_waitcnt vmcnt(5)')
            for x,q in zip(x_reads(1-p),XPOS): put(q,x)
            for x,q in zip(rec_reads(p+2),RECPOS): put(q,x)
            for x,q in zip(idx_reads(p+3),IDXPOS): put(q,x)
            if 'trim' in ABL:
                n=nlab[0]; nlab[0]+=1
                put(LGPOS-2,f's_cmp_lt_i32 s{sT}, s86\ns_cbranch_scc1 Lz{n}\ns_mov_b32 s{sHD+2}, 0\ns_mov_b32 s{sEA+2}, 0\nLz{n}:')
            else: put(LGPOS-2,srd_select(3)[0])
            put(LGPOS,'s_waitcnt lgkmcnt(0)')
            for (x,y),q in zip(dma2(1-p),DMAPOS):
                if q>0 and q-1>LGPOS-1 and 'trim' in ABL: put(q-1,x); put(q,y)
                else: put(q,x+'\n'+y)
            for x,q in zip(mfma1(nxt),M1POS): put(q,x)
        for (b_,s_),q in zip(((0,0),(0,1),(1,0),(1,1)),M2POS): put(q,mfma2(cur,b_,s_))
        emit(bb,ins)
    def late_consts(a):
        a(f'''
        v_and_b32 v97, 31, v1
        v_lshrrev_b32 v98, 5, v1
        v_bfe_u32 v99, v97, 1, 3
        v_lshlrev_b32 v100, 7, v97
        v_add_u32 v100, s{sRB}, v100
        ''')
        for s in range(4):
            a(f'''
            v_add_u32 v101, {2*s}, v98
            v_xor_b32 v101, v101, v99
            v_lshl_add_u32 v{vHA+s}, v101, 4, v100
            ''')
        a(f'''
        v_lshrrev_b32 v101, 4, v97
        v_xor_b32 v101, v101, v98
        v_lshlrev_b32 v101, 4, v101
        v_lshl_add_u32 v101, v97, 5, v101
        v_add_u32 v101, s{sRB}, v101
        v_add_u32 v{vEAr}, 4096, v101
        s_lshl_b32 s57, s{sV}, 11
        s_add_u32 s57, s57, {L_S}
        v_lshlrev_b32 v101, 6, v97
        v_add_u32 v101, s57, v101
        v_bfe_u32 v102, v97, 2, 2
        v_xor_b32 v103, v98, v102
        v_lshl_add_u32 v{vX6r}, v103, 4, v101
        v_lshlrev_b32 v103, 1, v98
        v_xor_b32 v104, v103, v102
        v_lshl_add_u32 v{vC1}, v104, 4, v101
        v_add_u32 v103, 1, v103
        v_xor_b32 v104, v103, v102
        v_lshl_add_u32 v104, v104, 4, v101
        v_add_u32 v{vCD}, 12, v104
        v_cmp_gt_u32 vcc, 32, v1
        v_mov_b32 v103, 0xffff0000
        v_mov_b32 v104, -1
        v_cndmask_b32 v{vMK2}, v104, v103, vcc
        v_mov_b32 v{vOne}, 0x3f80
        v_mov_b32 v{vONE+1}, 0
        v_mov_b32 v{vONE+2}, 0
        v_mov_b32 v{vONE+3}, 0
        v_cndmask_b32 v{vONE}, 0, v{vOne}, vcc
        v_lshlrev_b32 v101, 3, v98
        v_sub_u32 v101, v97, v101
        v_and_b32 v102, 1, v101
        v_lshlrev_b32 v102, 4, v102
        v_lshlrev_b32 v102, v102, v{vOne}
        v_ashrrev_i32 v101, 1, v101
        ''')
        for k in range(8):
            q=8*(k>>2)+(k&3)
            a(f'v_cmp_eq_u32 s[{90+2*(k&3)}:{91+2*(k&3)}], {q}, v101')
            if (k&3)==3:
                for kk in range(k-3,k+1):
                    a(f'v_cndmask_b32 v{vI+kk}, 0, v102, s[{90+2*(kk&3)}:{91+2*(kk&3)}]')
        a(f'''
        v_and_b32 v101, 15, v1
        v_lshrrev_b32 v101, 2, v101
        v_lshl_add_u32 v101, v98, 2, v101
        v_lshlrev_b32 v101, 6, v101
        v_and_b32 v102, 1, v1
        v_lshl_add_u32 v101, v102, 3, v101
        v_add_u32 v101, s57, v101
        v_bfe_u32 v102, v1, 4, 1
        v_bfe_u32 v103, v1, 1, 1
        v_lshl_add_u32 v102, v102, 1, v103
        v_xor_b32 v103, v102, v98
        v_lshl_add_u32 v{vSTa}, v103, 4, v101
        v_add_u32 v103, 2, v98
        v_xor_b32 v103, v102, v103
        v_lshl_add_u32 v103, v103, 4, v101
        v_add_u32 v{vSTb}, 512, v103
        ''')

    lc=Asm(); late_consts(lc); lcl=list(lc.lines); per=(len(lcl)+9)//10
    def dma_lc(slot,k0):
        for k,x in enumerate(dma(slot)):
            a(x)
            if 'ilc' in ABL:
                for y in lcl[(k0+k)*per:(k0+k+1)*per]: a(y)
    a(f's_mov_b32 s{sHD+2}, {N}')
    a(f's_mov_b32 s{sEA+2}, {E*32}')
    dma_lc(0,0)
    st(13+18)
    for x in idx_reads(1): a(x)
    a(srd_select(1)[0])
    a('s_waitcnt lgkmcnt(0)')
    dma_lc(1,5)
    st(14)
    for x in idx_reads(2): a(x)
    a(srd_select(2)[0])
    if 'ilc' not in ABL:
        for y in lcl: a(y)
    for x in s_addr(): a(x)
    for x in s_writes(): a(x)
    for x in x6_read(): a(x)
    st(15)
    a('s_waitcnt vmcnt(5)')
    st(30)
    for x in x_reads(0): a(x)
    for x in rec_reads(1): a(x)
    a('s_waitcnt lgkmcnt(0)')
    for x in mfma1(vD1[0]): a(x)
    st(8)
    stampc(a,12,vTM,98)
    if DEBUG_TM: a(f'v_writelane_b32 v{vTM}, s{sNT}, 22\nv_writelane_b32 v{vTM}, s{sG}, 23\ns_getreg_b32 s98, hwreg(HW_REG_HW_ID)\nv_writelane_b32 v{vTM}, s98, 24')
    JM=[0,1,4,5]
    RESV=[[232,233,234,236],[237,238,252,253]]
    WXV=[192,196,200,204,208,212,228,248]
    def epi_prefetch(p):
        nxt=vD1[1-p]
        r=[]
        r.append('v_lshlrev_b32 v10, 4, v1')
        for ff in range(16):
            dst = 16+4*ff if ff<8 else nxt+4*(ff-8)
            if 'hst' in ABL and ff<NHS:
                r.append(f'v_add_u32 v9, {hstage_addr(ff)}, v10\nds_read_b128 v[{dst}:{dst+3}], v9')
            else:
                r.append(f'v_add_u32 v9, {(F_H1+ff)*1024}, v10\nbuffer_load_dwordx4 v[{dst}:{dst+3}], v9, s[{sWF}:{sWF+3}], 0 offen')
        r.append(f"""
        v_lshrrev_b32 v9, 3, v1
        v_lshlrev_b32 v9, 3, v9
        v_add_u32 v3, s{sG}, v9
        v_add_u32 v9, s{sNODE0}, v9
        v_cmp_gt_u32 vcc, {BN}, v3
        v_mov_b32 v4, -1
        v_and_b32 v241, 7, v1
        v_lshlrev_b32 v241, 4, v241
        v_cndmask_b32 v240, v4, v9, vcc
        """)
        r.append(f"""
        v_bfe_u32 v9, v1, 1, 3
        v_lshlrev_b32 v9, 3, v9
        v_add_u32 v3, s{sG}, v9
        v_add_u32 v9, s{sNODE0}, v9
        v_bfe_u32 v5, v1, 4, 1
        v_and_b32 v8, 1, v1
        v_lshl_add_u32 v5, v5, 1, v8
        v_cmp_gt_u32 vcc, {BN}, v3
        v_subrev_u32 v5, 1, v5
        v_cmp_gt_u32 s[56:57], 3, v5
        v_mul_u32_u24 v9, 6, v9
        s_and_b64 vcc, vcc, s[56:57]
        v_cmp_gt_u32 s[56:57], 32, v1
        v_lshl_add_u32 v9, v5, 1, v9
        v_mov_b32 v4, 0x7fffff00
        s_and_b64 vcc, vcc, s[56:57]
        v_cndmask_b32 v10, v4, v9, vcc
        buffer_load_ushort v11, v10, s[{sPOS}:{sPOS+3}], 0 offen
        """)
        return r
    def epi_rows():
        return f"""s_waitcnt lgkmcnt(0)
        s_lshl_b32 s62, s{sV}, 11
        s_add_u32 s62, s62, {L_S}
        s_mov_b32 m0, s62
        s_nop 0
        buffer_load_dwordx4 v[240:241], s[{sH}:{sH+3}], 0 idxen offen lds"""
    def epilogue(p):
        nxt=vD1[1-p]; cur=vD1[p]
        pk=vE; T=vE+16; acc=vE+24
        a(f"""
        v_and_b32 v3, 31, v1
        v_lshrrev_b32 v4, 5, v1
        v_bfe_u32 v5, v1, 1, 3
        v_lshlrev_b32 v5, 7, v5
        v_lshl_add_u32 v5, v4, 4, v5
        v_add_u32 v5, s62, v5
        v_lshlrev_b32 v6, 7, v4
        v_add_u32 v6, {L_WST+2048+256}, v6
        v_lshlrev_b32 v7, 1, v3
        v_lshl_add_u32 v7, v4, 8, v7
        v_add_u32 v7, s62, v7
        s_mov_b32 s54, {f32bits(-math.log(2.0))}
        s_mov_b32 s55, s54
        s_waitcnt vmcnt(0)
        """)
        for s_ in range(4):
            a(f'ds_read_b128 v[{48+4*s_}:{51+4*s_}], v5 offset:{32*s_}')
        for f in range(8):
            a(f'ds_read_b128 v[{WXV[f]}:{WXV[f]+3}], v6 offset:{16*f}')
        for i in range(16):
            a(f'v_pk_mul_f32 v[{vD2+2*i}:{vD2+2*i+1}], v[{vD2+2*i}:{vD2+2*i+1}], s[54:55]')
        a('s_waitcnt lgkmcnt(8)')
        for b2 in range(2):
            D=f'v[{cur+16*b2}:{cur+16*b2+15}]'
            for s_ in range(4):
                C = D if s_>0 else '0'
                a(f'v_mfma_f32_32x32x16_bf16 {D}, v[{48+4*s_}:{51+4*s_}], v[{16+4*(2*s_+b2)}:{19+4*(2*s_+b2)}], {C}')
            if b2==0:
                for blk in range(2):
                    for q in range(8):
                        a(f'v_cvt_pk_bf16_f32 v{pk+8*blk+q}, v{vD2+16*blk+2*q}, v{vD2+16*blk+2*q+1}')
        for b2 in range(2):
            for m in range(4):
                a(f'ds_read_u16 v{RESV[b2][m]}, v7 offset:{128*JM[m]+64*b2}')
        for b2 in range(2):
            D=f'v[{cur+16*b2}:{cur+16*b2+15}]'
            for blk in range(2):
                for sp in range(2):
                    f=(blk*2+sp)*2+b2
                    a(f'v_mfma_f32_32x32x16_bf16 {D}, v[{pk+8*blk+4*sp}:{pk+8*blk+4*sp+3}], v[{nxt+4*f}:{nxt+4*f+3}], {D}')
            if b2==0:
                a('s_waitcnt lgkmcnt(8)')
                a(f'v_mul_f32 v{acc}, v{vD2}, v{WXV[0]}')
                a(f'v_mul_f32 v{acc+1}, v{vD2+1}, v{WXV[0]+1}')
                for i in range(2,32):
                    a(f'v_fmac_f32 v{acc+(i&1)}, v{vD2+i}, v{WXV[i>>2]+(i&3)}')
                a(f'v_add_f32 v{acc}, v{acc}, v{acc+1}')
                a(f'v_mov_b32 v{acc+1}, v{acc}')
        a(f'v_permlane32_swap_b32 v{acc}, v{acc+1}')
        a(f"""
        v_lshlrev_b32 v11, 16, v11
        v_add_f32 v{acc}, v{acc}, v{acc+1}
        v_add_f32 v11, v11, v{acc}
        v_cvt_pk_bf16_f32 v11, v11, v11
        buffer_store_short v11, v10, s[{sO1}:{sO1+3}], 0 offen
        s_mov_b32 s54, {f32bits(-LOG2E)}
        """)
        for b2 in range(2):
            for m in range(4):
                a(f'v_mul_f32 v{T+4*b2+m}, s54, v{cur+16*b2+2*m}')
        for k in range(8): a(f'v_exp_f32 v{T+k}, v{T+k}')
        for k in range(8): a(f'v_add_f32 v{T+k}, 1.0, v{T+k}')
        for k in range(8): a(f'v_rcp_f32 v{T+k}, v{T+k}')
        a('s_waitcnt lgkmcnt(0)')
        for b2 in range(2):
            for m in range(4):
                x=cur+16*b2+2*m; t=T+4*b2+m; hh=RESV[b2][m]
                a(f'v_lshlrev_b32 v{hh}, 16, v{hh}')
                a(f'v_fma_f32 v{t}, v{x}, v{t}, v{hh}')
                a(f'v_cvt_pk_bf16_f32 v{t}, v{t}, v{t}')
        for b2 in range(2):
            for m in range(4):
                a(f'ds_write_b16 v7, v{T+4*b2+m} offset:{1024+128*JM[m]+64*b2}')
        a(f"""
        v_lshlrev_b32 v6, 4, v1
        v_add_u32 v6, s62, v6
        ds_read_b128 v[48:51], v6 offset:1024
        s_waitcnt lgkmcnt(0)
        buffer_store_dwordx4 v[48:51], v[240:241], s[{sO0}:{sO0+3}], 0 idxen offen{SC1O}
        """)
        st(10)
        if DEBUG_TM: a('s_waitcnt vmcnt(0)')
        st(11)
        stamp_store(a,vTM,98,44,45,0x80000,sV,254)
        a('s_endpgm')
    for p in range(2):
        a.label(f'L2_s{p}')
        if 'trim' in ABL:
            a(f's_cmp_ge_i32 s{sT}, s87\ns_cbranch_scc1 L2_l{p}')
        else:
            a(f'''
            s_add_u32 s54, s{sT}, 1
            s_cmp_ge_u32 s54, s{sNT}
            s_cbranch_scc1 L2_l{p}
            ''')
        if DEBUG_TM and p==0:
            for tt,ix in ((2,25),(4,26),(6,27),(8,28),(10,29)):
                a(f's_cmp_lg_u32 s{sT}, {tt}\ns_cbranch_scc1 Lst{ix}')
                stampc(a,ix,vTM,98)
                a.label(f'Lst{ix}')
        body(p, True)
        a(f's_add_u32 s{sT}, s{sT}, 1')
        if p==1:
            a(f'''
            v_add_u32 v{vRSa}, 128, v{vRSa}
            v_add_u32 v{vR0a}, 256, v{vR0a}
            v_add_u32 v{vR0e}, 256, v{vR0e}
            v_add_u32 v{vGe}, 512, v{vGe}
            s_branch L2_s0
            ''')
    for p in range(2):
        a.label(f'L2_l{p}')
        a(f'''
        s_cmp_lt_u32 s{sW1}, {NCH}
        s_cbranch_scc1 L2_l{p}n
        ''')
        body(p, False, None) if False else None
        for x in epi_prefetch(p): a(x)
        body(p, False, [epi_rows()])
        st(9)
        stampc(a,13,vTM,98)
        epilogue(p)
        a.label(f'L2_l{p}n')
        body(p, False)
        a('s_branch L2_nextbatch')
    a.label('L2_notiles')
    a(f'''
    s_cmp_lt_u32 s{sW1}, {NCH}
    s_cbranch_scc1 L2_nextbatch
    ''')
    for x in epi_prefetch(0): a(x)
    a(epi_rows())
    st(9)
    epilogue(0)
    a.label('L2_nextbatch')
    a(f'''
    s_waitcnt vmcnt(0) lgkmcnt(0)
    s_mov_b32 s{sW0}, s{sW1}
    s_add_u32 s{sW1}, s{sW1}, 1
    s_branch L2_batch
    ''')
    a.label('L2_end')
    a('s_endpgm')
    return a.finalize(), 256, 102, (L_END if 'hst' in ABL else L_HX)

def main():
    k1,v1,s1,l1 = gen_k1()
    k2,v2,s2,l2 = gen_k2()
    hdr = open('gather_scatter__cheap_equivariant_egnn__graph.s.ref').read().split('; Override launch')[0]
    out = hdr
    out += f'; @launch kernel=egnn_part_kernel grid=({NCH+1+NTW},1,1) block=(512,1,1) lds={l1}\n'
    out += f'; @launch kernel=egnn_main_kernel grid=({NBK},1,1) block=(512,1,1) lds={l2}\n'
    out += '.amdgcn_target "amdgcn-amd-amdhsa--gfx950"\n.text\n'
    for name,body in (('egnn_part_kernel',k1),('egnn_main_kernel',k2)):
        out += f'.globl {name}\n.p2align 8\n.type {name},@function\n' + body
    out += '.section .rodata,"a"\n'
    for name,nv,ns in (('egnn_part_kernel',v1,s1),('egnn_main_kernel',v2,s2)):
        acc=(nv+3)//4*4
        out += f'''.p2align 6
.amdhsa_kernel {name}
  .amdhsa_next_free_vgpr {nv}
  .amdhsa_next_free_sgpr {ns}
  .amdhsa_accum_offset {acc}
  .amdhsa_group_segment_fixed_size 0
  .amdhsa_kernarg_size 88
  .amdhsa_user_sgpr_count 2
  .amdhsa_user_sgpr_kernarg_segment_ptr 1
  .amdhsa_system_sgpr_workgroup_id_x 1
  .amdhsa_float_denorm_mode_32 3
.end_amdhsa_kernel
'''
    dst = [x for x in sys.argv[1:] if not x.startswith('--')]
    path = dst[0] if dst else 'gather_scatter__cheap_equivariant_egnn__graph.s'
    open(path,'w').write(out)
    print('wrote',path,len(out))
main()
```

```python
import sys, math
from asmlib import Asm

N=12500; E=800000; CH=3200; NCH=250; NBK=256; BN=49
ROW=4224
OFFS=0; ENT=0x110000; WF=0x420000; TA=0x500000; TB=0x700000; TM=0x900000
NF=18; WDO=NF*1024; WXO=NF*1024+256; WFSZ=NF*1024+512
NTW=98
CAP=3584
LOG2E=1.4426950408889634
def f32bits(x):
    import struct; return struct.unpack('<I',struct.pack('<f',x))[0]

DEBUG_TM = '--tm' in sys.argv
K1PRIO = '--nok1prio' not in sys.argv
TFIRST = '--tfirst' in sys.argv
SC1 = '' if '--nosc1' in sys.argv else (' sc0 sc1' if '--sc01' in sys.argv else ' sc1')
SC1T = '' if '--tplain' in sys.argv else SC1
SC1W = SC1 if '--wsc1' in sys.argv else ''
SC1O = ' sc1' if '--osc1' in sys.argv else ''
PFN = int(([x[6:] for x in sys.argv if x.startswith('--pfn=')] or ['0'])[0])
PFK1 = 2 if PFN else 0

F_W3=0
F_H1=2
F_H2=10

def stamp(a, idx, vreg, sp):
    if not DEBUG_TM: return
    a(f'''
    s_memrealtime s[{sp}:{sp+1}]
    s_waitcnt lgkmcnt(0)
    v_writelane_b32 v{vreg}, s{sp}, {idx}
    ''')
def stampc(a, idx, vreg, sp):
    if not DEBUG_TM: return
    a(f'''
    s_memtime s[{sp}:{sp+1}]
    s_waitcnt lgkmcnt(0)
    v_writelane_b32 v{vreg}, s{sp}, {idx}
    ''')
def stamp_store(a, vreg, sp, ws_lo, ws_hi, region, wave_s, vt):
    if not DEBUG_TM: return
    a(f'''
    s_lshl_b32 s{sp}, s2, 3
    s_add_u32 s{sp}, s{sp}, s{wave_s}
    s_lshl_b32 s{sp}, s{sp}, 7
    s_add_u32 s{sp}, s{sp}, {TM+region}
    s_add_u32 s{sp}, s{ws_lo}, s{sp}
    s_addc_u32 s{sp+1}, s{ws_hi}, 0
    v_and_b32 v{vt}, 63, v0
    v_lshlrev_b32 v{vt}, 2, v{vt}
    s_mov_b32 exec_hi, 0
    global_store_dword v{vt}, v{vreg}, s[{sp}:{sp+1}]
    s_mov_b64 exec, -1
    ''')

def gen_k1():
    a=Asm()
    K1_STAGE=8192; K1_WTOT=24576
    a.label('egnn_part_kernel')
    a(f'''
    s_cmp_gt_u32 s2, {NCH+NTW}
    s_cbranch_scc1 L1_end
    v_lshrrev_b32 v2, 6, v0
    v_and_b32 v1, 63, v0
    s_load_dwordx4 s[4:7], s[0:1], 24
    s_load_dwordx2 s[8:9], s[0:1], 80
    s_load_dwordx2 s[34:35], s[0:1], 16
    v_readfirstlane_b32 s3, v2
    s_cmp_eq_u32 s2, {NTW if TFIRST else NCH}
    s_cbranch_scc1 L1_wprep
    s_cmp_{'lt' if TFIRST else 'gt'}_u32 s2, {NTW if TFIRST else NCH}
    s_cbranch_scc1 L1_tables
    s_sub_u32 s38, s2, {NTW+1 if TFIRST else 0}
    s_setprio {3 if K1PRIO else 0}
    ''')
    if DEBUG_TM: a('v_mov_b32 v70, 0')
    stamp(a,0,70,36)
    a(f'''
    v_lshlrev_b32 v3, 4, v0
    v_mov_b32 v4, 0
    v_mov_b32 v5, 0
    v_mov_b32 v6, 0
    v_mov_b32 v7, 0
    ds_write_b128 v3, v[4:7]
    s_mul_i32 s10, s38, {CH*4}
    s_mul_i32 s11, s38, {ROW}
    v_add_u32 v48, 8192, v3
    s_waitcnt lgkmcnt(0)
    s_add_u32 s12, s6, s10
    s_addc_u32 s13, s7, 0
    s_mov_b32 s14, {CH*4}
    s_mov_b32 s15, 0x20000
    s_add_u32 s16, s4, s10
    s_addc_u32 s17, s5, 0
    s_mov_b32 s18, {CH*4}
    s_mov_b32 s19, 0x20000
    buffer_load_dwordx4 v[8:11], v3, s[12:15], 0 offen
    buffer_load_dwordx4 v[12:15], v48, s[12:15], 0 offen
    buffer_load_dwordx4 v[16:19], v3, s[16:19], 0 offen
    buffer_load_dwordx4 v[20:23], v48, s[16:19], 0 offen
    ''')
    if PFK1:
        a(f'''
        s_mul_i32 s10, s38, {CH*32}
        s_add_u32 s32, s34, s10
        s_addc_u32 s33, s35, 0
        s_cmp_lt_u32 s38, {PFN}
        s_cselect_b32 s34, {CH*32}, 0
        s_mov_b32 s35, 0x20000
        v_lshlrev_b32 v64, 7, v0
        v_add_u32 v65, {512*128}, v64
        buffer_load_dword v66, v64, s[32:35], 0 offen
        ''')
        if PFK1>1: a('buffer_load_dword v67, v65, s[32:35], 0 offen')
        a(f's_mul_i32 s10, s38, {CH*4}')
    a(f'''
    s_add_u32 s24, s8, {OFFS}
    s_addc_u32 s25, s9, 0
    s_add_u32 s24, s24, s11
    s_addc_u32 s25, s25, 0
    s_mov_b32 s26, {ROW}
    s_mov_b32 s27, 0x20000
    s_add_u32 s28, s8, {ENT}
    s_addc_u32 s29, s9, 0
    s_add_u32 s28, s28, s10
    s_addc_u32 s29, s29, 0
    s_mov_b32 s30, {CH*4}
    s_mov_b32 s31, 0x20000
    s_mov_b32 s22, -{BN}
    v_mov_b32 v50, 1
    v_lshlrev_b32 v51, 5, v0
    v_add_u32 v52, 16384, v51
    s_barrier
    s_waitcnt vmcnt({2+PFK1})
    ''')
    stamp(a,1,70,36)
    def keyslot(i, dst, tmp):
        a(f'''
        v_mul_u32_u24 v{tmp}, 21400, v{dst}
        v_lshrrev_b32 v{tmp}, 20, v{tmp}
        v_mad_i32_i24 v{40+i}, v{tmp}, s22, v{dst}
        v_and_b32 v{tmp+1}, 7, v{40+i}
        v_lshl_or_b32 v{tmp}, v{tmp}, 3, v{tmp+1}
        v_lshlrev_b32 v{24+i}, 2, v{tmp}
        ''')
    for u in range(4):
        keyslot(u, 8+u, 54+2*u)
        a(f'ds_add_rtn_u32 v{32+u}, v{24+u}, v50')
    a('''
    v_cmp_gt_u32 vcc, 288, v0
    s_and_saveexec_b64 s[20:21], vcc
    s_cbranch_execz L1_skipB1
    ''')
    for u in range(4):
        keyslot(4+u, 12+u, 54+2*u)
        a(f'ds_add_rtn_u32 v{36+u}, v{28+u}, v50')
    a.label('L1_skipB1')
    a('s_mov_b64 exec, s[20:21]')
    a(f's_waitcnt vmcnt({PFK1})')
    for i in range(8):
        base = 51 if i<4 else 52
        a(f'''
        v_lshrrev_b32 v54, 3, v{40+i}
        v_lshl_or_b32 v54, v{40+i}, 29, v54
        v_lshl_or_b32 v54, v{16+i}, 15, v54
        v_add3_u32 v{40+i}, v54, v{base}, {8*(i%4)}
        ''')
    a('''
    s_waitcnt lgkmcnt(0)
    s_barrier
    ''')
    stamp(a,2,70,36)
    a('''
    ds_read_b128 v[8:11], v3
    s_waitcnt lgkmcnt(0)
    v_add_u32 v12, v8, v9
    v_add_u32 v13, v12, v10
    v_add_u32 v14, v13, v11
    v_mov_b32 v15, v14
    ''')
    for sh in (1,2,4,8):
        a(f'v_add_u32_dpp v15, v15, v15 row_shr:{sh} row_mask:0xf bank_mask:0xf')
    a('v_add_u32_dpp v15, v15, v15 row_bcast:15 row_mask:0xa bank_mask:0xf')
    a('v_add_u32_dpp v15, v15, v15 row_bcast:31 row_mask:0xc bank_mask:0xf')
    a(f'''
    s_lshl_b32 s10, s3, 2
    s_add_u32 s10, s10, {K1_WTOT}
    v_mov_b32 v16, s10
    s_mov_b32 s20, 0
    s_brev_b32 s21, 1
    s_mov_b64 exec, s[20:21]
    ds_write_b32 v16, v15
    s_mov_b64 exec, -1
    v_and_b32 v17, 7, v1
    v_lshlrev_b32 v17, 2, v17
    v_add_u32 v17, {K1_WTOT}, v17
    s_waitcnt lgkmcnt(0)
    s_barrier
    ds_read_b32 v18, v17
    v_cmp_gt_u32 vcc, s3, v1
    s_waitcnt lgkmcnt(0)
    v_cndmask_b32 v18, 0, v18, vcc
    ''')
    for sh in (1,2,4):
        a(f'v_add_u32_dpp v18, v18, v18 row_shr:{sh} row_mask:0xf bank_mask:0xf')
    a(f'''
    v_readlane_b32 s10, v18, 7
    v_sub_u32 v15, v15, v14
    v_add_u32 v8+0, s10, v15
    '''.replace('v8+0','v19'))
    a(f'''
    v_add_u32 v21, v19, v12
    v_add_u32 v22, v19, v13
    v_add_u32 v20, v19, v8
    v_mov_b32 v56, v19
    v_mov_b32 v57, v20
    v_mov_b32 v58, v21
    v_mov_b32 v59, v22
    ds_write_b128 v3, v[56:59]
    v_lshl_or_b32 v60, v20, 16, v19
    v_lshl_or_b32 v61, v22, 16, v21
    v_lshlrev_b32 v62, 3, v0
    buffer_store_dwordx2 v[60:61], v62, s[24:27], 0 offen{SC1}
    s_cmp_lg_u32 s3, 0
    s_cbranch_scc1 L1_nosent
    s_mov_b32 s10, {CH | (CH<<16)}
    v_mov_b32 v63, s10
    v_lshlrev_b32 v62, 2, v1
    v_add_u32 v62, 4096, v62
    v_cmp_gt_u32 vcc, 32, v1
    s_and_saveexec_b64 s[20:21], vcc
    buffer_store_dword v63, v62, s[24:27], 0 offen{SC1}
    s_mov_b64 exec, s[20:21]
    ''')
    a.label('L1_nosent')
    a('''
    s_waitcnt lgkmcnt(0)
    s_barrier
    ''')
    stamp(a,3,70,36)
    for u in range(4):
        a(f'ds_read_b32 v{8+u}, v{24+u}')
    a('''
    v_cmp_gt_u32 vcc, 288, v0
    s_and_saveexec_b64 s[20:21], vcc
    s_cbranch_execz L1_skipB2
    ''')
    for u in range(4):
        a(f'ds_read_b32 v{12+u}, v{28+u}')
    a('s_waitcnt lgkmcnt(0)')
    for u in range(4):
        a(f'v_add_lshl_u32 v{12+u}, v{12+u}, v{36+u}, 2')
    for u in range(4):
        a(f'ds_write_b32 v{12+u}, v{44+u} offset:{K1_STAGE}')
    a.label('L1_skipB2')
    a('s_mov_b64 exec, s[20:21]')
    a('s_waitcnt lgkmcnt(0)')
    for u in range(4):
        a(f'v_add_lshl_u32 v{8+u}, v{8+u}, v{32+u}, 2')
    for u in range(4):
        a(f'ds_write_b32 v{8+u}, v{40+u} offset:{K1_STAGE}')
    a(f'''
    s_waitcnt lgkmcnt(0)
    s_barrier
    ds_read_b128 v[8:11], v3 offset:{K1_STAGE}
    ds_read_b128 v[12:15], v3 offset:{K1_STAGE+8192}
    s_waitcnt lgkmcnt(1)
    buffer_store_dwordx4 v[8:11], v3, s[28:31], 0 offen{SC1}
    s_waitcnt lgkmcnt(0)
    buffer_store_dwordx4 v[12:15], v48, s[28:31], 0 offen{SC1}
    ''')
    stamp(a,4,70,36)
    if DEBUG_TM: a('s_waitcnt vmcnt(0)')
    stamp(a,5,70,36)
    stamp_store(a,70,36,8,9,0,3,69)
    a('s_endpgm')
    a.label('L1_wprep')
    a(f'''
    s_load_dwordx2 s[10:11], s[0:1], 40
    s_load_dwordx2 s[12:13], s[0:1], 48
    s_load_dwordx2 s[14:15], s[0:1], 56
    v_and_b32 v2, 31, v1
    v_lshrrev_b32 v3, 5, v1
    v_lshlrev_b32 v4, 4, v1
    s_waitcnt lgkmcnt(0)
    s_mov_b32 s16, s10
    s_mov_b32 s17, s11
    s_mov_b32 s18, {145*64*2}
    s_mov_b32 s19, 0x20000
    s_mov_b32 s20, s14
    s_mov_b32 s21, s15
    s_mov_b32 s22, {128*64*2}
    s_mov_b32 s23, 0x20000
    s_mov_b32 s24, s12
    s_mov_b32 s25, s13
    s_mov_b32 s26, {64*2}
    s_mov_b32 s27, 0x20000
    s_add_u32 s28, s8, {WF}
    s_addc_u32 s29, s9, 0
    s_mov_b32 s30, {WFSZ}
    s_mov_b32 s31, 0x20000
    s_mov_b32 s32, {f32bits(-LOG2E)}
    v_lshlrev_b32 v5, 1, v2
    v_lshl_add_u32 v6, v3, 10, v5
    v_lshl_add_u32 v7, v3, 9, v5
    v_lshlrev_b32 v8, 3, v3
    ''')
    frags=[]
    for blk in range(2): frags.append((F_W3+blk,'e',129,blk,'std',True))
    for s in range(4):
        for blk in range(2): frags.append((F_H1+2*s+blk,'h',16*s,blk,'std',False))
    for blk in range(2):
        for sp in range(2):
            for b2 in range(2): frags.append((F_H2+(blk*2+sp)*2+b2,'h',64+32*blk+16*sp,b2,'perm',False))
    assert len(frags)==NF
    for wv in range(8):
        a(f's_cmp_eq_u32 s3, {wv}')
        a(f's_cbranch_scc1 L1_w{wv}')
    a('s_endpgm')
    for wv in range(8):
        a.label(f'L1_w{wv}')
        mine=[f for i,f in enumerate(frags) if i%8==wv]
        for q,(F,srcn,row0,blk,kind,scaled) in enumerate(mine):
            r=16+8*q
            srd={'e':'s[16:19]','h':'s[20:23]','x':'s[24:27]'}[srcn]
            if kind=='wx':
                a(f'v_add_u32 v10, {row0*2}, v8')
                for t in range(8):
                    T=(t&3)+8*(t>>2)
                    a(f'buffer_load_ushort v{r+t}, v10, {srd}, 0 offen offset:{T*2}')
            else:
                vb = 6 if kind=='std' else 7
                a(f'v_add_u32 v10, {row0*128+blk*64}, v{vb}')
                for t in range(8):
                    T= t if kind=='std' else (t&3)+8*(t>>2)
                    a(f'buffer_load_ushort v{r+t}, v10, {srd}, 0 offen offset:{T*128}')
        if wv==0:
            a(f'''
            v_lshlrev_b32 v11, 1, v1
            v_add_u32 v11, {128*128}, v11
            buffer_load_ushort v12, v11, s[16:19], 0 offen
            ''')
        if wv==1:
            a(f'''
            v_and_b32 v11, 3, v1
            v_bfe_u32 v12, v1, 2, 2
            v_lshl_add_u32 v11, v12, 3, v11
            v_bfe_u32 v12, v1, 4, 1
            v_lshl_add_u32 v11, v12, 5, v11
            v_lshl_add_u32 v11, v3, 2, v11
            v_lshlrev_b32 v11, 1, v11
            buffer_load_ushort v12, v11, s[24:27], 0 offen
            ''')
        a('s_waitcnt vmcnt(0)')
        for q,(F,srcn,row0,blk,kind,scaled) in enumerate(mine):
            r=16+8*q
            if scaled:
                for t in range(8):
                    a(f'v_lshlrev_b32 v{r+t}, 16, v{r+t}')
                for t in range(8):
                    a(f'v_mul_f32 v{r+t}, s32, v{r+t}')
                for t in range(4):
                    a(f'v_cvt_pk_bf16_f32 v{64+t}, v{r+2*t}, v{r+2*t+1}')
            else:
                for t in range(4):
                    a(f'v_lshl_or_b32 v{64+t}, v{r+2*t+1}, 16, v{r+2*t}')
            a(f'v_add_u32 v10, {F*1024}, v4')
            a(f'buffer_store_dwordx4 v[64:67], v10, s[28:31], 0 offen{SC1W}')
            a('s_nop 1')
        if wv==0:
            a(f'''
            v_lshlrev_b32 v12, 16, v12
            v_mul_f32 v12, s32, v12
            v_cvt_pk_bf16_f32 v13, v12, v12
            v_and_b32 v14, 0xffff0000, v13
            v_sub_f32 v12, v12, v14
            v_cvt_pk_bf16_f32 v12, v12, v12
            v_and_b32 v12, 0xffff0000, v12
            v_and_b32 v13, 0xffff, v13
            v_or_b32 v13, v13, v12
            v_and_b32 v11, 31, v1
            v_lshlrev_b32 v11, 3, v11
            v_lshl_add_u32 v11, v3, 2, v11
            v_add_u32 v11, {WDO}, v11
            buffer_store_dword v13, v11, s[28:31], 0 offen
            ''')
        if wv==1:
            a(f'''
            v_lshlrev_b32 v12, 16, v12
            v_lshlrev_b32 v11, 2, v1
            v_add_u32 v11, {WXO}, v11
            buffer_store_dword v12, v11, s[28:31], 0 offen
            ''')
        if DEBUG_TM:
            a('s_waitcnt vmcnt(0)\nv_mov_b32 v70, 0')
            stamp(a,5,70,36)
            stamp_store(a,70,36,8,9,0,3,69)
        a('s_endpgm')
    a.label('L1_tables')
    if DEBUG_TM: a('v_mov_b32 v15, 0')
    stamp(a,0,15,36)
    a(f"""
    s_load_dwordx2 s[10:11], s[0:1], 0
    s_load_dwordx2 s[12:13], s[0:1], 40
    s_sub_u32 s14, s2, {0 if TFIRST else NCH+1}
    s_lshl_b32 s14, s14, 7
    s_lshr_b32 s33, s3, 1
    s_lshl_b32 s33, s33, 5
    s_and_b32 s15, s3, 1
    v_and_b32 v2, 31, v1
    v_lshrrev_b32 v3, 5, v1
    v_lshrrev_b32 v8, 3, v1
    v_and_b32 v9, 7, v1
    v_lshrrev_b32 v10, 4, v1
    s_waitcnt lgkmcnt(0)
    s_mov_b32 s16, s10
    s_or_b32 s17, s11, 0x800000
    s_mov_b32 s18, {N}
    s_mov_b32 s19, 0x20000
    s_mov_b32 s20, s12
    s_mov_b32 s21, s13
    s_mov_b32 s22, {128*128}
    s_mov_b32 s23, 0x20000
    s_mul_i32 s34, s15, {TB-TA}
    s_add_u32 s34, s34, {TA}
    s_add_u32 s24, s8, s34
    s_addc_u32 s25, s9, 0
    s_or_b32 s25, s25, 0x800000
    s_mov_b32 s26, {N}
    s_mov_b32 s27, 0x20000
    """)
    for r in range(2):
        a(f"""
        s_lshl_b32 s34, s3, 1
        s_add_u32 s34, s34, {r}
        s_lshl_b32 s35, s34, 3
        s_add_u32 s35, s35, s14
        v_add_u32 v4, s35, v8
        v_add_u32 v5, {4*r}, v10
        v_xor_b32 v5, v5, v9
        v_lshlrev_b32 v5, 4, v5
        s_lshl_b32 s34, s34, 10
        s_add_u32 m0, s34, 16384
        s_nop 0
        buffer_load_dwordx4 v[4:5], s[16:19], 0 idxen offen lds
        """)
    a(f"""
    v_lshlrev_b32 v6, 4, v1
    s_lshl_b32 s34, s3, 10
    v_add_u32 v6, s34, v6
    s_mov_b32 m0, s34
    v_add_u32 v7, 8192, v6
    buffer_load_dwordx4 v6, s[20:23], 0 offen lds
    s_add_u32 m0, s34, 8192
    s_nop 0
    buffer_load_dwordx4 v7, s[20:23], 0 offen lds
    v_and_b32 v8, 15, v1
    v_lshrrev_b32 v9, 2, v8
    v_lshl_add_u32 v9, v3, 3, v9
    v_lshlrev_b32 v9, 7, v9
    v_bfe_u32 v10, v1, 4, 1
    v_lshl_add_u32 v9, v10, 5, v9
    v_and_b32 v10, 3, v1
    v_lshl_add_u32 v9, v10, 3, v9
    s_lshl_b32 s34, s15, 13
    v_add_u32 v9, s34, v9
    v_add_u32 v10, s33, v2
    v_lshlrev_b32 v10, 7, v10
    v_add_u32 v10, 16384, v10
    v_bfe_u32 v11, v2, 1, 3
    s_mov_b32 s35, {f32bits(-LOG2E)}
    s_waitcnt vmcnt(0)
    """)
    stamp(a,1,15,36)
    a('s_barrier')
    for s_ in range(4):
        a(f"""
        v_add_u32 v12, {2*s_}, v3
        v_xor_b32 v12, v12, v11
        v_lshl_add_u32 v12, v12, 4, v10
        ds_read_b128 v[{16+4*s_}:{19+4*s_}], v12
        """)
    for s_ in range(4):
        for blk in range(2):
            r=32+4*(2*s_+blk)
            a(f'ds_read_b64_tr_b16 v[{r}:{r+1}], v9 offset:{2048*s_+64*blk}')
            a(f'ds_read_b64_tr_b16 v[{r+2}:{r+3}], v9 offset:{2048*s_+64*blk+512}')
        if s_==1: a('s_waitcnt lgkmcnt(0)')
    a('s_waitcnt lgkmcnt(0)')
    a('s_barrier')
    stamp(a,2,15,36)
    for blk in range(2):
        D=f'v[{64+16*blk}:{79+16*blk}]'
        for s_ in range(4):
            C = D if s_>0 else '0'
            r=32+4*(2*s_+blk)
            a(f'v_mfma_f32_32x32x16_bf16 {D}, v[{r}:{r+3}], v[{16+4*s_}:{19+4*s_}], {C}')
    a(f"""
    s_lshl_b32 s34, s3, 12
    v_lshlrev_b32 v4, 7, v2
    v_add_u32 v4, s34, v4
    v_and_b32 v5, 7, v2
    v_lshlrev_b32 v5, 4, v5
    """)
    for blk in range(2):
        for i in range(16):
            a(f'v_mul_f32 v{64+16*blk+i}, s35, v{64+16*blk+i}')
    a("""
    s_cmp_eq_u32 s15, 0
    s_cbranch_scc1 L1_tabA
    v_lshl_add_u32 v4, v3, 3, v4
    """)
    for blk in range(2):
        for q in range(8):
            a(f'v_cvt_pk_bf16_f32 v{32+8*blk+q}, v{64+16*blk+2*q}, v{64+16*blk+2*q+1}')
        for m in range(4):
            a(f'v_xor_b32 v6, {16*(4*blk+m)}, v5')
            a(f'v_add_u32 v6, v6, v4')
            a(f'ds_write_b64 v6, v[{32+8*blk+2*m}:{33+8*blk+2*m}]')
    a('s_branch L1_tabS')
    a.label('L1_tabA')
    for r in range(16):
        a(f'v_cvt_pk_bf16_f32 v{32+r}, v{64+r}, v{80+r}')
    a('v_lshlrev_b32 v7, 4, v3')
    for m in range(4):
        a(f'v_add_u32 v6, {32*m}, v7')
        a(f'v_xor_b32 v6, v6, v5')
        a(f'v_add_u32 v6, v6, v4')
        a(f'ds_write_b128 v6, v[{32+4*m}:{35+4*m}]')
    a.label('L1_tabS')
    stamp(a,3,15,36)
    a(f"""
    v_lshlrev_b32 v6, 4, v1
    v_add_u32 v6, s34, v6
    v_lshrrev_b32 v8, 3, v1
    v_and_b32 v9, 7, v1
    v_xor_b32 v9, v9, v8
    v_lshlrev_b32 v13, 4, v9
    s_add_u32 s14, s14, s33
    v_add_u32 v8, s14, v8
    s_waitcnt lgkmcnt(0)
    """)
    for i in range(4):
        a(f'ds_read_b128 v[{48+4*i}:{51+4*i}], v6 offset:{1024*i}')
    for i in range(4):
        a(f'v_add_u32 v12, {8*i}, v8')
        a(f's_waitcnt lgkmcnt({3-i})')
        a(f'buffer_store_dwordx4 v[{48+4*i}:{51+4*i}], v[12:13], s[24:27], 0 idxen offen{SC1T}')
    stamp(a,4,15,36)
    if DEBUG_TM: a('s_waitcnt vmcnt(0)')
    stamp(a,5,15,36)
    stamp_store(a,15,36,8,9,0,3,14)
    a('s_endpgm')
    a.label('L1_end')
    a('s_endpgm')
    return a.finalize(), 96, 40, 32768+64

L_G=0; L_R0=28672; L_RS=43264; L_S=50432; L_RING=66816; L_GTAB=148736; L_WTOT=156928; L_PD=157184; L_WST=158208; L_AST=L_WST+2560; L_HX=L_AST+2048; L_END=L_HX+1024
NHS=9
def hstage_addr(f): return L_GTAB+1024*f if f<8 else L_HX
SLOT=5120
vI=16; vW3=24; vW6=32; vS1=40; vS2=41; vD2=64; vD1=(96,128); vE=160; vX=192; vXE=208; vX6=212; vSF=216; vONE=224
vHA=228; vEAr=232; vX6r=233; vC1=234; vSTa=235; vC2=236; vMK2=237; vEAc=238; vOne=239; vHP=240
vSTb=15; vCD=14
vRSa=248; vR0a=249; vR0e=250; vGe=251; vR0=252; vG=253; vA1=254; vA2=255; vEAi=10; vEAo=11
vZero=vONE+1
vTM=12
sH=4; sEA=8; sOF=12; sEN=16; sPOS=20; sWF=24; sO0=28; sO1=32; sHD=36; sSEL=100; sTA=40
sWS=44
sW0=46; sW1=47; sV=3; sG=101; sCNT=48; sBASE=49; sNT=50; sT=51; sRB=52; sNODE0=53; sMK=89

ABL=set(x[6:] for x in sys.argv if x.startswith('--abl=') ) | ({'fprio','trim','pk','xmap','off2'} - set(x[5:] for x in sys.argv if x.startswith('--no=')))
OPT=dict(x[6:].split(':') for x in sys.argv if x.startswith('--opt='))
def optl(k,d): return [int(v.replace('n','-')) for v in OPT[k].split(',')] if k in OPT else d
TRIMK='trim'; PF2K='pf2'; TBK='tbpf'; XMK='xmap'; OFF2='off2'
EAF=''.join(' '+x for x in OPT.get('eaf','').split('+') if x); HF=''.join(' '+x for x in OPT.get('hf','').split('+') if x)
NH_ = 0 if 'noh' in ABL else N
NE_ = 0 if 'noea' in ABL else E*32
def gen_k2():
    a=Asm()
    def st(i): stamp(a,i,vTM,98)
    a.label('egnn_main_kernel')
    a(f'''
    s_cmp_ge_u32 s2, {NBK}
    s_cbranch_scc1 L2_end
    ''')
    if 'xmap' in ABL:
        a('s_and_b32 s4, s2, 7\ns_lshl_b32 s4, s4, 5\ns_lshr_b32 s2, s2, 3\ns_or_b32 s2, s2, s4')
    if DEBUG_TM: a(f'v_mov_b32 v{vTM}, 0')
    st(0)
    a(f'''
    s_load_dwordx2 s[44:45], s[0:1], 80
    s_load_dwordx4 s[36:39], s[0:1], 0
    s_load_dwordx2 s[40:41], s[0:1], 16
    s_load_dwordx2 s[42:43], s[0:1], 64
    v_and_b32 v1, 63, v0
    v_lshrrev_b32 v2, 6, v0
    v_lshrrev_b32 v3, 1, v0
    v_readfirstlane_b32 s{sV}, v2
    ''')
    if 'rot' in OPT:
        a(f'''
        s_lshr_b32 s54, s2, 5
        s_mul_i32 s54, s54, {int(OPT['rot'])}
        v_cmp_gt_u32 vcc, {NCH}, v3
        v_add_u32 v9, s54, v3
        v_subrev_u32 v10, {NCH}, v9
        s_movk_i32 s55, {NCH}
        v_cmp_gt_u32 s[56:57], s55, v9
        s_nop 1
        v_cndmask_b32 v9, v10, v9, s[56:57]
        v_cndmask_b32 v3, v3, v9, vcc
        ''')
    a(f'''
    v_and_b32 v9, 1, v0
    s_lshl_b32 s54, s2, 4
    s_mov_b32 s55, {ROW}
    {'v_mov_b32 v96, s54' if OFF2 in ABL else 'v_lshl_add_u32 v96, v9, 4, s54'}
    v_mad_u32_u24 v96, v3, s55, v96
    s_mov_b32 s{sOF+2}, {NCH*ROW}
    s_mov_b32 s{sOF+3}, 0x20000
    s_waitcnt lgkmcnt(0)
    s_add_u32 s{sOF}, s44, {OFFS}
    s_addc_u32 s{sOF+1}, s45, 0
    buffer_load_dwordx4 {'v[4:7]' if OFF2 in ABL else 'v[104:107]'}, v96, s[{sOF}:{sOF+3}], 0 offen
    {f'buffer_load_ushort v8, v96, s[{sOF}:{sOF+3}], 0 offen offset:16' if OFF2 in ABL else ''}
    ''')
    st(16)
    a(f"""
    s_mov_b32 s{sPOS}, s38
    s_mov_b32 s{sPOS+1}, s39
    s_mov_b32 s{sPOS+2}, {N*6}
    s_mov_b32 s{sPOS+3}, 0x20000
    s_add_u32 s{sWF}, s44, {WF}
    s_addc_u32 s{sWF+1}, s45, 0
    s_mov_b32 s{sWF+2}, {WFSZ}
    s_mov_b32 s{sWF+3}, 0x20000
    s_mov_b32 s{sW0}, 0
    s_mov_b32 s{sW1}, {NCH}
    s_mov_b32 s63, 2
    v_lshlrev_b32 v96, 4, v1
    s_lshl_b32 s58, s{sV}, 10
    v_add_u32 v96, s58, v96
    """)
    PE=optl('pe',[5])[0]
    assert PE<=9
    def posdma(r):
        a(f"""
        s_add_u32 m0, s58, {L_RING+8192*r}
        v_add_u32 v97, {8192*r}, v96
        buffer_load_dwordx4 v97, s[{sPOS}:{sPOS+3}], 0 offen lds
        """)
    chunks=[f"""
    s_mov_b32 s{sH}, s36
    s_or_b32 s{sH+1}, s37, 0x800000
    s_mov_b32 s{sH+2}, {N}
    s_mov_b32 s{sH+3}, 0x20000
    s_mov_b32 s{sEA}, s40
    s_mov_b32 s{sEA+1}, s41
    s_mov_b32 s{sEA+2}, {E*32}
    s_mov_b32 s{sEA+3}, 0x20000
    s_add_u32 s{sEN}, s44, {ENT}
    s_addc_u32 s{sEN+1}, s45, 0
    s_mov_b32 s{sEN+2}, {NCH*CH*4}
    s_mov_b32 s{sEN+3}, 0x20000
    """, f"""
    s_mov_b32 s{sO0}, s42
    s_or_b32 s{sO0+1}, s43, 0x800000
    s_mov_b32 s{sO0+2}, {N}
    s_mov_b32 s{sO0+3}, 0x20000
    s_add_u32 s{sO1}, s42, {N*128}
    s_addc_u32 s{sO1+1}, s43, 0
    s_mov_b32 s{sO1+2}, {N*6}
    s_mov_b32 s{sO1+3}, 0x20000
    s_add_u32 s{sHD}, s44, {TB}
    s_addc_u32 s{sHD+1}, s45, 0
    s_or_b32 s{sHD+1}, s{sHD+1}, 0x800000
    s_mov_b32 s{sHD+2}, {N}
    s_mov_b32 s{sHD+3}, 0x20000
    """, f"""
    s_add_u32 s{sTA}, s44, {TA}
    s_addc_u32 s{sTA+1}, s45, 0
    s_or_b32 s{sTA+1}, s{sTA+1}, 0x800000
    s_mov_b32 s{sTA+2}, {N}
    s_mov_b32 s{sTA+3}, 0x20000
    s_mul_i32 s{sRB}, s{sV}, {2*SLOT}
    s_add_u32 s{sRB}, s{sRB}, {L_RING}
    s_mov_b32 s{sMK}, 0xffffffe0
    s_mov_b32 s{sSEL}, 0x01000100
    v_lshrrev_b32 v98, 5, v1
    v_and_b32 v101, 1, v1
    v_xor_b32 v101, v101, v98
    v_lshlrev_b32 v{vEAc}, 4, v101
    """, f"""
    v_and_b32 v101, 7, v1
    v_lshrrev_b32 v102, 4, v1
    v_xor_b32 v103, v101, v102
    v_lshlrev_b32 v{vHP+1}, 4, v103
    v_lshlrev_b32 v{vHP+5}, 4, v103
    v_add_u32 v102, 4, v102
    v_xor_b32 v103, v101, v102
    v_lshlrev_b32 v{vHP+3}, 4, v103
    v_lshlrev_b32 v{vHP+7}, 4, v103
    """, f"""
    v_mov_b32 v{vX6}, 0
    v_mov_b32 v{vX6+1}, 0
    v_mov_b32 v{vX6+2}, 0
    v_mov_b32 v{vX6+3}, 0
    v_mfma_f32_32x32x16_bf16 v[{vD2}:{vD2+15}], v[{vX6}:{vX6+3}], v[{vX6}:{vX6+3}], 0
    v_mfma_f32_32x32x16_bf16 v[{vD2+16}:{vD2+31}], v[{vX6}:{vX6+3}], v[{vX6}:{vX6+3}], 0
    """]
    for k in range(max(PE,len(chunks))):
        if k<PE: posdma(k)
        if k<len(chunks): a(chunks[k])
    a(f"""
    s_cmp_eq_u32 s{sV}, 2
    s_cselect_b32 s54, {WDO}, s58
    s_cselect_b32 s55, 2048, s58
    v_lshlrev_b32 v97, 4, v1
    v_add_u32 v97, s54, v97
    s_add_u32 m0, s55, {L_WST}
    s_cmp_gt_u32 s{sV}, 2
    s_cbranch_scc1 L2_nowst
    v_cmp_gt_u32 vcc, 32, v1
    s_cmp_eq_u32 s{sV}, 2
    s_cselect_b64 exec, vcc, -1
    buffer_load_dwordx4 v97, s[{sWF}:{sWF+3}], 0 offen lds
    s_mov_b64 exec, -1
    """)
    a.label('L2_nowst')
    st(17)
    if TBK in ABL:
        a(f'''
        {'s_and_b32 s54, s2, 31' if XMK in ABL else 's_lshr_b32 s54, s2, 3'}
        s_mul_i32 s54, s54, 391
        s_lshl_b32 s55, s{sV}, 6
        v_add_u32 v100, s55, v1
        v_cmp_gt_u32 vcc, 391, v100
        v_add_u32 v100, s54, v100
        v_mov_b32 v101, 0
        v_mov_b32 v102, -1
        v_cndmask_b32 v100, v102, v100, vcc
        buffer_load_dword v52, v[100:101], s[{sHD}:{sHD+3}], 0 idxen offen
        ''')
    st(18)
    st(1)
    a(f's_waitcnt vmcnt({min(PE,9)+(1 if TBK in ABL else 0)})')
    if OFF2 not in ABL:
        for q in range(4):
            a(f'v_mov_b32_dpp v{4+q}, v{104+q} quad_perm:[0,0,2,2] row_mask:0xf bank_mask:0xf')
        a('v_mov_b32_dpp v8, v104 quad_perm:[1,1,3,3] row_mask:0xf bank_mask:0xf')
        a('v_and_b32 v8, 0xffff, v8')
    st(19)
    a('s_branch L2_counts')
    a.label('L2_batch')
    a(f"""
    s_barrier
    v_lshlrev_b32 v96, 4, v1
    s_lshl_b32 s58, s{sV}, 10
    v_add_u32 v96, s58, v96
    """)
    for r in range(PE): posdma(r)
    a.label('L2_counts')
    a(f"""
    v_alignbit_b32 v100, v5, v4, 16
    v_alignbit_b32 v101, v6, v5, 16
    v_alignbit_b32 v102, v7, v6, 16
    v_alignbit_b32 v103, v8, v7, 16
    v_and_b32 v105, 0xffff, v4
    v_sub_u32 v104, v8, v105
    s_sub_u32 s54, s{sW1}, s{sW0}
    v_subrev_u32 v106, s{sW0}, v3
    v_cmp_gt_u32 vcc, s54, v106
    s_mov_b32 s55, {CH*4}
    v_lshlrev_b32 v107, 2, v105
    v_lshl_add_u32 v107, v9, 4, v107
    v_cndmask_b32 v104, 0, v104, vcc
    v_lshlrev_b32 v109, 2, v9
    v_sub_u32 v109, v104, v109
    v_max_i32 v109, 0, v109
    v_mad_u32_u24 v107, v3, s55, v107
    """)
    for i in range(4):
        a(f'v_cmp_lt_u32 s[{90+2*i}:{91+2*i}], {8*i}, v109')
    for i in range(4):
        a(f's_mov_b64 exec, s[{90+2*i}:{91+2*i}]')
        a(f's_cbranch_execz L2_e{i}')
        a(f'buffer_load_dwordx4 v[{192+4*i}:{195+4*i}], v107, s[{sEN}:{sEN+3}], 0 offen offset:{32*i}')
        a.label(f'L2_e{i}')
    a('s_mov_b64 exec, -1')
    st(2)
    a(f"""
    v_pk_sub_u16 v100, v100, v4
    v_pk_sub_u16 v101, v101, v5
    v_pk_sub_u16 v102, v102, v6
    v_pk_sub_u16 v103, v103, v7
    v_cmp_eq_u32 s[56:57], 0, v9
    """)
    for q in range(4):
        a(f'v_cndmask_b32 v{100+q}, 0, v{100+q}, vcc')
    for q in range(5):
        a(f'v_cndmask_b32 v{112+q}, 0, v{100+q}, s[56:57]')
    for sh in (1,2,4,8):
        for q in range(5):
            a(f'v_add_u32_dpp v{112+q}, v{112+q}, v{112+q} row_shr:{sh} row_mask:0xf bank_mask:0xf')
    for q in range(5):
        a(f'v_add_u32_dpp v{112+q}, v{112+q}, v{112+q} row_bcast:15 row_mask:0xa bank_mask:0xf')
    for q in range(5):
        a(f'v_add_u32_dpp v{112+q}, v{112+q}, v{112+q} row_bcast:31 row_mask:0xc bank_mask:0xf')
    st(21)
    a(f"""
    s_lshl_b32 s54, s{sV}, 5
    s_add_u32 s54, s54, {L_WTOT}
    v_mov_b32 v117, s54
    s_mov_b32 s56, 0
    s_brev_b32 s57, 1
    s_mov_b64 exec, s[56:57]
    ds_write_b128 v117, v[112:115]
    ds_write_b32 v117, v116 offset:16
    s_mov_b64 exec, -1
    v_and_b32 v118, 7, v1
    v_lshlrev_b32 v118, 5, v118
    v_add_u32 v118, {L_WTOT}, v118
    s_waitcnt lgkmcnt(0)
    s_barrier
    ds_read_b128 v[120:123], v118
    ds_read_b32 v124, v118 offset:16
    """)
    st(3)
    a('s_waitcnt lgkmcnt(0)')
    for sh in (1,2,4):
        for q in range(5):
            a(f'v_add_u32_dpp v{120+q}, v{120+q}, v{120+q} row_shr:{sh} row_mask:0xf bank_mask:0xf')
    for q in range(5):
        a(f'v_readlane_b32 s{58+q}, v{120+q}, 7')
    a(f's_sub_u32 s54, s{sV}, 1')
    a(f's_max_i32 s54, s54, 0')
    for q in range(4):
        a(f'v_readlane_b32 s{64+q}, v{120+q}, s54')
    a(f's_cmp_eq_u32 s{sV}, 0')
    for q in range(4):
        a(f's_cselect_b32 s{64+q}, 0, s{64+q}')
    for q in range(4):
        a(f's_and_b32 s{68+2*q}, s{58+q}, 0xffff')
        a(f's_lshr_b32 s{69+2*q}, s{58+q}, 16')
    a('s_mov_b32 s84, 0')
    for g in range(8):
        a(f"""
        s_mov_b32 s{76+g}, s84
        s_add_u32 s54, s{68+g}, 31
        s_andn2_b32 s54, s54, 31
        s_add_u32 s84, s84, s54
        """)
    a(f"""
    s_max_u32 s54, s84, s62
    s_cmp_le_u32 s54, {CAP}
    s_cbranch_scc1 L2_fits
    s_add_u32 s{sW1}, s{sW0}, 1
    s_waitcnt vmcnt(0) lgkmcnt(0)
    s_branch L2_batch
    """)
    a.label('L2_fits')
    a(f"""
    s_cmp_eq_u32 s63, 1
    s_cbranch_scc1 L2_pidone
    """)
    if 'nopi' in ABL:
        a(f's_mov_b32 s{sG}, s{sV}')
    else:
        for g in range(8):
            a(f's_lshl_b32 s54, s{68+g}, 3')
            a(f's_add_u32 s{90+g}, s54, {7-g}')
            a(f'v_writelane_b32 v126, s{90+g}, {g}')
        a('v_mov_b32 v127, 0')
        for h in range(2):
            for k in range(4):
                pr=(56,58,54,64)[k] if False else None
            for k in range(4):
                a(f'v_cmp_gt_u32 s[{(54,56,58,60)[k]}:{(54,56,58,60)[k]+1}], s{90+4*h+k}, v126')
            for k in range(4):
                a(f'v_addc_co_u32 v127, vcc, 0, v127, s[{(54,56,58,60)[k]}:{(54,56,58,60)[k]+1}]')
        a(f"""
        s_sub_u32 s54, 11, s{sV}
        s_cmp_lt_u32 s{sV}, 4
        s_cselect_b32 s54, s{sV}, s54
        v_cmp_eq_u32 vcc, s54, v127
        s_nop 3
        s_and_b32 s54, vcc_lo, 0xff
        s_ff1_i32_b32 s{sG}, s54
        """)
    a(f"""
    s_mul_i32 s{sNODE0}, s2, {BN}
    s_add_u32 s{sNODE0}, s{sNODE0}, s{sG}
    """)
    a.label('L2_pidone')
    a(f's_mov_b32 s{sCNT}, s68')
    a(f's_mov_b32 s{sBASE}, s76')
    for g in range(1,8):
        a(f"""
        s_cmp_eq_u32 s{sG}, {g}
        s_cselect_b32 s{sCNT}, s{68+g}, s{sCNT}
        s_cselect_b32 s{sBASE}, s{76+g}, s{sBASE}
        """)
    a(f"""
    s_add_u32 s{sNT}, s{sCNT}, 31
    s_lshr_b32 s{sNT}, s{sNT}, 5
    """)
    for q in range(4):
        a(f's_pack_ll_b32_b16 s{85+q}, s{76+2*q}, s{77+2*q}')
        a(f's_add_u32 s{85+q}, s{85+q}, s{64+q}')
        a(f's_add_u32 s{85+q}, s{85+q}, {CH | (CH<<16)}')
    a(f"""
    v_lshl_or_b32 v105, v105, 16, v105
    v_mul_u32_u24 v106, 0x100010, v9
    """)
    for q in range(4):
        a(f"""
        v_sub_u32 v{112+q}, v{112+q}, v{100+q}
        v_add_u32 v{112+q}, s{85+q}, v{112+q}
        v_sub_u32 v{120+q}, v{4+q}, v105
        v_sub_u32 v{112+q}, v{112+q}, v{120+q}
        v_lshl_add_u32 v{112+q}, v{112+q}, 2, v106
        """)
    a(f"""
    v_lshlrev_b32 v108, 4, v0
    v_add_u32 v108, {L_GTAB}, v108
    ds_write_b128 v108, v[112:115]
    v_mov_b32 v104, v109
    s_mov_b32 s54, {CH*32}
    v_mul_lo_u32 v110, v3, s54
    v_mov_b32 v111, {4*CH+4*CAP}
    v_lshlrev_b32 v96, 4, v1
    s_lshl_b32 s58, s{sV}, 10
    v_add_u32 v96, s58, v96
    s_waitcnt vmcnt(0)
    """)
    st(4)
    if PE<10:
        a(f"""
        v_lshlrev_b32 v96, 4, v1
        s_lshl_b32 s58, s{sV}, 10
        v_add_u32 v96, s58, v96
        """)
        for r in range(PE,10):
            if r==9:
                a(f's_cmp_ge_u32 s{sV}, 2\ns_cbranch_scc1 L2_posdone2')
            a(f"""
            s_add_u32 m0, s58, {L_RING+8192*r}
            v_add_u32 v97, {8192*r}, v96
            buffer_load_dwordx4 v97, s[{sPOS}:{sPOS+3}], 0 offen lds
            """)
        a.label('L2_posdone2')
    a(f"""
    s_cmp_eq_u32 s63, 1
    s_cbranch_scc1 L2_noA
    s_lshl_b32 s54, s{sV}, 10
    s_add_u32 s55, s54, {L_RING+75776}
    s_add_u32 s54, s54, {L_AST-6*1024}
    s_cmp_lt_u32 s{sV}, 6
    s_cselect_b32 s62, s55, s54
    v_lshrrev_b32 v120, 3, v1
    v_lshlrev_b32 v120, 3, v120
    v_add_u32 v121, s{sG}, v120
    v_add_u32 v120, s{sNODE0}, v120
    v_cmp_gt_u32 vcc, {BN}, v121
    v_mov_b32 v122, -1
    v_and_b32 v123, 7, v1
    v_lshlrev_b32 v123, 4, v123
    v_cndmask_b32 v122, v122, v120, vcc
    s_mov_b32 m0, s62
    s_nop 0
    buffer_load_dwordx4 v[122:123], s[{sTA}:{sTA+3}], 0 idxen offen lds
    """)
    a.label('L2_noA')
    st(20)
    def quad(qreg, i, dyn=False):
        for u in range(4):
            a(f'v_lshrrev_b32 v{140+u}, 29, v{qreg+u}')
            a(f'v_lshl_add_u32 v{140+u}, v{140+u}, 1, v108')
            a(f'ds_read_u16 v{144+u}, v{140+u}')
        for u in range(4):
            if dyn: a(f'v_cmp_lt_u32 s[{90+2*u}:{91+2*u}], {u}, v104')
            else:   a(f'v_cmp_lt_u32 s[{90+2*u}:{91+2*u}], {8*i+u}, v104')
        a('s_waitcnt lgkmcnt(0)')
        for u in range(4):
            if dyn: a(f'v_add_u32 v{144+u}, v{144+u}, v149')
            a(f'v_cndmask_b32 v{144+u}, v111, v{144+u}, s[{90+2*u}:{91+2*u}]')
        ko = 0 if dyn else 8*i
        for u in range(4):
            a(f'ds_write_b32 v{144+u}, v{qreg+u} offset:{L_R0-4*CH+4*(ko+u)}')
            a(f'ds_write_b32 v{144+u}, v110 offset:{L_S-4*CH+4*(ko+u)}')
    for i in range(4):
        quad(192+4*i, i)
        a(f'v_cmp_lt_u32 vcc, {8*(i+1)}, v104')
        a('s_cbranch_vccz L2_scat_done')
    a(f'''
    v_subrev_u32 v104, 32, v104
    v_cmp_gt_i32 vcc, 0, v104
    v_mov_b32 v149, 128
    v_add_u32 v107, 128, v107
    v_cndmask_b32 v104, v104, 0, vcc
    ''')
    a.label('L2_scat_loop')
    a(f'buffer_load_dwordx4 v[192:195], v107, s[{sEN}:{sEN+3}], 0 offen')
    a('s_waitcnt vmcnt(0)')
    quad(192, 0, dyn=True)
    a(f'''
    v_subrev_u32 v104, 8, v104
    v_add_u32 v149, 32, v149
    v_add_u32 v107, 32, v107
    v_cmp_gt_i32 vcc, 0, v104
    s_nop 1
    v_cndmask_b32 v104, v104, 0, vcc
    v_cmp_lt_u32 vcc, 0, v104
    s_cbranch_vccnz L2_scat_loop
    ''')
    a.label('L2_scat_done')
    st(5)
    a('''
    s_waitcnt vmcnt(0) lgkmcnt(0)
    s_barrier
    ''')
    st(6)
    if 'hst' in ABL:
        a(f"""
        s_lshl_b32 s54, s{sV}, 10
        v_lshlrev_b32 v97, 4, v1
        s_add_u32 s55, s54, {F_H1*1024}
        v_add_u32 v98, s55, v97
        s_add_u32 m0, s54, {L_GTAB}
        s_cmp_lg_u32 s{sV}, 0
        buffer_load_dwordx4 v98, s[{sWF}:{sWF+3}], 0 offen lds
        s_cbranch_scc1 L2_hst1
        v_add_u32 v98, {(F_H1+8)*1024}, v97
        s_mov_b32 m0, {L_HX}
        s_nop 0
        buffer_load_dwordx4 v98, s[{sWF}:{sWF+3}], 0 offen lds
        """)
        a.label('L2_hst1')
    a(f"""
    v_lshrrev_b32 v100, 2, v1
    v_lshlrev_b32 v100, 3, v100
    v_add_u32 v100, s{sNODE0}, v100
    v_mul_u32_u24 v100, 6, v100
    v_and_b32 v102, 3, v1
    v_lshl_add_u32 v100, v102, 1, v100
    v_add_u32 v100, {L_RING}, v100
    ds_read_u16 v101, v100
    s_cmp_eq_u32 s63, 1
    s_cbranch_scc1 L2_noC
    s_mov_b32 s63, 1
    v_lshlrev_b32 v96, 4, v1
    v_add_u32 v96, {L_WST}, v96
    ds_read_b128 v[{vW3}:{vW3+3}], v96
    ds_read_b128 v[{vW3+4}:{vW3+7}], v96 offset:1024
    v_and_b32 v120, 31, v1
    v_lshrrev_b32 v121, 5, v1
    v_lshlrev_b32 v122, 2, v120
    v_lshl_add_u32 v122, v121, 9, v122
    v_add_u32 v122, s62, v122
    """)
    for q in range(4):
        a(f'ds_read_b32 v{40+q}, v122 offset:{128*q}')
    a(f"""
    v_lshlrev_b32 v120, 3, v120
    v_add_u32 v120, {L_WST+2048}, v120
    ds_read_b64 v[44:45], v120
    v_cmp_gt_u32 vcc, 32, v1
    s_waitcnt lgkmcnt(0)
    v_cndmask_b32 v44, v44, 0, vcc
    v_cndmask_b32 v45, v45, 0, vcc
    """)
    for q in range(4):
        a(f'v_and_b32 v{vW6+q}, 0xffff, v{40+q}')
        a(f'v_lshrrev_b32 v{vW6+4+q}, 16, v{40+q}')
    a(f"""
    v_or_b32 v{vW6+3}, v{vW6+3}, v44
    v_or_b32 v{vW6+7}, v{vW6+7}, v45
    """)
    a.label('L2_noC')
    a(f"""
    s_lshl_b32 s54, s{sV}, 7
    s_add_u32 s54, s54, {L_PD}
    v_lshlrev_b32 v97, 2, v1
    v_add_u32 v97, s54, v97
    s_waitcnt lgkmcnt(0)
    v_lshlrev_b32 v101, 16, v101
    s_mov_b32 exec_hi, 0
    ds_write_b32 v97, v101
    s_mov_b64 exec, -1
    """)
    a(f'''
    s_lshl_b32 s54, s{sV}, 7
    s_add_u32 s54, s54, {L_PD}
    v_mov_b32 v98, s54
    v_mov_b32 v99, {L_RING}
    v_add_u32 v96, s{sBASE}, v1
    v_mov_b32 v97, v1
    s_mov_b32 s{sT}, 0
    s_mov_b32 s55, 0xffff0000
    s_movk_i32 s56, 0x7fff
    s_mov_b32 s{sHD+2}, {N}
    s_mov_b32 s{sEA+2}, {E*32}
    ''')
    a(f'''
    s_lshl_b32 s54, s{sNT}, 5
    s_sub_u32 s54, s54, 32
    v_add_u32 v100, s54, v1
    v_cmp_le_u32 s[58:59], s{sCNT}, v100
    v_cmp_gt_u32 vcc, 32, v1
    s_and_b64 vcc, vcc, s[58:59]
    s_cmp_eq_u32 s{sNT}, 0
    s_cbranch_scc1 L2_nodummy
    s_and_saveexec_b64 s[58:59], vcc
    s_cbranch_execz L2_dummy_restore
    v_add_u32 v100, s{sBASE}, v100
    v_lshlrev_b32 v101, 2, v100
    v_mov_b32 v102, 28
    ds_write_b32 v101, v102 offset:{L_R0}
    v_lshlrev_b32 v101, 1, v100
    v_mov_b32 v102, 0
    v_mov_b32 v103, 0
    ds_write_b16 v101, v102 offset:{L_RS}
    v_lshlrev_b32 v101, 3, v100
    ds_write_b64 v101, v[102:103] offset:{L_G}
    ''')
    a.label('L2_dummy_restore')
    a('s_mov_b64 exec, s[58:59]')
    a.label('L2_nodummy')
    NI=4
    a.label('L2_geo_loop')
    a(f'''
    s_cmp_ge_u32 s{sT}, s{sCNT}
    s_cbranch_scc1 L2_geo_done
    ''')
    def R(it,k): return 112+20*it+k
    for it in range(NI):
        a(f'''
        v_add_u32 v{R(it,0)}, {64*it}, v96
        v_lshlrev_b32 v{R(it,0)}, 2, v{R(it,0)}
        ds_read_b32 v{R(it,1)}, v{R(it,0)} offset:{L_R0}
        ds_read_b32 v{R(it,2)}, v{R(it,0)} offset:{L_S}
        ''')
    for it in range(NI):
        a(f'''
        v_add_u32 v{R(it,16)}, {64*it}, v97
        v_cmp_gt_u32 s[{90+2*it}:{91+2*it}], s{sCNT}, v{R(it,16)}
        ''')
    for it in range(NI):
        e=R(it,1); wb=R(it,2)
        a(f's_waitcnt lgkmcnt({2*(NI-1-it)+2*it})')
        a(f'''
        v_bfe_u32 v{R(it,3)}, v{e}, 15, 14
        v_and_b32 v{R(it,4)}, 7, v{e}
        v_mad_u32_u24 v{R(it,5)}, v{R(it,3)}, 6, v99
        v_lshl_add_u32 v{R(it,7)}, v{R(it,4)}, 4, v98
        v_and_b32 v{R(it,5)}, -4, v{R(it,5)}
        ds_read_b96 v[{R(it,8)}:{R(it,10)}], v{R(it,7)}
        ds_read2_b32 v[{R(it,12)}:{R(it,13)}], v{R(it,5)} offset1:1
        v_and_b32 v{R(it,5)}, s56, v{e}
        v_lshl_add_u32 v{wb}, v{R(it,5)}, 2, v{wb}
        v_lshlrev_b32 v{R(it,6)}, 4, v{R(it,3)}
        ''')
    if 'nopf' not in ABL:
        a(f'''
        s_cmp_lg_u32 s{sT}, 0
        s_cbranch_scc1 L2_nopf
        ''')
        a(f'''
        v_and_b32 v48, s{sMK}, v{R(0,2)}
        v_mov_b32 v51, 0
        v_mov_b32 v50, v{R(0,3)}
        s_mov_b32 exec_hi, {-1 if PF2K in ABL else 0}
        buffer_load_dword v48, v48, s[{sEA}:{sEA+3}], 0 offen
        s_mov_b32 exec_hi, 0
        buffer_load_dword v49, v[50:51], s[{sHD}:{sHD+3}], 0 idxen offen
        s_mov_b64 exec, -1
        ''')
        a.label('L2_nopf')
    for it in range(NI):
        pd=R(it,8); ps=R(it,12); sh=R(it,6); t0=R(it,4); t1=R(it,5); t2=R(it,7); o=R(it,14); t3=R(it,17)
        a(f's_waitcnt lgkmcnt({2*(NI-1-it)+3*it})')
        a(f'''
        v_alignbit_b32 v{t0}, v{ps+1}, v{ps}, v{sh}
        v_lshrrev_b32 v{t2}, v{sh}, v{ps+1}
        v_lshlrev_b32 v{t1}, 16, v{t0}
        v_and_b32 v{t0}, s55, v{t0}
        v_lshlrev_b32 v{t2}, 16, v{t2}
        v_sub_f32 v{t1}, v{pd}, v{t1}
        v_sub_f32 v{t0}, v{pd+1}, v{t0}
        v_sub_f32 v{t2}, v{pd+2}, v{t2}
        v_mul_f32 v{t3}, v{t1}, v{t1}
        v_cvt_pk_bf16_f32 v{o+1}, v{t0}, v{t2}
        v_fmac_f32 v{t3}, v{t0}, v{t0}
        v_fmac_f32 v{t3}, v{t2}, v{t2}
        v_lshrrev_b32 v{t0}, 1, v{R(it,0)}
        v_cvt_pk_bf16_f32 v{o}, v{t3}, v{t1}
        v_lshlrev_b32 v{t2}, 1, v{R(it,0)}
        s_mov_b64 exec, s[{90+2*it}:{91+2*it}]
        ds_write_b32 v{R(it,0)}, v{R(it,2)} offset:{L_R0}
        ds_write_b16 v{t0}, v{R(it,3)} offset:{L_RS}
        ds_write_b64 v{t2}, v[{o}:{o+1}] offset:{L_G}
        s_mov_b64 exec, -1
        ''')
    a(f'''
    v_add_u32 v96, {64*NI}, v96
    v_add_u32 v97, {64*NI}, v97
    s_add_u32 s{sT}, s{sT}, {64*NI}
    s_branch L2_geo_loop
    ''')
    a.label('L2_geo_done')
    a(f"""
    v_lshrrev_b32 v97, 3, v1
    v_add_u32 v97, s{sBASE}, v97
    v_lshlrev_b32 v97, 1, v97
    v_add_u32 v{vRSa}, {L_RS}, v97
    v_lshrrev_b32 v97, 1, v1
    v_add_u32 v97, s{sBASE}, v97
    v_lshlrev_b32 v97, 2, v97
    v_add_u32 v{vR0a}, {L_R0}, v97
    v_and_b32 v97, 31, v1
    v_add_u32 v97, s{sBASE}, v97
    v_lshlrev_b32 v98, 2, v97
    v_add_u32 v{vR0e}, {L_R0}, v98
    v_lshrrev_b32 v98, 5, v1
    v_lshlrev_b32 v98, 2, v98
    v_lshl_add_u32 v98, v97, 3, v98
    v_add_u32 v{vGe}, {L_G}, v98
    s_mov_b32 s{sT}, 0
    s_sub_u32 s86, s{sNT}, 3
    s_sub_u32 s87, s{sNT}, 1
    """)
    for i in range(4): a(f'ds_read_u16 v{vHP+2*i}, v{vRSa} offset:{16*i}')
    a(f'ds_read_b32 v{vEAi}, v{vR0a}')
    a(f'ds_read_b32 v{vR0}, v{vR0e}')
    a(f'ds_read_b32 v{vG}, v{vGe}')
    if 'fprio' in ABL:
        PER=optl('per',[12])[0]
        a(f"""
        v_cvt_f32_u32 v96, s{sNT}
        v_rcp_f32 v96, v96
        s_nop 0
        v_mul_f32 v96, {f32bits(float(PER*65536*(2 if TRIMK in ABL else 1)))}, v96
        v_cvt_u32_f32 v96, v96
        s_nop 0
        v_readfirstlane_b32 s85, v96
        s_mov_b32 s84, 0
        s_sub_u32 s84, s84, s85
        """)
    a(f"""
    s_lshl_b32 s54, s{sV}, 11
    s_add_u32 s54, s54, {L_S}
    v_lshlrev_b32 v96, 4, v1
    v_add_u32 v96, s54, v96
    v_mov_b32 v100, 0
    v_mov_b32 v101, 0
    v_mov_b32 v102, 0
    v_mov_b32 v103, 0
    v_and_or_b32 v{vEAo}, v{vEAi}, s{sMK}, v{vEAc}
    """)
    if 'hst' in ABL:
        a(f"""
        s_cmp_eq_u32 s{sCNT}, 0
        s_cbranch_scc1 L2_hw0
        s_waitcnt vmcnt({0 if 'nopf' in ABL else 2})
        s_branch L2_hw1
        """)
        a.label('L2_hw0')
        a('s_waitcnt vmcnt(0)')
        a.label('L2_hw1')
    a(f"""
    s_waitcnt lgkmcnt(0)
    s_barrier
    """)
    st(7)
    a(f"""
    ds_write_b128 v96, v[100:103]
    ds_write_b128 v96, v[100:103] offset:1024
    """)
    if 'lone' in ABL:
        a(f's_cmp_ge_u32 s{sV}, 4\ns_cselect_b32 s{sNT}, 0, s{sNT}')
    a(f"""
    s_cmp_eq_u32 s{sNT}, 0
    s_cbranch_scc1 L2_notiles
    """)
    def idx_reads(toff):
        return [f'ds_read_u16 v{vHP+2*i}, v{vRSa} offset:{64*toff+16*i}' for i in range(4)] + \
               [f'ds_read_b32 v{vEAi}, v{vR0a} offset:{128*toff}']
    def rec_reads(toff):
        return [f'ds_read_b32 v{vR0}, v{vR0e} offset:{128*toff}', f'ds_read_b32 v{vG}, v{vGe} offset:{256*toff}']
    def srd_select(delta):
        return [f's_add_u32 s54, s{sT}, {delta}\ns_cmp_lt_u32 s54, s{sNT}\ns_cselect_b32 s{sHD+2}, {NH_}, 0\ns_cselect_b32 s{sEA+2}, {NE_}, 0']
    def dma2(slot):
        r=[(f'v_and_or_b32 v{vEAo}, v{vEAi}, s{sMK}, v{vEAc}\ns_add_u32 m0, s{sRB}, {slot*SLOT+4096}', f'buffer_load_dwordx4 v{vEAo}, s[{sEA}:{sEA+3}], 0 offen{EAF} lds')]
        for i in range(4):
            r.append((f's_add_u32 m0, s{sRB}, {slot*SLOT+1024*i}', f'buffer_load_dwordx4 v[{vHP+2*i}:{vHP+2*i+1}], s[{sHD}:{sHD+3}], 0 idxen offen{HF} lds'))
        return r
    def dma(slot):
        return [x+'\n'+y for x,y in dma2(slot)]
    def x_reads(slot):
        return [f'ds_read_b128 v[{vX+4*s}:{vX+4*s+3}], v{vHA+s} offset:{slot*SLOT}' for s in range(4)] + \
               [f'ds_read_b128 v[{vXE}:{vXE+3}], v{vEAr} offset:{slot*SLOT}']
    def s_addr(): return [f'v_bitop3_b32 v{vA1}, v{vR0}, 28, v{vC1} bitop3:0x6a', f'v_bfi_b32 v{vS1}, v{vMK2}, v{vG}, v{vOne}', f'v_perm_b32 v{vS2}, v{vG}, v{vG}, s{sSEL}']
    def s_writes(): return [f'ds_write_b32 v{vA1}, v{vS1}', f'ds_write_b32 v{vCD}, v{vS2}']
    def x6_read(): return [f'ds_read_b128 v[{vX6}:{vX6+3}], v{vX6r}']
    def sf_reads():
        r=[]
        for s2 in range(2):
            r.append(f'ds_read_b64_tr_b16 v[{vSF+4*s2}:{vSF+4*s2+1}], v{vSTa} offset:{1024*s2}')
            r.append(f'ds_read_b64_tr_b16 v[{vSF+4*s2+2}:{vSF+4*s2+3}], v{vSTb} offset:{1024*s2}')
        return r
    def s_restore(): return [f'ds_write_b32 v{vA1}, v{vZero}']
    def mfma1(dst):
        r=[]
        for blk in range(2):
            D=f'v[{dst+16*blk}:{dst+16*blk+15}]'
            for sp in range(2):
                C = D if sp>0 else '0'
                s_=2*blk+sp
                r.append(f'v_mfma_f32_32x32x16_bf16 {D}, v[{vX+4*s_}:{vX+4*s_+3}], v[{vI+4*sp}:{vI+4*sp+3}], {C}')
            r.append(f'v_mfma_f32_32x32x16_bf16 {D}, v[{vXE}:{vXE+3}], v[{vW3+4*blk}:{vW3+4*blk+3}], {D}')
            r.append(f'v_mfma_f32_32x32x16_bf16 {D}, v[{vX6}:{vX6+3}], v[{vW6+4*blk}:{vW6+4*blk+3}], {D}')
        return r
    ONE=f'v[{vONE}:{vONE+3}]'
    def plus1(blk):
        Eb=f'v[{vE+16*blk}:{vE+16*blk+15}]'
        return f'v_mfma_f32_32x32x16_bf16 {Eb}, {ONE}, {ONE}, {Eb}'
    def mfma2(cur,blk,s2):
        D=f'v[{vD2+16*blk}:{vD2+16*blk+15}]'; m=cur+8*blk+4*s2
        return f'v_mfma_f32_32x32x16_bf16 {D}, v[{m}:{m+3}], v[{vSF+4*s2}:{vSF+4*s2+3}], {D}'
    def keep(x):
        if 'nomfma' in ABL and x.startswith('v_mfma'): return False
        if 'nolds' in ABL and x.startswith('ds_'): return False
        if 'nodma' in ABL and 'buffer_load' in x: return False
        if 'notrans' in ABL and x.startswith(('v_exp','v_rcp')): return False
        if 'novalu' in ABL and x.startswith(('v_exp','v_rcp','v_mul','v_cvt','v_pk_mul')): return False
        return True
    def emit(backbone, inserts):
        backbone=[x if keep(x) else 's_nop 0' for x in backbone]
        inserts={k:[x for x in v if keep(x)] for k,v in inserts.items()}
        for k_ in sorted(k for k in inserts if k<0):
            for s_ in inserts[k_]: a(s_)
        for i,ins in enumerate(backbone):
            a(ins)
            for s_ in inserts.get(i,[]): a(s_)
    nlab=[0]
    PK='pk' in ABL
    DMAPOS=optl('dma',[37,48,60,70,82] if PK else [41,52,63,76,92])
    M1POS=optl('m1',[37,40,43,46,49,52,55,58] if PK else [42,46,50,54,58,62,68,74])
    SFPOS=optl('sf',[0,2,4,6]); RSPOS=optl('rs',[8])[0]; SAPOS=optl('sa',[9,10,11]); SWPOS=optl('sw',[12,13]); X6POS=optl('x6',[14])[0]
    VMPOS=optl('vm',[16])[0]; XPOS=optl('x',[16,18,20,22,24]); RECPOS=optl('rec',[26,27]); IDXPOS=optl('idx',[28,29,30,31,32])
    LGPOS=optl('lg',[36] if PK else [40])[0]; M2POS=optl('m2',[85,89,93,95] if PK else [89,95,111,111]); P1POS=optl('p1',[17,33])
    def body(p, steady, extra_first=None):
        cur=vD1[p]; nxt=vD1[1-p]
        bb=[]
        for blk in range(2):
            bb += [f'v_exp_f32 v{vE+16*blk+i}, v{cur+16*blk+i}' for i in range(16)]
        for blk in range(2):
            bb += [f'v_rcp_f32 v{vE+16*blk+i}, v{vE+16*blk+i}' for i in range(16)]
        if 'pk' in ABL:
            bb += [f'v_pk_mul_f32 v[{vE+2*i}:{vE+2*i+1}], v[{vE+2*i}:{vE+2*i+1}], v[{cur+2*i}:{cur+2*i+1}]' for i in range(16)]
            bb += [f'v_cvt_pk_bf16_f32 v{cur+q}, v{vE+2*q}, v{vE+2*q+1}' for q in range(16)]
        else:
            bb += [f'v_mul_f32 v{vE+i}, v{vE+i}, v{cur+i}' for i in range(16)]
            bb += [f'v_cvt_pk_bf16_f32 v{cur+q}, v{vE+2*q}, v{vE+2*q+1}' for q in range(8)]
            bb += [f'v_mul_f32 v{vE+16+i}, v{vE+16+i}, v{cur+16+i}' for i in range(16)]
            bb += [f'v_cvt_pk_bf16_f32 v{cur+8+q}, v{vE+16+2*q}, v{vE+16+2*q+1}' for q in range(8)]
        ins={}
        def put(pos,x):
            ins.setdefault(pos,[]).append(x)
        if not ('trim' in ABL and steady): put(-100,'s_waitcnt lgkmcnt(0)')
        if 'prio' in ABL:
            put(-99,f'''s_and_b32 s54, s{sT}, 2
            s_cmp_eq_u32 s54, 0
            s_cbranch_scc1 Lp{nlab[0]}a
            s_setprio {1-p}
            s_branch Lp{nlab[0]}b
            Lp{nlab[0]}a:
            s_setprio {3-p}
            Lp{nlab[0]}b:''')
            nlab[0]+=1
        if 'fprio' in ABL and not ('trim' in ABL and p==1):
            n=nlab[0]
            put(-99,f'''s_add_u32 s84, s84, s85
            s_bitcmp1_b32 s84, 17
            s_cbranch_scc1 Lp{n}h
            s_bitcmp1_b32 s84, 16
            s_cbranch_scc1 Lp{n}a
            s_setprio 3
            s_branch Lp{n}z
            Lp{n}a:
            s_setprio 2
            s_branch Lp{n}z
            Lp{n}h:
            s_bitcmp1_b32 s84, 16
            s_cbranch_scc1 Lp{n}b
            s_setprio 1
            s_branch Lp{n}z
            Lp{n}b:
            s_setprio 0
            Lp{n}z:''')
            nlab[0]+=1
        if steady and p==0:
            n=nlab[0]; nlab[0]+=1
            put(0,f's_cmp_lg_u32 s{sT}, 0\ns_cbranch_scc1 Ld{n}\n'+'\n'.join(dma(0))+f'\nLd{n}:')
        for x,q in zip(sf_reads(),SFPOS): put(q,x)
        put(RSPOS,s_restore()[0])
        if extra_first:
            for x in extra_first: put(RSPOS+4,x)
        put(P1POS[0],plus1(0))
        put(P1POS[1],plus1(1))
        if steady:
            for x,q in zip(s_addr(),SAPOS): put(q,x)
            for x,q in zip(s_writes(),SWPOS): put(q,x)
            put(X6POS,x6_read()[0])
            put(VMPOS,'s_waitcnt vmcnt(5)')
            for x,q in zip(x_reads(1-p),XPOS): put(q,x)
            for x,q in zip(rec_reads(p+2),RECPOS): put(q,x)
            for x,q in zip(idx_reads(p+3),IDXPOS): put(q,x)
            if 'trim' in ABL:
                n=nlab[0]; nlab[0]+=1
                put(LGPOS-2,f's_cmp_lt_i32 s{sT}, s86\ns_cbranch_scc1 Lz{n}\ns_mov_b32 s{sHD+2}, 0\ns_mov_b32 s{sEA+2}, 0\nLz{n}:')
            else: put(LGPOS-2,srd_select(3)[0])
            put(LGPOS,'s_waitcnt lgkmcnt(0)')
            for (x,y),q in zip(dma2(1-p),DMAPOS):
                if q>0 and q-1>LGPOS-1 and 'trim' in ABL: put(q-1,x); put(q,y)
                else: put(q,x+'\n'+y)
            for x,q in zip(mfma1(nxt),M1POS): put(q,x)
        for (b_,s_),q in zip(((0,0),(0,1),(1,0),(1,1)),M2POS): put(q,mfma2(cur,b_,s_))
        emit(bb,ins)
    def late_consts(a):
        a(f'''
        v_and_b32 v97, 31, v1
        v_lshrrev_b32 v98, 5, v1
        v_bfe_u32 v99, v97, 1, 3
        v_lshlrev_b32 v100, 7, v97
        v_add_u32 v100, s{sRB}, v100
        ''')
        for s in range(4):
            a(f'''
            v_add_u32 v101, {2*s}, v98
            v_xor_b32 v101, v101, v99
            v_lshl_add_u32 v{vHA+s}, v101, 4, v100
            ''')
        a(f'''
        v_lshrrev_b32 v101, 4, v97
        v_xor_b32 v101, v101, v98
        v_lshlrev_b32 v101, 4, v101
        v_lshl_add_u32 v101, v97, 5, v101
        v_add_u32 v101, s{sRB}, v101
        v_add_u32 v{vEAr}, 4096, v101
        s_lshl_b32 s57, s{sV}, 11
        s_add_u32 s57, s57, {L_S}
        v_lshlrev_b32 v101, 6, v97
        v_add_u32 v101, s57, v101
        v_bfe_u32 v102, v97, 2, 2
        v_xor_b32 v103, v98, v102
        v_lshl_add_u32 v{vX6r}, v103, 4, v101
        v_lshlrev_b32 v103, 1, v98
        v_xor_b32 v104, v103, v102
        v_lshl_add_u32 v{vC1}, v104, 4, v101
        v_add_u32 v103, 1, v103
        v_xor_b32 v104, v103, v102
        v_lshl_add_u32 v104, v104, 4, v101
        v_add_u32 v{vCD}, 12, v104
        v_cmp_gt_u32 vcc, 32, v1
        v_mov_b32 v103, 0xffff0000
        v_mov_b32 v104, -1
        v_cndmask_b32 v{vMK2}, v104, v103, vcc
        v_mov_b32 v{vOne}, 0x3f80
        v_mov_b32 v{vONE+1}, 0
        v_mov_b32 v{vONE+2}, 0
        v_mov_b32 v{vONE+3}, 0
        v_cndmask_b32 v{vONE}, 0, v{vOne}, vcc
        v_lshlrev_b32 v101, 3, v98
        v_sub_u32 v101, v97, v101
        v_and_b32 v102, 1, v101
        v_lshlrev_b32 v102, 4, v102
        v_lshlrev_b32 v102, v102, v{vOne}
        v_ashrrev_i32 v101, 1, v101
        ''')
        for k in range(8):
            q=8*(k>>2)+(k&3)
            a(f'v_cmp_eq_u32 s[{90+2*(k&3)}:{91+2*(k&3)}], {q}, v101')
            if (k&3)==3:
                for kk in range(k-3,k+1):
                    a(f'v_cndmask_b32 v{vI+kk}, 0, v102, s[{90+2*(kk&3)}:{91+2*(kk&3)}]')
        a(f'''
        v_and_b32 v101, 15, v1
        v_lshrrev_b32 v101, 2, v101
        v_lshl_add_u32 v101, v98, 2, v101
        v_lshlrev_b32 v101, 6, v101
        v_and_b32 v102, 1, v1
        v_lshl_add_u32 v101, v102, 3, v101
        v_add_u32 v101, s57, v101
        v_bfe_u32 v102, v1, 4, 1
        v_bfe_u32 v103, v1, 1, 1
        v_lshl_add_u32 v102, v102, 1, v103
        v_xor_b32 v103, v102, v98
        v_lshl_add_u32 v{vSTa}, v103, 4, v101
        v_add_u32 v103, 2, v98
        v_xor_b32 v103, v102, v103
        v_lshl_add_u32 v103, v103, 4, v101
        v_add_u32 v{vSTb}, 512, v103
        ''')

    lc=Asm(); late_consts(lc); lcl=list(lc.lines); per=(len(lcl)+9)//10
    def dma_lc(slot,k0):
        for k,x in enumerate(dma(slot)):
            a(x)
            if 'ilc' in ABL:
                for y in lcl[(k0+k)*per:(k0+k+1)*per]: a(y)
    a(f's_mov_b32 s{sHD+2}, {N}')
    a(f's_mov_b32 s{sEA+2}, {E*32}')
    dma_lc(0,0)
    st(13+18)
    for x in idx_reads(1): a(x)
    a(srd_select(1)[0])
    a('s_waitcnt lgkmcnt(0)')
    dma_lc(1,5)
    st(14)
    for x in idx_reads(2): a(x)
    a(srd_select(2)[0])
    if 'ilc' not in ABL:
        for y in lcl: a(y)
    for x in s_addr(): a(x)
    for x in s_writes(): a(x)
    for x in x6_read(): a(x)
    st(15)
    a('s_waitcnt vmcnt(5)')
    st(30)
    for x in x_reads(0): a(x)
    for x in rec_reads(1): a(x)
    a('s_waitcnt lgkmcnt(0)')
    for x in mfma1(vD1[0]): a(x)
    st(8)
    stampc(a,12,vTM,98)
    if DEBUG_TM: a(f'v_writelane_b32 v{vTM}, s{sNT}, 22\nv_writelane_b32 v{vTM}, s{sG}, 23\ns_getreg_b32 s98, hwreg(HW_REG_HW_ID)\nv_writelane_b32 v{vTM}, s98, 24')
    JM=[0,1,4,5]
    RESV=[[232,233,234,236],[237,238,252,253]]
    WXV=[192,196,200,204,208,212,228,248]
    def epi_prefetch(p):
        nxt=vD1[1-p]
        r=[]
        r.append('v_lshlrev_b32 v10, 4, v1')
        for ff in range(16):
            dst = 16+4*ff if ff<8 else nxt+4*(ff-8)
            if 'hst' in ABL and ff<NHS:
                r.append(f'v_add_u32 v9, {hstage_addr(ff)}, v10\nds_read_b128 v[{dst}:{dst+3}], v9')
            else:
                r.append(f'v_add_u32 v9, {(F_H1+ff)*1024}, v10\nbuffer_load_dwordx4 v[{dst}:{dst+3}], v9, s[{sWF}:{sWF+3}], 0 offen')
        r.append(f"""
        v_lshrrev_b32 v9, 3, v1
        v_lshlrev_b32 v9, 3, v9
        v_add_u32 v3, s{sG}, v9
        v_add_u32 v9, s{sNODE0}, v9
        v_cmp_gt_u32 vcc, {BN}, v3
        v_mov_b32 v4, -1
        v_and_b32 v241, 7, v1
        v_lshlrev_b32 v241, 4, v241
        v_cndmask_b32 v240, v4, v9, vcc
        """)
        r.append(f"""
        v_bfe_u32 v9, v1, 1, 3
        v_lshlrev_b32 v9, 3, v9
        v_add_u32 v3, s{sG}, v9
        v_add_u32 v9, s{sNODE0}, v9
        v_bfe_u32 v5, v1, 4, 1
        v_and_b32 v8, 1, v1
        v_lshl_add_u32 v5, v5, 1, v8
        v_cmp_gt_u32 vcc, {BN}, v3
        v_subrev_u32 v5, 1, v5
        v_cmp_gt_u32 s[56:57], 3, v5
        v_mul_u32_u24 v9, 6, v9
        s_and_b64 vcc, vcc, s[56:57]
        v_cmp_gt_u32 s[56:57], 32, v1
        v_lshl_add_u32 v9, v5, 1, v9
        v_mov_b32 v4, 0x7fffff00
        s_and_b64 vcc, vcc, s[56:57]
        v_cndmask_b32 v10, v4, v9, vcc
        buffer_load_ushort v11, v10, s[{sPOS}:{sPOS+3}], 0 offen
        """)
        return r
    def epi_rows():
        return f"""s_waitcnt lgkmcnt(0)
        s_lshl_b32 s62, s{sV}, 11
        s_add_u32 s62, s62, {L_S}
        s_mov_b32 m0, s62
        s_nop 0
        buffer_load_dwordx4 v[240:241], s[{sH}:{sH+3}], 0 idxen offen lds"""
    def epilogue(p):
        nxt=vD1[1-p]; cur=vD1[p]
        pk=vE; T=vE+16; acc=vE+24
        a(f"""
        v_and_b32 v3, 31, v1
        v_lshrrev_b32 v4, 5, v1
        v_bfe_u32 v5, v1, 1, 3
        v_lshlrev_b32 v5, 7, v5
        v_lshl_add_u32 v5, v4, 4, v5
        v_add_u32 v5, s62, v5
        v_lshlrev_b32 v6, 7, v4
        v_add_u32 v6, {L_WST+2048+256}, v6
        v_lshlrev_b32 v7, 1, v3
        v_lshl_add_u32 v7, v4, 8, v7
        v_add_u32 v7, s62, v7
        s_mov_b32 s54, {f32bits(-math.log(2.0))}
        s_mov_b32 s55, s54
        s_waitcnt vmcnt(0)
        """)
        for s_ in range(4):
            a(f'ds_read_b128 v[{48+4*s_}:{51+4*s_}], v5 offset:{32*s_}')
        for f in range(8):
            a(f'ds_read_b128 v[{WXV[f]}:{WXV[f]+3}], v6 offset:{16*f}')
        for i in range(16):
            a(f'v_pk_mul_f32 v[{vD2+2*i}:{vD2+2*i+1}], v[{vD2+2*i}:{vD2+2*i+1}], s[54:55]')
        a('s_waitcnt lgkmcnt(8)')
        for b2 in range(2):
            D=f'v[{cur+16*b2}:{cur+16*b2+15}]'
            for s_ in range(4):
                C = D if s_>0 else '0'
                a(f'v_mfma_f32_32x32x16_bf16 {D}, v[{48+4*s_}:{51+4*s_}], v[{16+4*(2*s_+b2)}:{19+4*(2*s_+b2)}], {C}')
            if b2==0:
                for blk in range(2):
                    for q in range(8):
                        a(f'v_cvt_pk_bf16_f32 v{pk+8*blk+q}, v{vD2+16*blk+2*q}, v{vD2+16*blk+2*q+1}')
        for b2 in range(2):
            for m in range(4):
                a(f'ds_read_u16 v{RESV[b2][m]}, v7 offset:{128*JM[m]+64*b2}')
        for b2 in range(2):
            D=f'v[{cur+16*b2}:{cur+16*b2+15}]'
            for blk in range(2):
                for sp in range(2):
                    f=(blk*2+sp)*2+b2
                    a(f'v_mfma_f32_32x32x16_bf16 {D}, v[{pk+8*blk+4*sp}:{pk+8*blk+4*sp+3}], v[{nxt+4*f}:{nxt+4*f+3}], {D}')
            if b2==0:
                a('s_waitcnt lgkmcnt(8)')
                a(f'v_mul_f32 v{acc}, v{vD2}, v{WXV[0]}')
                a(f'v_mul_f32 v{acc+1}, v{vD2+1}, v{WXV[0]+1}')
                for i in range(2,32):
                    a(f'v_fmac_f32 v{acc+(i&1)}, v{vD2+i}, v{WXV[i>>2]+(i&3)}')
                a(f'v_add_f32 v{acc}, v{acc}, v{acc+1}')
                a(f'v_mov_b32 v{acc+1}, v{acc}')
        a(f'v_permlane32_swap_b32 v{acc}, v{acc+1}')
        a(f"""
        v_lshlrev_b32 v11, 16, v11
        v_add_f32 v{acc}, v{acc}, v{acc+1}
        v_add_f32 v11, v11, v{acc}
        v_cvt_pk_bf16_f32 v11, v11, v11
        buffer_store_short v11, v10, s[{sO1}:{sO1+3}], 0 offen
        s_mov_b32 s54, {f32bits(-LOG2E)}
        """)
        for b2 in range(2):
            for m in range(4):
                a(f'v_mul_f32 v{T+4*b2+m}, s54, v{cur+16*b2+2*m}')
        for k in range(8): a(f'v_exp_f32 v{T+k}, v{T+k}')
        for k in range(8): a(f'v_add_f32 v{T+k}, 1.0, v{T+k}')
        for k in range(8): a(f'v_rcp_f32 v{T+k}, v{T+k}')
        a('s_waitcnt lgkmcnt(0)')
        for b2 in range(2):
            for m in range(4):
                x=cur+16*b2+2*m; t=T+4*b2+m; hh=RESV[b2][m]
                a(f'v_lshlrev_b32 v{hh}, 16, v{hh}')
                a(f'v_fma_f32 v{t}, v{x}, v{t}, v{hh}')
                a(f'v_cvt_pk_bf16_f32 v{t}, v{t}, v{t}')
        for b2 in range(2):
            for m in range(4):
                a(f'ds_write_b16 v7, v{T+4*b2+m} offset:{1024+128*JM[m]+64*b2}')
        a(f"""
        v_lshlrev_b32 v6, 4, v1
        v_add_u32 v6, s62, v6
        ds_read_b128 v[48:51], v6 offset:1024
        s_waitcnt lgkmcnt(0)
        buffer_store_dwordx4 v[48:51], v[240:241], s[{sO0}:{sO0+3}], 0 idxen offen{SC1O}
        """)
        st(10)
        if DEBUG_TM: a('s_waitcnt vmcnt(0)')
        st(11)
        stamp_store(a,vTM,98,44,45,0x80000,sV,254)
        a('s_endpgm')
    for p in range(2):
        a.label(f'L2_s{p}')
        if 'trim' in ABL:
            a(f's_cmp_ge_i32 s{sT}, s87\ns_cbranch_scc1 L2_l{p}')
        else:
            a(f'''
            s_add_u32 s54, s{sT}, 1
            s_cmp_ge_u32 s54, s{sNT}
            s_cbranch_scc1 L2_l{p}
            ''')
        if DEBUG_TM and p==0:
            for tt,ix in ((2,25),(4,26),(6,27),(8,28),(10,29)):
                a(f's_cmp_lg_u32 s{sT}, {tt}\ns_cbranch_scc1 Lst{ix}')
                stampc(a,ix,vTM,98)
                a.label(f'Lst{ix}')
        body(p, True)
        a(f's_add_u32 s{sT}, s{sT}, 1')
        if p==1:
            a(f'''
            v_add_u32 v{vRSa}, 128, v{vRSa}
            v_add_u32 v{vR0a}, 256, v{vR0a}
            v_add_u32 v{vR0e}, 256, v{vR0e}
            v_add_u32 v{vGe}, 512, v{vGe}
            s_branch L2_s0
            ''')
    for p in range(2):
        a.label(f'L2_l{p}')
        a(f'''
        s_cmp_lt_u32 s{sW1}, {NCH}
        s_cbranch_scc1 L2_l{p}n
        ''')
        body(p, False, None) if False else None
        for x in epi_prefetch(p): a(x)
        body(p, False, [epi_rows()])
        st(9)
        stampc(a,13,vTM,98)
        epilogue(p)
        a.label(f'L2_l{p}n')
        body(p, False)
        a('s_branch L2_nextbatch')
    a.label('L2_notiles')
    a(f'''
    s_cmp_lt_u32 s{sW1}, {NCH}
    s_cbranch_scc1 L2_nextbatch
    ''')
    for x in epi_prefetch(0): a(x)
    a(epi_rows())
    st(9)
    epilogue(0)
    a.label('L2_nextbatch')
    a(f'''
    s_waitcnt vmcnt(0) lgkmcnt(0)
    s_mov_b32 s{sW0}, s{sW1}
    s_add_u32 s{sW1}, s{sW1}, 1
    s_branch L2_batch
    ''')
    a.label('L2_end')
    a('s_endpgm')
    return a.finalize(), 256, 102, (L_END if 'hst' in ABL else L_HX)

def main():
    k1,v1,s1,l1 = gen_k1()
    k2,v2,s2,l2 = gen_k2()
    hdr = open('gather_scatter__cheap_equivariant_egnn__graph.s.ref').read().split('; Override launch')[0]
    out = hdr
    out += f'; @launch kernel=egnn_part_kernel grid=({NCH+1+NTW},1,1) block=(512,1,1) lds={l1}\n'
    out += f'; @launch kernel=egnn_main_kernel grid=({NBK},1,1) block=(512,1,1) lds={l2}\n'
    out += '.amdgcn_target "amdgcn-amd-amdhsa--gfx950"\n.text\n'
    for name,body in (('egnn_part_kernel',k1),('egnn_main_kernel',k2)):
        out += f'.globl {name}\n.p2align 8\n.type {name},@function\n' + body
    out += '.section .rodata,"a"\n'
    for name,nv,ns in (('egnn_part_kernel',v1,s1),('egnn_main_kernel',v2,s2)):
        acc=(nv+3)//4*4
        out += f'''.p2align 6
.amdhsa_kernel {name}
  .amdhsa_next_free_vgpr {nv}
  .amdhsa_next_free_sgpr {ns}
  .amdhsa_accum_offset {acc}
  .amdhsa_group_segment_fixed_size 0
  .amdhsa_kernarg_size 88
  .amdhsa_user_sgpr_count 2
  .amdhsa_user_sgpr_kernarg_segment_ptr 1
  .amdhsa_system_sgpr_workgroup_id_x 1
  .amdhsa_float_denorm_mode_32 3
.end_amdhsa_kernel
'''
    dst = [x for x in sys.argv[1:] if not x.startswith('--')]
    path = dst[0] if dst else 'gather_scatter__cheap_equivariant_egnn__graph.s'
    open(path,'w').write(out)
    print('wrote',path,len(out))
main()
```

```python
import sys, math
from asmlib import Asm

N=12500; E=800000; CH=3200; NCH=250; NBK=256; BN=49
ROW=4224
OFFS=0; ENT=0x110000; WF=0x420000; TA=0x500000; TB=0x700000; TM=0x900000
NF=18; WDO=NF*1024; WXO=NF*1024+256; WFSZ=NF*1024+512
NTW=98
CAP=3584
LOG2E=1.4426950408889634
def f32bits(x):
    import struct; return struct.unpack('<I',struct.pack('<f',x))[0]

DEBUG_TM = '--tm' in sys.argv
K1PRIO = '--nok1prio' not in sys.argv
TFIRST = '--tfirst' in sys.argv
SC1 = '' if '--nosc1' in sys.argv else (' sc0 sc1' if '--sc01' in sys.argv else ' sc1')
SC1T = '' if '--tplain' in sys.argv else SC1
SC1W = SC1 if '--wsc1' in sys.argv else ''
SC1O = ' sc1' if '--osc1' in sys.argv else ''
PFN = int(([x[6:] for x in sys.argv if x.startswith('--pfn=')] or ['0'])[0])
PFK1 = 2 if PFN else 0

F_W3=0
F_H1=2
F_H2=10

def stamp(a, idx, vreg, sp):
    if not DEBUG_TM: return
    a(f'''
    s_memrealtime s[{sp}:{sp+1}]
    s_waitcnt lgkmcnt(0)
    v_writelane_b32 v{vreg}, s{sp}, {idx}
    ''')
def stampc(a, idx, vreg, sp):
    if not DEBUG_TM: return
    a(f'''
    s_memtime s[{sp}:{sp+1}]
    s_waitcnt lgkmcnt(0)
    v_writelane_b32 v{vreg}, s{sp}, {idx}
    ''')
def stamp_store(a, vreg, sp, ws_lo, ws_hi, region, wave_s, vt):
    if not DEBUG_TM: return
    a(f'''
    s_lshl_b32 s{sp}, s2, 3
    s_add_u32 s{sp}, s{sp}, s{wave_s}
    s_lshl_b32 s{sp}, s{sp}, 7
    s_add_u32 s{sp}, s{sp}, {TM+region}
    s_add_u32 s{sp}, s{ws_lo}, s{sp}
    s_addc_u32 s{sp+1}, s{ws_hi}, 0
    v_and_b32 v{vt}, 63, v0
    v_lshlrev_b32 v{vt}, 2, v{vt}
    s_mov_b32 exec_hi, 0
    global_store_dword v{vt}, v{vreg}, s[{sp}:{sp+1}]
    s_mov_b64 exec, -1
    ''')

def gen_k1():
    a=Asm()
    K1_STAGE=8192; K1_WTOT=24576
    a.label('egnn_part_kernel')
    a(f'''
    s_cmp_gt_u32 s2, {NCH+NTW}
    s_cbranch_scc1 L1_end
    v_lshrrev_b32 v2, 6, v0
    v_and_b32 v1, 63, v0
    s_load_dwordx4 s[4:7], s[0:1], 24
    s_load_dwordx2 s[8:9], s[0:1], 80
    s_load_dwordx2 s[34:35], s[0:1], 16
    v_readfirstlane_b32 s3, v2
    s_cmp_eq_u32 s2, {NTW if TFIRST else NCH}
    s_cbranch_scc1 L1_wprep
    s_cmp_{'lt' if TFIRST else 'gt'}_u32 s2, {NTW if TFIRST else NCH}
    s_cbranch_scc1 L1_tables
    s_sub_u32 s38, s2, {NTW+1 if TFIRST else 0}
    s_setprio {3 if K1PRIO else 0}
    ''')
    if DEBUG_TM: a('v_mov_b32 v70, 0')
    stamp(a,0,70,36)
    a(f'''
    v_lshlrev_b32 v3, 4, v0
    v_mov_b32 v4, 0
    v_mov_b32 v5, 0
    v_mov_b32 v6, 0
    v_mov_b32 v7, 0
    ds_write_b128 v3, v[4:7]
    s_mul_i32 s10, s38, {CH*4}
    s_mul_i32 s11, s38, {ROW}
    v_add_u32 v48, 8192, v3
    s_waitcnt lgkmcnt(0)
    s_add_u32 s12, s6, s10
    s_addc_u32 s13, s7, 0
    s_mov_b32 s14, {CH*4}
    s_mov_b32 s15, 0x20000
    s_add_u32 s16, s4, s10
    s_addc_u32 s17, s5, 0
    s_mov_b32 s18, {CH*4}
    s_mov_b32 s19, 0x20000
    buffer_load_dwordx4 v[8:11], v3, s[12:15], 0 offen
    buffer_load_dwordx4 v[12:15], v48, s[12:15], 0 offen
    buffer_load_dwordx4 v[16:19], v3, s[16:19], 0 offen
    buffer_load_dwordx4 v[20:23], v48, s[16:19], 0 offen
    ''')
    if PFK1:
        a(f'''
        s_mul_i32 s10, s38, {CH*32}
        s_add_u32 s32, s34, s10
        s_addc_u32 s33, s35, 0
        s_cmp_lt_u32 s38, {PFN}
        s_cselect_b32 s34, {CH*32}, 0
        s_mov_b32 s35, 0x20000
        v_lshlrev_b32 v64, 7, v0
        v_add_u32 v65, {512*128}, v64
        buffer_load_dword v66, v64, s[32:35], 0 offen
        ''')
        if PFK1>1: a('buffer_load_dword v67, v65, s[32:35], 0 offen')
        a(f's_mul_i32 s10, s38, {CH*4}')
    a(f'''
    s_add_u32 s24, s8, {OFFS}
    s_addc_u32 s25, s9, 0
    s_add_u32 s24, s24, s11
    s_addc_u32 s25, s25, 0
    s_mov_b32 s26, {ROW}
    s_mov_b32 s27, 0x20000
    s_add_u32 s28, s8, {ENT}
    s_addc_u32 s29, s9, 0
    s_add_u32 s28, s28, s10
    s_addc_u32 s29, s29, 0
    s_mov_b32 s30, {CH*4}
    s_mov_b32 s31, 0x20000
    s_mov_b32 s22, -{BN}
    v_mov_b32 v50, 1
    v_lshlrev_b32 v51, 5, v0
    v_add_u32 v52, 16384, v51
    s_barrier
    s_waitcnt vmcnt({2+PFK1})
    ''')
    stamp(a,1,70,36)
    def keyslot(i, dst, tmp):
        a(f'''
        v_mul_u32_u24 v{tmp}, 21400, v{dst}
        v_lshrrev_b32 v{tmp}, 20, v{tmp}
        v_mad_i32_i24 v{40+i}, v{tmp}, s22, v{dst}
        v_and_b32 v{tmp+1}, 7, v{40+i}
        v_lshl_or_b32 v{tmp}, v{tmp}, 3, v{tmp+1}
        v_lshlrev_b32 v{24+i}, 2, v{tmp}
        ''')
    for u in range(4):
        keyslot(u, 8+u, 54+2*u)
        a(f'ds_add_rtn_u32 v{32+u}, v{24+u}, v50')
    a('''
    v_cmp_gt_u32 vcc, 288, v0
    s_and_saveexec_b64 s[20:21], vcc
    s_cbranch_execz L1_skipB1
    ''')
    for u in range(4):
        keyslot(4+u, 12+u, 54+2*u)
        a(f'ds_add_rtn_u32 v{36+u}, v{28+u}, v50')
    a.label('L1_skipB1')
    a('s_mov_b64 exec, s[20:21]')
    a(f's_waitcnt vmcnt({PFK1})')
    for i in range(8):
        base = 51 if i<4 else 52
        a(f'''
        v_lshrrev_b32 v54, 3, v{40+i}
        v_lshl_or_b32 v54, v{40+i}, 29, v54
        v_lshl_or_b32 v54, v{16+i}, 15, v54
        v_add3_u32 v{40+i}, v54, v{base}, {8*(i%4)}
        ''')
    a('''
    s_waitcnt lgkmcnt(0)
    s_barrier
    ''')
    stamp(a,2,70,36)
    a('''
    ds_read_b128 v[8:11], v3
    s_waitcnt lgkmcnt(0)
    v_add_u32 v12, v8, v9
    v_add_u32 v13, v12, v10
    v_add_u32 v14, v13, v11
    v_mov_b32 v15, v14
    ''')
    for sh in (1,2,4,8):
        a(f'v_add_u32_dpp v15, v15, v15 row_shr:{sh} row_mask:0xf bank_mask:0xf')
    a('v_add_u32_dpp v15, v15, v15 row_bcast:15 row_mask:0xa bank_mask:0xf')
    a('v_add_u32_dpp v15, v15, v15 row_bcast:31 row_mask:0xc bank_mask:0xf')
    a(f'''
    s_lshl_b32 s10, s3, 2
    s_add_u32 s10, s10, {K1_WTOT}
    v_mov_b32 v16, s10
    s_mov_b32 s20, 0
    s_brev_b32 s21, 1
    s_mov_b64 exec, s[20:21]
    ds_write_b32 v16, v15
    s_mov_b64 exec, -1
    v_and_b32 v17, 7, v1
    v_lshlrev_b32 v17, 2, v17
    v_add_u32 v17, {K1_WTOT}, v17
    s_waitcnt lgkmcnt(0)
    s_barrier
    ds_read_b32 v18, v17
    v_cmp_gt_u32 vcc, s3, v1
    s_waitcnt lgkmcnt(0)
    v_cndmask_b32 v18, 0, v18, vcc
    ''')
    for sh in (1,2,4):
        a(f'v_add_u32_dpp v18, v18, v18 row_shr:{sh} row_mask:0xf bank_mask:0xf')
    a(f'''
    v_readlane_b32 s10, v18, 7
    v_sub_u32 v15, v15, v14
    v_add_u32 v8+0, s10, v15
    '''.replace('v8+0','v19'))
    a(f'''
    v_add_u32 v21, v19, v12
    v_add_u32 v22, v19, v13
    v_add_u32 v20, v19, v8
    v_mov_b32 v56, v19
    v_mov_b32 v57, v20
    v_mov_b32 v58, v21
    v_mov_b32 v59, v22
    ds_write_b128 v3, v[56:59]
    v_lshl_or_b32 v60, v20, 16, v19
    v_lshl_or_b32 v61, v22, 16, v21
    v_lshlrev_b32 v62, 3, v0
    buffer_store_dwordx2 v[60:61], v62, s[24:27], 0 offen{SC1}
    s_cmp_lg_u32 s3, 0
    s_cbranch_scc1 L1_nosent
    s_mov_b32 s10, {CH | (CH<<16)}
    v_mov_b32 v63, s10
    v_lshlrev_b32 v62, 2, v1
    v_add_u32 v62, 4096, v62
    v_cmp_gt_u32 vcc, 32, v1
    s_and_saveexec_b64 s[20:21], vcc
    buffer_store_dword v63, v62, s[24:27], 0 offen{SC1}
    s_mov_b64 exec, s[20:21]
    ''')
    a.label('L1_nosent')
    a('''
    s_waitcnt lgkmcnt(0)
    s_barrier
    ''')
    stamp(a,3,70,36)
    for u in range(4):
        a(f'ds_read_b32 v{8+u}, v{24+u}')
    a('''
    v_cmp_gt_u32 vcc, 288, v0
    s_and_saveexec_b64 s[20:21], vcc
    s_cbranch_execz L1_skipB2
    ''')
    for u in range(4):
        a(f'ds_read_b32 v{12+u}, v{28+u}')
    a('s_waitcnt lgkmcnt(0)')
    for u in range(4):
        a(f'v_add_lshl_u32 v{12+u}, v{12+u}, v{36+u}, 2')
    for u in range(4):
        a(f'ds_write_b32 v{12+u}, v{44+u} offset:{K1_STAGE}')
    a.label('L1_skipB2')
    a('s_mov_b64 exec, s[20:21]')
    a('s_waitcnt lgkmcnt(0)')
    for u in range(4):
        a(f'v_add_lshl_u32 v{8+u}, v{8+u}, v{32+u}, 2')
    for u in range(4):
        a(f'ds_write_b32 v{8+u}, v{40+u} offset:{K1_STAGE}')
    a(f'''
    s_waitcnt lgkmcnt(0)
    s_barrier
    ds_read_b128 v[8:11], v3 offset:{K1_STAGE}
    ds_read_b128 v[12:15], v3 offset:{K1_STAGE+8192}
    s_waitcnt lgkmcnt(1)
    buffer_store_dwordx4 v[8:11], v3, s[28:31], 0 offen{SC1}
    s_waitcnt lgkmcnt(0)
    buffer_store_dwordx4 v[12:15], v48, s[28:31], 0 offen{SC1}
    ''')
    stamp(a,4,70,36)
    if DEBUG_TM: a('s_waitcnt vmcnt(0)')
    stamp(a,5,70,36)
    stamp_store(a,70,36,8,9,0,3,69)
    a('s_endpgm')
    a.label('L1_wprep')
    a(f'''
    s_load_dwordx2 s[10:11], s[0:1], 40
    s_load_dwordx2 s[12:13], s[0:1], 48
    s_load_dwordx2 s[14:15], s[0:1], 56
    v_and_b32 v2, 31, v1
    v_lshrrev_b32 v3, 5, v1
    v_lshlrev_b32 v4, 4, v1
    s_waitcnt lgkmcnt(0)
    s_mov_b32 s16, s10
    s_mov_b32 s17, s11
    s_mov_b32 s18, {145*64*2}
    s_mov_b32 s19, 0x20000
    s_mov_b32 s20, s14
    s_mov_b32 s21, s15
    s_mov_b32 s22, {128*64*2}
    s_mov_b32 s23, 0x20000
    s_mov_b32 s24, s12
    s_mov_b32 s25, s13
    s_mov_b32 s26, {64*2}
    s_mov_b32 s27, 0x20000
    s_add_u32 s28, s8, {WF}
    s_addc_u32 s29, s9, 0
    s_mov_b32 s30, {WFSZ}
    s_mov_b32 s31, 0x20000
    s_mov_b32 s32, {f32bits(-LOG2E)}
    v_lshlrev_b32 v5, 1, v2
    v_lshl_add_u32 v6, v3, 10, v5
    v_lshl_add_u32 v7, v3, 9, v5
    v_lshlrev_b32 v8, 3, v3
    ''')
    frags=[]
    for blk in range(2): frags.append((F_W3+blk,'e',129,blk,'std',True))
    for s in range(4):
        for blk in range(2): frags.append((F_H1+2*s+blk,'h',16*s,blk,'std',False))
    for blk in range(2):
        for sp in range(2):
            for b2 in range(2): frags.append((F_H2+(blk*2+sp)*2+b2,'h',64+32*blk+16*sp,b2,'perm',False))
    assert len(frags)==NF
    for wv in range(8):
        a(f's_cmp_eq_u32 s3, {wv}')
        a(f's_cbranch_scc1 L1_w{wv}')
    a('s_endpgm')
    for wv in range(8):
        a.label(f'L1_w{wv}')
        mine=[f for i,f in enumerate(frags) if i%8==wv]
        for q,(F,srcn,row0,blk,kind,scaled) in enumerate(mine):
            r=16+8*q
            srd={'e':'s[16:19]','h':'s[20:23]','x':'s[24:27]'}[srcn]
            if kind=='wx':
                a(f'v_add_u32 v10, {row0*2}, v8')
                for t in range(8):
                    T=(t&3)+8*(t>>2)
                    a(f'buffer_load_ushort v{r+t}, v10, {srd}, 0 offen offset:{T*2}')
            else:
                vb = 6 if kind=='std' else 7
                a(f'v_add_u32 v10, {row0*128+blk*64}, v{vb}')
                for t in range(8):
                    T= t if kind=='std' else (t&3)+8*(t>>2)
                    a(f'buffer_load_ushort v{r+t}, v10, {srd}, 0 offen offset:{T*128}')
        if wv==0:
            a(f'''
            v_lshlrev_b32 v11, 1, v1
            v_add_u32 v11, {128*128}, v11
            buffer_load_ushort v12, v11, s[16:19], 0 offen
            ''')
        if wv==1:
            a(f'''
            v_and_b32 v11, 3, v1
            v_bfe_u32 v12, v1, 2, 2
            v_lshl_add_u32 v11, v12, 3, v11
            v_bfe_u32 v12, v1, 4, 1
            v_lshl_add_u32 v11, v12, 5, v11
            v_lshl_add_u32 v11, v3, 2, v11
            v_lshlrev_b32 v11, 1, v11
            buffer_load_ushort v12, v11, s[24:27], 0 offen
            ''')
        a('s_waitcnt vmcnt(0)')
        for q,(F,srcn,row0,blk,kind,scaled) in enumerate(mine):
            r=16+8*q
            if scaled:
                for t in range(8):
                    a(f'v_lshlrev_b32 v{r+t}, 16, v{r+t}')
                for t in range(8):
                    a(f'v_mul_f32 v{r+t}, s32, v{r+t}')
                for t in range(4):
                    a(f'v_cvt_pk_bf16_f32 v{64+t}, v{r+2*t}, v{r+2*t+1}')
            else:
                for t in range(4):
                    a(f'v_lshl_or_b32 v{64+t}, v{r+2*t+1}, 16, v{r+2*t}')
            a(f'v_add_u32 v10, {F*1024}, v4')
            a(f'buffer_store_dwordx4 v[64:67], v10, s[28:31], 0 offen{SC1W}')
            a('s_nop 1')
        if wv==0:
            a(f'''
            v_lshlrev_b32 v12, 16, v12
            v_mul_f32 v12, s32, v12
            v_cvt_pk_bf16_f32 v13, v12, v12
            v_and_b32 v14, 0xffff0000, v13
            v_sub_f32 v12, v12, v14
            v_cvt_pk_bf16_f32 v12, v12, v12
            v_and_b32 v12, 0xffff0000, v12
            v_and_b32 v13, 0xffff, v13
            v_or_b32 v13, v13, v12
            v_and_b32 v11, 31, v1
            v_lshlrev_b32 v11, 3, v11
            v_lshl_add_u32 v11, v3, 2, v11
            v_add_u32 v11, {WDO}, v11
            buffer_store_dword v13, v11, s[28:31], 0 offen
            ''')
        if wv==1:
            a(f'''
            v_lshlrev_b32 v12, 16, v12
            v_lshlrev_b32 v11, 2, v1
            v_add_u32 v11, {WXO}, v11
            buffer_store_dword v12, v11, s[28:31], 0 offen
            ''')
        if DEBUG_TM:
            a('s_waitcnt vmcnt(0)\nv_mov_b32 v70, 0')
            stamp(a,5,70,36)
            stamp_store(a,70,36,8,9,0,3,69)
        a('s_endpgm')
    a.label('L1_tables')
    if DEBUG_TM: a('v_mov_b32 v15, 0')
    stamp(a,0,15,36)
    a(f"""
    s_load_dwordx2 s[10:11], s[0:1], 0
    s_load_dwordx2 s[12:13], s[0:1], 40
    s_sub_u32 s14, s2, {0 if TFIRST else NCH+1}
    s_lshl_b32 s14, s14, 7
    s_lshr_b32 s33, s3, 1
    s_lshl_b32 s33, s33, 5
    s_and_b32 s15, s3, 1
    v_and_b32 v2, 31, v1
    v_lshrrev_b32 v3, 5, v1
    v_lshrrev_b32 v8, 3, v1
    v_and_b32 v9, 7, v1
    v_lshrrev_b32 v10, 4, v1
    s_waitcnt lgkmcnt(0)
    s_mov_b32 s16, s10
    s_or_b32 s17, s11, 0x800000
    s_mov_b32 s18, {N}
    s_mov_b32 s19, 0x20000
    s_mov_b32 s20, s12
    s_mov_b32 s21, s13
    s_mov_b32 s22, {128*128}
    s_mov_b32 s23, 0x20000
    s_mul_i32 s34, s15, {TB-TA}
    s_add_u32 s34, s34, {TA}
    s_add_u32 s24, s8, s34
    s_addc_u32 s25, s9, 0
    s_or_b32 s25, s25, 0x800000
    s_mov_b32 s26, {N}
    s_mov_b32 s27, 0x20000
    """)
    for r in range(2):
        a(f"""
        s_lshl_b32 s34, s3, 1
        s_add_u32 s34, s34, {r}
        s_lshl_b32 s35, s34, 3
        s_add_u32 s35, s35, s14
        v_add_u32 v4, s35, v8
        v_add_u32 v5, {4*r}, v10
        v_xor_b32 v5, v5, v9
        v_lshlrev_b32 v5, 4, v5
        s_lshl_b32 s34, s34, 10
        s_add_u32 m0, s34, 16384
        s_nop 0
        buffer_load_dwordx4 v[4:5], s[16:19], 0 idxen offen lds
        """)
    a(f"""
    v_lshlrev_b32 v6, 4, v1
    s_lshl_b32 s34, s3, 10
    v_add_u32 v6, s34, v6
    s_mov_b32 m0, s34
    v_add_u32 v7, 8192, v6
    buffer_load_dwordx4 v6, s[20:23], 0 offen lds
    s_add_u32 m0, s34, 8192
    s_nop 0
    buffer_load_dwordx4 v7, s[20:23], 0 offen lds
    v_and_b32 v8, 15, v1
    v_lshrrev_b32 v9, 2, v8
    v_lshl_add_u32 v9, v3, 3, v9
    v_lshlrev_b32 v9, 7, v9
    v_bfe_u32 v10, v1, 4, 1
    v_lshl_add_u32 v9, v10, 5, v9
    v_and_b32 v10, 3, v1
    v_lshl_add_u32 v9, v10, 3, v9
    s_lshl_b32 s34, s15, 13
    v_add_u32 v9, s34, v9
    v_add_u32 v10, s33, v2
    v_lshlrev_b32 v10, 7, v10
    v_add_u32 v10, 16384, v10
    v_bfe_u32 v11, v2, 1, 3
    s_mov_b32 s35, {f32bits(-LOG2E)}
    s_waitcnt vmcnt(0)
    """)
    stamp(a,1,15,36)
    a('s_barrier')
    for s_ in range(4):
        a(f"""
        v_add_u32 v12, {2*s_}, v3
        v_xor_b32 v12, v12, v11
        v_lshl_add_u32 v12, v12, 4, v10
        ds_read_b128 v[{16+4*s_}:{19+4*s_}], v12
        """)
    for s_ in range(4):
        for blk in range(2):
            r=32+4*(2*s_+blk)
            a(f'ds_read_b64_tr_b16 v[{r}:{r+1}], v9 offset:{2048*s_+64*blk}')
            a(f'ds_read_b64_tr_b16 v[{r+2}:{r+3}], v9 offset:{2048*s_+64*blk+512}')
        if s_==1: a('s_waitcnt lgkmcnt(0)')
    a('s_waitcnt lgkmcnt(0)')
    a('s_barrier')
    stamp(a,2,15,36)
    for blk in range(2):
        D=f'v[{64+16*blk}:{79+16*blk}]'
        for s_ in range(4):
            C = D if s_>0 else '0'
            r=32+4*(2*s_+blk)
            a(f'v_mfma_f32_32x32x16_bf16 {D}, v[{r}:{r+3}], v[{16+4*s_}:{19+4*s_}], {C}')
    a(f"""
    s_lshl_b32 s34, s3, 12
    v_lshlrev_b32 v4, 7, v2
    v_add_u32 v4, s34, v4
    v_and_b32 v5, 7, v2
    v_lshlrev_b32 v5, 4, v5
    """)
    for blk in range(2):
        for i in range(16):
            a(f'v_mul_f32 v{64+16*blk+i}, s35, v{64+16*blk+i}')
    a("""
    s_cmp_eq_u32 s15, 0
    s_cbranch_scc1 L1_tabA
    v_lshl_add_u32 v4, v3, 3, v4
    """)
    for blk in range(2):
        for q in range(8):
            a(f'v_cvt_pk_bf16_f32 v{32+8*blk+q}, v{64+16*blk+2*q}, v{64+16*blk+2*q+1}')
        for m in range(4):
            a(f'v_xor_b32 v6, {16*(4*blk+m)}, v5')
            a(f'v_add_u32 v6, v6, v4')
            a(f'ds_write_b64 v6, v[{32+8*blk+2*m}:{33+8*blk+2*m}]')
    a('s_branch L1_tabS')
    a.label('L1_tabA')
    for r in range(16):
        a(f'v_cvt_pk_bf16_f32 v{32+r}, v{64+r}, v{80+r}')
    a('v_lshlrev_b32 v7, 4, v3')
    for m in range(4):
        a(f'v_add_u32 v6, {32*m}, v7')
        a(f'v_xor_b32 v6, v6, v5')
        a(f'v_add_u32 v6, v6, v4')
        a(f'ds_write_b128 v6, v[{32+4*m}:{35+4*m}]')
    a.label('L1_tabS')
    stamp(a,3,15,36)
    a(f"""
    v_lshlrev_b32 v6, 4, v1
    v_add_u32 v6, s34, v6
    v_lshrrev_b32 v8, 3, v1
    v_and_b32 v9, 7, v1
    v_xor_b32 v9, v9, v8
    v_lshlrev_b32 v13, 4, v9
    s_add_u32 s14, s14, s33
    v_add_u32 v8, s14, v8
    s_waitcnt lgkmcnt(0)
    """)
    for i in range(4):
        a(f'ds_read_b128 v[{48+4*i}:{51+4*i}], v6 offset:{1024*i}')
    for i in range(4):
        a(f'v_add_u32 v12, {8*i}, v8')
        a(f's_waitcnt lgkmcnt({3-i})')
        a(f'buffer_store_dwordx4 v[{48+4*i}:{51+4*i}], v[12:13], s[24:27], 0 idxen offen{SC1T}')
    stamp(a,4,15,36)
    if DEBUG_TM: a('s_waitcnt vmcnt(0)')
    stamp(a,5,15,36)
    stamp_store(a,15,36,8,9,0,3,14)
    a('s_endpgm')
    a.label('L1_end')
    a('s_endpgm')
    return a.finalize(), 96, 40, 32768+64

L_G=0; L_R0=28672; L_RS=43264; L_S=50432; L_RING=66816; L_GTAB=148736; L_WTOT=156928; L_PD=157184; L_WST=158208; L_AST=L_WST+2560; L_HX=L_AST+2048; L_END=L_HX+1024
NHS=9
def hstage_addr(f): return L_GTAB+1024*f if f<8 else L_HX
SLOT=5120
vI=16; vW3=24; vW6=32; vS1=40; vS2=41; vD2=64; vD1=(96,128); vE=160; vX=192; vXE=208; vX6=212; vSF=216; vONE=224
vHA=228; vEAr=232; vX6r=233; vC1=234; vSTa=235; vC2=236; vMK2=237; vEAc=238; vOne=239; vHP=240
vSTb=15; vCD=14
vRSa=248; vR0a=249; vR0e=250; vGe=251; vR0=252; vG=253; vA1=254; vA2=255; vEAi=10; vEAo=11
vZero=vONE+1
vTM=12
sH=4; sEA=8; sOF=12; sEN=16; sPOS=20; sWF=24; sO0=28; sO1=32; sHD=36; sSEL=100; sTA=40
sWS=44
sW0=46; sW1=47; sV=3; sG=101; sCNT=48; sBASE=49; sNT=50; sT=51; sRB=52; sNODE0=53; sMK=89

ABL=set(x[6:] for x in sys.argv if x.startswith('--abl=') ) | ({'fprio','trim','pk','xmap','off2'} - set(x[5:] for x in sys.argv if x.startswith('--no=')))
OPT=dict(x[6:].split(':') for x in sys.argv if x.startswith('--opt='))
def optl(k,d): return [int(v.replace('n','-')) for v in OPT[k].split(',')] if k in OPT else d
TRIMK='trim'; PF2K='pf2'; TBK='tbpf'; XMK='xmap'; OFF2='off2'
EAF=''.join(' '+x for x in OPT.get('eaf','').split('+') if x); HF=''.join(' '+x for x in OPT.get('hf','').split('+') if x)
NH_ = 0 if 'noh' in ABL else N
NE_ = 0 if 'noea' in ABL else E*32
def gen_k2():
    a=Asm()
    def st(i): stamp(a,i,vTM,98)
    a.label('egnn_main_kernel')
    a(f'''
    s_cmp_ge_u32 s2, {NBK}
    s_cbranch_scc1 L2_end
    ''')
    if 'xmap' in ABL:
        a('s_and_b32 s4, s2, 7\ns_lshl_b32 s4, s4, 5\ns_lshr_b32 s2, s2, 3\ns_or_b32 s2, s2, s4')
    if DEBUG_TM: a(f'v_mov_b32 v{vTM}, 0')
    st(0)
    a(f'''
    s_load_dwordx2 s[44:45], s[0:1], 80
    s_load_dwordx4 s[36:39], s[0:1], 0
    s_load_dwordx2 s[40:41], s[0:1], 16
    s_load_dwordx2 s[42:43], s[0:1], 64
    v_and_b32 v1, 63, v0
    v_lshrrev_b32 v2, 6, v0
    v_lshrrev_b32 v3, 1, v0
    v_readfirstlane_b32 s{sV}, v2
    ''')
    if 'rot' in OPT:
        a(f'''
        s_lshr_b32 s54, s2, 5
        s_mul_i32 s54, s54, {int(OPT['rot'])}
        v_cmp_gt_u32 vcc, {NCH}, v3
        v_add_u32 v9, s54, v3
        v_subrev_u32 v10, {NCH}, v9
        s_movk_i32 s55, {NCH}
        v_cmp_gt_u32 s[56:57], s55, v9
        s_nop 1
        v_cndmask_b32 v9, v10, v9, s[56:57]
        v_cndmask_b32 v3, v3, v9, vcc
        ''')
    a(f'''
    v_and_b32 v9, 1, v0
    s_lshl_b32 s54, s2, 4
    s_mov_b32 s55, {ROW}
    {'v_mov_b32 v96, s54' if OFF2 in ABL else 'v_lshl_add_u32 v96, v9, 4, s54'}
    v_mad_u32_u24 v96, v3, s55, v96
    s_mov_b32 s{sOF+2}, {NCH*ROW}
    s_mov_b32 s{sOF+3}, 0x20000
    s_waitcnt lgkmcnt(0)
    s_add_u32 s{sOF}, s44, {OFFS}
    s_addc_u32 s{sOF+1}, s45, 0
    buffer_load_dwordx4 {'v[4:7]' if OFF2 in ABL else 'v[104:107]'}, v96, s[{sOF}:{sOF+3}], 0 offen
    {f'buffer_load_ushort v8, v96, s[{sOF}:{sOF+3}], 0 offen offset:16' if OFF2 in ABL else ''}
    ''')
    st(16)
    a(f"""
    s_mov_b32 s{sPOS}, s38
    s_mov_b32 s{sPOS+1}, s39
    s_mov_b32 s{sPOS+2}, {N*6}
    s_mov_b32 s{sPOS+3}, 0x20000
    s_add_u32 s{sWF}, s44, {WF}
    s_addc_u32 s{sWF+1}, s45, 0
    s_mov_b32 s{sWF+2}, {WFSZ}
    s_mov_b32 s{sWF+3}, 0x20000
    s_mov_b32 s{sW0}, 0
    s_mov_b32 s{sW1}, {NCH}
    s_mov_b32 s63, 2
    v_lshlrev_b32 v96, 4, v1
    s_lshl_b32 s58, s{sV}, 10
    v_add_u32 v96, s58, v96
    """)
    PE=optl('pe',[5])[0]
    assert PE<=9
    def posdma(r):
        a(f"""
        s_add_u32 m0, s58, {L_RING+8192*r}
        v_add_u32 v97, {8192*r}, v96
        buffer_load_dwordx4 v97, s[{sPOS}:{sPOS+3}], 0 offen lds
        """)
    chunks=[f"""
    s_mov_b32 s{sH}, s36
    s_or_b32 s{sH+1}, s37, 0x800000
    s_mov_b32 s{sH+2}, {N}
    s_mov_b32 s{sH+3}, 0x20000
    s_mov_b32 s{sEA}, s40
    s_mov_b32 s{sEA+1}, s41
    s_mov_b32 s{sEA+2}, {E*32}
    s_mov_b32 s{sEA+3}, 0x20000
    s_add_u32 s{sEN}, s44, {ENT}
    s_addc_u32 s{sEN+1}, s45, 0
    s_mov_b32 s{sEN+2}, {NCH*CH*4}
    s_mov_b32 s{sEN+3}, 0x20000
    """, f"""
    s_mov_b32 s{sO0}, s42
    s_or_b32 s{sO0+1}, s43, 0x800000
    s_mov_b32 s{sO0+2}, {N}
    s_mov_b32 s{sO0+3}, 0x20000
    s_add_u32 s{sO1}, s42, {N*128}
    s_addc_u32 s{sO1+1}, s43, 0
    s_mov_b32 s{sO1+2}, {N*6}
    s_mov_b32 s{sO1+3}, 0x20000
    s_add_u32 s{sHD}, s44, {TB}
    s_addc_u32 s{sHD+1}, s45, 0
    s_or_b32 s{sHD+1}, s{sHD+1}, 0x800000
    s_mov_b32 s{sHD+2}, {N}
    s_mov_b32 s{sHD+3}, 0x20000
    """, f"""
    s_add_u32 s{sTA}, s44, {TA}
    s_addc_u32 s{sTA+1}, s45, 0
    s_or_b32 s{sTA+1}, s{sTA+1}, 0x800000
    s_mov_b32 s{sTA+2}, {N}
    s_mov_b32 s{sTA+3}, 0x20000
    s_mul_i32 s{sRB}, s{sV}, {2*SLOT}
    s_add_u32 s{sRB}, s{sRB}, {L_RING}
    s_mov_b32 s{sMK}, 0xffffffe0
    s_mov_b32 s{sSEL}, 0x01000100
    v_lshrrev_b32 v98, 5, v1
    v_and_b32 v101, 1, v1
    v_xor_b32 v101, v101, v98
    v_lshlrev_b32 v{vEAc}, 4, v101
    """, f"""
    v_and_b32 v101, 7, v1
    v_lshrrev_b32 v102, 4, v1
    v_xor_b32 v103, v101, v102
    v_lshlrev_b32 v{vHP+1}, 4, v103
    v_lshlrev_b32 v{vHP+5}, 4, v103
    v_add_u32 v102, 4, v102
    v_xor_b32 v103, v101, v102
    v_lshlrev_b32 v{vHP+3}, 4, v103
    v_lshlrev_b32 v{vHP+7}, 4, v103
    """, f"""
    v_mov_b32 v{vX6}, 0
    v_mov_b32 v{vX6+1}, 0
    v_mov_b32 v{vX6+2}, 0
    v_mov_b32 v{vX6+3}, 0
    v_mfma_f32_32x32x16_bf16 v[{vD2}:{vD2+15}], v[{vX6}:{vX6+3}], v[{vX6}:{vX6+3}], 0
    v_mfma_f32_32x32x16_bf16 v[{vD2+16}:{vD2+31}], v[{vX6}:{vX6+3}], v[{vX6}:{vX6+3}], 0
    """]
    for k in range(max(PE,len(chunks))):
        if k<PE: posdma(k)
        if k<len(chunks): a(chunks[k])
    a(f"""
    s_cmp_eq_u32 s{sV}, 2
    s_cselect_b32 s54, {WDO}, s58
    s_cselect_b32 s55, 2048, s58
    v_lshlrev_b32 v97, 4, v1
    v_add_u32 v97, s54, v97
    s_add_u32 m0, s55, {L_WST}
    s_cmp_gt_u32 s{sV}, 2
    s_cbranch_scc1 L2_nowst
    v_cmp_gt_u32 vcc, 32, v1
    s_cmp_eq_u32 s{sV}, 2
    s_cselect_b64 exec, vcc, -1
    buffer_load_dwordx4 v97, s[{sWF}:{sWF+3}], 0 offen lds
    s_mov_b64 exec, -1
    """)
    a.label('L2_nowst')
    st(17)
    if TBK in ABL:
        a(f'''
        {'s_and_b32 s54, s2, 31' if XMK in ABL else 's_lshr_b32 s54, s2, 3'}
        s_mul_i32 s54, s54, 391
        s_lshl_b32 s55, s{sV}, 6
        v_add_u32 v100, s55, v1
        v_cmp_gt_u32 vcc, 391, v100
        v_add_u32 v100, s54, v100
        v_mov_b32 v101, 0
        v_mov_b32 v102, -1
        v_cndmask_b32 v100, v102, v100, vcc
        buffer_load_dword v52, v[100:101], s[{sHD}:{sHD+3}], 0 idxen offen
        ''')
    st(18)
    st(1)
    a(f's_waitcnt vmcnt({min(PE,9)+(1 if TBK in ABL else 0)})')
    if OFF2 not in ABL:
        for q in range(4):
            a(f'v_mov_b32_dpp v{4+q}, v{104+q} quad_perm:[0,0,2,2] row_mask:0xf bank_mask:0xf')
        a('v_mov_b32_dpp v8, v104 quad_perm:[1,1,3,3] row_mask:0xf bank_mask:0xf')
        a('v_and_b32 v8, 0xffff, v8')
    st(19)
    a('s_branch L2_counts')
    a.label('L2_batch')
    a(f"""
    s_barrier
    v_lshlrev_b32 v96, 4, v1
    s_lshl_b32 s58, s{sV}, 10
    v_add_u32 v96, s58, v96
    """)
    for r in range(PE): posdma(r)
    a.label('L2_counts')
    a(f"""
    v_alignbit_b32 v100, v5, v4, 16
    v_alignbit_b32 v101, v6, v5, 16
    v_alignbit_b32 v102, v7, v6, 16
    v_alignbit_b32 v103, v8, v7, 16
    v_and_b32 v105, 0xffff, v4
    v_sub_u32 v104, v8, v105
    s_sub_u32 s54, s{sW1}, s{sW0}
    v_subrev_u32 v106, s{sW0}, v3
    v_cmp_gt_u32 vcc, s54, v106
    s_mov_b32 s55, {CH*4}
    v_lshlrev_b32 v107, 2, v105
    v_lshl_add_u32 v107, v9, 4, v107
    v_cndmask_b32 v104, 0, v104, vcc
    v_lshlrev_b32 v109, 2, v9
    v_sub_u32 v109, v104, v109
    v_max_i32 v109, 0, v109
    v_mad_u32_u24 v107, v3, s55, v107
    """)
    for i in range(4):
        a(f'v_cmp_lt_u32 s[{90+2*i}:{91+2*i}], {8*i}, v109')
    for i in range(4):
        a(f's_mov_b64 exec, s[{90+2*i}:{91+2*i}]')
        a(f's_cbranch_execz L2_e{i}')
        a(f'buffer_load_dwordx4 v[{192+4*i}:{195+4*i}], v107, s[{sEN}:{sEN+3}], 0 offen offset:{32*i}')
        a.label(f'L2_e{i}')
    a('s_mov_b64 exec, -1')
    st(2)
    a(f"""
    v_pk_sub_u16 v100, v100, v4
    v_pk_sub_u16 v101, v101, v5
    v_pk_sub_u16 v102, v102, v6
    v_pk_sub_u16 v103, v103, v7
    v_cmp_eq_u32 s[56:57], 0, v9
    """)
    for q in range(4):
        a(f'v_cndmask_b32 v{100+q}, 0, v{100+q}, vcc')
    for q in range(5):
        a(f'v_cndmask_b32 v{112+q}, 0, v{100+q}, s[56:57]')
    for sh in (1,2,4,8):
        for q in range(5):
            a(f'v_add_u32_dpp v{112+q}, v{112+q}, v{112+q} row_shr:{sh} row_mask:0xf bank_mask:0xf')
    for q in range(5):
        a(f'v_add_u32_dpp v{112+q}, v{112+q}, v{112+q} row_bcast:15 row_mask:0xa bank_mask:0xf')
    for q in range(5):
        a(f'v_add_u32_dpp v{112+q}, v{112+q}, v{112+q} row_bcast:31 row_mask:0xc bank_mask:0xf')
    st(21)
    a(f"""
    s_lshl_b32 s54, s{sV}, 5
    s_add_u32 s54, s54, {L_WTOT}
    v_mov_b32 v117, s54
    s_mov_b32 s56, 0
    s_brev_b32 s57, 1
    s_mov_b64 exec, s[56:57]
    ds_write_b128 v117, v[112:115]
    ds_write_b32 v117, v116 offset:16
    s_mov_b64 exec, -1
    v_and_b32 v118, 7, v1
    v_lshlrev_b32 v118, 5, v118
    v_add_u32 v118, {L_WTOT}, v118
    s_waitcnt lgkmcnt(0)
    s_barrier
    ds_read_b128 v[120:123], v118
    ds_read_b32 v124, v118 offset:16
    """)
    st(3)
    a('s_waitcnt lgkmcnt(0)')
    for sh in (1,2,4):
        for q in range(5):
            a(f'v_add_u32_dpp v{120+q}, v{120+q}, v{120+q} row_shr:{sh} row_mask:0xf bank_mask:0xf')
    for q in range(5):
        a(f'v_readlane_b32 s{58+q}, v{120+q}, 7')
    a(f's_sub_u32 s54, s{sV}, 1')
    a(f's_max_i32 s54, s54, 0')
    for q in range(4):
        a(f'v_readlane_b32 s{64+q}, v{120+q}, s54')
    a(f's_cmp_eq_u32 s{sV}, 0')
    for q in range(4):
        a(f's_cselect_b32 s{64+q}, 0, s{64+q}')
    for q in range(4):
        a(f's_and_b32 s{68+2*q}, s{58+q}, 0xffff')
        a(f's_lshr_b32 s{69+2*q}, s{58+q}, 16')
    a('s_mov_b32 s84, 0')
    for g in range(8):
        a(f"""
        s_mov_b32 s{76+g}, s84
        s_add_u32 s54, s{68+g}, 31
        s_andn2_b32 s54, s54, 31
        s_add_u32 s84, s84, s54
        """)
    a(f"""
    s_max_u32 s54, s84, s62
    s_cmp_le_u32 s54, {CAP}
    s_cbranch_scc1 L2_fits
    s_add_u32 s{sW1}, s{sW0}, 1
    s_waitcnt vmcnt(0) lgkmcnt(0)
    s_branch L2_batch
    """)
    a.label('L2_fits')
    a(f"""
    s_cmp_eq_u32 s63, 1
    s_cbranch_scc1 L2_pidone
    """)
    if 'nopi' in ABL:
        a(f's_mov_b32 s{sG}, s{sV}')
    else:
        for g in range(8):
            a(f's_lshl_b32 s54, s{68+g}, 3')
            a(f's_add_u32 s{90+g}, s54, {7-g}')
            a(f'v_writelane_b32 v126, s{90+g}, {g}')
        a('v_mov_b32 v127, 0')
        for h in range(2):
            for k in range(4):
                pr=(56,58,54,64)[k] if False else None
            for k in range(4):
                a(f'v_cmp_gt_u32 s[{(54,56,58,60)[k]}:{(54,56,58,60)[k]+1}], s{90+4*h+k}, v126')
            for k in range(4):
                a(f'v_addc_co_u32 v127, vcc, 0, v127, s[{(54,56,58,60)[k]}:{(54,56,58,60)[k]+1}]')
        a(f"""
        s_sub_u32 s54, 11, s{sV}
        s_cmp_lt_u32 s{sV}, 4
        s_cselect_b32 s54, s{sV}, s54
        v_cmp_eq_u32 vcc, s54, v127
        s_nop 3
        s_and_b32 s54, vcc_lo, 0xff
        s_ff1_i32_b32 s{sG}, s54
        """)
    a(f"""
    s_mul_i32 s{sNODE0}, s2, {BN}
    s_add_u32 s{sNODE0}, s{sNODE0}, s{sG}
    """)
    a.label('L2_pidone')
    a(f's_mov_b32 s{sCNT}, s68')
    a(f's_mov_b32 s{sBASE}, s76')
    for g in range(1,8):
        a(f"""
        s_cmp_eq_u32 s{sG}, {g}
        s_cselect_b32 s{sCNT}, s{68+g}, s{sCNT}
        s_cselect_b32 s{sBASE}, s{76+g}, s{sBASE}
        """)
    a(f"""
    s_add_u32 s{sNT}, s{sCNT}, 31
    s_lshr_b32 s{sNT}, s{sNT}, 5
    """)
    for q in range(4):
        a(f's_pack_ll_b32_b16 s{85+q}, s{76+2*q}, s{77+2*q}')
        a(f's_add_u32 s{85+q}, s{85+q}, s{64+q}')
        a(f's_add_u32 s{85+q}, s{85+q}, {CH | (CH<<16)}')
    a(f"""
    v_lshl_or_b32 v105, v105, 16, v105
    v_mul_u32_u24 v106, 0x100010, v9
    """)
    for q in range(4):
        a(f"""
        v_sub_u32 v{112+q}, v{112+q}, v{100+q}
        v_add_u32 v{112+q}, s{85+q}, v{112+q}
        v_sub_u32 v{120+q}, v{4+q}, v105
        v_sub_u32 v{112+q}, v{112+q}, v{120+q}
        v_lshl_add_u32 v{112+q}, v{112+q}, 2, v106
        """)
    a(f"""
    v_lshlrev_b32 v108, 4, v0
    v_add_u32 v108, {L_GTAB}, v108
    ds_write_b128 v108, v[112:115]
    v_mov_b32 v104, v109
    s_mov_b32 s54, {CH*32}
    v_mul_lo_u32 v110, v3, s54
    v_mov_b32 v111, {4*CH+4*CAP}
    v_lshlrev_b32 v96, 4, v1
    s_lshl_b32 s58, s{sV}, 10
    v_add_u32 v96, s58, v96
    s_waitcnt vmcnt(0)
    """)
    st(4)
    if PE<10:
        a(f"""
        v_lshlrev_b32 v96, 4, v1
        s_lshl_b32 s58, s{sV}, 10
        v_add_u32 v96, s58, v96
        """)
        for r in range(PE,10):
            if r==9:
                a(f's_cmp_ge_u32 s{sV}, 2\ns_cbranch_scc1 L2_posdone2')
            a(f"""
            s_add_u32 m0, s58, {L_RING+8192*r}
            v_add_u32 v97, {8192*r}, v96
            buffer_load_dwordx4 v97, s[{sPOS}:{sPOS+3}], 0 offen lds
            """)
        a.label('L2_posdone2')
    a(f"""
    s_cmp_eq_u32 s63, 1
    s_cbranch_scc1 L2_noA
    s_lshl_b32 s54, s{sV}, 10
    s_add_u32 s55, s54, {L_RING+75776}
    s_add_u32 s54, s54, {L_AST-6*1024}
    s_cmp_lt_u32 s{sV}, 6
    s_cselect_b32 s62, s55, s54
    v_lshrrev_b32 v120, 3, v1
    v_lshlrev_b32 v120, 3, v120
    v_add_u32 v121, s{sG}, v120
    v_add_u32 v120, s{sNODE0}, v120
    v_cmp_gt_u32 vcc, {BN}, v121
    v_mov_b32 v122, -1
    v_and_b32 v123, 7, v1
    v_lshlrev_b32 v123, 4, v123
    v_cndmask_b32 v122, v122, v120, vcc
    s_mov_b32 m0, s62
    s_nop 0
    buffer_load_dwordx4 v[122:123], s[{sTA}:{sTA+3}], 0 idxen offen lds
    """)
    a.label('L2_noA')
    st(20)
    def quad(qreg, i, dyn=False):
        for u in range(4):
            a(f'v_lshrrev_b32 v{140+u}, 29, v{qreg+u}')
            a(f'v_lshl_add_u32 v{140+u}, v{140+u}, 1, v108')
            a(f'ds_read_u16 v{144+u}, v{140+u}')
        for u in range(4):
            if dyn: a(f'v_cmp_lt_u32 s[{90+2*u}:{91+2*u}], {u}, v104')
            else:   a(f'v_cmp_lt_u32 s[{90+2*u}:{91+2*u}], {8*i+u}, v104')
        a('s_waitcnt lgkmcnt(0)')
        for u in range(4):
            if dyn: a(f'v_add_u32 v{144+u}, v{144+u}, v149')
            a(f'v_cndmask_b32 v{144+u}, v111, v{144+u}, s[{90+2*u}:{91+2*u}]')
        ko = 0 if dyn else 8*i
        for u in range(4):
            a(f'ds_write_b32 v{144+u}, v{qreg+u} offset:{L_R0-4*CH+4*(ko+u)}')
            a(f'ds_write_b32 v{144+u}, v110 offset:{L_S-4*CH+4*(ko+u)}')
    for i in range(4):
        quad(192+4*i, i)
        a(f'v_cmp_lt_u32 vcc, {8*(i+1)}, v104')
        a('s_cbranch_vccz L2_scat_done')
    a(f'''
    v_subrev_u32 v104, 32, v104
    v_cmp_gt_i32 vcc, 0, v104
    v_mov_b32 v149, 128
    v_add_u32 v107, 128, v107
    v_cndmask_b32 v104, v104, 0, vcc
    ''')
    a.label('L2_scat_loop')
    a(f'buffer_load_dwordx4 v[192:195], v107, s[{sEN}:{sEN+3}], 0 offen')
    a('s_waitcnt vmcnt(0)')
    quad(192, 0, dyn=True)
    a(f'''
    v_subrev_u32 v104, 8, v104
    v_add_u32 v149, 32, v149
    v_add_u32 v107, 32, v107
    v_cmp_gt_i32 vcc, 0, v104
    s_nop 1
    v_cndmask_b32 v104, v104, 0, vcc
    v_cmp_lt_u32 vcc, 0, v104
    s_cbranch_vccnz L2_scat_loop
    ''')
    a.label('L2_scat_done')
    st(5)
    a('''
    s_waitcnt vmcnt(0) lgkmcnt(0)
    s_barrier
    ''')
    st(6)
    if 'hst' in ABL:
        a(f"""
        s_lshl_b32 s54, s{sV}, 10
        v_lshlrev_b32 v97, 4, v1
        s_add_u32 s55, s54, {F_H1*1024}
        v_add_u32 v98, s55, v97
        s_add_u32 m0, s54, {L_GTAB}
        s_cmp_lg_u32 s{sV}, 0
        buffer_load_dwordx4 v98, s[{sWF}:{sWF+3}], 0 offen lds
        s_cbranch_scc1 L2_hst1
        v_add_u32 v98, {(F_H1+8)*1024}, v97
        s_mov_b32 m0, {L_HX}
        s_nop 0
        buffer_load_dwordx4 v98, s[{sWF}:{sWF+3}], 0 offen lds
        """)
        a.label('L2_hst1')
    a(f"""
    v_lshrrev_b32 v100, 2, v1
    v_lshlrev_b32 v100, 3, v100
    v_add_u32 v100, s{sNODE0}, v100
    v_mul_u32_u24 v100, 6, v100
    v_and_b32 v102, 3, v1
    v_lshl_add_u32 v100, v102, 1, v100
    v_add_u32 v100, {L_RING}, v100
    ds_read_u16 v101, v100
    s_cmp_eq_u32 s63, 1
    s_cbranch_scc1 L2_noC
    s_mov_b32 s63, 1
    v_lshlrev_b32 v96, 4, v1
    v_add_u32 v96, {L_WST}, v96
    ds_read_b128 v[{vW3}:{vW3+3}], v96
    ds_read_b128 v[{vW3+4}:{vW3+7}], v96 offset:1024
    v_and_b32 v120, 31, v1
    v_lshrrev_b32 v121, 5, v1
    v_lshlrev_b32 v122, 2, v120
    v_lshl_add_u32 v122, v121, 9, v122
    v_add_u32 v122, s62, v122
    """)
    for q in range(4):
        a(f'ds_read_b32 v{40+q}, v122 offset:{128*q}')
    a(f"""
    v_lshlrev_b32 v120, 3, v120
    v_add_u32 v120, {L_WST+2048}, v120
    ds_read_b64 v[44:45], v120
    v_cmp_gt_u32 vcc, 32, v1
    s_waitcnt lgkmcnt(0)
    v_cndmask_b32 v44, v44, 0, vcc
    v_cndmask_b32 v45, v45, 0, vcc
    """)
    for q in range(4):
        a(f'v_and_b32 v{vW6+q}, 0xffff, v{40+q}')
        a(f'v_lshrrev_b32 v{vW6+4+q}, 16, v{40+q}')
    a(f"""
    v_or_b32 v{vW6+3}, v{vW6+3}, v44
    v_or_b32 v{vW6+7}, v{vW6+7}, v45
    """)
    a.label('L2_noC')
    a(f"""
    s_lshl_b32 s54, s{sV}, 7
    s_add_u32 s54, s54, {L_PD}
    v_lshlrev_b32 v97, 2, v1
    v_add_u32 v97, s54, v97
    s_waitcnt lgkmcnt(0)
    v_lshlrev_b32 v101, 16, v101
    s_mov_b32 exec_hi, 0
    ds_write_b32 v97, v101
    s_mov_b64 exec, -1
    """)
    a(f'''
    s_lshl_b32 s54, s{sV}, 7
    s_add_u32 s54, s54, {L_PD}
    v_mov_b32 v98, s54
    v_mov_b32 v99, {L_RING}
    v_add_u32 v96, s{sBASE}, v1
    v_mov_b32 v97, v1
    s_mov_b32 s{sT}, 0
    s_mov_b32 s55, 0xffff0000
    s_movk_i32 s56, 0x7fff
    s_mov_b32 s{sHD+2}, {N}
    s_mov_b32 s{sEA+2}, {E*32}
    ''')
    a(f'''
    s_lshl_b32 s54, s{sNT}, 5
    s_sub_u32 s54, s54, 32
    v_add_u32 v100, s54, v1
    v_cmp_le_u32 s[58:59], s{sCNT}, v100
    v_cmp_gt_u32 vcc, 32, v1
    s_and_b64 vcc, vcc, s[58:59]
    s_cmp_eq_u32 s{sNT}, 0
    s_cbranch_scc1 L2_nodummy
    s_and_saveexec_b64 s[58:59], vcc
    s_cbranch_execz L2_dummy_restore
    v_add_u32 v100, s{sBASE}, v100
    v_lshlrev_b32 v101, 2, v100
    v_mov_b32 v102, 28
    ds_write_b32 v101, v102 offset:{L_R0}
    v_lshlrev_b32 v101, 1, v100
    v_mov_b32 v102, 0
    v_mov_b32 v103, 0
    ds_write_b16 v101, v102 offset:{L_RS}
    v_lshlrev_b32 v101, 3, v100
    ds_write_b64 v101, v[102:103] offset:{L_G}
    ''')
    a.label('L2_dummy_restore')
    a('s_mov_b64 exec, s[58:59]')
    a.label('L2_nodummy')
    def R(it,k): return 112+20*it+k
    def geo_pass(NI, first):
        for it in range(NI):
            a(f'ds_read_b32 v{R(it,1)}, v96 offset:{L_R0+256*it}')
            a(f'ds_read_b32 v{R(it,2)}, v96 offset:{L_S+256*it}')
        a('v_lshrrev_b32 v104, 1, v96')
        a('v_lshlrev_b32 v105, 1, v96')
        for it in range(NI):
            if it==0: a(f'v_cmp_lt_i32 s[90:91], 0, v97')
            elif it==1: a(f'v_cmp_lt_i32 s[92:93], 64, v97')
            else: a(f'v_cmp_lt_i32 s[{90+2*it}:{91+2*it}], s{57 if it==2 else 54}, v97')
        for it in range(NI):
            e=R(it,1); wb=R(it,2)
            a(f's_waitcnt lgkmcnt({2*(NI-1-it)+2*it})')
            a(f"""
            v_bfe_u32 v{R(it,3)}, v{e}, 15, 14
            v_and_b32 v{R(it,4)}, 7, v{e}
            v_mad_u32_u24 v{R(it,5)}, v{R(it,3)}, 6, v99
            v_lshl_add_u32 v{R(it,7)}, v{R(it,4)}, 4, v98
            v_and_b32 v{R(it,5)}, -4, v{R(it,5)}
            ds_read_b96 v[{R(it,8)}:{R(it,10)}], v{R(it,7)}
            ds_read2_b32 v[{R(it,12)}:{R(it,13)}], v{R(it,5)} offset1:1
            v_and_b32 v{R(it,5)}, s56, v{e}
            v_lshl_add_u32 v{wb}, v{R(it,5)}, 2, v{wb}
            v_lshlrev_b32 v{R(it,6)}, 4, v{R(it,3)}
            """)
        if first and 'nopf' not in ABL:
            a(f"""
            v_and_b32 v48, s{sMK}, v{R(0,2)}
            v_mov_b32 v51, 0
            v_mov_b32 v50, v{R(0,3)}
            s_mov_b32 exec_hi, 0
            buffer_load_dword v48, v48, s[{sEA}:{sEA+3}], 0 offen
            buffer_load_dword v49, v[50:51], s[{sHD}:{sHD+3}], 0 idxen offen
            s_mov_b64 exec, -1
            """)
        for it in range(NI):
            pd=R(it,8); ps=R(it,12); sh=R(it,6); t0=R(it,4); t1=R(it,5); t2=R(it,7); o=R(it,14); t3=R(it,17)
            a(f's_waitcnt lgkmcnt({2*(NI-1-it)+3*it})')
            a(f"""
            v_alignbit_b32 v{t0}, v{ps+1}, v{ps}, v{sh}
            v_lshrrev_b32 v{t2}, v{sh}, v{ps+1}
            v_lshlrev_b32 v{t1}, 16, v{t0}
            v_and_b32 v{t0}, s55, v{t0}
            v_lshlrev_b32 v{t2}, 16, v{t2}
            v_sub_f32 v{t1}, v{pd}, v{t1}
            v_sub_f32 v{t0}, v{pd+1}, v{t0}
            v_sub_f32 v{t2}, v{pd+2}, v{t2}
            v_mul_f32 v{t3}, v{t1}, v{t1}
            v_cvt_pk_bf16_f32 v{o+1}, v{t0}, v{t2}
            v_fmac_f32 v{t3}, v{t0}, v{t0}
            v_fmac_f32 v{t3}, v{t2}, v{t2}
            s_mov_b64 exec, s[{90+2*it}:{91+2*it}]
            ds_write_b32 v96, v{R(it,2)} offset:{L_R0+256*it}
            v_cvt_pk_bf16_f32 v{o}, v{t3}, v{t1}
            ds_write_b16 v104, v{R(it,3)} offset:{L_RS+128*it}
            ds_write_b64 v105, v[{o}:{o+1}] offset:{L_G+512*it}
            s_mov_b64 exec, -1
            """)
        a(f"""
        v_add_u32 v96, {256*NI}, v96
        v_subrev_u32 v97, {64*NI}, v97
        s_add_u32 s{sT}, s{sT}, {64*NI}
        """)
    a(f"""
    v_lshlrev_b32 v96, 2, v96
    v_sub_u32 v97, s{sCNT}, v97
    s_movk_i32 s57, 128
    s_movk_i32 s54, 192
    s_cmp_eq_u32 s{sCNT}, 0
    s_cbranch_scc1 L2_geo_done
    """)
    geo_pass(4, True)
    a.label('L2_geo_loop')
    a(f"""
    s_cmp_ge_u32 s{sT}, s{sCNT}
    s_cbranch_scc1 L2_geo_done
    """)
    geo_pass(3, False)
    a('s_branch L2_geo_loop')
    a.label('L2_geo_done')
    a(f"""
    v_lshrrev_b32 v97, 3, v1
    v_add_u32 v97, s{sBASE}, v97
    v_lshlrev_b32 v97, 1, v97
    v_add_u32 v{vRSa}, {L_RS}, v97
    v_lshrrev_b32 v97, 1, v1
    v_add_u32 v97, s{sBASE}, v97
    v_lshlrev_b32 v97, 2, v97
    v_add_u32 v{vR0a}, {L_R0}, v97
    v_and_b32 v97, 31, v1
    v_add_u32 v97, s{sBASE}, v97
    v_lshlrev_b32 v98, 2, v97
    v_add_u32 v{vR0e}, {L_R0}, v98
    v_lshrrev_b32 v98, 5, v1
    v_lshlrev_b32 v98, 2, v98
    v_lshl_add_u32 v98, v97, 3, v98
    v_add_u32 v{vGe}, {L_G}, v98
    s_mov_b32 s{sT}, 0
    s_sub_u32 s86, s{sNT}, 3
    s_sub_u32 s87, s{sNT}, 1
    """)
    for i in range(4): a(f'ds_read_u16 v{vHP+2*i}, v{vRSa} offset:{16*i}')
    a(f'ds_read_b32 v{vEAi}, v{vR0a}')
    a(f'ds_read_b32 v{vR0}, v{vR0e}')
    a(f'ds_read_b32 v{vG}, v{vGe}')
    if 'fprio' in ABL:
        PER=optl('per',[12])[0]
        a(f"""
        v_cvt_f32_u32 v96, s{sNT}
        v_rcp_f32 v96, v96
        s_nop 0
        v_mul_f32 v96, {f32bits(float(PER*65536*(2 if TRIMK in ABL else 1)))}, v96
        v_cvt_u32_f32 v96, v96
        s_nop 0
        v_readfirstlane_b32 s85, v96
        s_mov_b32 s84, 0
        s_sub_u32 s84, s84, s85
        """)
    a(f"""
    s_lshl_b32 s54, s{sV}, 11
    s_add_u32 s54, s54, {L_S}
    v_lshlrev_b32 v96, 4, v1
    v_add_u32 v96, s54, v96
    v_mov_b32 v100, 0
    v_mov_b32 v101, 0
    v_mov_b32 v102, 0
    v_mov_b32 v103, 0
    v_and_or_b32 v{vEAo}, v{vEAi}, s{sMK}, v{vEAc}
    """)
    if 'hst' in ABL:
        a(f"""
        s_cmp_eq_u32 s{sCNT}, 0
        s_cbranch_scc1 L2_hw0
        s_waitcnt vmcnt({0 if 'nopf' in ABL else 2})
        s_branch L2_hw1
        """)
        a.label('L2_hw0')
        a('s_waitcnt vmcnt(0)')
        a.label('L2_hw1')
    a(f"""
    s_waitcnt lgkmcnt(0)
    s_barrier
    """)
    st(7)
    a(f"""
    ds_write_b128 v96, v[100:103]
    ds_write_b128 v96, v[100:103] offset:1024
    """)
    if 'lone' in ABL:
        a(f's_cmp_ge_u32 s{sV}, 4\ns_cselect_b32 s{sNT}, 0, s{sNT}')
    a(f"""
    s_cmp_eq_u32 s{sNT}, 0
    s_cbranch_scc1 L2_notiles
    """)
    def idx_reads(toff):
        return [f'ds_read_u16 v{vHP+2*i}, v{vRSa} offset:{64*toff+16*i}' for i in range(4)] + \
               [f'ds_read_b32 v{vEAi}, v{vR0a} offset:{128*toff}']
    def rec_reads(toff):
        return [f'ds_read_b32 v{vR0}, v{vR0e} offset:{128*toff}', f'ds_read_b32 v{vG}, v{vGe} offset:{256*toff}']
    def srd_select(delta):
        return [f's_add_u32 s54, s{sT}, {delta}\ns_cmp_lt_u32 s54, s{sNT}\ns_cselect_b32 s{sHD+2}, {NH_}, 0\ns_cselect_b32 s{sEA+2}, {NE_}, 0']
    def dma2(slot):
        r=[(f'v_and_or_b32 v{vEAo}, v{vEAi}, s{sMK}, v{vEAc}\ns_add_u32 m0, s{sRB}, {slot*SLOT+4096}', f'buffer_load_dwordx4 v{vEAo}, s[{sEA}:{sEA+3}], 0 offen{EAF} lds')]
        for i in range(4):
            r.append((f's_add_u32 m0, s{sRB}, {slot*SLOT+1024*i}', f'buffer_load_dwordx4 v[{vHP+2*i}:{vHP+2*i+1}], s[{sHD}:{sHD+3}], 0 idxen offen{HF} lds'))
        return r
    def dma(slot):
        return [x+'\n'+y for x,y in dma2(slot)]
    def x_reads(slot):
        return [f'ds_read_b128 v[{vX+4*s}:{vX+4*s+3}], v{vHA+s} offset:{slot*SLOT}' for s in range(4)] + \
               [f'ds_read_b128 v[{vXE}:{vXE+3}], v{vEAr} offset:{slot*SLOT}']
    def s_addr(): return [f'v_bitop3_b32 v{vA1}, v{vR0}, 28, v{vC1} bitop3:0x6a', f'v_bfi_b32 v{vS1}, v{vMK2}, v{vG}, v{vOne}', f'v_perm_b32 v{vS2}, v{vG}, v{vG}, s{sSEL}']
    def s_writes(): return [f'ds_write_b32 v{vA1}, v{vS1}', f'ds_write_b32 v{vCD}, v{vS2}']
    def x6_read(): return [f'ds_read_b128 v[{vX6}:{vX6+3}], v{vX6r}']
    def sf_reads():
        r=[]
        for s2 in range(2):
            r.append(f'ds_read_b64_tr_b16 v[{vSF+4*s2}:{vSF+4*s2+1}], v{vSTa} offset:{1024*s2}')
            r.append(f'ds_read_b64_tr_b16 v[{vSF+4*s2+2}:{vSF+4*s2+3}], v{vSTb} offset:{1024*s2}')
        return r
    def s_restore(): return [f'ds_write_b32 v{vA1}, v{vZero}']
    def mfma1(dst):
        r=[]
        for blk in range(2):
            D=f'v[{dst+16*blk}:{dst+16*blk+15}]'
            for sp in range(2):
                C = D if sp>0 else '0'
                s_=2*blk+sp
                r.append(f'v_mfma_f32_32x32x16_bf16 {D}, v[{vX+4*s_}:{vX+4*s_+3}], v[{vI+4*sp}:{vI+4*sp+3}], {C}')
            r.append(f'v_mfma_f32_32x32x16_bf16 {D}, v[{vXE}:{vXE+3}], v[{vW3+4*blk}:{vW3+4*blk+3}], {D}')
            r.append(f'v_mfma_f32_32x32x16_bf16 {D}, v[{vX6}:{vX6+3}], v[{vW6+4*blk}:{vW6+4*blk+3}], {D}')
        return r
    ONE=f'v[{vONE}:{vONE+3}]'
    def plus1(blk):
        Eb=f'v[{vE+16*blk}:{vE+16*blk+15}]'
        return f'v_mfma_f32_32x32x16_bf16 {Eb}, {ONE}, {ONE}, {Eb}'
    def mfma2(cur,blk,s2):
        D=f'v[{vD2+16*blk}:{vD2+16*blk+15}]'; m=cur+8*blk+4*s2
        return f'v_mfma_f32_32x32x16_bf16 {D}, v[{m}:{m+3}], v[{vSF+4*s2}:{vSF+4*s2+3}], {D}'
    def keep(x):
        if 'nomfma' in ABL and x.startswith('v_mfma'): return False
        if 'nolds' in ABL and x.startswith('ds_'): return False
        if 'nodma' in ABL and 'buffer_load' in x: return False
        if 'notrans' in ABL and x.startswith(('v_exp','v_rcp')): return False
        if 'novalu' in ABL and x.startswith(('v_exp','v_rcp','v_mul','v_cvt','v_pk_mul')): return False
        return True
    def emit(backbone, inserts):
        backbone=[x if keep(x) else 's_nop 0' for x in backbone]
        inserts={k:[x for x in v if keep(x)] for k,v in inserts.items()}
        for k_ in sorted(k for k in inserts if k<0):
            for s_ in inserts[k_]: a(s_)
        for i,ins in enumerate(backbone):
            a(ins)
            for s_ in inserts.get(i,[]): a(s_)
    nlab=[0]
    PK='pk' in ABL
    DMAPOS=optl('dma',[37,48,60,70,82] if PK else [41,52,63,76,92])
    M1POS=optl('m1',[37,40,43,46,49,52,55,58] if PK else [42,46,50,54,58,62,68,74])
    SFPOS=optl('sf',[0,2,4,6]); RSPOS=optl('rs',[8])[0]; SAPOS=optl('sa',[9,10,11]); SWPOS=optl('sw',[12,13]); X6POS=optl('x6',[14])[0]
    VMPOS=optl('vm',[16])[0]; XPOS=optl('x',[16,18,20,22,24]); RECPOS=optl('rec',[26,27]); IDXPOS=optl('idx',[28,29,30,31,32])
    LGPOS=optl('lg',[36] if PK else [40])[0]; M2POS=optl('m2',[85,89,93,95] if PK else [89,95,111,111]); P1POS=optl('p1',[17,33])
    def body(p, steady, extra_first=None):
        cur=vD1[p]; nxt=vD1[1-p]
        bb=[]
        for blk in range(2):
            bb += [f'v_exp_f32 v{vE+16*blk+i}, v{cur+16*blk+i}' for i in range(16)]
        for blk in range(2):
            bb += [f'v_rcp_f32 v{vE+16*blk+i}, v{vE+16*blk+i}' for i in range(16)]
        if 'pk' in ABL:
            bb += [f'v_pk_mul_f32 v[{vE+2*i}:{vE+2*i+1}], v[{vE+2*i}:{vE+2*i+1}], v[{cur+2*i}:{cur+2*i+1}]' for i in range(16)]
            bb += [f'v_cvt_pk_bf16_f32 v{cur+q}, v{vE+2*q}, v{vE+2*q+1}' for q in range(16)]
        else:
            bb += [f'v_mul_f32 v{vE+i}, v{vE+i}, v{cur+i}' for i in range(16)]
            bb += [f'v_cvt_pk_bf16_f32 v{cur+q}, v{vE+2*q}, v{vE+2*q+1}' for q in range(8)]
            bb += [f'v_mul_f32 v{vE+16+i}, v{vE+16+i}, v{cur+16+i}' for i in range(16)]
            bb += [f'v_cvt_pk_bf16_f32 v{cur+8+q}, v{vE+16+2*q}, v{vE+16+2*q+1}' for q in range(8)]
        ins={}
        def put(pos,x):
            ins.setdefault(pos,[]).append(x)
        if not ('trim' in ABL and steady): put(-100,'s_waitcnt lgkmcnt(0)')
        if 'prio' in ABL:
            put(-99,f'''s_and_b32 s54, s{sT}, 2
            s_cmp_eq_u32 s54, 0
            s_cbranch_scc1 Lp{nlab[0]}a
            s_setprio {1-p}
            s_branch Lp{nlab[0]}b
            Lp{nlab[0]}a:
            s_setprio {3-p}
            Lp{nlab[0]}b:''')
            nlab[0]+=1
        if 'fprio' in ABL and not ('trim' in ABL and p==1):
            n=nlab[0]
            put(-99,f'''s_add_u32 s84, s84, s85
            s_bitcmp1_b32 s84, 17
            s_cbranch_scc1 Lp{n}h
            s_bitcmp1_b32 s84, 16
            s_cbranch_scc1 Lp{n}a
            s_setprio 3
            s_branch Lp{n}z
            Lp{n}a:
            s_setprio 2
            s_branch Lp{n}z
            Lp{n}h:
            s_bitcmp1_b32 s84, 16
            s_cbranch_scc1 Lp{n}b
            s_setprio 1
            s_branch Lp{n}z
            Lp{n}b:
            s_setprio 0
            Lp{n}z:''')
            nlab[0]+=1
        if steady and p==0:
            n=nlab[0]; nlab[0]+=1
            put(0,f's_cmp_lg_u32 s{sT}, 0\ns_cbranch_scc1 Ld{n}\n'+'\n'.join(dma(0))+f'\nLd{n}:')
        for x,q in zip(sf_reads(),SFPOS): put(q,x)
        put(RSPOS,s_restore()[0])
        if extra_first:
            for x in extra_first: put(RSPOS+4,x)
        put(P1POS[0],plus1(0))
        put(P1POS[1],plus1(1))
        if steady:
            for x,q in zip(s_addr(),SAPOS): put(q,x)
            for x,q in zip(s_writes(),SWPOS): put(q,x)
            put(X6POS,x6_read()[0])
            put(VMPOS,'s_waitcnt vmcnt(5)')
            for x,q in zip(x_reads(1-p),XPOS): put(q,x)
            for x,q in zip(rec_reads(p+2),RECPOS): put(q,x)
            for x,q in zip(idx_reads(p+3),IDXPOS): put(q,x)
            if 'trim' in ABL:
                n=nlab[0]; nlab[0]+=1
                put(LGPOS-2,f's_cmp_lt_i32 s{sT}, s86\ns_cbranch_scc1 Lz{n}\ns_mov_b32 s{sHD+2}, 0\ns_mov_b32 s{sEA+2}, 0\nLz{n}:')
            else: put(LGPOS-2,srd_select(3)[0])
            put(LGPOS,'s_waitcnt lgkmcnt(0)')
            for (x,y),q in zip(dma2(1-p),DMAPOS):
                if q>0 and q-1>LGPOS-1 and 'trim' in ABL: put(q-1,x); put(q,y)
                else: put(q,x+'\n'+y)
            for x,q in zip(mfma1(nxt),M1POS): put(q,x)
        for (b_,s_),q in zip(((0,0),(0,1),(1,0),(1,1)),M2POS): put(q,mfma2(cur,b_,s_))
        emit(bb,ins)
    def late_consts(a):
        a(f'''
        v_and_b32 v97, 31, v1
        v_lshrrev_b32 v98, 5, v1
        v_bfe_u32 v99, v97, 1, 3
        v_lshlrev_b32 v100, 7, v97
        v_add_u32 v100, s{sRB}, v100
        ''')
        for s in range(4):
            a(f'''
            v_add_u32 v101, {2*s}, v98
            v_xor_b32 v101, v101, v99
            v_lshl_add_u32 v{vHA+s}, v101, 4, v100
            ''')
        a(f'''
        v_lshrrev_b32 v101, 4, v97
        v_xor_b32 v101, v101, v98
        v_lshlrev_b32 v101, 4, v101
        v_lshl_add_u32 v101, v97, 5, v101
        v_add_u32 v101, s{sRB}, v101
        v_add_u32 v{vEAr}, 4096, v101
        s_lshl_b32 s57, s{sV}, 11
        s_add_u32 s57, s57, {L_S}
        v_lshlrev_b32 v101, 6, v97
        v_add_u32 v101, s57, v101
        v_bfe_u32 v102, v97, 2, 2
        v_xor_b32 v103, v98, v102
        v_lshl_add_u32 v{vX6r}, v103, 4, v101
        v_lshlrev_b32 v103, 1, v98
        v_xor_b32 v104, v103, v102
        v_lshl_add_u32 v{vC1}, v104, 4, v101
        v_add_u32 v103, 1, v103
        v_xor_b32 v104, v103, v102
        v_lshl_add_u32 v104, v104, 4, v101
        v_add_u32 v{vCD}, 12, v104
        v_cmp_gt_u32 vcc, 32, v1
        v_mov_b32 v103, 0xffff0000
        v_mov_b32 v104, -1
        v_cndmask_b32 v{vMK2}, v104, v103, vcc
        v_mov_b32 v{vOne}, 0x3f80
        v_mov_b32 v{vONE+1}, 0
        v_mov_b32 v{vONE+2}, 0
        v_mov_b32 v{vONE+3}, 0
        v_cndmask_b32 v{vONE}, 0, v{vOne}, vcc
        v_lshlrev_b32 v101, 3, v98
        v_sub_u32 v101, v97, v101
        v_and_b32 v102, 1, v101
        v_lshlrev_b32 v102, 4, v102
        v_lshlrev_b32 v102, v102, v{vOne}
        v_ashrrev_i32 v101, 1, v101
        ''')
        for k in range(8):
            q=8*(k>>2)+(k&3)
            a(f'v_cmp_eq_u32 s[{90+2*(k&3)}:{91+2*(k&3)}], {q}, v101')
            if (k&3)==3:
                for kk in range(k-3,k+1):
                    a(f'v_cndmask_b32 v{vI+kk}, 0, v102, s[{90+2*(kk&3)}:{91+2*(kk&3)}]')
        a(f'''
        v_and_b32 v101, 15, v1
        v_lshrrev_b32 v101, 2, v101
        v_lshl_add_u32 v101, v98, 2, v101
        v_lshlrev_b32 v101, 6, v101
        v_and_b32 v102, 1, v1
        v_lshl_add_u32 v101, v102, 3, v101
        v_add_u32 v101, s57, v101
        v_bfe_u32 v102, v1, 4, 1
        v_bfe_u32 v103, v1, 1, 1
        v_lshl_add_u32 v102, v102, 1, v103
        v_xor_b32 v103, v102, v98
        v_lshl_add_u32 v{vSTa}, v103, 4, v101
        v_add_u32 v103, 2, v98
        v_xor_b32 v103, v102, v103
        v_lshl_add_u32 v103, v103, 4, v101
        v_add_u32 v{vSTb}, 512, v103
        ''')

    lc=Asm(); late_consts(lc); lcl=list(lc.lines); per=(len(lcl)+9)//10
    def dma_lc(slot,k0):
        for k,x in enumerate(dma(slot)):
            a(x)
            if 'ilc' in ABL:
                for y in lcl[(k0+k)*per:(k0+k+1)*per]: a(y)
    a(f's_mov_b32 s{sHD+2}, {N}')
    a(f's_mov_b32 s{sEA+2}, {E*32}')
    dma_lc(0,0)
    st(13+18)
    for x in idx_reads(1): a(x)
    a(srd_select(1)[0])
    a('s_waitcnt lgkmcnt(0)')
    dma_lc(1,5)
    st(14)
    for x in idx_reads(2): a(x)
    a(srd_select(2)[0])
    if 'ilc' not in ABL:
        for y in lcl: a(y)
    for x in s_addr(): a(x)
    for x in s_writes(): a(x)
    for x in x6_read(): a(x)
    st(15)
    a('s_waitcnt vmcnt(5)')
    st(30)
    for x in x_reads(0): a(x)
    for x in rec_reads(1): a(x)
    a('s_waitcnt lgkmcnt(0)')
    for x in mfma1(vD1[0]): a(x)
    st(8)
    stampc(a,12,vTM,98)
    if DEBUG_TM: a(f'v_writelane_b32 v{vTM}, s{sNT}, 22\nv_writelane_b32 v{vTM}, s{sG}, 23\ns_getreg_b32 s98, hwreg(HW_REG_HW_ID)\nv_writelane_b32 v{vTM}, s98, 24')
    JM=[0,1,4,5]
    RESV=[[232,233,234,236],[237,238,252,253]]
    WXV=[192,196,200,204,208,212,228,248]
    def epi_prefetch(p):
        nxt=vD1[1-p]
        r=[]
        r.append('v_lshlrev_b32 v10, 4, v1')
        for ff in range(16):
            dst = 16+4*ff if ff<8 else nxt+4*(ff-8)
            if 'hst' in ABL and ff<NHS:
                r.append(f'v_add_u32 v9, {hstage_addr(ff)}, v10\nds_read_b128 v[{dst}:{dst+3}], v9')
            else:
                r.append(f'v_add_u32 v9, {(F_H1+ff)*1024}, v10\nbuffer_load_dwordx4 v[{dst}:{dst+3}], v9, s[{sWF}:{sWF+3}], 0 offen')
        r.append(f"""
        v_lshrrev_b32 v9, 3, v1
        v_lshlrev_b32 v9, 3, v9
        v_add_u32 v3, s{sG}, v9
        v_add_u32 v9, s{sNODE0}, v9
        v_cmp_gt_u32 vcc, {BN}, v3
        v_mov_b32 v4, -1
        v_and_b32 v241, 7, v1
        v_lshlrev_b32 v241, 4, v241
        v_cndmask_b32 v240, v4, v9, vcc
        """)
        r.append(f"""
        v_bfe_u32 v9, v1, 1, 3
        v_lshlrev_b32 v9, 3, v9
        v_add_u32 v3, s{sG}, v9
        v_add_u32 v9, s{sNODE0}, v9
        v_bfe_u32 v5, v1, 4, 1
        v_and_b32 v8, 1, v1
        v_lshl_add_u32 v5, v5, 1, v8
        v_cmp_gt_u32 vcc, {BN}, v3
        v_subrev_u32 v5, 1, v5
        v_cmp_gt_u32 s[56:57], 3, v5
        v_mul_u32_u24 v9, 6, v9
        s_and_b64 vcc, vcc, s[56:57]
        v_cmp_gt_u32 s[56:57], 32, v1
        v_lshl_add_u32 v9, v5, 1, v9
        v_mov_b32 v4, 0x7fffff00
        s_and_b64 vcc, vcc, s[56:57]
        v_cndmask_b32 v10, v4, v9, vcc
        buffer_load_ushort v11, v10, s[{sPOS}:{sPOS+3}], 0 offen
        """)
        return r
    def epi_rows():
        return f"""s_waitcnt lgkmcnt(0)
        s_lshl_b32 s62, s{sV}, 11
        s_add_u32 s62, s62, {L_S}
        s_mov_b32 m0, s62
        s_nop 0
        buffer_load_dwordx4 v[240:241], s[{sH}:{sH+3}], 0 idxen offen lds"""
    def epilogue(p):
        nxt=vD1[1-p]; cur=vD1[p]
        pk=vE; T=vE+16; acc=vE+24
        a(f"""
        v_and_b32 v3, 31, v1
        v_lshrrev_b32 v4, 5, v1
        v_bfe_u32 v5, v1, 1, 3
        v_lshlrev_b32 v5, 7, v5
        v_lshl_add_u32 v5, v4, 4, v5
        v_add_u32 v5, s62, v5
        v_lshlrev_b32 v6, 7, v4
        v_add_u32 v6, {L_WST+2048+256}, v6
        v_lshlrev_b32 v7, 1, v3
        v_lshl_add_u32 v7, v4, 8, v7
        v_add_u32 v7, s62, v7
        s_mov_b32 s54, {f32bits(-math.log(2.0))}
        s_mov_b32 s55, s54
        s_waitcnt vmcnt(0)
        """)
        for s_ in range(4):
            a(f'ds_read_b128 v[{48+4*s_}:{51+4*s_}], v5 offset:{32*s_}')
        for f in range(8):
            a(f'ds_read_b128 v[{WXV[f]}:{WXV[f]+3}], v6 offset:{16*f}')
        for i in range(16):
            a(f'v_pk_mul_f32 v[{vD2+2*i}:{vD2+2*i+1}], v[{vD2+2*i}:{vD2+2*i+1}], s[54:55]')
        a('s_waitcnt lgkmcnt(8)')
        for b2 in range(2):
            D=f'v[{cur+16*b2}:{cur+16*b2+15}]'
            for s_ in range(4):
                C = D if s_>0 else '0'
                a(f'v_mfma_f32_32x32x16_bf16 {D}, v[{48+4*s_}:{51+4*s_}], v[{16+4*(2*s_+b2)}:{19+4*(2*s_+b2)}], {C}')
            if b2==0:
                for blk in range(2):
                    for q in range(8):
                        a(f'v_cvt_pk_bf16_f32 v{pk+8*blk+q}, v{vD2+16*blk+2*q}, v{vD2+16*blk+2*q+1}')
        for b2 in range(2):
            for m in range(4):
                a(f'ds_read_u16 v{RESV[b2][m]}, v7 offset:{128*JM[m]+64*b2}')
        for b2 in range(2):
            D=f'v[{cur+16*b2}:{cur+16*b2+15}]'
            for blk in range(2):
                for sp in range(2):
                    f=(blk*2+sp)*2+b2
                    a(f'v_mfma_f32_32x32x16_bf16 {D}, v[{pk+8*blk+4*sp}:{pk+8*blk+4*sp+3}], v[{nxt+4*f}:{nxt+4*f+3}], {D}')
            if b2==0:
                a('s_waitcnt lgkmcnt(8)')
                a(f'v_mul_f32 v{acc}, v{vD2}, v{WXV[0]}')
                a(f'v_mul_f32 v{acc+1}, v{vD2+1}, v{WXV[0]+1}')
                for i in range(2,32):
                    a(f'v_fmac_f32 v{acc+(i&1)}, v{vD2+i}, v{WXV[i>>2]+(i&3)}')
                a(f'v_add_f32 v{acc}, v{acc}, v{acc+1}')
                a(f'v_mov_b32 v{acc+1}, v{acc}')
        a(f'v_permlane32_swap_b32 v{acc}, v{acc+1}')
        a(f"""
        v_lshlrev_b32 v11, 16, v11
        v_add_f32 v{acc}, v{acc}, v{acc+1}
        v_add_f32 v11, v11, v{acc}
        v_cvt_pk_bf16_f32 v11, v11, v11
        buffer_store_short v11, v10, s[{sO1}:{sO1+3}], 0 offen
        s_mov_b32 s54, {f32bits(-LOG2E)}
        """)
        for b2 in range(2):
            for m in range(4):
                a(f'v_mul_f32 v{T+4*b2+m}, s54, v{cur+16*b2+2*m}')
        for k in range(8): a(f'v_exp_f32 v{T+k}, v{T+k}')
        for k in range(8): a(f'v_add_f32 v{T+k}, 1.0, v{T+k}')
        for k in range(8): a(f'v_rcp_f32 v{T+k}, v{T+k}')
        a('s_waitcnt lgkmcnt(0)')
        for b2 in range(2):
            for m in range(4):
                x=cur+16*b2+2*m; t=T+4*b2+m; hh=RESV[b2][m]
                a(f'v_lshlrev_b32 v{hh}, 16, v{hh}')
                a(f'v_fma_f32 v{t}, v{x}, v{t}, v{hh}')
                a(f'v_cvt_pk_bf16_f32 v{t}, v{t}, v{t}')
        for b2 in range(2):
            for m in range(4):
                a(f'ds_write_b16 v7, v{T+4*b2+m} offset:{1024+128*JM[m]+64*b2}')
        a(f"""
        v_lshlrev_b32 v6, 4, v1
        v_add_u32 v6, s62, v6
        ds_read_b128 v[48:51], v6 offset:1024
        s_waitcnt lgkmcnt(0)
        buffer_store_dwordx4 v[48:51], v[240:241], s[{sO0}:{sO0+3}], 0 idxen offen{SC1O}
        """)
        st(10)
        if DEBUG_TM: a('s_waitcnt vmcnt(0)')
        st(11)
        stamp_store(a,vTM,98,44,45,0x80000,sV,254)
        a('s_endpgm')
    for p in range(2):
        a.label(f'L2_s{p}')
        if 'trim' in ABL:
            a(f's_cmp_ge_i32 s{sT}, s87\ns_cbranch_scc1 L2_l{p}')
        else:
            a(f'''
            s_add_u32 s54, s{sT}, 1
            s_cmp_ge_u32 s54, s{sNT}
            s_cbranch_scc1 L2_l{p}
            ''')
        if DEBUG_TM and p==0:
            for tt,ix in ((2,25),(4,26),(6,27),(8,28),(10,29)):
                a(f's_cmp_lg_u32 s{sT}, {tt}\ns_cbranch_scc1 Lst{ix}')
                stampc(a,ix,vTM,98)
                a.label(f'Lst{ix}')
        body(p, True)
        a(f's_add_u32 s{sT}, s{sT}, 1')
        if p==1:
            a(f'''
            v_add_u32 v{vRSa}, 128, v{vRSa}
            v_add_u32 v{vR0a}, 256, v{vR0a}
            v_add_u32 v{vR0e}, 256, v{vR0e}
            v_add_u32 v{vGe}, 512, v{vGe}
            s_branch L2_s0
            ''')
    for p in range(2):
        a.label(f'L2_l{p}')
        a(f'''
        s_cmp_lt_u32 s{sW1}, {NCH}
        s_cbranch_scc1 L2_l{p}n
        ''')
        body(p, False, None) if False else None
        for x in epi_prefetch(p): a(x)
        body(p, False, [epi_rows()])
        st(9)
        stampc(a,13,vTM,98)
        epilogue(p)
        a.label(f'L2_l{p}n')
        body(p, False)
        a('s_branch L2_nextbatch')
    a.label('L2_notiles')
    a(f'''
    s_cmp_lt_u32 s{sW1}, {NCH}
    s_cbranch_scc1 L2_nextbatch
    ''')
    for x in epi_prefetch(0): a(x)
    a(epi_rows())
    st(9)
    epilogue(0)
    a.label('L2_nextbatch')
    a(f'''
    s_waitcnt vmcnt(0) lgkmcnt(0)
    s_mov_b32 s{sW0}, s{sW1}
    s_add_u32 s{sW1}, s{sW1}, 1
    s_branch L2_batch
    ''')
    a.label('L2_end')
    a('s_endpgm')
    return a.finalize(), 256, 102, (L_END if 'hst' in ABL else L_HX)

def main():
    k1,v1,s1,l1 = gen_k1()
    k2,v2,s2,l2 = gen_k2()
    hdr = open('gather_scatter__cheap_equivariant_egnn__graph.s.ref').read().split('; Override launch')[0]
    out = hdr
    out += f'; @launch kernel=egnn_part_kernel grid=({NCH+1+NTW},1,1) block=(512,1,1) lds={l1}\n'
    out += f'; @launch kernel=egnn_main_kernel grid=({NBK},1,1) block=(512,1,1) lds={l2}\n'
    out += '.amdgcn_target "amdgcn-amd-amdhsa--gfx950"\n.text\n'
    for name,body in (('egnn_part_kernel',k1),('egnn_main_kernel',k2)):
        out += f'.globl {name}\n.p2align 8\n.type {name},@function\n' + body
    out += '.section .rodata,"a"\n'
    for name,nv,ns in (('egnn_part_kernel',v1,s1),('egnn_main_kernel',v2,s2)):
        acc=(nv+3)//4*4
        out += f'''.p2align 6
.amdhsa_kernel {name}
  .amdhsa_next_free_vgpr {nv}
  .amdhsa_next_free_sgpr {ns}
  .amdhsa_accum_offset {acc}
  .amdhsa_group_segment_fixed_size 0
  .amdhsa_kernarg_size 88
  .amdhsa_user_sgpr_count 2
  .amdhsa_user_sgpr_kernarg_segment_ptr 1
  .amdhsa_system_sgpr_workgroup_id_x 1
  .amdhsa_float_denorm_mode_32 3
.end_amdhsa_kernel
'''
    dst = [x for x in sys.argv[1:] if not x.startswith('--')]
    path = dst[0] if dst else 'gather_scatter__cheap_equivariant_egnn__graph.s'
    open(path,'w').write(out)
    print('wrote',path,len(out))
main()
```

```python
import sys, math
from asmlib import Asm

N=12500; E=800000; CH=3200; NCH=250; NBK=256; BN=49
ROW=4224
OFFS=0; ENT=0x110000; WF=0x420000; TA=0x500000; TB=0x700000; TM=0x900000
NF=18; WDO=NF*1024; WXO=NF*1024+256; WFSZ=NF*1024+512
NTW=98
CAP=3584
LOG2E=1.4426950408889634
def f32bits(x):
    import struct; return struct.unpack('<I',struct.pack('<f',x))[0]

DEBUG_TM = '--tm' in sys.argv
K1PRIO = '--nok1prio' not in sys.argv
TFIRST = '--tfirst' in sys.argv
SC1 = '' if '--nosc1' in sys.argv else (' sc0 sc1' if '--sc01' in sys.argv else ' sc1')
SC1T = '' if '--tplain' in sys.argv else SC1
SC1W = SC1 if '--wsc1' in sys.argv else ''
SC1O = ' sc1' if '--osc1' in sys.argv else ''
PFN = int(([x[6:] for x in sys.argv if x.startswith('--pfn=')] or ['0'])[0])
PFK1 = 2 if PFN else 0

F_W3=0
F_H1=2
F_H2=10

def stamp(a, idx, vreg, sp):
    if not DEBUG_TM: return
    a(f'''
    s_memrealtime s[{sp}:{sp+1}]
    s_waitcnt lgkmcnt(0)
    v_writelane_b32 v{vreg}, s{sp}, {idx}
    ''')
def stampc(a, idx, vreg, sp):
    if not DEBUG_TM: return
    a(f'''
    s_memtime s[{sp}:{sp+1}]
    s_waitcnt lgkmcnt(0)
    v_writelane_b32 v{vreg}, s{sp}, {idx}
    ''')
def stamp_store(a, vreg, sp, ws_lo, ws_hi, region, wave_s, vt):
    if not DEBUG_TM: return
    a(f'''
    s_lshl_b32 s{sp}, s2, 3
    s_add_u32 s{sp}, s{sp}, s{wave_s}
    s_lshl_b32 s{sp}, s{sp}, 7
    s_add_u32 s{sp}, s{sp}, {TM+region}
    s_add_u32 s{sp}, s{ws_lo}, s{sp}
    s_addc_u32 s{sp+1}, s{ws_hi}, 0
    v_and_b32 v{vt}, 63, v0
    v_lshlrev_b32 v{vt}, 2, v{vt}
    s_mov_b32 exec_hi, 0
    global_store_dword v{vt}, v{vreg}, s[{sp}:{sp+1}]
    s_mov_b64 exec, -1
    ''')

def gen_k1():
    a=Asm()
    K1_STAGE=8192; K1_WTOT=24576
    a.label('egnn_part_kernel')
    a(f'''
    s_cmp_gt_u32 s2, {NCH+NTW}
    s_cbranch_scc1 L1_end
    v_lshrrev_b32 v2, 6, v0
    v_and_b32 v1, 63, v0
    s_load_dwordx4 s[4:7], s[0:1], 24
    s_load_dwordx2 s[8:9], s[0:1], 80
    s_load_dwordx2 s[34:35], s[0:1], 16
    v_readfirstlane_b32 s3, v2
    s_cmp_eq_u32 s2, {NTW if TFIRST else NCH}
    s_cbranch_scc1 L1_wprep
    s_cmp_{'lt' if TFIRST else 'gt'}_u32 s2, {NTW if TFIRST else NCH}
    s_cbranch_scc1 L1_tables
    s_sub_u32 s38, s2, {NTW+1 if TFIRST else 0}
    s_setprio {3 if K1PRIO else 0}
    ''')
    if DEBUG_TM: a('v_mov_b32 v70, 0')
    stamp(a,0,70,36)
    a(f'''
    v_lshlrev_b32 v3, 4, v0
    v_mov_b32 v4, 0
    v_mov_b32 v5, 0
    v_mov_b32 v6, 0
    v_mov_b32 v7, 0
    ds_write_b128 v3, v[4:7]
    s_mul_i32 s10, s38, {CH*4}
    s_mul_i32 s11, s38, {ROW}
    v_add_u32 v48, 8192, v3
    s_waitcnt lgkmcnt(0)
    s_add_u32 s12, s6, s10
    s_addc_u32 s13, s7, 0
    s_mov_b32 s14, {CH*4}
    s_mov_b32 s15, 0x20000
    s_add_u32 s16, s4, s10
    s_addc_u32 s17, s5, 0
    s_mov_b32 s18, {CH*4}
    s_mov_b32 s19, 0x20000
    buffer_load_dwordx4 v[8:11], v3, s[12:15], 0 offen
    buffer_load_dwordx4 v[12:15], v48, s[12:15], 0 offen
    buffer_load_dwordx4 v[16:19], v3, s[16:19], 0 offen
    buffer_load_dwordx4 v[20:23], v48, s[16:19], 0 offen
    ''')
    if PFK1:
        a(f'''
        s_mul_i32 s10, s38, {CH*32}
        s_add_u32 s32, s34, s10
        s_addc_u32 s33, s35, 0
        s_cmp_lt_u32 s38, {PFN}
        s_cselect_b32 s34, {CH*32}, 0
        s_mov_b32 s35, 0x20000
        v_lshlrev_b32 v64, 7, v0
        v_add_u32 v65, {512*128}, v64
        buffer_load_dword v66, v64, s[32:35], 0 offen
        ''')
        if PFK1>1: a('buffer_load_dword v67, v65, s[32:35], 0 offen')
        a(f's_mul_i32 s10, s38, {CH*4}')
    a(f'''
    s_add_u32 s24, s8, {OFFS}
    s_addc_u32 s25, s9, 0
    s_add_u32 s24, s24, s11
    s_addc_u32 s25, s25, 0
    s_mov_b32 s26, {ROW}
    s_mov_b32 s27, 0x20000
    s_add_u32 s28, s8, {ENT}
    s_addc_u32 s29, s9, 0
    s_add_u32 s28, s28, s10
    s_addc_u32 s29, s29, 0
    s_mov_b32 s30, {CH*4}
    s_mov_b32 s31, 0x20000
    s_mov_b32 s22, -{BN}
    v_mov_b32 v50, 1
    v_lshlrev_b32 v51, 5, v0
    v_add_u32 v52, 16384, v51
    s_barrier
    s_waitcnt vmcnt({2+PFK1})
    ''')
    stamp(a,1,70,36)
    def keyslot(i, dst, tmp):
        a(f'''
        v_mul_u32_u24 v{tmp}, 21400, v{dst}
        v_lshrrev_b32 v{tmp}, 20, v{tmp}
        v_mad_i32_i24 v{40+i}, v{tmp}, s22, v{dst}
        v_and_b32 v{tmp+1}, 7, v{40+i}
        v_lshl_or_b32 v{tmp}, v{tmp}, 3, v{tmp+1}
        v_lshlrev_b32 v{24+i}, 2, v{tmp}
        ''')
    for u in range(4):
        keyslot(u, 8+u, 54+2*u)
        a(f'ds_add_rtn_u32 v{32+u}, v{24+u}, v50')
    a('''
    v_cmp_gt_u32 vcc, 288, v0
    s_and_saveexec_b64 s[20:21], vcc
    s_cbranch_execz L1_skipB1
    ''')
    for u in range(4):
        keyslot(4+u, 12+u, 54+2*u)
        a(f'ds_add_rtn_u32 v{36+u}, v{28+u}, v50')
    a.label('L1_skipB1')
    a('s_mov_b64 exec, s[20:21]')
    a(f's_waitcnt vmcnt({PFK1})')
    for i in range(8):
        base = 51 if i<4 else 52
        a(f'''
        v_lshrrev_b32 v54, 3, v{40+i}
        v_lshl_or_b32 v54, v{40+i}, 29, v54
        v_lshl_or_b32 v54, v{16+i}, 15, v54
        v_add3_u32 v{40+i}, v54, v{base}, {8*(i%4)}
        ''')
    a('''
    s_waitcnt lgkmcnt(0)
    s_barrier
    ''')
    stamp(a,2,70,36)
    a('''
    ds_read_b128 v[8:11], v3
    s_waitcnt lgkmcnt(0)
    v_add_u32 v12, v8, v9
    v_add_u32 v13, v12, v10
    v_add_u32 v14, v13, v11
    v_mov_b32 v15, v14
    ''')
    for sh in (1,2,4,8):
        a(f'v_add_u32_dpp v15, v15, v15 row_shr:{sh} row_mask:0xf bank_mask:0xf')
    a('v_add_u32_dpp v15, v15, v15 row_bcast:15 row_mask:0xa bank_mask:0xf')
    a('v_add_u32_dpp v15, v15, v15 row_bcast:31 row_mask:0xc bank_mask:0xf')
    a(f'''
    s_lshl_b32 s10, s3, 2
    s_add_u32 s10, s10, {K1_WTOT}
    v_mov_b32 v16, s10
    s_mov_b32 s20, 0
    s_brev_b32 s21, 1
    s_mov_b64 exec, s[20:21]
    ds_write_b32 v16, v15
    s_mov_b64 exec, -1
    v_and_b32 v17, 7, v1
    v_lshlrev_b32 v17, 2, v17
    v_add_u32 v17, {K1_WTOT}, v17
    s_waitcnt lgkmcnt(0)
    s_barrier
    ds_read_b32 v18, v17
    v_cmp_gt_u32 vcc, s3, v1
    s_waitcnt lgkmcnt(0)
    v_cndmask_b32 v18, 0, v18, vcc
    ''')
    for sh in (1,2,4):
        a(f'v_add_u32_dpp v18, v18, v18 row_shr:{sh} row_mask:0xf bank_mask:0xf')
    a(f'''
    v_readlane_b32 s10, v18, 7
    v_sub_u32 v15, v15, v14
    v_add_u32 v8+0, s10, v15
    '''.replace('v8+0','v19'))
    a(f'''
    v_add_u32 v21, v19, v12
    v_add_u32 v22, v19, v13
    v_add_u32 v20, v19, v8
    v_mov_b32 v56, v19
    v_mov_b32 v57, v20
    v_mov_b32 v58, v21
    v_mov_b32 v59, v22
    ds_write_b128 v3, v[56:59]
    v_lshl_or_b32 v60, v20, 16, v19
    v_lshl_or_b32 v61, v22, 16, v21
    v_lshlrev_b32 v62, 3, v0
    buffer_store_dwordx2 v[60:61], v62, s[24:27], 0 offen{SC1}
    s_cmp_lg_u32 s3, 0
    s_cbranch_scc1 L1_nosent
    s_mov_b32 s10, {CH | (CH<<16)}
    v_mov_b32 v63, s10
    v_lshlrev_b32 v62, 2, v1
    v_add_u32 v62, 4096, v62
    v_cmp_gt_u32 vcc, 32, v1
    s_and_saveexec_b64 s[20:21], vcc
    buffer_store_dword v63, v62, s[24:27], 0 offen{SC1}
    s_mov_b64 exec, s[20:21]
    ''')
    a.label('L1_nosent')
    a('''
    s_waitcnt lgkmcnt(0)
    s_barrier
    ''')
    stamp(a,3,70,36)
    for u in range(4):
        a(f'ds_read_b32 v{8+u}, v{24+u}')
    a('''
    v_cmp_gt_u32 vcc, 288, v0
    s_and_saveexec_b64 s[20:21], vcc
    s_cbranch_execz L1_skipB2
    ''')
    for u in range(4):
        a(f'ds_read_b32 v{12+u}, v{28+u}')
    a('s_waitcnt lgkmcnt(0)')
    for u in range(4):
        a(f'v_add_lshl_u32 v{12+u}, v{12+u}, v{36+u}, 2')
    for u in range(4):
        a(f'ds_write_b32 v{12+u}, v{44+u} offset:{K1_STAGE}')
    a.label('L1_skipB2')
    a('s_mov_b64 exec, s[20:21]')
    a('s_waitcnt lgkmcnt(0)')
    for u in range(4):
        a(f'v_add_lshl_u32 v{8+u}, v{8+u}, v{32+u}, 2')
    for u in range(4):
        a(f'ds_write_b32 v{8+u}, v{40+u} offset:{K1_STAGE}')
    a(f'''
    s_waitcnt lgkmcnt(0)
    s_barrier
    ds_read_b128 v[8:11], v3 offset:{K1_STAGE}
    ds_read_b128 v[12:15], v3 offset:{K1_STAGE+8192}
    s_waitcnt lgkmcnt(1)
    buffer_store_dwordx4 v[8:11], v3, s[28:31], 0 offen{SC1}
    s_waitcnt lgkmcnt(0)
    buffer_store_dwordx4 v[12:15], v48, s[28:31], 0 offen{SC1}
    ''')
    stamp(a,4,70,36)
    if DEBUG_TM: a('s_waitcnt vmcnt(0)')
    stamp(a,5,70,36)
    stamp_store(a,70,36,8,9,0,3,69)
    a('s_endpgm')
    a.label('L1_wprep')
    a(f'''
    s_load_dwordx2 s[10:11], s[0:1], 40
    s_load_dwordx2 s[12:13], s[0:1], 48
    s_load_dwordx2 s[14:15], s[0:1], 56
    v_and_b32 v2, 31, v1
    v_lshrrev_b32 v3, 5, v1
    v_lshlrev_b32 v4, 4, v1
    s_waitcnt lgkmcnt(0)
    s_mov_b32 s16, s10
    s_mov_b32 s17, s11
    s_mov_b32 s18, {145*64*2}
    s_mov_b32 s19, 0x20000
    s_mov_b32 s20, s14
    s_mov_b32 s21, s15
    s_mov_b32 s22, {128*64*2}
    s_mov_b32 s23, 0x20000
    s_mov_b32 s24, s12
    s_mov_b32 s25, s13
    s_mov_b32 s26, {64*2}
    s_mov_b32 s27, 0x20000
    s_add_u32 s28, s8, {WF}
    s_addc_u32 s29, s9, 0
    s_mov_b32 s30, {WFSZ}
    s_mov_b32 s31, 0x20000
    s_mov_b32 s32, {f32bits(-LOG2E)}
    v_lshlrev_b32 v5, 1, v2
    v_lshl_add_u32 v6, v3, 10, v5
    v_lshl_add_u32 v7, v3, 9, v5
    v_lshlrev_b32 v8, 3, v3
    ''')
    frags=[]
    for blk in range(2): frags.append((F_W3+blk,'e',129,blk,'std',True))
    for s in range(4):
        for blk in range(2): frags.append((F_H1+2*s+blk,'h',16*s,blk,'std',False))
    for blk in range(2):
        for sp in range(2):
            for b2 in range(2): frags.append((F_H2+(blk*2+sp)*2+b2,'h',64+32*blk+16*sp,b2,'perm',False))
    assert len(frags)==NF
    for wv in range(8):
        a(f's_cmp_eq_u32 s3, {wv}')
        a(f's_cbranch_scc1 L1_w{wv}')
    a('s_endpgm')
    for wv in range(8):
        a.label(f'L1_w{wv}')
        mine=[f for i,f in enumerate(frags) if i%8==wv]
        for q,(F,srcn,row0,blk,kind,scaled) in enumerate(mine):
            r=16+8*q
            srd={'e':'s[16:19]','h':'s[20:23]','x':'s[24:27]'}[srcn]
            if kind=='wx':
                a(f'v_add_u32 v10, {row0*2}, v8')
                for t in range(8):
                    T=(t&3)+8*(t>>2)
                    a(f'buffer_load_ushort v{r+t}, v10, {srd}, 0 offen offset:{T*2}')
            else:
                vb = 6 if kind=='std' else 7
                a(f'v_add_u32 v10, {row0*128+blk*64}, v{vb}')
                for t in range(8):
                    T= t if kind=='std' else (t&3)+8*(t>>2)
                    a(f'buffer_load_ushort v{r+t}, v10, {srd}, 0 offen offset:{T*128}')
        if wv==0:
            a(f'''
            v_lshlrev_b32 v11, 1, v1
            v_add_u32 v11, {128*128}, v11
            buffer_load_ushort v12, v11, s[16:19], 0 offen
            ''')
        if wv==1:
            a(f'''
            v_and_b32 v11, 3, v1
            v_bfe_u32 v12, v1, 2, 2
            v_lshl_add_u32 v11, v12, 3, v11
            v_bfe_u32 v12, v1, 4, 1
            v_lshl_add_u32 v11, v12, 5, v11
            v_lshl_add_u32 v11, v3, 2, v11
            v_lshlrev_b32 v11, 1, v11
            buffer_load_ushort v12, v11, s[24:27], 0 offen
            ''')
        a('s_waitcnt vmcnt(0)')
        for q,(F,srcn,row0,blk,kind,scaled) in enumerate(mine):
            r=16+8*q
            if scaled:
                for t in range(8):
                    a(f'v_lshlrev_b32 v{r+t}, 16, v{r+t}')
                for t in range(8):
                    a(f'v_mul_f32 v{r+t}, s32, v{r+t}')
                for t in range(4):
                    a(f'v_cvt_pk_bf16_f32 v{64+t}, v{r+2*t}, v{r+2*t+1}')
            else:
                for t in range(4):
                    a(f'v_lshl_or_b32 v{64+t}, v{r+2*t+1}, 16, v{r+2*t}')
            a(f'v_add_u32 v10, {F*1024}, v4')
            a(f'buffer_store_dwordx4 v[64:67], v10, s[28:31], 0 offen{SC1W}')
            a('s_nop 1')
        if wv==0:
            a(f'''
            v_lshlrev_b32 v12, 16, v12
            v_mul_f32 v12, s32, v12
            v_cvt_pk_bf16_f32 v13, v12, v12
            v_and_b32 v14, 0xffff0000, v13
            v_sub_f32 v12, v12, v14
            v_cvt_pk_bf16_f32 v12, v12, v12
            v_and_b32 v12, 0xffff0000, v12
            v_and_b32 v13, 0xffff, v13
            v_or_b32 v13, v13, v12
            v_and_b32 v11, 31, v1
            v_lshlrev_b32 v11, 3, v11
            v_lshl_add_u32 v11, v3, 2, v11
            v_add_u32 v11, {WDO}, v11
            buffer_store_dword v13, v11, s[28:31], 0 offen
            ''')
        if wv==1:
            a(f'''
            v_lshlrev_b32 v12, 16, v12
            v_lshlrev_b32 v11, 2, v1
            v_add_u32 v11, {WXO}, v11
            buffer_store_dword v12, v11, s[28:31], 0 offen
            ''')
        if DEBUG_TM:
            a('s_waitcnt vmcnt(0)\nv_mov_b32 v70, 0')
            stamp(a,5,70,36)
            stamp_store(a,70,36,8,9,0,3,69)
        a('s_endpgm')
    a.label('L1_tables')
    if DEBUG_TM: a('v_mov_b32 v15, 0')
    stamp(a,0,15,36)
    a(f"""
    s_load_dwordx2 s[10:11], s[0:1], 0
    s_load_dwordx2 s[12:13], s[0:1], 40
    s_sub_u32 s14, s2, {0 if TFIRST else NCH+1}
    s_lshl_b32 s14, s14, 7
    s_lshr_b32 s33, s3, 1
    s_lshl_b32 s33, s33, 5
    s_and_b32 s15, s3, 1
    v_and_b32 v2, 31, v1
    v_lshrrev_b32 v3, 5, v1
    v_lshrrev_b32 v8, 3, v1
    v_and_b32 v9, 7, v1
    v_lshrrev_b32 v10, 4, v1
    s_waitcnt lgkmcnt(0)
    s_mov_b32 s16, s10
    s_or_b32 s17, s11, 0x800000
    s_mov_b32 s18, {N}
    s_mov_b32 s19, 0x20000
    s_mov_b32 s20, s12
    s_mov_b32 s21, s13
    s_mov_b32 s22, {128*128}
    s_mov_b32 s23, 0x20000
    s_mul_i32 s34, s15, {TB-TA}
    s_add_u32 s34, s34, {TA}
    s_add_u32 s24, s8, s34
    s_addc_u32 s25, s9, 0
    s_or_b32 s25, s25, 0x800000
    s_mov_b32 s26, {N}
    s_mov_b32 s27, 0x20000
    """)
    for r in range(2):
        a(f"""
        s_lshl_b32 s34, s3, 1
        s_add_u32 s34, s34, {r}
        s_lshl_b32 s35, s34, 3
        s_add_u32 s35, s35, s14
        v_add_u32 v4, s35, v8
        v_add_u32 v5, {4*r}, v10
        v_xor_b32 v5, v5, v9
        v_lshlrev_b32 v5, 4, v5
        s_lshl_b32 s34, s34, 10
        s_add_u32 m0, s34, 16384
        s_nop 0
        buffer_load_dwordx4 v[4:5], s[16:19], 0 idxen offen lds
        """)
    a(f"""
    v_lshlrev_b32 v6, 4, v1
    s_lshl_b32 s34, s3, 10
    v_add_u32 v6, s34, v6
    s_mov_b32 m0, s34
    v_add_u32 v7, 8192, v6
    buffer_load_dwordx4 v6, s[20:23], 0 offen lds
    s_add_u32 m0, s34, 8192
    s_nop 0
    buffer_load_dwordx4 v7, s[20:23], 0 offen lds
    v_and_b32 v8, 15, v1
    v_lshrrev_b32 v9, 2, v8
    v_lshl_add_u32 v9, v3, 3, v9
    v_lshlrev_b32 v9, 7, v9
    v_bfe_u32 v10, v1, 4, 1
    v_lshl_add_u32 v9, v10, 5, v9
    v_and_b32 v10, 3, v1
    v_lshl_add_u32 v9, v10, 3, v9
    s_lshl_b32 s34, s15, 13
    v_add_u32 v9, s34, v9
    v_add_u32 v10, s33, v2
    v_lshlrev_b32 v10, 7, v10
    v_add_u32 v10, 16384, v10
    v_bfe_u32 v11, v2, 1, 3
    s_mov_b32 s35, {f32bits(-LOG2E)}
    s_waitcnt vmcnt(0)
    """)
    stamp(a,1,15,36)
    a('s_barrier')
    for s_ in range(4):
        a(f"""
        v_add_u32 v12, {2*s_}, v3
        v_xor_b32 v12, v12, v11
        v_lshl_add_u32 v12, v12, 4, v10
        ds_read_b128 v[{16+4*s_}:{19+4*s_}], v12
        """)
    for s_ in range(4):
        for blk in range(2):
            r=32+4*(2*s_+blk)
            a(f'ds_read_b64_tr_b16 v[{r}:{r+1}], v9 offset:{2048*s_+64*blk}')
            a(f'ds_read_b64_tr_b16 v[{r+2}:{r+3}], v9 offset:{2048*s_+64*blk+512}')
        if s_==1: a('s_waitcnt lgkmcnt(0)')
    a('s_waitcnt lgkmcnt(0)')
    a('s_barrier')
    stamp(a,2,15,36)
    for blk in range(2):
        D=f'v[{64+16*blk}:{79+16*blk}]'
        for s_ in range(4):
            C = D if s_>0 else '0'
            r=32+4*(2*s_+blk)
            a(f'v_mfma_f32_32x32x16_bf16 {D}, v[{r}:{r+3}], v[{16+4*s_}:{19+4*s_}], {C}')
    a(f"""
    s_lshl_b32 s34, s3, 12
    v_lshlrev_b32 v4, 7, v2
    v_add_u32 v4, s34, v4
    v_and_b32 v5, 7, v2
    v_lshlrev_b32 v5, 4, v5
    """)
    for blk in range(2):
        for i in range(16):
            a(f'v_mul_f32 v{64+16*blk+i}, s35, v{64+16*blk+i}')
    a("""
    s_cmp_eq_u32 s15, 0
    s_cbranch_scc1 L1_tabA
    v_lshl_add_u32 v4, v3, 3, v4
    """)
    for blk in range(2):
        for q in range(8):
            a(f'v_cvt_pk_bf16_f32 v{32+8*blk+q}, v{64+16*blk+2*q}, v{64+16*blk+2*q+1}')
        for m in range(4):
            a(f'v_xor_b32 v6, {16*(4*blk+m)}, v5')
            a(f'v_add_u32 v6, v6, v4')
            a(f'ds_write_b64 v6, v[{32+8*blk+2*m}:{33+8*blk+2*m}]')
    a('s_branch L1_tabS')
    a.label('L1_tabA')
    for r in range(16):
        a(f'v_cvt_pk_bf16_f32 v{32+r}, v{64+r}, v{80+r}')
    a('v_lshlrev_b32 v7, 4, v3')
    for m in range(4):
        a(f'v_add_u32 v6, {32*m}, v7')
        a(f'v_xor_b32 v6, v6, v5')
        a(f'v_add_u32 v6, v6, v4')
        a(f'ds_write_b128 v6, v[{32+4*m}:{35+4*m}]')
    a.label('L1_tabS')
    stamp(a,3,15,36)
    a(f"""
    v_lshlrev_b32 v6, 4, v1
    v_add_u32 v6, s34, v6
    v_lshrrev_b32 v8, 3, v1
    v_and_b32 v9, 7, v1
    v_xor_b32 v9, v9, v8
    v_lshlrev_b32 v13, 4, v9
    s_add_u32 s14, s14, s33
    v_add_u32 v8, s14, v8
    s_waitcnt lgkmcnt(0)
    """)
    for i in range(4):
        a(f'ds_read_b128 v[{48+4*i}:{51+4*i}], v6 offset:{1024*i}')
    for i in range(4):
        a(f'v_add_u32 v12, {8*i}, v8')
        a(f's_waitcnt lgkmcnt({3-i})')
        a(f'buffer_store_dwordx4 v[{48+4*i}:{51+4*i}], v[12:13], s[24:27], 0 idxen offen{SC1T}')
    stamp(a,4,15,36)
    if DEBUG_TM: a('s_waitcnt vmcnt(0)')
    stamp(a,5,15,36)
    stamp_store(a,15,36,8,9,0,3,14)
    a('s_endpgm')
    a.label('L1_end')
    a('s_endpgm')
    return a.finalize(), 96, 40, 32768+64

L_G=0; L_R0=28672; L_RS=43264; L_S=50432; L_RING=66816; L_GTAB=148736; L_WTOT=156928; L_PD=157184; L_WST=158208; L_AST=L_WST+2560; L_HX=L_AST+2048; L_END=L_HX+1024
NHS=9
def hstage_addr(f): return L_GTAB+1024*f if f<8 else L_HX
SLOT=5120
vI=16; vW3=24; vW6=32; vS1=40; vS2=41; vD2=64; vD1=(96,128); vE=160; vX=192; vXE=208; vX6=212; vSF=216; vONE=224
vHA=228; vEAr=232; vX6r=233; vC1=234; vSTa=235; vC2=236; vMK2=237; vEAc=238; vOne=239; vHP=240
vSTb=15; vCD=14
vRSa=248; vR0a=249; vR0e=250; vGe=251; vR0=252; vG=253; vA1=254; vA2=255; vEAi=10; vEAo=11
vZero=vONE+1
vTM=12
sH=4; sEA=8; sOF=12; sEN=16; sPOS=20; sWF=24; sO0=28; sO1=32; sHD=36; sSEL=100; sTA=40
sWS=44
sW0=46; sW1=47; sV=3; sG=101; sCNT=48; sBASE=49; sNT=50; sT=51; sRB=52; sNODE0=53; sMK=89

ABL=set(x[6:] for x in sys.argv if x.startswith('--abl=') ) | ({'fprio','trim','pk','xmap','off2','nozf'} - set(x[5:] for x in sys.argv if x.startswith('--no=')))
OPT=dict(x[6:].split(':') for x in sys.argv if x.startswith('--opt='))
def optl(k,d): return [int(v.replace('n','-')) for v in OPT[k].split(',')] if k in OPT else d
TRIMK='trim'; PF2K='pf2'; TBK='tbpf'; XMK='xmap'; OFF2='off2'
EAF=''.join(' '+x for x in OPT.get('eaf','').split('+') if x); HF=''.join(' '+x for x in OPT.get('hf','').split('+') if x)
NH_ = 0 if 'noh' in ABL else N
NE_ = 0 if 'noea' in ABL else E*32
def gen_k2():
    a=Asm()
    def st(i): stamp(a,i,vTM,98)
    a.label('egnn_main_kernel')
    a(f'''
    s_cmp_ge_u32 s2, {NBK}
    s_cbranch_scc1 L2_end
    ''')
    if 'xmap' in ABL:
        a('s_and_b32 s4, s2, 7\ns_lshl_b32 s4, s4, 5\ns_lshr_b32 s2, s2, 3\ns_or_b32 s2, s2, s4')
    if DEBUG_TM: a(f'v_mov_b32 v{vTM}, 0')
    st(0)
    a(f'''
    s_load_dwordx2 s[44:45], s[0:1], 80
    s_load_dwordx4 s[36:39], s[0:1], 0
    s_load_dwordx2 s[40:41], s[0:1], 16
    s_load_dwordx2 s[42:43], s[0:1], 64
    v_and_b32 v1, 63, v0
    v_lshrrev_b32 v2, 6, v0
    v_lshrrev_b32 v3, 1, v0
    v_readfirstlane_b32 s{sV}, v2
    ''')
    if 'rot' in OPT:
        a(f'''
        s_lshr_b32 s54, s2, 5
        s_mul_i32 s54, s54, {int(OPT['rot'])}
        v_cmp_gt_u32 vcc, {NCH}, v3
        v_add_u32 v9, s54, v3
        v_subrev_u32 v10, {NCH}, v9
        s_movk_i32 s55, {NCH}
        v_cmp_gt_u32 s[56:57], s55, v9
        s_nop 1
        v_cndmask_b32 v9, v10, v9, s[56:57]
        v_cndmask_b32 v3, v3, v9, vcc
        ''')
    a(f'''
    v_and_b32 v9, 1, v0
    s_lshl_b32 s54, s2, 4
    s_mov_b32 s55, {ROW}
    {'v_mov_b32 v96, s54' if OFF2 in ABL else 'v_lshl_add_u32 v96, v9, 4, s54'}
    v_mad_u32_u24 v96, v3, s55, v96
    s_mov_b32 s{sOF+2}, {NCH*ROW}
    s_mov_b32 s{sOF+3}, 0x20000
    s_waitcnt lgkmcnt(0)
    s_add_u32 s{sOF}, s44, {OFFS}
    s_addc_u32 s{sOF+1}, s45, 0
    buffer_load_dwordx4 {'v[4:7]' if OFF2 in ABL else 'v[104:107]'}, v96, s[{sOF}:{sOF+3}], 0 offen
    {f'buffer_load_ushort v8, v96, s[{sOF}:{sOF+3}], 0 offen offset:16' if OFF2 in ABL else ''}
    ''')
    st(16)
    a(f"""
    s_mov_b32 s{sPOS}, s38
    s_mov_b32 s{sPOS+1}, s39
    s_mov_b32 s{sPOS+2}, {N*6}
    s_mov_b32 s{sPOS+3}, 0x20000
    s_add_u32 s{sWF}, s44, {WF}
    s_addc_u32 s{sWF+1}, s45, 0
    s_mov_b32 s{sWF+2}, {WFSZ}
    s_mov_b32 s{sWF+3}, 0x20000
    s_mov_b32 s{sW0}, 0
    s_mov_b32 s{sW1}, {NCH}
    s_mov_b32 s63, 2
    v_lshlrev_b32 v96, 4, v1
    s_lshl_b32 s58, s{sV}, 10
    v_add_u32 v96, s58, v96
    """)
    PE=optl('pe',[5])[0]
    assert PE<=9
    def posdma(r):
        a(f"""
        s_add_u32 m0, s58, {L_RING+8192*r}
        v_add_u32 v97, {8192*r}, v96
        buffer_load_dwordx4 v97, s[{sPOS}:{sPOS+3}], 0 offen lds
        """)
    chunks=[f"""
    s_mov_b32 s{sH}, s36
    s_or_b32 s{sH+1}, s37, 0x800000
    s_mov_b32 s{sH+2}, {N}
    s_mov_b32 s{sH+3}, 0x20000
    s_mov_b32 s{sEA}, s40
    s_mov_b32 s{sEA+1}, s41
    s_mov_b32 s{sEA+2}, {E*32}
    s_mov_b32 s{sEA+3}, 0x20000
    s_add_u32 s{sEN}, s44, {ENT}
    s_addc_u32 s{sEN+1}, s45, 0
    s_mov_b32 s{sEN+2}, {NCH*CH*4}
    s_mov_b32 s{sEN+3}, 0x20000
    """, f"""
    s_mov_b32 s{sO0}, s42
    s_or_b32 s{sO0+1}, s43, 0x800000
    s_mov_b32 s{sO0+2}, {N}
    s_mov_b32 s{sO0+3}, 0x20000
    s_add_u32 s{sO1}, s42, {N*128}
    s_addc_u32 s{sO1+1}, s43, 0
    s_mov_b32 s{sO1+2}, {N*6}
    s_mov_b32 s{sO1+3}, 0x20000
    s_add_u32 s{sHD}, s44, {TB}
    s_addc_u32 s{sHD+1}, s45, 0
    s_or_b32 s{sHD+1}, s{sHD+1}, 0x800000
    s_mov_b32 s{sHD+2}, {N}
    s_mov_b32 s{sHD+3}, 0x20000
    """, f"""
    s_add_u32 s{sTA}, s44, {TA}
    s_addc_u32 s{sTA+1}, s45, 0
    s_or_b32 s{sTA+1}, s{sTA+1}, 0x800000
    s_mov_b32 s{sTA+2}, {N}
    s_mov_b32 s{sTA+3}, 0x20000
    s_mul_i32 s{sRB}, s{sV}, {2*SLOT}
    s_add_u32 s{sRB}, s{sRB}, {L_RING}
    s_mov_b32 s{sMK}, 0xffffffe0
    s_mov_b32 s{sSEL}, 0x01000100
    v_lshrrev_b32 v98, 5, v1
    v_and_b32 v101, 1, v1
    v_xor_b32 v101, v101, v98
    v_lshlrev_b32 v{vEAc}, 4, v101
    """, f"""
    v_and_b32 v101, 7, v1
    v_lshrrev_b32 v102, 4, v1
    v_xor_b32 v103, v101, v102
    v_lshlrev_b32 v{vHP+1}, 4, v103
    v_lshlrev_b32 v{vHP+5}, 4, v103
    v_add_u32 v102, 4, v102
    v_xor_b32 v103, v101, v102
    v_lshlrev_b32 v{vHP+3}, 4, v103
    v_lshlrev_b32 v{vHP+7}, 4, v103
    """, f"""
    v_mov_b32 v{vX6}, 0
    v_mov_b32 v{vX6+1}, 0
    v_mov_b32 v{vX6+2}, 0
    v_mov_b32 v{vX6+3}, 0
    v_mfma_f32_32x32x16_bf16 v[{vD2}:{vD2+15}], v[{vX6}:{vX6+3}], v[{vX6}:{vX6+3}], 0
    v_mfma_f32_32x32x16_bf16 v[{vD2+16}:{vD2+31}], v[{vX6}:{vX6+3}], v[{vX6}:{vX6+3}], 0
    """]
    for k in range(max(PE,len(chunks))):
        if k<PE: posdma(k)
        if k<len(chunks): a(chunks[k])
    a(f"""
    s_cmp_eq_u32 s{sV}, 2
    s_cselect_b32 s54, {WDO}, s58
    s_cselect_b32 s55, 2048, s58
    v_lshlrev_b32 v97, 4, v1
    v_add_u32 v97, s54, v97
    s_add_u32 m0, s55, {L_WST}
    s_cmp_gt_u32 s{sV}, 2
    s_cbranch_scc1 L2_nowst
    v_cmp_gt_u32 vcc, 32, v1
    s_cmp_eq_u32 s{sV}, 2
    s_cselect_b64 exec, vcc, -1
    buffer_load_dwordx4 v97, s[{sWF}:{sWF+3}], 0 offen lds
    s_mov_b64 exec, -1
    """)
    a.label('L2_nowst')
    st(17)
    if TBK in ABL:
        a(f'''
        {'s_and_b32 s54, s2, 31' if XMK in ABL else 's_lshr_b32 s54, s2, 3'}
        s_mul_i32 s54, s54, 391
        s_lshl_b32 s55, s{sV}, 6
        v_add_u32 v100, s55, v1
        v_cmp_gt_u32 vcc, 391, v100
        v_add_u32 v100, s54, v100
        v_mov_b32 v101, 0
        v_mov_b32 v102, -1
        v_cndmask_b32 v100, v102, v100, vcc
        buffer_load_dword v52, v[100:101], s[{sHD}:{sHD+3}], 0 idxen offen
        ''')
    st(18)
    st(1)
    a(f's_waitcnt vmcnt({min(PE,9)+(1 if TBK in ABL else 0)})')
    if OFF2 not in ABL:
        for q in range(4):
            a(f'v_mov_b32_dpp v{4+q}, v{104+q} quad_perm:[0,0,2,2] row_mask:0xf bank_mask:0xf')
        a('v_mov_b32_dpp v8, v104 quad_perm:[1,1,3,3] row_mask:0xf bank_mask:0xf')
        a('v_and_b32 v8, 0xffff, v8')
    st(19)
    a('s_branch L2_counts')
    a.label('L2_batch')
    a(f"""
    s_barrier
    v_lshlrev_b32 v96, 4, v1
    s_lshl_b32 s58, s{sV}, 10
    v_add_u32 v96, s58, v96
    """)
    for r in range(PE): posdma(r)
    a.label('L2_counts')
    a(f"""
    v_alignbit_b32 v100, v5, v4, 16
    v_alignbit_b32 v101, v6, v5, 16
    v_alignbit_b32 v102, v7, v6, 16
    v_alignbit_b32 v103, v8, v7, 16
    v_and_b32 v105, 0xffff, v4
    v_sub_u32 v104, v8, v105
    s_sub_u32 s54, s{sW1}, s{sW0}
    v_subrev_u32 v106, s{sW0}, v3
    v_cmp_gt_u32 vcc, s54, v106
    s_mov_b32 s55, {CH*4}
    v_lshlrev_b32 v107, 2, v105
    v_lshl_add_u32 v107, v9, 4, v107
    v_cndmask_b32 v104, 0, v104, vcc
    v_lshlrev_b32 v109, 2, v9
    v_sub_u32 v109, v104, v109
    v_max_i32 v109, 0, v109
    v_mad_u32_u24 v107, v3, s55, v107
    """)
    for i in range(4):
        a(f'v_cmp_lt_u32 s[{90+2*i}:{91+2*i}], {8*i}, v109')
    for i in range(4):
        a(f's_mov_b64 exec, s[{90+2*i}:{91+2*i}]')
        a(f's_cbranch_execz L2_e{i}')
        a(f'buffer_load_dwordx4 v[{192+4*i}:{195+4*i}], v107, s[{sEN}:{sEN+3}], 0 offen offset:{32*i}')
        a.label(f'L2_e{i}')
    a('s_mov_b64 exec, -1')
    st(2)
    a(f"""
    v_pk_sub_u16 v100, v100, v4
    v_pk_sub_u16 v101, v101, v5
    v_pk_sub_u16 v102, v102, v6
    v_pk_sub_u16 v103, v103, v7
    v_cmp_eq_u32 s[56:57], 0, v9
    """)
    for q in range(4):
        a(f'v_cndmask_b32 v{100+q}, 0, v{100+q}, vcc')
    for q in range(5):
        a(f'v_cndmask_b32 v{112+q}, 0, v{100+q}, s[56:57]')
    for sh in (1,2,4,8):
        for q in range(5):
            a(f'v_add_u32_dpp v{112+q}, v{112+q}, v{112+q} row_shr:{sh} row_mask:0xf bank_mask:0xf')
    for q in range(5):
        a(f'v_add_u32_dpp v{112+q}, v{112+q}, v{112+q} row_bcast:15 row_mask:0xa bank_mask:0xf')
    for q in range(5):
        a(f'v_add_u32_dpp v{112+q}, v{112+q}, v{112+q} row_bcast:31 row_mask:0xc bank_mask:0xf')
    st(21)
    a(f"""
    s_lshl_b32 s54, s{sV}, 5
    s_add_u32 s54, s54, {L_WTOT}
    v_mov_b32 v117, s54
    s_mov_b32 s56, 0
    s_brev_b32 s57, 1
    s_mov_b64 exec, s[56:57]
    ds_write_b128 v117, v[112:115]
    ds_write_b32 v117, v116 offset:16
    s_mov_b64 exec, -1
    v_and_b32 v118, 7, v1
    v_lshlrev_b32 v118, 5, v118
    v_add_u32 v118, {L_WTOT}, v118
    s_waitcnt lgkmcnt(0)
    s_barrier
    ds_read_b128 v[120:123], v118
    ds_read_b32 v124, v118 offset:16
    """)
    st(3)
    a('s_waitcnt lgkmcnt(0)')
    for sh in (1,2,4):
        for q in range(5):
            a(f'v_add_u32_dpp v{120+q}, v{120+q}, v{120+q} row_shr:{sh} row_mask:0xf bank_mask:0xf')
    for q in range(5):
        a(f'v_readlane_b32 s{58+q}, v{120+q}, 7')
    a(f's_sub_u32 s54, s{sV}, 1')
    a(f's_max_i32 s54, s54, 0')
    for q in range(4):
        a(f'v_readlane_b32 s{64+q}, v{120+q}, s54')
    a(f's_cmp_eq_u32 s{sV}, 0')
    for q in range(4):
        a(f's_cselect_b32 s{64+q}, 0, s{64+q}')
    for q in range(4):
        a(f's_and_b32 s{68+2*q}, s{58+q}, 0xffff')
        a(f's_lshr_b32 s{69+2*q}, s{58+q}, 16')
    a('s_mov_b32 s84, 0')
    for g in range(8):
        a(f"""
        s_mov_b32 s{76+g}, s84
        s_add_u32 s54, s{68+g}, 31
        s_andn2_b32 s54, s54, 31
        s_add_u32 s84, s84, s54
        """)
    a(f"""
    s_max_u32 s54, s84, s62
    s_cmp_le_u32 s54, {CAP}
    s_cbranch_scc1 L2_fits
    s_add_u32 s{sW1}, s{sW0}, 1
    s_waitcnt vmcnt(0) lgkmcnt(0)
    s_branch L2_batch
    """)
    a.label('L2_fits')
    a(f"""
    s_cmp_eq_u32 s63, 1
    s_cbranch_scc1 L2_pidone
    """)
    if 'nopi' in ABL:
        a(f's_mov_b32 s{sG}, s{sV}')
    else:
        for g in range(8):
            a(f's_lshl_b32 s54, s{68+g}, 3')
            a(f's_add_u32 s{90+g}, s54, {7-g}')
            a(f'v_writelane_b32 v126, s{90+g}, {g}')
        a('v_mov_b32 v127, 0')
        for h in range(2):
            for k in range(4):
                pr=(56,58,54,64)[k] if False else None
            for k in range(4):
                a(f'v_cmp_gt_u32 s[{(54,56,58,60)[k]}:{(54,56,58,60)[k]+1}], s{90+4*h+k}, v126')
            for k in range(4):
                a(f'v_addc_co_u32 v127, vcc, 0, v127, s[{(54,56,58,60)[k]}:{(54,56,58,60)[k]+1}]')
        a(f"""
        s_sub_u32 s54, 11, s{sV}
        s_cmp_lt_u32 s{sV}, 4
        s_cselect_b32 s54, s{sV}, s54
        v_cmp_eq_u32 vcc, s54, v127
        s_nop 3
        s_and_b32 s54, vcc_lo, 0xff
        s_ff1_i32_b32 s{sG}, s54
        """)
    a(f"""
    s_mul_i32 s{sNODE0}, s2, {BN}
    s_add_u32 s{sNODE0}, s{sNODE0}, s{sG}
    """)
    a.label('L2_pidone')
    a(f's_mov_b32 s{sCNT}, s68')
    a(f's_mov_b32 s{sBASE}, s76')
    for g in range(1,8):
        a(f"""
        s_cmp_eq_u32 s{sG}, {g}
        s_cselect_b32 s{sCNT}, s{68+g}, s{sCNT}
        s_cselect_b32 s{sBASE}, s{76+g}, s{sBASE}
        """)
    a(f"""
    s_add_u32 s{sNT}, s{sCNT}, 31
    s_lshr_b32 s{sNT}, s{sNT}, 5
    """)
    for q in range(4):
        a(f's_pack_ll_b32_b16 s{85+q}, s{76+2*q}, s{77+2*q}')
        a(f's_add_u32 s{85+q}, s{85+q}, s{64+q}')
        a(f's_add_u32 s{85+q}, s{85+q}, {CH | (CH<<16)}')
    a(f"""
    v_lshl_or_b32 v105, v105, 16, v105
    v_mul_u32_u24 v106, 0x100010, v9
    """)
    for q in range(4):
        a(f"""
        v_sub_u32 v{112+q}, v{112+q}, v{100+q}
        v_add_u32 v{112+q}, s{85+q}, v{112+q}
        v_sub_u32 v{120+q}, v{4+q}, v105
        v_sub_u32 v{112+q}, v{112+q}, v{120+q}
        v_lshl_add_u32 v{112+q}, v{112+q}, 2, v106
        """)
    a(f"""
    v_lshlrev_b32 v108, 4, v0
    v_add_u32 v108, {L_GTAB}, v108
    ds_write_b128 v108, v[112:115]
    v_mov_b32 v104, v109
    s_mov_b32 s54, {CH*32}
    v_mul_lo_u32 v110, v3, s54
    v_mov_b32 v111, {4*CH+4*CAP}
    v_lshlrev_b32 v96, 4, v1
    s_lshl_b32 s58, s{sV}, 10
    v_add_u32 v96, s58, v96
    s_waitcnt vmcnt(0)
    """)
    st(4)
    if PE<10:
        a(f"""
        v_lshlrev_b32 v96, 4, v1
        s_lshl_b32 s58, s{sV}, 10
        v_add_u32 v96, s58, v96
        """)
        for r in range(PE,10):
            if r==9:
                a(f's_cmp_ge_u32 s{sV}, 2\ns_cbranch_scc1 L2_posdone2')
            a(f"""
            s_add_u32 m0, s58, {L_RING+8192*r}
            v_add_u32 v97, {8192*r}, v96
            buffer_load_dwordx4 v97, s[{sPOS}:{sPOS+3}], 0 offen lds
            """)
        a.label('L2_posdone2')
    a(f"""
    s_cmp_eq_u32 s63, 1
    s_cbranch_scc1 L2_noA
    s_lshl_b32 s54, s{sV}, 10
    s_add_u32 s55, s54, {L_RING+75776}
    s_add_u32 s54, s54, {L_AST-6*1024}
    s_cmp_lt_u32 s{sV}, 6
    s_cselect_b32 s62, s55, s54
    v_lshrrev_b32 v120, 3, v1
    v_lshlrev_b32 v120, 3, v120
    v_add_u32 v121, s{sG}, v120
    v_add_u32 v120, s{sNODE0}, v120
    v_cmp_gt_u32 vcc, {BN}, v121
    v_mov_b32 v122, -1
    v_and_b32 v123, 7, v1
    v_lshlrev_b32 v123, 4, v123
    v_cndmask_b32 v122, v122, v120, vcc
    s_mov_b32 m0, s62
    s_nop 0
    buffer_load_dwordx4 v[122:123], s[{sTA}:{sTA+3}], 0 idxen offen lds
    """)
    a.label('L2_noA')
    st(20)
    def quad(qreg, i, dyn=False):
        for u in range(4):
            a(f'v_lshrrev_b32 v{140+u}, 29, v{qreg+u}')
            a(f'v_lshl_add_u32 v{140+u}, v{140+u}, 1, v108')
            a(f'ds_read_u16 v{144+u}, v{140+u}')
        for u in range(4):
            if dyn: a(f'v_cmp_lt_u32 s[{90+2*u}:{91+2*u}], {u}, v104')
            else:   a(f'v_cmp_lt_u32 s[{90+2*u}:{91+2*u}], {8*i+u}, v104')
        a('s_waitcnt lgkmcnt(0)')
        for u in range(4):
            if dyn: a(f'v_add_u32 v{144+u}, v{144+u}, v149')
            a(f'v_cndmask_b32 v{144+u}, v111, v{144+u}, s[{90+2*u}:{91+2*u}]')
        ko = 0 if dyn else 8*i
        for u in range(4):
            a(f'ds_write_b32 v{144+u}, v{qreg+u} offset:{L_R0-4*CH+4*(ko+u)}')
            a(f'ds_write_b32 v{144+u}, v110 offset:{L_S-4*CH+4*(ko+u)}')
    for i in range(4):
        quad(192+4*i, i)
        a(f'v_cmp_lt_u32 vcc, {8*(i+1)}, v104')
        a('s_cbranch_vccz L2_scat_done')
    a(f'''
    v_subrev_u32 v104, 32, v104
    v_cmp_gt_i32 vcc, 0, v104
    v_mov_b32 v149, 128
    v_add_u32 v107, 128, v107
    v_cndmask_b32 v104, v104, 0, vcc
    ''')
    a.label('L2_scat_loop')
    a(f'buffer_load_dwordx4 v[192:195], v107, s[{sEN}:{sEN+3}], 0 offen')
    a('s_waitcnt vmcnt(0)')
    quad(192, 0, dyn=True)
    a(f'''
    v_subrev_u32 v104, 8, v104
    v_add_u32 v149, 32, v149
    v_add_u32 v107, 32, v107
    v_cmp_gt_i32 vcc, 0, v104
    s_nop 1
    v_cndmask_b32 v104, v104, 0, vcc
    v_cmp_lt_u32 vcc, 0, v104
    s_cbranch_vccnz L2_scat_loop
    ''')
    a.label('L2_scat_done')
    st(5)
    a('''
    s_waitcnt vmcnt(0) lgkmcnt(0)
    s_barrier
    ''')
    st(6)
    if 'hst' in ABL:
        a(f"""
        s_lshl_b32 s54, s{sV}, 10
        v_lshlrev_b32 v97, 4, v1
        s_add_u32 s55, s54, {F_H1*1024}
        v_add_u32 v98, s55, v97
        s_add_u32 m0, s54, {L_GTAB}
        s_cmp_lg_u32 s{sV}, 0
        buffer_load_dwordx4 v98, s[{sWF}:{sWF+3}], 0 offen lds
        s_cbranch_scc1 L2_hst1
        v_add_u32 v98, {(F_H1+8)*1024}, v97
        s_mov_b32 m0, {L_HX}
        s_nop 0
        buffer_load_dwordx4 v98, s[{sWF}:{sWF+3}], 0 offen lds
        """)
        a.label('L2_hst1')
    a(f"""
    v_lshrrev_b32 v100, 2, v1
    v_lshlrev_b32 v100, 3, v100
    v_add_u32 v100, s{sNODE0}, v100
    v_mul_u32_u24 v100, 6, v100
    v_and_b32 v102, 3, v1
    v_lshl_add_u32 v100, v102, 1, v100
    v_add_u32 v100, {L_RING}, v100
    ds_read_u16 v101, v100
    s_cmp_eq_u32 s63, 1
    s_cbranch_scc1 L2_noC
    s_mov_b32 s63, 1
    v_lshlrev_b32 v96, 4, v1
    v_add_u32 v96, {L_WST}, v96
    ds_read_b128 v[{vW3}:{vW3+3}], v96
    ds_read_b128 v[{vW3+4}:{vW3+7}], v96 offset:1024
    v_and_b32 v120, 31, v1
    v_lshrrev_b32 v121, 5, v1
    v_lshlrev_b32 v122, 2, v120
    v_lshl_add_u32 v122, v121, 9, v122
    v_add_u32 v122, s62, v122
    """)
    for q in range(4):
        a(f'ds_read_b32 v{40+q}, v122 offset:{128*q}')
    a(f"""
    v_lshlrev_b32 v120, 3, v120
    v_add_u32 v120, {L_WST+2048}, v120
    ds_read_b64 v[44:45], v120
    v_cmp_gt_u32 vcc, 32, v1
    s_waitcnt lgkmcnt(0)
    v_cndmask_b32 v44, v44, 0, vcc
    v_cndmask_b32 v45, v45, 0, vcc
    """)
    for q in range(4):
        a(f'v_and_b32 v{vW6+q}, 0xffff, v{40+q}')
        a(f'v_lshrrev_b32 v{vW6+4+q}, 16, v{40+q}')
    a(f"""
    v_or_b32 v{vW6+3}, v{vW6+3}, v44
    v_or_b32 v{vW6+7}, v{vW6+7}, v45
    """)
    a.label('L2_noC')
    a(f"""
    s_lshl_b32 s54, s{sV}, 7
    s_add_u32 s54, s54, {L_PD}
    v_lshlrev_b32 v97, 2, v1
    v_add_u32 v97, s54, v97
    s_waitcnt lgkmcnt(0)
    v_lshlrev_b32 v101, 16, v101
    s_mov_b32 exec_hi, 0
    ds_write_b32 v97, v101
    s_mov_b64 exec, -1
    """)
    a(f'''
    s_lshl_b32 s54, s{sV}, 7
    s_add_u32 s54, s54, {L_PD}
    v_mov_b32 v98, s54
    v_mov_b32 v99, {L_RING}
    v_add_u32 v96, s{sBASE}, v1
    v_mov_b32 v97, v1
    s_mov_b32 s{sT}, 0
    s_mov_b32 s55, 0xffff0000
    s_movk_i32 s56, 0x7fff
    s_mov_b32 s{sHD+2}, {N}
    s_mov_b32 s{sEA+2}, {E*32}
    ''')
    a(f'''
    s_lshl_b32 s54, s{sNT}, 5
    s_sub_u32 s54, s54, 32
    v_add_u32 v100, s54, v1
    v_cmp_le_u32 s[58:59], s{sCNT}, v100
    v_cmp_gt_u32 vcc, 32, v1
    s_and_b64 vcc, vcc, s[58:59]
    s_cmp_eq_u32 s{sNT}, 0
    s_cbranch_scc1 L2_nodummy
    s_and_saveexec_b64 s[58:59], vcc
    s_cbranch_execz L2_dummy_restore
    v_add_u32 v100, s{sBASE}, v100
    v_lshlrev_b32 v101, 2, v100
    v_mov_b32 v102, 28
    ds_write_b32 v101, v102 offset:{L_R0}
    v_lshlrev_b32 v101, 1, v100
    v_mov_b32 v102, 0
    v_mov_b32 v103, 0
    ds_write_b16 v101, v102 offset:{L_RS}
    v_lshlrev_b32 v101, 3, v100
    ds_write_b64 v101, v[102:103] offset:{L_G}
    ''')
    a.label('L2_dummy_restore')
    a('s_mov_b64 exec, s[58:59]')
    a.label('L2_nodummy')
    def R(it,k): return 112+20*it+k
    def geo_pass(NI, first):
        for it in range(NI):
            a(f'ds_read_b32 v{R(it,1)}, v96 offset:{L_R0+256*it}')
            a(f'ds_read_b32 v{R(it,2)}, v96 offset:{L_S+256*it}')
        a('v_lshrrev_b32 v104, 1, v96')
        a('v_lshlrev_b32 v105, 1, v96')
        for it in range(NI):
            if it==0: a(f'v_cmp_lt_i32 s[90:91], 0, v97')
            elif it==1: a(f'v_cmp_lt_i32 s[92:93], 64, v97')
            else: a(f'v_cmp_lt_i32 s[{90+2*it}:{91+2*it}], s{57 if it==2 else 54}, v97')
        for it in range(NI):
            e=R(it,1); wb=R(it,2)
            a(f's_waitcnt lgkmcnt({2*(NI-1-it)+2*it})')
            a(f"""
            v_bfe_u32 v{R(it,3)}, v{e}, 15, 14
            v_and_b32 v{R(it,4)}, 7, v{e}
            v_mad_u32_u24 v{R(it,5)}, v{R(it,3)}, 6, v99
            v_lshl_add_u32 v{R(it,7)}, v{R(it,4)}, 4, v98
            v_and_b32 v{R(it,5)}, -4, v{R(it,5)}
            ds_read_b96 v[{R(it,8)}:{R(it,10)}], v{R(it,7)}
            ds_read2_b32 v[{R(it,12)}:{R(it,13)}], v{R(it,5)} offset1:1
            v_and_b32 v{R(it,5)}, s56, v{e}
            v_lshl_add_u32 v{wb}, v{R(it,5)}, 2, v{wb}
            v_lshlrev_b32 v{R(it,6)}, 4, v{R(it,3)}
            """)
        if first and 'nopf' not in ABL:
            a(f"""
            v_and_b32 v48, s{sMK}, v{R(0,2)}
            v_mov_b32 v51, 0
            v_mov_b32 v50, v{R(0,3)}
            s_mov_b32 exec_hi, 0
            buffer_load_dword v48, v48, s[{sEA}:{sEA+3}], 0 offen
            buffer_load_dword v49, v[50:51], s[{sHD}:{sHD+3}], 0 idxen offen
            s_mov_b64 exec, -1
            """)
        for it in range(NI):
            pd=R(it,8); ps=R(it,12); sh=R(it,6); t0=R(it,4); t1=R(it,5); t2=R(it,7); o=R(it,14); t3=R(it,17)
            a(f's_waitcnt lgkmcnt({2*(NI-1-it)+3*it})')
            a(f"""
            v_alignbit_b32 v{t0}, v{ps+1}, v{ps}, v{sh}
            v_lshrrev_b32 v{t2}, v{sh}, v{ps+1}
            v_lshlrev_b32 v{t1}, 16, v{t0}
            v_and_b32 v{t0}, s55, v{t0}
            v_lshlrev_b32 v{t2}, 16, v{t2}
            v_sub_f32 v{t1}, v{pd}, v{t1}
            v_sub_f32 v{t0}, v{pd+1}, v{t0}
            v_sub_f32 v{t2}, v{pd+2}, v{t2}
            v_mul_f32 v{t3}, v{t1}, v{t1}
            v_cvt_pk_bf16_f32 v{o+1}, v{t0}, v{t2}
            v_fmac_f32 v{t3}, v{t0}, v{t0}
            v_fmac_f32 v{t3}, v{t2}, v{t2}
            s_mov_b64 exec, s[{90+2*it}:{91+2*it}]
            ds_write_b32 v96, v{R(it,2)} offset:{L_R0+256*it}
            v_cvt_pk_bf16_f32 v{o}, v{t3}, v{t1}
            ds_write_b16 v104, v{R(it,3)} offset:{L_RS+128*it}
            ds_write_b64 v105, v[{o}:{o+1}] offset:{L_G+512*it}
            s_mov_b64 exec, -1
            """)
        a(f"""
        v_add_u32 v96, {256*NI}, v96
        v_subrev_u32 v97, {64*NI}, v97
        s_add_u32 s{sT}, s{sT}, {64*NI}
        """)
    a(f"""
    v_lshlrev_b32 v96, 2, v96
    v_sub_u32 v97, s{sCNT}, v97
    s_movk_i32 s57, 128
    s_movk_i32 s54, 192
    s_cmp_eq_u32 s{sCNT}, 0
    s_cbranch_scc1 L2_geo_done
    """)
    geo_pass(4, True)
    a.label('L2_geo_loop')
    a(f"""
    s_cmp_ge_u32 s{sT}, s{sCNT}
    s_cbranch_scc1 L2_geo_done
    """)
    geo_pass(3, False)
    a('s_branch L2_geo_loop')
    a.label('L2_geo_done')
    a(f"""
    v_lshrrev_b32 v97, 3, v1
    v_add_u32 v97, s{sBASE}, v97
    v_lshlrev_b32 v97, 1, v97
    v_add_u32 v{vRSa}, {L_RS}, v97
    v_lshrrev_b32 v97, 1, v1
    v_add_u32 v97, s{sBASE}, v97
    v_lshlrev_b32 v97, 2, v97
    v_add_u32 v{vR0a}, {L_R0}, v97
    v_and_b32 v97, 31, v1
    v_add_u32 v97, s{sBASE}, v97
    v_lshlrev_b32 v98, 2, v97
    v_add_u32 v{vR0e}, {L_R0}, v98
    v_lshrrev_b32 v98, 5, v1
    v_lshlrev_b32 v98, 2, v98
    v_lshl_add_u32 v98, v97, 3, v98
    v_add_u32 v{vGe}, {L_G}, v98
    s_mov_b32 s{sT}, 0
    s_sub_u32 s86, s{sNT}, 3
    s_sub_u32 s87, s{sNT}, 1
    s_sub_u32 s88, s{sNT}, 2
    """)
    for i in range(4): a(f'ds_read_u16 v{vHP+2*i}, v{vRSa} offset:{16*i}')
    a(f'ds_read_b32 v{vEAi}, v{vR0a}')
    a(f'ds_read_b32 v{vR0}, v{vR0e}')
    a(f'ds_read_b32 v{vG}, v{vGe}')
    if 'fprio' in ABL:
        PER=optl('per',[12])[0]
        a(f"""
        v_cvt_f32_u32 v96, s{sNT}
        v_rcp_f32 v96, v96
        s_nop 0
        v_mul_f32 v96, {f32bits(float(PER*65536*(2 if TRIMK in ABL else 1)))}, v96
        v_cvt_u32_f32 v96, v96
        s_nop 0
        v_readfirstlane_b32 s85, v96
        s_mov_b32 s84, 0
        s_sub_u32 s84, s84, s85
        """)
    a(f"""
    s_lshl_b32 s54, s{sV}, 11
    s_add_u32 s54, s54, {L_S}
    v_lshlrev_b32 v96, 4, v1
    v_add_u32 v96, s54, v96
    v_mov_b32 v100, 0
    v_mov_b32 v101, 0
    v_mov_b32 v102, 0
    v_mov_b32 v103, 0
    v_and_or_b32 v{vEAo}, v{vEAi}, s{sMK}, v{vEAc}
    """)
    if 'hst' in ABL:
        a(f"""
        s_cmp_eq_u32 s{sCNT}, 0
        s_cbranch_scc1 L2_hw0
        s_waitcnt vmcnt({0 if 'nopf' in ABL else 2})
        s_branch L2_hw1
        """)
        a.label('L2_hw0')
        a('s_waitcnt vmcnt(0)')
        a.label('L2_hw1')
    a(f"""
    s_waitcnt lgkmcnt(0)
    s_barrier
    """)
    st(7)
    a(f"""
    ds_write_b128 v96, v[100:103]
    ds_write_b128 v96, v[100:103] offset:1024
    """)
    if 'lone' in ABL:
        a(f's_cmp_ge_u32 s{sV}, 4\ns_cselect_b32 s{sNT}, 0, s{sNT}')
    a(f"""
    s_cmp_eq_u32 s{sNT}, 0
    s_cbranch_scc1 L2_notiles
    """)
    def idx_reads(toff):
        return [f'ds_read_u16 v{vHP+2*i}, v{vRSa} offset:{64*toff+16*i}' for i in range(4)] + \
               [f'ds_read_b32 v{vEAi}, v{vR0a} offset:{128*toff}']
    def rec_reads(toff):
        return [f'ds_read_b32 v{vR0}, v{vR0e} offset:{128*toff}', f'ds_read_b32 v{vG}, v{vGe} offset:{256*toff}']
    def srd_select(delta):
        return [f's_add_u32 s54, s{sT}, {delta}\ns_cmp_lt_u32 s54, s{sNT}\ns_cselect_b32 s{sHD+2}, {NH_}, 0\ns_cselect_b32 s{sEA+2}, {NE_}, 0']
    def dma2(slot):
        r=[(f'v_and_or_b32 v{vEAo}, v{vEAi}, s{sMK}, v{vEAc}\ns_add_u32 m0, s{sRB}, {slot*SLOT+4096}', f'buffer_load_dwordx4 v{vEAo}, s[{sEA}:{sEA+3}], 0 offen{EAF} lds')]
        for i in range(4):
            r.append((f's_add_u32 m0, s{sRB}, {slot*SLOT+1024*i}', f'buffer_load_dwordx4 v[{vHP+2*i}:{vHP+2*i+1}], s[{sHD}:{sHD+3}], 0 idxen offen{HF} lds'))
        return r
    def dma(slot):
        return [x+'\n'+y for x,y in dma2(slot)]
    def x_reads(slot):
        return [f'ds_read_b128 v[{vX+4*s}:{vX+4*s+3}], v{vHA+s} offset:{slot*SLOT}' for s in range(4)] + \
               [f'ds_read_b128 v[{vXE}:{vXE+3}], v{vEAr} offset:{slot*SLOT}']
    def s_addr(): return [f'v_bitop3_b32 v{vA1}, v{vR0}, 28, v{vC1} bitop3:0x6a', f'v_bfi_b32 v{vS1}, v{vMK2}, v{vG}, v{vOne}', f'v_perm_b32 v{vS2}, v{vG}, v{vG}, s{sSEL}']
    def s_writes(): return [f'ds_write_b32 v{vA1}, v{vS1}', f'ds_write_b32 v{vCD}, v{vS2}']
    def x6_read(): return [f'ds_read_b128 v[{vX6}:{vX6+3}], v{vX6r}']
    def sf_reads():
        r=[]
        for s2 in range(2):
            r.append(f'ds_read_b64_tr_b16 v[{vSF+4*s2}:{vSF+4*s2+1}], v{vSTa} offset:{1024*s2}')
            r.append(f'ds_read_b64_tr_b16 v[{vSF+4*s2+2}:{vSF+4*s2+3}], v{vSTb} offset:{1024*s2}')
        return r
    def s_restore(): return [f'ds_write_b32 v{vA1}, v{vZero}']
    def mfma1(dst):
        r=[]
        for blk in range(2):
            D=f'v[{dst+16*blk}:{dst+16*blk+15}]'
            for sp in range(2):
                C = D if sp>0 else '0'
                s_=2*blk+sp
                r.append(f'v_mfma_f32_32x32x16_bf16 {D}, v[{vX+4*s_}:{vX+4*s_+3}], v[{vI+4*sp}:{vI+4*sp+3}], {C}')
            r.append(f'v_mfma_f32_32x32x16_bf16 {D}, v[{vXE}:{vXE+3}], v[{vW3+4*blk}:{vW3+4*blk+3}], {D}')
            r.append(f'v_mfma_f32_32x32x16_bf16 {D}, v[{vX6}:{vX6+3}], v[{vW6+4*blk}:{vW6+4*blk+3}], {D}')
        return r
    ONE=f'v[{vONE}:{vONE+3}]'
    def plus1(blk):
        Eb=f'v[{vE+16*blk}:{vE+16*blk+15}]'
        return f'v_mfma_f32_32x32x16_bf16 {Eb}, {ONE}, {ONE}, {Eb}'
    def mfma2(cur,blk,s2):
        D=f'v[{vD2+16*blk}:{vD2+16*blk+15}]'; m=cur+8*blk+4*s2
        return f'v_mfma_f32_32x32x16_bf16 {D}, v[{m}:{m+3}], v[{vSF+4*s2}:{vSF+4*s2+3}], {D}'
    def keep(x):
        if 'nomfma' in ABL and x.startswith('v_mfma'): return False
        if 'nolds' in ABL and x.startswith('ds_'): return False
        if 'nodma' in ABL and 'buffer_load' in x: return False
        if 'notrans' in ABL and x.startswith(('v_exp','v_rcp')): return False
        if 'novalu' in ABL and x.startswith(('v_exp','v_rcp','v_mul','v_cvt','v_pk_mul')): return False
        return True
    def emit(backbone, inserts):
        backbone=[x if keep(x) else 's_nop 0' for x in backbone]
        inserts={k:[x for x in v if keep(x)] for k,v in inserts.items()}
        for k_ in sorted(k for k in inserts if k<0):
            for s_ in inserts[k_]: a(s_)
        for i,ins in enumerate(backbone):
            a(ins)
            for s_ in inserts.get(i,[]): a(s_)
    nlab=[0]
    PK='pk' in ABL
    DMAPOS=optl('dma',[37,48,60,70,82] if PK else [41,52,63,76,92])
    M1POS=optl('m1',[37,40,43,46,49,52,55,58] if PK else [42,46,50,54,58,62,68,74])
    SFPOS=optl('sf',[0,2,4,6]); RSPOS=optl('rs',[8])[0]; SAPOS=optl('sa',[9,10,11]); SWPOS=optl('sw',[12,13]); X6POS=optl('x6',[14])[0]
    VMPOS=optl('vm',[16])[0]; XPOS=optl('x',[16,18,20,22,24]); RECPOS=optl('rec',[26,27]); IDXPOS=optl('idx',[28,29,30,31,32])
    LGPOS=optl('lg',[36] if PK else [40])[0]; M2POS=optl('m2',[85,89,93,95] if PK else [89,95,111,111]); P1POS=optl('p1',[17,33])
    def body(p, steady, extra_first=None):
        cur=vD1[p]; nxt=vD1[1-p]
        bb=[]
        for blk in range(2):
            bb += [f'v_exp_f32 v{vE+16*blk+i}, v{cur+16*blk+i}' for i in range(16)]
        for blk in range(2):
            bb += [f'v_rcp_f32 v{vE+16*blk+i}, v{vE+16*blk+i}' for i in range(16)]
        if 'pk' in ABL:
            bb += [f'v_pk_mul_f32 v[{vE+2*i}:{vE+2*i+1}], v[{vE+2*i}:{vE+2*i+1}], v[{cur+2*i}:{cur+2*i+1}]' for i in range(16)]
            bb += [f'v_cvt_pk_bf16_f32 v{cur+q}, v{vE+2*q}, v{vE+2*q+1}' for q in range(16)]
        else:
            bb += [f'v_mul_f32 v{vE+i}, v{vE+i}, v{cur+i}' for i in range(16)]
            bb += [f'v_cvt_pk_bf16_f32 v{cur+q}, v{vE+2*q}, v{vE+2*q+1}' for q in range(8)]
            bb += [f'v_mul_f32 v{vE+16+i}, v{vE+16+i}, v{cur+16+i}' for i in range(16)]
            bb += [f'v_cvt_pk_bf16_f32 v{cur+8+q}, v{vE+16+2*q}, v{vE+16+2*q+1}' for q in range(8)]
        ins={}
        def put(pos,x):
            ins.setdefault(pos,[]).append(x)
        if not ('trim' in ABL and steady): put(-100,'s_waitcnt lgkmcnt(0)')
        if 'prio' in ABL:
            put(-99,f'''s_and_b32 s54, s{sT}, 2
            s_cmp_eq_u32 s54, 0
            s_cbranch_scc1 Lp{nlab[0]}a
            s_setprio {1-p}
            s_branch Lp{nlab[0]}b
            Lp{nlab[0]}a:
            s_setprio {3-p}
            Lp{nlab[0]}b:''')
            nlab[0]+=1
        if 'fprio' in ABL and not ('trim' in ABL and p==1):
            n=nlab[0]
            put(-99,f'''s_add_u32 s84, s84, s85
            s_bitcmp1_b32 s84, 17
            s_cbranch_scc1 Lp{n}h
            s_bitcmp1_b32 s84, 16
            s_cbranch_scc1 Lp{n}a
            s_setprio 3
            s_branch Lp{n}z
            Lp{n}a:
            s_setprio 2
            s_branch Lp{n}z
            Lp{n}h:
            s_bitcmp1_b32 s84, 16
            s_cbranch_scc1 Lp{n}b
            s_setprio 1
            s_branch Lp{n}z
            Lp{n}b:
            s_setprio 0
            Lp{n}z:''')
            nlab[0]+=1
        if steady and p==0:
            n=nlab[0]; nlab[0]+=1
            if 'nozf' in ABL:
                put(0,f's_cmp_lg_u32 s{sT}, 0\ns_cbranch_scc1 Ld{n}\ns_cmp_lt_u32 s{sNT}, 3\ns_cbranch_scc1 Ld{n}\n'+'\n'.join(dma(0))+f'\nLd{n}:')
            else:
                put(0,f's_cmp_lg_u32 s{sT}, 0\ns_cbranch_scc1 Ld{n}\n'+'\n'.join(dma(0))+f'\nLd{n}:')
        for x,q in zip(sf_reads(),SFPOS): put(q,x)
        put(RSPOS,s_restore()[0])
        if extra_first:
            for x in extra_first: put(RSPOS+4,x)
        put(P1POS[0],plus1(0))
        put(P1POS[1],plus1(1))
        if steady:
            for x,q in zip(s_addr(),SAPOS): put(q,x)
            for x,q in zip(s_writes(),SWPOS): put(q,x)
            put(X6POS,x6_read()[0])
            if 'nozf' in ABL:
                n=nlab[0]; nlab[0]+=1
                put(VMPOS,f's_cmp_lt_i32 s{sT}, s88\ns_waitcnt vmcnt(5)\ns_cbranch_scc1 Lw{n}\ns_waitcnt vmcnt(0)\nLw{n}:')
            else: put(VMPOS,'s_waitcnt vmcnt(5)')
            for x,q in zip(x_reads(1-p),XPOS): put(q,x)
            for x,q in zip(rec_reads(p+2),RECPOS): put(q,x)
            for x,q in zip(idx_reads(p+3),IDXPOS): put(q,x)
            if 'nozf' in ABL: pass
            elif 'trim' in ABL:
                n=nlab[0]; nlab[0]+=1
                put(LGPOS-2,f's_cmp_lt_i32 s{sT}, s86\ns_cbranch_scc1 Lz{n}\ns_mov_b32 s{sHD+2}, 0\ns_mov_b32 s{sEA+2}, 0\nLz{n}:')
            else: put(LGPOS-2,srd_select(3)[0])
            put(LGPOS,'s_waitcnt lgkmcnt(0)')
            if 'nozf' in ABL:
                n=nlab[0]; nlab[0]+=1
                put(DMAPOS[0],f's_cmp_lt_i32 s{sT}, s86\ns_cbranch_scc0 Lnd{n}\n'+'\n'.join(dma(1-p))+f'\nLnd{n}:')
            else:
              for (x,y),q in zip(dma2(1-p),DMAPOS):
                if q>0 and q-1>LGPOS-1 and 'trim' in ABL: put(q-1,x); put(q,y)
                else: put(q,x+'\n'+y)
            for x,q in zip(mfma1(nxt),M1POS): put(q,x)
        for (b_,s_),q in zip(((0,0),(0,1),(1,0),(1,1)),M2POS): put(q,mfma2(cur,b_,s_))
        emit(bb,ins)
    def late_consts(a):
        a(f'''
        v_and_b32 v97, 31, v1
        v_lshrrev_b32 v98, 5, v1
        v_bfe_u32 v99, v97, 1, 3
        v_lshlrev_b32 v100, 7, v97
        v_add_u32 v100, s{sRB}, v100
        ''')
        for s in range(4):
            a(f'''
            v_add_u32 v101, {2*s}, v98
            v_xor_b32 v101, v101, v99
            v_lshl_add_u32 v{vHA+s}, v101, 4, v100
            ''')
        a(f'''
        v_lshrrev_b32 v101, 4, v97
        v_xor_b32 v101, v101, v98
        v_lshlrev_b32 v101, 4, v101
        v_lshl_add_u32 v101, v97, 5, v101
        v_add_u32 v101, s{sRB}, v101
        v_add_u32 v{vEAr}, 4096, v101
        s_lshl_b32 s57, s{sV}, 11
        s_add_u32 s57, s57, {L_S}
        v_lshlrev_b32 v101, 6, v97
        v_add_u32 v101, s57, v101
        v_bfe_u32 v102, v97, 2, 2
        v_xor_b32 v103, v98, v102
        v_lshl_add_u32 v{vX6r}, v103, 4, v101
        v_lshlrev_b32 v103, 1, v98
        v_xor_b32 v104, v103, v102
        v_lshl_add_u32 v{vC1}, v104, 4, v101
        v_add_u32 v103, 1, v103
        v_xor_b32 v104, v103, v102
        v_lshl_add_u32 v104, v104, 4, v101
        v_add_u32 v{vCD}, 12, v104
        v_cmp_gt_u32 vcc, 32, v1
        v_mov_b32 v103, 0xffff0000
        v_mov_b32 v104, -1
        v_cndmask_b32 v{vMK2}, v104, v103, vcc
        v_mov_b32 v{vOne}, 0x3f80
        v_mov_b32 v{vONE+1}, 0
        v_mov_b32 v{vONE+2}, 0
        v_mov_b32 v{vONE+3}, 0
        v_cndmask_b32 v{vONE}, 0, v{vOne}, vcc
        v_lshlrev_b32 v101, 3, v98
        v_sub_u32 v101, v97, v101
        v_and_b32 v102, 1, v101
        v_lshlrev_b32 v102, 4, v102
        v_lshlrev_b32 v102, v102, v{vOne}
        v_ashrrev_i32 v101, 1, v101
        ''')
        for k in range(8):
            q=8*(k>>2)+(k&3)
            a(f'v_cmp_eq_u32 s[{90+2*(k&3)}:{91+2*(k&3)}], {q}, v101')
            if (k&3)==3:
                for kk in range(k-3,k+1):
                    a(f'v_cndmask_b32 v{vI+kk}, 0, v102, s[{90+2*(kk&3)}:{91+2*(kk&3)}]')
        a(f'''
        v_and_b32 v101, 15, v1
        v_lshrrev_b32 v101, 2, v101
        v_lshl_add_u32 v101, v98, 2, v101
        v_lshlrev_b32 v101, 6, v101
        v_and_b32 v102, 1, v1
        v_lshl_add_u32 v101, v102, 3, v101
        v_add_u32 v101, s57, v101
        v_bfe_u32 v102, v1, 4, 1
        v_bfe_u32 v103, v1, 1, 1
        v_lshl_add_u32 v102, v102, 1, v103
        v_xor_b32 v103, v102, v98
        v_lshl_add_u32 v{vSTa}, v103, 4, v101
        v_add_u32 v103, 2, v98
        v_xor_b32 v103, v102, v103
        v_lshl_add_u32 v103, v103, 4, v101
        v_add_u32 v{vSTb}, 512, v103
        ''')

    lc=Asm(); late_consts(lc); lcl=list(lc.lines); per=(len(lcl)+9)//10
    def dma_lc(slot,k0):
        for k,x in enumerate(dma(slot)):
            a(x)
            if 'ilc' in ABL:
                for y in lcl[(k0+k)*per:(k0+k+1)*per]: a(y)
    a(f's_mov_b32 s{sHD+2}, {N}')
    a(f's_mov_b32 s{sEA+2}, {E*32}')
    dma_lc(0,0)
    st(13+18)
    for x in idx_reads(1): a(x)
    if 'nozf' in ABL:
        a(f's_cmp_lt_u32 s{sNT}, 2\ns_cbranch_scc1 L2_nod1')
    else: a(srd_select(1)[0])
    a('s_waitcnt lgkmcnt(0)')
    dma_lc(1,5)
    if 'nozf' in ABL: a.label('L2_nod1')
    st(14)
    for x in idx_reads(2): a(x)
    if 'nozf' not in ABL: a(srd_select(2)[0])
    if 'ilc' not in ABL:
        for y in lcl: a(y)
    for x in s_addr(): a(x)
    for x in s_writes(): a(x)
    for x in x6_read(): a(x)
    st(15)
    if 'nozf' in ABL:
        a(f's_cmp_gt_u32 s{sNT}, 1\ns_waitcnt vmcnt(5)\ns_cbranch_scc1 L2_w1\ns_waitcnt vmcnt(0)')
        a.label('L2_w1')
    else: a('s_waitcnt vmcnt(5)')
    st(30)
    for x in x_reads(0): a(x)
    for x in rec_reads(1): a(x)
    a('s_waitcnt lgkmcnt(0)')
    for x in mfma1(vD1[0]): a(x)
    st(8)
    stampc(a,12,vTM,98)
    if DEBUG_TM: a(f'v_writelane_b32 v{vTM}, s{sNT}, 22\nv_writelane_b32 v{vTM}, s{sG}, 23\ns_getreg_b32 s98, hwreg(HW_REG_HW_ID)\nv_writelane_b32 v{vTM}, s98, 24')
    JM=[0,1,4,5]
    RESV=[[232,233,234,236],[237,238,252,253]]
    WXV=[192,196,200,204,208,212,228,248]
    def epi_prefetch(p):
        nxt=vD1[1-p]
        r=[]
        r.append('v_lshlrev_b32 v10, 4, v1')
        for ff in range(16):
            dst = 16+4*ff if ff<8 else nxt+4*(ff-8)
            if 'hst' in ABL and ff<NHS:
                r.append(f'v_add_u32 v9, {hstage_addr(ff)}, v10\nds_read_b128 v[{dst}:{dst+3}], v9')
            else:
                r.append(f'v_add_u32 v9, {(F_H1+ff)*1024}, v10\nbuffer_load_dwordx4 v[{dst}:{dst+3}], v9, s[{sWF}:{sWF+3}], 0 offen')
        r.append(f"""
        v_lshrrev_b32 v9, 3, v1
        v_lshlrev_b32 v9, 3, v9
        v_add_u32 v3, s{sG}, v9
        v_add_u32 v9, s{sNODE0}, v9
        v_cmp_gt_u32 vcc, {BN}, v3
        v_mov_b32 v4, -1
        v_and_b32 v241, 7, v1
        v_lshlrev_b32 v241, 4, v241
        v_cndmask_b32 v240, v4, v9, vcc
        """)
        r.append(f"""
        v_bfe_u32 v9, v1, 1, 3
        v_lshlrev_b32 v9, 3, v9
        v_add_u32 v3, s{sG}, v9
        v_add_u32 v9, s{sNODE0}, v9
        v_bfe_u32 v5, v1, 4, 1
        v_and_b32 v8, 1, v1
        v_lshl_add_u32 v5, v5, 1, v8
        v_cmp_gt_u32 vcc, {BN}, v3
        v_subrev_u32 v5, 1, v5
        v_cmp_gt_u32 s[56:57], 3, v5
        v_mul_u32_u24 v9, 6, v9
        s_and_b64 vcc, vcc, s[56:57]
        v_cmp_gt_u32 s[56:57], 32, v1
        v_lshl_add_u32 v9, v5, 1, v9
        v_mov_b32 v4, 0x7fffff00
        s_and_b64 vcc, vcc, s[56:57]
        v_cndmask_b32 v10, v4, v9, vcc
        buffer_load_ushort v11, v10, s[{sPOS}:{sPOS+3}], 0 offen
        """)
        return r
    def epi_rows():
        return f"""s_waitcnt lgkmcnt(0)
        s_lshl_b32 s62, s{sV}, 11
        s_add_u32 s62, s62, {L_S}
        s_mov_b32 m0, s62
        s_nop 0
        buffer_load_dwordx4 v[240:241], s[{sH}:{sH+3}], 0 idxen offen lds"""
    def epilogue(p):
        nxt=vD1[1-p]; cur=vD1[p]
        pk=vE; T=vE+16; acc=vE+24
        a(f"""
        v_and_b32 v3, 31, v1
        v_lshrrev_b32 v4, 5, v1
        v_bfe_u32 v5, v1, 1, 3
        v_lshlrev_b32 v5, 7, v5
        v_lshl_add_u32 v5, v4, 4, v5
        v_add_u32 v5, s62, v5
        v_lshlrev_b32 v6, 7, v4
        v_add_u32 v6, {L_WST+2048+256}, v6
        v_lshlrev_b32 v7, 1, v3
        v_lshl_add_u32 v7, v4, 8, v7
        v_add_u32 v7, s62, v7
        s_mov_b32 s54, {f32bits(-math.log(2.0))}
        s_mov_b32 s55, s54
        s_waitcnt vmcnt(0)
        """)
        for s_ in range(4):
            a(f'ds_read_b128 v[{48+4*s_}:{51+4*s_}], v5 offset:{32*s_}')
        for f in range(8):
            a(f'ds_read_b128 v[{WXV[f]}:{WXV[f]+3}], v6 offset:{16*f}')
        for i in range(16):
            a(f'v_pk_mul_f32 v[{vD2+2*i}:{vD2+2*i+1}], v[{vD2+2*i}:{vD2+2*i+1}], s[54:55]')
        a('s_waitcnt lgkmcnt(8)')
        for b2 in range(2):
            D=f'v[{cur+16*b2}:{cur+16*b2+15}]'
            for s_ in range(4):
                C = D if s_>0 else '0'
                a(f'v_mfma_f32_32x32x16_bf16 {D}, v[{48+4*s_}:{51+4*s_}], v[{16+4*(2*s_+b2)}:{19+4*(2*s_+b2)}], {C}')
            if b2==0:
                for blk in range(2):
                    for q in range(8):
                        a(f'v_cvt_pk_bf16_f32 v{pk+8*blk+q}, v{vD2+16*blk+2*q}, v{vD2+16*blk+2*q+1}')
        for b2 in range(2):
            for m in range(4):
                a(f'ds_read_u16 v{RESV[b2][m]}, v7 offset:{128*JM[m]+64*b2}')
        for b2 in range(2):
            D=f'v[{cur+16*b2}:{cur+16*b2+15}]'
            for blk in range(2):
                for sp in range(2):
                    f=(blk*2+sp)*2+b2
                    a(f'v_mfma_f32_32x32x16_bf16 {D}, v[{pk+8*blk+4*sp}:{pk+8*blk+4*sp+3}], v[{nxt+4*f}:{nxt+4*f+3}], {D}')
            if b2==0:
                a('s_waitcnt lgkmcnt(8)')
                a(f'v_mul_f32 v{acc}, v{vD2}, v{WXV[0]}')
                a(f'v_mul_f32 v{acc+1}, v{vD2+1}, v{WXV[0]+1}')
                for i in range(2,32):
                    a(f'v_fmac_f32 v{acc+(i&1)}, v{vD2+i}, v{WXV[i>>2]+(i&3)}')
                a(f'v_add_f32 v{acc}, v{acc}, v{acc+1}')
                a(f'v_mov_b32 v{acc+1}, v{acc}')
        a(f'v_permlane32_swap_b32 v{acc}, v{acc+1}')
        a(f"""
        v_lshlrev_b32 v11, 16, v11
        v_add_f32 v{acc}, v{acc}, v{acc+1}
        v_add_f32 v11, v11, v{acc}
        v_cvt_pk_bf16_f32 v11, v11, v11
        buffer_store_short v11, v10, s[{sO1}:{sO1+3}], 0 offen
        s_mov_b32 s54, {f32bits(-LOG2E)}
        """)
        for b2 in range(2):
            for m in range(4):
                a(f'v_mul_f32 v{T+4*b2+m}, s54, v{cur+16*b2+2*m}')
        for k in range(8): a(f'v_exp_f32 v{T+k}, v{T+k}')
        for k in range(8): a(f'v_add_f32 v{T+k}, 1.0, v{T+k}')
        for k in range(8): a(f'v_rcp_f32 v{T+k}, v{T+k}')
        a('s_waitcnt lgkmcnt(0)')
        for b2 in range(2):
            for m in range(4):
                x=cur+16*b2+2*m; t=T+4*b2+m; hh=RESV[b2][m]
                a(f'v_lshlrev_b32 v{hh}, 16, v{hh}')
                a(f'v_fma_f32 v{t}, v{x}, v{t}, v{hh}')
                a(f'v_cvt_pk_bf16_f32 v{t}, v{t}, v{t}')
        for b2 in range(2):
            for m in range(4):
                a(f'ds_write_b16 v7, v{T+4*b2+m} offset:{1024+128*JM[m]+64*b2}')
        a(f"""
        v_lshlrev_b32 v6, 4, v1
        v_add_u32 v6, s62, v6
        ds_read_b128 v[48:51], v6 offset:1024
        s_waitcnt lgkmcnt(0)
        buffer_store_dwordx4 v[48:51], v[240:241], s[{sO0}:{sO0+3}], 0 idxen offen{SC1O}
        """)
        st(10)
        if DEBUG_TM: a('s_waitcnt vmcnt(0)')
        st(11)
        stamp_store(a,vTM,98,44,45,0x80000,sV,254)
        a('s_endpgm')
    for p in range(2):
        a.label(f'L2_s{p}')
        if 'trim' in ABL:
            a(f's_cmp_ge_i32 s{sT}, s87\ns_cbranch_scc1 L2_l{p}')
        else:
            a(f'''
            s_add_u32 s54, s{sT}, 1
            s_cmp_ge_u32 s54, s{sNT}
            s_cbranch_scc1 L2_l{p}
            ''')
        if DEBUG_TM and p==0:
            for tt,ix in ((2,25),(4,26),(6,27),(8,28),(10,29)):
                a(f's_cmp_lg_u32 s{sT}, {tt}\ns_cbranch_scc1 Lst{ix}')
                stampc(a,ix,vTM,98)
                a.label(f'Lst{ix}')
        body(p, True)
        a(f's_add_u32 s{sT}, s{sT}, 1')
        if p==1:
            a(f'''
            v_add_u32 v{vRSa}, 128, v{vRSa}
            v_add_u32 v{vR0a}, 256, v{vR0a}
            v_add_u32 v{vR0e}, 256, v{vR0e}
            v_add_u32 v{vGe}, 512, v{vGe}
            s_branch L2_s0
            ''')
    for p in range(2):
        a.label(f'L2_l{p}')
        a(f'''
        s_cmp_lt_u32 s{sW1}, {NCH}
        s_cbranch_scc1 L2_l{p}n
        ''')
        body(p, False, None) if False else None
        for x in epi_prefetch(p): a(x)
        body(p, False, [epi_rows()])
        st(9)
        stampc(a,13,vTM,98)
        epilogue(p)
        a.label(f'L2_l{p}n')
        body(p, False)
        a('s_branch L2_nextbatch')
    a.label('L2_notiles')
    a(f'''
    s_cmp_lt_u32 s{sW1}, {NCH}
    s_cbranch_scc1 L2_nextbatch
    ''')
    for x in epi_prefetch(0): a(x)
    a(epi_rows())
    st(9)
    epilogue(0)
    a.label('L2_nextbatch')
    a(f'''
    s_waitcnt vmcnt(0) lgkmcnt(0)
    s_mov_b32 s{sW0}, s{sW1}
    s_add_u32 s{sW1}, s{sW1}, 1
    s_branch L2_batch
    ''')
    a.label('L2_end')
    a('s_endpgm')
    return a.finalize(), 256, 102, (L_END if 'hst' in ABL else L_HX)

def main():
    k1,v1,s1,l1 = gen_k1()
    k2,v2,s2,l2 = gen_k2()
    hdr = open('gather_scatter__cheap_equivariant_egnn__graph.s.ref').read().split('; Override launch')[0]
    out = hdr
    out += f'; @launch kernel=egnn_part_kernel grid=({NCH+1+NTW},1,1) block=(512,1,1) lds={l1}\n'
    out += f'; @launch kernel=egnn_main_kernel grid=({NBK},1,1) block=(512,1,1) lds={l2}\n'
    out += '.amdgcn_target "amdgcn-amd-amdhsa--gfx950"\n.text\n'
    for name,body in (('egnn_part_kernel',k1),('egnn_main_kernel',k2)):
        out += f'.globl {name}\n.p2align 8\n.type {name},@function\n' + body
    out += '.section .rodata,"a"\n'
    for name,nv,ns in (('egnn_part_kernel',v1,s1),('egnn_main_kernel',v2,s2)):
        acc=(nv+3)//4*4
        out += f'''.p2align 6
.amdhsa_kernel {name}
  .amdhsa_next_free_vgpr {nv}
  .amdhsa_next_free_sgpr {ns}
  .amdhsa_accum_offset {acc}
  .amdhsa_group_segment_fixed_size 0
  .amdhsa_kernarg_size 88
  .amdhsa_user_sgpr_count 2
  .amdhsa_user_sgpr_kernarg_segment_ptr 1
  .amdhsa_system_sgpr_workgroup_id_x 1
  .amdhsa_float_denorm_mode_32 3
.end_amdhsa_kernel
'''
    dst = [x for x in sys.argv[1:] if not x.startswith('--')]
    path = dst[0] if dst else 'gather_scatter__cheap_equivariant_egnn__graph.s'
    open(path,'w').write(out)
    print('wrote',path,len(out))
main()
```

```python
import sys, math
from asmlib import Asm

N=12500; E=800000; CH=3200; NCH=250; NBK=256; BN=49
ROW=4224
OFFS=0; ENT=0x110000; WF=0x420000; TA=0x500000; TB=0x700000; TM=0x900000
NF=18; WDO=NF*1024; WXO=NF*1024+256; WFSZ=NF*1024+512
NTW=98
CAP=3584
LOG2E=1.4426950408889634
def f32bits(x):
    import struct; return struct.unpack('<I',struct.pack('<f',x))[0]

DEBUG_TM = '--tm' in sys.argv
K1PRIO = '--nok1prio' not in sys.argv
TFIRST = '--tfirst' in sys.argv
SC1 = '' if '--nosc1' in sys.argv else (' sc0 sc1' if '--sc01' in sys.argv else ' sc1')
SC1T = '' if '--tplain' in sys.argv else SC1
SC1W = SC1 if '--wsc1' in sys.argv else ''
SC1O = ' sc1' if '--osc1' in sys.argv else ''
PFN = int(([x[6:] for x in sys.argv if x.startswith('--pfn=')] or ['0'])[0])
PFK1 = 2 if PFN else 0

F_W3=0
F_H1=2
F_H2=10

def stamp(a, idx, vreg, sp):
    if not DEBUG_TM: return
    a(f'''
    s_memrealtime s[{sp}:{sp+1}]
    s_waitcnt lgkmcnt(0)
    v_writelane_b32 v{vreg}, s{sp}, {idx}
    ''')
def stampc(a, idx, vreg, sp):
    if not DEBUG_TM: return
    a(f'''
    s_memtime s[{sp}:{sp+1}]
    s_waitcnt lgkmcnt(0)
    v_writelane_b32 v{vreg}, s{sp}, {idx}
    ''')
def stamp_store(a, vreg, sp, ws_lo, ws_hi, region, wave_s, vt):
    if not DEBUG_TM: return
    a(f'''
    s_lshl_b32 s{sp}, s2, 3
    s_add_u32 s{sp}, s{sp}, s{wave_s}
    s_lshl_b32 s{sp}, s{sp}, 7
    s_add_u32 s{sp}, s{sp}, {TM+region}
    s_add_u32 s{sp}, s{ws_lo}, s{sp}
    s_addc_u32 s{sp+1}, s{ws_hi}, 0
    v_and_b32 v{vt}, 63, v0
    v_lshlrev_b32 v{vt}, 2, v{vt}
    s_mov_b32 exec_hi, 0
    global_store_dword v{vt}, v{vreg}, s[{sp}:{sp+1}]
    s_mov_b64 exec, -1
    ''')

def gen_k1():
    a=Asm()
    K1_STAGE=8192; K1_WTOT=24576
    a.label('egnn_part_kernel')
    a(f'''
    s_cmp_gt_u32 s2, {NCH+NTW}
    s_cbranch_scc1 L1_end
    v_lshrrev_b32 v2, 6, v0
    v_and_b32 v1, 63, v0
    s_load_dwordx4 s[4:7], s[0:1], 24
    s_load_dwordx2 s[8:9], s[0:1], 80
    s_load_dwordx2 s[34:35], s[0:1], 16
    v_readfirstlane_b32 s3, v2
    s_cmp_eq_u32 s2, {NTW if TFIRST else NCH}
    s_cbranch_scc1 L1_wprep
    s_cmp_{'lt' if TFIRST else 'gt'}_u32 s2, {NTW if TFIRST else NCH}
    s_cbranch_scc1 L1_tables
    s_sub_u32 s38, s2, {NTW+1 if TFIRST else 0}
    s_setprio {3 if K1PRIO else 0}
    ''')
    if DEBUG_TM: a('v_mov_b32 v70, 0')
    stamp(a,0,70,36)
    a(f'''
    v_lshlrev_b32 v3, 4, v0
    v_mov_b32 v4, 0
    v_mov_b32 v5, 0
    v_mov_b32 v6, 0
    v_mov_b32 v7, 0
    ds_write_b128 v3, v[4:7]
    s_mul_i32 s10, s38, {CH*4}
    s_mul_i32 s11, s38, {ROW}
    v_add_u32 v48, 8192, v3
    s_waitcnt lgkmcnt(0)
    s_add_u32 s12, s6, s10
    s_addc_u32 s13, s7, 0
    s_mov_b32 s14, {CH*4}
    s_mov_b32 s15, 0x20000
    s_add_u32 s16, s4, s10
    s_addc_u32 s17, s5, 0
    s_mov_b32 s18, {CH*4}
    s_mov_b32 s19, 0x20000
    buffer_load_dwordx4 v[8:11], v3, s[12:15], 0 offen
    buffer_load_dwordx4 v[12:15], v48, s[12:15], 0 offen
    buffer_load_dwordx4 v[16:19], v3, s[16:19], 0 offen
    buffer_load_dwordx4 v[20:23], v48, s[16:19], 0 offen
    ''')
    if PFK1:
        a(f'''
        s_mul_i32 s10, s38, {CH*32}
        s_add_u32 s32, s34, s10
        s_addc_u32 s33, s35, 0
        s_cmp_lt_u32 s38, {PFN}
        s_cselect_b32 s34, {CH*32}, 0
        s_mov_b32 s35, 0x20000
        v_lshlrev_b32 v64, 7, v0
        v_add_u32 v65, {512*128}, v64
        buffer_load_dword v66, v64, s[32:35], 0 offen
        ''')
        if PFK1>1: a('buffer_load_dword v67, v65, s[32:35], 0 offen')
        a(f's_mul_i32 s10, s38, {CH*4}')
    a(f'''
    s_add_u32 s24, s8, {OFFS}
    s_addc_u32 s25, s9, 0
    s_add_u32 s24, s24, s11
    s_addc_u32 s25, s25, 0
    s_mov_b32 s26, {ROW}
    s_mov_b32 s27, 0x20000
    s_add_u32 s28, s8, {ENT}
    s_addc_u32 s29, s9, 0
    s_add_u32 s28, s28, s10
    s_addc_u32 s29, s29, 0
    s_mov_b32 s30, {CH*4}
    s_mov_b32 s31, 0x20000
    s_mov_b32 s22, -{BN}
    v_mov_b32 v50, 1
    v_lshlrev_b32 v51, 5, v0
    v_add_u32 v52, 16384, v51
    s_barrier
    s_waitcnt vmcnt({2+PFK1})
    ''')
    stamp(a,1,70,36)
    def keyslot(i, dst, tmp):
        a(f'''
        v_mul_u32_u24 v{tmp}, 21400, v{dst}
        v_lshrrev_b32 v{tmp}, 20, v{tmp}
        v_mad_i32_i24 v{40+i}, v{tmp}, s22, v{dst}
        v_and_b32 v{tmp+1}, 7, v{40+i}
        v_lshl_or_b32 v{tmp}, v{tmp}, 3, v{tmp+1}
        v_lshlrev_b32 v{24+i}, 2, v{tmp}
        ''')
    for u in range(4):
        keyslot(u, 8+u, 54+2*u)
        a(f'ds_add_rtn_u32 v{32+u}, v{24+u}, v50')
    a('''
    v_cmp_gt_u32 vcc, 288, v0
    s_and_saveexec_b64 s[20:21], vcc
    s_cbranch_execz L1_skipB1
    ''')
    for u in range(4):
        keyslot(4+u, 12+u, 54+2*u)
        a(f'ds_add_rtn_u32 v{36+u}, v{28+u}, v50')
    a.label('L1_skipB1')
    a('s_mov_b64 exec, s[20:21]')
    a(f's_waitcnt vmcnt({PFK1})')
    for i in range(8):
        base = 51 if i<4 else 52
        a(f'''
        v_lshrrev_b32 v54, 3, v{40+i}
        v_lshl_or_b32 v54, v{40+i}, 29, v54
        v_lshl_or_b32 v54, v{16+i}, 15, v54
        v_add3_u32 v{40+i}, v54, v{base}, {8*(i%4)}
        ''')
    a('''
    s_waitcnt lgkmcnt(0)
    s_barrier
    ''')
    stamp(a,2,70,36)
    a('''
    ds_read_b128 v[8:11], v3
    s_waitcnt lgkmcnt(0)
    v_add_u32 v12, v8, v9
    v_add_u32 v13, v12, v10
    v_add_u32 v14, v13, v11
    v_mov_b32 v15, v14
    ''')
    for sh in (1,2,4,8):
        a(f'v_add_u32_dpp v15, v15, v15 row_shr:{sh} row_mask:0xf bank_mask:0xf')
    a('v_add_u32_dpp v15, v15, v15 row_bcast:15 row_mask:0xa bank_mask:0xf')
    a('v_add_u32_dpp v15, v15, v15 row_bcast:31 row_mask:0xc bank_mask:0xf')
    a(f'''
    s_lshl_b32 s10, s3, 2
    s_add_u32 s10, s10, {K1_WTOT}
    v_mov_b32 v16, s10
    s_mov_b32 s20, 0
    s_brev_b32 s21, 1
    s_mov_b64 exec, s[20:21]
    ds_write_b32 v16, v15
    s_mov_b64 exec, -1
    v_and_b32 v17, 7, v1
    v_lshlrev_b32 v17, 2, v17
    v_add_u32 v17, {K1_WTOT}, v17
    s_waitcnt lgkmcnt(0)
    s_barrier
    ds_read_b32 v18, v17
    v_cmp_gt_u32 vcc, s3, v1
    s_waitcnt lgkmcnt(0)
    v_cndmask_b32 v18, 0, v18, vcc
    ''')
    for sh in (1,2,4):
        a(f'v_add_u32_dpp v18, v18, v18 row_shr:{sh} row_mask:0xf bank_mask:0xf')
    a(f'''
    v_readlane_b32 s10, v18, 7
    v_sub_u32 v15, v15, v14
    v_add_u32 v8+0, s10, v15
    '''.replace('v8+0','v19'))
    a(f'''
    v_add_u32 v21, v19, v12
    v_add_u32 v22, v19, v13
    v_add_u32 v20, v19, v8
    v_mov_b32 v56, v19
    v_mov_b32 v57, v20
    v_mov_b32 v58, v21
    v_mov_b32 v59, v22
    ds_write_b128 v3, v[56:59]
    v_lshl_or_b32 v60, v20, 16, v19
    v_lshl_or_b32 v61, v22, 16, v21
    v_lshlrev_b32 v62, 3, v0
    buffer_store_dwordx2 v[60:61], v62, s[24:27], 0 offen{SC1}
    s_cmp_lg_u32 s3, 0
    s_cbranch_scc1 L1_nosent
    s_mov_b32 s10, {CH | (CH<<16)}
    v_mov_b32 v63, s10
    v_lshlrev_b32 v62, 2, v1
    v_add_u32 v62, 4096, v62
    v_cmp_gt_u32 vcc, 32, v1
    s_and_saveexec_b64 s[20:21], vcc
    buffer_store_dword v63, v62, s[24:27], 0 offen{SC1}
    s_mov_b64 exec, s[20:21]
    ''')
    a.label('L1_nosent')
    a('''
    s_waitcnt lgkmcnt(0)
    s_barrier
    ''')
    stamp(a,3,70,36)
    for u in range(4):
        a(f'ds_read_b32 v{8+u}, v{24+u}')
    a('''
    v_cmp_gt_u32 vcc, 288, v0
    s_and_saveexec_b64 s[20:21], vcc
    s_cbranch_execz L1_skipB2
    ''')
    for u in range(4):
        a(f'ds_read_b32 v{12+u}, v{28+u}')
    a('s_waitcnt lgkmcnt(0)')
    for u in range(4):
        a(f'v_add_lshl_u32 v{12+u}, v{12+u}, v{36+u}, 2')
    for u in range(4):
        a(f'ds_write_b32 v{12+u}, v{44+u} offset:{K1_STAGE}')
    a.label('L1_skipB2')
    a('s_mov_b64 exec, s[20:21]')
    a('s_waitcnt lgkmcnt(0)')
    for u in range(4):
        a(f'v_add_lshl_u32 v{8+u}, v{8+u}, v{32+u}, 2')
    for u in range(4):
        a(f'ds_write_b32 v{8+u}, v{40+u} offset:{K1_STAGE}')
    a(f'''
    s_waitcnt lgkmcnt(0)
    s_barrier
    ds_read_b128 v[8:11], v3 offset:{K1_STAGE}
    ds_read_b128 v[12:15], v3 offset:{K1_STAGE+8192}
    s_waitcnt lgkmcnt(1)
    buffer_store_dwordx4 v[8:11], v3, s[28:31], 0 offen{SC1}
    s_waitcnt lgkmcnt(0)
    buffer_store_dwordx4 v[12:15], v48, s[28:31], 0 offen{SC1}
    ''')
    stamp(a,4,70,36)
    if DEBUG_TM: a('s_waitcnt vmcnt(0)')
    stamp(a,5,70,36)
    stamp_store(a,70,36,8,9,0,3,69)
    a('s_endpgm')
    a.label('L1_wprep')
    a(f'''
    s_load_dwordx2 s[10:11], s[0:1], 40
    s_load_dwordx2 s[12:13], s[0:1], 48
    s_load_dwordx2 s[14:15], s[0:1], 56
    v_and_b32 v2, 31, v1
    v_lshrrev_b32 v3, 5, v1
    v_lshlrev_b32 v4, 4, v1
    s_waitcnt lgkmcnt(0)
    s_mov_b32 s16, s10
    s_mov_b32 s17, s11
    s_mov_b32 s18, {145*64*2}
    s_mov_b32 s19, 0x20000
    s_mov_b32 s20, s14
    s_mov_b32 s21, s15
    s_mov_b32 s22, {128*64*2}
    s_mov_b32 s23, 0x20000
    s_mov_b32 s24, s12
    s_mov_b32 s25, s13
    s_mov_b32 s26, {64*2}
    s_mov_b32 s27, 0x20000
    s_add_u32 s28, s8, {WF}
    s_addc_u32 s29, s9, 0
    s_mov_b32 s30, {WFSZ}
    s_mov_b32 s31, 0x20000
    s_mov_b32 s32, {f32bits(-LOG2E)}
    v_lshlrev_b32 v5, 1, v2
    v_lshl_add_u32 v6, v3, 10, v5
    v_lshl_add_u32 v7, v3, 9, v5
    v_lshlrev_b32 v8, 3, v3
    ''')
    frags=[]
    for blk in range(2): frags.append((F_W3+blk,'e',129,blk,'std',True))
    for s in range(4):
        for blk in range(2): frags.append((F_H1+2*s+blk,'h',16*s,blk,'std',False))
    for blk in range(2):
        for sp in range(2):
            for b2 in range(2): frags.append((F_H2+(blk*2+sp)*2+b2,'h',64+32*blk+16*sp,b2,'perm',False))
    assert len(frags)==NF
    for wv in range(8):
        a(f's_cmp_eq_u32 s3, {wv}')
        a(f's_cbranch_scc1 L1_w{wv}')
    a('s_endpgm')
    for wv in range(8):
        a.label(f'L1_w{wv}')
        mine=[f for i,f in enumerate(frags) if i%8==wv]
        for q,(F,srcn,row0,blk,kind,scaled) in enumerate(mine):
            r=16+8*q
            srd={'e':'s[16:19]','h':'s[20:23]','x':'s[24:27]'}[srcn]
            if kind=='wx':
                a(f'v_add_u32 v10, {row0*2}, v8')
                for t in range(8):
                    T=(t&3)+8*(t>>2)
                    a(f'buffer_load_ushort v{r+t}, v10, {srd}, 0 offen offset:{T*2}')
            else:
                vb = 6 if kind=='std' else 7
                a(f'v_add_u32 v10, {row0*128+blk*64}, v{vb}')
                for t in range(8):
                    T= t if kind=='std' else (t&3)+8*(t>>2)
                    a(f'buffer_load_ushort v{r+t}, v10, {srd}, 0 offen offset:{T*128}')
        if wv==0:
            a(f'''
            v_lshlrev_b32 v11, 1, v1
            v_add_u32 v11, {128*128}, v11
            buffer_load_ushort v12, v11, s[16:19], 0 offen
            ''')
        if wv==1:
            a(f'''
            v_and_b32 v11, 3, v1
            v_bfe_u32 v12, v1, 2, 2
            v_lshl_add_u32 v11, v12, 3, v11
            v_bfe_u32 v12, v1, 4, 1
            v_lshl_add_u32 v11, v12, 5, v11
            v_lshl_add_u32 v11, v3, 2, v11
            v_lshlrev_b32 v11, 1, v11
            buffer_load_ushort v12, v11, s[24:27], 0 offen
            ''')
        a('s_waitcnt vmcnt(0)')
        for q,(F,srcn,row0,blk,kind,scaled) in enumerate(mine):
            r=16+8*q
            if scaled:
                for t in range(8):
                    a(f'v_lshlrev_b32 v{r+t}, 16, v{r+t}')
                for t in range(8):
                    a(f'v_mul_f32 v{r+t}, s32, v{r+t}')
                for t in range(4):
                    a(f'v_cvt_pk_bf16_f32 v{64+t}, v{r+2*t}, v{r+2*t+1}')
            else:
                for t in range(4):
                    a(f'v_lshl_or_b32 v{64+t}, v{r+2*t+1}, 16, v{r+2*t}')
            a(f'v_add_u32 v10, {F*1024}, v4')
            a(f'buffer_store_dwordx4 v[64:67], v10, s[28:31], 0 offen{SC1W}')
            a('s_nop 1')
        if wv==0:
            a(f'''
            v_lshlrev_b32 v12, 16, v12
            v_mul_f32 v12, s32, v12
            v_cvt_pk_bf16_f32 v13, v12, v12
            v_and_b32 v14, 0xffff0000, v13
            v_sub_f32 v12, v12, v14
            v_cvt_pk_bf16_f32 v12, v12, v12
            v_and_b32 v12, 0xffff0000, v12
            v_and_b32 v13, 0xffff, v13
            v_or_b32 v13, v13, v12
            v_and_b32 v11, 31, v1
            v_lshlrev_b32 v11, 3, v11
            v_lshl_add_u32 v11, v3, 2, v11
            v_add_u32 v11, {WDO}, v11
            buffer_store_dword v13, v11, s[28:31], 0 offen
            ''')
        if wv==1:
            a(f'''
            v_lshlrev_b32 v12, 16, v12
            v_lshlrev_b32 v11, 2, v1
            v_add_u32 v11, {WXO}, v11
            buffer_store_dword v12, v11, s[28:31], 0 offen
            ''')
        if DEBUG_TM:
            a('s_waitcnt vmcnt(0)\nv_mov_b32 v70, 0')
            stamp(a,5,70,36)
            stamp_store(a,70,36,8,9,0,3,69)
        a('s_endpgm')
    a.label('L1_tables')
    if DEBUG_TM: a('v_mov_b32 v15, 0')
    stamp(a,0,15,36)
    a(f"""
    s_load_dwordx2 s[10:11], s[0:1], 0
    s_load_dwordx2 s[12:13], s[0:1], 40
    s_sub_u32 s14, s2, {0 if TFIRST else NCH+1}
    s_lshl_b32 s14, s14, 7
    s_lshr_b32 s33, s3, 1
    s_lshl_b32 s33, s33, 5
    s_and_b32 s15, s3, 1
    v_and_b32 v2, 31, v1
    v_lshrrev_b32 v3, 5, v1
    v_lshrrev_b32 v8, 3, v1
    v_and_b32 v9, 7, v1
    v_lshrrev_b32 v10, 4, v1
    s_waitcnt lgkmcnt(0)
    s_mov_b32 s16, s10
    s_or_b32 s17, s11, 0x800000
    s_mov_b32 s18, {N}
    s_mov_b32 s19, 0x20000
    s_mov_b32 s20, s12
    s_mov_b32 s21, s13
    s_mov_b32 s22, {128*128}
    s_mov_b32 s23, 0x20000
    s_mul_i32 s34, s15, {TB-TA}
    s_add_u32 s34, s34, {TA}
    s_add_u32 s24, s8, s34
    s_addc_u32 s25, s9, 0
    s_or_b32 s25, s25, 0x800000
    s_mov_b32 s26, {N}
    s_mov_b32 s27, 0x20000
    """)
    for r in range(2):
        a(f"""
        s_lshl_b32 s34, s3, 1
        s_add_u32 s34, s34, {r}
        s_lshl_b32 s35, s34, 3
        s_add_u32 s35, s35, s14
        v_add_u32 v4, s35, v8
        v_add_u32 v5, {4*r}, v10
        v_xor_b32 v5, v5, v9
        v_lshlrev_b32 v5, 4, v5
        s_lshl_b32 s34, s34, 10
        s_add_u32 m0, s34, 16384
        s_nop 0
        buffer_load_dwordx4 v[4:5], s[16:19], 0 idxen offen lds
        """)
    a(f"""
    v_lshlrev_b32 v6, 4, v1
    s_lshl_b32 s34, s3, 10
    v_add_u32 v6, s34, v6
    s_mov_b32 m0, s34
    v_add_u32 v7, 8192, v6
    buffer_load_dwordx4 v6, s[20:23], 0 offen lds
    s_add_u32 m0, s34, 8192
    s_nop 0
    buffer_load_dwordx4 v7, s[20:23], 0 offen lds
    v_and_b32 v8, 15, v1
    v_lshrrev_b32 v9, 2, v8
    v_lshl_add_u32 v9, v3, 3, v9
    v_lshlrev_b32 v9, 7, v9
    v_bfe_u32 v10, v1, 4, 1
    v_lshl_add_u32 v9, v10, 5, v9
    v_and_b32 v10, 3, v1
    v_lshl_add_u32 v9, v10, 3, v9
    s_lshl_b32 s34, s15, 13
    v_add_u32 v9, s34, v9
    v_add_u32 v10, s33, v2
    v_lshlrev_b32 v10, 7, v10
    v_add_u32 v10, 16384, v10
    v_bfe_u32 v11, v2, 1, 3
    s_mov_b32 s35, {f32bits(-LOG2E)}
    s_waitcnt vmcnt(0)
    """)
    stamp(a,1,15,36)
    a('s_barrier')
    for s_ in range(4):
        a(f"""
        v_add_u32 v12, {2*s_}, v3
        v_xor_b32 v12, v12, v11
        v_lshl_add_u32 v12, v12, 4, v10
        ds_read_b128 v[{16+4*s_}:{19+4*s_}], v12
        """)
    for s_ in range(4):
        for blk in range(2):
            r=32+4*(2*s_+blk)
            a(f'ds_read_b64_tr_b16 v[{r}:{r+1}], v9 offset:{2048*s_+64*blk}')
            a(f'ds_read_b64_tr_b16 v[{r+2}:{r+3}], v9 offset:{2048*s_+64*blk+512}')
        if s_==1: a('s_waitcnt lgkmcnt(0)')
    a('s_waitcnt lgkmcnt(0)')
    a('s_barrier')
    stamp(a,2,15,36)
    for blk in range(2):
        D=f'v[{64+16*blk}:{79+16*blk}]'
        for s_ in range(4):
            C = D if s_>0 else '0'
            r=32+4*(2*s_+blk)
            a(f'v_mfma_f32_32x32x16_bf16 {D}, v[{r}:{r+3}], v[{16+4*s_}:{19+4*s_}], {C}')
    a(f"""
    s_lshl_b32 s34, s3, 12
    v_lshlrev_b32 v4, 7, v2
    v_add_u32 v4, s34, v4
    v_and_b32 v5, 7, v2
    v_lshlrev_b32 v5, 4, v5
    """)
    for blk in range(2):
        for i in range(16):
            a(f'v_mul_f32 v{64+16*blk+i}, s35, v{64+16*blk+i}')
    a("""
    s_cmp_eq_u32 s15, 0
    s_cbranch_scc1 L1_tabA
    v_lshl_add_u32 v4, v3, 3, v4
    """)
    for blk in range(2):
        for q in range(8):
            a(f'v_cvt_pk_bf16_f32 v{32+8*blk+q}, v{64+16*blk+2*q}, v{64+16*blk+2*q+1}')
        for m in range(4):
            a(f'v_xor_b32 v6, {16*(4*blk+m)}, v5')
            a(f'v_add_u32 v6, v6, v4')
            a(f'ds_write_b64 v6, v[{32+8*blk+2*m}:{33+8*blk+2*m}]')
    a('s_branch L1_tabS')
    a.label('L1_tabA')
    for r in range(16):
        a(f'v_cvt_pk_bf16_f32 v{32+r}, v{64+r}, v{80+r}')
    a('v_lshlrev_b32 v7, 4, v3')
    for m in range(4):
        a(f'v_add_u32 v6, {32*m}, v7')
        a(f'v_xor_b32 v6, v6, v5')
        a(f'v_add_u32 v6, v6, v4')
        a(f'ds_write_b128 v6, v[{32+4*m}:{35+4*m}]')
    a.label('L1_tabS')
    stamp(a,3,15,36)
    a(f"""
    v_lshlrev_b32 v6, 4, v1
    v_add_u32 v6, s34, v6
    v_lshrrev_b32 v8, 3, v1
    v_and_b32 v9, 7, v1
    v_xor_b32 v9, v9, v8
    v_lshlrev_b32 v13, 4, v9
    s_add_u32 s14, s14, s33
    v_add_u32 v8, s14, v8
    s_waitcnt lgkmcnt(0)
    """)
    for i in range(4):
        a(f'ds_read_b128 v[{48+4*i}:{51+4*i}], v6 offset:{1024*i}')
    for i in range(4):
        a(f'v_add_u32 v12, {8*i}, v8')
        a(f's_waitcnt lgkmcnt({3-i})')
        a(f'buffer_store_dwordx4 v[{48+4*i}:{51+4*i}], v[12:13], s[24:27], 0 idxen offen{SC1T}')
    stamp(a,4,15,36)
    if DEBUG_TM: a('s_waitcnt vmcnt(0)')
    stamp(a,5,15,36)
    stamp_store(a,15,36,8,9,0,3,14)
    a('s_endpgm')
    a.label('L1_end')
    a('s_endpgm')
    return a.finalize(), 96, 40, 32768+64

L_G=0; L_R0=28672; L_RS=43264; L_S=50432; L_RING=66816; L_GTAB=148736; L_WTOT=156928; L_PD=157184; L_WST=158208; L_AST=L_WST+2560; L_HX=L_AST+2048; L_END=L_HX+1024
NHS=9
def hstage_addr(f): return L_GTAB+1024*f if f<8 else L_HX
SLOT=5120
vI=16; vW3=24; vW6=32; vS1=40; vS2=41; vD2=64; vD1=(96,128); vE=160; vX=192; vXE=208; vX6=212; vSF=216; vONE=224
vHA=228; vEAr=232; vX6r=233; vC1=234; vSTa=235; vC2=236; vMK2=237; vEAc=238; vOne=239; vHP=240
vSTb=15; vCD=14
vRSa=248; vR0a=249; vR0e=250; vGe=251; vR0=252; vG=253; vA1=254; vA2=255; vEAi=10; vEAo=11
vZero=vONE+1
vTM=12
sH=4; sEA=8; sOF=12; sEN=16; sPOS=20; sWF=24; sO0=28; sO1=32; sHD=36; sSEL=100; sTA=40
sWS=44
sW0=46; sW1=47; sV=3; sG=101; sCNT=48; sBASE=49; sNT=50; sT=51; sRB=52; sNODE0=53; sMK=89

ABL=set(x[6:] for x in sys.argv if x.startswith('--abl=') ) | ({'fprio','trim','pk','xmap','off2','nozf'} - set(x[5:] for x in sys.argv if x.startswith('--no=')))
OPT=dict(x[6:].split(':') for x in sys.argv if x.startswith('--opt='))
def optl(k,d): return [int(v.replace('n','-')) for v in OPT[k].split(',')] if k in OPT else d
TRIMK='trim'; PF2K='pf2'; TBK='tbpf'; XMK='xmap'; OFF2='off2'; VMS='vmstat'
EAF=''.join(' '+x for x in OPT.get('eaf','').split('+') if x); HF=''.join(' '+x for x in OPT.get('hf','').split('+') if x)
NH_ = 0 if 'noh' in ABL else N
NE_ = 0 if 'noea' in ABL else E*32
def gen_k2():
    a=Asm()
    def st(i): stamp(a,i,vTM,98)
    a.label('egnn_main_kernel')
    a(f'''
    s_cmp_ge_u32 s2, {NBK}
    s_cbranch_scc1 L2_end
    ''')
    if 'xmap' in ABL:
        a('s_and_b32 s4, s2, 7\ns_lshl_b32 s4, s4, 5\ns_lshr_b32 s2, s2, 3\ns_or_b32 s2, s2, s4')
    if DEBUG_TM: a(f'v_mov_b32 v{vTM}, 0')
    st(0)
    a(f'''
    s_load_dwordx2 s[44:45], s[0:1], 80
    s_load_dwordx4 s[36:39], s[0:1], 0
    s_load_dwordx2 s[40:41], s[0:1], 16
    s_load_dwordx2 s[42:43], s[0:1], 64
    v_and_b32 v1, 63, v0
    v_lshrrev_b32 v2, 6, v0
    v_lshrrev_b32 v3, 1, v0
    v_readfirstlane_b32 s{sV}, v2
    ''')
    if 'rot' in OPT:
        a(f'''
        s_lshr_b32 s54, s2, 5
        s_mul_i32 s54, s54, {int(OPT['rot'])}
        v_cmp_gt_u32 vcc, {NCH}, v3
        v_add_u32 v9, s54, v3
        v_subrev_u32 v10, {NCH}, v9
        s_movk_i32 s55, {NCH}
        v_cmp_gt_u32 s[56:57], s55, v9
        s_nop 1
        v_cndmask_b32 v9, v10, v9, s[56:57]
        v_cndmask_b32 v3, v3, v9, vcc
        ''')
    a(f'''
    v_and_b32 v9, 1, v0
    s_lshl_b32 s54, s2, 4
    s_mov_b32 s55, {ROW}
    {'v_mov_b32 v96, s54' if OFF2 in ABL else 'v_lshl_add_u32 v96, v9, 4, s54'}
    v_mad_u32_u24 v96, v3, s55, v96
    s_mov_b32 s{sOF+2}, {NCH*ROW}
    s_mov_b32 s{sOF+3}, 0x20000
    s_waitcnt lgkmcnt(0)
    s_add_u32 s{sOF}, s44, {OFFS}
    s_addc_u32 s{sOF+1}, s45, 0
    buffer_load_dwordx4 {'v[4:7]' if OFF2 in ABL else 'v[104:107]'}, v96, s[{sOF}:{sOF+3}], 0 offen
    {f'buffer_load_ushort v8, v96, s[{sOF}:{sOF+3}], 0 offen offset:16' if OFF2 in ABL else ''}
    ''')
    st(16)
    a(f"""
    s_mov_b32 s{sPOS}, s38
    s_mov_b32 s{sPOS+1}, s39
    s_mov_b32 s{sPOS+2}, {N*6}
    s_mov_b32 s{sPOS+3}, 0x20000
    s_add_u32 s{sWF}, s44, {WF}
    s_addc_u32 s{sWF+1}, s45, 0
    s_mov_b32 s{sWF+2}, {WFSZ}
    s_mov_b32 s{sWF+3}, 0x20000
    s_mov_b32 s{sW0}, 0
    s_mov_b32 s{sW1}, {NCH}
    s_mov_b32 s63, 2
    v_lshlrev_b32 v96, 4, v1
    s_lshl_b32 s58, s{sV}, 10
    v_add_u32 v96, s58, v96
    """)
    PE=optl('pe',[5])[0]
    assert PE<=9
    def posdma(r):
        a(f"""
        s_add_u32 m0, s58, {L_RING+8192*r}
        v_add_u32 v97, {8192*r}, v96
        buffer_load_dwordx4 v97, s[{sPOS}:{sPOS+3}], 0 offen lds
        """)
    chunks=[f"""
    s_mov_b32 s{sH}, s36
    s_or_b32 s{sH+1}, s37, 0x800000
    s_mov_b32 s{sH+2}, {N}
    s_mov_b32 s{sH+3}, 0x20000
    s_mov_b32 s{sEA}, s40
    s_mov_b32 s{sEA+1}, s41
    s_mov_b32 s{sEA+2}, {E*32}
    s_mov_b32 s{sEA+3}, 0x20000
    s_add_u32 s{sEN}, s44, {ENT}
    s_addc_u32 s{sEN+1}, s45, 0
    s_mov_b32 s{sEN+2}, {NCH*CH*4}
    s_mov_b32 s{sEN+3}, 0x20000
    """, f"""
    s_mov_b32 s{sO0}, s42
    s_or_b32 s{sO0+1}, s43, 0x800000
    s_mov_b32 s{sO0+2}, {N}
    s_mov_b32 s{sO0+3}, 0x20000
    s_add_u32 s{sO1}, s42, {N*128}
    s_addc_u32 s{sO1+1}, s43, 0
    s_mov_b32 s{sO1+2}, {N*6}
    s_mov_b32 s{sO1+3}, 0x20000
    s_add_u32 s{sHD}, s44, {TB}
    s_addc_u32 s{sHD+1}, s45, 0
    s_or_b32 s{sHD+1}, s{sHD+1}, 0x800000
    s_mov_b32 s{sHD+2}, {N}
    s_mov_b32 s{sHD+3}, 0x20000
    """, f"""
    s_add_u32 s{sTA}, s44, {TA}
    s_addc_u32 s{sTA+1}, s45, 0
    s_or_b32 s{sTA+1}, s{sTA+1}, 0x800000
    s_mov_b32 s{sTA+2}, {N}
    s_mov_b32 s{sTA+3}, 0x20000
    s_mul_i32 s{sRB}, s{sV}, {2*SLOT}
    s_add_u32 s{sRB}, s{sRB}, {L_RING}
    s_mov_b32 s{sMK}, 0xffffffe0
    s_mov_b32 s{sSEL}, 0x01000100
    v_lshrrev_b32 v98, 5, v1
    v_and_b32 v101, 1, v1
    v_xor_b32 v101, v101, v98
    v_lshlrev_b32 v{vEAc}, 4, v101
    """, f"""
    v_and_b32 v101, 7, v1
    v_lshrrev_b32 v102, 4, v1
    v_xor_b32 v103, v101, v102
    v_lshlrev_b32 v{vHP+1}, 4, v103
    v_lshlrev_b32 v{vHP+5}, 4, v103
    v_add_u32 v102, 4, v102
    v_xor_b32 v103, v101, v102
    v_lshlrev_b32 v{vHP+3}, 4, v103
    v_lshlrev_b32 v{vHP+7}, 4, v103
    """, f"""
    v_mov_b32 v{vX6}, 0
    v_mov_b32 v{vX6+1}, 0
    v_mov_b32 v{vX6+2}, 0
    v_mov_b32 v{vX6+3}, 0
    v_mfma_f32_32x32x16_bf16 v[{vD2}:{vD2+15}], v[{vX6}:{vX6+3}], v[{vX6}:{vX6+3}], 0
    v_mfma_f32_32x32x16_bf16 v[{vD2+16}:{vD2+31}], v[{vX6}:{vX6+3}], v[{vX6}:{vX6+3}], 0
    """]
    for k in range(max(PE,len(chunks))):
        if k<PE: posdma(k)
        if k<len(chunks): a(chunks[k])
    a(f"""
    s_cmp_eq_u32 s{sV}, 2
    s_cselect_b32 s54, {WDO}, s58
    s_cselect_b32 s55, 2048, s58
    v_lshlrev_b32 v97, 4, v1
    v_add_u32 v97, s54, v97
    s_add_u32 m0, s55, {L_WST}
    s_cmp_gt_u32 s{sV}, 2
    s_cbranch_scc1 L2_nowst
    v_cmp_gt_u32 vcc, 32, v1
    s_cmp_eq_u32 s{sV}, 2
    s_cselect_b64 exec, vcc, -1
    buffer_load_dwordx4 v97, s[{sWF}:{sWF+3}], 0 offen lds
    s_mov_b64 exec, -1
    """)
    a.label('L2_nowst')
    st(17)
    if TBK in ABL:
        a(f'''
        {'s_and_b32 s54, s2, 31' if XMK in ABL else 's_lshr_b32 s54, s2, 3'}
        s_mul_i32 s54, s54, 391
        s_lshl_b32 s55, s{sV}, 6
        v_add_u32 v100, s55, v1
        v_cmp_gt_u32 vcc, 391, v100
        v_add_u32 v100, s54, v100
        v_mov_b32 v101, 0
        v_mov_b32 v102, -1
        v_cndmask_b32 v100, v102, v100, vcc
        buffer_load_dword v52, v[100:101], s[{sHD}:{sHD+3}], 0 idxen offen
        ''')
    st(18)
    st(1)
    a(f's_waitcnt vmcnt({min(PE,9)+(1 if TBK in ABL else 0)})')
    if OFF2 not in ABL:
        for q in range(4):
            a(f'v_mov_b32_dpp v{4+q}, v{104+q} quad_perm:[0,0,2,2] row_mask:0xf bank_mask:0xf')
        a('v_mov_b32_dpp v8, v104 quad_perm:[1,1,3,3] row_mask:0xf bank_mask:0xf')
        a('v_and_b32 v8, 0xffff, v8')
    st(19)
    a('s_branch L2_counts')
    a.label('L2_batch')
    a(f"""
    s_barrier
    v_lshlrev_b32 v96, 4, v1
    s_lshl_b32 s58, s{sV}, 10
    v_add_u32 v96, s58, v96
    """)
    for r in range(PE): posdma(r)
    a.label('L2_counts')
    a(f"""
    v_alignbit_b32 v100, v5, v4, 16
    v_alignbit_b32 v101, v6, v5, 16
    v_alignbit_b32 v102, v7, v6, 16
    v_alignbit_b32 v103, v8, v7, 16
    v_and_b32 v105, 0xffff, v4
    v_sub_u32 v104, v8, v105
    s_sub_u32 s54, s{sW1}, s{sW0}
    v_subrev_u32 v106, s{sW0}, v3
    v_cmp_gt_u32 vcc, s54, v106
    s_mov_b32 s55, {CH*4}
    v_lshlrev_b32 v107, 2, v105
    v_lshl_add_u32 v107, v9, 4, v107
    v_cndmask_b32 v104, 0, v104, vcc
    v_lshlrev_b32 v109, 2, v9
    v_sub_u32 v109, v104, v109
    v_max_i32 v109, 0, v109
    v_mad_u32_u24 v107, v3, s55, v107
    """)
    for i in range(4):
        a(f'v_cmp_lt_u32 s[{90+2*i}:{91+2*i}], {8*i}, v109')
    for i in range(4):
        a(f's_mov_b64 exec, s[{90+2*i}:{91+2*i}]')
        a(f's_cbranch_execz L2_e{i}')
        a(f'buffer_load_dwordx4 v[{192+4*i}:{195+4*i}], v107, s[{sEN}:{sEN+3}], 0 offen offset:{32*i}')
        a.label(f'L2_e{i}')
    a('s_mov_b64 exec, -1')
    st(2)
    a(f"""
    v_pk_sub_u16 v100, v100, v4
    v_pk_sub_u16 v101, v101, v5
    v_pk_sub_u16 v102, v102, v6
    v_pk_sub_u16 v103, v103, v7
    v_cmp_eq_u32 s[56:57], 0, v9
    """)
    for q in range(4):
        a(f'v_cndmask_b32 v{100+q}, 0, v{100+q}, vcc')
    for q in range(5):
        a(f'v_cndmask_b32 v{112+q}, 0, v{100+q}, s[56:57]')
    for sh in (1,2,4,8):
        for q in range(5):
            a(f'v_add_u32_dpp v{112+q}, v{112+q}, v{112+q} row_shr:{sh} row_mask:0xf bank_mask:0xf')
    for q in range(5):
        a(f'v_add_u32_dpp v{112+q}, v{112+q}, v{112+q} row_bcast:15 row_mask:0xa bank_mask:0xf')
    for q in range(5):
        a(f'v_add_u32_dpp v{112+q}, v{112+q}, v{112+q} row_bcast:31 row_mask:0xc bank_mask:0xf')
    st(21)
    a(f"""
    s_lshl_b32 s54, s{sV}, 5
    s_add_u32 s54, s54, {L_WTOT}
    v_mov_b32 v117, s54
    s_mov_b32 s56, 0
    s_brev_b32 s57, 1
    s_mov_b64 exec, s[56:57]
    ds_write_b128 v117, v[112:115]
    ds_write_b32 v117, v116 offset:16
    s_mov_b64 exec, -1
    v_and_b32 v118, 7, v1
    v_lshlrev_b32 v118, 5, v118
    v_add_u32 v118, {L_WTOT}, v118
    s_waitcnt lgkmcnt(0)
    s_barrier
    ds_read_b128 v[120:123], v118
    ds_read_b32 v124, v118 offset:16
    """)
    st(3)
    a('s_waitcnt lgkmcnt(0)')
    for sh in (1,2,4):
        for q in range(5):
            a(f'v_add_u32_dpp v{120+q}, v{120+q}, v{120+q} row_shr:{sh} row_mask:0xf bank_mask:0xf')
    for q in range(5):
        a(f'v_readlane_b32 s{58+q}, v{120+q}, 7')
    a(f's_sub_u32 s54, s{sV}, 1')
    a(f's_max_i32 s54, s54, 0')
    for q in range(4):
        a(f'v_readlane_b32 s{64+q}, v{120+q}, s54')
    a(f's_cmp_eq_u32 s{sV}, 0')
    for q in range(4):
        a(f's_cselect_b32 s{64+q}, 0, s{64+q}')
    for q in range(4):
        a(f's_and_b32 s{68+2*q}, s{58+q}, 0xffff')
        a(f's_lshr_b32 s{69+2*q}, s{58+q}, 16')
    a('s_mov_b32 s84, 0')
    for g in range(8):
        a(f"""
        s_mov_b32 s{76+g}, s84
        s_add_u32 s54, s{68+g}, 31
        s_andn2_b32 s54, s54, 31
        s_add_u32 s84, s84, s54
        """)
    a(f"""
    s_max_u32 s54, s84, s62
    s_cmp_le_u32 s54, {CAP}
    s_cbranch_scc1 L2_fits
    s_add_u32 s{sW1}, s{sW0}, 1
    s_waitcnt vmcnt(0) lgkmcnt(0)
    s_branch L2_batch
    """)
    a.label('L2_fits')
    a(f"""
    s_cmp_eq_u32 s63, 1
    s_cbranch_scc1 L2_pidone
    """)
    if 'nopi' in ABL:
        a(f's_mov_b32 s{sG}, s{sV}')
    else:
        for g in range(8):
            a(f's_lshl_b32 s54, s{68+g}, 3')
            a(f's_add_u32 s{90+g}, s54, {7-g}')
            a(f'v_writelane_b32 v126, s{90+g}, {g}')
        a('v_mov_b32 v127, 0')
        for h in range(2):
            for k in range(4):
                pr=(56,58,54,64)[k] if False else None
            for k in range(4):
                a(f'v_cmp_gt_u32 s[{(54,56,58,60)[k]}:{(54,56,58,60)[k]+1}], s{90+4*h+k}, v126')
            for k in range(4):
                a(f'v_addc_co_u32 v127, vcc, 0, v127, s[{(54,56,58,60)[k]}:{(54,56,58,60)[k]+1}]')
        a(f"""
        s_sub_u32 s54, 11, s{sV}
        s_cmp_lt_u32 s{sV}, 4
        s_cselect_b32 s54, s{sV}, s54
        v_cmp_eq_u32 vcc, s54, v127
        s_nop 3
        s_and_b32 s54, vcc_lo, 0xff
        s_ff1_i32_b32 s{sG}, s54
        """)
    a(f"""
    s_mul_i32 s{sNODE0}, s2, {BN}
    s_add_u32 s{sNODE0}, s{sNODE0}, s{sG}
    """)
    a.label('L2_pidone')
    a(f's_mov_b32 s{sCNT}, s68')
    a(f's_mov_b32 s{sBASE}, s76')
    for g in range(1,8):
        a(f"""
        s_cmp_eq_u32 s{sG}, {g}
        s_cselect_b32 s{sCNT}, s{68+g}, s{sCNT}
        s_cselect_b32 s{sBASE}, s{76+g}, s{sBASE}
        """)
    a(f"""
    s_add_u32 s{sNT}, s{sCNT}, 31
    s_lshr_b32 s{sNT}, s{sNT}, 5
    """)
    for q in range(4):
        a(f's_pack_ll_b32_b16 s{85+q}, s{76+2*q}, s{77+2*q}')
        a(f's_add_u32 s{85+q}, s{85+q}, s{64+q}')
        a(f's_add_u32 s{85+q}, s{85+q}, {CH | (CH<<16)}')
    a(f"""
    v_lshl_or_b32 v105, v105, 16, v105
    v_mul_u32_u24 v106, 0x100010, v9
    """)
    for q in range(4):
        a(f"""
        v_sub_u32 v{112+q}, v{112+q}, v{100+q}
        v_add_u32 v{112+q}, s{85+q}, v{112+q}
        v_sub_u32 v{120+q}, v{4+q}, v105
        v_sub_u32 v{112+q}, v{112+q}, v{120+q}
        v_lshl_add_u32 v{112+q}, v{112+q}, 2, v106
        """)
    a(f"""
    v_lshlrev_b32 v108, 4, v0
    v_add_u32 v108, {L_GTAB}, v108
    ds_write_b128 v108, v[112:115]
    v_mov_b32 v104, v109
    s_mov_b32 s54, {CH*32}
    v_mul_lo_u32 v110, v3, s54
    v_mov_b32 v111, {4*CH+4*CAP}
    v_lshlrev_b32 v96, 4, v1
    s_lshl_b32 s58, s{sV}, 10
    v_add_u32 v96, s58, v96
    s_waitcnt vmcnt(0)
    """)
    st(4)
    if PE<10:
        a(f"""
        v_lshlrev_b32 v96, 4, v1
        s_lshl_b32 s58, s{sV}, 10
        v_add_u32 v96, s58, v96
        """)
        for r in range(PE,10):
            if r==9:
                a(f's_cmp_ge_u32 s{sV}, 2\ns_cbranch_scc1 L2_posdone2')
            a(f"""
            s_add_u32 m0, s58, {L_RING+8192*r}
            v_add_u32 v97, {8192*r}, v96
            buffer_load_dwordx4 v97, s[{sPOS}:{sPOS+3}], 0 offen lds
            """)
        a.label('L2_posdone2')
    a(f"""
    s_cmp_eq_u32 s63, 1
    s_cbranch_scc1 L2_noA
    s_lshl_b32 s54, s{sV}, 10
    s_add_u32 s55, s54, {L_RING+75776}
    s_add_u32 s54, s54, {L_AST-6*1024}
    s_cmp_lt_u32 s{sV}, 6
    s_cselect_b32 s62, s55, s54
    v_lshrrev_b32 v120, 3, v1
    v_lshlrev_b32 v120, 3, v120
    v_add_u32 v121, s{sG}, v120
    v_add_u32 v120, s{sNODE0}, v120
    v_cmp_gt_u32 vcc, {BN}, v121
    v_mov_b32 v122, -1
    v_and_b32 v123, 7, v1
    v_lshlrev_b32 v123, 4, v123
    v_cndmask_b32 v122, v122, v120, vcc
    s_mov_b32 m0, s62
    s_nop 0
    buffer_load_dwordx4 v[122:123], s[{sTA}:{sTA+3}], 0 idxen offen lds
    """)
    a.label('L2_noA')
    st(20)
    def quad(qreg, i, dyn=False):
        for u in range(4):
            a(f'v_lshrrev_b32 v{140+u}, 29, v{qreg+u}')
            a(f'v_lshl_add_u32 v{140+u}, v{140+u}, 1, v108')
            a(f'ds_read_u16 v{144+u}, v{140+u}')
        for u in range(4):
            if dyn: a(f'v_cmp_lt_u32 s[{90+2*u}:{91+2*u}], {u}, v104')
            else:   a(f'v_cmp_lt_u32 s[{90+2*u}:{91+2*u}], {8*i+u}, v104')
        a('s_waitcnt lgkmcnt(0)')
        for u in range(4):
            if dyn: a(f'v_add_u32 v{144+u}, v{144+u}, v149')
            a(f'v_cndmask_b32 v{144+u}, v111, v{144+u}, s[{90+2*u}:{91+2*u}]')
        ko = 0 if dyn else 8*i
        for u in range(4):
            a(f'ds_write_b32 v{144+u}, v{qreg+u} offset:{L_R0-4*CH+4*(ko+u)}')
            a(f'ds_write_b32 v{144+u}, v110 offset:{L_S-4*CH+4*(ko+u)}')
    for i in range(4):
        quad(192+4*i, i)
        a(f'v_cmp_lt_u32 vcc, {8*(i+1)}, v104')
        a('s_cbranch_vccz L2_scat_done')
    a(f'''
    v_subrev_u32 v104, 32, v104
    v_cmp_gt_i32 vcc, 0, v104
    v_mov_b32 v149, 128
    v_add_u32 v107, 128, v107
    v_cndmask_b32 v104, v104, 0, vcc
    ''')
    a.label('L2_scat_loop')
    a(f'buffer_load_dwordx4 v[192:195], v107, s[{sEN}:{sEN+3}], 0 offen')
    a('s_waitcnt vmcnt(0)')
    quad(192, 0, dyn=True)
    a(f'''
    v_subrev_u32 v104, 8, v104
    v_add_u32 v149, 32, v149
    v_add_u32 v107, 32, v107
    v_cmp_gt_i32 vcc, 0, v104
    s_nop 1
    v_cndmask_b32 v104, v104, 0, vcc
    v_cmp_lt_u32 vcc, 0, v104
    s_cbranch_vccnz L2_scat_loop
    ''')
    a.label('L2_scat_done')
    st(5)
    a('''
    s_waitcnt vmcnt(0) lgkmcnt(0)
    s_barrier
    ''')
    st(6)
    if 'hst' in ABL:
        a(f"""
        s_lshl_b32 s54, s{sV}, 10
        v_lshlrev_b32 v97, 4, v1
        s_add_u32 s55, s54, {F_H1*1024}
        v_add_u32 v98, s55, v97
        s_add_u32 m0, s54, {L_GTAB}
        s_cmp_lg_u32 s{sV}, 0
        buffer_load_dwordx4 v98, s[{sWF}:{sWF+3}], 0 offen lds
        s_cbranch_scc1 L2_hst1
        v_add_u32 v98, {(F_H1+8)*1024}, v97
        s_mov_b32 m0, {L_HX}
        s_nop 0
        buffer_load_dwordx4 v98, s[{sWF}:{sWF+3}], 0 offen lds
        """)
        a.label('L2_hst1')
    a(f"""
    v_lshrrev_b32 v100, 2, v1
    v_lshlrev_b32 v100, 3, v100
    v_add_u32 v100, s{sNODE0}, v100
    v_mul_u32_u24 v100, 6, v100
    v_and_b32 v102, 3, v1
    v_lshl_add_u32 v100, v102, 1, v100
    v_add_u32 v100, {L_RING}, v100
    ds_read_u16 v101, v100
    s_cmp_eq_u32 s63, 1
    s_cbranch_scc1 L2_noC
    s_mov_b32 s63, 1
    v_lshlrev_b32 v96, 4, v1
    v_add_u32 v96, {L_WST}, v96
    ds_read_b128 v[{vW3}:{vW3+3}], v96
    ds_read_b128 v[{vW3+4}:{vW3+7}], v96 offset:1024
    v_and_b32 v120, 31, v1
    v_lshrrev_b32 v121, 5, v1
    v_lshlrev_b32 v122, 2, v120
    v_lshl_add_u32 v122, v121, 9, v122
    v_add_u32 v122, s62, v122
    """)
    for q in range(4):
        a(f'ds_read_b32 v{40+q}, v122 offset:{128*q}')
    a(f"""
    v_lshlrev_b32 v120, 3, v120
    v_add_u32 v120, {L_WST+2048}, v120
    ds_read_b64 v[44:45], v120
    v_cmp_gt_u32 vcc, 32, v1
    s_waitcnt lgkmcnt(0)
    v_cndmask_b32 v44, v44, 0, vcc
    v_cndmask_b32 v45, v45, 0, vcc
    """)
    for q in range(4):
        a(f'v_and_b32 v{vW6+q}, 0xffff, v{40+q}')
        a(f'v_lshrrev_b32 v{vW6+4+q}, 16, v{40+q}')
    a(f"""
    v_or_b32 v{vW6+3}, v{vW6+3}, v44
    v_or_b32 v{vW6+7}, v{vW6+7}, v45
    """)
    a.label('L2_noC')
    a(f"""
    s_lshl_b32 s54, s{sV}, 7
    s_add_u32 s54, s54, {L_PD}
    v_lshlrev_b32 v97, 2, v1
    v_add_u32 v97, s54, v97
    s_waitcnt lgkmcnt(0)
    v_lshlrev_b32 v101, 16, v101
    s_mov_b32 exec_hi, 0
    ds_write_b32 v97, v101
    s_mov_b64 exec, -1
    """)
    a(f'''
    s_lshl_b32 s54, s{sV}, 7
    s_add_u32 s54, s54, {L_PD}
    v_mov_b32 v98, s54
    v_mov_b32 v99, {L_RING}
    v_add_u32 v96, s{sBASE}, v1
    v_mov_b32 v97, v1
    s_mov_b32 s{sT}, 0
    s_mov_b32 s55, 0xffff0000
    s_movk_i32 s56, 0x7fff
    s_mov_b32 s{sHD+2}, {N}
    s_mov_b32 s{sEA+2}, {E*32}
    ''')
    a(f'''
    s_lshl_b32 s54, s{sNT}, 5
    s_sub_u32 s54, s54, 32
    v_add_u32 v100, s54, v1
    v_cmp_le_u32 s[58:59], s{sCNT}, v100
    v_cmp_gt_u32 vcc, 32, v1
    s_and_b64 vcc, vcc, s[58:59]
    s_cmp_eq_u32 s{sNT}, 0
    s_cbranch_scc1 L2_nodummy
    s_and_saveexec_b64 s[58:59], vcc
    s_cbranch_execz L2_dummy_restore
    v_add_u32 v100, s{sBASE}, v100
    v_lshlrev_b32 v101, 2, v100
    v_mov_b32 v102, 28
    ds_write_b32 v101, v102 offset:{L_R0}
    v_lshlrev_b32 v101, 1, v100
    v_mov_b32 v102, 0
    v_mov_b32 v103, 0
    ds_write_b16 v101, v102 offset:{L_RS}
    v_lshlrev_b32 v101, 3, v100
    ds_write_b64 v101, v[102:103] offset:{L_G}
    ''')
    a.label('L2_dummy_restore')
    a('s_mov_b64 exec, s[58:59]')
    a.label('L2_nodummy')
    def R(it,k): return 112+20*it+k
    def geo_pass(NI, first):
        for it in range(NI):
            a(f'ds_read_b32 v{R(it,1)}, v96 offset:{L_R0+256*it}')
            a(f'ds_read_b32 v{R(it,2)}, v96 offset:{L_S+256*it}')
        a('v_lshrrev_b32 v104, 1, v96')
        a('v_lshlrev_b32 v105, 1, v96')
        for it in range(NI):
            if it==0: a(f'v_cmp_lt_i32 s[90:91], 0, v97')
            elif it==1: a(f'v_cmp_lt_i32 s[92:93], 64, v97')
            else: a(f'v_cmp_lt_i32 s[{90+2*it}:{91+2*it}], s{57 if it==2 else 54}, v97')
        for it in range(NI):
            e=R(it,1); wb=R(it,2)
            a(f's_waitcnt lgkmcnt({2*(NI-1-it)+2*it})')
            a(f"""
            v_bfe_u32 v{R(it,3)}, v{e}, 15, 14
            v_and_b32 v{R(it,4)}, 7, v{e}
            v_mad_u32_u24 v{R(it,5)}, v{R(it,3)}, 6, v99
            v_lshl_add_u32 v{R(it,7)}, v{R(it,4)}, 4, v98
            v_and_b32 v{R(it,5)}, -4, v{R(it,5)}
            ds_read_b96 v[{R(it,8)}:{R(it,10)}], v{R(it,7)}
            ds_read2_b32 v[{R(it,12)}:{R(it,13)}], v{R(it,5)} offset1:1
            v_and_b32 v{R(it,5)}, s56, v{e}
            v_lshl_add_u32 v{wb}, v{R(it,5)}, 2, v{wb}
            v_lshlrev_b32 v{R(it,6)}, 4, v{R(it,3)}
            """)
        if first and 'nopf' not in ABL:
            a(f"""
            v_and_b32 v48, s{sMK}, v{R(0,2)}
            v_mov_b32 v51, 0
            v_mov_b32 v50, v{R(0,3)}
            s_mov_b32 exec_hi, 0
            buffer_load_dword v48, v48, s[{sEA}:{sEA+3}], 0 offen
            buffer_load_dword v49, v[50:51], s[{sHD}:{sHD+3}], 0 idxen offen
            s_mov_b64 exec, -1
            """)
        for it in range(NI):
            pd=R(it,8); ps=R(it,12); sh=R(it,6); t0=R(it,4); t1=R(it,5); t2=R(it,7); o=R(it,14); t3=R(it,17)
            a(f's_waitcnt lgkmcnt({2*(NI-1-it)+3*it})')
            a(f"""
            v_alignbit_b32 v{t0}, v{ps+1}, v{ps}, v{sh}
            v_lshrrev_b32 v{t2}, v{sh}, v{ps+1}
            v_lshlrev_b32 v{t1}, 16, v{t0}
            v_and_b32 v{t0}, s55, v{t0}
            v_lshlrev_b32 v{t2}, 16, v{t2}
            v_sub_f32 v{t1}, v{pd}, v{t1}
            v_sub_f32 v{t0}, v{pd+1}, v{t0}
            v_sub_f32 v{t2}, v{pd+2}, v{t2}
            v_mul_f32 v{t3}, v{t1}, v{t1}
            v_cvt_pk_bf16_f32 v{o+1}, v{t0}, v{t2}
            v_fmac_f32 v{t3}, v{t0}, v{t0}
            v_fmac_f32 v{t3}, v{t2}, v{t2}
            s_mov_b64 exec, s[{90+2*it}:{91+2*it}]
            ds_write_b32 v96, v{R(it,2)} offset:{L_R0+256*it}
            v_cvt_pk_bf16_f32 v{o}, v{t3}, v{t1}
            ds_write_b16 v104, v{R(it,3)} offset:{L_RS+128*it}
            ds_write_b64 v105, v[{o}:{o+1}] offset:{L_G+512*it}
            s_mov_b64 exec, -1
            """)
        a(f"""
        v_add_u32 v96, {256*NI}, v96
        v_subrev_u32 v97, {64*NI}, v97
        s_add_u32 s{sT}, s{sT}, {64*NI}
        """)
    a(f"""
    v_lshlrev_b32 v96, 2, v96
    v_sub_u32 v97, s{sCNT}, v97
    s_movk_i32 s57, 128
    s_movk_i32 s54, 192
    s_cmp_eq_u32 s{sCNT}, 0
    s_cbranch_scc1 L2_geo_done
    """)
    geo_pass(4, True)
    a.label('L2_geo_loop')
    a(f"""
    s_cmp_ge_u32 s{sT}, s{sCNT}
    s_cbranch_scc1 L2_geo_done
    """)
    geo_pass(3, False)
    a('s_branch L2_geo_loop')
    a.label('L2_geo_done')
    a(f"""
    v_lshrrev_b32 v97, 3, v1
    v_add_u32 v97, s{sBASE}, v97
    v_lshlrev_b32 v97, 1, v97
    v_add_u32 v{vRSa}, {L_RS}, v97
    v_lshrrev_b32 v97, 1, v1
    v_add_u32 v97, s{sBASE}, v97
    v_lshlrev_b32 v97, 2, v97
    v_add_u32 v{vR0a}, {L_R0}, v97
    v_and_b32 v97, 31, v1
    v_add_u32 v97, s{sBASE}, v97
    v_lshlrev_b32 v98, 2, v97
    v_add_u32 v{vR0e}, {L_R0}, v98
    v_lshrrev_b32 v98, 5, v1
    v_lshlrev_b32 v98, 2, v98
    v_lshl_add_u32 v98, v97, 3, v98
    v_add_u32 v{vGe}, {L_G}, v98
    s_mov_b32 s{sT}, 0
    s_sub_u32 s86, s{sNT}, 3
    s_sub_u32 s87, s{sNT}, 1
    s_sub_u32 s88, s{sNT}, 2
    """)
    for i in range(4): a(f'ds_read_u16 v{vHP+2*i}, v{vRSa} offset:{16*i}')
    a(f'ds_read_b32 v{vEAi}, v{vR0a}')
    a(f'ds_read_b32 v{vR0}, v{vR0e}')
    a(f'ds_read_b32 v{vG}, v{vGe}')
    if 'fprio' in ABL:
        PER=optl('per',[12])[0]
        a(f"""
        v_cvt_f32_u32 v96, s{sNT}
        v_rcp_f32 v96, v96
        s_nop 0
        v_mul_f32 v96, {f32bits(float(PER*65536*(2 if TRIMK in ABL else 1)))}, v96
        v_cvt_u32_f32 v96, v96
        s_nop 0
        v_readfirstlane_b32 s85, v96
        s_mov_b32 s84, 0
        s_sub_u32 s84, s84, s85
        """)
    a(f"""
    s_lshl_b32 s54, s{sV}, 11
    s_add_u32 s54, s54, {L_S}
    v_lshlrev_b32 v96, 4, v1
    v_add_u32 v96, s54, v96
    v_mov_b32 v100, 0
    v_mov_b32 v101, 0
    v_mov_b32 v102, 0
    v_mov_b32 v103, 0
    v_and_or_b32 v{vEAo}, v{vEAi}, s{sMK}, v{vEAc}
    """)
    if 'hst' in ABL:
        a(f"""
        s_cmp_eq_u32 s{sCNT}, 0
        s_cbranch_scc1 L2_hw0
        s_waitcnt vmcnt({0 if 'nopf' in ABL else 2})
        s_branch L2_hw1
        """)
        a.label('L2_hw0')
        a('s_waitcnt vmcnt(0)')
        a.label('L2_hw1')
    a(f"""
    s_waitcnt lgkmcnt(0)
    s_barrier
    """)
    st(7)
    a(f"""
    ds_write_b128 v96, v[100:103]
    ds_write_b128 v96, v[100:103] offset:1024
    """)
    if 'lone' in ABL:
        a(f's_cmp_ge_u32 s{sV}, 4\ns_cselect_b32 s{sNT}, 0, s{sNT}')
    a(f"""
    s_cmp_eq_u32 s{sNT}, 0
    s_cbranch_scc1 L2_notiles
    """)
    def idx_reads(toff):
        return [f'ds_read_u16 v{vHP+2*i}, v{vRSa} offset:{64*toff+16*i}' for i in range(4)] + \
               [f'ds_read_b32 v{vEAi}, v{vR0a} offset:{128*toff}']
    def rec_reads(toff):
        return [f'ds_read_b32 v{vR0}, v{vR0e} offset:{128*toff}', f'ds_read_b32 v{vG}, v{vGe} offset:{256*toff}']
    def srd_select(delta):
        return [f's_add_u32 s54, s{sT}, {delta}\ns_cmp_lt_u32 s54, s{sNT}\ns_cselect_b32 s{sHD+2}, {NH_}, 0\ns_cselect_b32 s{sEA+2}, {NE_}, 0']
    def dma2(slot):
        r=[(f'v_and_or_b32 v{vEAo}, v{vEAi}, s{sMK}, v{vEAc}\ns_add_u32 m0, s{sRB}, {slot*SLOT+4096}', f'buffer_load_dwordx4 v{vEAo}, s[{sEA}:{sEA+3}], 0 offen{EAF} lds')]
        for i in range(4):
            r.append((f's_add_u32 m0, s{sRB}, {slot*SLOT+1024*i}', f'buffer_load_dwordx4 v[{vHP+2*i}:{vHP+2*i+1}], s[{sHD}:{sHD+3}], 0 idxen offen{HF} lds'))
        return r
    def dma(slot):
        return [x+'\n'+y for x,y in dma2(slot)]
    def x_reads(slot):
        return [f'ds_read_b128 v[{vX+4*s}:{vX+4*s+3}], v{vHA+s} offset:{slot*SLOT}' for s in range(4)] + \
               [f'ds_read_b128 v[{vXE}:{vXE+3}], v{vEAr} offset:{slot*SLOT}']
    def s_addr(): return [f'v_bitop3_b32 v{vA1}, v{vR0}, 28, v{vC1} bitop3:0x6a', f'v_bfi_b32 v{vS1}, v{vMK2}, v{vG}, v{vOne}', f'v_perm_b32 v{vS2}, v{vG}, v{vG}, s{sSEL}']
    def s_writes(): return [f'ds_write_b32 v{vA1}, v{vS1}', f'ds_write_b32 v{vCD}, v{vS2}']
    def x6_read(): return [f'ds_read_b128 v[{vX6}:{vX6+3}], v{vX6r}']
    def sf_reads():
        r=[]
        for s2 in range(2):
            r.append(f'ds_read_b64_tr_b16 v[{vSF+4*s2}:{vSF+4*s2+1}], v{vSTa} offset:{1024*s2}')
            r.append(f'ds_read_b64_tr_b16 v[{vSF+4*s2+2}:{vSF+4*s2+3}], v{vSTb} offset:{1024*s2}')
        return r
    def s_restore(): return [f'ds_write_b32 v{vA1}, v{vZero}']
    def mfma1(dst):
        r=[]
        for blk in range(2):
            D=f'v[{dst+16*blk}:{dst+16*blk+15}]'
            for sp in range(2):
                C = D if sp>0 else '0'
                s_=2*blk+sp
                r.append(f'v_mfma_f32_32x32x16_bf16 {D}, v[{vX+4*s_}:{vX+4*s_+3}], v[{vI+4*sp}:{vI+4*sp+3}], {C}')
            r.append(f'v_mfma_f32_32x32x16_bf16 {D}, v[{vXE}:{vXE+3}], v[{vW3+4*blk}:{vW3+4*blk+3}], {D}')
            r.append(f'v_mfma_f32_32x32x16_bf16 {D}, v[{vX6}:{vX6+3}], v[{vW6+4*blk}:{vW6+4*blk+3}], {D}')
        return r
    ONE=f'v[{vONE}:{vONE+3}]'
    def plus1(blk):
        Eb=f'v[{vE+16*blk}:{vE+16*blk+15}]'
        return f'v_mfma_f32_32x32x16_bf16 {Eb}, {ONE}, {ONE}, {Eb}'
    def mfma2(cur,blk,s2):
        D=f'v[{vD2+16*blk}:{vD2+16*blk+15}]'; m=cur+8*blk+4*s2
        return f'v_mfma_f32_32x32x16_bf16 {D}, v[{m}:{m+3}], v[{vSF+4*s2}:{vSF+4*s2+3}], {D}'
    def keep(x):
        if 'nomfma' in ABL and x.startswith('v_mfma'): return False
        if 'nolds' in ABL and x.startswith('ds_'): return False
        if 'nodma' in ABL and 'buffer_load' in x: return False
        if 'notrans' in ABL and x.startswith(('v_exp','v_rcp')): return False
        if 'novalu' in ABL and x.startswith(('v_exp','v_rcp','v_mul','v_cvt','v_pk_mul')): return False
        return True
    def emit(backbone, inserts):
        backbone=[x if keep(x) else 's_nop 0' for x in backbone]
        inserts={k:[x for x in v if keep(x)] for k,v in inserts.items()}
        for k_ in sorted(k for k in inserts if k<0):
            for s_ in inserts[k_]: a(s_)
        for i,ins in enumerate(backbone):
            a(ins)
            for s_ in inserts.get(i,[]): a(s_)
    nlab=[0]
    PK='pk' in ABL
    DMAPOS=optl('dma',[37,48,60,70,82] if PK else [41,52,63,76,92])
    M1POS=optl('m1',[37,40,43,46,49,52,55,58] if PK else [42,46,50,54,58,62,68,74])
    SFPOS=optl('sf',[0,2,4,6]); RSPOS=optl('rs',[8])[0]; SAPOS=optl('sa',[9,10,11]); SWPOS=optl('sw',[12,13]); X6POS=optl('x6',[14])[0]
    VMPOS=optl('vm',[16])[0]; XPOS=optl('x',[16,18,20,22,24]); RECPOS=optl('rec',[26,27]); IDXPOS=optl('idx',[28,29,30,31,32])
    LGPOS=optl('lg',[36] if PK else [40])[0]; M2POS=optl('m2',[85,89,93,95] if PK else [89,95,111,111]); P1POS=optl('p1',[17,33])
    def body(p, steady, extra_first=None):
        cur=vD1[p]; nxt=vD1[1-p]
        bb=[]
        for blk in range(2):
            bb += [f'v_exp_f32 v{vE+16*blk+i}, v{cur+16*blk+i}' for i in range(16)]
        for blk in range(2):
            bb += [f'v_rcp_f32 v{vE+16*blk+i}, v{vE+16*blk+i}' for i in range(16)]
        if 'pk' in ABL:
            bb += [f'v_pk_mul_f32 v[{vE+2*i}:{vE+2*i+1}], v[{vE+2*i}:{vE+2*i+1}], v[{cur+2*i}:{cur+2*i+1}]' for i in range(16)]
            bb += [f'v_cvt_pk_bf16_f32 v{cur+q}, v{vE+2*q}, v{vE+2*q+1}' for q in range(16)]
        else:
            bb += [f'v_mul_f32 v{vE+i}, v{vE+i}, v{cur+i}' for i in range(16)]
            bb += [f'v_cvt_pk_bf16_f32 v{cur+q}, v{vE+2*q}, v{vE+2*q+1}' for q in range(8)]
            bb += [f'v_mul_f32 v{vE+16+i}, v{vE+16+i}, v{cur+16+i}' for i in range(16)]
            bb += [f'v_cvt_pk_bf16_f32 v{cur+8+q}, v{vE+16+2*q}, v{vE+16+2*q+1}' for q in range(8)]
        ins={}
        def put(pos,x):
            ins.setdefault(pos,[]).append(x)
        if not ('trim' in ABL and steady): put(-100,'s_waitcnt lgkmcnt(0)')
        if 'prio' in ABL:
            put(-99,f'''s_and_b32 s54, s{sT}, 2
            s_cmp_eq_u32 s54, 0
            s_cbranch_scc1 Lp{nlab[0]}a
            s_setprio {1-p}
            s_branch Lp{nlab[0]}b
            Lp{nlab[0]}a:
            s_setprio {3-p}
            Lp{nlab[0]}b:''')
            nlab[0]+=1
        if 'fprio' in ABL and not ('trim' in ABL and p==1):
            n=nlab[0]
            put(-99,f'''s_add_u32 s84, s84, s85
            s_bitcmp1_b32 s84, 17
            s_cbranch_scc1 Lp{n}h
            s_bitcmp1_b32 s84, 16
            s_cbranch_scc1 Lp{n}a
            s_setprio 3
            s_branch Lp{n}z
            Lp{n}a:
            s_setprio 2
            s_branch Lp{n}z
            Lp{n}h:
            s_bitcmp1_b32 s84, 16
            s_cbranch_scc1 Lp{n}b
            s_setprio 1
            s_branch Lp{n}z
            Lp{n}b:
            s_setprio 0
            Lp{n}z:''')
            nlab[0]+=1
        if steady and p==0:
            n=nlab[0]; nlab[0]+=1
            if 'nozf' in ABL:
                put(0,f's_cmp_lg_u32 s{sT}, 0\ns_cbranch_scc1 Ld{n}\ns_cmp_lt_u32 s{sNT}, 3\ns_cbranch_scc1 Ld{n}\n'+'\n'.join(dma(0))+f'\nLd{n}:')
            else:
                put(0,f's_cmp_lg_u32 s{sT}, 0\ns_cbranch_scc1 Ld{n}\n'+'\n'.join(dma(0))+f'\nLd{n}:')
        for x,q in zip(sf_reads(),SFPOS): put(q,x)
        put(RSPOS,s_restore()[0])
        if extra_first:
            for x in extra_first: put(RSPOS+4,x)
        put(P1POS[0],plus1(0))
        put(P1POS[1],plus1(1))
        if steady:
            for x,q in zip(s_addr(),SAPOS): put(q,x)
            for x,q in zip(s_writes(),SWPOS): put(q,x)
            put(X6POS,x6_read()[0])
            if 'nozf' in ABL:
                n=nlab[0]; nlab[0]+=1
                if 'vmstat' in ABL:
                    put(VMPOS,'s_waitcnt lgkmcnt(0)\ns_memtime s[98:99]\ns_waitcnt lgkmcnt(0)\ns_mov_b32 s62, s98')
                put(VMPOS,f's_cmp_lt_i32 s{sT}, s88\ns_waitcnt vmcnt(5)\ns_cbranch_scc1 Lw{n}\ns_waitcnt vmcnt(0)\nLw{n}:')
                if 'vmstat' in ABL:
                    put(VMPOS,f's_memtime s[98:99]\ns_waitcnt lgkmcnt(0)\ns_sub_u32 s98, s98, s62\nv_readlane_b32 s99, v{vTM}, 24\ns_add_u32 s98, s98, s99\nv_writelane_b32 v{vTM}, s98, 24')
            else: put(VMPOS,'s_waitcnt vmcnt(5)')
            for x,q in zip(x_reads(1-p),XPOS): put(q,x)
            for x,q in zip(rec_reads(p+2),RECPOS): put(q,x)
            for x,q in zip(idx_reads(p+3),IDXPOS): put(q,x)
            if 'nozf' in ABL: pass
            elif 'trim' in ABL:
                n=nlab[0]; nlab[0]+=1
                put(LGPOS-2,f's_cmp_lt_i32 s{sT}, s86\ns_cbranch_scc1 Lz{n}\ns_mov_b32 s{sHD+2}, 0\ns_mov_b32 s{sEA+2}, 0\nLz{n}:')
            else: put(LGPOS-2,srd_select(3)[0])
            put(LGPOS,'s_waitcnt lgkmcnt(0)')
            if 'nozf' in ABL:
                n=nlab[0]; nlab[0]+=1
                put(DMAPOS[0],f's_cmp_lt_i32 s{sT}, s86\ns_cbranch_scc0 Lnd{n}\n'+'\n'.join(dma(1-p))+f'\nLnd{n}:')
            else:
              for (x,y),q in zip(dma2(1-p),DMAPOS):
                if q>0 and q-1>LGPOS-1 and 'trim' in ABL: put(q-1,x); put(q,y)
                else: put(q,x+'\n'+y)
            for x,q in zip(mfma1(nxt),M1POS): put(q,x)
        for (b_,s_),q in zip(((0,0),(0,1),(1,0),(1,1)),M2POS): put(q,mfma2(cur,b_,s_))
        emit(bb,ins)
    def late_consts(a):
        a(f'''
        v_and_b32 v97, 31, v1
        v_lshrrev_b32 v98, 5, v1
        v_bfe_u32 v99, v97, 1, 3
        v_lshlrev_b32 v100, 7, v97
        v_add_u32 v100, s{sRB}, v100
        ''')
        for s in range(4):
            a(f'''
            v_add_u32 v101, {2*s}, v98
            v_xor_b32 v101, v101, v99
            v_lshl_add_u32 v{vHA+s}, v101, 4, v100
            ''')
        a(f'''
        v_lshrrev_b32 v101, 4, v97
        v_xor_b32 v101, v101, v98
        v_lshlrev_b32 v101, 4, v101
        v_lshl_add_u32 v101, v97, 5, v101
        v_add_u32 v101, s{sRB}, v101
        v_add_u32 v{vEAr}, 4096, v101
        s_lshl_b32 s57, s{sV}, 11
        s_add_u32 s57, s57, {L_S}
        v_lshlrev_b32 v101, 6, v97
        v_add_u32 v101, s57, v101
        v_bfe_u32 v102, v97, 2, 2
        v_xor_b32 v103, v98, v102
        v_lshl_add_u32 v{vX6r}, v103, 4, v101
        v_lshlrev_b32 v103, 1, v98
        v_xor_b32 v104, v103, v102
        v_lshl_add_u32 v{vC1}, v104, 4, v101
        v_add_u32 v103, 1, v103
        v_xor_b32 v104, v103, v102
        v_lshl_add_u32 v104, v104, 4, v101
        v_add_u32 v{vCD}, 12, v104
        v_cmp_gt_u32 vcc, 32, v1
        v_mov_b32 v103, 0xffff0000
        v_mov_b32 v104, -1
        v_cndmask_b32 v{vMK2}, v104, v103, vcc
        v_mov_b32 v{vOne}, 0x3f80
        v_mov_b32 v{vONE+1}, 0
        v_mov_b32 v{vONE+2}, 0
        v_mov_b32 v{vONE+3}, 0
        v_cndmask_b32 v{vONE}, 0, v{vOne}, vcc
        v_lshlrev_b32 v101, 3, v98
        v_sub_u32 v101, v97, v101
        v_and_b32 v102, 1, v101
        v_lshlrev_b32 v102, 4, v102
        v_lshlrev_b32 v102, v102, v{vOne}
        v_ashrrev_i32 v101, 1, v101
        ''')
        for k in range(8):
            q=8*(k>>2)+(k&3)
            a(f'v_cmp_eq_u32 s[{90+2*(k&3)}:{91+2*(k&3)}], {q}, v101')
            if (k&3)==3:
                for kk in range(k-3,k+1):
                    a(f'v_cndmask_b32 v{vI+kk}, 0, v102, s[{90+2*(kk&3)}:{91+2*(kk&3)}]')
        a(f'''
        v_and_b32 v101, 15, v1
        v_lshrrev_b32 v101, 2, v101
        v_lshl_add_u32 v101, v98, 2, v101
        v_lshlrev_b32 v101, 6, v101
        v_and_b32 v102, 1, v1
        v_lshl_add_u32 v101, v102, 3, v101
        v_add_u32 v101, s57, v101
        v_bfe_u32 v102, v1, 4, 1
        v_bfe_u32 v103, v1, 1, 1
        v_lshl_add_u32 v102, v102, 1, v103
        v_xor_b32 v103, v102, v98
        v_lshl_add_u32 v{vSTa}, v103, 4, v101
        v_add_u32 v103, 2, v98
        v_xor_b32 v103, v102, v103
        v_lshl_add_u32 v103, v103, 4, v101
        v_add_u32 v{vSTb}, 512, v103
        ''')

    lc=Asm(); late_consts(lc); lcl=list(lc.lines); per=(len(lcl)+9)//10
    def dma_lc(slot,k0):
        for k,x in enumerate(dma(slot)):
            a(x)
            if 'ilc' in ABL:
                for y in lcl[(k0+k)*per:(k0+k+1)*per]: a(y)
    a(f's_mov_b32 s{sHD+2}, {N}')
    a(f's_mov_b32 s{sEA+2}, {E*32}')
    dma_lc(0,0)
    st(13+18)
    for x in idx_reads(1): a(x)
    if 'nozf' in ABL:
        a(f's_cmp_lt_u32 s{sNT}, 2\ns_cbranch_scc1 L2_nod1')
    else: a(srd_select(1)[0])
    a('s_waitcnt lgkmcnt(0)')
    dma_lc(1,5)
    if 'nozf' in ABL: a.label('L2_nod1')
    st(14)
    for x in idx_reads(2): a(x)
    if 'nozf' not in ABL: a(srd_select(2)[0])
    if 'ilc' not in ABL:
        for y in lcl: a(y)
    for x in s_addr(): a(x)
    for x in s_writes(): a(x)
    for x in x6_read(): a(x)
    st(15)
    if 'nozf' in ABL:
        a(f's_cmp_gt_u32 s{sNT}, 1\ns_waitcnt vmcnt(5)\ns_cbranch_scc1 L2_w1\ns_waitcnt vmcnt(0)')
        a.label('L2_w1')
    else: a('s_waitcnt vmcnt(5)')
    st(30)
    for x in x_reads(0): a(x)
    for x in rec_reads(1): a(x)
    a('s_waitcnt lgkmcnt(0)')
    for x in mfma1(vD1[0]): a(x)
    st(8)
    stampc(a,12,vTM,98)
    if DEBUG_TM: a(f'v_writelane_b32 v{vTM}, s{sNT}, 22\nv_writelane_b32 v{vTM}, s{sG}, 23\ns_getreg_b32 s98, hwreg(HW_REG_HW_ID)\nv_writelane_b32 v{vTM}, s98, {21 if VMS in ABL else 24}')
    JM=[0,1,4,5]
    RESV=[[232,233,234,236],[237,238,252,253]]
    WXV=[192,196,200,204,208,212,228,248]
    def epi_prefetch(p):
        nxt=vD1[1-p]
        r=[]
        r.append('v_lshlrev_b32 v10, 4, v1')
        for ff in range(16):
            dst = 16+4*ff if ff<8 else nxt+4*(ff-8)
            if 'hst' in ABL and ff<NHS:
                r.append(f'v_add_u32 v9, {hstage_addr(ff)}, v10\nds_read_b128 v[{dst}:{dst+3}], v9')
            else:
                r.append(f'v_add_u32 v9, {(F_H1+ff)*1024}, v10\nbuffer_load_dwordx4 v[{dst}:{dst+3}], v9, s[{sWF}:{sWF+3}], 0 offen')
        r.append(f"""
        v_lshrrev_b32 v9, 3, v1
        v_lshlrev_b32 v9, 3, v9
        v_add_u32 v3, s{sG}, v9
        v_add_u32 v9, s{sNODE0}, v9
        v_cmp_gt_u32 vcc, {BN}, v3
        v_mov_b32 v4, -1
        v_and_b32 v241, 7, v1
        v_lshlrev_b32 v241, 4, v241
        v_cndmask_b32 v240, v4, v9, vcc
        """)
        r.append(f"""
        v_bfe_u32 v9, v1, 1, 3
        v_lshlrev_b32 v9, 3, v9
        v_add_u32 v3, s{sG}, v9
        v_add_u32 v9, s{sNODE0}, v9
        v_bfe_u32 v5, v1, 4, 1
        v_and_b32 v8, 1, v1
        v_lshl_add_u32 v5, v5, 1, v8
        v_cmp_gt_u32 vcc, {BN}, v3
        v_subrev_u32 v5, 1, v5
        v_cmp_gt_u32 s[56:57], 3, v5
        v_mul_u32_u24 v9, 6, v9
        s_and_b64 vcc, vcc, s[56:57]
        v_cmp_gt_u32 s[56:57], 32, v1
        v_lshl_add_u32 v9, v5, 1, v9
        v_mov_b32 v4, 0x7fffff00
        s_and_b64 vcc, vcc, s[56:57]
        v_cndmask_b32 v10, v4, v9, vcc
        buffer_load_ushort v11, v10, s[{sPOS}:{sPOS+3}], 0 offen
        """)
        return r
    def epi_rows():
        return f"""s_waitcnt lgkmcnt(0)
        s_lshl_b32 s62, s{sV}, 11
        s_add_u32 s62, s62, {L_S}
        s_mov_b32 m0, s62
        s_nop 0
        buffer_load_dwordx4 v[240:241], s[{sH}:{sH+3}], 0 idxen offen lds"""
    def epilogue(p):
        nxt=vD1[1-p]; cur=vD1[p]
        pk=vE; T=vE+16; acc=vE+24
        a(f"""
        v_and_b32 v3, 31, v1
        v_lshrrev_b32 v4, 5, v1
        v_bfe_u32 v5, v1, 1, 3
        v_lshlrev_b32 v5, 7, v5
        v_lshl_add_u32 v5, v4, 4, v5
        v_add_u32 v5, s62, v5
        v_lshlrev_b32 v6, 7, v4
        v_add_u32 v6, {L_WST+2048+256}, v6
        v_lshlrev_b32 v7, 1, v3
        v_lshl_add_u32 v7, v4, 8, v7
        v_add_u32 v7, s62, v7
        s_mov_b32 s54, {f32bits(-math.log(2.0))}
        s_mov_b32 s55, s54
        s_waitcnt vmcnt(0)
        """)
        for s_ in range(4):
            a(f'ds_read_b128 v[{48+4*s_}:{51+4*s_}], v5 offset:{32*s_}')
        for f in range(8):
            a(f'ds_read_b128 v[{WXV[f]}:{WXV[f]+3}], v6 offset:{16*f}')
        for i in range(16):
            a(f'v_pk_mul_f32 v[{vD2+2*i}:{vD2+2*i+1}], v[{vD2+2*i}:{vD2+2*i+1}], s[54:55]')
        a('s_waitcnt lgkmcnt(8)')
        for b2 in range(2):
            D=f'v[{cur+16*b2}:{cur+16*b2+15}]'
            for s_ in range(4):
                C = D if s_>0 else '0'
                a(f'v_mfma_f32_32x32x16_bf16 {D}, v[{48+4*s_}:{51+4*s_}], v[{16+4*(2*s_+b2)}:{19+4*(2*s_+b2)}], {C}')
            if b2==0:
                for blk in range(2):
                    for q in range(8):
                        a(f'v_cvt_pk_bf16_f32 v{pk+8*blk+q}, v{vD2+16*blk+2*q}, v{vD2+16*blk+2*q+1}')
        for b2 in range(2):
            for m in range(4):
                a(f'ds_read_u16 v{RESV[b2][m]}, v7 offset:{128*JM[m]+64*b2}')
        for b2 in range(2):
            D=f'v[{cur+16*b2}:{cur+16*b2+15}]'
            for blk in range(2):
                for sp in range(2):
                    f=(blk*2+sp)*2+b2
                    a(f'v_mfma_f32_32x32x16_bf16 {D}, v[{pk+8*blk+4*sp}:{pk+8*blk+4*sp+3}], v[{nxt+4*f}:{nxt+4*f+3}], {D}')
            if b2==0:
                a('s_waitcnt lgkmcnt(8)')
                a(f'v_mul_f32 v{acc}, v{vD2}, v{WXV[0]}')
                a(f'v_mul_f32 v{acc+1}, v{vD2+1}, v{WXV[0]+1}')
                for i in range(2,32):
                    a(f'v_fmac_f32 v{acc+(i&1)}, v{vD2+i}, v{WXV[i>>2]+(i&3)}')
                a(f'v_add_f32 v{acc}, v{acc}, v{acc+1}')
                a(f'v_mov_b32 v{acc+1}, v{acc}')
        a(f'v_permlane32_swap_b32 v{acc}, v{acc+1}')
        a(f"""
        v_lshlrev_b32 v11, 16, v11
        v_add_f32 v{acc}, v{acc}, v{acc+1}
        v_add_f32 v11, v11, v{acc}
        v_cvt_pk_bf16_f32 v11, v11, v11
        buffer_store_short v11, v10, s[{sO1}:{sO1+3}], 0 offen
        s_mov_b32 s54, {f32bits(-LOG2E)}
        """)
        for b2 in range(2):
            for m in range(4):
                a(f'v_mul_f32 v{T+4*b2+m}, s54, v{cur+16*b2+2*m}')
        for k in range(8): a(f'v_exp_f32 v{T+k}, v{T+k}')
        for k in range(8): a(f'v_add_f32 v{T+k}, 1.0, v{T+k}')
        for k in range(8): a(f'v_rcp_f32 v{T+k}, v{T+k}')
        a('s_waitcnt lgkmcnt(0)')
        for b2 in range(2):
            for m in range(4):
                x=cur+16*b2+2*m; t=T+4*b2+m; hh=RESV[b2][m]
                a(f'v_lshlrev_b32 v{hh}, 16, v{hh}')
                a(f'v_fma_f32 v{t}, v{x}, v{t}, v{hh}')
                a(f'v_cvt_pk_bf16_f32 v{t}, v{t}, v{t}')
        for b2 in range(2):
            for m in range(4):
                a(f'ds_write_b16 v7, v{T+4*b2+m} offset:{1024+128*JM[m]+64*b2}')
        a(f"""
        v_lshlrev_b32 v6, 4, v1
        v_add_u32 v6, s62, v6
        ds_read_b128 v[48:51], v6 offset:1024
        s_waitcnt lgkmcnt(0)
        buffer_store_dwordx4 v[48:51], v[240:241], s[{sO0}:{sO0+3}], 0 idxen offen{SC1O}
        """)
        st(10)
        if DEBUG_TM: a('s_waitcnt vmcnt(0)')
        st(11)
        stamp_store(a,vTM,98,44,45,0x80000,sV,254)
        a('s_endpgm')
    for p in range(2):
        a.label(f'L2_s{p}')
        if 'trim' in ABL:
            a(f's_cmp_ge_i32 s{sT}, s87\ns_cbranch_scc1 L2_l{p}')
        else:
            a(f'''
            s_add_u32 s54, s{sT}, 1
            s_cmp_ge_u32 s54, s{sNT}
            s_cbranch_scc1 L2_l{p}
            ''')
        if DEBUG_TM and p==0:
            for tt,ix in ((2,25),(4,26),(6,27),(8,28),(10,29)):
                a(f's_cmp_lg_u32 s{sT}, {tt}\ns_cbranch_scc1 Lst{ix}')
                stampc(a,ix,vTM,98)
                a.label(f'Lst{ix}')
        body(p, True)
        a(f's_add_u32 s{sT}, s{sT}, 1')
        if p==1:
            a(f'''
            v_add_u32 v{vRSa}, 128, v{vRSa}
            v_add_u32 v{vR0a}, 256, v{vR0a}
            v_add_u32 v{vR0e}, 256, v{vR0e}
            v_add_u32 v{vGe}, 512, v{vGe}
            s_branch L2_s0
            ''')
    for p in range(2):
        a.label(f'L2_l{p}')
        a(f'''
        s_cmp_lt_u32 s{sW1}, {NCH}
        s_cbranch_scc1 L2_l{p}n
        ''')
        body(p, False, None) if False else None
        for x in epi_prefetch(p): a(x)
        body(p, False, [epi_rows()])
        st(9)
        stampc(a,13,vTM,98)
        epilogue(p)
        a.label(f'L2_l{p}n')
        body(p, False)
        a('s_branch L2_nextbatch')
    a.label('L2_notiles')
    a(f'''
    s_cmp_lt_u32 s{sW1}, {NCH}
    s_cbranch_scc1 L2_nextbatch
    ''')
    for x in epi_prefetch(0): a(x)
    a(epi_rows())
    st(9)
    epilogue(0)
    a.label('L2_nextbatch')
    a(f'''
    s_waitcnt vmcnt(0) lgkmcnt(0)
    s_mov_b32 s{sW0}, s{sW1}
    s_add_u32 s{sW1}, s{sW1}, 1
    s_branch L2_batch
    ''')
    a.label('L2_end')
    a('s_endpgm')
    return a.finalize(), 256, 102, (L_END if 'hst' in ABL else L_HX)

def main():
    k1,v1,s1,l1 = gen_k1()
    k2,v2,s2,l2 = gen_k2()
    hdr = open('gather_scatter__cheap_equivariant_egnn__graph.s.ref').read().split('; Override launch')[0]
    out = hdr
    out += f'; @launch kernel=egnn_part_kernel grid=({NCH+1+NTW},1,1) block=(512,1,1) lds={l1}\n'
    out += f'; @launch kernel=egnn_main_kernel grid=({NBK},1,1) block=(512,1,1) lds={l2}\n'
    out += '''; Algorithm (two launches):
'''
    out += '.amdgcn_target "amdgcn-amd-amdhsa--gfx950"\n.text\n'
    for name,body in (('egnn_part_kernel',k1),('egnn_main_kernel',k2)):
        out += f'.globl {name}\n.p2align 8\n.type {name},@function\n' + body
    out += '.section .rodata,"a"\n'
    for name,nv,ns in (('egnn_part_kernel',v1,s1),('egnn_main_kernel',v2,s2)):
        acc=(nv+3)//4*4
        out += f'''.p2align 6
.amdhsa_kernel {name}
  .amdhsa_next_free_vgpr {nv}
  .amdhsa_next_free_sgpr {ns}
  .amdhsa_accum_offset {acc}
  .amdhsa_group_segment_fixed_size 0
  .amdhsa_kernarg_size 88
  .amdhsa_user_sgpr_count 2
  .amdhsa_user_sgpr_kernarg_segment_ptr 1
  .amdhsa_system_sgpr_workgroup_id_x 1
  .amdhsa_float_denorm_mode_32 3
.end_amdhsa_kernel
'''
    dst = [x for x in sys.argv[1:] if not x.startswith('--')]
    path = dst[0] if dst else 'gather_scatter__cheap_equivariant_egnn__graph.s'
    open(path,'w').write(out)
    print('wrote',path,len(out))
main()
```

```python
import sys, math
from asmlib import Asm

N=12500; E=800000; CH=3200; NCH=250; NBK=256; BN=49
ROW=4224
OFFS=0; ENT=0x110000; WF=0x420000; TA=0x500000; TB=0x700000; TM=0x900000
NF=18; WDO=NF*1024; WXO=NF*1024+256; WFSZ=NF*1024+512
NTW=98
CAP=3584
LOG2E=1.4426950408889634
def f32bits(x):
    import struct; return struct.unpack('<I',struct.pack('<f',x))[0]

DEBUG_TM = '--tm' in sys.argv
K1PRIO = '--nok1prio' not in sys.argv
TFIRST = '--tfirst' in sys.argv
SC1 = '' if '--nosc1' in sys.argv else (' sc0 sc1' if '--sc01' in sys.argv else ' sc1')
SC1T = '' if '--tplain' in sys.argv else SC1
SC1W = SC1 if '--wsc1' in sys.argv else ''
SC1O = ' sc1' if '--osc1' in sys.argv else ''
PFN = int(([x[6:] for x in sys.argv if x.startswith('--pfn=')] or ['0'])[0])
PFK1 = 2 if PFN else 0

F_W3=0
F_H1=2
F_H2=10

def stamp(a, idx, vreg, sp):
    if not DEBUG_TM: return
    a(f'''
    s_memrealtime s[{sp}:{sp+1}]
    s_waitcnt lgkmcnt(0)
    v_writelane_b32 v{vreg}, s{sp}, {idx}
    ''')
def stampc(a, idx, vreg, sp):
    if not DEBUG_TM: return
    a(f'''
    s_memtime s[{sp}:{sp+1}]
    s_waitcnt lgkmcnt(0)
    v_writelane_b32 v{vreg}, s{sp}, {idx}
    ''')
def stamp_store(a, vreg, sp, ws_lo, ws_hi, region, wave_s, vt):
    if not DEBUG_TM: return
    a(f'''
    s_lshl_b32 s{sp}, s2, 3
    s_add_u32 s{sp}, s{sp}, s{wave_s}
    s_lshl_b32 s{sp}, s{sp}, 7
    s_add_u32 s{sp}, s{sp}, {TM+region}
    s_add_u32 s{sp}, s{ws_lo}, s{sp}
    s_addc_u32 s{sp+1}, s{ws_hi}, 0
    v_and_b32 v{vt}, 63, v0
    v_lshlrev_b32 v{vt}, 2, v{vt}
    s_mov_b32 exec_hi, 0
    global_store_dword v{vt}, v{vreg}, s[{sp}:{sp+1}]
    s_mov_b64 exec, -1
    ''')

def gen_k1():
    a=Asm()
    K1_STAGE=8192; K1_WTOT=24576
    a.label('egnn_part_kernel')
    a(f'''
    s_cmp_gt_u32 s2, {NCH+NTW}
    s_cbranch_scc1 L1_end
    v_lshrrev_b32 v2, 6, v0
    v_and_b32 v1, 63, v0
    s_load_dwordx4 s[4:7], s[0:1], 24
    s_load_dwordx2 s[8:9], s[0:1], 80
    s_load_dwordx2 s[34:35], s[0:1], 16
    v_readfirstlane_b32 s3, v2
    s_cmp_eq_u32 s2, {NTW if TFIRST else NCH}
    s_cbranch_scc1 L1_wprep
    s_cmp_{'lt' if TFIRST else 'gt'}_u32 s2, {NTW if TFIRST else NCH}
    s_cbranch_scc1 L1_tables
    s_sub_u32 s38, s2, {NTW+1 if TFIRST else 0}
    s_setprio {3 if K1PRIO else 0}
    ''')
    if DEBUG_TM: a('v_mov_b32 v70, 0')
    stamp(a,0,70,36)
    a(f'''
    v_lshlrev_b32 v3, 4, v0
    v_mov_b32 v4, 0
    v_mov_b32 v5, 0
    v_mov_b32 v6, 0
    v_mov_b32 v7, 0
    ds_write_b128 v3, v[4:7]
    s_mul_i32 s10, s38, {CH*4}
    s_mul_i32 s11, s38, {ROW}
    v_add_u32 v48, 8192, v3
    s_waitcnt lgkmcnt(0)
    s_add_u32 s12, s6, s10
    s_addc_u32 s13, s7, 0
    s_mov_b32 s14, {CH*4}
    s_mov_b32 s15, 0x20000
    s_add_u32 s16, s4, s10
    s_addc_u32 s17, s5, 0
    s_mov_b32 s18, {CH*4}
    s_mov_b32 s19, 0x20000
    buffer_load_dwordx4 v[8:11], v3, s[12:15], 0 offen
    buffer_load_dwordx4 v[12:15], v48, s[12:15], 0 offen
    buffer_load_dwordx4 v[16:19], v3, s[16:19], 0 offen
    buffer_load_dwordx4 v[20:23], v48, s[16:19], 0 offen
    ''')
    if PFK1:
        a(f'''
        s_mul_i32 s10, s38, {CH*32}
        s_add_u32 s32, s34, s10
        s_addc_u32 s33, s35, 0
        s_cmp_lt_u32 s38, {PFN}
        s_cselect_b32 s34, {CH*32}, 0
        s_mov_b32 s35, 0x20000
        v_lshlrev_b32 v64, 7, v0
        v_add_u32 v65, {512*128}, v64
        buffer_load_dword v66, v64, s[32:35], 0 offen
        ''')
        if PFK1>1: a('buffer_load_dword v67, v65, s[32:35], 0 offen')
        a(f's_mul_i32 s10, s38, {CH*4}')
    a(f'''
    s_add_u32 s24, s8, {OFFS}
    s_addc_u32 s25, s9, 0
    s_add_u32 s24, s24, s11
    s_addc_u32 s25, s25, 0
    s_mov_b32 s26, {ROW}
    s_mov_b32 s27, 0x20000
    s_add_u32 s28, s8, {ENT}
    s_addc_u32 s29, s9, 0
    s_add_u32 s28, s28, s10
    s_addc_u32 s29, s29, 0
    s_mov_b32 s30, {CH*4}
    s_mov_b32 s31, 0x20000
    s_mov_b32 s22, -{BN}
    v_mov_b32 v50, 1
    v_lshlrev_b32 v51, 5, v0
    v_add_u32 v52, 16384, v51
    s_barrier
    s_waitcnt vmcnt({2+PFK1})
    ''')
    stamp(a,1,70,36)
    def keyslot(i, dst, tmp):
        a(f'''
        v_mul_u32_u24 v{tmp}, 21400, v{dst}
        v_lshrrev_b32 v{tmp}, 20, v{tmp}
        v_mad_i32_i24 v{40+i}, v{tmp}, s22, v{dst}
        v_and_b32 v{tmp+1}, 7, v{40+i}
        v_lshl_or_b32 v{tmp}, v{tmp}, 3, v{tmp+1}
        v_lshlrev_b32 v{24+i}, 2, v{tmp}
        ''')
    for u in range(4):
        keyslot(u, 8+u, 54+2*u)
        a(f'ds_add_rtn_u32 v{32+u}, v{24+u}, v50')
    a('''
    v_cmp_gt_u32 vcc, 288, v0
    s_and_saveexec_b64 s[20:21], vcc
    s_cbranch_execz L1_skipB1
    ''')
    for u in range(4):
        keyslot(4+u, 12+u, 54+2*u)
        a(f'ds_add_rtn_u32 v{36+u}, v{28+u}, v50')
    a.label('L1_skipB1')
    a('s_mov_b64 exec, s[20:21]')
    a(f's_waitcnt vmcnt({PFK1})')
    for i in range(8):
        base = 51 if i<4 else 52
        a(f'''
        v_lshrrev_b32 v54, 3, v{40+i}
        v_lshl_or_b32 v54, v{40+i}, 29, v54
        v_lshl_or_b32 v54, v{16+i}, 15, v54
        v_add3_u32 v{40+i}, v54, v{base}, {8*(i%4)}
        ''')
    a('''
    s_waitcnt lgkmcnt(0)
    s_barrier
    ''')
    stamp(a,2,70,36)
    a('''
    ds_read_b128 v[8:11], v3
    s_waitcnt lgkmcnt(0)
    v_add_u32 v12, v8, v9
    v_add_u32 v13, v12, v10
    v_add_u32 v14, v13, v11
    v_mov_b32 v15, v14
    ''')
    for sh in (1,2,4,8):
        a(f'v_add_u32_dpp v15, v15, v15 row_shr:{sh} row_mask:0xf bank_mask:0xf')
    a('v_add_u32_dpp v15, v15, v15 row_bcast:15 row_mask:0xa bank_mask:0xf')
    a('v_add_u32_dpp v15, v15, v15 row_bcast:31 row_mask:0xc bank_mask:0xf')
    a(f'''
    s_lshl_b32 s10, s3, 2
    s_add_u32 s10, s10, {K1_WTOT}
    v_mov_b32 v16, s10
    s_mov_b32 s20, 0
    s_brev_b32 s21, 1
    s_mov_b64 exec, s[20:21]
    ds_write_b32 v16, v15
    s_mov_b64 exec, -1
    v_and_b32 v17, 7, v1
    v_lshlrev_b32 v17, 2, v17
    v_add_u32 v17, {K1_WTOT}, v17
    s_waitcnt lgkmcnt(0)
    s_barrier
    ds_read_b32 v18, v17
    v_cmp_gt_u32 vcc, s3, v1
    s_waitcnt lgkmcnt(0)
    v_cndmask_b32 v18, 0, v18, vcc
    ''')
    for sh in (1,2,4):
        a(f'v_add_u32_dpp v18, v18, v18 row_shr:{sh} row_mask:0xf bank_mask:0xf')
    a(f'''
    v_readlane_b32 s10, v18, 7
    v_sub_u32 v15, v15, v14
    v_add_u32 v8+0, s10, v15
    '''.replace('v8+0','v19'))
    a(f'''
    v_add_u32 v21, v19, v12
    v_add_u32 v22, v19, v13
    v_add_u32 v20, v19, v8
    v_mov_b32 v56, v19
    v_mov_b32 v57, v20
    v_mov_b32 v58, v21
    v_mov_b32 v59, v22
    ds_write_b128 v3, v[56:59]
    v_lshl_or_b32 v60, v20, 16, v19
    v_lshl_or_b32 v61, v22, 16, v21
    v_lshlrev_b32 v62, 3, v0
    buffer_store_dwordx2 v[60:61], v62, s[24:27], 0 offen{SC1}
    s_cmp_lg_u32 s3, 0
    s_cbranch_scc1 L1_nosent
    s_mov_b32 s10, {CH | (CH<<16)}
    v_mov_b32 v63, s10
    v_lshlrev_b32 v62, 2, v1
    v_add_u32 v62, 4096, v62
    v_cmp_gt_u32 vcc, 32, v1
    s_and_saveexec_b64 s[20:21], vcc
    buffer_store_dword v63, v62, s[24:27], 0 offen{SC1}
    s_mov_b64 exec, s[20:21]
    ''')
    a.label('L1_nosent')
    a('''
    s_waitcnt lgkmcnt(0)
    s_barrier
    ''')
    stamp(a,3,70,36)
    for u in range(4):
        a(f'ds_read_b32 v{8+u}, v{24+u}')
    a('''
    v_cmp_gt_u32 vcc, 288, v0
    s_and_saveexec_b64 s[20:21], vcc
    s_cbranch_execz L1_skipB2
    ''')
    for u in range(4):
        a(f'ds_read_b32 v{12+u}, v{28+u}')
    a('s_waitcnt lgkmcnt(0)')
    for u in range(4):
        a(f'v_add_lshl_u32 v{12+u}, v{12+u}, v{36+u}, 2')
    for u in range(4):
        a(f'ds_write_b32 v{12+u}, v{44+u} offset:{K1_STAGE}')
    a.label('L1_skipB2')
    a('s_mov_b64 exec, s[20:21]')
    a('s_waitcnt lgkmcnt(0)')
    for u in range(4):
        a(f'v_add_lshl_u32 v{8+u}, v{8+u}, v{32+u}, 2')
    for u in range(4):
        a(f'ds_write_b32 v{8+u}, v{40+u} offset:{K1_STAGE}')
    a(f'''
    s_waitcnt lgkmcnt(0)
    s_barrier
    ds_read_b128 v[8:11], v3 offset:{K1_STAGE}
    ds_read_b128 v[12:15], v3 offset:{K1_STAGE+8192}
    s_waitcnt lgkmcnt(1)
    buffer_store_dwordx4 v[8:11], v3, s[28:31], 0 offen{SC1}
    s_waitcnt lgkmcnt(0)
    buffer_store_dwordx4 v[12:15], v48, s[28:31], 0 offen{SC1}
    ''')
    stamp(a,4,70,36)
    if DEBUG_TM: a('s_waitcnt vmcnt(0)')
    stamp(a,5,70,36)
    stamp_store(a,70,36,8,9,0,3,69)
    a('s_endpgm')
    a.label('L1_wprep')
    a(f'''
    s_load_dwordx2 s[10:11], s[0:1], 40
    s_load_dwordx2 s[12:13], s[0:1], 48
    s_load_dwordx2 s[14:15], s[0:1], 56
    v_and_b32 v2, 31, v1
    v_lshrrev_b32 v3, 5, v1
    v_lshlrev_b32 v4, 4, v1
    s_waitcnt lgkmcnt(0)
    s_mov_b32 s16, s10
    s_mov_b32 s17, s11
    s_mov_b32 s18, {145*64*2}
    s_mov_b32 s19, 0x20000
    s_mov_b32 s20, s14
    s_mov_b32 s21, s15
    s_mov_b32 s22, {128*64*2}
    s_mov_b32 s23, 0x20000
    s_mov_b32 s24, s12
    s_mov_b32 s25, s13
    s_mov_b32 s26, {64*2}
    s_mov_b32 s27, 0x20000
    s_add_u32 s28, s8, {WF}
    s_addc_u32 s29, s9, 0
    s_mov_b32 s30, {WFSZ}
    s_mov_b32 s31, 0x20000
    s_mov_b32 s32, {f32bits(-LOG2E)}
    v_lshlrev_b32 v5, 1, v2
    v_lshl_add_u32 v6, v3, 10, v5
    v_lshl_add_u32 v7, v3, 9, v5
    v_lshlrev_b32 v8, 3, v3
    ''')
    frags=[]
    for blk in range(2): frags.append((F_W3+blk,'e',129,blk,'std',True))
    for s in range(4):
        for blk in range(2): frags.append((F_H1+2*s+blk,'h',16*s,blk,'std',False))
    for blk in range(2):
        for sp in range(2):
            for b2 in range(2): frags.append((F_H2+(blk*2+sp)*2+b2,'h',64+32*blk+16*sp,b2,'perm',False))
    assert len(frags)==NF
    for wv in range(8):
        a(f's_cmp_eq_u32 s3, {wv}')
        a(f's_cbranch_scc1 L1_w{wv}')
    a('s_endpgm')
    for wv in range(8):
        a.label(f'L1_w{wv}')
        mine=[f for i,f in enumerate(frags) if i%8==wv]
        for q,(F,srcn,row0,blk,kind,scaled) in enumerate(mine):
            r=16+8*q
            srd={'e':'s[16:19]','h':'s[20:23]','x':'s[24:27]'}[srcn]
            if kind=='wx':
                a(f'v_add_u32 v10, {row0*2}, v8')
                for t in range(8):
                    T=(t&3)+8*(t>>2)
                    a(f'buffer_load_ushort v{r+t}, v10, {srd}, 0 offen offset:{T*2}')
            else:
                vb = 6 if kind=='std' else 7
                a(f'v_add_u32 v10, {row0*128+blk*64}, v{vb}')
                for t in range(8):
                    T= t if kind=='std' else (t&3)+8*(t>>2)
                    a(f'buffer_load_ushort v{r+t}, v10, {srd}, 0 offen offset:{T*128}')
        if wv==0:
            a(f'''
            v_lshlrev_b32 v11, 1, v1
            v_add_u32 v11, {128*128}, v11
            buffer_load_ushort v12, v11, s[16:19], 0 offen
            ''')
        if wv==1:
            a(f'''
            v_and_b32 v11, 3, v1
            v_bfe_u32 v12, v1, 2, 2
            v_lshl_add_u32 v11, v12, 3, v11
            v_bfe_u32 v12, v1, 4, 1
            v_lshl_add_u32 v11, v12, 5, v11
            v_lshl_add_u32 v11, v3, 2, v11
            v_lshlrev_b32 v11, 1, v11
            buffer_load_ushort v12, v11, s[24:27], 0 offen
            ''')
        a('s_waitcnt vmcnt(0)')
        for q,(F,srcn,row0,blk,kind,scaled) in enumerate(mine):
            r=16+8*q
            if scaled:
                for t in range(8):
                    a(f'v_lshlrev_b32 v{r+t}, 16, v{r+t}')
                for t in range(8):
                    a(f'v_mul_f32 v{r+t}, s32, v{r+t}')
                for t in range(4):
                    a(f'v_cvt_pk_bf16_f32 v{64+t}, v{r+2*t}, v{r+2*t+1}')
            else:
                for t in range(4):
                    a(f'v_lshl_or_b32 v{64+t}, v{r+2*t+1}, 16, v{r+2*t}')
            a(f'v_add_u32 v10, {F*1024}, v4')
            a(f'buffer_store_dwordx4 v[64:67], v10, s[28:31], 0 offen{SC1W}')
            a('s_nop 1')
        if wv==0:
            a(f'''
            v_lshlrev_b32 v12, 16, v12
            v_mul_f32 v12, s32, v12
            v_cvt_pk_bf16_f32 v13, v12, v12
            v_and_b32 v14, 0xffff0000, v13
            v_sub_f32 v12, v12, v14
            v_cvt_pk_bf16_f32 v12, v12, v12
            v_and_b32 v12, 0xffff0000, v12
            v_and_b32 v13, 0xffff, v13
            v_or_b32 v13, v13, v12
            v_and_b32 v11, 31, v1
            v_lshlrev_b32 v11, 3, v11
            v_lshl_add_u32 v11, v3, 2, v11
            v_add_u32 v11, {WDO}, v11
            buffer_store_dword v13, v11, s[28:31], 0 offen
            ''')
        if wv==1:
            a(f'''
            v_lshlrev_b32 v12, 16, v12
            v_lshlrev_b32 v11, 2, v1
            v_add_u32 v11, {WXO}, v11
            buffer_store_dword v12, v11, s[28:31], 0 offen
            ''')
        if DEBUG_TM:
            a('s_waitcnt vmcnt(0)\nv_mov_b32 v70, 0')
            stamp(a,5,70,36)
            stamp_store(a,70,36,8,9,0,3,69)
        a('s_endpgm')
    a.label('L1_tables')
    if DEBUG_TM: a('v_mov_b32 v15, 0')
    stamp(a,0,15,36)
    a(f"""
    s_load_dwordx2 s[10:11], s[0:1], 0
    s_load_dwordx2 s[12:13], s[0:1], 40
    s_sub_u32 s14, s2, {0 if TFIRST else NCH+1}
    s_lshl_b32 s14, s14, 7
    s_lshr_b32 s33, s3, 1
    s_lshl_b32 s33, s33, 5
    s_and_b32 s15, s3, 1
    v_and_b32 v2, 31, v1
    v_lshrrev_b32 v3, 5, v1
    v_lshrrev_b32 v8, 3, v1
    v_and_b32 v9, 7, v1
    v_lshrrev_b32 v10, 4, v1
    s_waitcnt lgkmcnt(0)
    s_mov_b32 s16, s10
    s_or_b32 s17, s11, 0x800000
    s_mov_b32 s18, {N}
    s_mov_b32 s19, 0x20000
    s_mov_b32 s20, s12
    s_mov_b32 s21, s13
    s_mov_b32 s22, {128*128}
    s_mov_b32 s23, 0x20000
    s_mul_i32 s34, s15, {TB-TA}
    s_add_u32 s34, s34, {TA}
    s_add_u32 s24, s8, s34
    s_addc_u32 s25, s9, 0
    s_or_b32 s25, s25, 0x800000
    s_mov_b32 s26, {N}
    s_mov_b32 s27, 0x20000
    """)
    for r in range(2):
        a(f"""
        s_lshl_b32 s34, s3, 1
        s_add_u32 s34, s34, {r}
        s_lshl_b32 s35, s34, 3
        s_add_u32 s35, s35, s14
        v_add_u32 v4, s35, v8
        v_add_u32 v5, {4*r}, v10
        v_xor_b32 v5, v5, v9
        v_lshlrev_b32 v5, 4, v5
        s_lshl_b32 s34, s34, 10
        s_add_u32 m0, s34, 16384
        s_nop 0
        buffer_load_dwordx4 v[4:5], s[16:19], 0 idxen offen lds
        """)
    a(f"""
    v_lshlrev_b32 v6, 4, v1
    s_lshl_b32 s34, s3, 10
    v_add_u32 v6, s34, v6
    s_mov_b32 m0, s34
    v_add_u32 v7, 8192, v6
    buffer_load_dwordx4 v6, s[20:23], 0 offen lds
    s_add_u32 m0, s34, 8192
    s_nop 0
    buffer_load_dwordx4 v7, s[20:23], 0 offen lds
    v_and_b32 v8, 15, v1
    v_lshrrev_b32 v9, 2, v8
    v_lshl_add_u32 v9, v3, 3, v9
    v_lshlrev_b32 v9, 7, v9
    v_bfe_u32 v10, v1, 4, 1
    v_lshl_add_u32 v9, v10, 5, v9
    v_and_b32 v10, 3, v1
    v_lshl_add_u32 v9, v10, 3, v9
    s_lshl_b32 s34, s15, 13
    v_add_u32 v9, s34, v9
    v_add_u32 v10, s33, v2
    v_lshlrev_b32 v10, 7, v10
    v_add_u32 v10, 16384, v10
    v_bfe_u32 v11, v2, 1, 3
    s_mov_b32 s35, {f32bits(-LOG2E)}
    s_waitcnt vmcnt(0)
    """)
    stamp(a,1,15,36)
    a('s_barrier')
    for s_ in range(4):
        a(f"""
        v_add_u32 v12, {2*s_}, v3
        v_xor_b32 v12, v12, v11
        v_lshl_add_u32 v12, v12, 4, v10
        ds_read_b128 v[{16+4*s_}:{19+4*s_}], v12
        """)
    for s_ in range(4):
        for blk in range(2):
            r=32+4*(2*s_+blk)
            a(f'ds_read_b64_tr_b16 v[{r}:{r+1}], v9 offset:{2048*s_+64*blk}')
            a(f'ds_read_b64_tr_b16 v[{r+2}:{r+3}], v9 offset:{2048*s_+64*blk+512}')
        if s_==1: a('s_waitcnt lgkmcnt(0)')
    a('s_waitcnt lgkmcnt(0)')
    a('s_barrier')
    stamp(a,2,15,36)
    for blk in range(2):
        D=f'v[{64+16*blk}:{79+16*blk}]'
        for s_ in range(4):
            C = D if s_>0 else '0'
            r=32+4*(2*s_+blk)
            a(f'v_mfma_f32_32x32x16_bf16 {D}, v[{r}:{r+3}], v[{16+4*s_}:{19+4*s_}], {C}')
    a(f"""
    s_lshl_b32 s34, s3, 12
    v_lshlrev_b32 v4, 7, v2
    v_add_u32 v4, s34, v4
    v_and_b32 v5, 7, v2
    v_lshlrev_b32 v5, 4, v5
    """)
    for blk in range(2):
        for i in range(16):
            a(f'v_mul_f32 v{64+16*blk+i}, s35, v{64+16*blk+i}')
    a("""
    s_cmp_eq_u32 s15, 0
    s_cbranch_scc1 L1_tabA
    v_lshl_add_u32 v4, v3, 3, v4
    """)
    for blk in range(2):
        for q in range(8):
            a(f'v_cvt_pk_bf16_f32 v{32+8*blk+q}, v{64+16*blk+2*q}, v{64+16*blk+2*q+1}')
        for m in range(4):
            a(f'v_xor_b32 v6, {16*(4*blk+m)}, v5')
            a(f'v_add_u32 v6, v6, v4')
            a(f'ds_write_b64 v6, v[{32+8*blk+2*m}:{33+8*blk+2*m}]')
    a('s_branch L1_tabS')
    a.label('L1_tabA')
    for r in range(16):
        a(f'v_cvt_pk_bf16_f32 v{32+r}, v{64+r}, v{80+r}')
    a('v_lshlrev_b32 v7, 4, v3')
    for m in range(4):
        a(f'v_add_u32 v6, {32*m}, v7')
        a(f'v_xor_b32 v6, v6, v5')
        a(f'v_add_u32 v6, v6, v4')
        a(f'ds_write_b128 v6, v[{32+4*m}:{35+4*m}]')
    a.label('L1_tabS')
    stamp(a,3,15,36)
    a(f"""
    v_lshlrev_b32 v6, 4, v1
    v_add_u32 v6, s34, v6
    v_lshrrev_b32 v8, 3, v1
    v_and_b32 v9, 7, v1
    v_xor_b32 v9, v9, v8
    v_lshlrev_b32 v13, 4, v9
    s_add_u32 s14, s14, s33
    v_add_u32 v8, s14, v8
    s_waitcnt lgkmcnt(0)
    """)
    for i in range(4):
        a(f'ds_read_b128 v[{48+4*i}:{51+4*i}], v6 offset:{1024*i}')
    for i in range(4):
        a(f'v_add_u32 v12, {8*i}, v8')
        a(f's_waitcnt lgkmcnt({3-i})')
        a(f'buffer_store_dwordx4 v[{48+4*i}:{51+4*i}], v[12:13], s[24:27], 0 idxen offen{SC1T}')
    stamp(a,4,15,36)
    if DEBUG_TM: a('s_waitcnt vmcnt(0)')
    stamp(a,5,15,36)
    stamp_store(a,15,36,8,9,0,3,14)
    a('s_endpgm')
    a.label('L1_end')
    a('s_endpgm')
    return a.finalize(), 96, 40, 32768+64

L_G=0; L_R0=28672; L_RS=43264; L_S=50432; L_RING=66816; L_GTAB=148736; L_WTOT=156928; L_PD=157184; L_WST=158208; L_AST=L_WST+2560; L_HX=L_AST+2048; L_END=L_HX+1024
NHS=9
def hstage_addr(f): return L_GTAB+1024*f if f<8 else L_HX
SLOT=5120
vI=16; vW3=24; vW6=32; vS1=40; vS2=41; vD2=64; vD1=(96,128); vE=160; vX=192; vXE=208; vX6=212; vSF=216; vONE=224
vHA=228; vEAr=232; vX6r=233; vC1=234; vSTa=235; vC2=236; vMK2=237; vEAc=238; vOne=239; vHP=240
vSTb=15; vCD=14
vRSa=248; vR0a=249; vR0e=250; vGe=251; vR0=252; vG=253; vA1=254; vA2=255; vEAi=10; vEAo=11
vZero=vONE+1
vTM=12
sH=4; sEA=8; sOF=12; sEN=16; sPOS=20; sWF=24; sO0=28; sO1=32; sHD=36; sSEL=100; sTA=40
sWS=44
sW0=46; sW1=47; sV=3; sG=101; sCNT=48; sBASE=49; sNT=50; sT=51; sRB=52; sNODE0=53; sMK=89

ABL=set(x[6:] for x in sys.argv if x.startswith('--abl=') ) | ({'fprio','trim','pk','xmap','off2','nozf'} - set(x[5:] for x in sys.argv if x.startswith('--no=')))
OPT=dict(x[6:].split(':') for x in sys.argv if x.startswith('--opt='))
def optl(k,d): return [int(v.replace('n','-')) for v in OPT[k].split(',')] if k in OPT else d
TRIMK='trim'; PF2K='pf2'; TBK='tbpf'; XMK='xmap'; OFF2='off2'; VMS='vmstat'
EAF=''.join(' '+x for x in OPT.get('eaf','').split('+') if x); HF=''.join(' '+x for x in OPT.get('hf','').split('+') if x)
NH_ = 0 if 'noh' in ABL else N
NE_ = 0 if 'noea' in ABL else E*32
def gen_k2():
    a=Asm()
    def st(i): stamp(a,i,vTM,98)
    a.label('egnn_main_kernel')
    a(f'''
    s_cmp_ge_u32 s2, {NBK}
    s_cbranch_scc1 L2_end
    ''')
    if 'xmap' in ABL:
        a('s_and_b32 s4, s2, 7\ns_lshl_b32 s4, s4, 5\ns_lshr_b32 s2, s2, 3\ns_or_b32 s2, s2, s4')
    if DEBUG_TM: a(f'v_mov_b32 v{vTM}, 0')
    st(0)
    a(f'''
    s_load_dwordx2 s[44:45], s[0:1], 80
    s_load_dwordx4 s[36:39], s[0:1], 0
    s_load_dwordx2 s[40:41], s[0:1], 16
    s_load_dwordx2 s[42:43], s[0:1], 64
    v_and_b32 v1, 63, v0
    v_lshrrev_b32 v2, 6, v0
    v_lshrrev_b32 v3, 1, v0
    v_readfirstlane_b32 s{sV}, v2
    ''')
    if 'rot' in OPT:
        a(f'''
        s_lshr_b32 s54, s2, 5
        s_mul_i32 s54, s54, {int(OPT['rot'])}
        v_cmp_gt_u32 vcc, {NCH}, v3
        v_add_u32 v9, s54, v3
        v_subrev_u32 v10, {NCH}, v9
        s_movk_i32 s55, {NCH}
        v_cmp_gt_u32 s[56:57], s55, v9
        s_nop 1
        v_cndmask_b32 v9, v10, v9, s[56:57]
        v_cndmask_b32 v3, v3, v9, vcc
        ''')
    a(f'''
    v_and_b32 v9, 1, v0
    s_lshl_b32 s54, s2, 4
    s_mov_b32 s55, {ROW}
    {'v_mov_b32 v96, s54' if OFF2 in ABL else 'v_lshl_add_u32 v96, v9, 4, s54'}
    v_mad_u32_u24 v96, v3, s55, v96
    s_mov_b32 s{sOF+2}, {NCH*ROW}
    s_mov_b32 s{sOF+3}, 0x20000
    s_waitcnt lgkmcnt(0)
    s_add_u32 s{sOF}, s44, {OFFS}
    s_addc_u32 s{sOF+1}, s45, 0
    buffer_load_dwordx4 {'v[4:7]' if OFF2 in ABL else 'v[104:107]'}, v96, s[{sOF}:{sOF+3}], 0 offen
    {f'buffer_load_ushort v8, v96, s[{sOF}:{sOF+3}], 0 offen offset:16' if OFF2 in ABL else ''}
    ''')
    st(16)
    a(f"""
    s_mov_b32 s{sPOS}, s38
    s_mov_b32 s{sPOS+1}, s39
    s_mov_b32 s{sPOS+2}, {N*6}
    s_mov_b32 s{sPOS+3}, 0x20000
    s_add_u32 s{sWF}, s44, {WF}
    s_addc_u32 s{sWF+1}, s45, 0
    s_mov_b32 s{sWF+2}, {WFSZ}
    s_mov_b32 s{sWF+3}, 0x20000
    s_mov_b32 s{sW0}, 0
    s_mov_b32 s{sW1}, {NCH}
    s_mov_b32 s63, 2
    v_lshlrev_b32 v96, 4, v1
    s_lshl_b32 s58, s{sV}, 10
    v_add_u32 v96, s58, v96
    """)
    PE=optl('pe',[5])[0]
    assert PE<=9
    def posdma(r):
        a(f"""
        s_add_u32 m0, s58, {L_RING+8192*r}
        v_add_u32 v97, {8192*r}, v96
        buffer_load_dwordx4 v97, s[{sPOS}:{sPOS+3}], 0 offen lds
        """)
    chunks=[f"""
    s_mov_b32 s{sH}, s36
    s_or_b32 s{sH+1}, s37, 0x800000
    s_mov_b32 s{sH+2}, {N}
    s_mov_b32 s{sH+3}, 0x20000
    s_mov_b32 s{sEA}, s40
    s_mov_b32 s{sEA+1}, s41
    s_mov_b32 s{sEA+2}, {E*32}
    s_mov_b32 s{sEA+3}, 0x20000
    s_add_u32 s{sEN}, s44, {ENT}
    s_addc_u32 s{sEN+1}, s45, 0
    s_mov_b32 s{sEN+2}, {NCH*CH*4}
    s_mov_b32 s{sEN+3}, 0x20000
    """, f"""
    s_mov_b32 s{sO0}, s42
    s_or_b32 s{sO0+1}, s43, 0x800000
    s_mov_b32 s{sO0+2}, {N}
    s_mov_b32 s{sO0+3}, 0x20000
    s_add_u32 s{sO1}, s42, {N*128}
    s_addc_u32 s{sO1+1}, s43, 0
    s_mov_b32 s{sO1+2}, {N*6}
    s_mov_b32 s{sO1+3}, 0x20000
    s_add_u32 s{sHD}, s44, {TB}
    s_addc_u32 s{sHD+1}, s45, 0
    s_or_b32 s{sHD+1}, s{sHD+1}, 0x800000
    s_mov_b32 s{sHD+2}, {N}
    s_mov_b32 s{sHD+3}, 0x20000
    """, f"""
    s_add_u32 s{sTA}, s44, {TA}
    s_addc_u32 s{sTA+1}, s45, 0
    s_or_b32 s{sTA+1}, s{sTA+1}, 0x800000
    s_mov_b32 s{sTA+2}, {N}
    s_mov_b32 s{sTA+3}, 0x20000
    s_mul_i32 s{sRB}, s{sV}, {2*SLOT}
    s_add_u32 s{sRB}, s{sRB}, {L_RING}
    s_mov_b32 s{sMK}, 0xffffffe0
    s_mov_b32 s{sSEL}, 0x01000100
    v_lshrrev_b32 v98, 5, v1
    v_and_b32 v101, 1, v1
    v_xor_b32 v101, v101, v98
    v_lshlrev_b32 v{vEAc}, 4, v101
    """, f"""
    v_and_b32 v101, 7, v1
    v_lshrrev_b32 v102, 4, v1
    v_xor_b32 v103, v101, v102
    v_lshlrev_b32 v{vHP+1}, 4, v103
    v_lshlrev_b32 v{vHP+5}, 4, v103
    v_add_u32 v102, 4, v102
    v_xor_b32 v103, v101, v102
    v_lshlrev_b32 v{vHP+3}, 4, v103
    v_lshlrev_b32 v{vHP+7}, 4, v103
    """, f"""
    v_mov_b32 v{vX6}, 0
    v_mov_b32 v{vX6+1}, 0
    v_mov_b32 v{vX6+2}, 0
    v_mov_b32 v{vX6+3}, 0
    v_mfma_f32_32x32x16_bf16 v[{vD2}:{vD2+15}], v[{vX6}:{vX6+3}], v[{vX6}:{vX6+3}], 0
    v_mfma_f32_32x32x16_bf16 v[{vD2+16}:{vD2+31}], v[{vX6}:{vX6+3}], v[{vX6}:{vX6+3}], 0
    """]
    for k in range(max(PE,len(chunks))):
        if k<PE: posdma(k)
        if k<len(chunks): a(chunks[k])
    a(f"""
    s_cmp_eq_u32 s{sV}, 2
    s_cselect_b32 s54, {WDO}, s58
    s_cselect_b32 s55, 2048, s58
    v_lshlrev_b32 v97, 4, v1
    v_add_u32 v97, s54, v97
    s_add_u32 m0, s55, {L_WST}
    s_cmp_gt_u32 s{sV}, 2
    s_cbranch_scc1 L2_nowst
    v_cmp_gt_u32 vcc, 32, v1
    s_cmp_eq_u32 s{sV}, 2
    s_cselect_b64 exec, vcc, -1
    buffer_load_dwordx4 v97, s[{sWF}:{sWF+3}], 0 offen lds
    s_mov_b64 exec, -1
    """)
    a.label('L2_nowst')
    st(17)
    if TBK in ABL:
        a(f'''
        {'s_and_b32 s54, s2, 31' if XMK in ABL else 's_lshr_b32 s54, s2, 3'}
        s_mul_i32 s54, s54, 391
        s_lshl_b32 s55, s{sV}, 6
        v_add_u32 v100, s55, v1
        v_cmp_gt_u32 vcc, 391, v100
        v_add_u32 v100, s54, v100
        v_mov_b32 v101, 0
        v_mov_b32 v102, -1
        v_cndmask_b32 v100, v102, v100, vcc
        buffer_load_dword v52, v[100:101], s[{sHD}:{sHD+3}], 0 idxen offen
        ''')
    st(18)
    st(1)
    a(f's_waitcnt vmcnt({min(PE,9)+(1 if TBK in ABL else 0)})')
    if OFF2 not in ABL:
        for q in range(4):
            a(f'v_mov_b32_dpp v{4+q}, v{104+q} quad_perm:[0,0,2,2] row_mask:0xf bank_mask:0xf')
        a('v_mov_b32_dpp v8, v104 quad_perm:[1,1,3,3] row_mask:0xf bank_mask:0xf')
        a('v_and_b32 v8, 0xffff, v8')
    st(19)
    a('s_branch L2_counts')
    a.label('L2_batch')
    a(f"""
    s_barrier
    v_lshlrev_b32 v96, 4, v1
    s_lshl_b32 s58, s{sV}, 10
    v_add_u32 v96, s58, v96
    """)
    for r in range(PE): posdma(r)
    a.label('L2_counts')
    a(f"""
    v_alignbit_b32 v100, v5, v4, 16
    v_alignbit_b32 v101, v6, v5, 16
    v_alignbit_b32 v102, v7, v6, 16
    v_alignbit_b32 v103, v8, v7, 16
    v_and_b32 v105, 0xffff, v4
    v_sub_u32 v104, v8, v105
    s_sub_u32 s54, s{sW1}, s{sW0}
    v_subrev_u32 v106, s{sW0}, v3
    v_cmp_gt_u32 vcc, s54, v106
    s_mov_b32 s55, {CH*4}
    v_lshlrev_b32 v107, 2, v105
    v_lshl_add_u32 v107, v9, 4, v107
    v_cndmask_b32 v104, 0, v104, vcc
    v_lshlrev_b32 v109, 2, v9
    v_sub_u32 v109, v104, v109
    v_max_i32 v109, 0, v109
    v_mad_u32_u24 v107, v3, s55, v107
    """)
    for i in range(4):
        a(f'v_cmp_lt_u32 s[{90+2*i}:{91+2*i}], {8*i}, v109')
    for i in range(4):
        a(f's_mov_b64 exec, s[{90+2*i}:{91+2*i}]')
        a(f's_cbranch_execz L2_e{i}')
        a(f'buffer_load_dwordx4 v[{192+4*i}:{195+4*i}], v107, s[{sEN}:{sEN+3}], 0 offen offset:{32*i}')
        a.label(f'L2_e{i}')
    a('s_mov_b64 exec, -1')
    st(2)
    a(f"""
    v_pk_sub_u16 v100, v100, v4
    v_pk_sub_u16 v101, v101, v5
    v_pk_sub_u16 v102, v102, v6
    v_pk_sub_u16 v103, v103, v7
    v_cmp_eq_u32 s[56:57], 0, v9
    """)
    for q in range(4):
        a(f'v_cndmask_b32 v{100+q}, 0, v{100+q}, vcc')
    for q in range(5):
        a(f'v_cndmask_b32 v{112+q}, 0, v{100+q}, s[56:57]')
    for sh in (1,2,4,8):
        for q in range(5):
            a(f'v_add_u32_dpp v{112+q}, v{112+q}, v{112+q} row_shr:{sh} row_mask:0xf bank_mask:0xf')
    for q in range(5):
        a(f'v_add_u32_dpp v{112+q}, v{112+q}, v{112+q} row_bcast:15 row_mask:0xa bank_mask:0xf')
    for q in range(5):
        a(f'v_add_u32_dpp v{112+q}, v{112+q}, v{112+q} row_bcast:31 row_mask:0xc bank_mask:0xf')
    st(21)
    a(f"""
    s_lshl_b32 s54, s{sV}, 5
    s_add_u32 s54, s54, {L_WTOT}
    v_mov_b32 v117, s54
    s_mov_b32 s56, 0
    s_brev_b32 s57, 1
    s_mov_b64 exec, s[56:57]
    ds_write_b128 v117, v[112:115]
    ds_write_b32 v117, v116 offset:16
    s_mov_b64 exec, -1
    v_and_b32 v118, 7, v1
    v_lshlrev_b32 v118, 5, v118
    v_add_u32 v118, {L_WTOT}, v118
    s_waitcnt lgkmcnt(0)
    s_barrier
    ds_read_b128 v[120:123], v118
    ds_read_b32 v124, v118 offset:16
    """)
    st(3)
    a('s_waitcnt lgkmcnt(0)')
    for sh in (1,2,4):
        for q in range(5):
            a(f'v_add_u32_dpp v{120+q}, v{120+q}, v{120+q} row_shr:{sh} row_mask:0xf bank_mask:0xf')
    for q in range(5):
        a(f'v_readlane_b32 s{58+q}, v{120+q}, 7')
    a(f's_sub_u32 s54, s{sV}, 1')
    a(f's_max_i32 s54, s54, 0')
    for q in range(4):
        a(f'v_readlane_b32 s{64+q}, v{120+q}, s54')
    a(f's_cmp_eq_u32 s{sV}, 0')
    for q in range(4):
        a(f's_cselect_b32 s{64+q}, 0, s{64+q}')
    for q in range(4):
        a(f's_and_b32 s{68+2*q}, s{58+q}, 0xffff')
        a(f's_lshr_b32 s{69+2*q}, s{58+q}, 16')
    a('s_mov_b32 s84, 0')
    for g in range(8):
        a(f"""
        s_mov_b32 s{76+g}, s84
        s_add_u32 s54, s{68+g}, 31
        s_andn2_b32 s54, s54, 31
        s_add_u32 s84, s84, s54
        """)
    a(f"""
    s_max_u32 s54, s84, s62
    s_cmp_le_u32 s54, {CAP}
    s_cbranch_scc1 L2_fits
    s_add_u32 s{sW1}, s{sW0}, 1
    s_waitcnt vmcnt(0) lgkmcnt(0)
    s_branch L2_batch
    """)
    a.label('L2_fits')
    a(f"""
    s_cmp_eq_u32 s63, 1
    s_cbranch_scc1 L2_pidone
    """)
    if 'nopi' in ABL:
        a(f's_mov_b32 s{sG}, s{sV}')
    else:
        for g in range(8):
            a(f's_lshl_b32 s54, s{68+g}, 3')
            a(f's_add_u32 s{90+g}, s54, {7-g}')
            a(f'v_writelane_b32 v126, s{90+g}, {g}')
        a('v_mov_b32 v127, 0')
        for h in range(2):
            for k in range(4):
                pr=(56,58,54,64)[k] if False else None
            for k in range(4):
                a(f'v_cmp_gt_u32 s[{(54,56,58,60)[k]}:{(54,56,58,60)[k]+1}], s{90+4*h+k}, v126')
            for k in range(4):
                a(f'v_addc_co_u32 v127, vcc, 0, v127, s[{(54,56,58,60)[k]}:{(54,56,58,60)[k]+1}]')
        a(f"""
        s_sub_u32 s54, 11, s{sV}
        s_cmp_lt_u32 s{sV}, 4
        s_cselect_b32 s54, s{sV}, s54
        v_cmp_eq_u32 vcc, s54, v127
        s_nop 3
        s_and_b32 s54, vcc_lo, 0xff
        s_ff1_i32_b32 s{sG}, s54
        """)
    a(f"""
    s_mul_i32 s{sNODE0}, s2, {BN}
    s_add_u32 s{sNODE0}, s{sNODE0}, s{sG}
    """)
    a.label('L2_pidone')
    a(f's_mov_b32 s{sCNT}, s68')
    a(f's_mov_b32 s{sBASE}, s76')
    for g in range(1,8):
        a(f"""
        s_cmp_eq_u32 s{sG}, {g}
        s_cselect_b32 s{sCNT}, s{68+g}, s{sCNT}
        s_cselect_b32 s{sBASE}, s{76+g}, s{sBASE}
        """)
    a(f"""
    s_add_u32 s{sNT}, s{sCNT}, 31
    s_lshr_b32 s{sNT}, s{sNT}, 5
    """)
    for q in range(4):
        a(f's_pack_ll_b32_b16 s{85+q}, s{76+2*q}, s{77+2*q}')
        a(f's_add_u32 s{85+q}, s{85+q}, s{64+q}')
        a(f's_add_u32 s{85+q}, s{85+q}, {CH | (CH<<16)}')
    a(f"""
    v_lshl_or_b32 v105, v105, 16, v105
    v_mul_u32_u24 v106, 0x100010, v9
    """)
    for q in range(4):
        a(f"""
        v_sub_u32 v{112+q}, v{112+q}, v{100+q}
        v_add_u32 v{112+q}, s{85+q}, v{112+q}
        v_sub_u32 v{120+q}, v{4+q}, v105
        v_sub_u32 v{112+q}, v{112+q}, v{120+q}
        v_lshl_add_u32 v{112+q}, v{112+q}, 2, v106
        """)
    a(f"""
    v_lshlrev_b32 v108, 4, v0
    v_add_u32 v108, {L_GTAB}, v108
    ds_write_b128 v108, v[112:115]
    v_mov_b32 v104, v109
    s_mov_b32 s54, {CH*32}
    v_mul_lo_u32 v110, v3, s54
    v_mov_b32 v111, {4*CH+4*CAP}
    v_lshlrev_b32 v96, 4, v1
    s_lshl_b32 s58, s{sV}, 10
    v_add_u32 v96, s58, v96
    s_waitcnt vmcnt(0)
    """)
    st(4)
    if PE<10:
        a(f"""
        v_lshlrev_b32 v96, 4, v1
        s_lshl_b32 s58, s{sV}, 10
        v_add_u32 v96, s58, v96
        """)
        for r in range(PE,10):
            if r==9:
                a(f's_cmp_ge_u32 s{sV}, 2\ns_cbranch_scc1 L2_posdone2')
            a(f"""
            s_add_u32 m0, s58, {L_RING+8192*r}
            v_add_u32 v97, {8192*r}, v96
            buffer_load_dwordx4 v97, s[{sPOS}:{sPOS+3}], 0 offen lds
            """)
        a.label('L2_posdone2')
    a(f"""
    s_cmp_eq_u32 s63, 1
    s_cbranch_scc1 L2_noA
    s_lshl_b32 s54, s{sV}, 10
    s_add_u32 s55, s54, {L_RING+75776}
    s_add_u32 s54, s54, {L_AST-6*1024}
    s_cmp_lt_u32 s{sV}, 6
    s_cselect_b32 s62, s55, s54
    v_lshrrev_b32 v120, 3, v1
    v_lshlrev_b32 v120, 3, v120
    v_add_u32 v121, s{sG}, v120
    v_add_u32 v120, s{sNODE0}, v120
    v_cmp_gt_u32 vcc, {BN}, v121
    v_mov_b32 v122, -1
    v_and_b32 v123, 7, v1
    v_lshlrev_b32 v123, 4, v123
    v_cndmask_b32 v122, v122, v120, vcc
    s_mov_b32 m0, s62
    s_nop 0
    buffer_load_dwordx4 v[122:123], s[{sTA}:{sTA+3}], 0 idxen offen lds
    """)
    a.label('L2_noA')
    st(20)
    def quad(qreg, i, dyn=False):
        for u in range(4):
            a(f'v_lshrrev_b32 v{140+u}, 29, v{qreg+u}')
            a(f'v_lshl_add_u32 v{140+u}, v{140+u}, 1, v108')
            a(f'ds_read_u16 v{144+u}, v{140+u}')
        for u in range(4):
            if dyn: a(f'v_cmp_lt_u32 s[{90+2*u}:{91+2*u}], {u}, v104')
            else:   a(f'v_cmp_lt_u32 s[{90+2*u}:{91+2*u}], {8*i+u}, v104')
        a('s_waitcnt lgkmcnt(0)')
        for u in range(4):
            if dyn: a(f'v_add_u32 v{144+u}, v{144+u}, v149')
            a(f'v_cndmask_b32 v{144+u}, v111, v{144+u}, s[{90+2*u}:{91+2*u}]')
        ko = 0 if dyn else 8*i
        for u in range(4):
            a(f'ds_write_b32 v{144+u}, v{qreg+u} offset:{L_R0-4*CH+4*(ko+u)}')
            a(f'ds_write_b32 v{144+u}, v110 offset:{L_S-4*CH+4*(ko+u)}')
    for i in range(4):
        quad(192+4*i, i)
        a(f'v_cmp_lt_u32 vcc, {8*(i+1)}, v104')
        a('s_cbranch_vccz L2_scat_done')
    a(f'''
    v_subrev_u32 v104, 32, v104
    v_cmp_gt_i32 vcc, 0, v104
    v_mov_b32 v149, 128
    v_add_u32 v107, 128, v107
    v_cndmask_b32 v104, v104, 0, vcc
    ''')
    a.label('L2_scat_loop')
    a(f'buffer_load_dwordx4 v[192:195], v107, s[{sEN}:{sEN+3}], 0 offen')
    a('s_waitcnt vmcnt(0)')
    quad(192, 0, dyn=True)
    a(f'''
    v_subrev_u32 v104, 8, v104
    v_add_u32 v149, 32, v149
    v_add_u32 v107, 32, v107
    v_cmp_gt_i32 vcc, 0, v104
    s_nop 1
    v_cndmask_b32 v104, v104, 0, vcc
    v_cmp_lt_u32 vcc, 0, v104
    s_cbranch_vccnz L2_scat_loop
    ''')
    a.label('L2_scat_done')
    st(5)
    a('''
    s_waitcnt vmcnt(0) lgkmcnt(0)
    s_barrier
    ''')
    st(6)
    if 'hst' in ABL:
        a(f"""
        s_lshl_b32 s54, s{sV}, 10
        v_lshlrev_b32 v97, 4, v1
        s_add_u32 s55, s54, {F_H1*1024}
        v_add_u32 v98, s55, v97
        s_add_u32 m0, s54, {L_GTAB}
        s_cmp_lg_u32 s{sV}, 0
        buffer_load_dwordx4 v98, s[{sWF}:{sWF+3}], 0 offen lds
        s_cbranch_scc1 L2_hst1
        v_add_u32 v98, {(F_H1+8)*1024}, v97
        s_mov_b32 m0, {L_HX}
        s_nop 0
        buffer_load_dwordx4 v98, s[{sWF}:{sWF+3}], 0 offen lds
        """)
        a.label('L2_hst1')
    a(f"""
    v_lshrrev_b32 v100, 2, v1
    v_lshlrev_b32 v100, 3, v100
    v_add_u32 v100, s{sNODE0}, v100
    v_mul_u32_u24 v100, 6, v100
    v_and_b32 v102, 3, v1
    v_lshl_add_u32 v100, v102, 1, v100
    v_add_u32 v100, {L_RING}, v100
    ds_read_u16 v101, v100
    s_cmp_eq_u32 s63, 1
    s_cbranch_scc1 L2_noC
    s_mov_b32 s63, 1
    v_lshlrev_b32 v96, 4, v1
    v_add_u32 v96, {L_WST}, v96
    ds_read_b128 v[{vW3}:{vW3+3}], v96
    ds_read_b128 v[{vW3+4}:{vW3+7}], v96 offset:1024
    v_and_b32 v120, 31, v1
    v_lshrrev_b32 v121, 5, v1
    v_lshlrev_b32 v122, 2, v120
    v_lshl_add_u32 v122, v121, 9, v122
    v_add_u32 v122, s62, v122
    """)
    for q in range(4):
        a(f'ds_read_b32 v{40+q}, v122 offset:{128*q}')
    a(f"""
    v_lshlrev_b32 v120, 3, v120
    v_add_u32 v120, {L_WST+2048}, v120
    ds_read_b64 v[44:45], v120
    v_cmp_gt_u32 vcc, 32, v1
    s_waitcnt lgkmcnt(0)
    v_cndmask_b32 v44, v44, 0, vcc
    v_cndmask_b32 v45, v45, 0, vcc
    """)
    for q in range(4):
        a(f'v_and_b32 v{vW6+q}, 0xffff, v{40+q}')
        a(f'v_lshrrev_b32 v{vW6+4+q}, 16, v{40+q}')
    a(f"""
    v_or_b32 v{vW6+3}, v{vW6+3}, v44
    v_or_b32 v{vW6+7}, v{vW6+7}, v45
    """)
    a.label('L2_noC')
    a(f"""
    s_lshl_b32 s54, s{sV}, 7
    s_add_u32 s54, s54, {L_PD}
    v_lshlrev_b32 v97, 2, v1
    v_add_u32 v97, s54, v97
    s_waitcnt lgkmcnt(0)
    v_lshlrev_b32 v101, 16, v101
    s_mov_b32 exec_hi, 0
    ds_write_b32 v97, v101
    s_mov_b64 exec, -1
    """)
    a(f'''
    s_lshl_b32 s54, s{sV}, 7
    s_add_u32 s54, s54, {L_PD}
    v_mov_b32 v98, s54
    v_mov_b32 v99, {L_RING}
    v_add_u32 v96, s{sBASE}, v1
    v_mov_b32 v97, v1
    s_mov_b32 s{sT}, 0
    s_mov_b32 s55, 0xffff0000
    s_movk_i32 s56, 0x7fff
    s_mov_b32 s{sHD+2}, {N}
    s_mov_b32 s{sEA+2}, {E*32}
    ''')
    a(f'''
    s_lshl_b32 s54, s{sNT}, 5
    s_sub_u32 s54, s54, 32
    v_add_u32 v100, s54, v1
    v_cmp_le_u32 s[58:59], s{sCNT}, v100
    v_cmp_gt_u32 vcc, 32, v1
    s_and_b64 vcc, vcc, s[58:59]
    s_cmp_eq_u32 s{sNT}, 0
    s_cbranch_scc1 L2_nodummy
    s_and_saveexec_b64 s[58:59], vcc
    s_cbranch_execz L2_dummy_restore
    v_add_u32 v100, s{sBASE}, v100
    v_lshlrev_b32 v101, 2, v100
    v_mov_b32 v102, 28
    ds_write_b32 v101, v102 offset:{L_R0}
    v_lshlrev_b32 v101, 1, v100
    v_mov_b32 v102, 0
    v_mov_b32 v103, 0
    ds_write_b16 v101, v102 offset:{L_RS}
    v_lshlrev_b32 v101, 3, v100
    ds_write_b64 v101, v[102:103] offset:{L_G}
    ''')
    a.label('L2_dummy_restore')
    a('s_mov_b64 exec, s[58:59]')
    a.label('L2_nodummy')
    def R(it,k): return 112+20*it+k
    def geo_pass(NI, first):
        for it in range(NI):
            a(f'ds_read_b32 v{R(it,1)}, v96 offset:{L_R0+256*it}')
            a(f'ds_read_b32 v{R(it,2)}, v96 offset:{L_S+256*it}')
        a('v_lshrrev_b32 v104, 1, v96')
        a('v_lshlrev_b32 v105, 1, v96')
        for it in range(NI):
            if it==0: a(f'v_cmp_lt_i32 s[90:91], 0, v97')
            elif it==1: a(f'v_cmp_lt_i32 s[92:93], 64, v97')
            else: a(f'v_cmp_lt_i32 s[{90+2*it}:{91+2*it}], s{57 if it==2 else 54}, v97')
        for it in range(NI):
            e=R(it,1); wb=R(it,2)
            a(f's_waitcnt lgkmcnt({2*(NI-1-it)+2*it})')
            a(f"""
            v_bfe_u32 v{R(it,3)}, v{e}, 15, 14
            v_and_b32 v{R(it,4)}, 7, v{e}
            v_mad_u32_u24 v{R(it,5)}, v{R(it,3)}, 6, v99
            v_lshl_add_u32 v{R(it,7)}, v{R(it,4)}, 4, v98
            v_and_b32 v{R(it,5)}, -4, v{R(it,5)}
            ds_read_b96 v[{R(it,8)}:{R(it,10)}], v{R(it,7)}
            ds_read2_b32 v[{R(it,12)}:{R(it,13)}], v{R(it,5)} offset1:1
            v_and_b32 v{R(it,5)}, s56, v{e}
            v_lshl_add_u32 v{wb}, v{R(it,5)}, 2, v{wb}
            v_lshlrev_b32 v{R(it,6)}, 4, v{R(it,3)}
            """)
        if first and 'nopf' not in ABL:
            a(f"""
            v_and_b32 v48, s{sMK}, v{R(0,2)}
            v_mov_b32 v51, 0
            v_mov_b32 v50, v{R(0,3)}
            s_mov_b32 exec_hi, 0
            buffer_load_dword v48, v48, s[{sEA}:{sEA+3}], 0 offen
            buffer_load_dword v49, v[50:51], s[{sHD}:{sHD+3}], 0 idxen offen
            s_mov_b64 exec, -1
            """)
        for it in range(NI):
            pd=R(it,8); ps=R(it,12); sh=R(it,6); t0=R(it,4); t1=R(it,5); t2=R(it,7); o=R(it,14); t3=R(it,17)
            a(f's_waitcnt lgkmcnt({2*(NI-1-it)+3*it})')
            a(f"""
            v_alignbit_b32 v{t0}, v{ps+1}, v{ps}, v{sh}
            v_lshrrev_b32 v{t2}, v{sh}, v{ps+1}
            v_lshlrev_b32 v{t1}, 16, v{t0}
            v_and_b32 v{t0}, s55, v{t0}
            v_lshlrev_b32 v{t2}, 16, v{t2}
            v_sub_f32 v{t1}, v{pd}, v{t1}
            v_sub_f32 v{t0}, v{pd+1}, v{t0}
            v_sub_f32 v{t2}, v{pd+2}, v{t2}
            v_mul_f32 v{t3}, v{t1}, v{t1}
            v_cvt_pk_bf16_f32 v{o+1}, v{t0}, v{t2}
            v_fmac_f32 v{t3}, v{t0}, v{t0}
            v_fmac_f32 v{t3}, v{t2}, v{t2}
            s_mov_b64 exec, s[{90+2*it}:{91+2*it}]
            ds_write_b32 v96, v{R(it,2)} offset:{L_R0+256*it}
            v_cvt_pk_bf16_f32 v{o}, v{t3}, v{t1}
            ds_write_b16 v104, v{R(it,3)} offset:{L_RS+128*it}
            ds_write_b64 v105, v[{o}:{o+1}] offset:{L_G+512*it}
            s_mov_b64 exec, -1
            """)
        a(f"""
        v_add_u32 v96, {256*NI}, v96
        v_subrev_u32 v97, {64*NI}, v97
        s_add_u32 s{sT}, s{sT}, {64*NI}
        """)
    a(f"""
    v_lshlrev_b32 v96, 2, v96
    v_sub_u32 v97, s{sCNT}, v97
    s_movk_i32 s57, 128
    s_movk_i32 s54, 192
    s_cmp_eq_u32 s{sCNT}, 0
    s_cbranch_scc1 L2_geo_done
    """)
    geo_pass(4, True)
    a.label('L2_geo_loop')
    a(f"""
    s_cmp_ge_u32 s{sT}, s{sCNT}
    s_cbranch_scc1 L2_geo_done
    """)
    geo_pass(3, False)
    a('s_branch L2_geo_loop')
    a.label('L2_geo_done')
    a(f"""
    v_lshrrev_b32 v97, 3, v1
    v_add_u32 v97, s{sBASE}, v97
    v_lshlrev_b32 v97, 1, v97
    v_add_u32 v{vRSa}, {L_RS}, v97
    v_lshrrev_b32 v97, 1, v1
    v_add_u32 v97, s{sBASE}, v97
    v_lshlrev_b32 v97, 2, v97
    v_add_u32 v{vR0a}, {L_R0}, v97
    v_and_b32 v97, 31, v1
    v_add_u32 v97, s{sBASE}, v97
    v_lshlrev_b32 v98, 2, v97
    v_add_u32 v{vR0e}, {L_R0}, v98
    v_lshrrev_b32 v98, 5, v1
    v_lshlrev_b32 v98, 2, v98
    v_lshl_add_u32 v98, v97, 3, v98
    v_add_u32 v{vGe}, {L_G}, v98
    s_mov_b32 s{sT}, 0
    s_sub_u32 s86, s{sNT}, 3
    s_sub_u32 s87, s{sNT}, 1
    s_sub_u32 s88, s{sNT}, 2
    """)
    for i in range(4): a(f'ds_read_u16 v{vHP+2*i}, v{vRSa} offset:{16*i}')
    a(f'ds_read_b32 v{vEAi}, v{vR0a}')
    a(f'ds_read_b32 v{vR0}, v{vR0e}')
    a(f'ds_read_b32 v{vG}, v{vGe}')
    if 'fprio' in ABL:
        PER=optl('per',[12])[0]
        a(f"""
        v_cvt_f32_u32 v96, s{sNT}
        v_rcp_f32 v96, v96
        s_nop 0
        v_mul_f32 v96, {f32bits(float(PER*65536*(2 if TRIMK in ABL else 1)))}, v96
        v_cvt_u32_f32 v96, v96
        s_nop 0
        v_readfirstlane_b32 s85, v96
        s_mov_b32 s84, 0
        s_sub_u32 s84, s84, s85
        """)
    a(f"""
    s_lshl_b32 s54, s{sV}, 11
    s_add_u32 s54, s54, {L_S}
    v_lshlrev_b32 v96, 4, v1
    v_add_u32 v96, s54, v96
    v_mov_b32 v100, 0
    v_mov_b32 v101, 0
    v_mov_b32 v102, 0
    v_mov_b32 v103, 0
    v_and_or_b32 v{vEAo}, v{vEAi}, s{sMK}, v{vEAc}
    """)
    if 'hst' in ABL:
        a(f"""
        s_cmp_eq_u32 s{sCNT}, 0
        s_cbranch_scc1 L2_hw0
        s_waitcnt vmcnt({0 if 'nopf' in ABL else 2})
        s_branch L2_hw1
        """)
        a.label('L2_hw0')
        a('s_waitcnt vmcnt(0)')
        a.label('L2_hw1')
    a(f"""
    s_waitcnt lgkmcnt(0)
    s_barrier
    """)
    st(7)
    a(f"""
    ds_write_b128 v96, v[100:103]
    ds_write_b128 v96, v[100:103] offset:1024
    """)
    if 'lone' in ABL:
        a(f's_cmp_ge_u32 s{sV}, 4\ns_cselect_b32 s{sNT}, 0, s{sNT}')
    a(f"""
    s_cmp_eq_u32 s{sNT}, 0
    s_cbranch_scc1 L2_notiles
    """)
    def idx_reads(toff):
        return [f'ds_read_u16 v{vHP+2*i}, v{vRSa} offset:{64*toff+16*i}' for i in range(4)] + \
               [f'ds_read_b32 v{vEAi}, v{vR0a} offset:{128*toff}']
    def rec_reads(toff):
        return [f'ds_read_b32 v{vR0}, v{vR0e} offset:{128*toff}', f'ds_read_b32 v{vG}, v{vGe} offset:{256*toff}']
    def srd_select(delta):
        return [f's_add_u32 s54, s{sT}, {delta}\ns_cmp_lt_u32 s54, s{sNT}\ns_cselect_b32 s{sHD+2}, {NH_}, 0\ns_cselect_b32 s{sEA+2}, {NE_}, 0']
    def dma2(slot):
        r=[(f'v_and_or_b32 v{vEAo}, v{vEAi}, s{sMK}, v{vEAc}\ns_add_u32 m0, s{sRB}, {slot*SLOT+4096}', f'buffer_load_dwordx4 v{vEAo}, s[{sEA}:{sEA+3}], 0 offen{EAF} lds')]
        for i in range(4):
            r.append((f's_add_u32 m0, s{sRB}, {slot*SLOT+1024*i}', f'buffer_load_dwordx4 v[{vHP+2*i}:{vHP+2*i+1}], s[{sHD}:{sHD+3}], 0 idxen offen{HF} lds'))
        return r
    def dma(slot):
        return [x+'\n'+y for x,y in dma2(slot)]
    def x_reads(slot):
        return [f'ds_read_b128 v[{vX+4*s}:{vX+4*s+3}], v{vHA+s} offset:{slot*SLOT}' for s in range(4)] + \
               [f'ds_read_b128 v[{vXE}:{vXE+3}], v{vEAr} offset:{slot*SLOT}']
    def s_addr(): return [f'v_bitop3_b32 v{vA1}, v{vR0}, 28, v{vC1} bitop3:0x6a', f'v_bfi_b32 v{vS1}, v{vMK2}, v{vG}, v{vOne}', f'v_perm_b32 v{vS2}, v{vG}, v{vG}, s{sSEL}']
    def s_writes(): return [f'ds_write_b32 v{vA1}, v{vS1}', f'ds_write_b32 v{vCD}, v{vS2}']
    def x6_read(): return [f'ds_read_b128 v[{vX6}:{vX6+3}], v{vX6r}']
    def sf_reads():
        r=[]
        for s2 in range(2):
            r.append(f'ds_read_b64_tr_b16 v[{vSF+4*s2}:{vSF+4*s2+1}], v{vSTa} offset:{1024*s2}')
            r.append(f'ds_read_b64_tr_b16 v[{vSF+4*s2+2}:{vSF+4*s2+3}], v{vSTb} offset:{1024*s2}')
        return r
    def s_restore(): return [f'ds_write_b32 v{vA1}, v{vZero}']
    def mfma1(dst):
        r=[]
        for blk in range(2):
            D=f'v[{dst+16*blk}:{dst+16*blk+15}]'
            for sp in range(2):
                C = D if sp>0 else '0'
                s_=2*blk+sp
                r.append(f'v_mfma_f32_32x32x16_bf16 {D}, v[{vX+4*s_}:{vX+4*s_+3}], v[{vI+4*sp}:{vI+4*sp+3}], {C}')
            r.append(f'v_mfma_f32_32x32x16_bf16 {D}, v[{vXE}:{vXE+3}], v[{vW3+4*blk}:{vW3+4*blk+3}], {D}')
            r.append(f'v_mfma_f32_32x32x16_bf16 {D}, v[{vX6}:{vX6+3}], v[{vW6+4*blk}:{vW6+4*blk+3}], {D}')
        return r
    ONE=f'v[{vONE}:{vONE+3}]'
    def plus1(blk):
        Eb=f'v[{vE+16*blk}:{vE+16*blk+15}]'
        return f'v_mfma_f32_32x32x16_bf16 {Eb}, {ONE}, {ONE}, {Eb}'
    def mfma2(cur,blk,s2):
        D=f'v[{vD2+16*blk}:{vD2+16*blk+15}]'; m=cur+8*blk+4*s2
        return f'v_mfma_f32_32x32x16_bf16 {D}, v[{m}:{m+3}], v[{vSF+4*s2}:{vSF+4*s2+3}], {D}'
    def keep(x):
        if 'nomfma' in ABL and x.startswith('v_mfma'): return False
        if 'nolds' in ABL and x.startswith('ds_'): return False
        if 'nodma' in ABL and 'buffer_load' in x: return False
        if 'notrans' in ABL and x.startswith(('v_exp','v_rcp')): return False
        if 'novalu' in ABL and x.startswith(('v_exp','v_rcp','v_mul','v_cvt','v_pk_mul')): return False
        return True
    def emit(backbone, inserts):
        backbone=[x if keep(x) else 's_nop 0' for x in backbone]
        inserts={k:[x for x in v if keep(x)] for k,v in inserts.items()}
        for k_ in sorted(k for k in inserts if k<0):
            for s_ in inserts[k_]: a(s_)
        for i,ins in enumerate(backbone):
            a(ins)
            for s_ in inserts.get(i,[]): a(s_)
    nlab=[0]
    PK='pk' in ABL
    DMAPOS=optl('dma',[37,48,60,70,82] if PK else [41,52,63,76,92])
    M1POS=optl('m1',[37,40,43,46,49,52,55,58] if PK else [42,46,50,54,58,62,68,74])
    SFPOS=optl('sf',[0,2,4,6]); RSPOS=optl('rs',[8])[0]; SAPOS=optl('sa',[9,10,11]); SWPOS=optl('sw',[12,13]); X6POS=optl('x6',[14])[0]
    VMPOS=optl('vm',[16])[0]; XPOS=optl('x',[16,18,20,22,24]); RECPOS=optl('rec',[26,27]); IDXPOS=optl('idx',[28,29,30,31,32])
    LGPOS=optl('lg',[36] if PK else [40])[0]; M2POS=optl('m2',[85,89,93,95] if PK else [89,95,111,111]); P1POS=optl('p1',[17,33])
    def body(p, steady, extra_first=None):
        cur=vD1[p]; nxt=vD1[1-p]
        bb=[]
        for blk in range(2):
            bb += [f'v_exp_f32 v{vE+16*blk+i}, v{cur+16*blk+i}' for i in range(16)]
        for blk in range(2):
            bb += [f'v_rcp_f32 v{vE+16*blk+i}, v{vE+16*blk+i}' for i in range(16)]
        if 'pk' in ABL:
            bb += [f'v_pk_mul_f32 v[{vE+2*i}:{vE+2*i+1}], v[{vE+2*i}:{vE+2*i+1}], v[{cur+2*i}:{cur+2*i+1}]' for i in range(16)]
            bb += [f'v_cvt_pk_bf16_f32 v{cur+q}, v{vE+2*q}, v{vE+2*q+1}' for q in range(16)]
        else:
            bb += [f'v_mul_f32 v{vE+i}, v{vE+i}, v{cur+i}' for i in range(16)]
            bb += [f'v_cvt_pk_bf16_f32 v{cur+q}, v{vE+2*q}, v{vE+2*q+1}' for q in range(8)]
            bb += [f'v_mul_f32 v{vE+16+i}, v{vE+16+i}, v{cur+16+i}' for i in range(16)]
            bb += [f'v_cvt_pk_bf16_f32 v{cur+8+q}, v{vE+16+2*q}, v{vE+16+2*q+1}' for q in range(8)]
        ins={}
        def put(pos,x):
            ins.setdefault(pos,[]).append(x)
        if not ('trim' in ABL and steady): put(-100,'s_waitcnt lgkmcnt(0)')
        if 'prio' in ABL:
            put(-99,f'''s_and_b32 s54, s{sT}, 2
            s_cmp_eq_u32 s54, 0
            s_cbranch_scc1 Lp{nlab[0]}a
            s_setprio {1-p}
            s_branch Lp{nlab[0]}b
            Lp{nlab[0]}a:
            s_setprio {3-p}
            Lp{nlab[0]}b:''')
            nlab[0]+=1
        if 'fprio' in ABL and not ('trim' in ABL and p==1):
            n=nlab[0]
            put(-99,f'''s_add_u32 s84, s84, s85
            s_bitcmp1_b32 s84, 17
            s_cbranch_scc1 Lp{n}h
            s_bitcmp1_b32 s84, 16
            s_cbranch_scc1 Lp{n}a
            s_setprio 3
            s_branch Lp{n}z
            Lp{n}a:
            s_setprio 2
            s_branch Lp{n}z
            Lp{n}h:
            s_bitcmp1_b32 s84, 16
            s_cbranch_scc1 Lp{n}b
            s_setprio 1
            s_branch Lp{n}z
            Lp{n}b:
            s_setprio 0
            Lp{n}z:''')
            nlab[0]+=1
        if steady and p==0:
            n=nlab[0]; nlab[0]+=1
            if 'nozf' in ABL:
                put(0,f's_cmp_lg_u32 s{sT}, 0\ns_cbranch_scc1 Ld{n}\ns_cmp_lt_u32 s{sNT}, 3\ns_cbranch_scc1 Ld{n}\n'+'\n'.join(dma(0))+f'\nLd{n}:')
            else:
                put(0,f's_cmp_lg_u32 s{sT}, 0\ns_cbranch_scc1 Ld{n}\n'+'\n'.join(dma(0))+f'\nLd{n}:')
        for x,q in zip(sf_reads(),SFPOS): put(q,x)
        put(RSPOS,s_restore()[0])
        if extra_first:
            for x in extra_first: put(RSPOS+4,x)
        put(P1POS[0],plus1(0))
        put(P1POS[1],plus1(1))
        if steady:
            for x,q in zip(s_addr(),SAPOS): put(q,x)
            for x,q in zip(s_writes(),SWPOS): put(q,x)
            put(X6POS,x6_read()[0])
            if 'nozf' in ABL:
                n=nlab[0]; nlab[0]+=1
                if 'vmstat' in ABL:
                    put(VMPOS,'s_waitcnt lgkmcnt(0)\ns_memtime s[98:99]\ns_waitcnt lgkmcnt(0)\ns_mov_b32 s62, s98')
                put(VMPOS,f's_cmp_lt_i32 s{sT}, s88\ns_waitcnt vmcnt(5)\ns_cbranch_scc1 Lw{n}\ns_waitcnt vmcnt(0)\nLw{n}:')
                if 'vmstat' in ABL:
                    put(VMPOS,f's_memtime s[98:99]\ns_waitcnt lgkmcnt(0)\ns_sub_u32 s98, s98, s62\nv_readlane_b32 s99, v{vTM}, 24\ns_add_u32 s98, s98, s99\nv_writelane_b32 v{vTM}, s98, 24')
            else: put(VMPOS,'s_waitcnt vmcnt(5)')
            for x,q in zip(x_reads(1-p),XPOS): put(q,x)
            for x,q in zip(rec_reads(p+2),RECPOS): put(q,x)
            for x,q in zip(idx_reads(p+3),IDXPOS): put(q,x)
            if 'nozf' in ABL: pass
            elif 'trim' in ABL:
                n=nlab[0]; nlab[0]+=1
                put(LGPOS-2,f's_cmp_lt_i32 s{sT}, s86\ns_cbranch_scc1 Lz{n}\ns_mov_b32 s{sHD+2}, 0\ns_mov_b32 s{sEA+2}, 0\nLz{n}:')
            else: put(LGPOS-2,srd_select(3)[0])
            put(LGPOS,'s_waitcnt lgkmcnt(0)')
            if 'nozf' in ABL:
                n=nlab[0]; nlab[0]+=1
                put(DMAPOS[0],f's_cmp_lt_i32 s{sT}, s86\ns_cbranch_scc0 Lnd{n}\n'+'\n'.join(dma(1-p))+f'\nLnd{n}:')
            else:
              for (x,y),q in zip(dma2(1-p),DMAPOS):
                if q>0 and q-1>LGPOS-1 and 'trim' in ABL: put(q-1,x); put(q,y)
                else: put(q,x+'\n'+y)
            for x,q in zip(mfma1(nxt),M1POS): put(q,x)
        for (b_,s_),q in zip(((0,0),(0,1),(1,0),(1,1)),M2POS): put(q,mfma2(cur,b_,s_))
        emit(bb,ins)
    def late_consts(a):
        a(f'''
        v_and_b32 v97, 31, v1
        v_lshrrev_b32 v98, 5, v1
        v_bfe_u32 v99, v97, 1, 3
        v_lshlrev_b32 v100, 7, v97
        v_add_u32 v100, s{sRB}, v100
        ''')
        for s in range(4):
            a(f'''
            v_add_u32 v101, {2*s}, v98
            v_xor_b32 v101, v101, v99
            v_lshl_add_u32 v{vHA+s}, v101, 4, v100
            ''')
        a(f'''
        v_lshrrev_b32 v101, 4, v97
        v_xor_b32 v101, v101, v98
        v_lshlrev_b32 v101, 4, v101
        v_lshl_add_u32 v101, v97, 5, v101
        v_add_u32 v101, s{sRB}, v101
        v_add_u32 v{vEAr}, 4096, v101
        s_lshl_b32 s57, s{sV}, 11
        s_add_u32 s57, s57, {L_S}
        v_lshlrev_b32 v101, 6, v97
        v_add_u32 v101, s57, v101
        v_bfe_u32 v102, v97, 2, 2
        v_xor_b32 v103, v98, v102
        v_lshl_add_u32 v{vX6r}, v103, 4, v101
        v_lshlrev_b32 v103, 1, v98
        v_xor_b32 v104, v103, v102
        v_lshl_add_u32 v{vC1}, v104, 4, v101
        v_add_u32 v103, 1, v103
        v_xor_b32 v104, v103, v102
        v_lshl_add_u32 v104, v104, 4, v101
        v_add_u32 v{vCD}, 12, v104
        v_cmp_gt_u32 vcc, 32, v1
        v_mov_b32 v103, 0xffff0000
        v_mov_b32 v104, -1
        v_cndmask_b32 v{vMK2}, v104, v103, vcc
        v_mov_b32 v{vOne}, 0x3f80
        v_mov_b32 v{vONE+1}, 0
        v_mov_b32 v{vONE+2}, 0
        v_mov_b32 v{vONE+3}, 0
        v_cndmask_b32 v{vONE}, 0, v{vOne}, vcc
        v_lshlrev_b32 v101, 3, v98
        v_sub_u32 v101, v97, v101
        v_and_b32 v102, 1, v101
        v_lshlrev_b32 v102, 4, v102
        v_lshlrev_b32 v102, v102, v{vOne}
        v_ashrrev_i32 v101, 1, v101
        ''')
        for k in range(8):
            q=8*(k>>2)+(k&3)
            a(f'v_cmp_eq_u32 s[{90+2*(k&3)}:{91+2*(k&3)}], {q}, v101')
            if (k&3)==3:
                for kk in range(k-3,k+1):
                    a(f'v_cndmask_b32 v{vI+kk}, 0, v102, s[{90+2*(kk&3)}:{91+2*(kk&3)}]')
        a(f'''
        v_and_b32 v101, 15, v1
        v_lshrrev_b32 v101, 2, v101
        v_lshl_add_u32 v101, v98, 2, v101
        v_lshlrev_b32 v101, 6, v101
        v_and_b32 v102, 1, v1
        v_lshl_add_u32 v101, v102, 3, v101
        v_add_u32 v101, s57, v101
        v_bfe_u32 v102, v1, 4, 1
        v_bfe_u32 v103, v1, 1, 1
        v_lshl_add_u32 v102, v102, 1, v103
        v_xor_b32 v103, v102, v98
        v_lshl_add_u32 v{vSTa}, v103, 4, v101
        v_add_u32 v103, 2, v98
        v_xor_b32 v103, v102, v103
        v_lshl_add_u32 v103, v103, 4, v101
        v_add_u32 v{vSTb}, 512, v103
        ''')

    lc=Asm(); late_consts(lc); lcl=list(lc.lines); per=(len(lcl)+9)//10
    def dma_lc(slot,k0):
        for k,x in enumerate(dma(slot)):
            a(x)
            if 'ilc' in ABL:
                for y in lcl[(k0+k)*per:(k0+k+1)*per]: a(y)
    a(f's_mov_b32 s{sHD+2}, {N}')
    a(f's_mov_b32 s{sEA+2}, {E*32}')
    if 'rampb' in ABL:
        dma_lc(0,0)
        st(13+18)
        for x in idx_reads(1): a(x)
        for y in lcl: a(y)
        for x in s_addr(): a(x)
        for x in s_writes(): a(x)
        for x in x6_read(): a(x)
        st(15)
        a('s_waitcnt vmcnt(0)')
        st(30)
        for x in x_reads(0): a(x)
        for x in rec_reads(1): a(x)
        a('s_waitcnt lgkmcnt(0)')
        for x in mfma1(vD1[0]): a(x)
        a(f's_cmp_lt_u32 s{sNT}, 2\ns_cbranch_scc1 L2_nod1')
        for x in dma(1): a(x)
        a.label('L2_nod1')
        st(14)
        for x in idx_reads(2): a(x)
        a('s_waitcnt lgkmcnt(0)')
    else:
        dma_lc(0,0)
        st(13+18)
        for x in idx_reads(1): a(x)
        if 'nozf' in ABL:
            a(f's_cmp_lt_u32 s{sNT}, 2\ns_cbranch_scc1 L2_nod1')
        else: a(srd_select(1)[0])
        a('s_waitcnt lgkmcnt(0)')
        dma_lc(1,5)
        if 'nozf' in ABL: a.label('L2_nod1')
        st(14)
        for x in idx_reads(2): a(x)
        if 'nozf' not in ABL: a(srd_select(2)[0])
        if 'ilc' not in ABL:
            for y in lcl: a(y)
        for x in s_addr(): a(x)
        for x in s_writes(): a(x)
        for x in x6_read(): a(x)
        st(15)
        if 'nozf' in ABL:
            a(f's_cmp_gt_u32 s{sNT}, 1\ns_waitcnt vmcnt(5)\ns_cbranch_scc1 L2_w1\ns_waitcnt vmcnt(0)')
            a.label('L2_w1')
        else: a('s_waitcnt vmcnt(5)')
        st(30)
        for x in x_reads(0): a(x)
        for x in rec_reads(1): a(x)
        a('s_waitcnt lgkmcnt(0)')
        for x in mfma1(vD1[0]): a(x)
    st(8)
    stampc(a,12,vTM,98)
    if DEBUG_TM: a(f'v_writelane_b32 v{vTM}, s{sNT}, 22\nv_writelane_b32 v{vTM}, s{sG}, 23\ns_getreg_b32 s98, hwreg(HW_REG_HW_ID)\nv_writelane_b32 v{vTM}, s98, {21 if VMS in ABL else 24}')
    JM=[0,1,4,5]
    RESV=[[232,233,234,236],[237,238,252,253]]
    WXV=[192,196,200,204,208,212,228,248]
    def epi_prefetch(p):
        nxt=vD1[1-p]
        r=[]
        r.append('v_lshlrev_b32 v10, 4, v1')
        for ff in range(16):
            dst = 16+4*ff if ff<8 else nxt+4*(ff-8)
            if 'hst' in ABL and ff<NHS:
                r.append(f'v_add_u32 v9, {hstage_addr(ff)}, v10\nds_read_b128 v[{dst}:{dst+3}], v9')
            else:
                r.append(f'v_add_u32 v9, {(F_H1+ff)*1024}, v10\nbuffer_load_dwordx4 v[{dst}:{dst+3}], v9, s[{sWF}:{sWF+3}], 0 offen')
        r.append(f"""
        v_lshrrev_b32 v9, 3, v1
        v_lshlrev_b32 v9, 3, v9
        v_add_u32 v3, s{sG}, v9
        v_add_u32 v9, s{sNODE0}, v9
        v_cmp_gt_u32 vcc, {BN}, v3
        v_mov_b32 v4, -1
        v_and_b32 v241, 7, v1
        v_lshlrev_b32 v241, 4, v241
        v_cndmask_b32 v240, v4, v9, vcc
        """)
        r.append(f"""
        v_bfe_u32 v9, v1, 1, 3
        v_lshlrev_b32 v9, 3, v9
        v_add_u32 v3, s{sG}, v9
        v_add_u32 v9, s{sNODE0}, v9
        v_bfe_u32 v5, v1, 4, 1
        v_and_b32 v8, 1, v1
        v_lshl_add_u32 v5, v5, 1, v8
        v_cmp_gt_u32 vcc, {BN}, v3
        v_subrev_u32 v5, 1, v5
        v_cmp_gt_u32 s[56:57], 3, v5
        v_mul_u32_u24 v9, 6, v9
        s_and_b64 vcc, vcc, s[56:57]
        v_cmp_gt_u32 s[56:57], 32, v1
        v_lshl_add_u32 v9, v5, 1, v9
        v_mov_b32 v4, 0x7fffff00
        s_and_b64 vcc, vcc, s[56:57]
        v_cndmask_b32 v10, v4, v9, vcc
        buffer_load_ushort v11, v10, s[{sPOS}:{sPOS+3}], 0 offen
        """)
        return r
    def epi_rows():
        return f"""s_waitcnt lgkmcnt(0)
        s_lshl_b32 s62, s{sV}, 11
        s_add_u32 s62, s62, {L_S}
        s_mov_b32 m0, s62
        s_nop 0
        buffer_load_dwordx4 v[240:241], s[{sH}:{sH+3}], 0 idxen offen lds"""
    def epilogue(p):
        nxt=vD1[1-p]; cur=vD1[p]
        pk=vE; T=vE+16; acc=vE+24
        a(f"""
        v_and_b32 v3, 31, v1
        v_lshrrev_b32 v4, 5, v1
        v_bfe_u32 v5, v1, 1, 3
        v_lshlrev_b32 v5, 7, v5
        v_lshl_add_u32 v5, v4, 4, v5
        v_add_u32 v5, s62, v5
        v_lshlrev_b32 v6, 7, v4
        v_add_u32 v6, {L_WST+2048+256}, v6
        v_lshlrev_b32 v7, 1, v3
        v_lshl_add_u32 v7, v4, 8, v7
        v_add_u32 v7, s62, v7
        s_mov_b32 s54, {f32bits(-math.log(2.0))}
        s_mov_b32 s55, s54
        s_waitcnt vmcnt(0)
        """)
        for s_ in range(4):
            a(f'ds_read_b128 v[{48+4*s_}:{51+4*s_}], v5 offset:{32*s_}')
        for f in range(8):
            a(f'ds_read_b128 v[{WXV[f]}:{WXV[f]+3}], v6 offset:{16*f}')
        for i in range(16):
            a(f'v_pk_mul_f32 v[{vD2+2*i}:{vD2+2*i+1}], v[{vD2+2*i}:{vD2+2*i+1}], s[54:55]')
        a('s_waitcnt lgkmcnt(8)')
        for b2 in range(2):
            D=f'v[{cur+16*b2}:{cur+16*b2+15}]'
            for s_ in range(4):
                C = D if s_>0 else '0'
                a(f'v_mfma_f32_32x32x16_bf16 {D}, v[{48+4*s_}:{51+4*s_}], v[{16+4*(2*s_+b2)}:{19+4*(2*s_+b2)}], {C}')
            if b2==0:
                for blk in range(2):
                    for q in range(8):
                        a(f'v_cvt_pk_bf16_f32 v{pk+8*blk+q}, v{vD2+16*blk+2*q}, v{vD2+16*blk+2*q+1}')
        for b2 in range(2):
            for m in range(4):
                a(f'ds_read_u16 v{RESV[b2][m]}, v7 offset:{128*JM[m]+64*b2}')
        for b2 in range(2):
            D=f'v[{cur+16*b2}:{cur+16*b2+15}]'
            for blk in range(2):
                for sp in range(2):
                    f=(blk*2+sp)*2+b2
                    a(f'v_mfma_f32_32x32x16_bf16 {D}, v[{pk+8*blk+4*sp}:{pk+8*blk+4*sp+3}], v[{nxt+4*f}:{nxt+4*f+3}], {D}')
            if b2==0:
                a('s_waitcnt lgkmcnt(8)')
                a(f'v_mul_f32 v{acc}, v{vD2}, v{WXV[0]}')
                a(f'v_mul_f32 v{acc+1}, v{vD2+1}, v{WXV[0]+1}')
                for i in range(2,32):
                    a(f'v_fmac_f32 v{acc+(i&1)}, v{vD2+i}, v{WXV[i>>2]+(i&3)}')
                a(f'v_add_f32 v{acc}, v{acc}, v{acc+1}')
                a(f'v_mov_b32 v{acc+1}, v{acc}')
        a(f'v_permlane32_swap_b32 v{acc}, v{acc+1}')
        a(f"""
        v_lshlrev_b32 v11, 16, v11
        v_add_f32 v{acc}, v{acc}, v{acc+1}
        v_add_f32 v11, v11, v{acc}
        v_cvt_pk_bf16_f32 v11, v11, v11
        buffer_store_short v11, v10, s[{sO1}:{sO1+3}], 0 offen
        s_mov_b32 s54, {f32bits(-LOG2E)}
        """)
        for b2 in range(2):
            for m in range(4):
                a(f'v_mul_f32 v{T+4*b2+m}, s54, v{cur+16*b2+2*m}')
        for k in range(8): a(f'v_exp_f32 v{T+k}, v{T+k}')
        for k in range(8): a(f'v_add_f32 v{T+k}, 1.0, v{T+k}')
        for k in range(8): a(f'v_rcp_f32 v{T+k}, v{T+k}')
        a('s_waitcnt lgkmcnt(0)')
        for b2 in range(2):
            for m in range(4):
                x=cur+16*b2+2*m; t=T+4*b2+m; hh=RESV[b2][m]
                a(f'v_lshlrev_b32 v{hh}, 16, v{hh}')
                a(f'v_fma_f32 v{t}, v{x}, v{t}, v{hh}')
                a(f'v_cvt_pk_bf16_f32 v{t}, v{t}, v{t}')
        for b2 in range(2):
            for m in range(4):
                a(f'ds_write_b16 v7, v{T+4*b2+m} offset:{1024+128*JM[m]+64*b2}')
        a(f"""
        v_lshlrev_b32 v6, 4, v1
        v_add_u32 v6, s62, v6
        ds_read_b128 v[48:51], v6 offset:1024
        s_waitcnt lgkmcnt(0)
        buffer_store_dwordx4 v[48:51], v[240:241], s[{sO0}:{sO0+3}], 0 idxen offen{SC1O}
        """)
        st(10)
        if DEBUG_TM: a('s_waitcnt vmcnt(0)')
        st(11)
        stamp_store(a,vTM,98,44,45,0x80000,sV,254)
        a('s_endpgm')
    for p in range(2):
        a.label(f'L2_s{p}')
        if 'trim' in ABL:
            a(f's_cmp_ge_i32 s{sT}, s87\ns_cbranch_scc1 L2_l{p}')
        else:
            a(f'''
            s_add_u32 s54, s{sT}, 1
            s_cmp_ge_u32 s54, s{sNT}
            s_cbranch_scc1 L2_l{p}
            ''')
        if DEBUG_TM and p==0:
            for tt,ix in ((2,25),(4,26),(6,27),(8,28),(10,29)):
                a(f's_cmp_lg_u32 s{sT}, {tt}\ns_cbranch_scc1 Lst{ix}')
                stampc(a,ix,vTM,98)
                a.label(f'Lst{ix}')
        body(p, True)
        a(f's_add_u32 s{sT}, s{sT}, 1')
        if p==1:
            a(f'''
            v_add_u32 v{vRSa}, 128, v{vRSa}
            v_add_u32 v{vR0a}, 256, v{vR0a}
            v_add_u32 v{vR0e}, 256, v{vR0e}
            v_add_u32 v{vGe}, 512, v{vGe}
            s_branch L2_s0
            ''')
    for p in range(2):
        a.label(f'L2_l{p}')
        a(f'''
        s_cmp_lt_u32 s{sW1}, {NCH}
        s_cbranch_scc1 L2_l{p}n
        ''')
        body(p, False, None) if False else None
        for x in epi_prefetch(p): a(x)
        body(p, False, [epi_rows()])
        st(9)
        stampc(a,13,vTM,98)
        epilogue(p)
        a.label(f'L2_l{p}n')
        body(p, False)
        a('s_branch L2_nextbatch')
    a.label('L2_notiles')
    a(f'''
    s_cmp_lt_u32 s{sW1}, {NCH}
    s_cbranch_scc1 L2_nextbatch
    ''')
    for x in epi_prefetch(0): a(x)
    a(epi_rows())
    st(9)
    epilogue(0)
    a.label('L2_nextbatch')
    a(f'''
    s_waitcnt vmcnt(0) lgkmcnt(0)
    s_mov_b32 s{sW0}, s{sW1}
    s_add_u32 s{sW1}, s{sW1}, 1
    s_branch L2_batch
    ''')
    a.label('L2_end')
    a('s_endpgm')
    return a.finalize(), 256, 102, (L_END if 'hst' in ABL else L_HX)

def main():
    k1,v1,s1,l1 = gen_k1()
    k2,v2,s2,l2 = gen_k2()
    hdr = open('gather_scatter__cheap_equivariant_egnn__graph.s.ref').read().split('; Override launch')[0]
    out = hdr
    out += f'; @launch kernel=egnn_part_kernel grid=({NCH+1+NTW},1,1) block=(512,1,1) lds={l1}\n'
    out += f'; @launch kernel=egnn_main_kernel grid=({NBK},1,1) block=(512,1,1) lds={l2}\n'
    out += '''; Algorithm (two launches):
'''
    out += '.amdgcn_target "amdgcn-amd-amdhsa--gfx950"\n.text\n'
    for name,body in (('egnn_part_kernel',k1),('egnn_main_kernel',k2)):
        out += f'.globl {name}\n.p2align 8\n.type {name},@function\n' + body
    out += '.section .rodata,"a"\n'
    for name,nv,ns in (('egnn_part_kernel',v1,s1),('egnn_main_kernel',v2,s2)):
        acc=(nv+3)//4*4
        out += f'''.p2align 6
.amdhsa_kernel {name}
  .amdhsa_next_free_vgpr {nv}
  .amdhsa_next_free_sgpr {ns}
  .amdhsa_accum_offset {acc}
  .amdhsa_group_segment_fixed_size 0
  .amdhsa_kernarg_size 88
  .amdhsa_user_sgpr_count 2
  .amdhsa_user_sgpr_kernarg_segment_ptr 1
  .amdhsa_system_sgpr_workgroup_id_x 1
  .amdhsa_float_denorm_mode_32 3
.end_amdhsa_kernel
'''
    dst = [x for x in sys.argv[1:] if not x.startswith('--')]
    path = dst[0] if dst else 'gather_scatter__cheap_equivariant_egnn__graph.s'
    open(path,'w').write(out)
    print('wrote',path,len(out))
main()
```

```python
import sys, math
from asmlib import Asm

N=12500; E=800000; CH=3200; NCH=250; NBK=256; BN=49
ROW=4224
OFFS=0; ENT=0x110000; WF=0x420000; TA=0x500000; TB=0x700000; TM=0x900000
NF=18; WDO=NF*1024; WXO=NF*1024+256; WFSZ=NF*1024+512
NTW=98
CAP=3584
LOG2E=1.4426950408889634
def f32bits(x):
    import struct; return struct.unpack('<I',struct.pack('<f',x))[0]

DEBUG_TM = '--tm' in sys.argv
K1PRIO = '--nok1prio' not in sys.argv
TFIRST = '--tfirst' in sys.argv
SC1 = '' if '--nosc1' in sys.argv else (' sc0 sc1' if '--sc01' in sys.argv else ' sc1')
SC1T = '' if '--tplain' in sys.argv else SC1
SC1W = SC1 if '--wsc1' in sys.argv else ''
SC1O = ' sc1' if '--osc1' in sys.argv else (' nt' if '--ont' in sys.argv else '')
PFN = int(([x[6:] for x in sys.argv if x.startswith('--pfn=')] or ['0'])[0])
PFK1 = 2 if PFN else 0

F_W3=0
F_H1=2
F_H2=10

def stamp(a, idx, vreg, sp):
    if not DEBUG_TM: return
    a(f'''
    s_memrealtime s[{sp}:{sp+1}]
    s_waitcnt lgkmcnt(0)
    v_writelane_b32 v{vreg}, s{sp}, {idx}
    ''')
def stampc(a, idx, vreg, sp):
    if not DEBUG_TM: return
    a(f'''
    s_memtime s[{sp}:{sp+1}]
    s_waitcnt lgkmcnt(0)
    v_writelane_b32 v{vreg}, s{sp}, {idx}
    ''')
def stamp_store(a, vreg, sp, ws_lo, ws_hi, region, wave_s, vt):
    if not DEBUG_TM: return
    a(f'''
    s_lshl_b32 s{sp}, s2, 3
    s_add_u32 s{sp}, s{sp}, s{wave_s}
    s_lshl_b32 s{sp}, s{sp}, 7
    s_add_u32 s{sp}, s{sp}, {TM+region}
    s_add_u32 s{sp}, s{ws_lo}, s{sp}
    s_addc_u32 s{sp+1}, s{ws_hi}, 0
    v_and_b32 v{vt}, 63, v0
    v_lshlrev_b32 v{vt}, 2, v{vt}
    s_mov_b32 exec_hi, 0
    global_store_dword v{vt}, v{vreg}, s[{sp}:{sp+1}]
    s_mov_b64 exec, -1
    ''')

def gen_k1():
    a=Asm()
    K1_STAGE=8192; K1_WTOT=24576
    a.label('egnn_part_kernel')
    a(f'''
    s_cmp_gt_u32 s2, {NCH+NTW}
    s_cbranch_scc1 L1_end
    v_lshrrev_b32 v2, 6, v0
    v_and_b32 v1, 63, v0
    s_load_dwordx4 s[4:7], s[0:1], 24
    s_load_dwordx2 s[8:9], s[0:1], 80
    s_load_dwordx2 s[34:35], s[0:1], 16
    v_readfirstlane_b32 s3, v2
    s_cmp_eq_u32 s2, {NTW if TFIRST else NCH}
    s_cbranch_scc1 L1_wprep
    s_cmp_{'lt' if TFIRST else 'gt'}_u32 s2, {NTW if TFIRST else NCH}
    s_cbranch_scc1 L1_tables
    s_sub_u32 s38, s2, {NTW+1 if TFIRST else 0}
    s_setprio {3 if K1PRIO else 0}
    ''')
    if DEBUG_TM: a('v_mov_b32 v70, 0')
    stamp(a,0,70,36)
    a(f'''
    v_lshlrev_b32 v3, 4, v0
    v_mov_b32 v4, 0
    v_mov_b32 v5, 0
    v_mov_b32 v6, 0
    v_mov_b32 v7, 0
    ds_write_b128 v3, v[4:7]
    s_mul_i32 s10, s38, {CH*4}
    s_mul_i32 s11, s38, {ROW}
    v_add_u32 v48, 8192, v3
    s_waitcnt lgkmcnt(0)
    s_add_u32 s12, s6, s10
    s_addc_u32 s13, s7, 0
    s_mov_b32 s14, {CH*4}
    s_mov_b32 s15, 0x20000
    s_add_u32 s16, s4, s10
    s_addc_u32 s17, s5, 0
    s_mov_b32 s18, {CH*4}
    s_mov_b32 s19, 0x20000
    buffer_load_dwordx4 v[8:11], v3, s[12:15], 0 offen
    buffer_load_dwordx4 v[12:15], v48, s[12:15], 0 offen
    buffer_load_dwordx4 v[16:19], v3, s[16:19], 0 offen
    buffer_load_dwordx4 v[20:23], v48, s[16:19], 0 offen
    ''')
    if PFK1:
        a(f'''
        s_mul_i32 s10, s38, {CH*32}
        s_add_u32 s32, s34, s10
        s_addc_u32 s33, s35, 0
        s_cmp_lt_u32 s38, {PFN}
        s_cselect_b32 s34, {CH*32}, 0
        s_mov_b32 s35, 0x20000
        v_lshlrev_b32 v64, 7, v0
        v_add_u32 v65, {512*128}, v64
        buffer_load_dword v66, v64, s[32:35], 0 offen
        ''')
        if PFK1>1: a('buffer_load_dword v67, v65, s[32:35], 0 offen')
        a(f's_mul_i32 s10, s38, {CH*4}')
    a(f'''
    s_add_u32 s24, s8, {OFFS}
    s_addc_u32 s25, s9, 0
    s_add_u32 s24, s24, s11
    s_addc_u32 s25, s25, 0
    s_mov_b32 s26, {ROW}
    s_mov_b32 s27, 0x20000
    s_add_u32 s28, s8, {ENT}
    s_addc_u32 s29, s9, 0
    s_add_u32 s28, s28, s10
    s_addc_u32 s29, s29, 0
    s_mov_b32 s30, {CH*4}
    s_mov_b32 s31, 0x20000
    s_mov_b32 s22, -{BN}
    v_mov_b32 v50, 1
    v_lshlrev_b32 v51, 5, v0
    v_add_u32 v52, 16384, v51
    s_barrier
    s_waitcnt vmcnt({2+PFK1})
    ''')
    stamp(a,1,70,36)
    def keyslot(i, dst, tmp):
        a(f'''
        v_mul_u32_u24 v{tmp}, 21400, v{dst}
        v_lshrrev_b32 v{tmp}, 20, v{tmp}
        v_mad_i32_i24 v{40+i}, v{tmp}, s22, v{dst}
        v_and_b32 v{tmp+1}, 7, v{40+i}
        v_lshl_or_b32 v{tmp}, v{tmp}, 3, v{tmp+1}
        v_lshlrev_b32 v{24+i}, 2, v{tmp}
        ''')
    for u in range(4):
        keyslot(u, 8+u, 54+2*u)
        a(f'ds_add_rtn_u32 v{32+u}, v{24+u}, v50')
    a('''
    v_cmp_gt_u32 vcc, 288, v0
    s_and_saveexec_b64 s[20:21], vcc
    s_cbranch_execz L1_skipB1
    ''')
    for u in range(4):
        keyslot(4+u, 12+u, 54+2*u)
        a(f'ds_add_rtn_u32 v{36+u}, v{28+u}, v50')
    a.label('L1_skipB1')
    a('s_mov_b64 exec, s[20:21]')
    a(f's_waitcnt vmcnt({PFK1})')
    for i in range(8):
        base = 51 if i<4 else 52
        a(f'''
        v_lshrrev_b32 v54, 3, v{40+i}
        v_lshl_or_b32 v54, v{40+i}, 29, v54
        v_lshl_or_b32 v54, v{16+i}, 15, v54
        v_add3_u32 v{40+i}, v54, v{base}, {8*(i%4)}
        ''')
    a('''
    s_waitcnt lgkmcnt(0)
    s_barrier
    ''')
    stamp(a,2,70,36)
    a('''
    ds_read_b128 v[8:11], v3
    s_waitcnt lgkmcnt(0)
    v_add_u32 v12, v8, v9
    v_add_u32 v13, v12, v10
    v_add_u32 v14, v13, v11
    v_mov_b32 v15, v14
    ''')
    for sh in (1,2,4,8):
        a(f'v_add_u32_dpp v15, v15, v15 row_shr:{sh} row_mask:0xf bank_mask:0xf')
    a('v_add_u32_dpp v15, v15, v15 row_bcast:15 row_mask:0xa bank_mask:0xf')
    a('v_add_u32_dpp v15, v15, v15 row_bcast:31 row_mask:0xc bank_mask:0xf')
    a(f'''
    s_lshl_b32 s10, s3, 2
    s_add_u32 s10, s10, {K1_WTOT}
    v_mov_b32 v16, s10
    s_mov_b32 s20, 0
    s_brev_b32 s21, 1
    s_mov_b64 exec, s[20:21]
    ds_write_b32 v16, v15
    s_mov_b64 exec, -1
    v_and_b32 v17, 7, v1
    v_lshlrev_b32 v17, 2, v17
    v_add_u32 v17, {K1_WTOT}, v17
    s_waitcnt lgkmcnt(0)
    s_barrier
    ds_read_b32 v18, v17
    v_cmp_gt_u32 vcc, s3, v1
    s_waitcnt lgkmcnt(0)
    v_cndmask_b32 v18, 0, v18, vcc
    ''')
    for sh in (1,2,4):
        a(f'v_add_u32_dpp v18, v18, v18 row_shr:{sh} row_mask:0xf bank_mask:0xf')
    a(f'''
    v_readlane_b32 s10, v18, 7
    v_sub_u32 v15, v15, v14
    v_add_u32 v8+0, s10, v15
    '''.replace('v8+0','v19'))
    a(f'''
    v_add_u32 v21, v19, v12
    v_add_u32 v22, v19, v13
    v_add_u32 v20, v19, v8
    v_mov_b32 v56, v19
    v_mov_b32 v57, v20
    v_mov_b32 v58, v21
    v_mov_b32 v59, v22
    ds_write_b128 v3, v[56:59]
    v_lshl_or_b32 v60, v20, 16, v19
    v_lshl_or_b32 v61, v22, 16, v21
    v_lshlrev_b32 v62, 3, v0
    buffer_store_dwordx2 v[60:61], v62, s[24:27], 0 offen{SC1}
    s_cmp_lg_u32 s3, 0
    s_cbranch_scc1 L1_nosent
    s_mov_b32 s10, {CH | (CH<<16)}
    v_mov_b32 v63, s10
    v_lshlrev_b32 v62, 2, v1
    v_add_u32 v62, 4096, v62
    v_cmp_gt_u32 vcc, 32, v1
    s_and_saveexec_b64 s[20:21], vcc
    buffer_store_dword v63, v62, s[24:27], 0 offen{SC1}
    s_mov_b64 exec, s[20:21]
    ''')
    a.label('L1_nosent')
    a('''
    s_waitcnt lgkmcnt(0)
    s_barrier
    ''')
    stamp(a,3,70,36)
    for u in range(4):
        a(f'ds_read_b32 v{8+u}, v{24+u}')
    a('''
    v_cmp_gt_u32 vcc, 288, v0
    s_and_saveexec_b64 s[20:21], vcc
    s_cbranch_execz L1_skipB2
    ''')
    for u in range(4):
        a(f'ds_read_b32 v{12+u}, v{28+u}')
    a('s_waitcnt lgkmcnt(0)')
    for u in range(4):
        a(f'v_add_lshl_u32 v{12+u}, v{12+u}, v{36+u}, 2')
    for u in range(4):
        a(f'ds_write_b32 v{12+u}, v{44+u} offset:{K1_STAGE}')
    a.label('L1_skipB2')
    a('s_mov_b64 exec, s[20:21]')
    a('s_waitcnt lgkmcnt(0)')
    for u in range(4):
        a(f'v_add_lshl_u32 v{8+u}, v{8+u}, v{32+u}, 2')
    for u in range(4):
        a(f'ds_write_b32 v{8+u}, v{40+u} offset:{K1_STAGE}')
    a(f'''
    s_waitcnt lgkmcnt(0)
    s_barrier
    ds_read_b128 v[8:11], v3 offset:{K1_STAGE}
    ds_read_b128 v[12:15], v3 offset:{K1_STAGE+8192}
    s_waitcnt lgkmcnt(1)
    buffer_store_dwordx4 v[8:11], v3, s[28:31], 0 offen{SC1}
    s_waitcnt lgkmcnt(0)
    buffer_store_dwordx4 v[12:15], v48, s[28:31], 0 offen{SC1}
    ''')
    stamp(a,4,70,36)
    if DEBUG_TM: a('s_waitcnt vmcnt(0)')
    stamp(a,5,70,36)
    stamp_store(a,70,36,8,9,0,3,69)
    a('s_endpgm')
    a.label('L1_wprep')
    a(f'''
    s_load_dwordx2 s[10:11], s[0:1], 40
    s_load_dwordx2 s[12:13], s[0:1], 48
    s_load_dwordx2 s[14:15], s[0:1], 56
    v_and_b32 v2, 31, v1
    v_lshrrev_b32 v3, 5, v1
    v_lshlrev_b32 v4, 4, v1
    s_waitcnt lgkmcnt(0)
    s_mov_b32 s16, s10
    s_mov_b32 s17, s11
    s_mov_b32 s18, {145*64*2}
    s_mov_b32 s19, 0x20000
    s_mov_b32 s20, s14
    s_mov_b32 s21, s15
    s_mov_b32 s22, {128*64*2}
    s_mov_b32 s23, 0x20000
    s_mov_b32 s24, s12
    s_mov_b32 s25, s13
    s_mov_b32 s26, {64*2}
    s_mov_b32 s27, 0x20000
    s_add_u32 s28, s8, {WF}
    s_addc_u32 s29, s9, 0
    s_mov_b32 s30, {WFSZ}
    s_mov_b32 s31, 0x20000
    s_mov_b32 s32, {f32bits(-LOG2E)}
    v_lshlrev_b32 v5, 1, v2
    v_lshl_add_u32 v6, v3, 10, v5
    v_lshl_add_u32 v7, v3, 9, v5
    v_lshlrev_b32 v8, 3, v3
    ''')
    frags=[]
    for blk in range(2): frags.append((F_W3+blk,'e',129,blk,'std',True))
    for s in range(4):
        for blk in range(2): frags.append((F_H1+2*s+blk,'h',16*s,blk,'std',False))
    for blk in range(2):
        for sp in range(2):
            for b2 in range(2): frags.append((F_H2+(blk*2+sp)*2+b2,'h',64+32*blk+16*sp,b2,'perm',False))
    assert len(frags)==NF
    for wv in range(8):
        a(f's_cmp_eq_u32 s3, {wv}')
        a(f's_cbranch_scc1 L1_w{wv}')
    a('s_endpgm')
    for wv in range(8):
        a.label(f'L1_w{wv}')
        mine=[f for i,f in enumerate(frags) if i%8==wv]
        for q,(F,srcn,row0,blk,kind,scaled) in enumerate(mine):
            r=16+8*q
            srd={'e':'s[16:19]','h':'s[20:23]','x':'s[24:27]'}[srcn]
            if kind=='wx':
                a(f'v_add_u32 v10, {row0*2}, v8')
                for t in range(8):
                    T=(t&3)+8*(t>>2)
                    a(f'buffer_load_ushort v{r+t}, v10, {srd}, 0 offen offset:{T*2}')
            else:
                vb = 6 if kind=='std' else 7
                a(f'v_add_u32 v10, {row0*128+blk*64}, v{vb}')
                for t in range(8):
                    T= t if kind=='std' else (t&3)+8*(t>>2)
                    a(f'buffer_load_ushort v{r+t}, v10, {srd}, 0 offen offset:{T*128}')
        if wv==0:
            a(f'''
            v_lshlrev_b32 v11, 1, v1
            v_add_u32 v11, {128*128}, v11
            buffer_load_ushort v12, v11, s[16:19], 0 offen
            ''')
        if wv==1:
            a(f'''
            v_and_b32 v11, 3, v1
            v_bfe_u32 v12, v1, 2, 2
            v_lshl_add_u32 v11, v12, 3, v11
            v_bfe_u32 v12, v1, 4, 1
            v_lshl_add_u32 v11, v12, 5, v11
            v_lshl_add_u32 v11, v3, 2, v11
            v_lshlrev_b32 v11, 1, v11
            buffer_load_ushort v12, v11, s[24:27], 0 offen
            ''')
        a('s_waitcnt vmcnt(0)')
        for q,(F,srcn,row0,blk,kind,scaled) in enumerate(mine):
            r=16+8*q
            if scaled:
                for t in range(8):
                    a(f'v_lshlrev_b32 v{r+t}, 16, v{r+t}')
                for t in range(8):
                    a(f'v_mul_f32 v{r+t}, s32, v{r+t}')
                for t in range(4):
                    a(f'v_cvt_pk_bf16_f32 v{64+t}, v{r+2*t}, v{r+2*t+1}')
            else:
                for t in range(4):
                    a(f'v_lshl_or_b32 v{64+t}, v{r+2*t+1}, 16, v{r+2*t}')
            a(f'v_add_u32 v10, {F*1024}, v4')
            a(f'buffer_store_dwordx4 v[64:67], v10, s[28:31], 0 offen{SC1W}')
            a('s_nop 1')
        if wv==0:
            a(f'''
            v_lshlrev_b32 v12, 16, v12
            v_mul_f32 v12, s32, v12
            v_cvt_pk_bf16_f32 v13, v12, v12
            v_and_b32 v14, 0xffff0000, v13
            v_sub_f32 v12, v12, v14
            v_cvt_pk_bf16_f32 v12, v12, v12
            v_and_b32 v12, 0xffff0000, v12
            v_and_b32 v13, 0xffff, v13
            v_or_b32 v13, v13, v12
            v_and_b32 v11, 31, v1
            v_lshlrev_b32 v11, 3, v11
            v_lshl_add_u32 v11, v3, 2, v11
            v_add_u32 v11, {WDO}, v11
            buffer_store_dword v13, v11, s[28:31], 0 offen
            ''')
        if wv==1:
            a(f'''
            v_lshlrev_b32 v12, 16, v12
            v_lshlrev_b32 v11, 2, v1
            v_add_u32 v11, {WXO}, v11
            buffer_store_dword v12, v11, s[28:31], 0 offen
            ''')
        if DEBUG_TM:
            a('s_waitcnt vmcnt(0)\nv_mov_b32 v70, 0')
            stamp(a,5,70,36)
            stamp_store(a,70,36,8,9,0,3,69)
        a('s_endpgm')
    a.label('L1_tables')
    if '--tprio' in sys.argv: a('s_setprio 3')
    if DEBUG_TM: a('v_mov_b32 v15, 0')
    stamp(a,0,15,36)
    a(f"""
    s_load_dwordx2 s[10:11], s[0:1], 0
    s_load_dwordx2 s[12:13], s[0:1], 40
    s_sub_u32 s14, s2, {0 if TFIRST else NCH+1}
    s_lshl_b32 s14, s14, 7
    s_lshr_b32 s33, s3, 1
    s_lshl_b32 s33, s33, 5
    s_and_b32 s15, s3, 1
    v_and_b32 v2, 31, v1
    v_lshrrev_b32 v3, 5, v1
    v_lshrrev_b32 v8, 3, v1
    v_and_b32 v9, 7, v1
    v_lshrrev_b32 v10, 4, v1
    s_waitcnt lgkmcnt(0)
    s_mov_b32 s16, s10
    s_or_b32 s17, s11, 0x800000
    s_mov_b32 s18, {N}
    s_mov_b32 s19, 0x20000
    s_mov_b32 s20, s12
    s_mov_b32 s21, s13
    s_mov_b32 s22, {128*128}
    s_mov_b32 s23, 0x20000
    s_mul_i32 s34, s15, {TB-TA}
    s_add_u32 s34, s34, {TA}
    s_add_u32 s24, s8, s34
    s_addc_u32 s25, s9, 0
    s_or_b32 s25, s25, 0x800000
    s_mov_b32 s26, {N}
    s_mov_b32 s27, 0x20000
    """)
    for r in range(2):
        a(f"""
        s_lshl_b32 s34, s3, 1
        s_add_u32 s34, s34, {r}
        s_lshl_b32 s35, s34, 3
        s_add_u32 s35, s35, s14
        v_add_u32 v4, s35, v8
        v_add_u32 v5, {4*r}, v10
        v_xor_b32 v5, v5, v9
        v_lshlrev_b32 v5, 4, v5
        s_lshl_b32 s34, s34, 10
        s_add_u32 m0, s34, 16384
        s_nop 0
        buffer_load_dwordx4 v[4:5], s[16:19], 0 idxen offen lds
        """)
    a(f"""
    v_lshlrev_b32 v6, 4, v1
    s_lshl_b32 s34, s3, 10
    v_add_u32 v6, s34, v6
    s_mov_b32 m0, s34
    v_add_u32 v7, 8192, v6
    buffer_load_dwordx4 v6, s[20:23], 0 offen lds
    s_add_u32 m0, s34, 8192
    s_nop 0
    buffer_load_dwordx4 v7, s[20:23], 0 offen lds
    v_and_b32 v8, 15, v1
    v_lshrrev_b32 v9, 2, v8
    v_lshl_add_u32 v9, v3, 3, v9
    v_lshlrev_b32 v9, 7, v9
    v_bfe_u32 v10, v1, 4, 1
    v_lshl_add_u32 v9, v10, 5, v9
    v_and_b32 v10, 3, v1
    v_lshl_add_u32 v9, v10, 3, v9
    s_lshl_b32 s34, s15, 13
    v_add_u32 v9, s34, v9
    v_add_u32 v10, s33, v2
    v_lshlrev_b32 v10, 7, v10
    v_add_u32 v10, 16384, v10
    v_bfe_u32 v11, v2, 1, 3
    s_mov_b32 s35, {f32bits(-LOG2E)}
    s_waitcnt vmcnt(0)
    """)
    stamp(a,1,15,36)
    a('s_barrier')
    for s_ in range(4):
        a(f"""
        v_add_u32 v12, {2*s_}, v3
        v_xor_b32 v12, v12, v11
        v_lshl_add_u32 v12, v12, 4, v10
        ds_read_b128 v[{16+4*s_}:{19+4*s_}], v12
        """)
    for s_ in range(4):
        for blk in range(2):
            r=32+4*(2*s_+blk)
            a(f'ds_read_b64_tr_b16 v[{r}:{r+1}], v9 offset:{2048*s_+64*blk}')
            a(f'ds_read_b64_tr_b16 v[{r+2}:{r+3}], v9 offset:{2048*s_+64*blk+512}')
        if s_==1: a('s_waitcnt lgkmcnt(0)')
    a('s_waitcnt lgkmcnt(0)')
    a('s_barrier')
    stamp(a,2,15,36)
    for blk in range(2):
        D=f'v[{64+16*blk}:{79+16*blk}]'
        for s_ in range(4):
            C = D if s_>0 else '0'
            r=32+4*(2*s_+blk)
            a(f'v_mfma_f32_32x32x16_bf16 {D}, v[{r}:{r+3}], v[{16+4*s_}:{19+4*s_}], {C}')
    a(f"""
    s_lshl_b32 s34, s3, 12
    v_lshlrev_b32 v4, 7, v2
    v_add_u32 v4, s34, v4
    v_and_b32 v5, 7, v2
    v_lshlrev_b32 v5, 4, v5
    """)
    for blk in range(2):
        for i in range(16):
            a(f'v_mul_f32 v{64+16*blk+i}, s35, v{64+16*blk+i}')
    a("""
    s_cmp_eq_u32 s15, 0
    s_cbranch_scc1 L1_tabA
    v_lshl_add_u32 v4, v3, 3, v4
    """)
    for blk in range(2):
        for q in range(8):
            a(f'v_cvt_pk_bf16_f32 v{32+8*blk+q}, v{64+16*blk+2*q}, v{64+16*blk+2*q+1}')
        for m in range(4):
            a(f'v_xor_b32 v6, {16*(4*blk+m)}, v5')
            a(f'v_add_u32 v6, v6, v4')
            a(f'ds_write_b64 v6, v[{32+8*blk+2*m}:{33+8*blk+2*m}]')
    a('s_branch L1_tabS')
    a.label('L1_tabA')
    for r in range(16):
        a(f'v_cvt_pk_bf16_f32 v{32+r}, v{64+r}, v{80+r}')
    a('v_lshlrev_b32 v7, 4, v3')
    for m in range(4):
        a(f'v_add_u32 v6, {32*m}, v7')
        a(f'v_xor_b32 v6, v6, v5')
        a(f'v_add_u32 v6, v6, v4')
        a(f'ds_write_b128 v6, v[{32+4*m}:{35+4*m}]')
    a.label('L1_tabS')
    stamp(a,3,15,36)
    a(f"""
    v_lshlrev_b32 v6, 4, v1
    v_add_u32 v6, s34, v6
    v_lshrrev_b32 v8, 3, v1
    v_and_b32 v9, 7, v1
    v_xor_b32 v9, v9, v8
    v_lshlrev_b32 v13, 4, v9
    s_add_u32 s14, s14, s33
    v_add_u32 v8, s14, v8
    s_waitcnt lgkmcnt(0)
    """)
    for i in range(4):
        a(f'ds_read_b128 v[{48+4*i}:{51+4*i}], v6 offset:{1024*i}')
    for i in range(4):
        a(f'v_add_u32 v12, {8*i}, v8')
        a(f's_waitcnt lgkmcnt({3-i})')
        a(f'buffer_store_dwordx4 v[{48+4*i}:{51+4*i}], v[12:13], s[24:27], 0 idxen offen{SC1T}')
    stamp(a,4,15,36)
    if DEBUG_TM: a('s_waitcnt vmcnt(0)')
    stamp(a,5,15,36)
    stamp_store(a,15,36,8,9,0,3,14)
    a('s_endpgm')
    a.label('L1_end')
    a('s_endpgm')
    return a.finalize(), 96, 40, 32768+64

L_G=0; L_R0=28672; L_RS=43264; L_S=50432; L_RING=66816; L_GTAB=148736; L_WTOT=156928; L_PD=157184; L_WST=158208; L_AST=L_WST+2560; L_HX=L_AST+2048; L_END=L_HX+1024
NHS=9
def hstage_addr(f): return L_GTAB+1024*f if f<8 else L_HX
SLOT=5120
vI=16; vW3=24; vW6=32; vS1=40; vS2=41; vD2=64; vD1=(96,128); vE=160; vX=192; vXE=208; vX6=212; vSF=216; vONE=224
vHA=228; vEAr=232; vX6r=233; vC1=234; vSTa=235; vC2=236; vMK2=237; vEAc=238; vOne=239; vHP=240
vSTb=15; vCD=14
vRSa=248; vR0a=249; vR0e=250; vGe=251; vR0=252; vG=253; vA1=254; vA2=255; vEAi=10; vEAo=11
vZero=vONE+1
vTM=12
sH=4; sEA=8; sOF=12; sEN=16; sPOS=20; sWF=24; sO0=28; sO1=32; sHD=36; sSEL=100; sTA=40
sWS=44
sW0=46; sW1=47; sV=3; sG=101; sCNT=48; sBASE=49; sNT=50; sT=51; sRB=52; sNODE0=53; sMK=89

ABL=set(x[6:] for x in sys.argv if x.startswith('--abl=') ) | ({'fprio','trim','pk','xmap','off2','nozf'} - set(x[5:] for x in sys.argv if x.startswith('--no=')))
OPT=dict(x[6:].split(':') for x in sys.argv if x.startswith('--opt='))
def optl(k,d): return [int(v.replace('n','-')) for v in OPT[k].split(',')] if k in OPT else d
TRIMK='trim'; PF2K='pf2'; TBK='tbpf'; XMK='xmap'; OFF2='off2'; VMS='vmstat'
EAF=''.join(' '+x for x in OPT.get('eaf','').split('+') if x); HF=''.join(' '+x for x in OPT.get('hf','').split('+') if x)
NH_ = 0 if 'noh' in ABL else N
NE_ = 0 if 'noea' in ABL else E*32
def gen_k2():
    a=Asm()
    def st(i): stamp(a,i,vTM,98)
    a.label('egnn_main_kernel')
    a(f'''
    s_cmp_ge_u32 s2, {NBK}
    s_cbranch_scc1 L2_end
    ''')
    if 'xmap' in ABL:
        a('s_and_b32 s4, s2, 7\ns_lshl_b32 s4, s4, 5\ns_lshr_b32 s2, s2, 3\ns_or_b32 s2, s2, s4')
    if DEBUG_TM: a(f'v_mov_b32 v{vTM}, 0')
    st(0)
    a(f'''
    s_load_dwordx2 s[44:45], s[0:1], 80
    s_load_dwordx4 s[36:39], s[0:1], 0
    s_load_dwordx2 s[40:41], s[0:1], 16
    s_load_dwordx2 s[42:43], s[0:1], 64
    v_and_b32 v1, 63, v0
    v_lshrrev_b32 v2, 6, v0
    v_lshrrev_b32 v3, 1, v0
    v_readfirstlane_b32 s{sV}, v2
    ''')
    if 'rot' in OPT:
        a(f'''
        s_lshr_b32 s54, s2, 5
        s_mul_i32 s54, s54, {int(OPT['rot'])}
        v_cmp_gt_u32 vcc, {NCH}, v3
        v_add_u32 v9, s54, v3
        v_subrev_u32 v10, {NCH}, v9
        s_movk_i32 s55, {NCH}
        v_cmp_gt_u32 s[56:57], s55, v9
        s_nop 1
        v_cndmask_b32 v9, v10, v9, s[56:57]
        v_cndmask_b32 v3, v3, v9, vcc
        ''')
    a(f'''
    v_and_b32 v9, 1, v0
    s_lshl_b32 s54, s2, 4
    s_mov_b32 s55, {ROW}
    {'v_mov_b32 v96, s54' if OFF2 in ABL else 'v_lshl_add_u32 v96, v9, 4, s54'}
    v_mad_u32_u24 v96, v3, s55, v96
    s_mov_b32 s{sOF+2}, {NCH*ROW}
    s_mov_b32 s{sOF+3}, 0x20000
    s_waitcnt lgkmcnt(0)
    s_add_u32 s{sOF}, s44, {OFFS}
    s_addc_u32 s{sOF+1}, s45, 0
    buffer_load_dwordx4 {'v[4:7]' if OFF2 in ABL else 'v[104:107]'}, v96, s[{sOF}:{sOF+3}], 0 offen
    {f'buffer_load_ushort v8, v96, s[{sOF}:{sOF+3}], 0 offen offset:16' if OFF2 in ABL else ''}
    ''')
    st(16)
    a(f"""
    s_mov_b32 s{sPOS}, s38
    s_mov_b32 s{sPOS+1}, s39
    s_mov_b32 s{sPOS+2}, {N*6}
    s_mov_b32 s{sPOS+3}, 0x20000
    s_add_u32 s{sWF}, s44, {WF}
    s_addc_u32 s{sWF+1}, s45, 0
    s_mov_b32 s{sWF+2}, {WFSZ}
    s_mov_b32 s{sWF+3}, 0x20000
    s_mov_b32 s{sW0}, 0
    s_mov_b32 s{sW1}, {NCH}
    s_mov_b32 s63, 2
    v_lshlrev_b32 v96, 4, v1
    s_lshl_b32 s58, s{sV}, 10
    v_add_u32 v96, s58, v96
    """)
    PE=optl('pe',[5])[0]
    assert PE<=9
    def posdma(r):
        a(f"""
        s_add_u32 m0, s58, {L_RING+8192*r}
        v_add_u32 v97, {8192*r}, v96
        buffer_load_dwordx4 v97, s[{sPOS}:{sPOS+3}], 0 offen lds
        """)
    chunks=[f"""
    s_mov_b32 s{sH}, s36
    s_or_b32 s{sH+1}, s37, 0x800000
    s_mov_b32 s{sH+2}, {N}
    s_mov_b32 s{sH+3}, 0x20000
    s_mov_b32 s{sEA}, s40
    s_mov_b32 s{sEA+1}, s41
    s_mov_b32 s{sEA+2}, {E*32}
    s_mov_b32 s{sEA+3}, 0x20000
    s_add_u32 s{sEN}, s44, {ENT}
    s_addc_u32 s{sEN+1}, s45, 0
    s_mov_b32 s{sEN+2}, {NCH*CH*4}
    s_mov_b32 s{sEN+3}, 0x20000
    """, f"""
    s_mov_b32 s{sO0}, s42
    s_or_b32 s{sO0+1}, s43, 0x800000
    s_mov_b32 s{sO0+2}, {N}
    s_mov_b32 s{sO0+3}, 0x20000
    s_add_u32 s{sO1}, s42, {N*128}
    s_addc_u32 s{sO1+1}, s43, 0
    s_mov_b32 s{sO1+2}, {N*6}
    s_mov_b32 s{sO1+3}, 0x20000
    s_add_u32 s{sHD}, s44, {TB}
    s_addc_u32 s{sHD+1}, s45, 0
    s_or_b32 s{sHD+1}, s{sHD+1}, 0x800000
    s_mov_b32 s{sHD+2}, {N}
    s_mov_b32 s{sHD+3}, 0x20000
    """, f"""
    s_add_u32 s{sTA}, s44, {TA}
    s_addc_u32 s{sTA+1}, s45, 0
    s_or_b32 s{sTA+1}, s{sTA+1}, 0x800000
    s_mov_b32 s{sTA+2}, {N}
    s_mov_b32 s{sTA+3}, 0x20000
    s_mul_i32 s{sRB}, s{sV}, {2*SLOT}
    s_add_u32 s{sRB}, s{sRB}, {L_RING}
    s_mov_b32 s{sMK}, 0xffffffe0
    s_mov_b32 s{sSEL}, 0x01000100
    v_lshrrev_b32 v98, 5, v1
    v_and_b32 v101, 1, v1
    v_xor_b32 v101, v101, v98
    v_lshlrev_b32 v{vEAc}, 4, v101
    """, f"""
    v_and_b32 v101, 7, v1
    v_lshrrev_b32 v102, 4, v1
    v_xor_b32 v103, v101, v102
    v_lshlrev_b32 v{vHP+1}, 4, v103
    v_lshlrev_b32 v{vHP+5}, 4, v103
    v_add_u32 v102, 4, v102
    v_xor_b32 v103, v101, v102
    v_lshlrev_b32 v{vHP+3}, 4, v103
    v_lshlrev_b32 v{vHP+7}, 4, v103
    """, f"""
    v_mov_b32 v{vX6}, 0
    v_mov_b32 v{vX6+1}, 0
    v_mov_b32 v{vX6+2}, 0
    v_mov_b32 v{vX6+3}, 0
    v_mfma_f32_32x32x16_bf16 v[{vD2}:{vD2+15}], v[{vX6}:{vX6+3}], v[{vX6}:{vX6+3}], 0
    v_mfma_f32_32x32x16_bf16 v[{vD2+16}:{vD2+31}], v[{vX6}:{vX6+3}], v[{vX6}:{vX6+3}], 0
    """]
    for k in range(max(PE,len(chunks))):
        if k<PE: posdma(k)
        if k<len(chunks): a(chunks[k])
    a(f"""
    s_cmp_eq_u32 s{sV}, 2
    s_cselect_b32 s54, {WDO}, s58
    s_cselect_b32 s55, 2048, s58
    v_lshlrev_b32 v97, 4, v1
    v_add_u32 v97, s54, v97
    s_add_u32 m0, s55, {L_WST}
    s_cmp_gt_u32 s{sV}, 2
    s_cbranch_scc1 L2_nowst
    v_cmp_gt_u32 vcc, 32, v1
    s_cmp_eq_u32 s{sV}, 2
    s_cselect_b64 exec, vcc, -1
    buffer_load_dwordx4 v97, s[{sWF}:{sWF+3}], 0 offen lds
    s_mov_b64 exec, -1
    """)
    a.label('L2_nowst')
    st(17)
    if TBK in ABL:
        a(f'''
        {'s_and_b32 s54, s2, 31' if XMK in ABL else 's_lshr_b32 s54, s2, 3'}
        s_mul_i32 s54, s54, 391
        s_lshl_b32 s55, s{sV}, 6
        v_add_u32 v100, s55, v1
        v_cmp_gt_u32 vcc, 391, v100
        v_add_u32 v100, s54, v100
        v_mov_b32 v101, 0
        v_mov_b32 v102, -1
        v_cndmask_b32 v100, v102, v100, vcc
        buffer_load_dword v52, v[100:101], s[{sHD}:{sHD+3}], 0 idxen offen
        ''')
    st(18)
    st(1)
    a(f's_waitcnt vmcnt({min(PE,9)+(1 if TBK in ABL else 0)})')
    if OFF2 not in ABL:
        for q in range(4):
            a(f'v_mov_b32_dpp v{4+q}, v{104+q} quad_perm:[0,0,2,2] row_mask:0xf bank_mask:0xf')
        a('v_mov_b32_dpp v8, v104 quad_perm:[1,1,3,3] row_mask:0xf bank_mask:0xf')
        a('v_and_b32 v8, 0xffff, v8')
    st(19)
    a('s_branch L2_counts')
    a.label('L2_batch')
    a(f"""
    s_barrier
    v_lshlrev_b32 v96, 4, v1
    s_lshl_b32 s58, s{sV}, 10
    v_add_u32 v96, s58, v96
    """)
    for r in range(PE): posdma(r)
    a.label('L2_counts')
    a(f"""
    v_alignbit_b32 v100, v5, v4, 16
    v_alignbit_b32 v101, v6, v5, 16
    v_alignbit_b32 v102, v7, v6, 16
    v_alignbit_b32 v103, v8, v7, 16
    v_and_b32 v105, 0xffff, v4
    v_sub_u32 v104, v8, v105
    s_sub_u32 s54, s{sW1}, s{sW0}
    v_subrev_u32 v106, s{sW0}, v3
    v_cmp_gt_u32 vcc, s54, v106
    s_mov_b32 s55, {CH*4}
    v_lshlrev_b32 v107, 2, v105
    v_lshl_add_u32 v107, v9, 4, v107
    v_cndmask_b32 v104, 0, v104, vcc
    v_lshlrev_b32 v109, 2, v9
    v_sub_u32 v109, v104, v109
    v_max_i32 v109, 0, v109
    v_mad_u32_u24 v107, v3, s55, v107
    """)
    for i in range(4):
        a(f'v_cmp_lt_u32 s[{90+2*i}:{91+2*i}], {8*i}, v109')
    for i in range(4):
        a(f's_mov_b64 exec, s[{90+2*i}:{91+2*i}]')
        a(f's_cbranch_execz L2_e{i}')
        a(f'buffer_load_dwordx4 v[{192+4*i}:{195+4*i}], v107, s[{sEN}:{sEN+3}], 0 offen offset:{32*i}')
        a.label(f'L2_e{i}')
    a('s_mov_b64 exec, -1')
    st(2)
    a(f"""
    v_pk_sub_u16 v100, v100, v4
    v_pk_sub_u16 v101, v101, v5
    v_pk_sub_u16 v102, v102, v6
    v_pk_sub_u16 v103, v103, v7
    v_cmp_eq_u32 s[56:57], 0, v9
    """)
    for q in range(4):
        a(f'v_cndmask_b32 v{100+q}, 0, v{100+q}, vcc')
    for q in range(5):
        a(f'v_cndmask_b32 v{112+q}, 0, v{100+q}, s[56:57]')
    for sh in (1,2,4,8):
        for q in range(5):
            a(f'v_add_u32_dpp v{112+q}, v{112+q}, v{112+q} row_shr:{sh} row_mask:0xf bank_mask:0xf')
    for q in range(5):
        a(f'v_add_u32_dpp v{112+q}, v{112+q}, v{112+q} row_bcast:15 row_mask:0xa bank_mask:0xf')
    for q in range(5):
        a(f'v_add_u32_dpp v{112+q}, v{112+q}, v{112+q} row_bcast:31 row_mask:0xc bank_mask:0xf')
    st(21)
    a(f"""
    s_lshl_b32 s54, s{sV}, 5
    s_add_u32 s54, s54, {L_WTOT}
    v_mov_b32 v117, s54
    s_mov_b32 s56, 0
    s_brev_b32 s57, 1
    s_mov_b64 exec, s[56:57]
    ds_write_b128 v117, v[112:115]
    ds_write_b32 v117, v116 offset:16
    s_mov_b64 exec, -1
    v_and_b32 v118, 7, v1
    v_lshlrev_b32 v118, 5, v118
    v_add_u32 v118, {L_WTOT}, v118
    s_waitcnt lgkmcnt(0)
    s_barrier
    ds_read_b128 v[120:123], v118
    ds_read_b32 v124, v118 offset:16
    """)
    st(3)
    a('s_waitcnt lgkmcnt(0)')
    for sh in (1,2,4):
        for q in range(5):
            a(f'v_add_u32_dpp v{120+q}, v{120+q}, v{120+q} row_shr:{sh} row_mask:0xf bank_mask:0xf')
    for q in range(5):
        a(f'v_readlane_b32 s{58+q}, v{120+q}, 7')
    a(f's_sub_u32 s54, s{sV}, 1')
    a(f's_max_i32 s54, s54, 0')
    for q in range(4):
        a(f'v_readlane_b32 s{64+q}, v{120+q}, s54')
    a(f's_cmp_eq_u32 s{sV}, 0')
    for q in range(4):
        a(f's_cselect_b32 s{64+q}, 0, s{64+q}')
    for q in range(4):
        a(f's_and_b32 s{68+2*q}, s{58+q}, 0xffff')
        a(f's_lshr_b32 s{69+2*q}, s{58+q}, 16')
    a('s_mov_b32 s84, 0')
    for g in range(8):
        a(f"""
        s_mov_b32 s{76+g}, s84
        s_add_u32 s54, s{68+g}, 31
        s_andn2_b32 s54, s54, 31
        s_add_u32 s84, s84, s54
        """)
    a(f"""
    s_max_u32 s54, s84, s62
    s_cmp_le_u32 s54, {CAP}
    s_cbranch_scc1 L2_fits
    s_add_u32 s{sW1}, s{sW0}, 1
    s_waitcnt vmcnt(0) lgkmcnt(0)
    s_branch L2_batch
    """)
    a.label('L2_fits')
    a(f"""
    s_cmp_eq_u32 s63, 1
    s_cbranch_scc1 L2_pidone
    """)
    if 'nopi' in ABL:
        a(f's_mov_b32 s{sG}, s{sV}')
    else:
        for g in range(8):
            a(f's_lshl_b32 s54, s{68+g}, 3')
            a(f's_add_u32 s{90+g}, s54, {7-g}')
            a(f'v_writelane_b32 v126, s{90+g}, {g}')
        a('v_mov_b32 v127, 0')
        for h in range(2):
            for k in range(4):
                pr=(56,58,54,64)[k] if False else None
            for k in range(4):
                a(f'v_cmp_gt_u32 s[{(54,56,58,60)[k]}:{(54,56,58,60)[k]+1}], s{90+4*h+k}, v126')
            for k in range(4):
                a(f'v_addc_co_u32 v127, vcc, 0, v127, s[{(54,56,58,60)[k]}:{(54,56,58,60)[k]+1}]')
        a(f"""
        s_sub_u32 s54, 11, s{sV}
        s_cmp_lt_u32 s{sV}, 4
        s_cselect_b32 s54, s{sV}, s54
        v_cmp_eq_u32 vcc, s54, v127
        s_nop 3
        s_and_b32 s54, vcc_lo, 0xff
        s_ff1_i32_b32 s{sG}, s54
        """)
    a(f"""
    s_mul_i32 s{sNODE0}, s2, {BN}
    s_add_u32 s{sNODE0}, s{sNODE0}, s{sG}
    """)
    a.label('L2_pidone')
    a(f's_mov_b32 s{sCNT}, s68')
    a(f's_mov_b32 s{sBASE}, s76')
    for g in range(1,8):
        a(f"""
        s_cmp_eq_u32 s{sG}, {g}
        s_cselect_b32 s{sCNT}, s{68+g}, s{sCNT}
        s_cselect_b32 s{sBASE}, s{76+g}, s{sBASE}
        """)
    a(f"""
    s_add_u32 s{sNT}, s{sCNT}, 31
    s_lshr_b32 s{sNT}, s{sNT}, 5
    """)
    for q in range(4):
        a(f's_pack_ll_b32_b16 s{85+q}, s{76+2*q}, s{77+2*q}')
        a(f's_add_u32 s{85+q}, s{85+q}, s{64+q}')
        a(f's_add_u32 s{85+q}, s{85+q}, {CH | (CH<<16)}')
    a(f"""
    v_lshl_or_b32 v105, v105, 16, v105
    v_mul_u32_u24 v106, 0x100010, v9
    """)
    for q in range(4):
        a(f"""
        v_sub_u32 v{112+q}, v{112+q}, v{100+q}
        v_add_u32 v{112+q}, s{85+q}, v{112+q}
        v_sub_u32 v{120+q}, v{4+q}, v105
        v_sub_u32 v{112+q}, v{112+q}, v{120+q}
        v_lshl_add_u32 v{112+q}, v{112+q}, 2, v106
        """)
    a(f"""
    v_lshlrev_b32 v108, 4, v0
    v_add_u32 v108, {L_GTAB}, v108
    ds_write_b128 v108, v[112:115]
    v_mov_b32 v104, v109
    s_mov_b32 s54, {CH*32}
    v_mul_lo_u32 v110, v3, s54
    v_mov_b32 v111, {4*CH+4*CAP}
    v_lshlrev_b32 v96, 4, v1
    s_lshl_b32 s58, s{sV}, 10
    v_add_u32 v96, s58, v96
    s_waitcnt vmcnt(0)
    """)
    st(4)
    if PE<10:
        a(f"""
        v_lshlrev_b32 v96, 4, v1
        s_lshl_b32 s58, s{sV}, 10
        v_add_u32 v96, s58, v96
        """)
        for r in range(PE,10):
            if r==9:
                a(f's_cmp_ge_u32 s{sV}, 2\ns_cbranch_scc1 L2_posdone2')
            a(f"""
            s_add_u32 m0, s58, {L_RING+8192*r}
            v_add_u32 v97, {8192*r}, v96
            buffer_load_dwordx4 v97, s[{sPOS}:{sPOS+3}], 0 offen lds
            """)
        a.label('L2_posdone2')
    a(f"""
    s_cmp_eq_u32 s63, 1
    s_cbranch_scc1 L2_noA
    s_lshl_b32 s54, s{sV}, 10
    s_add_u32 s55, s54, {L_RING+75776}
    s_add_u32 s54, s54, {L_AST-6*1024}
    s_cmp_lt_u32 s{sV}, 6
    s_cselect_b32 s62, s55, s54
    v_lshrrev_b32 v120, 3, v1
    v_lshlrev_b32 v120, 3, v120
    v_add_u32 v121, s{sG}, v120
    v_add_u32 v120, s{sNODE0}, v120
    v_cmp_gt_u32 vcc, {BN}, v121
    v_mov_b32 v122, -1
    v_and_b32 v123, 7, v1
    v_lshlrev_b32 v123, 4, v123
    v_cndmask_b32 v122, v122, v120, vcc
    s_mov_b32 m0, s62
    s_nop 0
    buffer_load_dwordx4 v[122:123], s[{sTA}:{sTA+3}], 0 idxen offen lds
    """)
    a.label('L2_noA')
    st(20)
    def quad(qreg, i, dyn=False):
        for u in range(4):
            a(f'v_lshrrev_b32 v{140+u}, 29, v{qreg+u}')
            a(f'v_lshl_add_u32 v{140+u}, v{140+u}, 1, v108')
            a(f'ds_read_u16 v{144+u}, v{140+u}')
        for u in range(4):
            if dyn: a(f'v_cmp_lt_u32 s[{90+2*u}:{91+2*u}], {u}, v104')
            else:   a(f'v_cmp_lt_u32 s[{90+2*u}:{91+2*u}], {8*i+u}, v104')
        a('s_waitcnt lgkmcnt(0)')
        for u in range(4):
            if dyn: a(f'v_add_u32 v{144+u}, v{144+u}, v149')
            a(f'v_cndmask_b32 v{144+u}, v111, v{144+u}, s[{90+2*u}:{91+2*u}]')
        ko = 0 if dyn else 8*i
        for u in range(4):
            a(f'ds_write_b32 v{144+u}, v{qreg+u} offset:{L_R0-4*CH+4*(ko+u)}')
            a(f'ds_write_b32 v{144+u}, v110 offset:{L_S-4*CH+4*(ko+u)}')
    for i in range(4):
        quad(192+4*i, i)
        a(f'v_cmp_lt_u32 vcc, {8*(i+1)}, v104')
        a('s_cbranch_vccz L2_scat_done')
    a(f'''
    v_subrev_u32 v104, 32, v104
    v_cmp_gt_i32 vcc, 0, v104
    v_mov_b32 v149, 128
    v_add_u32 v107, 128, v107
    v_cndmask_b32 v104, v104, 0, vcc
    ''')
    a.label('L2_scat_loop')
    a(f'buffer_load_dwordx4 v[192:195], v107, s[{sEN}:{sEN+3}], 0 offen')
    a('s_waitcnt vmcnt(0)')
    quad(192, 0, dyn=True)
    a(f'''
    v_subrev_u32 v104, 8, v104
    v_add_u32 v149, 32, v149
    v_add_u32 v107, 32, v107
    v_cmp_gt_i32 vcc, 0, v104
    s_nop 1
    v_cndmask_b32 v104, v104, 0, vcc
    v_cmp_lt_u32 vcc, 0, v104
    s_cbranch_vccnz L2_scat_loop
    ''')
    a.label('L2_scat_done')
    st(5)
    a('''
    s_waitcnt vmcnt(0) lgkmcnt(0)
    s_barrier
    ''')
    st(6)
    if 'pfe' in ABL:
        a(f"""
        s_cmp_eq_u32 s{sCNT}, 0
        s_cbranch_scc1 L2_nopfe
        v_add_u32 v112, s{sBASE}, v1
        v_lshlrev_b32 v112, 2, v112
        ds_read_b32 v113, v112 offset:{L_R0}
        ds_read_b32 v114, v112 offset:{L_S}
        s_movk_i32 s56, 0x7ff8
        s_mov_b32 s{sHD+2}, {N}
        s_mov_b32 s{sEA+2}, {E*32}
        v_mov_b32 v51, 0
        s_waitcnt lgkmcnt(0)
        v_and_b32 v48, s56, v113
        v_bfe_u32 v50, v113, 15, 14
        v_lshl_add_u32 v48, v48, 2, v114
        s_mov_b32 exec_hi, 0
        buffer_load_dword v48, v48, s[{sEA}:{sEA+3}], 0 offen
        buffer_load_dword v49, v[50:51], s[{sHD}:{sHD+3}], 0 idxen offen
        s_mov_b64 exec, -1
        """)
        a.label('L2_nopfe')
    if 'hst' in ABL:
        a(f"""
        s_lshl_b32 s54, s{sV}, 10
        v_lshlrev_b32 v97, 4, v1
        s_add_u32 s55, s54, {F_H1*1024}
        v_add_u32 v98, s55, v97
        s_add_u32 m0, s54, {L_GTAB}
        s_cmp_lg_u32 s{sV}, 0
        buffer_load_dwordx4 v98, s[{sWF}:{sWF+3}], 0 offen lds
        s_cbranch_scc1 L2_hst1
        v_add_u32 v98, {(F_H1+8)*1024}, v97
        s_mov_b32 m0, {L_HX}
        s_nop 0
        buffer_load_dwordx4 v98, s[{sWF}:{sWF+3}], 0 offen lds
        """)
        a.label('L2_hst1')
    a(f"""
    v_lshrrev_b32 v100, 2, v1
    v_lshlrev_b32 v100, 3, v100
    v_add_u32 v100, s{sNODE0}, v100
    v_mul_u32_u24 v100, 6, v100
    v_and_b32 v102, 3, v1
    v_lshl_add_u32 v100, v102, 1, v100
    v_add_u32 v100, {L_RING}, v100
    ds_read_u16 v101, v100
    s_cmp_eq_u32 s63, 1
    s_cbranch_scc1 L2_noC
    s_mov_b32 s63, 1
    v_lshlrev_b32 v96, 4, v1
    v_add_u32 v96, {L_WST}, v96
    ds_read_b128 v[{vW3}:{vW3+3}], v96
    ds_read_b128 v[{vW3+4}:{vW3+7}], v96 offset:1024
    v_and_b32 v120, 31, v1
    v_lshrrev_b32 v121, 5, v1
    v_lshlrev_b32 v122, 2, v120
    v_lshl_add_u32 v122, v121, 9, v122
    v_add_u32 v122, s62, v122
    """)
    for q in range(4):
        a(f'ds_read_b32 v{40+q}, v122 offset:{128*q}')
    a(f"""
    v_lshlrev_b32 v120, 3, v120
    v_add_u32 v120, {L_WST+2048}, v120
    ds_read_b64 v[44:45], v120
    v_cmp_gt_u32 vcc, 32, v1
    s_waitcnt lgkmcnt(0)
    v_cndmask_b32 v44, v44, 0, vcc
    v_cndmask_b32 v45, v45, 0, vcc
    """)
    for q in range(4):
        a(f'v_and_b32 v{vW6+q}, 0xffff, v{40+q}')
        a(f'v_lshrrev_b32 v{vW6+4+q}, 16, v{40+q}')
    a(f"""
    v_or_b32 v{vW6+3}, v{vW6+3}, v44
    v_or_b32 v{vW6+7}, v{vW6+7}, v45
    """)
    a.label('L2_noC')
    a(f"""
    s_lshl_b32 s54, s{sV}, 7
    s_add_u32 s54, s54, {L_PD}
    v_lshlrev_b32 v97, 2, v1
    v_add_u32 v97, s54, v97
    s_waitcnt lgkmcnt(0)
    v_lshlrev_b32 v101, 16, v101
    s_mov_b32 exec_hi, 0
    ds_write_b32 v97, v101
    s_mov_b64 exec, -1
    """)
    a(f'''
    s_lshl_b32 s54, s{sV}, 7
    s_add_u32 s54, s54, {L_PD}
    v_mov_b32 v98, s54
    v_mov_b32 v99, {L_RING}
    v_add_u32 v96, s{sBASE}, v1
    v_mov_b32 v97, v1
    s_mov_b32 s{sT}, 0
    s_mov_b32 s55, 0xffff0000
    s_movk_i32 s56, 0x7fff
    s_mov_b32 s{sHD+2}, {N}
    s_mov_b32 s{sEA+2}, {E*32}
    ''')
    a(f'''
    s_lshl_b32 s54, s{sNT}, 5
    s_sub_u32 s54, s54, 32
    v_add_u32 v100, s54, v1
    v_cmp_le_u32 s[58:59], s{sCNT}, v100
    v_cmp_gt_u32 vcc, 32, v1
    s_and_b64 vcc, vcc, s[58:59]
    s_cmp_eq_u32 s{sNT}, 0
    s_cbranch_scc1 L2_nodummy
    s_and_saveexec_b64 s[58:59], vcc
    s_cbranch_execz L2_dummy_restore
    v_add_u32 v100, s{sBASE}, v100
    v_lshlrev_b32 v101, 2, v100
    v_mov_b32 v102, 28
    ds_write_b32 v101, v102 offset:{L_R0}
    v_lshlrev_b32 v101, 1, v100
    v_mov_b32 v102, 0
    v_mov_b32 v103, 0
    ds_write_b16 v101, v102 offset:{L_RS}
    v_lshlrev_b32 v101, 3, v100
    ds_write_b64 v101, v[102:103] offset:{L_G}
    ''')
    a.label('L2_dummy_restore')
    a('s_mov_b64 exec, s[58:59]')
    a.label('L2_nodummy')
    def R(it,k): return 112+20*it+k
    def geo_pass(NI, first):
        for it in range(NI):
            a(f'ds_read_b32 v{R(it,1)}, v96 offset:{L_R0+256*it}')
            a(f'ds_read_b32 v{R(it,2)}, v96 offset:{L_S+256*it}')
        a('v_lshrrev_b32 v104, 1, v96')
        a('v_lshlrev_b32 v105, 1, v96')
        for it in range(NI):
            if it==0: a(f'v_cmp_lt_i32 s[90:91], 0, v97')
            elif it==1: a(f'v_cmp_lt_i32 s[92:93], 64, v97')
            else: a(f'v_cmp_lt_i32 s[{90+2*it}:{91+2*it}], s{57 if it==2 else 54}, v97')
        for it in range(NI):
            e=R(it,1); wb=R(it,2)
            a(f's_waitcnt lgkmcnt({2*(NI-1-it)+2*it})')
            a(f"""
            v_bfe_u32 v{R(it,3)}, v{e}, 15, 14
            v_and_b32 v{R(it,4)}, 7, v{e}
            v_mad_u32_u24 v{R(it,5)}, v{R(it,3)}, 6, v99
            v_lshl_add_u32 v{R(it,7)}, v{R(it,4)}, 4, v98
            v_and_b32 v{R(it,5)}, -4, v{R(it,5)}
            ds_read_b96 v[{R(it,8)}:{R(it,10)}], v{R(it,7)}
            ds_read2_b32 v[{R(it,12)}:{R(it,13)}], v{R(it,5)} offset1:1
            v_and_b32 v{R(it,5)}, s56, v{e}
            v_lshl_add_u32 v{wb}, v{R(it,5)}, 2, v{wb}
            v_lshlrev_b32 v{R(it,6)}, 4, v{R(it,3)}
            """)
        if first and 'nopf' not in ABL and 'pfe' not in ABL:
            a(f"""
            v_and_b32 v48, s{sMK}, v{R(0,2)}
            v_mov_b32 v51, 0
            v_mov_b32 v50, v{R(0,3)}
            s_mov_b32 exec_hi, 0
            buffer_load_dword v48, v48, s[{sEA}:{sEA+3}], 0 offen
            buffer_load_dword v49, v[50:51], s[{sHD}:{sHD+3}], 0 idxen offen
            s_mov_b64 exec, -1
            """)
        for it in range(NI):
            pd=R(it,8); ps=R(it,12); sh=R(it,6); t0=R(it,4); t1=R(it,5); t2=R(it,7); o=R(it,14); t3=R(it,17)
            a(f's_waitcnt lgkmcnt({2*(NI-1-it)+3*it})')
            a(f"""
            v_alignbit_b32 v{t0}, v{ps+1}, v{ps}, v{sh}
            v_lshrrev_b32 v{t2}, v{sh}, v{ps+1}
            v_lshlrev_b32 v{t1}, 16, v{t0}
            v_and_b32 v{t0}, s55, v{t0}
            v_lshlrev_b32 v{t2}, 16, v{t2}
            v_sub_f32 v{t1}, v{pd}, v{t1}
            v_sub_f32 v{t0}, v{pd+1}, v{t0}
            v_sub_f32 v{t2}, v{pd+2}, v{t2}
            v_mul_f32 v{t3}, v{t1}, v{t1}
            v_cvt_pk_bf16_f32 v{o+1}, v{t0}, v{t2}
            v_fmac_f32 v{t3}, v{t0}, v{t0}
            v_fmac_f32 v{t3}, v{t2}, v{t2}
            s_mov_b64 exec, s[{90+2*it}:{91+2*it}]
            ds_write_b32 v96, v{R(it,2)} offset:{L_R0+256*it}
            v_cvt_pk_bf16_f32 v{o}, v{t3}, v{t1}
            ds_write_b16 v104, v{R(it,3)} offset:{L_RS+128*it}
            ds_write_b64 v105, v[{o}:{o+1}] offset:{L_G+512*it}
            s_mov_b64 exec, -1
            """)
        a(f"""
        v_add_u32 v96, {256*NI}, v96
        v_subrev_u32 v97, {64*NI}, v97
        s_add_u32 s{sT}, s{sT}, {64*NI}
        """)
    a(f"""
    v_lshlrev_b32 v96, 2, v96
    v_sub_u32 v97, s{sCNT}, v97
    s_movk_i32 s57, 128
    s_movk_i32 s54, 192
    s_cmp_eq_u32 s{sCNT}, 0
    s_cbranch_scc1 L2_geo_done
    """)
    geo_pass(4, True)
    a.label('L2_geo_loop')
    a(f"""
    s_cmp_ge_u32 s{sT}, s{sCNT}
    s_cbranch_scc1 L2_geo_done
    """)
    geo_pass(3, False)
    a('s_branch L2_geo_loop')
    a.label('L2_geo_done')
    a(f"""
    v_lshrrev_b32 v97, 3, v1
    v_add_u32 v97, s{sBASE}, v97
    v_lshlrev_b32 v97, 1, v97
    v_add_u32 v{vRSa}, {L_RS}, v97
    v_lshrrev_b32 v97, 1, v1
    v_add_u32 v97, s{sBASE}, v97
    v_lshlrev_b32 v97, 2, v97
    v_add_u32 v{vR0a}, {L_R0}, v97
    v_and_b32 v97, 31, v1
    v_add_u32 v97, s{sBASE}, v97
    v_lshlrev_b32 v98, 2, v97
    v_add_u32 v{vR0e}, {L_R0}, v98
    v_lshrrev_b32 v98, 5, v1
    v_lshlrev_b32 v98, 2, v98
    v_lshl_add_u32 v98, v97, 3, v98
    v_add_u32 v{vGe}, {L_G}, v98
    s_mov_b32 s{sT}, 0
    s_sub_u32 s86, s{sNT}, 3
    s_sub_u32 s87, s{sNT}, 1
    s_sub_u32 s88, s{sNT}, 2
    """)
    for i in range(4): a(f'ds_read_u16 v{vHP+2*i}, v{vRSa} offset:{16*i}')
    a(f'ds_read_b32 v{vEAi}, v{vR0a}')
    a(f'ds_read_b32 v{vR0}, v{vR0e}')
    a(f'ds_read_b32 v{vG}, v{vGe}')
    if 'fprio' in ABL:
        PER=optl('per',[12])[0]
        a(f"""
        v_cvt_f32_u32 v96, s{sNT}
        v_rcp_f32 v96, v96
        s_nop 0
        v_mul_f32 v96, {f32bits(float(PER*65536*(2 if TRIMK in ABL else 1)))}, v96
        v_cvt_u32_f32 v96, v96
        s_nop 0
        v_readfirstlane_b32 s85, v96
        s_mov_b32 s84, 0
        s_sub_u32 s84, s84, s85
        """)
    a(f"""
    s_lshl_b32 s54, s{sV}, 11
    s_add_u32 s54, s54, {L_S}
    v_lshlrev_b32 v96, 4, v1
    v_add_u32 v96, s54, v96
    v_mov_b32 v100, 0
    v_mov_b32 v101, 0
    v_mov_b32 v102, 0
    v_mov_b32 v103, 0
    v_and_or_b32 v{vEAo}, v{vEAi}, s{sMK}, v{vEAc}
    """)
    if 'hst' in ABL:
        a(f"""
        s_cmp_eq_u32 s{sCNT}, 0
        s_cbranch_scc1 L2_hw0
        s_waitcnt vmcnt({0 if 'nopf' in ABL else 2})
        s_branch L2_hw1
        """)
        a.label('L2_hw0')
        a('s_waitcnt vmcnt(0)')
        a.label('L2_hw1')
    a(f"""
    s_waitcnt lgkmcnt(0)
    s_barrier
    """)
    st(7)
    a(f"""
    ds_write_b128 v96, v[100:103]
    ds_write_b128 v96, v[100:103] offset:1024
    """)
    if 'lone' in ABL:
        a(f's_cmp_ge_u32 s{sV}, 4\ns_cselect_b32 s{sNT}, 0, s{sNT}')
    a(f"""
    s_cmp_eq_u32 s{sNT}, 0
    s_cbranch_scc1 L2_notiles
    """)
    def idx_reads(toff):
        return [f'ds_read_u16 v{vHP+2*i}, v{vRSa} offset:{64*toff+16*i}' for i in range(4)] + \
               [f'ds_read_b32 v{vEAi}, v{vR0a} offset:{128*toff}']
    def rec_reads(toff):
        return [f'ds_read_b32 v{vR0}, v{vR0e} offset:{128*toff}', f'ds_read_b32 v{vG}, v{vGe} offset:{256*toff}']
    def srd_select(delta):
        return [f's_add_u32 s54, s{sT}, {delta}\ns_cmp_lt_u32 s54, s{sNT}\ns_cselect_b32 s{sHD+2}, {NH_}, 0\ns_cselect_b32 s{sEA+2}, {NE_}, 0']
    def dma2(slot):
        r=[(f'v_and_or_b32 v{vEAo}, v{vEAi}, s{sMK}, v{vEAc}\ns_add_u32 m0, s{sRB}, {slot*SLOT+4096}', f'buffer_load_dwordx4 v{vEAo}, s[{sEA}:{sEA+3}], 0 offen{EAF} lds')]
        for i in range(4):
            r.append((f's_add_u32 m0, s{sRB}, {slot*SLOT+1024*i}', f'buffer_load_dwordx4 v[{vHP+2*i}:{vHP+2*i+1}], s[{sHD}:{sHD+3}], 0 idxen offen{HF} lds'))
        if 'ealast' in ABL: r=r[1:]+r[:1]
        return r
    def dma(slot):
        return [x+'\n'+y for x,y in dma2(slot)]
    def x_reads(slot):
        return [f'ds_read_b128 v[{vX+4*s}:{vX+4*s+3}], v{vHA+s} offset:{slot*SLOT}' for s in range(4)] + \
               [f'ds_read_b128 v[{vXE}:{vXE+3}], v{vEAr} offset:{slot*SLOT}']
    def s_addr(): return [f'v_bitop3_b32 v{vA1}, v{vR0}, 28, v{vC1} bitop3:0x6a', f'v_bfi_b32 v{vS1}, v{vMK2}, v{vG}, v{vOne}', f'v_perm_b32 v{vS2}, v{vG}, v{vG}, s{sSEL}']
    def s_writes(): return [f'ds_write_b32 v{vA1}, v{vS1}', f'ds_write_b32 v{vCD}, v{vS2}']
    def x6_read(): return [f'ds_read_b128 v[{vX6}:{vX6+3}], v{vX6r}']
    def sf_reads():
        r=[]
        for s2 in range(2):
            r.append(f'ds_read_b64_tr_b16 v[{vSF+4*s2}:{vSF+4*s2+1}], v{vSTa} offset:{1024*s2}')
            r.append(f'ds_read_b64_tr_b16 v[{vSF+4*s2+2}:{vSF+4*s2+3}], v{vSTb} offset:{1024*s2}')
        return r
    def s_restore(): return [f'ds_write_b32 v{vA1}, v{vZero}']
    def mfma1(dst):
        r=[]
        for blk in range(2):
            D=f'v[{dst+16*blk}:{dst+16*blk+15}]'
            for sp in range(2):
                C = D if sp>0 else '0'
                s_=2*blk+sp
                r.append(f'v_mfma_f32_32x32x16_bf16 {D}, v[{vX+4*s_}:{vX+4*s_+3}], v[{vI+4*sp}:{vI+4*sp+3}], {C}')
            r.append(f'v_mfma_f32_32x32x16_bf16 {D}, v[{vXE}:{vXE+3}], v[{vW3+4*blk}:{vW3+4*blk+3}], {D}')
            r.append(f'v_mfma_f32_32x32x16_bf16 {D}, v[{vX6}:{vX6+3}], v[{vW6+4*blk}:{vW6+4*blk+3}], {D}')
        return r
    ONE=f'v[{vONE}:{vONE+3}]'
    def plus1(blk):
        Eb=f'v[{vE+16*blk}:{vE+16*blk+15}]'
        return f'v_mfma_f32_32x32x16_bf16 {Eb}, {ONE}, {ONE}, {Eb}'
    def mfma2(cur,blk,s2):
        D=f'v[{vD2+16*blk}:{vD2+16*blk+15}]'; m=cur+8*blk+4*s2
        return f'v_mfma_f32_32x32x16_bf16 {D}, v[{m}:{m+3}], v[{vSF+4*s2}:{vSF+4*s2+3}], {D}'
    def keep(x):
        if 'nomfma' in ABL and x.startswith('v_mfma'): return False
        if 'nolds' in ABL and x.startswith('ds_'): return False
        if 'nodma' in ABL and 'buffer_load' in x: return False
        if 'notrans' in ABL and x.startswith(('v_exp','v_rcp')): return False
        if 'novalu' in ABL and x.startswith(('v_exp','v_rcp','v_mul','v_cvt','v_pk_mul')): return False
        return True
    def emit(backbone, inserts):
        backbone=[x if keep(x) else 's_nop 0' for x in backbone]
        inserts={k:[x for x in v if keep(x)] for k,v in inserts.items()}
        for k_ in sorted(k for k in inserts if k<0):
            for s_ in inserts[k_]: a(s_)
        for i,ins in enumerate(backbone):
            a(ins)
            for s_ in inserts.get(i,[]): a(s_)
    nlab=[0]
    PK='pk' in ABL
    DMAPOS=optl('dma',[37,48,60,70,82] if PK else [41,52,63,76,92])
    M1POS=optl('m1',[37,40,43,46,49,52,55,58] if PK else [42,46,50,54,58,62,68,74])
    SFPOS=optl('sf',[0,2,4,6]); RSPOS=optl('rs',[8])[0]; SAPOS=optl('sa',[9,10,11]); SWPOS=optl('sw',[12,13]); X6POS=optl('x6',[14])[0]
    VMPOS=optl('vm',[16])[0]; XPOS=optl('x',[16,18,20,22,24]); RECPOS=optl('rec',[26,27]); IDXPOS=optl('idx',[28,29,30,31,32])
    LGPOS=optl('lg',[36] if PK else [40])[0]; M2POS=optl('m2',[85,89,93,95] if PK else [89,95,111,111]); P1POS=optl('p1',[17,33])
    def body(p, steady, extra_first=None):
        cur=vD1[p]; nxt=vD1[1-p]
        bb=[]
        for blk in range(2):
            bb += [f'v_exp_f32 v{vE+16*blk+i}, v{cur+16*blk+i}' for i in range(16)]
        for blk in range(2):
            bb += [f'v_rcp_f32 v{vE+16*blk+i}, v{vE+16*blk+i}' for i in range(16)]
        if 'pk' in ABL:
            bb += [f'v_pk_mul_f32 v[{vE+2*i}:{vE+2*i+1}], v[{vE+2*i}:{vE+2*i+1}], v[{cur+2*i}:{cur+2*i+1}]' for i in range(16)]
            bb += [f'v_cvt_pk_bf16_f32 v{cur+q}, v{vE+2*q}, v{vE+2*q+1}' for q in range(16)]
        else:
            bb += [f'v_mul_f32 v{vE+i}, v{vE+i}, v{cur+i}' for i in range(16)]
            bb += [f'v_cvt_pk_bf16_f32 v{cur+q}, v{vE+2*q}, v{vE+2*q+1}' for q in range(8)]
            bb += [f'v_mul_f32 v{vE+16+i}, v{vE+16+i}, v{cur+16+i}' for i in range(16)]
            bb += [f'v_cvt_pk_bf16_f32 v{cur+8+q}, v{vE+16+2*q}, v{vE+16+2*q+1}' for q in range(8)]
        ins={}
        def put(pos,x):
            ins.setdefault(pos,[]).append(x)
        if not ('trim' in ABL and steady): put(-100,'s_waitcnt lgkmcnt(0)')
        if 'prio' in ABL:
            put(-99,f'''s_and_b32 s54, s{sT}, 2
            s_cmp_eq_u32 s54, 0
            s_cbranch_scc1 Lp{nlab[0]}a
            s_setprio {1-p}
            s_branch Lp{nlab[0]}b
            Lp{nlab[0]}a:
            s_setprio {3-p}
            Lp{nlab[0]}b:''')
            nlab[0]+=1
        if 'fprio' in ABL and not ('trim' in ABL and p==1):
            n=nlab[0]
            put(-99,f'''s_add_u32 s84, s84, s85
            s_bitcmp1_b32 s84, 17
            s_cbranch_scc1 Lp{n}h
            s_bitcmp1_b32 s84, 16
            s_cbranch_scc1 Lp{n}a
            s_setprio 3
            s_branch Lp{n}z
            Lp{n}a:
            s_setprio 2
            s_branch Lp{n}z
            Lp{n}h:
            s_bitcmp1_b32 s84, 16
            s_cbranch_scc1 Lp{n}b
            s_setprio 1
            s_branch Lp{n}z
            Lp{n}b:
            s_setprio 0
            Lp{n}z:''')
            nlab[0]+=1
        if steady and p==0:
            n=nlab[0]; nlab[0]+=1
            if 'nozf' in ABL:
                put(0,f's_cmp_lg_u32 s{sT}, 0\ns_cbranch_scc1 Ld{n}\ns_cmp_lt_u32 s{sNT}, 3\ns_cbranch_scc1 Ld{n}\n'+'\n'.join(dma(0))+f'\nLd{n}:')
            else:
                put(0,f's_cmp_lg_u32 s{sT}, 0\ns_cbranch_scc1 Ld{n}\n'+'\n'.join(dma(0))+f'\nLd{n}:')
        for x,q in zip(sf_reads(),SFPOS): put(q,x)
        put(RSPOS,s_restore()[0])
        if extra_first:
            for x in extra_first: put(RSPOS+4,x)
        put(P1POS[0],plus1(0))
        put(P1POS[1],plus1(1))
        if steady:
            for x,q in zip(s_addr(),SAPOS): put(q,x)
            for x,q in zip(s_writes(),SWPOS): put(q,x)
            put(X6POS,x6_read()[0])
            if 'nozf' in ABL:
                n=nlab[0]; nlab[0]+=1
                if 'vmstat' in ABL:
                    put(VMPOS,'s_waitcnt lgkmcnt(0)\ns_memtime s[98:99]\ns_waitcnt lgkmcnt(0)\ns_mov_b32 s62, s98')
                put(VMPOS,f's_cmp_lt_i32 s{sT}, s88\ns_waitcnt vmcnt(5)\ns_cbranch_scc1 Lw{n}\ns_waitcnt vmcnt(0)\nLw{n}:')
                if 'vmstat' in ABL:
                    put(VMPOS,f's_memtime s[98:99]\ns_waitcnt lgkmcnt(0)\ns_sub_u32 s98, s98, s62\nv_readlane_b32 s99, v{vTM}, 24\ns_add_u32 s98, s98, s99\nv_writelane_b32 v{vTM}, s98, 24')
            else: put(VMPOS,'s_waitcnt vmcnt(5)')
            for x,q in zip(x_reads(1-p),XPOS): put(q,x)
            for x,q in zip(rec_reads(p+2),RECPOS): put(q,x)
            for x,q in zip(idx_reads(p+3),IDXPOS): put(q,x)
            if 'nozf' in ABL: pass
            elif 'trim' in ABL:
                n=nlab[0]; nlab[0]+=1
                put(LGPOS-2,f's_cmp_lt_i32 s{sT}, s86\ns_cbranch_scc1 Lz{n}\ns_mov_b32 s{sHD+2}, 0\ns_mov_b32 s{sEA+2}, 0\nLz{n}:')
            else: put(LGPOS-2,srd_select(3)[0])
            put(LGPOS,'s_waitcnt lgkmcnt(0)')
            if 'nozf' in ABL:
                n=nlab[0]; nlab[0]+=1
                put(DMAPOS[0],f's_cmp_lt_i32 s{sT}, s86\ns_cbranch_scc0 Lnd{n}\n'+'\n'.join(dma(1-p))+f'\nLnd{n}:')
            else:
              for (x,y),q in zip(dma2(1-p),DMAPOS):
                if q>0 and q-1>LGPOS-1 and 'trim' in ABL: put(q-1,x); put(q,y)
                else: put(q,x+'\n'+y)
            for x,q in zip(mfma1(nxt),M1POS): put(q,x)
        for (b_,s_),q in zip(((0,0),(0,1),(1,0),(1,1)),M2POS): put(q,mfma2(cur,b_,s_))
        emit(bb,ins)
    def late_consts(a):
        a(f'''
        v_and_b32 v97, 31, v1
        v_lshrrev_b32 v98, 5, v1
        v_bfe_u32 v99, v97, 1, 3
        v_lshlrev_b32 v100, 7, v97
        v_add_u32 v100, s{sRB}, v100
        ''')
        for s in range(4):
            a(f'''
            v_add_u32 v101, {2*s}, v98
            v_xor_b32 v101, v101, v99
            v_lshl_add_u32 v{vHA+s}, v101, 4, v100
            ''')
        a(f'''
        v_lshrrev_b32 v101, 4, v97
        v_xor_b32 v101, v101, v98
        v_lshlrev_b32 v101, 4, v101
        v_lshl_add_u32 v101, v97, 5, v101
        v_add_u32 v101, s{sRB}, v101
        v_add_u32 v{vEAr}, 4096, v101
        s_lshl_b32 s57, s{sV}, 11
        s_add_u32 s57, s57, {L_S}
        v_lshlrev_b32 v101, 6, v97
        v_add_u32 v101, s57, v101
        v_bfe_u32 v102, v97, 2, 2
        v_xor_b32 v103, v98, v102
        v_lshl_add_u32 v{vX6r}, v103, 4, v101
        v_lshlrev_b32 v103, 1, v98
        v_xor_b32 v104, v103, v102
        v_lshl_add_u32 v{vC1}, v104, 4, v101
        v_add_u32 v103, 1, v103
        v_xor_b32 v104, v103, v102
        v_lshl_add_u32 v104, v104, 4, v101
        v_add_u32 v{vCD}, 12, v104
        v_cmp_gt_u32 vcc, 32, v1
        v_mov_b32 v103, 0xffff0000
        v_mov_b32 v104, -1
        v_cndmask_b32 v{vMK2}, v104, v103, vcc
        v_mov_b32 v{vOne}, 0x3f80
        v_mov_b32 v{vONE+1}, 0
        v_mov_b32 v{vONE+2}, 0
        v_mov_b32 v{vONE+3}, 0
        v_cndmask_b32 v{vONE}, 0, v{vOne}, vcc
        v_lshlrev_b32 v101, 3, v98
        v_sub_u32 v101, v97, v101
        v_and_b32 v102, 1, v101
        v_lshlrev_b32 v102, 4, v102
        v_lshlrev_b32 v102, v102, v{vOne}
        v_ashrrev_i32 v101, 1, v101
        ''')
        for k in range(8):
            q=8*(k>>2)+(k&3)
            a(f'v_cmp_eq_u32 s[{90+2*(k&3)}:{91+2*(k&3)}], {q}, v101')
            if (k&3)==3:
                for kk in range(k-3,k+1):
                    a(f'v_cndmask_b32 v{vI+kk}, 0, v102, s[{90+2*(kk&3)}:{91+2*(kk&3)}]')
        a(f'''
        v_and_b32 v101, 15, v1
        v_lshrrev_b32 v101, 2, v101
        v_lshl_add_u32 v101, v98, 2, v101
        v_lshlrev_b32 v101, 6, v101
        v_and_b32 v102, 1, v1
        v_lshl_add_u32 v101, v102, 3, v101
        v_add_u32 v101, s57, v101
        v_bfe_u32 v102, v1, 4, 1
        v_bfe_u32 v103, v1, 1, 1
        v_lshl_add_u32 v102, v102, 1, v103
        v_xor_b32 v103, v102, v98
        v_lshl_add_u32 v{vSTa}, v103, 4, v101
        v_add_u32 v103, 2, v98
        v_xor_b32 v103, v102, v103
        v_lshl_add_u32 v103, v103, 4, v101
        v_add_u32 v{vSTb}, 512, v103
        ''')

    lc=Asm(); late_consts(lc); lcl=list(lc.lines); per=(len(lcl)+9)//10
    def dma_lc(slot,k0):
        for k,x in enumerate(dma(slot)):
            a(x)
            if 'ilc' in ABL:
                for y in lcl[(k0+k)*per:(k0+k+1)*per]: a(y)
    a(f's_mov_b32 s{sHD+2}, {N}')
    a(f's_mov_b32 s{sEA+2}, {E*32}')
    if 'rampb' in ABL:
        dma_lc(0,0)
        st(13+18)
        for x in idx_reads(1): a(x)
        for y in lcl: a(y)
        for x in s_addr(): a(x)
        for x in s_writes(): a(x)
        for x in x6_read(): a(x)
        st(15)
        a('s_waitcnt vmcnt(0)')
        st(30)
        for x in x_reads(0): a(x)
        for x in rec_reads(1): a(x)
        a('s_waitcnt lgkmcnt(0)')
        for x in mfma1(vD1[0]): a(x)
        a(f's_cmp_lt_u32 s{sNT}, 2\ns_cbranch_scc1 L2_nod1')
        for x in dma(1): a(x)
        a.label('L2_nod1')
        st(14)
        for x in idx_reads(2): a(x)
        a('s_waitcnt lgkmcnt(0)')
    else:
        dma_lc(0,0)
        st(13+18)
        for x in idx_reads(1): a(x)
        if 'nozf' in ABL:
            a(f's_cmp_lt_u32 s{sNT}, 2\ns_cbranch_scc1 L2_nod1')
        else: a(srd_select(1)[0])
        a('s_waitcnt lgkmcnt(0)')
        dma_lc(1,5)
        if 'nozf' in ABL: a.label('L2_nod1')
        st(14)
        for x in idx_reads(2): a(x)
        if 'nozf' not in ABL: a(srd_select(2)[0])
        if 'ilc' not in ABL:
            for y in lcl: a(y)
        for x in s_addr(): a(x)
        for x in s_writes(): a(x)
        for x in x6_read(): a(x)
        st(15)
        if 'nozf' in ABL:
            a(f's_cmp_gt_u32 s{sNT}, 1\ns_waitcnt vmcnt(5)\ns_cbranch_scc1 L2_w1\ns_waitcnt vmcnt(0)')
            a.label('L2_w1')
        else: a('s_waitcnt vmcnt(5)')
        st(30)
        for x in x_reads(0): a(x)
        for x in rec_reads(1): a(x)
        a('s_waitcnt lgkmcnt(0)')
        for x in mfma1(vD1[0]): a(x)
    st(8)
    stampc(a,12,vTM,98)
    if DEBUG_TM: a(f'v_writelane_b32 v{vTM}, s{sNT}, 22\nv_writelane_b32 v{vTM}, s{sG}, 23\ns_getreg_b32 s98, hwreg(HW_REG_HW_ID)\nv_writelane_b32 v{vTM}, s98, {21 if VMS in ABL else 24}')
    JM=[0,1,4,5]
    RESV=[[232,233,234,236],[237,238,252,253]]
    WXV=[192,196,200,204,208,212,228,248]
    def epi_prefetch(p):
        nxt=vD1[1-p]
        r=[]
        r.append('v_lshlrev_b32 v10, 4, v1')
        for ff in range(16):
            dst = 16+4*ff if ff<8 else nxt+4*(ff-8)
            if 'hst' in ABL and ff<NHS:
                r.append(f'v_add_u32 v9, {hstage_addr(ff)}, v10\nds_read_b128 v[{dst}:{dst+3}], v9')
            else:
                r.append(f'v_add_u32 v9, {(F_H1+ff)*1024}, v10\nbuffer_load_dwordx4 v[{dst}:{dst+3}], v9, s[{sWF}:{sWF+3}], 0 offen')
        r.append(f"""
        v_lshrrev_b32 v9, 3, v1
        v_lshlrev_b32 v9, 3, v9
        v_add_u32 v3, s{sG}, v9
        v_add_u32 v9, s{sNODE0}, v9
        v_cmp_gt_u32 vcc, {BN}, v3
        v_mov_b32 v4, -1
        v_and_b32 v241, 7, v1
        v_lshlrev_b32 v241, 4, v241
        v_cndmask_b32 v240, v4, v9, vcc
        """)
        r.append(f"""
        v_bfe_u32 v9, v1, 1, 3
        v_lshlrev_b32 v9, 3, v9
        v_add_u32 v3, s{sG}, v9
        v_add_u32 v9, s{sNODE0}, v9
        v_bfe_u32 v5, v1, 4, 1
        v_and_b32 v8, 1, v1
        v_lshl_add_u32 v5, v5, 1, v8
        v_cmp_gt_u32 vcc, {BN}, v3
        v_subrev_u32 v5, 1, v5
        v_cmp_gt_u32 s[56:57], 3, v5
        v_mul_u32_u24 v9, 6, v9
        s_and_b64 vcc, vcc, s[56:57]
        v_cmp_gt_u32 s[56:57], 32, v1
        v_lshl_add_u32 v9, v5, 1, v9
        v_mov_b32 v4, 0x7fffff00
        s_and_b64 vcc, vcc, s[56:57]
        v_cndmask_b32 v10, v4, v9, vcc
        buffer_load_ushort v11, v10, s[{sPOS}:{sPOS+3}], 0 offen
        """)
        return r
    def epi_rows():
        return f"""s_waitcnt lgkmcnt(0)
        s_lshl_b32 s62, s{sV}, 11
        s_add_u32 s62, s62, {L_S}
        s_mov_b32 m0, s62
        s_nop 0
        buffer_load_dwordx4 v[240:241], s[{sH}:{sH+3}], 0 idxen offen lds"""
    def epilogue(p):
        nxt=vD1[1-p]; cur=vD1[p]
        pk=vE; T=vE+16; acc=vE+24
        a(f"""
        v_and_b32 v3, 31, v1
        v_lshrrev_b32 v4, 5, v1
        v_bfe_u32 v5, v1, 1, 3
        v_lshlrev_b32 v5, 7, v5
        v_lshl_add_u32 v5, v4, 4, v5
        v_add_u32 v5, s62, v5
        v_lshlrev_b32 v6, 7, v4
        v_add_u32 v6, {L_WST+2048+256}, v6
        v_lshlrev_b32 v7, 1, v3
        v_lshl_add_u32 v7, v4, 8, v7
        v_add_u32 v7, s62, v7
        s_mov_b32 s54, {f32bits(-math.log(2.0))}
        s_mov_b32 s55, s54
        s_waitcnt vmcnt(0)
        """)
        for s_ in range(4):
            a(f'ds_read_b128 v[{48+4*s_}:{51+4*s_}], v5 offset:{32*s_}')
        for f in range(8):
            a(f'ds_read_b128 v[{WXV[f]}:{WXV[f]+3}], v6 offset:{16*f}')
        for i in range(16):
            a(f'v_pk_mul_f32 v[{vD2+2*i}:{vD2+2*i+1}], v[{vD2+2*i}:{vD2+2*i+1}], s[54:55]')
        a('s_waitcnt lgkmcnt(8)')
        for b2 in range(2):
            D=f'v[{cur+16*b2}:{cur+16*b2+15}]'
            for s_ in range(4):
                C = D if s_>0 else '0'
                a(f'v_mfma_f32_32x32x16_bf16 {D}, v[{48+4*s_}:{51+4*s_}], v[{16+4*(2*s_+b2)}:{19+4*(2*s_+b2)}], {C}')
            if b2==0:
                for blk in range(2):
                    for q in range(8):
                        a(f'v_cvt_pk_bf16_f32 v{pk+8*blk+q}, v{vD2+16*blk+2*q}, v{vD2+16*blk+2*q+1}')
        for b2 in range(2):
            for m in range(4):
                a(f'ds_read_u16 v{RESV[b2][m]}, v7 offset:{128*JM[m]+64*b2}')
        for b2 in range(2):
            D=f'v[{cur+16*b2}:{cur+16*b2+15}]'
            for blk in range(2):
                for sp in range(2):
                    f=(blk*2+sp)*2+b2
                    a(f'v_mfma_f32_32x32x16_bf16 {D}, v[{pk+8*blk+4*sp}:{pk+8*blk+4*sp+3}], v[{nxt+4*f}:{nxt+4*f+3}], {D}')
            if b2==0:
                a('s_waitcnt lgkmcnt(8)')
                a(f'v_mul_f32 v{acc}, v{vD2}, v{WXV[0]}')
                a(f'v_mul_f32 v{acc+1}, v{vD2+1}, v{WXV[0]+1}')
                for i in range(2,32):
                    a(f'v_fmac_f32 v{acc+(i&1)}, v{vD2+i}, v{WXV[i>>2]+(i&3)}')
                a(f'v_add_f32 v{acc}, v{acc}, v{acc+1}')
                a(f'v_mov_b32 v{acc+1}, v{acc}')
        a(f'v_permlane32_swap_b32 v{acc}, v{acc+1}')
        a(f"""
        v_lshlrev_b32 v11, 16, v11
        v_add_f32 v{acc}, v{acc}, v{acc+1}
        v_add_f32 v11, v11, v{acc}
        v_cvt_pk_bf16_f32 v11, v11, v11
        buffer_store_short v11, v10, s[{sO1}:{sO1+3}], 0 offen
        s_mov_b32 s54, {f32bits(-LOG2E)}
        """)
        for b2 in range(2):
            for m in range(4):
                a(f'v_mul_f32 v{T+4*b2+m}, s54, v{cur+16*b2+2*m}')
        for k in range(8): a(f'v_exp_f32 v{T+k}, v{T+k}')
        for k in range(8): a(f'v_add_f32 v{T+k}, 1.0, v{T+k}')
        for k in range(8): a(f'v_rcp_f32 v{T+k}, v{T+k}')
        a('s_waitcnt lgkmcnt(0)')
        for b2 in range(2):
            for m in range(4):
                x=cur+16*b2+2*m; t=T+4*b2+m; hh=RESV[b2][m]
                a(f'v_lshlrev_b32 v{hh}, 16, v{hh}')
                a(f'v_fma_f32 v{t}, v{x}, v{t}, v{hh}')
                a(f'v_cvt_pk_bf16_f32 v{t}, v{t}, v{t}')
        for b2 in range(2):
            for m in range(4):
                a(f'ds_write_b16 v7, v{T+4*b2+m} offset:{1024+128*JM[m]+64*b2}')
        a(f"""
        v_lshlrev_b32 v6, 4, v1
        v_add_u32 v6, s62, v6
        ds_read_b128 v[48:51], v6 offset:1024
        s_waitcnt lgkmcnt(0)
        buffer_store_dwordx4 v[48:51], v[240:241], s[{sO0}:{sO0+3}], 0 idxen offen{SC1O}
        """)
        st(10)
        if DEBUG_TM: a('s_waitcnt vmcnt(0)')
        st(11)
        stamp_store(a,vTM,98,44,45,0x80000,sV,254)
        a('s_endpgm')
    for p in range(2):
        a.label(f'L2_s{p}')
        if 'trim' in ABL:
            a(f's_cmp_ge_i32 s{sT}, s87\ns_cbranch_scc1 L2_l{p}')
        else:
            a(f'''
            s_add_u32 s54, s{sT}, 1
            s_cmp_ge_u32 s54, s{sNT}
            s_cbranch_scc1 L2_l{p}
            ''')
        if DEBUG_TM and p==0:
            for tt,ix in ((2,25),(4,26),(6,27),(8,28),(10,29)):
                a(f's_cmp_lg_u32 s{sT}, {tt}\ns_cbranch_scc1 Lst{ix}')
                stampc(a,ix,vTM,98)
                a.label(f'Lst{ix}')
        body(p, True)
        a(f's_add_u32 s{sT}, s{sT}, 1')
        if p==1:
            a(f'''
            v_add_u32 v{vRSa}, 128, v{vRSa}
            v_add_u32 v{vR0a}, 256, v{vR0a}
            v_add_u32 v{vR0e}, 256, v{vR0e}
            v_add_u32 v{vGe}, 512, v{vGe}
            s_branch L2_s0
            ''')
    for p in range(2):
        a.label(f'L2_l{p}')
        a(f'''
        s_cmp_lt_u32 s{sW1}, {NCH}
        s_cbranch_scc1 L2_l{p}n
        ''')
        body(p, False, None) if False else None
        for x in epi_prefetch(p): a(x)
        body(p, False, [epi_rows()])
        st(9)
        stampc(a,13,vTM,98)
        epilogue(p)
        a.label(f'L2_l{p}n')
        body(p, False)
        a('s_branch L2_nextbatch')
    a.label('L2_notiles')
    a(f'''
    s_cmp_lt_u32 s{sW1}, {NCH}
    s_cbranch_scc1 L2_nextbatch
    ''')
    for x in epi_prefetch(0): a(x)
    a(epi_rows())
    st(9)
    epilogue(0)
    a.label('L2_nextbatch')
    a(f'''
    s_waitcnt vmcnt(0) lgkmcnt(0)
    s_mov_b32 s{sW0}, s{sW1}
    s_add_u32 s{sW1}, s{sW1}, 1
    s_branch L2_batch
    ''')
    a.label('L2_end')
    a('s_endpgm')
    return a.finalize(), 256, 102, (L_END if 'hst' in ABL else L_HX)

def main():
    k1,v1,s1,l1 = gen_k1()
    k2,v2,s2,l2 = gen_k2()
    hdr = open('gather_scatter__cheap_equivariant_egnn__graph.s.ref').read().split('; Override launch')[0]
    out = hdr
    out += f'; @launch kernel=egnn_part_kernel grid=({NCH+1+NTW},1,1) block=(512,1,1) lds={l1}\n'
    out += f'; @launch kernel=egnn_main_kernel grid=({NBK},1,1) block=(512,1,1) lds={l2}\n'
    out += '''; Algorithm (two launches):
'''
    out += '.amdgcn_target "amdgcn-amd-amdhsa--gfx950"\n.text\n'
    for name,body in (('egnn_part_kernel',k1),('egnn_main_kernel',k2)):
        out += f'.globl {name}\n.p2align 8\n.type {name},@function\n' + body
    out += '.section .rodata,"a"\n'
    for name,nv,ns in (('egnn_part_kernel',v1,s1),('egnn_main_kernel',v2,s2)):
        acc=(nv+3)//4*4
        out += f'''.p2align 6
.amdhsa_kernel {name}
  .amdhsa_next_free_vgpr {nv}
  .amdhsa_next_free_sgpr {ns}
  .amdhsa_accum_offset {acc}
  .amdhsa_group_segment_fixed_size 0
  .amdhsa_kernarg_size 88
  .amdhsa_user_sgpr_count 2
  .amdhsa_user_sgpr_kernarg_segment_ptr 1
  .amdhsa_system_sgpr_workgroup_id_x 1
  .amdhsa_float_denorm_mode_32 3
.end_amdhsa_kernel
'''
    dst = [x for x in sys.argv[1:] if not x.startswith('--')]
    path = dst[0] if dst else 'gather_scatter__cheap_equivariant_egnn__graph.s'
    open(path,'w').write(out)
    print('wrote',path,len(out))
main()
```

```python
import sys, math
from asmlib import Asm

N=12500; E=800000; CH=3200; NCH=250; NBK=256; BN=49
ROW=4224
OFFS=0; ENT=0x110000; WF=0x420000; TA=0x500000; TB=0x700000; TM=0x900000
NF=18; WDO=NF*1024; WXO=NF*1024+256; WFSZ=NF*1024+512
NTW=98
CAP=3584
LOG2E=1.4426950408889634
def f32bits(x):
    import struct; return struct.unpack('<I',struct.pack('<f',x))[0]

DEBUG_TM = '--tm' in sys.argv
K1PRIO = '--nok1prio' not in sys.argv
TFIRST = '--tfirst' in sys.argv
SC1 = '' if '--nosc1' in sys.argv else (' sc0 sc1' if '--sc01' in sys.argv else ' sc1')
SC1T = '' if '--tplain' in sys.argv else SC1
SC1W = SC1 if '--wsc1' in sys.argv else ''
SC1O = ' sc1' if '--osc1' in sys.argv else (' nt' if '--ont' in sys.argv else '')
PFN = int(([x[6:] for x in sys.argv if x.startswith('--pfn=')] or ['0'])[0])
PFK1 = 2 if PFN else 0

F_W3=0
F_H1=2
F_H2=10

def stamp(a, idx, vreg, sp):
    if not DEBUG_TM: return
    a(f'''
    s_memrealtime s[{sp}:{sp+1}]
    s_waitcnt lgkmcnt(0)
    v_writelane_b32 v{vreg}, s{sp}, {idx}
    ''')
def stampc(a, idx, vreg, sp):
    if not DEBUG_TM: return
    a(f'''
    s_memtime s[{sp}:{sp+1}]
    s_waitcnt lgkmcnt(0)
    v_writelane_b32 v{vreg}, s{sp}, {idx}
    ''')
def stamp_store(a, vreg, sp, ws_lo, ws_hi, region, wave_s, vt):
    if not DEBUG_TM: return
    a(f'''
    s_lshl_b32 s{sp}, s2, 3
    s_add_u32 s{sp}, s{sp}, s{wave_s}
    s_lshl_b32 s{sp}, s{sp}, 7
    s_add_u32 s{sp}, s{sp}, {TM+region}
    s_add_u32 s{sp}, s{ws_lo}, s{sp}
    s_addc_u32 s{sp+1}, s{ws_hi}, 0
    v_and_b32 v{vt}, 63, v0
    v_lshlrev_b32 v{vt}, 2, v{vt}
    s_mov_b32 exec_hi, 0
    global_store_dword v{vt}, v{vreg}, s[{sp}:{sp+1}]
    s_mov_b64 exec, -1
    ''')

def gen_k1():
    a=Asm()
    K1_STAGE=8192; K1_WTOT=24576
    a.label('egnn_part_kernel')
    a(f'''
    s_cmp_gt_u32 s2, {NCH+NTW}
    s_cbranch_scc1 L1_end
    v_lshrrev_b32 v2, 6, v0
    v_and_b32 v1, 63, v0
    s_load_dwordx4 s[4:7], s[0:1], 24
    s_load_dwordx2 s[8:9], s[0:1], 80
    s_load_dwordx2 s[34:35], s[0:1], 16
    v_readfirstlane_b32 s3, v2
    s_cmp_eq_u32 s2, {NTW if TFIRST else NCH}
    s_cbranch_scc1 L1_wprep
    s_cmp_{'lt' if TFIRST else 'gt'}_u32 s2, {NTW if TFIRST else NCH}
    s_cbranch_scc1 L1_tables
    s_sub_u32 s38, s2, {NTW+1 if TFIRST else 0}
    s_setprio {3 if K1PRIO else 0}
    ''')
    if DEBUG_TM: a('v_mov_b32 v70, 0')
    stamp(a,0,70,36)
    a(f'''
    v_lshlrev_b32 v3, 4, v0
    v_mov_b32 v4, 0
    v_mov_b32 v5, 0
    v_mov_b32 v6, 0
    v_mov_b32 v7, 0
    ds_write_b128 v3, v[4:7]
    s_mul_i32 s10, s38, {CH*4}
    s_mul_i32 s11, s38, {ROW}
    v_add_u32 v48, 8192, v3
    s_waitcnt lgkmcnt(0)
    s_add_u32 s12, s6, s10
    s_addc_u32 s13, s7, 0
    s_mov_b32 s14, {CH*4}
    s_mov_b32 s15, 0x20000
    s_add_u32 s16, s4, s10
    s_addc_u32 s17, s5, 0
    s_mov_b32 s18, {CH*4}
    s_mov_b32 s19, 0x20000
    buffer_load_dwordx4 v[8:11], v3, s[12:15], 0 offen
    buffer_load_dwordx4 v[12:15], v48, s[12:15], 0 offen
    buffer_load_dwordx4 v[16:19], v3, s[16:19], 0 offen
    buffer_load_dwordx4 v[20:23], v48, s[16:19], 0 offen
    ''')
    if PFK1:
        a(f'''
        s_mul_i32 s10, s38, {CH*32}
        s_add_u32 s32, s34, s10
        s_addc_u32 s33, s35, 0
        s_cmp_lt_u32 s38, {PFN}
        s_cselect_b32 s34, {CH*32}, 0
        s_mov_b32 s35, 0x20000
        v_lshlrev_b32 v64, 7, v0
        v_add_u32 v65, {512*128}, v64
        buffer_load_dword v66, v64, s[32:35], 0 offen
        ''')
        if PFK1>1: a('buffer_load_dword v67, v65, s[32:35], 0 offen')
        a(f's_mul_i32 s10, s38, {CH*4}')
    a(f'''
    s_add_u32 s24, s8, {OFFS}
    s_addc_u32 s25, s9, 0
    s_add_u32 s24, s24, s11
    s_addc_u32 s25, s25, 0
    s_mov_b32 s26, {ROW}
    s_mov_b32 s27, 0x20000
    s_add_u32 s28, s8, {ENT}
    s_addc_u32 s29, s9, 0
    s_add_u32 s28, s28, s10
    s_addc_u32 s29, s29, 0
    s_mov_b32 s30, {CH*4}
    s_mov_b32 s31, 0x20000
    s_mov_b32 s22, -{BN}
    v_mov_b32 v50, 1
    v_lshlrev_b32 v51, 5, v0
    v_add_u32 v52, 16384, v51
    s_barrier
    s_waitcnt vmcnt({2+PFK1})
    ''')
    stamp(a,1,70,36)
    def keyslot(i, dst, tmp):
        a(f'''
        v_mul_u32_u24 v{tmp}, 21400, v{dst}
        v_lshrrev_b32 v{tmp}, 20, v{tmp}
        v_mad_i32_i24 v{40+i}, v{tmp}, s22, v{dst}
        v_and_b32 v{tmp+1}, 7, v{40+i}
        v_lshl_or_b32 v{tmp}, v{tmp}, 3, v{tmp+1}
        v_lshlrev_b32 v{24+i}, 2, v{tmp}
        ''')
    for u in range(4):
        keyslot(u, 8+u, 54+2*u)
        a(f'ds_add_rtn_u32 v{32+u}, v{24+u}, v50')
    a('''
    v_cmp_gt_u32 vcc, 288, v0
    s_and_saveexec_b64 s[20:21], vcc
    s_cbranch_execz L1_skipB1
    ''')
    for u in range(4):
        keyslot(4+u, 12+u, 54+2*u)
        a(f'ds_add_rtn_u32 v{36+u}, v{28+u}, v50')
    a.label('L1_skipB1')
    a('s_mov_b64 exec, s[20:21]')
    a(f's_waitcnt vmcnt({PFK1})')
    for i in range(8):
        base = 51 if i<4 else 52
        a(f'''
        v_lshrrev_b32 v54, 3, v{40+i}
        v_lshl_or_b32 v54, v{40+i}, 29, v54
        v_lshl_or_b32 v54, v{16+i}, 15, v54
        v_add3_u32 v{40+i}, v54, v{base}, {8*(i%4)}
        ''')
    a('''
    s_waitcnt lgkmcnt(0)
    s_barrier
    ''')
    stamp(a,2,70,36)
    a('''
    ds_read_b128 v[8:11], v3
    s_waitcnt lgkmcnt(0)
    v_add_u32 v12, v8, v9
    v_add_u32 v13, v12, v10
    v_add_u32 v14, v13, v11
    v_mov_b32 v15, v14
    ''')
    for sh in (1,2,4,8):
        a(f'v_add_u32_dpp v15, v15, v15 row_shr:{sh} row_mask:0xf bank_mask:0xf')
    a('v_add_u32_dpp v15, v15, v15 row_bcast:15 row_mask:0xa bank_mask:0xf')
    a('v_add_u32_dpp v15, v15, v15 row_bcast:31 row_mask:0xc bank_mask:0xf')
    a(f'''
    s_lshl_b32 s10, s3, 2
    s_add_u32 s10, s10, {K1_WTOT}
    v_mov_b32 v16, s10
    s_mov_b32 s20, 0
    s_brev_b32 s21, 1
    s_mov_b64 exec, s[20:21]
    ds_write_b32 v16, v15
    s_mov_b64 exec, -1
    v_and_b32 v17, 7, v1
    v_lshlrev_b32 v17, 2, v17
    v_add_u32 v17, {K1_WTOT}, v17
    s_waitcnt lgkmcnt(0)
    s_barrier
    ds_read_b32 v18, v17
    v_cmp_gt_u32 vcc, s3, v1
    s_waitcnt lgkmcnt(0)
    v_cndmask_b32 v18, 0, v18, vcc
    ''')
    for sh in (1,2,4):
        a(f'v_add_u32_dpp v18, v18, v18 row_shr:{sh} row_mask:0xf bank_mask:0xf')
    a(f'''
    v_readlane_b32 s10, v18, 7
    v_sub_u32 v15, v15, v14
    v_add_u32 v8+0, s10, v15
    '''.replace('v8+0','v19'))
    a(f'''
    v_add_u32 v21, v19, v12
    v_add_u32 v22, v19, v13
    v_add_u32 v20, v19, v8
    v_mov_b32 v56, v19
    v_mov_b32 v57, v20
    v_mov_b32 v58, v21
    v_mov_b32 v59, v22
    ds_write_b128 v3, v[56:59]
    v_lshl_or_b32 v60, v20, 16, v19
    v_lshl_or_b32 v61, v22, 16, v21
    v_lshlrev_b32 v62, 3, v0
    buffer_store_dwordx2 v[60:61], v62, s[24:27], 0 offen{SC1}
    s_cmp_lg_u32 s3, 0
    s_cbranch_scc1 L1_nosent
    s_mov_b32 s10, {CH | (CH<<16)}
    v_mov_b32 v63, s10
    v_lshlrev_b32 v62, 2, v1
    v_add_u32 v62, 4096, v62
    v_cmp_gt_u32 vcc, 32, v1
    s_and_saveexec_b64 s[20:21], vcc
    buffer_store_dword v63, v62, s[24:27], 0 offen{SC1}
    s_mov_b64 exec, s[20:21]
    ''')
    a.label('L1_nosent')
    a('''
    s_waitcnt lgkmcnt(0)
    s_barrier
    ''')
    stamp(a,3,70,36)
    for u in range(4):
        a(f'ds_read_b32 v{8+u}, v{24+u}')
    a('''
    v_cmp_gt_u32 vcc, 288, v0
    s_and_saveexec_b64 s[20:21], vcc
    s_cbranch_execz L1_skipB2
    ''')
    for u in range(4):
        a(f'ds_read_b32 v{12+u}, v{28+u}')
    a('s_waitcnt lgkmcnt(0)')
    for u in range(4):
        a(f'v_add_lshl_u32 v{12+u}, v{12+u}, v{36+u}, 2')
    for u in range(4):
        a(f'ds_write_b32 v{12+u}, v{44+u} offset:{K1_STAGE}')
    a.label('L1_skipB2')
    a('s_mov_b64 exec, s[20:21]')
    a('s_waitcnt lgkmcnt(0)')
    for u in range(4):
        a(f'v_add_lshl_u32 v{8+u}, v{8+u}, v{32+u}, 2')
    for u in range(4):
        a(f'ds_write_b32 v{8+u}, v{40+u} offset:{K1_STAGE}')
    a(f'''
    s_waitcnt lgkmcnt(0)
    s_barrier
    ds_read_b128 v[8:11], v3 offset:{K1_STAGE}
    ds_read_b128 v[12:15], v3 offset:{K1_STAGE+8192}
    s_waitcnt lgkmcnt(1)
    buffer_store_dwordx4 v[8:11], v3, s[28:31], 0 offen{SC1}
    s_waitcnt lgkmcnt(0)
    buffer_store_dwordx4 v[12:15], v48, s[28:31], 0 offen{SC1}
    ''')
    stamp(a,4,70,36)
    if DEBUG_TM: a('s_waitcnt vmcnt(0)')
    stamp(a,5,70,36)
    stamp_store(a,70,36,8,9,0,3,69)
    a('s_endpgm')
    a.label('L1_wprep')
    a(f'''
    s_load_dwordx2 s[10:11], s[0:1], 40
    s_load_dwordx2 s[12:13], s[0:1], 48
    s_load_dwordx2 s[14:15], s[0:1], 56
    v_and_b32 v2, 31, v1
    v_lshrrev_b32 v3, 5, v1
    v_lshlrev_b32 v4, 4, v1
    s_waitcnt lgkmcnt(0)
    s_mov_b32 s16, s10
    s_mov_b32 s17, s11
    s_mov_b32 s18, {145*64*2}
    s_mov_b32 s19, 0x20000
    s_mov_b32 s20, s14
    s_mov_b32 s21, s15
    s_mov_b32 s22, {128*64*2}
    s_mov_b32 s23, 0x20000
    s_mov_b32 s24, s12
    s_mov_b32 s25, s13
    s_mov_b32 s26, {64*2}
    s_mov_b32 s27, 0x20000
    s_add_u32 s28, s8, {WF}
    s_addc_u32 s29, s9, 0
    s_mov_b32 s30, {WFSZ}
    s_mov_b32 s31, 0x20000
    s_mov_b32 s32, {f32bits(-LOG2E)}
    v_lshlrev_b32 v5, 1, v2
    v_lshl_add_u32 v6, v3, 10, v5
    v_lshl_add_u32 v7, v3, 9, v5
    v_lshlrev_b32 v8, 3, v3
    ''')
    frags=[]
    for blk in range(2): frags.append((F_W3+blk,'e',129,blk,'std',True))
    for s in range(4):
        for blk in range(2): frags.append((F_H1+2*s+blk,'h',16*s,blk,'std',False))
    for blk in range(2):
        for sp in range(2):
            for b2 in range(2): frags.append((F_H2+(blk*2+sp)*2+b2,'h',64+32*blk+16*sp,b2,'perm',False))
    assert len(frags)==NF
    for wv in range(8):
        a(f's_cmp_eq_u32 s3, {wv}')
        a(f's_cbranch_scc1 L1_w{wv}')
    a('s_endpgm')
    for wv in range(8):
        a.label(f'L1_w{wv}')
        mine=[f for i,f in enumerate(frags) if i%8==wv]
        for q,(F,srcn,row0,blk,kind,scaled) in enumerate(mine):
            r=16+8*q
            srd={'e':'s[16:19]','h':'s[20:23]','x':'s[24:27]'}[srcn]
            if kind=='wx':
                a(f'v_add_u32 v10, {row0*2}, v8')
                for t in range(8):
                    T=(t&3)+8*(t>>2)
                    a(f'buffer_load_ushort v{r+t}, v10, {srd}, 0 offen offset:{T*2}')
            else:
                vb = 6 if kind=='std' else 7
                a(f'v_add_u32 v10, {row0*128+blk*64}, v{vb}')
                for t in range(8):
                    T= t if kind=='std' else (t&3)+8*(t>>2)
                    a(f'buffer_load_ushort v{r+t}, v10, {srd}, 0 offen offset:{T*128}')
        if wv==0:
            a(f'''
            v_lshlrev_b32 v11, 1, v1
            v_add_u32 v11, {128*128}, v11
            buffer_load_ushort v12, v11, s[16:19], 0 offen
            ''')
        if wv==1:
            a(f'''
            v_and_b32 v11, 3, v1
            v_bfe_u32 v12, v1, 2, 2
            v_lshl_add_u32 v11, v12, 3, v11
            v_bfe_u32 v12, v1, 4, 1
            v_lshl_add_u32 v11, v12, 5, v11
            v_lshl_add_u32 v11, v3, 2, v11
            v_lshlrev_b32 v11, 1, v11
            buffer_load_ushort v12, v11, s[24:27], 0 offen
            ''')
        a('s_waitcnt vmcnt(0)')
        for q,(F,srcn,row0,blk,kind,scaled) in enumerate(mine):
            r=16+8*q
            if scaled:
                for t in range(8):
                    a(f'v_lshlrev_b32 v{r+t}, 16, v{r+t}')
                for t in range(8):
                    a(f'v_mul_f32 v{r+t}, s32, v{r+t}')
                for t in range(4):
                    a(f'v_cvt_pk_bf16_f32 v{64+t}, v{r+2*t}, v{r+2*t+1}')
            else:
                for t in range(4):
                    a(f'v_lshl_or_b32 v{64+t}, v{r+2*t+1}, 16, v{r+2*t}')
            a(f'v_add_u32 v10, {F*1024}, v4')
            a(f'buffer_store_dwordx4 v[64:67], v10, s[28:31], 0 offen{SC1W}')
            a('s_nop 1')
        if wv==0:
            a(f'''
            v_lshlrev_b32 v12, 16, v12
            v_mul_f32 v12, s32, v12
            v_cvt_pk_bf16_f32 v13, v12, v12
            v_and_b32 v14, 0xffff0000, v13
            v_sub_f32 v12, v12, v14
            v_cvt_pk_bf16_f32 v12, v12, v12
            v_and_b32 v12, 0xffff0000, v12
            v_and_b32 v13, 0xffff, v13
            v_or_b32 v13, v13, v12
            v_and_b32 v11, 31, v1
            v_lshlrev_b32 v11, 3, v11
            v_lshl_add_u32 v11, v3, 2, v11
            v_add_u32 v11, {WDO}, v11
            buffer_store_dword v13, v11, s[28:31], 0 offen
            ''')
        if wv==1:
            a(f'''
            v_lshlrev_b32 v12, 16, v12
            v_lshlrev_b32 v11, 2, v1
            v_add_u32 v11, {WXO}, v11
            buffer_store_dword v12, v11, s[28:31], 0 offen
            ''')
        if DEBUG_TM:
            a('s_waitcnt vmcnt(0)\nv_mov_b32 v70, 0')
            stamp(a,5,70,36)
            stamp_store(a,70,36,8,9,0,3,69)
        a('s_endpgm')
    a.label('L1_tables')
    if '--tprio' in sys.argv: a('s_setprio 3')
    if DEBUG_TM: a('v_mov_b32 v15, 0')
    stamp(a,0,15,36)
    a(f"""
    s_load_dwordx2 s[10:11], s[0:1], 0
    s_load_dwordx2 s[12:13], s[0:1], 40
    s_sub_u32 s14, s2, {0 if TFIRST else NCH+1}
    s_lshl_b32 s14, s14, 7
    s_lshr_b32 s33, s3, 1
    s_lshl_b32 s33, s33, 5
    s_and_b32 s15, s3, 1
    v_and_b32 v2, 31, v1
    v_lshrrev_b32 v3, 5, v1
    v_lshrrev_b32 v8, 3, v1
    v_and_b32 v9, 7, v1
    v_lshrrev_b32 v10, 4, v1
    s_waitcnt lgkmcnt(0)
    s_mov_b32 s16, s10
    s_or_b32 s17, s11, 0x800000
    s_mov_b32 s18, {N}
    s_mov_b32 s19, 0x20000
    s_mov_b32 s20, s12
    s_mov_b32 s21, s13
    s_mov_b32 s22, {128*128}
    s_mov_b32 s23, 0x20000
    s_mul_i32 s34, s15, {TB-TA}
    s_add_u32 s34, s34, {TA}
    s_add_u32 s24, s8, s34
    s_addc_u32 s25, s9, 0
    s_or_b32 s25, s25, 0x800000
    s_mov_b32 s26, {N}
    s_mov_b32 s27, 0x20000
    """)
    for r in range(2):
        a(f"""
        s_lshl_b32 s34, s3, 1
        s_add_u32 s34, s34, {r}
        s_lshl_b32 s35, s34, 3
        s_add_u32 s35, s35, s14
        v_add_u32 v4, s35, v8
        v_add_u32 v5, {4*r}, v10
        v_xor_b32 v5, v5, v9
        v_lshlrev_b32 v5, 4, v5
        s_lshl_b32 s34, s34, 10
        s_add_u32 m0, s34, 16384
        s_nop 0
        buffer_load_dwordx4 v[4:5], s[16:19], 0 idxen offen lds
        """)
    a(f"""
    v_lshlrev_b32 v6, 4, v1
    s_lshl_b32 s34, s3, 10
    v_add_u32 v6, s34, v6
    s_mov_b32 m0, s34
    v_add_u32 v7, 8192, v6
    buffer_load_dwordx4 v6, s[20:23], 0 offen lds
    s_add_u32 m0, s34, 8192
    s_nop 0
    buffer_load_dwordx4 v7, s[20:23], 0 offen lds
    v_and_b32 v8, 15, v1
    v_lshrrev_b32 v9, 2, v8
    v_lshl_add_u32 v9, v3, 3, v9
    v_lshlrev_b32 v9, 7, v9
    v_bfe_u32 v10, v1, 4, 1
    v_lshl_add_u32 v9, v10, 5, v9
    v_and_b32 v10, 3, v1
    v_lshl_add_u32 v9, v10, 3, v9
    s_lshl_b32 s34, s15, 13
    v_add_u32 v9, s34, v9
    v_add_u32 v10, s33, v2
    v_lshlrev_b32 v10, 7, v10
    v_add_u32 v10, 16384, v10
    v_bfe_u32 v11, v2, 1, 3
    s_mov_b32 s35, {f32bits(-LOG2E)}
    s_waitcnt vmcnt(0)
    """)
    stamp(a,1,15,36)
    a('s_barrier')
    for s_ in range(4):
        a(f"""
        v_add_u32 v12, {2*s_}, v3
        v_xor_b32 v12, v12, v11
        v_lshl_add_u32 v12, v12, 4, v10
        ds_read_b128 v[{16+4*s_}:{19+4*s_}], v12
        """)
    for s_ in range(4):
        for blk in range(2):
            r=32+4*(2*s_+blk)
            a(f'ds_read_b64_tr_b16 v[{r}:{r+1}], v9 offset:{2048*s_+64*blk}')
            a(f'ds_read_b64_tr_b16 v[{r+2}:{r+3}], v9 offset:{2048*s_+64*blk+512}')
        if s_==1: a('s_waitcnt lgkmcnt(0)')
    a('s_waitcnt lgkmcnt(0)')
    a('s_barrier')
    stamp(a,2,15,36)
    for blk in range(2):
        D=f'v[{64+16*blk}:{79+16*blk}]'
        for s_ in range(4):
            C = D if s_>0 else '0'
            r=32+4*(2*s_+blk)
            a(f'v_mfma_f32_32x32x16_bf16 {D}, v[{r}:{r+3}], v[{16+4*s_}:{19+4*s_}], {C}')
    a(f"""
    s_lshl_b32 s34, s3, 12
    v_lshlrev_b32 v4, 7, v2
    v_add_u32 v4, s34, v4
    v_and_b32 v5, 7, v2
    v_lshlrev_b32 v5, 4, v5
    """)
    for blk in range(2):
        for i in range(16):
            a(f'v_mul_f32 v{64+16*blk+i}, s35, v{64+16*blk+i}')
    a("""
    s_cmp_eq_u32 s15, 0
    s_cbranch_scc1 L1_tabA
    v_lshl_add_u32 v4, v3, 3, v4
    """)
    for blk in range(2):
        for q in range(8):
            a(f'v_cvt_pk_bf16_f32 v{32+8*blk+q}, v{64+16*blk+2*q}, v{64+16*blk+2*q+1}')
        for m in range(4):
            a(f'v_xor_b32 v6, {16*(4*blk+m)}, v5')
            a(f'v_add_u32 v6, v6, v4')
            a(f'ds_write_b64 v6, v[{32+8*blk+2*m}:{33+8*blk+2*m}]')
    a('s_branch L1_tabS')
    a.label('L1_tabA')
    for r in range(16):
        a(f'v_cvt_pk_bf16_f32 v{32+r}, v{64+r}, v{80+r}')
    a('v_lshlrev_b32 v7, 4, v3')
    for m in range(4):
        a(f'v_add_u32 v6, {32*m}, v7')
        a(f'v_xor_b32 v6, v6, v5')
        a(f'v_add_u32 v6, v6, v4')
        a(f'ds_write_b128 v6, v[{32+4*m}:{35+4*m}]')
    a.label('L1_tabS')
    stamp(a,3,15,36)
    a(f"""
    v_lshlrev_b32 v6, 4, v1
    v_add_u32 v6, s34, v6
    v_lshrrev_b32 v8, 3, v1
    v_and_b32 v9, 7, v1
    v_xor_b32 v9, v9, v8
    v_lshlrev_b32 v13, 4, v9
    s_add_u32 s14, s14, s33
    v_add_u32 v8, s14, v8
    s_waitcnt lgkmcnt(0)
    """)
    for i in range(4):
        a(f'ds_read_b128 v[{48+4*i}:{51+4*i}], v6 offset:{1024*i}')
    for i in range(4):
        a(f'v_add_u32 v12, {8*i}, v8')
        a(f's_waitcnt lgkmcnt({3-i})')
        a(f'buffer_store_dwordx4 v[{48+4*i}:{51+4*i}], v[12:13], s[24:27], 0 idxen offen{SC1T}')
    stamp(a,4,15,36)
    if DEBUG_TM: a('s_waitcnt vmcnt(0)')
    stamp(a,5,15,36)
    stamp_store(a,15,36,8,9,0,3,14)
    a('s_endpgm')
    a.label('L1_end')
    a('s_endpgm')
    return a.finalize(), 96, 40, 32768+64

L_G=0; L_R0=28672; L_RS=43264; L_S=50432; L_RING=66816; L_GTAB=148736; L_WTOT=156928; L_PD=157184; L_WST=158208; L_AST=L_WST+2560; L_HX=L_AST+2048; L_END=L_HX+1024
NHS=9
def hstage_addr(f): return L_GTAB+1024*f if f<8 else L_HX
SLOT=5120
vI=16; vW3=24; vW6=32; vS1=40; vS2=41; vD2=64; vD1=(96,128); vE=160; vX=192; vXE=208; vX6=212; vSF=216; vONE=224
vHA=228; vEAr=232; vX6r=233; vC1=234; vSTa=235; vC2=236; vMK2=237; vEAc=238; vOne=239; vHP=240
vSTb=15; vCD=14
vRSa=248; vR0a=249; vR0e=250; vGe=251; vR0=252; vG=253; vA1=254; vA2=255; vEAi=10; vEAo=11
vZero=vONE+1
vTM=12
sH=4; sEA=8; sOF=12; sEN=16; sPOS=20; sWF=24; sO0=28; sO1=32; sHD=36; sSEL=100; sTA=40
sWS=44
sW0=46; sW1=47; sV=3; sG=101; sCNT=48; sBASE=49; sNT=50; sT=51; sRB=52; sNODE0=53; sMK=89

ABL=set(x[6:] for x in sys.argv if x.startswith('--abl=') ) | ({'fprio','trim','pk','xmap','off2','nozf'} - set(x[5:] for x in sys.argv if x.startswith('--no=')))
OPT=dict(x[6:].split(':') for x in sys.argv if x.startswith('--opt='))
def optl(k,d): return [int(v.replace('n','-')) for v in OPT[k].split(',')] if k in OPT else d
TRIMK='trim'; PF2K='pf2'; TBK='tbpf'; XMK='xmap'; OFF2='off2'; VMS='vmstat'; PFT1='pft1'
EAF=''.join(' '+x for x in OPT.get('eaf','').split('+') if x); HF=''.join(' '+x for x in OPT.get('hf','').split('+') if x)
NH_ = 0 if 'noh' in ABL else N
NE_ = 0 if 'noea' in ABL else E*32
def gen_k2():
    a=Asm()
    def st(i): stamp(a,i,vTM,98)
    a.label('egnn_main_kernel')
    a(f'''
    s_cmp_ge_u32 s2, {NBK}
    s_cbranch_scc1 L2_end
    ''')
    if 'xmap' in ABL:
        a('s_and_b32 s4, s2, 7\ns_lshl_b32 s4, s4, 5\ns_lshr_b32 s2, s2, 3\ns_or_b32 s2, s2, s4')
    if DEBUG_TM: a(f'v_mov_b32 v{vTM}, 0')
    st(0)
    a(f'''
    s_load_dwordx2 s[44:45], s[0:1], 80
    s_load_dwordx4 s[36:39], s[0:1], 0
    s_load_dwordx2 s[40:41], s[0:1], 16
    s_load_dwordx2 s[42:43], s[0:1], 64
    v_and_b32 v1, 63, v0
    v_lshrrev_b32 v2, 6, v0
    v_lshrrev_b32 v3, 1, v0
    v_readfirstlane_b32 s{sV}, v2
    ''')
    if 'rot' in OPT:
        a(f'''
        s_lshr_b32 s54, s2, 5
        s_mul_i32 s54, s54, {int(OPT['rot'])}
        v_cmp_gt_u32 vcc, {NCH}, v3
        v_add_u32 v9, s54, v3
        v_subrev_u32 v10, {NCH}, v9
        s_movk_i32 s55, {NCH}
        v_cmp_gt_u32 s[56:57], s55, v9
        s_nop 1
        v_cndmask_b32 v9, v10, v9, s[56:57]
        v_cndmask_b32 v3, v3, v9, vcc
        ''')
    a(f'''
    v_and_b32 v9, 1, v0
    s_lshl_b32 s54, s2, 4
    s_mov_b32 s55, {ROW}
    {'v_mov_b32 v96, s54' if OFF2 in ABL else 'v_lshl_add_u32 v96, v9, 4, s54'}
    v_mad_u32_u24 v96, v3, s55, v96
    s_mov_b32 s{sOF+2}, {NCH*ROW}
    s_mov_b32 s{sOF+3}, 0x20000
    s_waitcnt lgkmcnt(0)
    s_add_u32 s{sOF}, s44, {OFFS}
    s_addc_u32 s{sOF+1}, s45, 0
    buffer_load_dwordx4 {'v[4:7]' if OFF2 in ABL else 'v[104:107]'}, v96, s[{sOF}:{sOF+3}], 0 offen
    {f'buffer_load_ushort v8, v96, s[{sOF}:{sOF+3}], 0 offen offset:16' if OFF2 in ABL else ''}
    ''')
    st(16)
    a(f"""
    s_mov_b32 s{sPOS}, s38
    s_mov_b32 s{sPOS+1}, s39
    s_mov_b32 s{sPOS+2}, {N*6}
    s_mov_b32 s{sPOS+3}, 0x20000
    s_add_u32 s{sWF}, s44, {WF}
    s_addc_u32 s{sWF+1}, s45, 0
    s_mov_b32 s{sWF+2}, {WFSZ}
    s_mov_b32 s{sWF+3}, 0x20000
    s_mov_b32 s{sW0}, 0
    s_mov_b32 s{sW1}, {NCH}
    s_mov_b32 s63, 2
    v_lshlrev_b32 v96, 4, v1
    s_lshl_b32 s58, s{sV}, 10
    v_add_u32 v96, s58, v96
    """)
    PE=optl('pe',[5])[0]
    assert PE<=9
    def posdma(r):
        a(f"""
        s_add_u32 m0, s58, {L_RING+8192*r}
        v_add_u32 v97, {8192*r}, v96
        buffer_load_dwordx4 v97, s[{sPOS}:{sPOS+3}], 0 offen lds
        """)
    chunks=[f"""
    s_mov_b32 s{sH}, s36
    s_or_b32 s{sH+1}, s37, 0x800000
    s_mov_b32 s{sH+2}, {N}
    s_mov_b32 s{sH+3}, 0x20000
    s_mov_b32 s{sEA}, s40
    s_mov_b32 s{sEA+1}, s41
    s_mov_b32 s{sEA+2}, {E*32}
    s_mov_b32 s{sEA+3}, 0x20000
    s_add_u32 s{sEN}, s44, {ENT}
    s_addc_u32 s{sEN+1}, s45, 0
    s_mov_b32 s{sEN+2}, {NCH*CH*4}
    s_mov_b32 s{sEN+3}, 0x20000
    """, f"""
    s_mov_b32 s{sO0}, s42
    s_or_b32 s{sO0+1}, s43, 0x800000
    s_mov_b32 s{sO0+2}, {N}
    s_mov_b32 s{sO0+3}, 0x20000
    s_add_u32 s{sO1}, s42, {N*128}
    s_addc_u32 s{sO1+1}, s43, 0
    s_mov_b32 s{sO1+2}, {N*6}
    s_mov_b32 s{sO1+3}, 0x20000
    s_add_u32 s{sHD}, s44, {TB}
    s_addc_u32 s{sHD+1}, s45, 0
    s_or_b32 s{sHD+1}, s{sHD+1}, 0x800000
    s_mov_b32 s{sHD+2}, {N}
    s_mov_b32 s{sHD+3}, 0x20000
    """, f"""
    s_add_u32 s{sTA}, s44, {TA}
    s_addc_u32 s{sTA+1}, s45, 0
    s_or_b32 s{sTA+1}, s{sTA+1}, 0x800000
    s_mov_b32 s{sTA+2}, {N}
    s_mov_b32 s{sTA+3}, 0x20000
    s_mul_i32 s{sRB}, s{sV}, {2*SLOT}
    s_add_u32 s{sRB}, s{sRB}, {L_RING}
    s_mov_b32 s{sMK}, 0xffffffe0
    s_mov_b32 s{sSEL}, 0x01000100
    v_lshrrev_b32 v98, 5, v1
    v_and_b32 v101, 1, v1
    v_xor_b32 v101, v101, v98
    v_lshlrev_b32 v{vEAc}, 4, v101
    """, f"""
    v_and_b32 v101, 7, v1
    v_lshrrev_b32 v102, 4, v1
    v_xor_b32 v103, v101, v102
    v_lshlrev_b32 v{vHP+1}, 4, v103
    v_lshlrev_b32 v{vHP+5}, 4, v103
    v_add_u32 v102, 4, v102
    v_xor_b32 v103, v101, v102
    v_lshlrev_b32 v{vHP+3}, 4, v103
    v_lshlrev_b32 v{vHP+7}, 4, v103
    """, f"""
    v_mov_b32 v{vX6}, 0
    v_mov_b32 v{vX6+1}, 0
    v_mov_b32 v{vX6+2}, 0
    v_mov_b32 v{vX6+3}, 0
    v_mfma_f32_32x32x16_bf16 v[{vD2}:{vD2+15}], v[{vX6}:{vX6+3}], v[{vX6}:{vX6+3}], 0
    v_mfma_f32_32x32x16_bf16 v[{vD2+16}:{vD2+31}], v[{vX6}:{vX6+3}], v[{vX6}:{vX6+3}], 0
    """]
    for k in range(max(PE,len(chunks))):
        if k<PE: posdma(k)
        if k<len(chunks): a(chunks[k])
    a(f"""
    s_cmp_eq_u32 s{sV}, 2
    s_cselect_b32 s54, {WDO}, s58
    s_cselect_b32 s55, 2048, s58
    v_lshlrev_b32 v97, 4, v1
    v_add_u32 v97, s54, v97
    s_add_u32 m0, s55, {L_WST}
    s_cmp_gt_u32 s{sV}, 2
    s_cbranch_scc1 L2_nowst
    v_cmp_gt_u32 vcc, 32, v1
    s_cmp_eq_u32 s{sV}, 2
    s_cselect_b64 exec, vcc, -1
    buffer_load_dwordx4 v97, s[{sWF}:{sWF+3}], 0 offen lds
    s_mov_b64 exec, -1
    """)
    a.label('L2_nowst')
    st(17)
    if TBK in ABL:
        a(f'''
        {'s_and_b32 s54, s2, 31' if XMK in ABL else 's_lshr_b32 s54, s2, 3'}
        s_mul_i32 s54, s54, 391
        s_lshl_b32 s55, s{sV}, 6
        v_add_u32 v100, s55, v1
        v_cmp_gt_u32 vcc, 391, v100
        v_add_u32 v100, s54, v100
        v_mov_b32 v101, 0
        v_mov_b32 v102, -1
        v_cndmask_b32 v100, v102, v100, vcc
        buffer_load_dword v52, v[100:101], s[{sHD}:{sHD+3}], 0 idxen offen
        ''')
    st(18)
    st(1)
    a(f's_waitcnt vmcnt({min(PE,9)+(1 if TBK in ABL else 0)})')
    if OFF2 not in ABL:
        for q in range(4):
            a(f'v_mov_b32_dpp v{4+q}, v{104+q} quad_perm:[0,0,2,2] row_mask:0xf bank_mask:0xf')
        a('v_mov_b32_dpp v8, v104 quad_perm:[1,1,3,3] row_mask:0xf bank_mask:0xf')
        a('v_and_b32 v8, 0xffff, v8')
    st(19)
    a('s_branch L2_counts')
    a.label('L2_batch')
    a(f"""
    s_barrier
    v_lshlrev_b32 v96, 4, v1
    s_lshl_b32 s58, s{sV}, 10
    v_add_u32 v96, s58, v96
    """)
    for r in range(PE): posdma(r)
    a.label('L2_counts')
    a(f"""
    v_alignbit_b32 v100, v5, v4, 16
    v_alignbit_b32 v101, v6, v5, 16
    v_alignbit_b32 v102, v7, v6, 16
    v_alignbit_b32 v103, v8, v7, 16
    v_and_b32 v105, 0xffff, v4
    v_sub_u32 v104, v8, v105
    s_sub_u32 s54, s{sW1}, s{sW0}
    v_subrev_u32 v106, s{sW0}, v3
    v_cmp_gt_u32 vcc, s54, v106
    s_mov_b32 s55, {CH*4}
    v_lshlrev_b32 v107, 2, v105
    v_lshl_add_u32 v107, v9, 4, v107
    v_cndmask_b32 v104, 0, v104, vcc
    v_lshlrev_b32 v109, 2, v9
    v_sub_u32 v109, v104, v109
    v_max_i32 v109, 0, v109
    v_mad_u32_u24 v107, v3, s55, v107
    """)
    for i in range(4):
        a(f'v_cmp_lt_u32 s[{90+2*i}:{91+2*i}], {8*i}, v109')
    for i in range(4):
        a(f's_mov_b64 exec, s[{90+2*i}:{91+2*i}]')
        a(f's_cbranch_execz L2_e{i}')
        a(f'buffer_load_dwordx4 v[{192+4*i}:{195+4*i}], v107, s[{sEN}:{sEN+3}], 0 offen offset:{32*i}')
        a.label(f'L2_e{i}')
    a('s_mov_b64 exec, -1')
    st(2)
    a(f"""
    v_pk_sub_u16 v100, v100, v4
    v_pk_sub_u16 v101, v101, v5
    v_pk_sub_u16 v102, v102, v6
    v_pk_sub_u16 v103, v103, v7
    v_cmp_eq_u32 s[56:57], 0, v9
    """)
    for q in range(4):
        a(f'v_cndmask_b32 v{100+q}, 0, v{100+q}, vcc')
    for q in range(5):
        a(f'v_cndmask_b32 v{112+q}, 0, v{100+q}, s[56:57]')
    for sh in (1,2,4,8):
        for q in range(5):
            a(f'v_add_u32_dpp v{112+q}, v{112+q}, v{112+q} row_shr:{sh} row_mask:0xf bank_mask:0xf')
    for q in range(5):
        a(f'v_add_u32_dpp v{112+q}, v{112+q}, v{112+q} row_bcast:15 row_mask:0xa bank_mask:0xf')
    for q in range(5):
        a(f'v_add_u32_dpp v{112+q}, v{112+q}, v{112+q} row_bcast:31 row_mask:0xc bank_mask:0xf')
    st(21)
    a(f"""
    s_lshl_b32 s54, s{sV}, 5
    s_add_u32 s54, s54, {L_WTOT}
    v_mov_b32 v117, s54
    s_mov_b32 s56, 0
    s_brev_b32 s57, 1
    s_mov_b64 exec, s[56:57]
    ds_write_b128 v117, v[112:115]
    ds_write_b32 v117, v116 offset:16
    s_mov_b64 exec, -1
    v_and_b32 v118, 7, v1
    v_lshlrev_b32 v118, 5, v118
    v_add_u32 v118, {L_WTOT}, v118
    s_waitcnt lgkmcnt(0)
    s_barrier
    ds_read_b128 v[120:123], v118
    ds_read_b32 v124, v118 offset:16
    """)
    st(3)
    a('s_waitcnt lgkmcnt(0)')
    for sh in (1,2,4):
        for q in range(5):
            a(f'v_add_u32_dpp v{120+q}, v{120+q}, v{120+q} row_shr:{sh} row_mask:0xf bank_mask:0xf')
    for q in range(5):
        a(f'v_readlane_b32 s{58+q}, v{120+q}, 7')
    a(f's_sub_u32 s54, s{sV}, 1')
    a(f's_max_i32 s54, s54, 0')
    for q in range(4):
        a(f'v_readlane_b32 s{64+q}, v{120+q}, s54')
    a(f's_cmp_eq_u32 s{sV}, 0')
    for q in range(4):
        a(f's_cselect_b32 s{64+q}, 0, s{64+q}')
    for q in range(4):
        a(f's_and_b32 s{68+2*q}, s{58+q}, 0xffff')
        a(f's_lshr_b32 s{69+2*q}, s{58+q}, 16')
    a('s_mov_b32 s84, 0')
    for g in range(8):
        a(f"""
        s_mov_b32 s{76+g}, s84
        s_add_u32 s54, s{68+g}, 31
        s_andn2_b32 s54, s54, 31
        s_add_u32 s84, s84, s54
        """)
    a(f"""
    s_max_u32 s54, s84, s62
    s_cmp_le_u32 s54, {CAP}
    s_cbranch_scc1 L2_fits
    s_add_u32 s{sW1}, s{sW0}, 1
    s_waitcnt vmcnt(0) lgkmcnt(0)
    s_branch L2_batch
    """)
    a.label('L2_fits')
    a(f"""
    s_cmp_eq_u32 s63, 1
    s_cbranch_scc1 L2_pidone
    """)
    if 'nopi' in ABL:
        a(f's_mov_b32 s{sG}, s{sV}')
    else:
        for g in range(8):
            a(f's_lshl_b32 s54, s{68+g}, 3')
            a(f's_add_u32 s{90+g}, s54, {7-g}')
            a(f'v_writelane_b32 v126, s{90+g}, {g}')
        a('v_mov_b32 v127, 0')
        for h in range(2):
            for k in range(4):
                pr=(56,58,54,64)[k] if False else None
            for k in range(4):
                a(f'v_cmp_gt_u32 s[{(54,56,58,60)[k]}:{(54,56,58,60)[k]+1}], s{90+4*h+k}, v126')
            for k in range(4):
                a(f'v_addc_co_u32 v127, vcc, 0, v127, s[{(54,56,58,60)[k]}:{(54,56,58,60)[k]+1}]')
        a(f"""
        s_sub_u32 s54, 11, s{sV}
        s_cmp_lt_u32 s{sV}, 4
        s_cselect_b32 s54, s{sV}, s54
        v_cmp_eq_u32 vcc, s54, v127
        s_nop 3
        s_and_b32 s54, vcc_lo, 0xff
        s_ff1_i32_b32 s{sG}, s54
        """)
    a(f"""
    s_mul_i32 s{sNODE0}, s2, {BN}
    s_add_u32 s{sNODE0}, s{sNODE0}, s{sG}
    """)
    a.label('L2_pidone')
    a(f's_mov_b32 s{sCNT}, s68')
    a(f's_mov_b32 s{sBASE}, s76')
    for g in range(1,8):
        a(f"""
        s_cmp_eq_u32 s{sG}, {g}
        s_cselect_b32 s{sCNT}, s{68+g}, s{sCNT}
        s_cselect_b32 s{sBASE}, s{76+g}, s{sBASE}
        """)
    a(f"""
    s_add_u32 s{sNT}, s{sCNT}, 31
    s_lshr_b32 s{sNT}, s{sNT}, 5
    """)
    for q in range(4):
        a(f's_pack_ll_b32_b16 s{85+q}, s{76+2*q}, s{77+2*q}')
        a(f's_add_u32 s{85+q}, s{85+q}, s{64+q}')
        a(f's_add_u32 s{85+q}, s{85+q}, {CH | (CH<<16)}')
    a(f"""
    v_lshl_or_b32 v105, v105, 16, v105
    v_mul_u32_u24 v106, 0x100010, v9
    """)
    for q in range(4):
        a(f"""
        v_sub_u32 v{112+q}, v{112+q}, v{100+q}
        v_add_u32 v{112+q}, s{85+q}, v{112+q}
        v_sub_u32 v{120+q}, v{4+q}, v105
        v_sub_u32 v{112+q}, v{112+q}, v{120+q}
        v_lshl_add_u32 v{112+q}, v{112+q}, 2, v106
        """)
    a(f"""
    v_lshlrev_b32 v108, 4, v0
    v_add_u32 v108, {L_GTAB}, v108
    ds_write_b128 v108, v[112:115]
    v_mov_b32 v104, v109
    s_mov_b32 s54, {CH*32}
    v_mul_lo_u32 v110, v3, s54
    v_mov_b32 v111, {4*CH+4*CAP}
    v_lshlrev_b32 v96, 4, v1
    s_lshl_b32 s58, s{sV}, 10
    v_add_u32 v96, s58, v96
    s_waitcnt vmcnt(0)
    """)
    st(4)
    if PE<10:
        a(f"""
        v_lshlrev_b32 v96, 4, v1
        s_lshl_b32 s58, s{sV}, 10
        v_add_u32 v96, s58, v96
        """)
        for r in range(PE,10):
            if r==9:
                a(f's_cmp_ge_u32 s{sV}, 2\ns_cbranch_scc1 L2_posdone2')
            a(f"""
            s_add_u32 m0, s58, {L_RING+8192*r}
            v_add_u32 v97, {8192*r}, v96
            buffer_load_dwordx4 v97, s[{sPOS}:{sPOS+3}], 0 offen lds
            """)
        a.label('L2_posdone2')
    a(f"""
    s_cmp_eq_u32 s63, 1
    s_cbranch_scc1 L2_noA
    s_lshl_b32 s54, s{sV}, 10
    s_add_u32 s55, s54, {L_RING+75776}
    s_add_u32 s54, s54, {L_AST-6*1024}
    s_cmp_lt_u32 s{sV}, 6
    s_cselect_b32 s62, s55, s54
    v_lshrrev_b32 v120, 3, v1
    v_lshlrev_b32 v120, 3, v120
    v_add_u32 v121, s{sG}, v120
    v_add_u32 v120, s{sNODE0}, v120
    v_cmp_gt_u32 vcc, {BN}, v121
    v_mov_b32 v122, -1
    v_and_b32 v123, 7, v1
    v_lshlrev_b32 v123, 4, v123
    v_cndmask_b32 v122, v122, v120, vcc
    s_mov_b32 m0, s62
    s_nop 0
    buffer_load_dwordx4 v[122:123], s[{sTA}:{sTA+3}], 0 idxen offen lds
    """)
    a.label('L2_noA')
    EPF=optl('epf',[0])[0]
    if EPF:
        a(f'''
        s_cmp_lg_u32 s{sV}, 0
        s_cbranch_scc1 L2_noepf
        s_movk_i32 s56, 0x7ff8
        s_mov_b32 s{sEA+2}, {E*32}
        v_mov_b32 v150, 0x7fffff00
        ''')
        for k in range(EPF):
            i,u=k//4,k%4
            a(f'''
            v_and_b32 v151, s56, v{192+4*i+u}
            v_cmp_lt_u32 vcc, {8*i+u}, v104
            v_lshl_add_u32 v151, v151, 2, v110
            s_nop 0
            v_cndmask_b32 v151, v150, v151, vcc
            buffer_load_dword v{52+(k&7)}, v151, s[{sEA}:{sEA+3}], 0 offen
            ''')
        a.label('L2_noepf')
    st(20)
    def quad(qreg, i, dyn=False):
        for u in range(4):
            a(f'v_lshrrev_b32 v{140+u}, 29, v{qreg+u}')
            a(f'v_lshl_add_u32 v{140+u}, v{140+u}, 1, v108')
            a(f'ds_read_u16 v{144+u}, v{140+u}')
        for u in range(4):
            if dyn: a(f'v_cmp_lt_u32 s[{90+2*u}:{91+2*u}], {u}, v104')
            else:   a(f'v_cmp_lt_u32 s[{90+2*u}:{91+2*u}], {8*i+u}, v104')
        a('s_waitcnt lgkmcnt(0)')
        for u in range(4):
            if dyn: a(f'v_add_u32 v{144+u}, v{144+u}, v149')
            a(f'v_cndmask_b32 v{144+u}, v111, v{144+u}, s[{90+2*u}:{91+2*u}]')
        ko = 0 if dyn else 8*i
        for u in range(4):
            a(f'ds_write_b32 v{144+u}, v{qreg+u} offset:{L_R0-4*CH+4*(ko+u)}')
            a(f'ds_write_b32 v{144+u}, v110 offset:{L_S-4*CH+4*(ko+u)}')
    for i in range(4):
        quad(192+4*i, i)
        a(f'v_cmp_lt_u32 vcc, {8*(i+1)}, v104')
        a('s_cbranch_vccz L2_scat_done')
    a(f'''
    v_subrev_u32 v104, 32, v104
    v_cmp_gt_i32 vcc, 0, v104
    v_mov_b32 v149, 128
    v_add_u32 v107, 128, v107
    v_cndmask_b32 v104, v104, 0, vcc
    ''')
    a.label('L2_scat_loop')
    a(f'buffer_load_dwordx4 v[192:195], v107, s[{sEN}:{sEN+3}], 0 offen')
    a('s_waitcnt vmcnt(0)')
    quad(192, 0, dyn=True)
    a(f'''
    v_subrev_u32 v104, 8, v104
    v_add_u32 v149, 32, v149
    v_add_u32 v107, 32, v107
    v_cmp_gt_i32 vcc, 0, v104
    s_nop 1
    v_cndmask_b32 v104, v104, 0, vcc
    v_cmp_lt_u32 vcc, 0, v104
    s_cbranch_vccnz L2_scat_loop
    ''')
    a.label('L2_scat_done')
    st(5)
    if EPF:
        a(f'''
        s_cmp_lg_u32 s{sV}, 0
        s_cbranch_scc1 L2_b2w0
        s_waitcnt vmcnt({EPF}) lgkmcnt(0)
        s_branch L2_b2w1
        ''')
        a.label('L2_b2w0')
        a('s_waitcnt vmcnt(0) lgkmcnt(0)')
        a.label('L2_b2w1')
        a('s_barrier')
    else:
        a('''
        s_waitcnt vmcnt(0) lgkmcnt(0)
        s_barrier
        ''')
    st(6)
    if 'pfe' in ABL:
        a(f"""
        s_cmp_eq_u32 s{sCNT}, 0
        s_cbranch_scc1 L2_nopfe
        v_add_u32 v112, s{sBASE}, v1
        v_lshlrev_b32 v112, 2, v112
        ds_read_b32 v113, v112 offset:{L_R0}
        ds_read_b32 v114, v112 offset:{L_S}
        s_movk_i32 s56, 0x7ff8
        s_mov_b32 s{sHD+2}, {N}
        s_mov_b32 s{sEA+2}, {E*32}
        v_mov_b32 v51, 0
        s_waitcnt lgkmcnt(0)
        v_and_b32 v48, s56, v113
        v_bfe_u32 v50, v113, 15, 14
        v_lshl_add_u32 v48, v48, 2, v114
        s_mov_b32 exec_hi, 0
        buffer_load_dword v48, v48, s[{sEA}:{sEA+3}], 0 offen
        buffer_load_dword v49, v[50:51], s[{sHD}:{sHD+3}], 0 idxen offen
        s_mov_b64 exec, -1
        """)
        a.label('L2_nopfe')
    if 'hst' in ABL:
        a(f"""
        s_lshl_b32 s54, s{sV}, 10
        v_lshlrev_b32 v97, 4, v1
        s_add_u32 s55, s54, {F_H1*1024}
        v_add_u32 v98, s55, v97
        s_add_u32 m0, s54, {L_GTAB}
        s_cmp_lg_u32 s{sV}, 0
        buffer_load_dwordx4 v98, s[{sWF}:{sWF+3}], 0 offen lds
        s_cbranch_scc1 L2_hst1
        v_add_u32 v98, {(F_H1+8)*1024}, v97
        s_mov_b32 m0, {L_HX}
        s_nop 0
        buffer_load_dwordx4 v98, s[{sWF}:{sWF+3}], 0 offen lds
        """)
        a.label('L2_hst1')
    a(f"""
    v_lshrrev_b32 v100, 2, v1
    v_lshlrev_b32 v100, 3, v100
    v_add_u32 v100, s{sNODE0}, v100
    v_mul_u32_u24 v100, 6, v100
    v_and_b32 v102, 3, v1
    v_lshl_add_u32 v100, v102, 1, v100
    v_add_u32 v100, {L_RING}, v100
    ds_read_u16 v101, v100
    s_cmp_eq_u32 s63, 1
    s_cbranch_scc1 L2_noC
    s_mov_b32 s63, 1
    v_lshlrev_b32 v96, 4, v1
    v_add_u32 v96, {L_WST}, v96
    ds_read_b128 v[{vW3}:{vW3+3}], v96
    ds_read_b128 v[{vW3+4}:{vW3+7}], v96 offset:1024
    v_and_b32 v120, 31, v1
    v_lshrrev_b32 v121, 5, v1
    v_lshlrev_b32 v122, 2, v120
    v_lshl_add_u32 v122, v121, 9, v122
    v_add_u32 v122, s62, v122
    """)
    for q in range(4):
        a(f'ds_read_b32 v{40+q}, v122 offset:{128*q}')
    a(f"""
    v_lshlrev_b32 v120, 3, v120
    v_add_u32 v120, {L_WST+2048}, v120
    ds_read_b64 v[44:45], v120
    v_cmp_gt_u32 vcc, 32, v1
    s_waitcnt lgkmcnt(0)
    v_cndmask_b32 v44, v44, 0, vcc
    v_cndmask_b32 v45, v45, 0, vcc
    """)
    for q in range(4):
        a(f'v_and_b32 v{vW6+q}, 0xffff, v{40+q}')
        a(f'v_lshrrev_b32 v{vW6+4+q}, 16, v{40+q}')
    a(f"""
    v_or_b32 v{vW6+3}, v{vW6+3}, v44
    v_or_b32 v{vW6+7}, v{vW6+7}, v45
    """)
    a.label('L2_noC')
    a(f"""
    s_lshl_b32 s54, s{sV}, 7
    s_add_u32 s54, s54, {L_PD}
    v_lshlrev_b32 v97, 2, v1
    v_add_u32 v97, s54, v97
    s_waitcnt lgkmcnt(0)
    v_lshlrev_b32 v101, 16, v101
    s_mov_b32 exec_hi, 0
    ds_write_b32 v97, v101
    s_mov_b64 exec, -1
    """)
    a(f'''
    s_lshl_b32 s54, s{sV}, 7
    s_add_u32 s54, s54, {L_PD}
    v_mov_b32 v98, s54
    v_mov_b32 v99, {L_RING}
    v_add_u32 v96, s{sBASE}, v1
    v_mov_b32 v97, v1
    s_mov_b32 s{sT}, 0
    s_mov_b32 s55, 0xffff0000
    s_movk_i32 s56, 0x7fff
    s_mov_b32 s{sHD+2}, {N}
    s_mov_b32 s{sEA+2}, {E*32}
    ''')
    a(f'''
    s_lshl_b32 s54, s{sNT}, 5
    s_sub_u32 s54, s54, 32
    v_add_u32 v100, s54, v1
    v_cmp_le_u32 s[58:59], s{sCNT}, v100
    v_cmp_gt_u32 vcc, 32, v1
    s_and_b64 vcc, vcc, s[58:59]
    s_cmp_eq_u32 s{sNT}, 0
    s_cbranch_scc1 L2_nodummy
    s_and_saveexec_b64 s[58:59], vcc
    s_cbranch_execz L2_dummy_restore
    v_add_u32 v100, s{sBASE}, v100
    v_lshlrev_b32 v101, 2, v100
    v_mov_b32 v102, 28
    ds_write_b32 v101, v102 offset:{L_R0}
    v_lshlrev_b32 v101, 1, v100
    v_mov_b32 v102, 0
    v_mov_b32 v103, 0
    ds_write_b16 v101, v102 offset:{L_RS}
    v_lshlrev_b32 v101, 3, v100
    ds_write_b64 v101, v[102:103] offset:{L_G}
    ''')
    a.label('L2_dummy_restore')
    a('s_mov_b64 exec, s[58:59]')
    a.label('L2_nodummy')
    def R(it,k): return 112+20*it+k
    def geo_pass(NI, first):
        for it in range(NI):
            a(f'ds_read_b32 v{R(it,1)}, v96 offset:{L_R0+256*it}')
            a(f'ds_read_b32 v{R(it,2)}, v96 offset:{L_S+256*it}')
        a('v_lshrrev_b32 v104, 1, v96')
        a('v_lshlrev_b32 v105, 1, v96')
        for it in range(NI):
            if it==0: a(f'v_cmp_lt_i32 s[90:91], 0, v97')
            elif it==1: a(f'v_cmp_lt_i32 s[92:93], 64, v97')
            else: a(f'v_cmp_lt_i32 s[{90+2*it}:{91+2*it}], s{57 if it==2 else 54}, v97')
        for it in range(NI):
            e=R(it,1); wb=R(it,2)
            a(f's_waitcnt lgkmcnt({2*(NI-1-it)+2*it})')
            a(f"""
            v_bfe_u32 v{R(it,3)}, v{e}, 15, 14
            v_and_b32 v{R(it,4)}, 7, v{e}
            v_mad_u32_u24 v{R(it,5)}, v{R(it,3)}, 6, v99
            v_lshl_add_u32 v{R(it,7)}, v{R(it,4)}, 4, v98
            v_and_b32 v{R(it,5)}, -4, v{R(it,5)}
            ds_read_b96 v[{R(it,8)}:{R(it,10)}], v{R(it,7)}
            ds_read2_b32 v[{R(it,12)}:{R(it,13)}], v{R(it,5)} offset1:1
            v_and_b32 v{R(it,5)}, s56, v{e}
            v_lshl_add_u32 v{wb}, v{R(it,5)}, 2, v{wb}
            v_lshlrev_b32 v{R(it,6)}, 4, v{R(it,3)}
            """)
        if first and 'nopf' not in ABL and 'pfe' not in ABL:
            a(f"""
            v_and_b32 v48, s{sMK}, v{R(0,2)}
            v_mov_b32 v51, 0
            v_mov_b32 v50, v{R(0,3)}
            {'s_mov_b32 exec_lo, 0' if PFT1 in ABL else 's_mov_b32 exec_hi, 0'}
            buffer_load_dword v48, v48, s[{sEA}:{sEA+3}], 0 offen
            s_mov_b32 exec_lo, -1
            s_mov_b32 exec_hi, 0
            buffer_load_dword v49, v[50:51], s[{sHD}:{sHD+3}], 0 idxen offen
            s_mov_b64 exec, -1
            """)
        for it in range(NI):
            pd=R(it,8); ps=R(it,12); sh=R(it,6); t0=R(it,4); t1=R(it,5); t2=R(it,7); o=R(it,14); t3=R(it,17)
            a(f's_waitcnt lgkmcnt({2*(NI-1-it)+3*it})')
            a(f"""
            v_alignbit_b32 v{t0}, v{ps+1}, v{ps}, v{sh}
            v_lshrrev_b32 v{t2}, v{sh}, v{ps+1}
            v_lshlrev_b32 v{t1}, 16, v{t0}
            v_and_b32 v{t0}, s55, v{t0}
            v_lshlrev_b32 v{t2}, 16, v{t2}
            v_sub_f32 v{t1}, v{pd}, v{t1}
            v_sub_f32 v{t0}, v{pd+1}, v{t0}
            v_sub_f32 v{t2}, v{pd+2}, v{t2}
            v_mul_f32 v{t3}, v{t1}, v{t1}
            v_cvt_pk_bf16_f32 v{o+1}, v{t0}, v{t2}
            v_fmac_f32 v{t3}, v{t0}, v{t0}
            v_fmac_f32 v{t3}, v{t2}, v{t2}
            s_mov_b64 exec, s[{90+2*it}:{91+2*it}]
            ds_write_b32 v96, v{R(it,2)} offset:{L_R0+256*it}
            v_cvt_pk_bf16_f32 v{o}, v{t3}, v{t1}
            ds_write_b16 v104, v{R(it,3)} offset:{L_RS+128*it}
            ds_write_b64 v105, v[{o}:{o+1}] offset:{L_G+512*it}
            s_mov_b64 exec, -1
            """)
        a(f"""
        v_add_u32 v96, {256*NI}, v96
        v_subrev_u32 v97, {64*NI}, v97
        s_add_u32 s{sT}, s{sT}, {64*NI}
        """)
    a(f"""
    v_lshlrev_b32 v96, 2, v96
    v_sub_u32 v97, s{sCNT}, v97
    s_movk_i32 s57, 128
    s_movk_i32 s54, 192
    s_cmp_eq_u32 s{sCNT}, 0
    s_cbranch_scc1 L2_geo_done
    """)
    geo_pass(4, True)
    a.label('L2_geo_loop')
    a(f"""
    s_cmp_ge_u32 s{sT}, s{sCNT}
    s_cbranch_scc1 L2_geo_done
    """)
    geo_pass(3, False)
    a('s_branch L2_geo_loop')
    a.label('L2_geo_done')
    a(f"""
    v_lshrrev_b32 v97, 3, v1
    v_add_u32 v97, s{sBASE}, v97
    v_lshlrev_b32 v97, 1, v97
    v_add_u32 v{vRSa}, {L_RS}, v97
    v_lshrrev_b32 v97, 1, v1
    v_add_u32 v97, s{sBASE}, v97
    v_lshlrev_b32 v97, 2, v97
    v_add_u32 v{vR0a}, {L_R0}, v97
    v_and_b32 v97, 31, v1
    v_add_u32 v97, s{sBASE}, v97
    v_lshlrev_b32 v98, 2, v97
    v_add_u32 v{vR0e}, {L_R0}, v98
    v_lshrrev_b32 v98, 5, v1
    v_lshlrev_b32 v98, 2, v98
    v_lshl_add_u32 v98, v97, 3, v98
    v_add_u32 v{vGe}, {L_G}, v98
    s_mov_b32 s{sT}, 0
    s_sub_u32 s86, s{sNT}, 3
    s_sub_u32 s87, s{sNT}, 1
    s_sub_u32 s88, s{sNT}, 2
    """)
    for i in range(4): a(f'ds_read_u16 v{vHP+2*i}, v{vRSa} offset:{16*i}')
    a(f'ds_read_b32 v{vEAi}, v{vR0a}')
    a(f'ds_read_b32 v{vR0}, v{vR0e}')
    a(f'ds_read_b32 v{vG}, v{vGe}')
    if 'fprio' in ABL:
        PER=optl('per',[12])[0]
        a(f"""
        v_cvt_f32_u32 v96, s{sNT}
        v_rcp_f32 v96, v96
        s_nop 0
        v_mul_f32 v96, {f32bits(float(PER*65536*(2 if TRIMK in ABL else 1)))}, v96
        v_cvt_u32_f32 v96, v96
        s_nop 0
        v_readfirstlane_b32 s85, v96
        s_mov_b32 s84, 0
        s_sub_u32 s84, s84, s85
        """)
    a(f"""
    s_lshl_b32 s54, s{sV}, 11
    s_add_u32 s54, s54, {L_S}
    v_lshlrev_b32 v96, 4, v1
    v_add_u32 v96, s54, v96
    v_mov_b32 v100, 0
    v_mov_b32 v101, 0
    v_mov_b32 v102, 0
    v_mov_b32 v103, 0
    v_and_or_b32 v{vEAo}, v{vEAi}, s{sMK}, v{vEAc}
    """)
    if 'hst' in ABL:
        a(f"""
        s_cmp_eq_u32 s{sCNT}, 0
        s_cbranch_scc1 L2_hw0
        s_waitcnt vmcnt({0 if 'nopf' in ABL else 2})
        s_branch L2_hw1
        """)
        a.label('L2_hw0')
        a('s_waitcnt vmcnt(0)')
        a.label('L2_hw1')
    a(f"""
    s_waitcnt lgkmcnt(0)
    s_barrier
    """)
    st(7)
    a(f"""
    ds_write_b128 v96, v[100:103]
    ds_write_b128 v96, v[100:103] offset:1024
    """)
    if 'lone' in ABL:
        a(f's_cmp_ge_u32 s{sV}, 4\ns_cselect_b32 s{sNT}, 0, s{sNT}')
    a(f"""
    s_cmp_eq_u32 s{sNT}, 0
    s_cbranch_scc1 L2_notiles
    """)
    def idx_reads(toff):
        return [f'ds_read_u16 v{vHP+2*i}, v{vRSa} offset:{64*toff+16*i}' for i in range(4)] + \
               [f'ds_read_b32 v{vEAi}, v{vR0a} offset:{128*toff}']
    def rec_reads(toff):
        return [f'ds_read_b32 v{vR0}, v{vR0e} offset:{128*toff}', f'ds_read_b32 v{vG}, v{vGe} offset:{256*toff}']
    def srd_select(delta):
        return [f's_add_u32 s54, s{sT}, {delta}\ns_cmp_lt_u32 s54, s{sNT}\ns_cselect_b32 s{sHD+2}, {NH_}, 0\ns_cselect_b32 s{sEA+2}, {NE_}, 0']
    def dma2(slot):
        r=[(f'v_and_or_b32 v{vEAo}, v{vEAi}, s{sMK}, v{vEAc}\ns_add_u32 m0, s{sRB}, {slot*SLOT+4096}', f'buffer_load_dwordx4 v{vEAo}, s[{sEA}:{sEA+3}], 0 offen{EAF} lds')]
        for i in range(4):
            r.append((f's_add_u32 m0, s{sRB}, {slot*SLOT+1024*i}', f'buffer_load_dwordx4 v[{vHP+2*i}:{vHP+2*i+1}], s[{sHD}:{sHD+3}], 0 idxen offen{HF} lds'))
        if 'ealast' in ABL: r=r[1:]+r[:1]
        return r
    def dma(slot):
        return [x+'\n'+y for x,y in dma2(slot)]
    def x_reads(slot):
        return [f'ds_read_b128 v[{vX+4*s}:{vX+4*s+3}], v{vHA+s} offset:{slot*SLOT}' for s in range(4)] + \
               [f'ds_read_b128 v[{vXE}:{vXE+3}], v{vEAr} offset:{slot*SLOT}']
    def s_addr(): return [f'v_bitop3_b32 v{vA1}, v{vR0}, 28, v{vC1} bitop3:0x6a', f'v_bfi_b32 v{vS1}, v{vMK2}, v{vG}, v{vOne}', f'v_perm_b32 v{vS2}, v{vG}, v{vG}, s{sSEL}']
    def s_writes(): return [f'ds_write_b32 v{vA1}, v{vS1}', f'ds_write_b32 v{vCD}, v{vS2}']
    def x6_read(): return [f'ds_read_b128 v[{vX6}:{vX6+3}], v{vX6r}']
    def sf_reads():
        r=[]
        for s2 in range(2):
            r.append(f'ds_read_b64_tr_b16 v[{vSF+4*s2}:{vSF+4*s2+1}], v{vSTa} offset:{1024*s2}')
            r.append(f'ds_read_b64_tr_b16 v[{vSF+4*s2+2}:{vSF+4*s2+3}], v{vSTb} offset:{1024*s2}')
        return r
    def s_restore(): return [f'ds_write_b32 v{vA1}, v{vZero}']
    def mfma1(dst):
        r=[]
        for blk in range(2):
            D=f'v[{dst+16*blk}:{dst+16*blk+15}]'
            for sp in range(2):
                C = D if sp>0 else '0'
                s_=2*blk+sp
                r.append(f'v_mfma_f32_32x32x16_bf16 {D}, v[{vX+4*s_}:{vX+4*s_+3}], v[{vI+4*sp}:{vI+4*sp+3}], {C}')
            r.append(f'v_mfma_f32_32x32x16_bf16 {D}, v[{vXE}:{vXE+3}], v[{vW3+4*blk}:{vW3+4*blk+3}], {D}')
            r.append(f'v_mfma_f32_32x32x16_bf16 {D}, v[{vX6}:{vX6+3}], v[{vW6+4*blk}:{vW6+4*blk+3}], {D}')
        return r
    ONE=f'v[{vONE}:{vONE+3}]'
    def plus1(blk):
        Eb=f'v[{vE+16*blk}:{vE+16*blk+15}]'
        return f'v_mfma_f32_32x32x16_bf16 {Eb}, {ONE}, {ONE}, {Eb}'
    def mfma2(cur,blk,s2):
        D=f'v[{vD2+16*blk}:{vD2+16*blk+15}]'; m=cur+8*blk+4*s2
        return f'v_mfma_f32_32x32x16_bf16 {D}, v[{m}:{m+3}], v[{vSF+4*s2}:{vSF+4*s2+3}], {D}'
    def keep(x):
        if 'nomfma' in ABL and x.startswith('v_mfma'): return False
        if 'nolds' in ABL and x.startswith('ds_'): return False
        if 'nodma' in ABL and 'buffer_load' in x: return False
        if 'notrans' in ABL and x.startswith(('v_exp','v_rcp')): return False
        if 'novalu' in ABL and x.startswith(('v_exp','v_rcp','v_mul','v_cvt','v_pk_mul')): return False
        return True
    def emit(backbone, inserts):
        backbone=[x if keep(x) else 's_nop 0' for x in backbone]
        inserts={k:[x for x in v if keep(x)] for k,v in inserts.items()}
        for k_ in sorted(k for k in inserts if k<0):
            for s_ in inserts[k_]: a(s_)
        for i,ins in enumerate(backbone):
            a(ins)
            for s_ in inserts.get(i,[]): a(s_)
    nlab=[0]
    PK='pk' in ABL
    DMAPOS=optl('dma',[37,48,60,70,82] if PK else [41,52,63,76,92])
    M1POS=optl('m1',[37,40,43,46,49,52,55,58] if PK else [42,46,50,54,58,62,68,74])
    SFPOS=optl('sf',[0,2,4,6]); RSPOS=optl('rs',[8])[0]; SAPOS=optl('sa',[9,10,11]); SWPOS=optl('sw',[12,13]); X6POS=optl('x6',[14])[0]
    VMPOS=optl('vm',[16])[0]; XPOS=optl('x',[16,18,20,22,24]); RECPOS=optl('rec',[26,27]); IDXPOS=optl('idx',[28,29,30,31,32])
    LGPOS=optl('lg',[36] if PK else [40])[0]; M2POS=optl('m2',[85,89,93,95] if PK else [89,95,111,111]); P1POS=optl('p1',[17,33])
    def body(p, steady, extra_first=None):
        cur=vD1[p]; nxt=vD1[1-p]
        bb=[]
        for blk in range(2):
            bb += [f'v_exp_f32 v{vE+16*blk+i}, v{cur+16*blk+i}' for i in range(16)]
        for blk in range(2):
            bb += [f'v_rcp_f32 v{vE+16*blk+i}, v{vE+16*blk+i}' for i in range(16)]
        if 'pk' in ABL:
            bb += [f'v_pk_mul_f32 v[{vE+2*i}:{vE+2*i+1}], v[{vE+2*i}:{vE+2*i+1}], v[{cur+2*i}:{cur+2*i+1}]' for i in range(16)]
            bb += [f'v_cvt_pk_bf16_f32 v{cur+q}, v{vE+2*q}, v{vE+2*q+1}' for q in range(16)]
        else:
            bb += [f'v_mul_f32 v{vE+i}, v{vE+i}, v{cur+i}' for i in range(16)]
            bb += [f'v_cvt_pk_bf16_f32 v{cur+q}, v{vE+2*q}, v{vE+2*q+1}' for q in range(8)]
            bb += [f'v_mul_f32 v{vE+16+i}, v{vE+16+i}, v{cur+16+i}' for i in range(16)]
            bb += [f'v_cvt_pk_bf16_f32 v{cur+8+q}, v{vE+16+2*q}, v{vE+16+2*q+1}' for q in range(8)]
        ins={}
        def put(pos,x):
            ins.setdefault(pos,[]).append(x)
        if not ('trim' in ABL and steady): put(-100,'s_waitcnt lgkmcnt(0)')
        if 'prio' in ABL:
            put(-99,f'''s_and_b32 s54, s{sT}, 2
            s_cmp_eq_u32 s54, 0
            s_cbranch_scc1 Lp{nlab[0]}a
            s_setprio {1-p}
            s_branch Lp{nlab[0]}b
            Lp{nlab[0]}a:
            s_setprio {3-p}
            Lp{nlab[0]}b:''')
            nlab[0]+=1
        if 'fprio' in ABL and not ('trim' in ABL and p==1):
            n=nlab[0]
            put(-99,f'''s_add_u32 s84, s84, s85
            s_bitcmp1_b32 s84, 17
            s_cbranch_scc1 Lp{n}h
            s_bitcmp1_b32 s84, 16
            s_cbranch_scc1 Lp{n}a
            s_setprio 3
            s_branch Lp{n}z
            Lp{n}a:
            s_setprio 2
            s_branch Lp{n}z
            Lp{n}h:
            s_bitcmp1_b32 s84, 16
            s_cbranch_scc1 Lp{n}b
            s_setprio 1
            s_branch Lp{n}z
            Lp{n}b:
            s_setprio 0
            Lp{n}z:''')
            nlab[0]+=1
        if steady and p==0:
            n=nlab[0]; nlab[0]+=1
            if 'nozf' in ABL:
                put(0,f's_cmp_lg_u32 s{sT}, 0\ns_cbranch_scc1 Ld{n}\ns_cmp_lt_u32 s{sNT}, 3\ns_cbranch_scc1 Ld{n}\n'+'\n'.join(dma(0))+f'\nLd{n}:')
            else:
                put(0,f's_cmp_lg_u32 s{sT}, 0\ns_cbranch_scc1 Ld{n}\n'+'\n'.join(dma(0))+f'\nLd{n}:')
        for x,q in zip(sf_reads(),SFPOS): put(q,x)
        put(RSPOS,s_restore()[0])
        if extra_first:
            for x in extra_first: put(RSPOS+4,x)
        put(P1POS[0],plus1(0))
        put(P1POS[1],plus1(1))
        if steady:
            for x,q in zip(s_addr(),SAPOS): put(q,x)
            for x,q in zip(s_writes(),SWPOS): put(q,x)
            put(X6POS,x6_read()[0])
            if 'nozf' in ABL:
                n=nlab[0]; nlab[0]+=1
                if 'vmstat' in ABL:
                    put(VMPOS,'s_waitcnt lgkmcnt(0)\ns_memtime s[98:99]\ns_waitcnt lgkmcnt(0)\ns_mov_b32 s62, s98')
                put(VMPOS,f's_cmp_lt_i32 s{sT}, s88\ns_waitcnt vmcnt(5)\ns_cbranch_scc1 Lw{n}\ns_waitcnt vmcnt(0)\nLw{n}:')
                if 'vmstat' in ABL:
                    put(VMPOS,f's_memtime s[98:99]\ns_waitcnt lgkmcnt(0)\ns_sub_u32 s98, s98, s62\nv_readlane_b32 s99, v{vTM}, 24\ns_add_u32 s98, s98, s99\nv_writelane_b32 v{vTM}, s98, 24')
            else: put(VMPOS,'s_waitcnt vmcnt(5)')
            for x,q in zip(x_reads(1-p),XPOS): put(q,x)
            for x,q in zip(rec_reads(p+2),RECPOS): put(q,x)
            for x,q in zip(idx_reads(p+3),IDXPOS): put(q,x)
            if 'nozf' in ABL: pass
            elif 'trim' in ABL:
                n=nlab[0]; nlab[0]+=1
                put(LGPOS-2,f's_cmp_lt_i32 s{sT}, s86\ns_cbranch_scc1 Lz{n}\ns_mov_b32 s{sHD+2}, 0\ns_mov_b32 s{sEA+2}, 0\nLz{n}:')
            else: put(LGPOS-2,srd_select(3)[0])
            put(LGPOS,'s_waitcnt lgkmcnt(0)')
            if 'nozf' in ABL:
                n=nlab[0]; nlab[0]+=1
                put(DMAPOS[0],f's_cmp_lt_i32 s{sT}, s86\ns_cbranch_scc0 Lnd{n}\n'+'\n'.join(dma(1-p))+f'\nLnd{n}:')
            else:
              for (x,y),q in zip(dma2(1-p),DMAPOS):
                if q>0 and q-1>LGPOS-1 and 'trim' in ABL: put(q-1,x); put(q,y)
                else: put(q,x+'\n'+y)
            for x,q in zip(mfma1(nxt),M1POS): put(q,x)
        for (b_,s_),q in zip(((0,0),(0,1),(1,0),(1,1)),M2POS): put(q,mfma2(cur,b_,s_))
        emit(bb,ins)
    def late_consts(a):
        a(f'''
        v_and_b32 v97, 31, v1
        v_lshrrev_b32 v98, 5, v1
        v_bfe_u32 v99, v97, 1, 3
        v_lshlrev_b32 v100, 7, v97
        v_add_u32 v100, s{sRB}, v100
        ''')
        for s in range(4):
            a(f'''
            v_add_u32 v101, {2*s}, v98
            v_xor_b32 v101, v101, v99
            v_lshl_add_u32 v{vHA+s}, v101, 4, v100
            ''')
        a(f'''
        v_lshrrev_b32 v101, 4, v97
        v_xor_b32 v101, v101, v98
        v_lshlrev_b32 v101, 4, v101
        v_lshl_add_u32 v101, v97, 5, v101
        v_add_u32 v101, s{sRB}, v101
        v_add_u32 v{vEAr}, 4096, v101
        s_lshl_b32 s57, s{sV}, 11
        s_add_u32 s57, s57, {L_S}
        v_lshlrev_b32 v101, 6, v97
        v_add_u32 v101, s57, v101
        v_bfe_u32 v102, v97, 2, 2
        v_xor_b32 v103, v98, v102
        v_lshl_add_u32 v{vX6r}, v103, 4, v101
        v_lshlrev_b32 v103, 1, v98
        v_xor_b32 v104, v103, v102
        v_lshl_add_u32 v{vC1}, v104, 4, v101
        v_add_u32 v103, 1, v103
        v_xor_b32 v104, v103, v102
        v_lshl_add_u32 v104, v104, 4, v101
        v_add_u32 v{vCD}, 12, v104
        v_cmp_gt_u32 vcc, 32, v1
        v_mov_b32 v103, 0xffff0000
        v_mov_b32 v104, -1
        v_cndmask_b32 v{vMK2}, v104, v103, vcc
        v_mov_b32 v{vOne}, 0x3f80
        v_mov_b32 v{vONE+1}, 0
        v_mov_b32 v{vONE+2}, 0
        v_mov_b32 v{vONE+3}, 0
        v_cndmask_b32 v{vONE}, 0, v{vOne}, vcc
        v_lshlrev_b32 v101, 3, v98
        v_sub_u32 v101, v97, v101
        v_and_b32 v102, 1, v101
        v_lshlrev_b32 v102, 4, v102
        v_lshlrev_b32 v102, v102, v{vOne}
        v_ashrrev_i32 v101, 1, v101
        ''')
        for k in range(8):
            q=8*(k>>2)+(k&3)
            a(f'v_cmp_eq_u32 s[{90+2*(k&3)}:{91+2*(k&3)}], {q}, v101')
            if (k&3)==3:
                for kk in range(k-3,k+1):
                    a(f'v_cndmask_b32 v{vI+kk}, 0, v102, s[{90+2*(kk&3)}:{91+2*(kk&3)}]')
        a(f'''
        v_and_b32 v101, 15, v1
        v_lshrrev_b32 v101, 2, v101
        v_lshl_add_u32 v101, v98, 2, v101
        v_lshlrev_b32 v101, 6, v101
        v_and_b32 v102, 1, v1
        v_lshl_add_u32 v101, v102, 3, v101
        v_add_u32 v101, s57, v101
        v_bfe_u32 v102, v1, 4, 1
        v_bfe_u32 v103, v1, 1, 1
        v_lshl_add_u32 v102, v102, 1, v103
        v_xor_b32 v103, v102, v98
        v_lshl_add_u32 v{vSTa}, v103, 4, v101
        v_add_u32 v103, 2, v98
        v_xor_b32 v103, v102, v103
        v_lshl_add_u32 v103, v103, 4, v101
        v_add_u32 v{vSTb}, 512, v103
        ''')

    lc=Asm(); late_consts(lc); lcl=list(lc.lines); per=(len(lcl)+9)//10
    def dma_lc(slot,k0):
        for k,x in enumerate(dma(slot)):
            a(x)
            if 'ilc' in ABL:
                for y in lcl[(k0+k)*per:(k0+k+1)*per]: a(y)
    a(f's_mov_b32 s{sHD+2}, {N}')
    a(f's_mov_b32 s{sEA+2}, {E*32}')
    if 'rampb' in ABL:
        dma_lc(0,0)
        st(13+18)
        for x in idx_reads(1): a(x)
        for y in lcl: a(y)
        for x in s_addr(): a(x)
        for x in s_writes(): a(x)
        for x in x6_read(): a(x)
        st(15)
        a('s_waitcnt vmcnt(0)')
        st(30)
        for x in x_reads(0): a(x)
        for x in rec_reads(1): a(x)
        a('s_waitcnt lgkmcnt(0)')
        for x in mfma1(vD1[0]): a(x)
        a(f's_cmp_lt_u32 s{sNT}, 2\ns_cbranch_scc1 L2_nod1')
        for x in dma(1): a(x)
        a.label('L2_nod1')
        st(14)
        for x in idx_reads(2): a(x)
        a('s_waitcnt lgkmcnt(0)')
    else:
        dma_lc(0,0)
        st(13+18)
        for x in idx_reads(1): a(x)
        if 'nozf' in ABL:
            a(f's_cmp_lt_u32 s{sNT}, 2\ns_cbranch_scc1 L2_nod1')
        else: a(srd_select(1)[0])
        a('s_waitcnt lgkmcnt(0)')
        dma_lc(1,5)
        if 'nozf' in ABL: a.label('L2_nod1')
        st(14)
        for x in idx_reads(2): a(x)
        if 'nozf' not in ABL: a(srd_select(2)[0])
        if 'ilc' not in ABL:
            for y in lcl: a(y)
        for x in s_addr(): a(x)
        for x in s_writes(): a(x)
        for x in x6_read(): a(x)
        st(15)
        if 'nozf' in ABL:
            a(f's_cmp_gt_u32 s{sNT}, 1\ns_waitcnt vmcnt(5)\ns_cbranch_scc1 L2_w1\ns_waitcnt vmcnt(0)')
            a.label('L2_w1')
        else: a('s_waitcnt vmcnt(5)')
        st(30)
        for x in x_reads(0): a(x)
        for x in rec_reads(1): a(x)
        a('s_waitcnt lgkmcnt(0)')
        for x in mfma1(vD1[0]): a(x)
    st(8)
    stampc(a,12,vTM,98)
    if DEBUG_TM: a(f'v_writelane_b32 v{vTM}, s{sNT}, 22\nv_writelane_b32 v{vTM}, s{sG}, 23\ns_getreg_b32 s98, hwreg(HW_REG_HW_ID)\nv_writelane_b32 v{vTM}, s98, {21 if VMS in ABL else 24}')
    JM=[0,1,4,5]
    RESV=[[232,233,234,236],[237,238,252,253]]
    WXV=[192,196,200,204,208,212,228,248]
    def epi_prefetch(p):
        nxt=vD1[1-p]
        r=[]
        r.append('v_lshlrev_b32 v10, 4, v1')
        for ff in range(16):
            dst = 16+4*ff if ff<8 else nxt+4*(ff-8)
            if 'hst' in ABL and ff<NHS:
                r.append(f'v_add_u32 v9, {hstage_addr(ff)}, v10\nds_read_b128 v[{dst}:{dst+3}], v9')
            else:
                r.append(f'v_add_u32 v9, {(F_H1+ff)*1024}, v10\nbuffer_load_dwordx4 v[{dst}:{dst+3}], v9, s[{sWF}:{sWF+3}], 0 offen')
        r.append(f"""
        v_lshrrev_b32 v9, 3, v1
        v_lshlrev_b32 v9, 3, v9
        v_add_u32 v3, s{sG}, v9
        v_add_u32 v9, s{sNODE0}, v9
        v_cmp_gt_u32 vcc, {BN}, v3
        v_mov_b32 v4, -1
        v_and_b32 v241, 7, v1
        v_lshlrev_b32 v241, 4, v241
        v_cndmask_b32 v240, v4, v9, vcc
        """)
        r.append(f"""
        v_bfe_u32 v9, v1, 1, 3
        v_lshlrev_b32 v9, 3, v9
        v_add_u32 v3, s{sG}, v9
        v_add_u32 v9, s{sNODE0}, v9
        v_bfe_u32 v5, v1, 4, 1
        v_and_b32 v8, 1, v1
        v_lshl_add_u32 v5, v5, 1, v8
        v_cmp_gt_u32 vcc, {BN}, v3
        v_subrev_u32 v5, 1, v5
        v_cmp_gt_u32 s[56:57], 3, v5
        v_mul_u32_u24 v9, 6, v9
        s_and_b64 vcc, vcc, s[56:57]
        v_cmp_gt_u32 s[56:57], 32, v1
        v_lshl_add_u32 v9, v5, 1, v9
        v_mov_b32 v4, 0x7fffff00
        s_and_b64 vcc, vcc, s[56:57]
        v_cndmask_b32 v10, v4, v9, vcc
        buffer_load_ushort v11, v10, s[{sPOS}:{sPOS+3}], 0 offen
        """)
        return r
    def epi_rows():
        return f"""s_waitcnt lgkmcnt(0)
        s_lshl_b32 s62, s{sV}, 11
        s_add_u32 s62, s62, {L_S}
        s_mov_b32 m0, s62
        s_nop 0
        buffer_load_dwordx4 v[240:241], s[{sH}:{sH+3}], 0 idxen offen lds"""
    def epilogue(p):
        nxt=vD1[1-p]; cur=vD1[p]
        pk=vE; T=vE+16; acc=vE+24
        a(f"""
        v_and_b32 v3, 31, v1
        v_lshrrev_b32 v4, 5, v1
        v_bfe_u32 v5, v1, 1, 3
        v_lshlrev_b32 v5, 7, v5
        v_lshl_add_u32 v5, v4, 4, v5
        v_add_u32 v5, s62, v5
        v_lshlrev_b32 v6, 7, v4
        v_add_u32 v6, {L_WST+2048+256}, v6
        v_lshlrev_b32 v7, 1, v3
        v_lshl_add_u32 v7, v4, 8, v7
        v_add_u32 v7, s62, v7
        s_mov_b32 s54, {f32bits(-math.log(2.0))}
        s_mov_b32 s55, s54
        s_waitcnt vmcnt(0)
        """)
        for s_ in range(4):
            a(f'ds_read_b128 v[{48+4*s_}:{51+4*s_}], v5 offset:{32*s_}')
        for f in range(8):
            a(f'ds_read_b128 v[{WXV[f]}:{WXV[f]+3}], v6 offset:{16*f}')
        for i in range(16):
            a(f'v_pk_mul_f32 v[{vD2+2*i}:{vD2+2*i+1}], v[{vD2+2*i}:{vD2+2*i+1}], s[54:55]')
        a('s_waitcnt lgkmcnt(8)')
        for b2 in range(2):
            D=f'v[{cur+16*b2}:{cur+16*b2+15}]'
            for s_ in range(4):
                C = D if s_>0 else '0'
                a(f'v_mfma_f32_32x32x16_bf16 {D}, v[{48+4*s_}:{51+4*s_}], v[{16+4*(2*s_+b2)}:{19+4*(2*s_+b2)}], {C}')
            if b2==0:
                for blk in range(2):
                    for q in range(8):
                        a(f'v_cvt_pk_bf16_f32 v{pk+8*blk+q}, v{vD2+16*blk+2*q}, v{vD2+16*blk+2*q+1}')
        for b2 in range(2):
            for m in range(4):
                a(f'ds_read_u16 v{RESV[b2][m]}, v7 offset:{128*JM[m]+64*b2}')
        for b2 in range(2):
            D=f'v[{cur+16*b2}:{cur+16*b2+15}]'
            for blk in range(2):
                for sp in range(2):
                    f=(blk*2+sp)*2+b2
                    a(f'v_mfma_f32_32x32x16_bf16 {D}, v[{pk+8*blk+4*sp}:{pk+8*blk+4*sp+3}], v[{nxt+4*f}:{nxt+4*f+3}], {D}')
            if b2==0:
                a('s_waitcnt lgkmcnt(8)')
                a(f'v_mul_f32 v{acc}, v{vD2}, v{WXV[0]}')
                a(f'v_mul_f32 v{acc+1}, v{vD2+1}, v{WXV[0]+1}')
                for i in range(2,32):
                    a(f'v_fmac_f32 v{acc+(i&1)}, v{vD2+i}, v{WXV[i>>2]+(i&3)}')
                a(f'v_add_f32 v{acc}, v{acc}, v{acc+1}')
                a(f'v_mov_b32 v{acc+1}, v{acc}')
        a(f'v_permlane32_swap_b32 v{acc}, v{acc+1}')
        a(f"""
        v_lshlrev_b32 v11, 16, v11
        v_add_f32 v{acc}, v{acc}, v{acc+1}
        v_add_f32 v11, v11, v{acc}
        v_cvt_pk_bf16_f32 v11, v11, v11
        buffer_store_short v11, v10, s[{sO1}:{sO1+3}], 0 offen
        s_mov_b32 s54, {f32bits(-LOG2E)}
        """)
        for b2 in range(2):
            for m in range(4):
                a(f'v_mul_f32 v{T+4*b2+m}, s54, v{cur+16*b2+2*m}')
        for k in range(8): a(f'v_exp_f32 v{T+k}, v{T+k}')
        for k in range(8): a(f'v_add_f32 v{T+k}, 1.0, v{T+k}')
        for k in range(8): a(f'v_rcp_f32 v{T+k}, v{T+k}')
        a('s_waitcnt lgkmcnt(0)')
        for b2 in range(2):
            for m in range(4):
                x=cur+16*b2+2*m; t=T+4*b2+m; hh=RESV[b2][m]
                a(f'v_lshlrev_b32 v{hh}, 16, v{hh}')
                a(f'v_fma_f32 v{t}, v{x}, v{t}, v{hh}')
                a(f'v_cvt_pk_bf16_f32 v{t}, v{t}, v{t}')
        for b2 in range(2):
            for m in range(4):
                a(f'ds_write_b16 v7, v{T+4*b2+m} offset:{1024+128*JM[m]+64*b2}')
        a(f"""
        v_lshlrev_b32 v6, 4, v1
        v_add_u32 v6, s62, v6
        ds_read_b128 v[48:51], v6 offset:1024
        s_waitcnt lgkmcnt(0)
        buffer_store_dwordx4 v[48:51], v[240:241], s[{sO0}:{sO0+3}], 0 idxen offen{SC1O}
        """)
        st(10)
        if DEBUG_TM: a('s_waitcnt vmcnt(0)')
        st(11)
        stamp_store(a,vTM,98,44,45,0x80000,sV,254)
        a('s_endpgm')
    for p in range(2):
        a.label(f'L2_s{p}')
        if 'trim' in ABL:
            a(f's_cmp_ge_i32 s{sT}, s87\ns_cbranch_scc1 L2_l{p}')
        else:
            a(f'''
            s_add_u32 s54, s{sT}, 1
            s_cmp_ge_u32 s54, s{sNT}
            s_cbranch_scc1 L2_l{p}
            ''')
        if DEBUG_TM and p==0:
            for tt,ix in ((2,25),(4,26),(6,27),(8,28),(10,29)):
                a(f's_cmp_lg_u32 s{sT}, {tt}\ns_cbranch_scc1 Lst{ix}')
                stampc(a,ix,vTM,98)
                a.label(f'Lst{ix}')
        body(p, True)
        a(f's_add_u32 s{sT}, s{sT}, 1')
        if p==1:
            a(f'''
            v_add_u32 v{vRSa}, 128, v{vRSa}
            v_add_u32 v{vR0a}, 256, v{vR0a}
            v_add_u32 v{vR0e}, 256, v{vR0e}
            v_add_u32 v{vGe}, 512, v{vGe}
            s_branch L2_s0
            ''')
    for p in range(2):
        a.label(f'L2_l{p}')
        a(f'''
        s_cmp_lt_u32 s{sW1}, {NCH}
        s_cbranch_scc1 L2_l{p}n
        ''')
        body(p, False, None) if False else None
        for x in epi_prefetch(p): a(x)
        body(p, False, [epi_rows()])
        st(9)
        stampc(a,13,vTM,98)
        epilogue(p)
        a.label(f'L2_l{p}n')
        body(p, False)
        a('s_branch L2_nextbatch')
    a.label('L2_notiles')
    a(f'''
    s_cmp_lt_u32 s{sW1}, {NCH}
    s_cbranch_scc1 L2_nextbatch
    ''')
    for x in epi_prefetch(0): a(x)
    a(epi_rows())
    st(9)
    epilogue(0)
    a.label('L2_nextbatch')
    a(f'''
    s_waitcnt vmcnt(0) lgkmcnt(0)
    s_mov_b32 s{sW0}, s{sW1}
    s_add_u32 s{sW1}, s{sW1}, 1
    s_branch L2_batch
    ''')
    a.label('L2_end')
    a('s_endpgm')
    return a.finalize(), 256, 102, (L_END if 'hst' in ABL else L_HX)

def main():
    k1,v1,s1,l1 = gen_k1()
    k2,v2,s2,l2 = gen_k2()
    hdr = open('gather_scatter__cheap_equivariant_egnn__graph.s.ref').read().split('; Override launch')[0]
    out = hdr
    out += f'; @launch kernel=egnn_part_kernel grid=({NCH+1+NTW},1,1) block=(512,1,1) lds={l1}\n'
    out += f'; @launch kernel=egnn_main_kernel grid=({NBK},1,1) block=(512,1,1) lds={l2}\n'
    out += '''; Algorithm (two launches):
'''
    out += '.amdgcn_target "amdgcn-amd-amdhsa--gfx950"\n.text\n'
    for name,body in (('egnn_part_kernel',k1),('egnn_main_kernel',k2)):
        out += f'.globl {name}\n.p2align 8\n.type {name},@function\n' + body
    out += '.section .rodata,"a"\n'
    for name,nv,ns in (('egnn_part_kernel',v1,s1),('egnn_main_kernel',v2,s2)):
        acc=(nv+3)//4*4
        out += f'''.p2align 6
.amdhsa_kernel {name}
  .amdhsa_next_free_vgpr {nv}
  .amdhsa_next_free_sgpr {ns}
  .amdhsa_accum_offset {acc}
  .amdhsa_group_segment_fixed_size 0
  .amdhsa_kernarg_size 88
  .amdhsa_user_sgpr_count 2
  .amdhsa_user_sgpr_kernarg_segment_ptr 1
  .amdhsa_system_sgpr_workgroup_id_x 1
  .amdhsa_float_denorm_mode_32 3
.end_amdhsa_kernel
'''
    dst = [x for x in sys.argv[1:] if not x.startswith('--')]
    path = dst[0] if dst else 'gather_scatter__cheap_equivariant_egnn__graph.s'
    open(path,'w').write(out)
    print('wrote',path,len(out))
main()
```

```python
import sys, math
from asmlib import Asm

N=12500; E=800000; CH=3200; NCH=250; NBK=256; BN=49
ROW=4224
OFFS=0; ENT=0x110000; WF=0x420000; TA=0x500000; TB=0x700000; TM=0x900000
NF=18; WDO=NF*1024; WXO=NF*1024+256; WFSZ=NF*1024+512
NTW=98
CAP=3584
LOG2E=1.4426950408889634
def f32bits(x):
    import struct; return struct.unpack('<I',struct.pack('<f',x))[0]

DEBUG_TM = '--tm' in sys.argv
K1PRIO = '--nok1prio' not in sys.argv
TFIRST = '--tfirst' in sys.argv
SC1 = '' if '--nosc1' in sys.argv else (' sc0 sc1' if '--sc01' in sys.argv else ' sc1')
SC1T = '' if '--tplain' in sys.argv else SC1
SC1W = SC1 if '--wsc1' in sys.argv else ''
SC1O = ' sc1' if '--osc1' in sys.argv else (' nt' if '--ont' in sys.argv else '')
PFN = int(([x[6:] for x in sys.argv if x.startswith('--pfn=')] or ['0'])[0])
PFK1 = 2 if PFN else 0

F_W3=0
F_H1=2
F_H2=10

def stamp(a, idx, vreg, sp):
    if not DEBUG_TM: return
    a(f'''
    s_memrealtime s[{sp}:{sp+1}]
    s_waitcnt lgkmcnt(0)
    v_writelane_b32 v{vreg}, s{sp}, {idx}
    ''')
def stampc(a, idx, vreg, sp):
    if not DEBUG_TM: return
    a(f'''
    s_memtime s[{sp}:{sp+1}]
    s_waitcnt lgkmcnt(0)
    v_writelane_b32 v{vreg}, s{sp}, {idx}
    ''')
def stamp_store(a, vreg, sp, ws_lo, ws_hi, region, wave_s, vt):
    if not DEBUG_TM: return
    a(f'''
    s_lshl_b32 s{sp}, s2, 3
    s_add_u32 s{sp}, s{sp}, s{wave_s}
    s_lshl_b32 s{sp}, s{sp}, 7
    s_add_u32 s{sp}, s{sp}, {TM+region}
    s_add_u32 s{sp}, s{ws_lo}, s{sp}
    s_addc_u32 s{sp+1}, s{ws_hi}, 0
    v_and_b32 v{vt}, 63, v0
    v_lshlrev_b32 v{vt}, 2, v{vt}
    s_mov_b32 exec_hi, 0
    global_store_dword v{vt}, v{vreg}, s[{sp}:{sp+1}]
    s_mov_b64 exec, -1
    ''')

def gen_k1():
    a=Asm()
    K1_STAGE=8192; K1_WTOT=24576
    a.label('egnn_part_kernel')
    a(f'''
    s_cmp_gt_u32 s2, {NCH+NTW}
    s_cbranch_scc1 L1_end
    v_lshrrev_b32 v2, 6, v0
    v_and_b32 v1, 63, v0
    s_load_dwordx4 s[4:7], s[0:1], 24
    s_load_dwordx2 s[8:9], s[0:1], 80
    s_load_dwordx2 s[34:35], s[0:1], 16
    v_readfirstlane_b32 s3, v2
    s_cmp_eq_u32 s2, {NTW if TFIRST else NCH}
    s_cbranch_scc1 L1_wprep
    s_cmp_{'lt' if TFIRST else 'gt'}_u32 s2, {NTW if TFIRST else NCH}
    s_cbranch_scc1 L1_tables
    s_sub_u32 s38, s2, {NTW+1 if TFIRST else 0}
    s_setprio {3 if K1PRIO else 0}
    ''')
    if DEBUG_TM: a('v_mov_b32 v70, 0')
    stamp(a,0,70,36)
    a(f'''
    v_lshlrev_b32 v3, 4, v0
    v_mov_b32 v4, 0
    v_mov_b32 v5, 0
    v_mov_b32 v6, 0
    v_mov_b32 v7, 0
    ds_write_b128 v3, v[4:7]
    s_mul_i32 s10, s38, {CH*4}
    s_mul_i32 s11, s38, {ROW}
    v_add_u32 v48, 8192, v3
    s_waitcnt lgkmcnt(0)
    s_add_u32 s12, s6, s10
    s_addc_u32 s13, s7, 0
    s_mov_b32 s14, {CH*4}
    s_mov_b32 s15, 0x20000
    s_add_u32 s16, s4, s10
    s_addc_u32 s17, s5, 0
    s_mov_b32 s18, {CH*4}
    s_mov_b32 s19, 0x20000
    buffer_load_dwordx4 v[8:11], v3, s[12:15], 0 offen
    buffer_load_dwordx4 v[12:15], v48, s[12:15], 0 offen
    buffer_load_dwordx4 v[16:19], v3, s[16:19], 0 offen
    buffer_load_dwordx4 v[20:23], v48, s[16:19], 0 offen
    ''')
    if PFK1:
        a(f'''
        s_mul_i32 s10, s38, {CH*32}
        s_add_u32 s32, s34, s10
        s_addc_u32 s33, s35, 0
        s_cmp_lt_u32 s38, {PFN}
        s_cselect_b32 s34, {CH*32}, 0
        s_mov_b32 s35, 0x20000
        v_lshlrev_b32 v64, 7, v0
        v_add_u32 v65, {512*128}, v64
        buffer_load_dword v66, v64, s[32:35], 0 offen
        ''')
        if PFK1>1: a('buffer_load_dword v67, v65, s[32:35], 0 offen')
        a(f's_mul_i32 s10, s38, {CH*4}')
    a(f'''
    s_add_u32 s24, s8, {OFFS}
    s_addc_u32 s25, s9, 0
    s_add_u32 s24, s24, s11
    s_addc_u32 s25, s25, 0
    s_mov_b32 s26, {ROW}
    s_mov_b32 s27, 0x20000
    s_add_u32 s28, s8, {ENT}
    s_addc_u32 s29, s9, 0
    s_add_u32 s28, s28, s10
    s_addc_u32 s29, s29, 0
    s_mov_b32 s30, {CH*4}
    s_mov_b32 s31, 0x20000
    s_mov_b32 s22, -{BN}
    v_mov_b32 v50, 1
    v_lshlrev_b32 v51, 5, v0
    v_add_u32 v52, 16384, v51
    s_barrier
    s_waitcnt vmcnt({2+PFK1})
    ''')
    stamp(a,1,70,36)
    def keyslot(i, dst, tmp):
        a(f'''
        v_mul_u32_u24 v{tmp}, 21400, v{dst}
        v_lshrrev_b32 v{tmp}, 20, v{tmp}
        v_mad_i32_i24 v{40+i}, v{tmp}, s22, v{dst}
        v_and_b32 v{tmp+1}, 7, v{40+i}
        v_lshl_or_b32 v{tmp}, v{tmp}, 3, v{tmp+1}
        v_lshlrev_b32 v{24+i}, 2, v{tmp}
        ''')
    for u in range(4):
        keyslot(u, 8+u, 54+2*u)
        a(f'ds_add_rtn_u32 v{32+u}, v{24+u}, v50')
    a('''
    v_cmp_gt_u32 vcc, 288, v0
    s_and_saveexec_b64 s[20:21], vcc
    s_cbranch_execz L1_skipB1
    ''')
    for u in range(4):
        keyslot(4+u, 12+u, 54+2*u)
        a(f'ds_add_rtn_u32 v{36+u}, v{28+u}, v50')
    a.label('L1_skipB1')
    a('s_mov_b64 exec, s[20:21]')
    a(f's_waitcnt vmcnt({PFK1})')
    for i in range(8):
        base = 51 if i<4 else 52
        a(f'''
        v_lshrrev_b32 v54, 3, v{40+i}
        v_lshl_or_b32 v54, v{40+i}, 29, v54
        v_lshl_or_b32 v54, v{16+i}, 15, v54
        v_add3_u32 v{40+i}, v54, v{base}, {8*(i%4)}
        ''')
    a('''
    s_waitcnt lgkmcnt(0)
    s_barrier
    ''')
    stamp(a,2,70,36)
    a('''
    ds_read_b128 v[8:11], v3
    s_waitcnt lgkmcnt(0)
    v_add_u32 v12, v8, v9
    v_add_u32 v13, v12, v10
    v_add_u32 v14, v13, v11
    v_mov_b32 v15, v14
    ''')
    for sh in (1,2,4,8):
        a(f'v_add_u32_dpp v15, v15, v15 row_shr:{sh} row_mask:0xf bank_mask:0xf')
    a('v_add_u32_dpp v15, v15, v15 row_bcast:15 row_mask:0xa bank_mask:0xf')
    a('v_add_u32_dpp v15, v15, v15 row_bcast:31 row_mask:0xc bank_mask:0xf')
    a(f'''
    s_lshl_b32 s10, s3, 2
    s_add_u32 s10, s10, {K1_WTOT}
    v_mov_b32 v16, s10
    s_mov_b32 s20, 0
    s_brev_b32 s21, 1
    s_mov_b64 exec, s[20:21]
    ds_write_b32 v16, v15
    s_mov_b64 exec, -1
    v_and_b32 v17, 7, v1
    v_lshlrev_b32 v17, 2, v17
    v_add_u32 v17, {K1_WTOT}, v17
    s_waitcnt lgkmcnt(0)
    s_barrier
    ds_read_b32 v18, v17
    v_cmp_gt_u32 vcc, s3, v1
    s_waitcnt lgkmcnt(0)
    v_cndmask_b32 v18, 0, v18, vcc
    ''')
    for sh in (1,2,4):
        a(f'v_add_u32_dpp v18, v18, v18 row_shr:{sh} row_mask:0xf bank_mask:0xf')
    a(f'''
    v_readlane_b32 s10, v18, 7
    v_sub_u32 v15, v15, v14
    v_add_u32 v8+0, s10, v15
    '''.replace('v8+0','v19'))
    a(f'''
    v_add_u32 v21, v19, v12
    v_add_u32 v22, v19, v13
    v_add_u32 v20, v19, v8
    v_mov_b32 v56, v19
    v_mov_b32 v57, v20
    v_mov_b32 v58, v21
    v_mov_b32 v59, v22
    ds_write_b128 v3, v[56:59]
    v_lshl_or_b32 v60, v20, 16, v19
    v_lshl_or_b32 v61, v22, 16, v21
    v_lshlrev_b32 v62, 3, v0
    buffer_store_dwordx2 v[60:61], v62, s[24:27], 0 offen{SC1}
    s_cmp_lg_u32 s3, 0
    s_cbranch_scc1 L1_nosent
    s_mov_b32 s10, {CH | (CH<<16)}
    v_mov_b32 v63, s10
    v_lshlrev_b32 v62, 2, v1
    v_add_u32 v62, 4096, v62
    v_cmp_gt_u32 vcc, 32, v1
    s_and_saveexec_b64 s[20:21], vcc
    buffer_store_dword v63, v62, s[24:27], 0 offen{SC1}
    s_mov_b64 exec, s[20:21]
    ''')
    a.label('L1_nosent')
    a('''
    s_waitcnt lgkmcnt(0)
    s_barrier
    ''')
    stamp(a,3,70,36)
    for u in range(4):
        a(f'ds_read_b32 v{8+u}, v{24+u}')
    a('''
    v_cmp_gt_u32 vcc, 288, v0
    s_and_saveexec_b64 s[20:21], vcc
    s_cbranch_execz L1_skipB2
    ''')
    for u in range(4):
        a(f'ds_read_b32 v{12+u}, v{28+u}')
    a('s_waitcnt lgkmcnt(0)')
    for u in range(4):
        a(f'v_add_lshl_u32 v{12+u}, v{12+u}, v{36+u}, 2')
    for u in range(4):
        a(f'ds_write_b32 v{12+u}, v{44+u} offset:{K1_STAGE}')
    a.label('L1_skipB2')
    a('s_mov_b64 exec, s[20:21]')
    a('s_waitcnt lgkmcnt(0)')
    for u in range(4):
        a(f'v_add_lshl_u32 v{8+u}, v{8+u}, v{32+u}, 2')
    for u in range(4):
        a(f'ds_write_b32 v{8+u}, v{40+u} offset:{K1_STAGE}')
    a(f'''
    s_waitcnt lgkmcnt(0)
    s_barrier
    ds_read_b128 v[8:11], v3 offset:{K1_STAGE}
    ds_read_b128 v[12:15], v3 offset:{K1_STAGE+8192}
    s_waitcnt lgkmcnt(1)
    buffer_store_dwordx4 v[8:11], v3, s[28:31], 0 offen{SC1}
    s_waitcnt lgkmcnt(0)
    buffer_store_dwordx4 v[12:15], v48, s[28:31], 0 offen{SC1}
    ''')
    stamp(a,4,70,36)
    if DEBUG_TM: a('s_waitcnt vmcnt(0)')
    stamp(a,5,70,36)
    stamp_store(a,70,36,8,9,0,3,69)
    a('s_endpgm')
    a.label('L1_wprep')
    a(f'''
    s_load_dwordx2 s[10:11], s[0:1], 40
    s_load_dwordx2 s[12:13], s[0:1], 48
    s_load_dwordx2 s[14:15], s[0:1], 56
    v_and_b32 v2, 31, v1
    v_lshrrev_b32 v3, 5, v1
    v_lshlrev_b32 v4, 4, v1
    s_waitcnt lgkmcnt(0)
    s_mov_b32 s16, s10
    s_mov_b32 s17, s11
    s_mov_b32 s18, {145*64*2}
    s_mov_b32 s19, 0x20000
    s_mov_b32 s20, s14
    s_mov_b32 s21, s15
    s_mov_b32 s22, {128*64*2}
    s_mov_b32 s23, 0x20000
    s_mov_b32 s24, s12
    s_mov_b32 s25, s13
    s_mov_b32 s26, {64*2}
    s_mov_b32 s27, 0x20000
    s_add_u32 s28, s8, {WF}
    s_addc_u32 s29, s9, 0
    s_mov_b32 s30, {WFSZ}
    s_mov_b32 s31, 0x20000
    s_mov_b32 s32, {f32bits(-LOG2E)}
    v_lshlrev_b32 v5, 1, v2
    v_lshl_add_u32 v6, v3, 10, v5
    v_lshl_add_u32 v7, v3, 9, v5
    v_lshlrev_b32 v8, 3, v3
    ''')
    frags=[]
    for blk in range(2): frags.append((F_W3+blk,'e',129,blk,'std',True))
    for s in range(4):
        for blk in range(2): frags.append((F_H1+2*s+blk,'h',16*s,blk,'std',False))
    for blk in range(2):
        for sp in range(2):
            for b2 in range(2): frags.append((F_H2+(blk*2+sp)*2+b2,'h',64+32*blk+16*sp,b2,'perm',False))
    assert len(frags)==NF
    for wv in range(8):
        a(f's_cmp_eq_u32 s3, {wv}')
        a(f's_cbranch_scc1 L1_w{wv}')
    a('s_endpgm')
    for wv in range(8):
        a.label(f'L1_w{wv}')
        mine=[f for i,f in enumerate(frags) if i%8==wv]
        for q,(F,srcn,row0,blk,kind,scaled) in enumerate(mine):
            r=16+8*q
            srd={'e':'s[16:19]','h':'s[20:23]','x':'s[24:27]'}[srcn]
            if kind=='wx':
                a(f'v_add_u32 v10, {row0*2}, v8')
                for t in range(8):
                    T=(t&3)+8*(t>>2)
                    a(f'buffer_load_ushort v{r+t}, v10, {srd}, 0 offen offset:{T*2}')
            else:
                vb = 6 if kind=='std' else 7
                a(f'v_add_u32 v10, {row0*128+blk*64}, v{vb}')
                for t in range(8):
                    T= t if kind=='std' else (t&3)+8*(t>>2)
                    a(f'buffer_load_ushort v{r+t}, v10, {srd}, 0 offen offset:{T*128}')
        if wv==0:
            a(f'''
            v_lshlrev_b32 v11, 1, v1
            v_add_u32 v11, {128*128}, v11
            buffer_load_ushort v12, v11, s[16:19], 0 offen
            ''')
        if wv==1:
            a(f'''
            v_and_b32 v11, 3, v1
            v_bfe_u32 v12, v1, 2, 2
            v_lshl_add_u32 v11, v12, 3, v11
            v_bfe_u32 v12, v1, 4, 1
            v_lshl_add_u32 v11, v12, 5, v11
            v_lshl_add_u32 v11, v3, 2, v11
            v_lshlrev_b32 v11, 1, v11
            buffer_load_ushort v12, v11, s[24:27], 0 offen
            ''')
        a('s_waitcnt vmcnt(0)')
        for q,(F,srcn,row0,blk,kind,scaled) in enumerate(mine):
            r=16+8*q
            if scaled:
                for t in range(8):
                    a(f'v_lshlrev_b32 v{r+t}, 16, v{r+t}')
                for t in range(8):
                    a(f'v_mul_f32 v{r+t}, s32, v{r+t}')
                for t in range(4):
                    a(f'v_cvt_pk_bf16_f32 v{64+t}, v{r+2*t}, v{r+2*t+1}')
            else:
                for t in range(4):
                    a(f'v_lshl_or_b32 v{64+t}, v{r+2*t+1}, 16, v{r+2*t}')
            a(f'v_add_u32 v10, {F*1024}, v4')
            a(f'buffer_store_dwordx4 v[64:67], v10, s[28:31], 0 offen{SC1W}')
            a('s_nop 1')
        if wv==0:
            a(f'''
            v_lshlrev_b32 v12, 16, v12
            v_mul_f32 v12, s32, v12
            v_cvt_pk_bf16_f32 v13, v12, v12
            v_and_b32 v14, 0xffff0000, v13
            v_sub_f32 v12, v12, v14
            v_cvt_pk_bf16_f32 v12, v12, v12
            v_and_b32 v12, 0xffff0000, v12
            v_and_b32 v13, 0xffff, v13
            v_or_b32 v13, v13, v12
            v_and_b32 v11, 31, v1
            v_lshlrev_b32 v11, 3, v11
            v_lshl_add_u32 v11, v3, 2, v11
            v_add_u32 v11, {WDO}, v11
            buffer_store_dword v13, v11, s[28:31], 0 offen
            ''')
        if wv==1:
            a(f'''
            v_lshlrev_b32 v12, 16, v12
            v_lshlrev_b32 v11, 2, v1
            v_add_u32 v11, {WXO}, v11
            buffer_store_dword v12, v11, s[28:31], 0 offen
            ''')
        if DEBUG_TM:
            a('s_waitcnt vmcnt(0)\nv_mov_b32 v70, 0')
            stamp(a,5,70,36)
            stamp_store(a,70,36,8,9,0,3,69)
        a('s_endpgm')
    a.label('L1_tables')
    if '--tprio' in sys.argv: a('s_setprio 3')
    if DEBUG_TM: a('v_mov_b32 v15, 0')
    stamp(a,0,15,36)
    a(f"""
    s_load_dwordx2 s[10:11], s[0:1], 0
    s_load_dwordx2 s[12:13], s[0:1], 40
    s_sub_u32 s14, s2, {0 if TFIRST else NCH+1}
    s_lshl_b32 s14, s14, 7
    s_lshr_b32 s33, s3, 1
    s_lshl_b32 s33, s33, 5
    s_and_b32 s15, s3, 1
    v_and_b32 v2, 31, v1
    v_lshrrev_b32 v3, 5, v1
    v_lshrrev_b32 v8, 3, v1
    v_and_b32 v9, 7, v1
    v_lshrrev_b32 v10, 4, v1
    s_waitcnt lgkmcnt(0)
    s_mov_b32 s16, s10
    s_or_b32 s17, s11, 0x800000
    s_mov_b32 s18, {N}
    s_mov_b32 s19, 0x20000
    s_mov_b32 s20, s12
    s_mov_b32 s21, s13
    s_mov_b32 s22, {128*128}
    s_mov_b32 s23, 0x20000
    s_mul_i32 s34, s15, {TB-TA}
    s_add_u32 s34, s34, {TA}
    s_add_u32 s24, s8, s34
    s_addc_u32 s25, s9, 0
    s_or_b32 s25, s25, 0x800000
    s_mov_b32 s26, {N}
    s_mov_b32 s27, 0x20000
    """)
    for r in range(2):
        a(f"""
        s_lshl_b32 s34, s3, 1
        s_add_u32 s34, s34, {r}
        s_lshl_b32 s35, s34, 3
        s_add_u32 s35, s35, s14
        v_add_u32 v4, s35, v8
        v_add_u32 v5, {4*r}, v10
        v_xor_b32 v5, v5, v9
        v_lshlrev_b32 v5, 4, v5
        s_lshl_b32 s34, s34, 10
        s_add_u32 m0, s34, 16384
        s_nop 0
        buffer_load_dwordx4 v[4:5], s[16:19], 0 idxen offen lds
        """)
    a(f"""
    v_lshlrev_b32 v6, 4, v1
    s_lshl_b32 s34, s3, 10
    v_add_u32 v6, s34, v6
    s_mov_b32 m0, s34
    v_add_u32 v7, 8192, v6
    buffer_load_dwordx4 v6, s[20:23], 0 offen lds
    s_add_u32 m0, s34, 8192
    s_nop 0
    buffer_load_dwordx4 v7, s[20:23], 0 offen lds
    v_and_b32 v8, 15, v1
    v_lshrrev_b32 v9, 2, v8
    v_lshl_add_u32 v9, v3, 3, v9
    v_lshlrev_b32 v9, 7, v9
    v_bfe_u32 v10, v1, 4, 1
    v_lshl_add_u32 v9, v10, 5, v9
    v_and_b32 v10, 3, v1
    v_lshl_add_u32 v9, v10, 3, v9
    s_lshl_b32 s34, s15, 13
    v_add_u32 v9, s34, v9
    v_add_u32 v10, s33, v2
    v_lshlrev_b32 v10, 7, v10
    v_add_u32 v10, 16384, v10
    v_bfe_u32 v11, v2, 1, 3
    s_mov_b32 s35, {f32bits(-LOG2E)}
    s_waitcnt vmcnt(0)
    """)
    stamp(a,1,15,36)
    a('s_barrier')
    for s_ in range(4):
        a(f"""
        v_add_u32 v12, {2*s_}, v3
        v_xor_b32 v12, v12, v11
        v_lshl_add_u32 v12, v12, 4, v10
        ds_read_b128 v[{16+4*s_}:{19+4*s_}], v12
        """)
    for s_ in range(4):
        for blk in range(2):
            r=32+4*(2*s_+blk)
            a(f'ds_read_b64_tr_b16 v[{r}:{r+1}], v9 offset:{2048*s_+64*blk}')
            a(f'ds_read_b64_tr_b16 v[{r+2}:{r+3}], v9 offset:{2048*s_+64*blk+512}')
        if s_==1: a('s_waitcnt lgkmcnt(0)')
    a('s_waitcnt lgkmcnt(0)')
    a('s_barrier')
    stamp(a,2,15,36)
    for blk in range(2):
        D=f'v[{64+16*blk}:{79+16*blk}]'
        for s_ in range(4):
            C = D if s_>0 else '0'
            r=32+4*(2*s_+blk)
            a(f'v_mfma_f32_32x32x16_bf16 {D}, v[{r}:{r+3}], v[{16+4*s_}:{19+4*s_}], {C}')
    a(f"""
    s_lshl_b32 s34, s3, 12
    v_lshlrev_b32 v4, 7, v2
    v_add_u32 v4, s34, v4
    v_and_b32 v5, 7, v2
    v_lshlrev_b32 v5, 4, v5
    """)
    for blk in range(2):
        for i in range(16):
            a(f'v_mul_f32 v{64+16*blk+i}, s35, v{64+16*blk+i}')
    a("""
    s_cmp_eq_u32 s15, 0
    s_cbranch_scc1 L1_tabA
    v_lshl_add_u32 v4, v3, 3, v4
    """)
    for blk in range(2):
        for q in range(8):
            a(f'v_cvt_pk_bf16_f32 v{32+8*blk+q}, v{64+16*blk+2*q}, v{64+16*blk+2*q+1}')
        for m in range(4):
            a(f'v_xor_b32 v6, {16*(4*blk+m)}, v5')
            a(f'v_add_u32 v6, v6, v4')
            a(f'ds_write_b64 v6, v[{32+8*blk+2*m}:{33+8*blk+2*m}]')
    a('s_branch L1_tabS')
    a.label('L1_tabA')
    for r in range(16):
        a(f'v_cvt_pk_bf16_f32 v{32+r}, v{64+r}, v{80+r}')
    a('v_lshlrev_b32 v7, 4, v3')
    for m in range(4):
        a(f'v_add_u32 v6, {32*m}, v7')
        a(f'v_xor_b32 v6, v6, v5')
        a(f'v_add_u32 v6, v6, v4')
        a(f'ds_write_b128 v6, v[{32+4*m}:{35+4*m}]')
    a.label('L1_tabS')
    stamp(a,3,15,36)
    a(f"""
    v_lshlrev_b32 v6, 4, v1
    v_add_u32 v6, s34, v6
    v_lshrrev_b32 v8, 3, v1
    v_and_b32 v9, 7, v1
    v_xor_b32 v9, v9, v8
    v_lshlrev_b32 v13, 4, v9
    s_add_u32 s14, s14, s33
    v_add_u32 v8, s14, v8
    s_waitcnt lgkmcnt(0)
    """)
    for i in range(4):
        a(f'ds_read_b128 v[{48+4*i}:{51+4*i}], v6 offset:{1024*i}')
    for i in range(4):
        a(f'v_add_u32 v12, {8*i}, v8')
        a(f's_waitcnt lgkmcnt({3-i})')
        a(f'buffer_store_dwordx4 v[{48+4*i}:{51+4*i}], v[12:13], s[24:27], 0 idxen offen{SC1T}')
    stamp(a,4,15,36)
    if DEBUG_TM: a('s_waitcnt vmcnt(0)')
    stamp(a,5,15,36)
    stamp_store(a,15,36,8,9,0,3,14)
    a('s_endpgm')
    a.label('L1_end')
    a('s_endpgm')
    return a.finalize(), 96, 40, 32768+64

L_G=0; L_R0=28672; L_RS=43264; L_S=50432; L_RING=66816; L_GTAB=148736; L_WTOT=156928; L_PD=157184; L_WST=158208; L_AST=L_WST+2560; L_HX=L_AST+2048; L_END=L_HX+1024
NHS=9
def hstage_addr(f): return L_GTAB+1024*f if f<8 else L_HX
SLOT=5120
vI=16; vW3=24; vW6=32; vS1=40; vS2=41; vD2=64; vD1=(96,128); vE=160; vX=192; vXE=208; vX6=212; vSF=216; vONE=224
vHA=228; vEAr=232; vX6r=233; vC1=234; vSTa=235; vC2=236; vMK2=237; vEAc=238; vOne=239; vHP=240
vSTb=15; vCD=14
vRSa=248; vR0a=249; vR0e=250; vGe=251; vR0=252; vG=253; vA1=254; vA2=255; vEAi=10; vEAo=11
vZero=vONE+1
vTM=12
sH=4; sEA=8; sOF=12; sEN=16; sPOS=20; sWF=24; sO0=28; sO1=32; sHD=36; sSEL=100; sTA=40
sWS=44
sW0=46; sW1=47; sV=3; sG=101; sCNT=48; sBASE=49; sNT=50; sT=51; sRB=52; sNODE0=53; sMK=89

ABL=set(x[6:] for x in sys.argv if x.startswith('--abl=') ) | ({'fprio','trim','pk','xmap','off2','nozf'} - set(x[5:] for x in sys.argv if x.startswith('--no=')))
OPT=dict(x[6:].split(':') for x in sys.argv if x.startswith('--opt='))
def optl(k,d): return [int(v.replace('n','-')) for v in OPT[k].split(',')] if k in OPT else d
TRIMK='trim'; PF2K='pf2'; TBK='tbpf'; XMK='xmap'; OFF2='off2'; VMS='vmstat'; PFT1='pft1'
EAF=''.join(' '+x for x in OPT.get('eaf','').split('+') if x); HF=''.join(' '+x for x in OPT.get('hf','').split('+') if x)
NH_ = 0 if 'noh' in ABL else N
NE_ = 0 if 'noea' in ABL else E*32
def gen_k2():
    a=Asm()
    def st(i): stamp(a,i,vTM,98)
    a.label('egnn_main_kernel')
    a(f'''
    s_cmp_ge_u32 s2, {NBK}
    s_cbranch_scc1 L2_end
    ''')
    if 'xmap' in ABL:
        a('s_and_b32 s4, s2, 7\ns_lshl_b32 s4, s4, 5\ns_lshr_b32 s2, s2, 3\ns_or_b32 s2, s2, s4')
    if DEBUG_TM: a(f'v_mov_b32 v{vTM}, 0')
    st(0)
    a(f'''
    s_load_dwordx2 s[44:45], s[0:1], 80
    s_load_dwordx4 s[36:39], s[0:1], 0
    s_load_dwordx2 s[40:41], s[0:1], 16
    s_load_dwordx2 s[42:43], s[0:1], 64
    v_and_b32 v1, 63, v0
    v_lshrrev_b32 v2, 6, v0
    v_lshrrev_b32 v3, 1, v0
    v_readfirstlane_b32 s{sV}, v2
    ''')
    if 'rot' in OPT:
        a(f'''
        s_lshr_b32 s54, s2, 5
        s_mul_i32 s54, s54, {int(OPT['rot'])}
        v_cmp_gt_u32 vcc, {NCH}, v3
        v_add_u32 v9, s54, v3
        v_subrev_u32 v10, {NCH}, v9
        s_movk_i32 s55, {NCH}
        v_cmp_gt_u32 s[56:57], s55, v9
        s_nop 1
        v_cndmask_b32 v9, v10, v9, s[56:57]
        v_cndmask_b32 v3, v3, v9, vcc
        ''')
    a(f'''
    v_and_b32 v9, 1, v0
    s_lshl_b32 s54, s2, 4
    s_mov_b32 s55, {ROW}
    {'v_mov_b32 v96, s54' if OFF2 in ABL else 'v_lshl_add_u32 v96, v9, 4, s54'}
    v_mad_u32_u24 v96, v3, s55, v96
    s_mov_b32 s{sOF+2}, {NCH*ROW}
    s_mov_b32 s{sOF+3}, 0x20000
    s_waitcnt lgkmcnt(0)
    s_add_u32 s{sOF}, s44, {OFFS}
    s_addc_u32 s{sOF+1}, s45, 0
    buffer_load_dwordx4 {'v[4:7]' if OFF2 in ABL else 'v[104:107]'}, v96, s[{sOF}:{sOF+3}], 0 offen
    {f'buffer_load_ushort v8, v96, s[{sOF}:{sOF+3}], 0 offen offset:16' if OFF2 in ABL else ''}
    ''')
    st(16)
    a(f"""
    s_mov_b32 s{sPOS}, s38
    s_mov_b32 s{sPOS+1}, s39
    s_mov_b32 s{sPOS+2}, {N*6}
    s_mov_b32 s{sPOS+3}, 0x20000
    s_add_u32 s{sWF}, s44, {WF}
    s_addc_u32 s{sWF+1}, s45, 0
    s_mov_b32 s{sWF+2}, {WFSZ}
    s_mov_b32 s{sWF+3}, 0x20000
    s_mov_b32 s{sW0}, 0
    s_mov_b32 s{sW1}, {NCH}
    s_mov_b32 s63, 2
    v_lshlrev_b32 v96, 4, v1
    s_lshl_b32 s58, s{sV}, 10
    v_add_u32 v96, s58, v96
    """)
    PE=optl('pe',[5])[0]
    assert PE<=9
    def posdma(r):
        a(f"""
        s_add_u32 m0, s58, {L_RING+8192*r}
        v_add_u32 v97, {8192*r}, v96
        buffer_load_dwordx4 v97, s[{sPOS}:{sPOS+3}], 0 offen lds
        """)
    chunks=[f"""
    s_mov_b32 s{sH}, s36
    s_or_b32 s{sH+1}, s37, 0x800000
    s_mov_b32 s{sH+2}, {N}
    s_mov_b32 s{sH+3}, 0x20000
    s_mov_b32 s{sEA}, s40
    s_mov_b32 s{sEA+1}, s41
    s_mov_b32 s{sEA+2}, {E*32}
    s_mov_b32 s{sEA+3}, 0x20000
    s_add_u32 s{sEN}, s44, {ENT}
    s_addc_u32 s{sEN+1}, s45, 0
    s_mov_b32 s{sEN+2}, {NCH*CH*4}
    s_mov_b32 s{sEN+3}, 0x20000
    """, f"""
    s_mov_b32 s{sO0}, s42
    s_or_b32 s{sO0+1}, s43, 0x800000
    s_mov_b32 s{sO0+2}, {N}
    s_mov_b32 s{sO0+3}, 0x20000
    s_add_u32 s{sO1}, s42, {N*128}
    s_addc_u32 s{sO1+1}, s43, 0
    s_mov_b32 s{sO1+2}, {N*6}
    s_mov_b32 s{sO1+3}, 0x20000
    s_add_u32 s{sHD}, s44, {TB}
    s_addc_u32 s{sHD+1}, s45, 0
    s_or_b32 s{sHD+1}, s{sHD+1}, 0x800000
    s_mov_b32 s{sHD+2}, {N}
    s_mov_b32 s{sHD+3}, 0x20000
    """, f"""
    s_add_u32 s{sTA}, s44, {TA}
    s_addc_u32 s{sTA+1}, s45, 0
    s_or_b32 s{sTA+1}, s{sTA+1}, 0x800000
    s_mov_b32 s{sTA+2}, {N}
    s_mov_b32 s{sTA+3}, 0x20000
    s_mul_i32 s{sRB}, s{sV}, {2*SLOT}
    s_add_u32 s{sRB}, s{sRB}, {L_RING}
    s_mov_b32 s{sMK}, 0xffffffe0
    s_mov_b32 s{sSEL}, 0x01000100
    v_lshrrev_b32 v98, 5, v1
    v_and_b32 v101, 1, v1
    v_xor_b32 v101, v101, v98
    v_lshlrev_b32 v{vEAc}, 4, v101
    """, f"""
    v_and_b32 v101, 7, v1
    v_lshrrev_b32 v102, 4, v1
    v_xor_b32 v103, v101, v102
    v_lshlrev_b32 v{vHP+1}, 4, v103
    v_lshlrev_b32 v{vHP+5}, 4, v103
    v_add_u32 v102, 4, v102
    v_xor_b32 v103, v101, v102
    v_lshlrev_b32 v{vHP+3}, 4, v103
    v_lshlrev_b32 v{vHP+7}, 4, v103
    """, f"""
    v_mov_b32 v{vX6}, 0
    v_mov_b32 v{vX6+1}, 0
    v_mov_b32 v{vX6+2}, 0
    v_mov_b32 v{vX6+3}, 0
    v_mfma_f32_32x32x16_bf16 v[{vD2}:{vD2+15}], v[{vX6}:{vX6+3}], v[{vX6}:{vX6+3}], 0
    v_mfma_f32_32x32x16_bf16 v[{vD2+16}:{vD2+31}], v[{vX6}:{vX6+3}], v[{vX6}:{vX6+3}], 0
    """]
    for k in range(max(PE,len(chunks))):
        if k<PE: posdma(k)
        if k<len(chunks): a(chunks[k])
    a(f"""
    s_cmp_eq_u32 s{sV}, 2
    s_cselect_b32 s54, {WDO}, s58
    s_cselect_b32 s55, 2048, s58
    v_lshlrev_b32 v97, 4, v1
    v_add_u32 v97, s54, v97
    s_add_u32 m0, s55, {L_WST}
    s_cmp_gt_u32 s{sV}, 2
    s_cbranch_scc1 L2_nowst
    v_cmp_gt_u32 vcc, 32, v1
    s_cmp_eq_u32 s{sV}, 2
    s_cselect_b64 exec, vcc, -1
    buffer_load_dwordx4 v97, s[{sWF}:{sWF+3}], 0 offen lds
    s_mov_b64 exec, -1
    """)
    a.label('L2_nowst')
    st(17)
    if TBK in ABL:
        a(f'''
        {'s_and_b32 s54, s2, 31' if XMK in ABL else 's_lshr_b32 s54, s2, 3'}
        s_mul_i32 s54, s54, 391
        s_lshl_b32 s55, s{sV}, 6
        v_add_u32 v100, s55, v1
        v_cmp_gt_u32 vcc, 391, v100
        v_add_u32 v100, s54, v100
        v_mov_b32 v101, 0
        v_mov_b32 v102, -1
        v_cndmask_b32 v100, v102, v100, vcc
        buffer_load_dword v52, v[100:101], s[{sHD}:{sHD+3}], 0 idxen offen
        ''')
    st(18)
    st(1)
    a(f's_waitcnt vmcnt({min(PE,9)+(1 if TBK in ABL else 0)})')
    if OFF2 not in ABL:
        for q in range(4):
            a(f'v_mov_b32_dpp v{4+q}, v{104+q} quad_perm:[0,0,2,2] row_mask:0xf bank_mask:0xf')
        a('v_mov_b32_dpp v8, v104 quad_perm:[1,1,3,3] row_mask:0xf bank_mask:0xf')
        a('v_and_b32 v8, 0xffff, v8')
    st(19)
    a('s_branch L2_counts')
    a.label('L2_batch')
    a(f"""
    s_barrier
    v_lshlrev_b32 v96, 4, v1
    s_lshl_b32 s58, s{sV}, 10
    v_add_u32 v96, s58, v96
    """)
    for r in range(PE): posdma(r)
    a.label('L2_counts')
    a(f"""
    v_alignbit_b32 v100, v5, v4, 16
    v_alignbit_b32 v101, v6, v5, 16
    v_alignbit_b32 v102, v7, v6, 16
    v_alignbit_b32 v103, v8, v7, 16
    v_and_b32 v105, 0xffff, v4
    v_sub_u32 v104, v8, v105
    s_sub_u32 s54, s{sW1}, s{sW0}
    v_subrev_u32 v106, s{sW0}, v3
    v_cmp_gt_u32 vcc, s54, v106
    s_mov_b32 s55, {CH*4}
    v_lshlrev_b32 v107, 2, v105
    v_lshl_add_u32 v107, v9, 4, v107
    v_cndmask_b32 v104, 0, v104, vcc
    v_lshlrev_b32 v109, 2, v9
    v_sub_u32 v109, v104, v109
    v_max_i32 v109, 0, v109
    v_mad_u32_u24 v107, v3, s55, v107
    """)
    for i in range(4):
        a(f'v_cmp_lt_u32 s[{90+2*i}:{91+2*i}], {8*i}, v109')
    for i in range(4):
        a(f's_mov_b64 exec, s[{90+2*i}:{91+2*i}]')
        a(f's_cbranch_execz L2_e{i}')
        a(f'buffer_load_dwordx4 v[{192+4*i}:{195+4*i}], v107, s[{sEN}:{sEN+3}], 0 offen offset:{32*i}')
        a.label(f'L2_e{i}')
    a('s_mov_b64 exec, -1')
    st(2)
    a(f"""
    v_pk_sub_u16 v100, v100, v4
    v_pk_sub_u16 v101, v101, v5
    v_pk_sub_u16 v102, v102, v6
    v_pk_sub_u16 v103, v103, v7
    v_cmp_eq_u32 s[56:57], 0, v9
    """)
    for q in range(4):
        a(f'v_cndmask_b32 v{100+q}, 0, v{100+q}, vcc')
    for q in range(5):
        a(f'v_cndmask_b32 v{112+q}, 0, v{100+q}, s[56:57]')
    for sh in (1,2,4,8):
        for q in range(5):
            a(f'v_add_u32_dpp v{112+q}, v{112+q}, v{112+q} row_shr:{sh} row_mask:0xf bank_mask:0xf')
    for q in range(5):
        a(f'v_add_u32_dpp v{112+q}, v{112+q}, v{112+q} row_bcast:15 row_mask:0xa bank_mask:0xf')
    for q in range(5):
        a(f'v_add_u32_dpp v{112+q}, v{112+q}, v{112+q} row_bcast:31 row_mask:0xc bank_mask:0xf')
    st(21)
    a(f"""
    s_lshl_b32 s54, s{sV}, 5
    s_add_u32 s54, s54, {L_WTOT}
    v_mov_b32 v117, s54
    s_mov_b32 s56, 0
    s_brev_b32 s57, 1
    s_mov_b64 exec, s[56:57]
    ds_write_b128 v117, v[112:115]
    ds_write_b32 v117, v116 offset:16
    s_mov_b64 exec, -1
    v_and_b32 v118, 7, v1
    v_lshlrev_b32 v118, 5, v118
    v_add_u32 v118, {L_WTOT}, v118
    s_waitcnt lgkmcnt(0)
    s_barrier
    ds_read_b128 v[120:123], v118
    ds_read_b32 v124, v118 offset:16
    """)
    st(3)
    a('s_waitcnt lgkmcnt(0)')
    for sh in (1,2,4):
        for q in range(5):
            a(f'v_add_u32_dpp v{120+q}, v{120+q}, v{120+q} row_shr:{sh} row_mask:0xf bank_mask:0xf')
    for q in range(5):
        a(f'v_readlane_b32 s{58+q}, v{120+q}, 7')
    a(f's_sub_u32 s54, s{sV}, 1')
    a(f's_max_i32 s54, s54, 0')
    for q in range(4):
        a(f'v_readlane_b32 s{64+q}, v{120+q}, s54')
    a(f's_cmp_eq_u32 s{sV}, 0')
    for q in range(4):
        a(f's_cselect_b32 s{64+q}, 0, s{64+q}')
    for q in range(4):
        a(f's_and_b32 s{68+2*q}, s{58+q}, 0xffff')
        a(f's_lshr_b32 s{69+2*q}, s{58+q}, 16')
    a('s_mov_b32 s84, 0')
    for g in range(8):
        a(f"""
        s_mov_b32 s{76+g}, s84
        s_add_u32 s54, s{68+g}, 31
        s_andn2_b32 s54, s54, 31
        s_add_u32 s84, s84, s54
        """)
    a(f"""
    s_max_u32 s54, s84, s62
    s_cmp_le_u32 s54, {CAP}
    s_cbranch_scc1 L2_fits
    s_add_u32 s{sW1}, s{sW0}, 1
    s_waitcnt vmcnt(0) lgkmcnt(0)
    s_branch L2_batch
    """)
    a.label('L2_fits')
    a(f"""
    s_cmp_eq_u32 s63, 1
    s_cbranch_scc1 L2_pidone
    """)
    if 'nopi' in ABL:
        a(f's_mov_b32 s{sG}, s{sV}')
    else:
        for g in range(8):
            a(f's_lshl_b32 s54, s{68+g}, 3')
            a(f's_add_u32 s{90+g}, s54, {7-g}')
            a(f'v_writelane_b32 v126, s{90+g}, {g}')
        a('v_mov_b32 v127, 0')
        for h in range(2):
            for k in range(4):
                pr=(56,58,54,64)[k] if False else None
            for k in range(4):
                a(f'v_cmp_gt_u32 s[{(54,56,58,60)[k]}:{(54,56,58,60)[k]+1}], s{90+4*h+k}, v126')
            for k in range(4):
                a(f'v_addc_co_u32 v127, vcc, 0, v127, s[{(54,56,58,60)[k]}:{(54,56,58,60)[k]+1}]')
        a(f"""
        s_sub_u32 s54, 11, s{sV}
        s_cmp_lt_u32 s{sV}, 4
        s_cselect_b32 s54, s{sV}, s54
        v_cmp_eq_u32 vcc, s54, v127
        s_nop 3
        s_and_b32 s54, vcc_lo, 0xff
        s_ff1_i32_b32 s{sG}, s54
        """)
    a(f"""
    s_mul_i32 s{sNODE0}, s2, {BN}
    s_add_u32 s{sNODE0}, s{sNODE0}, s{sG}
    """)
    a.label('L2_pidone')
    a(f's_mov_b32 s{sCNT}, s68')
    a(f's_mov_b32 s{sBASE}, s76')
    for g in range(1,8):
        a(f"""
        s_cmp_eq_u32 s{sG}, {g}
        s_cselect_b32 s{sCNT}, s{68+g}, s{sCNT}
        s_cselect_b32 s{sBASE}, s{76+g}, s{sBASE}
        """)
    a(f"""
    s_add_u32 s{sNT}, s{sCNT}, 31
    s_lshr_b32 s{sNT}, s{sNT}, 5
    """)
    for q in range(4):
        a(f's_pack_ll_b32_b16 s{85+q}, s{76+2*q}, s{77+2*q}')
        a(f's_add_u32 s{85+q}, s{85+q}, s{64+q}')
        a(f's_add_u32 s{85+q}, s{85+q}, {CH | (CH<<16)}')
    a(f"""
    v_lshl_or_b32 v105, v105, 16, v105
    v_mul_u32_u24 v106, 0x100010, v9
    """)
    for q in range(4):
        a(f"""
        v_sub_u32 v{112+q}, v{112+q}, v{100+q}
        v_add_u32 v{112+q}, s{85+q}, v{112+q}
        v_sub_u32 v{120+q}, v{4+q}, v105
        v_sub_u32 v{112+q}, v{112+q}, v{120+q}
        v_lshl_add_u32 v{112+q}, v{112+q}, 2, v106
        """)
    a(f"""
    v_lshlrev_b32 v108, 4, v0
    v_add_u32 v108, {L_GTAB}, v108
    ds_write_b128 v108, v[112:115]
    v_mov_b32 v104, v109
    s_mov_b32 s54, {CH*32}
    v_mul_lo_u32 v110, v3, s54
    v_mov_b32 v111, {4*CH+4*CAP}
    v_lshlrev_b32 v96, 4, v1
    s_lshl_b32 s58, s{sV}, 10
    v_add_u32 v96, s58, v96
    s_waitcnt vmcnt(0)
    """)
    st(4)
    if PE<10:
        a(f"""
        v_lshlrev_b32 v96, 4, v1
        s_lshl_b32 s58, s{sV}, 10
        v_add_u32 v96, s58, v96
        """)
        for r in range(PE,10):
            if r==9:
                a(f's_cmp_ge_u32 s{sV}, 2\ns_cbranch_scc1 L2_posdone2')
            a(f"""
            s_add_u32 m0, s58, {L_RING+8192*r}
            v_add_u32 v97, {8192*r}, v96
            buffer_load_dwordx4 v97, s[{sPOS}:{sPOS+3}], 0 offen lds
            """)
        a.label('L2_posdone2')
    a(f"""
    s_cmp_eq_u32 s63, 1
    s_cbranch_scc1 L2_noA
    s_lshl_b32 s54, s{sV}, 10
    s_add_u32 s55, s54, {L_RING+75776}
    s_add_u32 s54, s54, {L_AST-6*1024}
    s_cmp_lt_u32 s{sV}, 6
    s_cselect_b32 s62, s55, s54
    v_lshrrev_b32 v120, 3, v1
    v_lshlrev_b32 v120, 3, v120
    v_add_u32 v121, s{sG}, v120
    v_add_u32 v120, s{sNODE0}, v120
    v_cmp_gt_u32 vcc, {BN}, v121
    v_mov_b32 v122, -1
    v_and_b32 v123, 7, v1
    v_lshlrev_b32 v123, 4, v123
    v_cndmask_b32 v122, v122, v120, vcc
    s_mov_b32 m0, s62
    s_nop 0
    buffer_load_dwordx4 v[122:123], s[{sTA}:{sTA+3}], 0 idxen offen lds
    """)
    a.label('L2_noA')
    EPF=optl('epf',[0])[0]
    if EPF:
        a(f'''
        s_cmp_lg_u32 s{sV}, 0
        s_cbranch_scc1 L2_noepf
        s_movk_i32 s56, 0x7ff8
        s_mov_b32 s{sEA+2}, {E*32}
        v_mov_b32 v150, 0x7fffff00
        ''')
        for k in range(EPF):
            i,u=k//4,k%4
            a(f'''
            v_and_b32 v151, s56, v{192+4*i+u}
            v_cmp_lt_u32 vcc, {8*i+u}, v104
            v_lshl_add_u32 v151, v151, 2, v110
            s_nop 0
            v_cndmask_b32 v151, v150, v151, vcc
            buffer_load_dword v{52+(k&7)}, v151, s[{sEA}:{sEA+3}], 0 offen
            ''')
        a.label('L2_noepf')
    st(20)
    def quad(qreg, i, dyn=False):
        for u in range(4):
            a(f'v_lshrrev_b32 v{140+u}, 29, v{qreg+u}')
            a(f'v_lshl_add_u32 v{140+u}, v{140+u}, 1, v108')
            a(f'ds_read_u16 v{144+u}, v{140+u}')
        for u in range(4):
            if dyn: a(f'v_cmp_lt_u32 s[{90+2*u}:{91+2*u}], {u}, v104')
            else:   a(f'v_cmp_lt_u32 s[{90+2*u}:{91+2*u}], {8*i+u}, v104')
        a('s_waitcnt lgkmcnt(0)')
        for u in range(4):
            if dyn: a(f'v_add_u32 v{144+u}, v{144+u}, v149')
            a(f'v_cndmask_b32 v{144+u}, v111, v{144+u}, s[{90+2*u}:{91+2*u}]')
        ko = 0 if dyn else 8*i
        for u in range(4):
            a(f'ds_write_b32 v{144+u}, v{qreg+u} offset:{L_R0-4*CH+4*(ko+u)}')
            a(f'ds_write_b32 v{144+u}, v110 offset:{L_S-4*CH+4*(ko+u)}')
    for i in range(4):
        quad(192+4*i, i)
        a(f'v_cmp_lt_u32 vcc, {8*(i+1)}, v104')
        a('s_cbranch_vccz L2_scat_done')
    a(f'''
    v_subrev_u32 v104, 32, v104
    v_cmp_gt_i32 vcc, 0, v104
    v_mov_b32 v149, 128
    v_add_u32 v107, 128, v107
    v_cndmask_b32 v104, v104, 0, vcc
    ''')
    a.label('L2_scat_loop')
    a(f'buffer_load_dwordx4 v[192:195], v107, s[{sEN}:{sEN+3}], 0 offen')
    a('s_waitcnt vmcnt(0)')
    quad(192, 0, dyn=True)
    a(f'''
    v_subrev_u32 v104, 8, v104
    v_add_u32 v149, 32, v149
    v_add_u32 v107, 32, v107
    v_cmp_gt_i32 vcc, 0, v104
    s_nop 1
    v_cndmask_b32 v104, v104, 0, vcc
    v_cmp_lt_u32 vcc, 0, v104
    s_cbranch_vccnz L2_scat_loop
    ''')
    a.label('L2_scat_done')
    st(5)
    if EPF:
        a(f'''
        s_cmp_lg_u32 s{sV}, 0
        s_cbranch_scc1 L2_b2w0
        s_waitcnt vmcnt({EPF}) lgkmcnt(0)
        s_branch L2_b2w1
        ''')
        a.label('L2_b2w0')
        a('s_waitcnt vmcnt(0) lgkmcnt(0)')
        a.label('L2_b2w1')
        a('s_barrier')
    else:
        a('''
        s_waitcnt vmcnt(0) lgkmcnt(0)
        s_barrier
        ''')
    st(6)
    if 'pfe' in ABL:
        a(f"""
        s_cmp_eq_u32 s{sCNT}, 0
        s_cbranch_scc1 L2_nopfe
        v_add_u32 v112, s{sBASE}, v1
        v_lshlrev_b32 v112, 2, v112
        ds_read_b32 v113, v112 offset:{L_R0}
        ds_read_b32 v114, v112 offset:{L_S}
        s_movk_i32 s56, 0x7ff8
        s_mov_b32 s{sHD+2}, {N}
        s_mov_b32 s{sEA+2}, {E*32}
        v_mov_b32 v51, 0
        s_waitcnt lgkmcnt(0)
        v_and_b32 v48, s56, v113
        v_bfe_u32 v50, v113, 15, 14
        v_lshl_add_u32 v48, v48, 2, v114
        s_mov_b32 exec_hi, 0
        buffer_load_dword v48, v48, s[{sEA}:{sEA+3}], 0 offen
        buffer_load_dword v49, v[50:51], s[{sHD}:{sHD+3}], 0 idxen offen
        s_mov_b64 exec, -1
        """)
        a.label('L2_nopfe')
    if 'hst' in ABL:
        a(f"""
        s_lshl_b32 s54, s{sV}, 10
        v_lshlrev_b32 v97, 4, v1
        s_add_u32 s55, s54, {F_H1*1024}
        v_add_u32 v98, s55, v97
        s_add_u32 m0, s54, {L_GTAB}
        s_cmp_lg_u32 s{sV}, 0
        buffer_load_dwordx4 v98, s[{sWF}:{sWF+3}], 0 offen lds
        s_cbranch_scc1 L2_hst1
        v_add_u32 v98, {(F_H1+8)*1024}, v97
        s_mov_b32 m0, {L_HX}
        s_nop 0
        buffer_load_dwordx4 v98, s[{sWF}:{sWF+3}], 0 offen lds
        """)
        a.label('L2_hst1')
    a(f"""
    v_lshrrev_b32 v100, 2, v1
    v_lshlrev_b32 v100, 3, v100
    v_add_u32 v100, s{sNODE0}, v100
    v_mul_u32_u24 v100, 6, v100
    v_and_b32 v102, 3, v1
    v_lshl_add_u32 v100, v102, 1, v100
    v_add_u32 v100, {L_RING}, v100
    ds_read_u16 v101, v100
    s_cmp_eq_u32 s63, 1
    s_cbranch_scc1 L2_noC
    s_mov_b32 s63, 1
    v_lshlrev_b32 v96, 4, v1
    v_add_u32 v96, {L_WST}, v96
    ds_read_b128 v[{vW3}:{vW3+3}], v96
    ds_read_b128 v[{vW3+4}:{vW3+7}], v96 offset:1024
    v_and_b32 v120, 31, v1
    v_lshrrev_b32 v121, 5, v1
    v_lshlrev_b32 v122, 2, v120
    v_lshl_add_u32 v122, v121, 9, v122
    v_add_u32 v122, s62, v122
    """)
    for q in range(4):
        a(f'ds_read_b32 v{40+q}, v122 offset:{128*q}')
    a(f"""
    v_lshlrev_b32 v120, 3, v120
    v_add_u32 v120, {L_WST+2048}, v120
    ds_read_b64 v[44:45], v120
    v_cmp_gt_u32 vcc, 32, v1
    s_waitcnt lgkmcnt(0)
    v_cndmask_b32 v44, v44, 0, vcc
    v_cndmask_b32 v45, v45, 0, vcc
    """)
    for q in range(4):
        a(f'v_and_b32 v{vW6+q}, 0xffff, v{40+q}')
        a(f'v_lshrrev_b32 v{vW6+4+q}, 16, v{40+q}')
    a(f"""
    v_or_b32 v{vW6+3}, v{vW6+3}, v44
    v_or_b32 v{vW6+7}, v{vW6+7}, v45
    """)
    a.label('L2_noC')
    a(f"""
    s_lshl_b32 s54, s{sV}, 7
    s_add_u32 s54, s54, {L_PD}
    v_lshlrev_b32 v97, 2, v1
    v_add_u32 v97, s54, v97
    s_waitcnt lgkmcnt(0)
    v_lshlrev_b32 v101, 16, v101
    s_mov_b32 exec_hi, 0
    ds_write_b32 v97, v101
    s_mov_b64 exec, -1
    """)
    a(f'''
    s_lshl_b32 s54, s{sV}, 7
    s_add_u32 s54, s54, {L_PD}
    v_mov_b32 v98, s54
    v_mov_b32 v99, {L_RING}
    v_add_u32 v96, s{sBASE}, v1
    v_mov_b32 v97, v1
    s_mov_b32 s{sT}, 0
    s_mov_b32 s55, 0xffff0000
    s_movk_i32 s56, 0x7fff
    s_mov_b32 s{sHD+2}, {N}
    s_mov_b32 s{sEA+2}, {E*32}
    ''')
    a(f'''
    s_lshl_b32 s54, s{sNT}, 5
    s_sub_u32 s54, s54, 32
    v_add_u32 v100, s54, v1
    v_cmp_le_u32 s[58:59], s{sCNT}, v100
    v_cmp_gt_u32 vcc, 32, v1
    s_and_b64 vcc, vcc, s[58:59]
    s_cmp_eq_u32 s{sNT}, 0
    s_cbranch_scc1 L2_nodummy
    s_and_saveexec_b64 s[58:59], vcc
    s_cbranch_execz L2_dummy_restore
    v_add_u32 v100, s{sBASE}, v100
    v_lshlrev_b32 v101, 2, v100
    v_mov_b32 v102, 28
    ds_write_b32 v101, v102 offset:{L_R0}
    v_lshlrev_b32 v101, 1, v100
    v_mov_b32 v102, 0
    v_mov_b32 v103, 0
    ds_write_b16 v101, v102 offset:{L_RS}
    v_lshlrev_b32 v101, 3, v100
    ds_write_b64 v101, v[102:103] offset:{L_G}
    ''')
    a.label('L2_dummy_restore')
    a('s_mov_b64 exec, s[58:59]')
    a.label('L2_nodummy')
    def R(it,k): return 112+20*it+k
    def geo_pass(NI, first):
        for it in range(NI):
            a(f'ds_read_b32 v{R(it,1)}, v96 offset:{L_R0+256*it}')
            a(f'ds_read_b32 v{R(it,2)}, v96 offset:{L_S+256*it}')
        a('v_lshrrev_b32 v104, 1, v96')
        a('v_lshlrev_b32 v105, 1, v96')
        for it in range(NI):
            if it==0: a(f'v_cmp_lt_i32 s[90:91], 0, v97')
            elif it==1: a(f'v_cmp_lt_i32 s[92:93], 64, v97')
            else: a(f'v_cmp_lt_i32 s[{90+2*it}:{91+2*it}], s{57 if it==2 else 54}, v97')
        for it in range(NI):
            e=R(it,1); wb=R(it,2)
            a(f's_waitcnt lgkmcnt({2*(NI-1-it)+2*it})')
            a(f"""
            v_bfe_u32 v{R(it,3)}, v{e}, 15, 14
            v_and_b32 v{R(it,4)}, 7, v{e}
            v_mad_u32_u24 v{R(it,5)}, v{R(it,3)}, 6, v99
            v_lshl_add_u32 v{R(it,7)}, v{R(it,4)}, 4, v98
            v_and_b32 v{R(it,5)}, -4, v{R(it,5)}
            ds_read_b96 v[{R(it,8)}:{R(it,10)}], v{R(it,7)}
            ds_read2_b32 v[{R(it,12)}:{R(it,13)}], v{R(it,5)} offset1:1
            v_and_b32 v{R(it,5)}, s56, v{e}
            v_lshl_add_u32 v{wb}, v{R(it,5)}, 2, v{wb}
            v_lshlrev_b32 v{R(it,6)}, 4, v{R(it,3)}
            """)
        if first and 'nopf' not in ABL and 'pfe' not in ABL:
            a(f"""
            v_and_b32 v48, s{sMK}, v{R(0,2)}
            v_mov_b32 v51, 0
            v_mov_b32 v50, v{R(0,3)}
            {'s_mov_b32 exec_lo, 0' if PFT1 in ABL else 's_mov_b32 exec_hi, 0'}
            buffer_load_dword v48, v48, s[{sEA}:{sEA+3}], 0 offen
            s_mov_b32 exec_lo, -1
            """)
            if 'tbs' in ABL:
                a(f"""
                s_mov_b64 exec, -1
                s_and_b32 s58, s2, 31
                s_mul_i32 s58, s58, 391
                s_mul_i32 s59, s{sV}, 49
                s_add_u32 s58, s58, s59
                v_add_u32 v50, s58, v1
                s_mov_b32 exec_hi, 0x1ffff
                buffer_load_dword v49, v[50:51], s[{sHD}:{sHD+3}], 0 idxen offen
                s_mov_b64 exec, -1
                """)
            else:
                a(f"""
                s_mov_b32 exec_hi, 0
                buffer_load_dword v49, v[50:51], s[{sHD}:{sHD+3}], 0 idxen offen
                s_mov_b64 exec, -1
                """)
        for it in range(NI):
            pd=R(it,8); ps=R(it,12); sh=R(it,6); t0=R(it,4); t1=R(it,5); t2=R(it,7); o=R(it,14); t3=R(it,17)
            a(f's_waitcnt lgkmcnt({2*(NI-1-it)+3*it})')
            a(f"""
            v_alignbit_b32 v{t0}, v{ps+1}, v{ps}, v{sh}
            v_lshrrev_b32 v{t2}, v{sh}, v{ps+1}
            v_lshlrev_b32 v{t1}, 16, v{t0}
            v_and_b32 v{t0}, s55, v{t0}
            v_lshlrev_b32 v{t2}, 16, v{t2}
            v_sub_f32 v{t1}, v{pd}, v{t1}
            v_sub_f32 v{t0}, v{pd+1}, v{t0}
            v_sub_f32 v{t2}, v{pd+2}, v{t2}
            v_mul_f32 v{t3}, v{t1}, v{t1}
            v_cvt_pk_bf16_f32 v{o+1}, v{t0}, v{t2}
            v_fmac_f32 v{t3}, v{t0}, v{t0}
            v_fmac_f32 v{t3}, v{t2}, v{t2}
            s_mov_b64 exec, s[{90+2*it}:{91+2*it}]
            ds_write_b32 v96, v{R(it,2)} offset:{L_R0+256*it}
            v_cvt_pk_bf16_f32 v{o}, v{t3}, v{t1}
            ds_write_b16 v104, v{R(it,3)} offset:{L_RS+128*it}
            ds_write_b64 v105, v[{o}:{o+1}] offset:{L_G+512*it}
            s_mov_b64 exec, -1
            """)
        a(f"""
        v_add_u32 v96, {256*NI}, v96
        v_subrev_u32 v97, {64*NI}, v97
        s_add_u32 s{sT}, s{sT}, {64*NI}
        """)
    a(f"""
    v_lshlrev_b32 v96, 2, v96
    v_sub_u32 v97, s{sCNT}, v97
    s_movk_i32 s57, 128
    s_movk_i32 s54, 192
    s_cmp_eq_u32 s{sCNT}, 0
    s_cbranch_scc1 L2_geo_done
    """)
    geo_pass(4, True)
    a.label('L2_geo_loop')
    a(f"""
    s_cmp_ge_u32 s{sT}, s{sCNT}
    s_cbranch_scc1 L2_geo_done
    """)
    geo_pass(3, False)
    a('s_branch L2_geo_loop')
    a.label('L2_geo_done')
    a(f"""
    v_lshrrev_b32 v97, 3, v1
    v_add_u32 v97, s{sBASE}, v97
    v_lshlrev_b32 v97, 1, v97
    v_add_u32 v{vRSa}, {L_RS}, v97
    v_lshrrev_b32 v97, 1, v1
    v_add_u32 v97, s{sBASE}, v97
    v_lshlrev_b32 v97, 2, v97
    v_add_u32 v{vR0a}, {L_R0}, v97
    v_and_b32 v97, 31, v1
    v_add_u32 v97, s{sBASE}, v97
    v_lshlrev_b32 v98, 2, v97
    v_add_u32 v{vR0e}, {L_R0}, v98
    v_lshrrev_b32 v98, 5, v1
    v_lshlrev_b32 v98, 2, v98
    v_lshl_add_u32 v98, v97, 3, v98
    v_add_u32 v{vGe}, {L_G}, v98
    s_mov_b32 s{sT}, 0
    s_sub_u32 s86, s{sNT}, 3
    s_sub_u32 s87, s{sNT}, 1
    s_sub_u32 s88, s{sNT}, 2
    """)
    for i in range(4): a(f'ds_read_u16 v{vHP+2*i}, v{vRSa} offset:{16*i}')
    a(f'ds_read_b32 v{vEAi}, v{vR0a}')
    a(f'ds_read_b32 v{vR0}, v{vR0e}')
    a(f'ds_read_b32 v{vG}, v{vGe}')
    if 'fprio' in ABL:
        PER=optl('per',[12])[0]
        a(f"""
        v_cvt_f32_u32 v96, s{sNT}
        v_rcp_f32 v96, v96
        s_nop 0
        v_mul_f32 v96, {f32bits(float(PER*65536*(2 if TRIMK in ABL else 1)))}, v96
        v_cvt_u32_f32 v96, v96
        s_nop 0
        v_readfirstlane_b32 s85, v96
        s_mov_b32 s84, 0
        s_sub_u32 s84, s84, s85
        """)
    a(f"""
    s_lshl_b32 s54, s{sV}, 11
    s_add_u32 s54, s54, {L_S}
    v_lshlrev_b32 v96, 4, v1
    v_add_u32 v96, s54, v96
    v_mov_b32 v100, 0
    v_mov_b32 v101, 0
    v_mov_b32 v102, 0
    v_mov_b32 v103, 0
    v_and_or_b32 v{vEAo}, v{vEAi}, s{sMK}, v{vEAc}
    """)
    if 'hst' in ABL:
        a(f"""
        s_cmp_eq_u32 s{sCNT}, 0
        s_cbranch_scc1 L2_hw0
        s_waitcnt vmcnt({0 if 'nopf' in ABL else 2})
        s_branch L2_hw1
        """)
        a.label('L2_hw0')
        a('s_waitcnt vmcnt(0)')
        a.label('L2_hw1')
    a(f"""
    s_waitcnt lgkmcnt(0)
    s_barrier
    """)
    st(7)
    a(f"""
    ds_write_b128 v96, v[100:103]
    ds_write_b128 v96, v[100:103] offset:1024
    """)
    if 'lone' in ABL:
        a(f's_cmp_ge_u32 s{sV}, 4\ns_cselect_b32 s{sNT}, 0, s{sNT}')
    a(f"""
    s_cmp_eq_u32 s{sNT}, 0
    s_cbranch_scc1 L2_notiles
    """)
    def idx_reads(toff):
        return [f'ds_read_u16 v{vHP+2*i}, v{vRSa} offset:{64*toff+16*i}' for i in range(4)] + \
               [f'ds_read_b32 v{vEAi}, v{vR0a} offset:{128*toff}']
    def rec_reads(toff):
        return [f'ds_read_b32 v{vR0}, v{vR0e} offset:{128*toff}', f'ds_read_b32 v{vG}, v{vGe} offset:{256*toff}']
    def srd_select(delta):
        return [f's_add_u32 s54, s{sT}, {delta}\ns_cmp_lt_u32 s54, s{sNT}\ns_cselect_b32 s{sHD+2}, {NH_}, 0\ns_cselect_b32 s{sEA+2}, {NE_}, 0']
    def dma2(slot):
        r=[(f'v_and_or_b32 v{vEAo}, v{vEAi}, s{sMK}, v{vEAc}\ns_add_u32 m0, s{sRB}, {slot*SLOT+4096}', f'buffer_load_dwordx4 v{vEAo}, s[{sEA}:{sEA+3}], 0 offen{EAF} lds')]
        for i in range(4):
            r.append((f's_add_u32 m0, s{sRB}, {slot*SLOT+1024*i}', f'buffer_load_dwordx4 v[{vHP+2*i}:{vHP+2*i+1}], s[{sHD}:{sHD+3}], 0 idxen offen{HF} lds'))
        if 'ealast' in ABL: r=r[1:]+r[:1]
        return r
    def dma(slot):
        return [x+'\n'+y for x,y in dma2(slot)]
    def x_reads(slot):
        return [f'ds_read_b128 v[{vX+4*s}:{vX+4*s+3}], v{vHA+s} offset:{slot*SLOT}' for s in range(4)] + \
               [f'ds_read_b128 v[{vXE}:{vXE+3}], v{vEAr} offset:{slot*SLOT}']
    def s_addr(): return [f'v_bitop3_b32 v{vA1}, v{vR0}, 28, v{vC1} bitop3:0x6a', f'v_bfi_b32 v{vS1}, v{vMK2}, v{vG}, v{vOne}', f'v_perm_b32 v{vS2}, v{vG}, v{vG}, s{sSEL}']
    def s_writes(): return [f'ds_write_b32 v{vA1}, v{vS1}', f'ds_write_b32 v{vCD}, v{vS2}']
    def x6_read(): return [f'ds_read_b128 v[{vX6}:{vX6+3}], v{vX6r}']
    def sf_reads():
        r=[]
        for s2 in range(2):
            r.append(f'ds_read_b64_tr_b16 v[{vSF+4*s2}:{vSF+4*s2+1}], v{vSTa} offset:{1024*s2}')
            r.append(f'ds_read_b64_tr_b16 v[{vSF+4*s2+2}:{vSF+4*s2+3}], v{vSTb} offset:{1024*s2}')
        return r
    def s_restore(): return [f'ds_write_b32 v{vA1}, v{vZero}']
    def mfma1(dst):
        r=[]
        for blk in range(2):
            D=f'v[{dst+16*blk}:{dst+16*blk+15}]'
            for sp in range(2):
                C = D if sp>0 else '0'
                s_=2*blk+sp
                r.append(f'v_mfma_f32_32x32x16_bf16 {D}, v[{vX+4*s_}:{vX+4*s_+3}], v[{vI+4*sp}:{vI+4*sp+3}], {C}')
            r.append(f'v_mfma_f32_32x32x16_bf16 {D}, v[{vXE}:{vXE+3}], v[{vW3+4*blk}:{vW3+4*blk+3}], {D}')
            r.append(f'v_mfma_f32_32x32x16_bf16 {D}, v[{vX6}:{vX6+3}], v[{vW6+4*blk}:{vW6+4*blk+3}], {D}')
        return r
    ONE=f'v[{vONE}:{vONE+3}]'
    def plus1(blk):
        Eb=f'v[{vE+16*blk}:{vE+16*blk+15}]'
        return f'v_mfma_f32_32x32x16_bf16 {Eb}, {ONE}, {ONE}, {Eb}'
    def mfma2(cur,blk,s2):
        D=f'v[{vD2+16*blk}:{vD2+16*blk+15}]'; m=cur+8*blk+4*s2
        return f'v_mfma_f32_32x32x16_bf16 {D}, v[{m}:{m+3}], v[{vSF+4*s2}:{vSF+4*s2+3}], {D}'
    def keep(x):
        if 'nomfma' in ABL and x.startswith('v_mfma'): return False
        if 'nolds' in ABL and x.startswith('ds_'): return False
        if 'nodma' in ABL and 'buffer_load' in x: return False
        if 'notrans' in ABL and x.startswith(('v_exp','v_rcp')): return False
        if 'novalu' in ABL and x.startswith(('v_exp','v_rcp','v_mul','v_cvt','v_pk_mul')): return False
        return True
    def emit(backbone, inserts):
        backbone=[x if keep(x) else 's_nop 0' for x in backbone]
        inserts={k:[x for x in v if keep(x)] for k,v in inserts.items()}
        for k_ in sorted(k for k in inserts if k<0):
            for s_ in inserts[k_]: a(s_)
        for i,ins in enumerate(backbone):
            a(ins)
            for s_ in inserts.get(i,[]): a(s_)
    nlab=[0]
    PK='pk' in ABL
    DMAPOS=optl('dma',[37,48,60,70,82] if PK else [41,52,63,76,92])
    M1POS=optl('m1',[37,40,43,46,49,52,55,58] if PK else [42,46,50,54,58,62,68,74])
    SFPOS=optl('sf',[0,2,4,6]); RSPOS=optl('rs',[8])[0]; SAPOS=optl('sa',[9,10,11]); SWPOS=optl('sw',[12,13]); X6POS=optl('x6',[14])[0]
    VMPOS=optl('vm',[16])[0]; XPOS=optl('x',[16,18,20,22,24]); RECPOS=optl('rec',[26,27]); IDXPOS=optl('idx',[28,29,30,31,32])
    LGPOS=optl('lg',[36] if PK else [40])[0]; M2POS=optl('m2',[85,89,93,95] if PK else [89,95,111,111]); P1POS=optl('p1',[17,33])
    def body(p, steady, extra_first=None):
        cur=vD1[p]; nxt=vD1[1-p]
        bb=[]
        for blk in range(2):
            bb += [f'v_exp_f32 v{vE+16*blk+i}, v{cur+16*blk+i}' for i in range(16)]
        for blk in range(2):
            bb += [f'v_rcp_f32 v{vE+16*blk+i}, v{vE+16*blk+i}' for i in range(16)]
        if 'pk' in ABL:
            bb += [f'v_pk_mul_f32 v[{vE+2*i}:{vE+2*i+1}], v[{vE+2*i}:{vE+2*i+1}], v[{cur+2*i}:{cur+2*i+1}]' for i in range(16)]
            bb += [f'v_cvt_pk_bf16_f32 v{cur+q}, v{vE+2*q}, v{vE+2*q+1}' for q in range(16)]
        else:
            bb += [f'v_mul_f32 v{vE+i}, v{vE+i}, v{cur+i}' for i in range(16)]
            bb += [f'v_cvt_pk_bf16_f32 v{cur+q}, v{vE+2*q}, v{vE+2*q+1}' for q in range(8)]
            bb += [f'v_mul_f32 v{vE+16+i}, v{vE+16+i}, v{cur+16+i}' for i in range(16)]
            bb += [f'v_cvt_pk_bf16_f32 v{cur+8+q}, v{vE+16+2*q}, v{vE+16+2*q+1}' for q in range(8)]
        ins={}
        def put(pos,x):
            ins.setdefault(pos,[]).append(x)
        if not ('trim' in ABL and steady): put(-100,'s_waitcnt lgkmcnt(0)')
        if 'prio' in ABL:
            put(-99,f'''s_and_b32 s54, s{sT}, 2
            s_cmp_eq_u32 s54, 0
            s_cbranch_scc1 Lp{nlab[0]}a
            s_setprio {1-p}
            s_branch Lp{nlab[0]}b
            Lp{nlab[0]}a:
            s_setprio {3-p}
            Lp{nlab[0]}b:''')
            nlab[0]+=1
        if 'fprio' in ABL and not ('trim' in ABL and p==1):
            n=nlab[0]
            put(-99,f'''s_add_u32 s84, s84, s85
            s_bitcmp1_b32 s84, 17
            s_cbranch_scc1 Lp{n}h
            s_bitcmp1_b32 s84, 16
            s_cbranch_scc1 Lp{n}a
            s_setprio 3
            s_branch Lp{n}z
            Lp{n}a:
            s_setprio 2
            s_branch Lp{n}z
            Lp{n}h:
            s_bitcmp1_b32 s84, 16
            s_cbranch_scc1 Lp{n}b
            s_setprio 1
            s_branch Lp{n}z
            Lp{n}b:
            s_setprio 0
            Lp{n}z:''')
            nlab[0]+=1
        if steady and p==0:
            n=nlab[0]; nlab[0]+=1
            if 'nozf' in ABL:
                put(0,f's_cmp_lg_u32 s{sT}, 0\ns_cbranch_scc1 Ld{n}\ns_cmp_lt_u32 s{sNT}, 3\ns_cbranch_scc1 Ld{n}\n'+'\n'.join(dma(0))+f'\nLd{n}:')
            else:
                put(0,f's_cmp_lg_u32 s{sT}, 0\ns_cbranch_scc1 Ld{n}\n'+'\n'.join(dma(0))+f'\nLd{n}:')
        for x,q in zip(sf_reads(),SFPOS): put(q,x)
        put(RSPOS,s_restore()[0])
        if extra_first:
            for x in extra_first: put(RSPOS+4,x)
        put(P1POS[0],plus1(0))
        put(P1POS[1],plus1(1))
        if steady:
            for x,q in zip(s_addr(),SAPOS): put(q,x)
            for x,q in zip(s_writes(),SWPOS): put(q,x)
            put(X6POS,x6_read()[0])
            if 'nozf' in ABL:
                n=nlab[0]; nlab[0]+=1
                if 'vmstat' in ABL:
                    put(VMPOS,'s_waitcnt lgkmcnt(0)\ns_memtime s[98:99]\ns_waitcnt lgkmcnt(0)\ns_mov_b32 s62, s98')
                put(VMPOS,f's_cmp_lt_i32 s{sT}, s88\ns_waitcnt vmcnt(5)\ns_cbranch_scc1 Lw{n}\ns_waitcnt vmcnt(0)\nLw{n}:')
                if 'vmstat' in ABL:
                    put(VMPOS,f's_memtime s[98:99]\ns_waitcnt lgkmcnt(0)\ns_sub_u32 s98, s98, s62\nv_readlane_b32 s99, v{vTM}, 24\ns_add_u32 s98, s98, s99\nv_writelane_b32 v{vTM}, s98, 24')
            else: put(VMPOS,'s_waitcnt vmcnt(5)')
            for x,q in zip(x_reads(1-p),XPOS): put(q,x)
            for x,q in zip(rec_reads(p+2),RECPOS): put(q,x)
            for x,q in zip(idx_reads(p+3),IDXPOS): put(q,x)
            if 'nozf' in ABL: pass
            elif 'trim' in ABL:
                n=nlab[0]; nlab[0]+=1
                put(LGPOS-2,f's_cmp_lt_i32 s{sT}, s86\ns_cbranch_scc1 Lz{n}\ns_mov_b32 s{sHD+2}, 0\ns_mov_b32 s{sEA+2}, 0\nLz{n}:')
            else: put(LGPOS-2,srd_select(3)[0])
            put(LGPOS,'s_waitcnt lgkmcnt(0)')
            if 'nozf' in ABL:
                n=nlab[0]; nlab[0]+=1
                put(DMAPOS[0],f's_cmp_lt_i32 s{sT}, s86\ns_cbranch_scc0 Lnd{n}\n'+'\n'.join(dma(1-p))+f'\nLnd{n}:')
            else:
              for (x,y),q in zip(dma2(1-p),DMAPOS):
                if q>0 and q-1>LGPOS-1 and 'trim' in ABL: put(q-1,x); put(q,y)
                else: put(q,x+'\n'+y)
            for x,q in zip(mfma1(nxt),M1POS): put(q,x)
        for (b_,s_),q in zip(((0,0),(0,1),(1,0),(1,1)),M2POS): put(q,mfma2(cur,b_,s_))
        emit(bb,ins)
    def late_consts(a):
        a(f'''
        v_and_b32 v97, 31, v1
        v_lshrrev_b32 v98, 5, v1
        v_bfe_u32 v99, v97, 1, 3
        v_lshlrev_b32 v100, 7, v97
        v_add_u32 v100, s{sRB}, v100
        ''')
        for s in range(4):
            a(f'''
            v_add_u32 v101, {2*s}, v98
            v_xor_b32 v101, v101, v99
            v_lshl_add_u32 v{vHA+s}, v101, 4, v100
            ''')
        a(f'''
        v_lshrrev_b32 v101, 4, v97
        v_xor_b32 v101, v101, v98
        v_lshlrev_b32 v101, 4, v101
        v_lshl_add_u32 v101, v97, 5, v101
        v_add_u32 v101, s{sRB}, v101
        v_add_u32 v{vEAr}, 4096, v101
        s_lshl_b32 s57, s{sV}, 11
        s_add_u32 s57, s57, {L_S}
        v_lshlrev_b32 v101, 6, v97
        v_add_u32 v101, s57, v101
        v_bfe_u32 v102, v97, 2, 2
        v_xor_b32 v103, v98, v102
        v_lshl_add_u32 v{vX6r}, v103, 4, v101
        v_lshlrev_b32 v103, 1, v98
        v_xor_b32 v104, v103, v102
        v_lshl_add_u32 v{vC1}, v104, 4, v101
        v_add_u32 v103, 1, v103
        v_xor_b32 v104, v103, v102
        v_lshl_add_u32 v104, v104, 4, v101
        v_add_u32 v{vCD}, 12, v104
        v_cmp_gt_u32 vcc, 32, v1
        v_mov_b32 v103, 0xffff0000
        v_mov_b32 v104, -1
        v_cndmask_b32 v{vMK2}, v104, v103, vcc
        v_mov_b32 v{vOne}, 0x3f80
        v_mov_b32 v{vONE+1}, 0
        v_mov_b32 v{vONE+2}, 0
        v_mov_b32 v{vONE+3}, 0
        v_cndmask_b32 v{vONE}, 0, v{vOne}, vcc
        v_lshlrev_b32 v101, 3, v98
        v_sub_u32 v101, v97, v101
        v_and_b32 v102, 1, v101
        v_lshlrev_b32 v102, 4, v102
        v_lshlrev_b32 v102, v102, v{vOne}
        v_ashrrev_i32 v101, 1, v101
        ''')
        for k in range(8):
            q=8*(k>>2)+(k&3)
            a(f'v_cmp_eq_u32 s[{90+2*(k&3)}:{91+2*(k&3)}], {q}, v101')
            if (k&3)==3:
                for kk in range(k-3,k+1):
                    a(f'v_cndmask_b32 v{vI+kk}, 0, v102, s[{90+2*(kk&3)}:{91+2*(kk&3)}]')
        a(f'''
        v_and_b32 v101, 15, v1
        v_lshrrev_b32 v101, 2, v101
        v_lshl_add_u32 v101, v98, 2, v101
        v_lshlrev_b32 v101, 6, v101
        v_and_b32 v102, 1, v1
        v_lshl_add_u32 v101, v102, 3, v101
        v_add_u32 v101, s57, v101
        v_bfe_u32 v102, v1, 4, 1
        v_bfe_u32 v103, v1, 1, 1
        v_lshl_add_u32 v102, v102, 1, v103
        v_xor_b32 v103, v102, v98
        v_lshl_add_u32 v{vSTa}, v103, 4, v101
        v_add_u32 v103, 2, v98
        v_xor_b32 v103, v102, v103
        v_lshl_add_u32 v103, v103, 4, v101
        v_add_u32 v{vSTb}, 512, v103
        ''')

    lc=Asm(); late_consts(lc); lcl=list(lc.lines); per=(len(lcl)+9)//10
    def dma_lc(slot,k0):
        for k,x in enumerate(dma(slot)):
            a(x)
            if 'ilc' in ABL:
                for y in lcl[(k0+k)*per:(k0+k+1)*per]: a(y)
    a(f's_mov_b32 s{sHD+2}, {N}')
    a(f's_mov_b32 s{sEA+2}, {E*32}')
    if 'rampb' in ABL:
        dma_lc(0,0)
        st(13+18)
        for x in idx_reads(1): a(x)
        for y in lcl: a(y)
        for x in s_addr(): a(x)
        for x in s_writes(): a(x)
        for x in x6_read(): a(x)
        st(15)
        a('s_waitcnt vmcnt(0)')
        st(30)
        for x in x_reads(0): a(x)
        for x in rec_reads(1): a(x)
        a('s_waitcnt lgkmcnt(0)')
        for x in mfma1(vD1[0]): a(x)
        a(f's_cmp_lt_u32 s{sNT}, 2\ns_cbranch_scc1 L2_nod1')
        for x in dma(1): a(x)
        a.label('L2_nod1')
        st(14)
        for x in idx_reads(2): a(x)
        a('s_waitcnt lgkmcnt(0)')
    else:
        dma_lc(0,0)
        st(13+18)
        for x in idx_reads(1): a(x)
        if 'nozf' in ABL:
            a(f's_cmp_lt_u32 s{sNT}, 2\ns_cbranch_scc1 L2_nod1')
        else: a(srd_select(1)[0])
        a('s_waitcnt lgkmcnt(0)')
        dma_lc(1,5)
        if 'nozf' in ABL: a.label('L2_nod1')
        st(14)
        for x in idx_reads(2): a(x)
        if 'nozf' not in ABL: a(srd_select(2)[0])
        if 'ilc' not in ABL:
            for y in lcl: a(y)
        for x in s_addr(): a(x)
        for x in s_writes(): a(x)
        for x in x6_read(): a(x)
        st(15)
        if 'nozf' in ABL:
            a(f's_cmp_gt_u32 s{sNT}, 1\ns_waitcnt vmcnt(5)\ns_cbranch_scc1 L2_w1\ns_waitcnt vmcnt(0)')
            a.label('L2_w1')
        else: a('s_waitcnt vmcnt(5)')
        st(30)
        for x in x_reads(0): a(x)
        for x in rec_reads(1): a(x)
        a('s_waitcnt lgkmcnt(0)')
        for x in mfma1(vD1[0]): a(x)
    st(8)
    stampc(a,12,vTM,98)
    if DEBUG_TM: a(f'v_writelane_b32 v{vTM}, s{sNT}, 22\nv_writelane_b32 v{vTM}, s{sG}, 23\ns_getreg_b32 s98, hwreg(HW_REG_HW_ID)\nv_writelane_b32 v{vTM}, s98, {21 if VMS in ABL else 24}')
    JM=[0,1,4,5]
    RESV=[[232,233,234,236],[237,238,252,253]]
    WXV=[192,196,200,204,208,212,228,248]
    def epi_prefetch(p):
        nxt=vD1[1-p]
        r=[]
        r.append('v_lshlrev_b32 v10, 4, v1')
        for ff in range(16):
            dst = 16+4*ff if ff<8 else nxt+4*(ff-8)
            if 'hst' in ABL and ff<NHS:
                r.append(f'v_add_u32 v9, {hstage_addr(ff)}, v10\nds_read_b128 v[{dst}:{dst+3}], v9')
            else:
                r.append(f'v_add_u32 v9, {(F_H1+ff)*1024}, v10\nbuffer_load_dwordx4 v[{dst}:{dst+3}], v9, s[{sWF}:{sWF+3}], 0 offen')
        r.append(f"""
        v_lshrrev_b32 v9, 3, v1
        v_lshlrev_b32 v9, 3, v9
        v_add_u32 v3, s{sG}, v9
        v_add_u32 v9, s{sNODE0}, v9
        v_cmp_gt_u32 vcc, {BN}, v3
        v_mov_b32 v4, -1
        v_and_b32 v241, 7, v1
        v_lshlrev_b32 v241, 4, v241
        v_cndmask_b32 v240, v4, v9, vcc
        """)
        r.append(f"""
        v_bfe_u32 v9, v1, 1, 3
        v_lshlrev_b32 v9, 3, v9
        v_add_u32 v3, s{sG}, v9
        v_add_u32 v9, s{sNODE0}, v9
        v_bfe_u32 v5, v1, 4, 1
        v_and_b32 v8, 1, v1
        v_lshl_add_u32 v5, v5, 1, v8
        v_cmp_gt_u32 vcc, {BN}, v3
        v_subrev_u32 v5, 1, v5
        v_cmp_gt_u32 s[56:57], 3, v5
        v_mul_u32_u24 v9, 6, v9
        s_and_b64 vcc, vcc, s[56:57]
        v_cmp_gt_u32 s[56:57], 32, v1
        v_lshl_add_u32 v9, v5, 1, v9
        v_mov_b32 v4, 0x7fffff00
        s_and_b64 vcc, vcc, s[56:57]
        v_cndmask_b32 v10, v4, v9, vcc
        buffer_load_ushort v11, v10, s[{sPOS}:{sPOS+3}], 0 offen
        """)
        return r
    def epi_rows():
        return f"""s_waitcnt lgkmcnt(0)
        s_lshl_b32 s62, s{sV}, 11
        s_add_u32 s62, s62, {L_S}
        s_mov_b32 m0, s62
        s_nop 0
        buffer_load_dwordx4 v[240:241], s[{sH}:{sH+3}], 0 idxen offen lds"""
    def epilogue(p):
        nxt=vD1[1-p]; cur=vD1[p]
        pk=vE; T=vE+16; acc=vE+24
        a(f"""
        v_and_b32 v3, 31, v1
        v_lshrrev_b32 v4, 5, v1
        v_bfe_u32 v5, v1, 1, 3
        v_lshlrev_b32 v5, 7, v5
        v_lshl_add_u32 v5, v4, 4, v5
        v_add_u32 v5, s62, v5
        v_lshlrev_b32 v6, 7, v4
        v_add_u32 v6, {L_WST+2048+256}, v6
        v_lshlrev_b32 v7, 1, v3
        v_lshl_add_u32 v7, v4, 8, v7
        v_add_u32 v7, s62, v7
        s_mov_b32 s54, {f32bits(-math.log(2.0))}
        s_mov_b32 s55, s54
        s_waitcnt vmcnt(0)
        """)
        for s_ in range(4):
            a(f'ds_read_b128 v[{48+4*s_}:{51+4*s_}], v5 offset:{32*s_}')
        for f in range(8):
            a(f'ds_read_b128 v[{WXV[f]}:{WXV[f]+3}], v6 offset:{16*f}')
        for i in range(16):
            a(f'v_pk_mul_f32 v[{vD2+2*i}:{vD2+2*i+1}], v[{vD2+2*i}:{vD2+2*i+1}], s[54:55]')
        a('s_waitcnt lgkmcnt(8)')
        for b2 in range(2):
            D=f'v[{cur+16*b2}:{cur+16*b2+15}]'
            for s_ in range(4):
                C = D if s_>0 else '0'
                a(f'v_mfma_f32_32x32x16_bf16 {D}, v[{48+4*s_}:{51+4*s_}], v[{16+4*(2*s_+b2)}:{19+4*(2*s_+b2)}], {C}')
            if b2==0:
                for blk in range(2):
                    for q in range(8):
                        a(f'v_cvt_pk_bf16_f32 v{pk+8*blk+q}, v{vD2+16*blk+2*q}, v{vD2+16*blk+2*q+1}')
        for b2 in range(2):
            for m in range(4):
                a(f'ds_read_u16 v{RESV[b2][m]}, v7 offset:{128*JM[m]+64*b2}')
        for b2 in range(2):
            D=f'v[{cur+16*b2}:{cur+16*b2+15}]'
            for blk in range(2):
                for sp in range(2):
                    f=(blk*2+sp)*2+b2
                    a(f'v_mfma_f32_32x32x16_bf16 {D}, v[{pk+8*blk+4*sp}:{pk+8*blk+4*sp+3}], v[{nxt+4*f}:{nxt+4*f+3}], {D}')
            if b2==0:
                a('s_waitcnt lgkmcnt(8)')
                a(f'v_mul_f32 v{acc}, v{vD2}, v{WXV[0]}')
                a(f'v_mul_f32 v{acc+1}, v{vD2+1}, v{WXV[0]+1}')
                for i in range(2,32):
                    a(f'v_fmac_f32 v{acc+(i&1)}, v{vD2+i}, v{WXV[i>>2]+(i&3)}')
                a(f'v_add_f32 v{acc}, v{acc}, v{acc+1}')
                a(f'v_mov_b32 v{acc+1}, v{acc}')
        a(f'v_permlane32_swap_b32 v{acc}, v{acc+1}')
        a(f"""
        v_lshlrev_b32 v11, 16, v11
        v_add_f32 v{acc}, v{acc}, v{acc+1}
        v_add_f32 v11, v11, v{acc}
        v_cvt_pk_bf16_f32 v11, v11, v11
        buffer_store_short v11, v10, s[{sO1}:{sO1+3}], 0 offen
        s_mov_b32 s54, {f32bits(-LOG2E)}
        """)
        for b2 in range(2):
            for m in range(4):
                a(f'v_mul_f32 v{T+4*b2+m}, s54, v{cur+16*b2+2*m}')
        for k in range(8): a(f'v_exp_f32 v{T+k}, v{T+k}')
        for k in range(8): a(f'v_add_f32 v{T+k}, 1.0, v{T+k}')
        for k in range(8): a(f'v_rcp_f32 v{T+k}, v{T+k}')
        a('s_waitcnt lgkmcnt(0)')
        for b2 in range(2):
            for m in range(4):
                x=cur+16*b2+2*m; t=T+4*b2+m; hh=RESV[b2][m]
                a(f'v_lshlrev_b32 v{hh}, 16, v{hh}')
                a(f'v_fma_f32 v{t}, v{x}, v{t}, v{hh}')
                a(f'v_cvt_pk_bf16_f32 v{t}, v{t}, v{t}')
        for b2 in range(2):
            for m in range(4):
                a(f'ds_write_b16 v7, v{T+4*b2+m} offset:{1024+128*JM[m]+64*b2}')
        a(f"""
        v_lshlrev_b32 v6, 4, v1
        v_add_u32 v6, s62, v6
        ds_read_b128 v[48:51], v6 offset:1024
        s_waitcnt lgkmcnt(0)
        buffer_store_dwordx4 v[48:51], v[240:241], s[{sO0}:{sO0+3}], 0 idxen offen{SC1O}
        """)
        st(10)
        if DEBUG_TM: a('s_waitcnt vmcnt(0)')
        st(11)
        stamp_store(a,vTM,98,44,45,0x80000,sV,254)
        a('s_endpgm')
    for p in range(2):
        a.label(f'L2_s{p}')
        if 'trim' in ABL:
            a(f's_cmp_ge_i32 s{sT}, s87\ns_cbranch_scc1 L2_l{p}')
        else:
            a(f'''
            s_add_u32 s54, s{sT}, 1
            s_cmp_ge_u32 s54, s{sNT}
            s_cbranch_scc1 L2_l{p}
            ''')
        if DEBUG_TM and p==0:
            for tt,ix in ((2,25),(4,26),(6,27),(8,28),(10,29)):
                a(f's_cmp_lg_u32 s{sT}, {tt}\ns_cbranch_scc1 Lst{ix}')
                stampc(a,ix,vTM,98)
                a.label(f'Lst{ix}')
        body(p, True)
        a(f's_add_u32 s{sT}, s{sT}, 1')
        if p==1:
            a(f'''
            v_add_u32 v{vRSa}, 128, v{vRSa}
            v_add_u32 v{vR0a}, 256, v{vR0a}
            v_add_u32 v{vR0e}, 256, v{vR0e}
            v_add_u32 v{vGe}, 512, v{vGe}
            s_branch L2_s0
            ''')
    for p in range(2):
        a.label(f'L2_l{p}')
        a(f'''
        s_cmp_lt_u32 s{sW1}, {NCH}
        s_cbranch_scc1 L2_l{p}n
        ''')
        body(p, False, None) if False else None
        for x in epi_prefetch(p): a(x)
        body(p, False, [epi_rows()])
        st(9)
        stampc(a,13,vTM,98)
        epilogue(p)
        a.label(f'L2_l{p}n')
        body(p, False)
        a('s_branch L2_nextbatch')
    a.label('L2_notiles')
    a(f'''
    s_cmp_lt_u32 s{sW1}, {NCH}
    s_cbranch_scc1 L2_nextbatch
    ''')
    for x in epi_prefetch(0): a(x)
    a(epi_rows())
    st(9)
    epilogue(0)
    a.label('L2_nextbatch')
    a(f'''
    s_waitcnt vmcnt(0) lgkmcnt(0)
    s_mov_b32 s{sW0}, s{sW1}
    s_add_u32 s{sW1}, s{sW1}, 1
    s_branch L2_batch
    ''')
    a.label('L2_end')
    a('s_endpgm')
    return a.finalize(), 256, 102, (L_END if 'hst' in ABL else L_HX)

def main():
    k1,v1,s1,l1 = gen_k1()
    k2,v2,s2,l2 = gen_k2()
    hdr = open('gather_scatter__cheap_equivariant_egnn__graph.s.ref').read().split('; Override launch')[0]
    out = hdr
    out += f'; @launch kernel=egnn_part_kernel grid=({NCH+1+NTW},1,1) block=(512,1,1) lds={l1}\n'
    out += f'; @launch kernel=egnn_main_kernel grid=({NBK},1,1) block=(512,1,1) lds={l2}\n'
    out += '''; Algorithm (two launches):
'''
    out += '.amdgcn_target "amdgcn-amd-amdhsa--gfx950"\n.text\n'
    for name,body in (('egnn_part_kernel',k1),('egnn_main_kernel',k2)):
        out += f'.globl {name}\n.p2align 8\n.type {name},@function\n' + body
    out += '.section .rodata,"a"\n'
    for name,nv,ns in (('egnn_part_kernel',v1,s1),('egnn_main_kernel',v2,s2)):
        acc=(nv+3)//4*4
        out += f'''.p2align 6
.amdhsa_kernel {name}
  .amdhsa_next_free_vgpr {nv}
  .amdhsa_next_free_sgpr {ns}
  .amdhsa_accum_offset {acc}
  .amdhsa_group_segment_fixed_size 0
  .amdhsa_kernarg_size 88
  .amdhsa_user_sgpr_count 2
  .amdhsa_user_sgpr_kernarg_segment_ptr 1
  .amdhsa_system_sgpr_workgroup_id_x 1
  .amdhsa_float_denorm_mode_32 3
.end_amdhsa_kernel
'''
    dst = [x for x in sys.argv[1:] if not x.startswith('--')]
    path = dst[0] if dst else 'gather_scatter__cheap_equivariant_egnn__graph.s'
    open(path,'w').write(out)
    print('wrote',path,len(out))
main()
```
